```python
import torch

def _softmax(x, axis=-1):
    return torch.softmax(x, dim=axis)
def _gelu(x):
    return torch.nn.functional.gelu(x, approximate="tanh")
def _silu(x):
    return torch.nn.functional.silu(x)
def _sigmoid(x):
    return torch.sigmoid(x)
def _layernorm(x, axis=-1, eps=1e-5):
    m = x.mean(dim=axis, keepdim=True)
    v = x.var(dim=axis, keepdim=True, unbiased=False)
    return (x - m) / torch.sqrt(v + eps)
def _scatter_add(tgt, idx, src, axis=0):
    return tgt.clone().index_add_(axis, idx, src)
def _segment_sum(src, seg, n):
    out = torch.zeros((n,) + src.shape[1:], dtype=src.dtype)
    return out.index_add_(0, seg, src)
def _pad(x, pw):
    flat = tuple(v for pair in reversed(pw) for v in pair)
    return torch.nn.functional.pad(x, flat)

kernel_name = 'sequential_preLN__mha_block__moe_arch_mod__prompt'

def setup_inputs():

    _w = (lambda a: (lambda t: t.to(torch.bfloat16) if t.is_floating_point() else t)(torch.as_tensor(a)))
    def _A_setup():
        B, S, D, H = 1, 2048, 448, 16
        return {
            "x": _w((lambda *s: torch.randn(*s, dtype=torch.bfloat16) * 0.05)(B, S, D)),
            "wqkv": _w((lambda *s: torch.randn(*s, dtype=torch.bfloat16) * 0.05)(D, 3 * D)),
            "wo": _w((lambda *s: torch.randn(*s, dtype=torch.bfloat16) * 0.05)(D, D)),
        }
    _A_in = _A_setup()

    def _B_setup():
        B, S, D, F, C = 1, 2048, 448, 1792, 8
        return {
            "x": _w((lambda *s: torch.randn(*s, dtype=torch.bfloat16) * 0.05)(B, S, D)),
            "w_r": _w((lambda *s: torch.randn(*s, dtype=torch.bfloat16) * 0.05)(D)),
            "w_gate": _w((lambda *s: torch.randn(*s, dtype=torch.bfloat16) * 0.05)(D, F)),
            "w_up": _w((lambda *s: torch.randn(*s, dtype=torch.bfloat16) * 0.05)(D, F)),
            "w_down": _w((lambda *s: torch.randn(*s, dtype=torch.bfloat16) * 0.05)(F, D)),
        }
    _B_in = _B_setup()

    return {
        "A_x": _A_in["x"],
        "A_wqkv": _A_in["wqkv"],
        "A_wo": _A_in["wo"],
        "B_x": _B_in["x"],
        "B_w_r": _B_in["w_r"],
        "B_w_gate": _B_in["w_gate"],
        "B_w_up": _B_in["w_up"],
        "B_w_down": _B_in["w_down"],
    }

def reference(A_x, A_wqkv, A_wo, B_x, B_w_r, B_w_gate, B_w_up, B_w_down):
    def _A_ref(x, wqkv, wo):
        B, S, D = x.shape
        H = 16
        Dh = D // H
        qkv = (lambda x, *d: x.permute(*d))((x @ wqkv).reshape(B, S, 3, H, Dh), 2, 0, 3, 1, 4)
        q, k, v = qkv[0], qkv[1], qkv[2]
        scores = torch.einsum("bhqd,bhkd->bhqk", q, k) * (Dh ** -0.5)
        p = _softmax(scores, axis=-1)
        o = torch.einsum("bhqk,bhkd->bhqd", p, v)
        return (lambda x, *d: x.permute(*d))(o, 0, 2, 1, 3).reshape(B, S, D) @ wo

    def _B_ref(x, w_r, w_gate, w_up, w_down):
        B, S, D = x.shape
        C = 8
        r = x @ w_r
        idx = torch.argsort(-r, axis=-1)[:, :C]
        idx_e = (lambda x, n, axis: torch.repeat_interleave(x, n, dim=axis))(idx.reshape(B, C, 1), D, axis=2)
        x_sel = (lambda x, i, axis: torch.take_along_dim(x, i, dim=axis))(x, idx_e, axis=1)
        g = _silu(x_sel @ w_gate)
        u = x_sel @ w_up
        y = (g * u) @ w_down
        r_sel = _sigmoid((lambda x, i, axis: torch.take_along_dim(x, i, dim=axis))(r, idx, axis=1))
        y = y * r_sel.reshape(B, C, 1)
        b_off = (torch.arange(B) * S).reshape(B, 1)
        flat_idx = (idx + b_off).reshape(B * C)
        zero = (x * 0.0).reshape(B * S, D)
        upd = _scatter_add(zero, flat_idx, y.reshape(B * C, D), axis=0)
        return x + upd.reshape(B, S, D)

    x = A_x
    h = x + _A_ref(_layernorm(x, axis=-1), A_wqkv, A_wo)
    h2 = h + _B_ref(_layernorm(h, axis=-1), B_w_r, B_w_gate, B_w_up, B_w_down)
    return h2
```

```python
import re

TRANS = ("v_exp_", "v_log_", "v_rcp_", "v_rsq_", "v_sqrt_", "v_sin_", "v_cos_")
_REG = re.compile(r"^-?(?:abs\()?\|?([vas])(?:(\d+)|\[(\d+):(\d+)\])\|?\)?$")


def regs_of(tok):
    tok = tok.strip()
    if tok == "vcc":
        return {("s", "vcc_lo"), ("s", "vcc_hi")}
    if tok in ("vcc_lo", "vcc_hi", "m0"):
        return {("s", tok)}
    if tok in ("exec", "exec_lo", "exec_hi"):
        return {("s", "exec")}
    m = _REG.match(tok)
    if not m:
        return set()
    k = m.group(1)
    if m.group(2) is not None:
        return {(k, int(m.group(2)))}
    return {(k, i) for i in range(int(m.group(3)), int(m.group(4)) + 1)}


class Ins:
    __slots__ = ("text", "op", "kind", "w", "r", "srcA", "srcC", "dst", "passes", "trans", "dot", "dpp",
                 "states", "target", "uncond", "store_data", "lanesel", "ldsdma", "sconst", "vaddr_s")

    def __init__(self, text):
        self.text = text
        t = text.split(";")[0].strip()
        parts = t.split(None, 1)
        op = parts[0]
        self.op = op
        rest = parts[1] if len(parts) > 1 else ""
        rest = re.sub(r"\s(op_sel|op_sel_hi|neg_lo|neg_hi|quad_perm):\[[^\]]*\]", " mod", rest)
        toks = [x.strip() for x in rest.split(",")] if rest else []
        mods = ""
        if toks:
            sp = toks[-1].split(None, 1)
            toks[-1] = sp[0]
            mods = sp[1] if len(sp) > 1 else ""
        R = [regs_of(x) for x in toks]
        self.w, self.r = set(), set()
        self.srcA, self.srcC, self.dst = set(), set(), set()
        self.passes = 0
        self.trans = op.startswith(TRANS)
        self.dot = op.startswith("v_dot")
        self.dpp = "_dpp" in op
        self.states = 1
        self.target = None
        self.uncond = False
        self.store_data = set()
        self.lanesel = set()
        self.ldsdma = False
        self.sconst = set()
        self.vaddr_s = set()
        U = lambda L: set().union(*L) if L else set()
        if op.startswith("v_mfma"):
            self.kind = "mfma"
            self.dst = R[0]
            self.w = R[0]
            self.srcA = R[1] | R[2]
            self.srcC = R[3]
            self.r = self.srcA | self.srcC
            self.passes = 8 if "32x32x16" in op else 4
        elif op.startswith("v_"):
            self.kind = "valu"
            if op.startswith("v_cmpx"):
                self.w = R[0] | {("s", "exec")}
                self.r = U(R[1:])
            elif op.startswith("v_permlane") and "swap" in op:
                self.w = R[0] | R[1]
                self.r = R[0] | R[1]
            elif re.match(r"v_(add|sub|subrev)_co_", op):
                self.w = R[0] | R[1]
                self.r = U(R[2:])
            elif re.match(r"v_(addc|subb|subbrev)_co_", op):
                self.w = R[0] | R[1]
                self.r = U(R[2:])
            elif op.startswith(("v_fmac", "v_dot2c", "v_pk_fmac")):
                self.w = R[0]
                self.r = U(R)
            elif op.startswith("v_writelane"):
                self.w = R[0]
                self.r = U(R)
                self.lanesel = R[2]
            elif op.startswith("v_readlane"):
                self.w = R[0]
                self.r = U(R[1:])
                self.lanesel = R[2]
            elif op in ("v_nop",):
                pass
            else:
                self.w = R[0]
                self.r = U(R[1:])
                if "UNUSED_PRESERVE" in mods or (self.dpp and "bound_ctrl" not in mods):
                    self.r |= R[0]
            if op.startswith("v_cndmask") and len(toks) == 3:
                self.r |= regs_of("vcc")
            self.sconst = {x for x in self.r if x[0] == "s"}
        elif op.startswith("ds_"):
            self.kind = "ds"
            if op.startswith(("ds_read", "ds_bpermute", "ds_permute", "ds_swizzle")):
                self.w = R[0]
                self.r = U(R[1:])
            else:
                self.r = U(R)
        elif op.startswith(("buffer_", "global_")):
            self.kind = "vmem"
            lds = re.search(r"\blds\b", mods) is not None
            if op.startswith("buffer_load"):
                if lds:
                    self.ldsdma = True
                    self.r = U(R) | {("s", "m0")}
                else:
                    self.w = R[0]
                    self.r = U(R[1:])
            elif op.startswith("buffer_store"):
                self.r = U(R)
                if "x3" in op or "x4" in op:
                    self.store_data = R[0]
            elif op.startswith("global_load"):
                self.w = R[0]
                self.r = U(R[1:])
            elif op.startswith("global_store"):
                self.r = U(R)
                if "x3" in op or "x4" in op:
                    self.store_data = R[1]
            else:
                self.r = U(R)
            self.vaddr_s = {x for x in self.r if x[0] == "s"}
        else:
            self.kind = "salu"
            if op == "s_nop":
                self.states = int(toks[0], 0) + 1
            elif op == "s_branch":
                self.target = toks[0]
                self.uncond = True
            elif op.startswith("s_cbranch"):
                self.target = toks[0]
            elif op == "s_endpgm":
                self.uncond = True
            elif op.startswith(("s_cmp", "s_waitcnt", "s_barrier", "s_sleep", "s_setprio", "s_bitcmp")):
                self.r = U(R)
            elif "saveexec" in op:
                self.w = R[0] | {("s", "exec")}
                self.r = U(R[1:])
            else:
                self.w = R[0] if R else set()
                self.r = U(R[1:])


def need(p, c):
    n = 0
    vw = {x for x in p.w if x[0] in "va"}
    sw = {x for x in p.w if x[0] == "s"}
    if p.kind == "valu":
        if c.kind == "mfma" and vw & c.r:
            n = max(n, 3 if p.dot else 2)
        if c.kind == "valu":
            if p.trans and not c.trans and vw & c.r:
                n = max(n, 1)
            if p.trans and c.trans and vw & c.r:
                n = max(n, 1)
            if c.dpp and vw & c.r:
                n = max(n, 2)
            if c.op.startswith("v_permlane") and vw & c.r:
                n = max(n, 2)
            if c.op.startswith(("v_readlane", "v_readfirstlane")) and vw & c.r:
                n = max(n, 1)
            if sw & c.sconst:
                n = max(n, 2)
            if sw & c.lanesel:
                n = max(n, 4)
            if ("s", "exec") in sw and (c.dpp or c.op.startswith(("v_permlane", "v_readlane", "v_readfirstlane", "v_writelane"))):
                n = max(n, 5)
            if "sdwa" in p.op and vw & (c.r | c.w):
                n = max(n, 1)
        if p.dot and vw & (c.r | c.w):
            if not (c.op == p.op and vw & c.w and not (vw & (c.r - c.w))):
                n = max(n, 3)
        if c.kind == "vmem" and sw & c.vaddr_s:
            n = max(n, 5)
        if c.kind == "mfma" and ("s", "exec") in sw:
            n = max(n, 4)
    if p.kind == "mfma":
        big = p.passes == 8
        if c.kind == "mfma":
            if p.dst & c.srcA:
                n = max(n, 12 if big else 8)
            if p.dst & c.srcC and not (p.dst == c.srcC and p.passes == c.passes):
                n = max(n, 10 if big else 6)
            if p.dst & c.dst and not (p.dst == c.srcC and p.passes == c.passes) and not (p.dst & c.srcC):
                if p.passes != c.passes:
                    n = max(n, 12 if big else 8)
        elif c.kind in ("valu", "ds", "vmem"):
            if p.dst & (c.r | c.w):
                n = max(n, 12 if big else 8)
            if c.kind == "valu" and p.srcC & c.w:
                n = max(n, 7 if big else 3)
    if p.kind == "vmem" and p.store_data and p.store_data & c.w and c.kind in ("valu", "mfma", "ds", "vmem"):
        n = max(n, 2)
    if p.kind == "salu" and ("s", "m0") in sw and c.ldsdma:
        n = max(n, 1)
    return n


class Asm:
    def __init__(self):
        self.items = []
        self.uid = 0

    def __call__(self, text):
        for line in text.split("\n"):
            s = line.strip()
            if not s or s.startswith(";"):
                continue
            if s.endswith(":"):
                self.items.append(("l", s[:-1]))
            elif s.startswith("."):
                self.items.append(("d", s))
            else:
                self.items.append(("i", Ins(s)))

    def label(self, stem):
        self.uid += 1
        return f"L_{stem}_{self.uid}"

    def pad(self, verbose=False):
        total = 0
        for _ in range(600):
            items = self.items
            lab = {x[1]: i for i, x in enumerate(items) if x[0] == "l"}
            jumps = {}
            for i, x in enumerate(items):
                if x[0] == "i" and x[1].target:
                    jumps.setdefault(lab[x[1].target], []).append(i)
            ins_at = []
            for ci, x in enumerate(items):
                if x[0] != "i":
                    continue
                c = x[1]
                if c.kind == "salu" and not c.r and not c.w:
                    continue
                worst = 0
                stack = [(ci - 1, 0)]
                seen = {}
                while stack:
                    j, d = stack.pop()
                    while j >= 0 and d < 13:
                        if seen.get(j, 99) <= d:
                            break
                        seen[j] = d
                        y = items[j]
                        if y[0] == "l":
                            for b in jumps.get(j, ()):
                                stack.append((b - 1, d + 1))
                            k = j - 1
                            while k >= 0 and items[k][0] == "d":
                                k -= 1
                            if k >= 0 and items[k][0] == "i" and items[k][1].uncond:
                                break
                        elif y[0] == "i":
                            nd = need(y[1], c)
                            if nd > d:
                                worst = max(worst, nd - d)
                            d += y[1].states
                        j -= 1
                if worst:
                    ins_at.append((ci, worst))
            if not ins_at:
                break
            out, last, k = [], -100, 0
            todo = {}
            for ci, wv in ins_at:
                if ci - last > 14:
                    todo[ci] = wv
                    last = ci
            for i, x in enumerate(items):
                if i in todo:
                    out.append(("i", Ins(f"s_nop {todo[i]-1}")))
                    total += todo[i]
                    if verbose:
                        print(f"pad {todo[i]} before: {x[1].text}")
                out.append(x)
            self.items = out
        else:
            raise RuntimeError("padding did not converge")
        return total

    def text(self):
        o = []
        for k, x in self.items:
            if k == "i":
                o.append("  " + x.text)
            elif k == "l":
                o.append(x + ":")
            else:
                o.append(x)
        return "\n".join(o) + "\n"
```

```python
import sys, os, struct
sys.path.insert(0, os.path.dirname(os.path.abspath(__file__)))
from asmb import Asm

NAME = "sequential_preLN__mha_block__moe_arch_mod__prompt_kernel"

WS_EPOCH = 0
WS_KVF = 0x1000
WS_CLF = 0x3000
WS_KEYS = 0x4000
WS_STATS = 0x20000
WS_KV = 0x100000
WS_OF = 0x500000
WS_HN = 0x700000
WS_HH = 0x900000
WS_Y = 0xB00000
WS_TS = 0xC00000
WS_SIZE = 0x1000000

L_W = 0
L_XR = 86016
L_CS = 151552
L_RS = 154624
L_QX = 155648
L_WO = 0
L_CB = 114688
L_ST = 147456
L_TR = 114688
L_SEL = 149504
L_AX = 149760
L_G = 138240
L_WG = 0
L_WU = 28672
L_WD = 57344
LDS_BYTES = 163840

SX, SWQ, SWS, SWO, SOUT, SWG, SWU, SWD, SWR = 8, 12, 16, 20, 24, 28, 32, 36, 40
sW, sH, sB, sT, sC, sNON, sI, sXCD = 44, 45, 46, 47, 48, 49, 50, 51
sKG = 52
sXO = 59
sONE = 60
sT0, sT1, sT2 = 61, 62, 63
sLO = 86
sM = 88
sA0, sA1, sA2, sA3, sA4, sA5 = 90, 91, 92, 93, 94, 95
sSPIN = 96
sPASS = 97
sTH = 98
sTS = 64
SPIN_MAX = 1 << 17

LOG2E = 1.4426950408889634


def fbits(x):
    return struct.unpack("<I", struct.pack("<f", x))[0]


def srd(r):
    return f"s[{r}:{r+3}]"


def vr(a, n):
    return f"v[{a}:{a+n-1}]" if n > 1 else f"v{a}"


def M32(d, a, b, c=None):
    return f"v_mfma_f32_32x32x16_bf16 {vr(d,16)}, {vr(a,4)}, {vr(b,4)}, {vr(c,16) if c is not None else 0}"


def M16(d, a, b, c=None):
    return f"v_mfma_f32_16x16x32_bf16 {vr(d,4)}, {vr(a,4)}, {vr(b,4)}, {vr(c,4) if c is not None else 0}"


class Gen:
    def __init__(self, stop=None, ts=False, rot=True, force_fb=False, **kw):
        self.a = Asm()
        self.stop = stop
        self.ts = ts
        self.rot = rot
        self.force_fb = force_fb
        self.nts = 0
        self.tsn = []
        for k, v in kw.items():
            setattr(self, k, v)

    def stamp(self, name=""):
        if not self.ts:
            return
        k = self.nts
        self.nts += 1
        self.tsn.append(name)
        assert k < 32
        self.a(f"""
        s_memrealtime s[100:101]
        s_waitcnt lgkmcnt(0)
        v_writelane_b32 v254, s100, {k}
        s_memtime s[100:101]
        s_waitcnt lgkmcnt(0)
        v_writelane_b32 v254, s100, {32+k}
        """.replace("v254", self.TSV))

    def spin_guard(self, out_label):
        self.a(f"""
        s_add_u32 s{sSPIN}, s{sSPIN}, 1
        s_cmp_gt_u32 s{sSPIN}, {SPIN_MAX}
        s_cbranch_scc1 {out_label}
        """)

    def xhalf_sum(self, x, t):
        self.a(f"""
        v_mov_b32 v{t}, v{x}
        v_permlane32_swap_b32 v{x}, v{t}
        v_add_f32 v{x}, v{x}, v{t}
        """)

    def ln_scalars(self, S1, S2, mb, rs, t0, t1):
        self.a(f"""
        v_mul_f32 v{mb}, {hex(fbits(1/448))}, v{S1}
        v_mul_f32 v{t0}, {hex(fbits(1/448))}, v{S2}
        v_fma_f32 v{t0}, -v{mb}, v{mb}, v{t0}
        v_max_f32 v{t0}, 0, v{t0}
        v_cvt_pk_bf16_f32 v{t1}, v{mb}, v{t0}
        v_lshlrev_b32 v{mb}, 16, v{t1}
        v_and_b32 v{t0}, 0xffff0000, v{t1}
        v_add_f32 v{t0}, {hex(fbits(1e-5))}, v{t0}
        v_cvt_pk_bf16_f32 v{t0}, v{t0}, v{t0}
        v_and_b32 v{t0}, 0xffff0000, v{t0}
        v_sqrt_f32 v{t0}, v{t0}
        v_cvt_pk_bf16_f32 v{t0}, v{t0}, v{t0}
        v_and_b32 v{t0}, 0xffff0000, v{t0}
        v_rcp_f32 v{rs}, v{t0}
        """)

    def neg_split2(self, d, x, t):
        self.a(f"""
        v_cvt_pk_bf16_f32 v{t}, -v{x}, -v{x}
        v_and_b32 v{t}, 0xffff0000, v{t}
        v_sub_f32 v{d}, -v{x}, v{t}
        v_cvt_pk_bf16_f32 v{d}, v{t}, v{d}
        """.replace("v_sub_f32 ", "v_sub_f32_e64 "))

    def prologue(self):
        a = self.a
        a(f"""
        s_cmp_ge_u32 s2, 256
        s_cbranch_scc1 L_end
        """)
        self.stamp("entry")
        a(f"""
        s_load_dwordx16 s[64:79], s[0:1], 0
        s_load_dwordx4 s[80:83], s[0:1], 64
        s_load_dwordx2 s[84:85], s[0:1], 80
        v_lshrrev_b32 v1, 6, v0
        v_and_b32 v0, 63, v0
        s_and_b32 s{sXCD}, s2, 7
        s_lshr_b32 s{sI}, s2, 3
        v_readfirstlane_b32 s{sW}, v1
        s_lshr_b32 s{sT0}, s{sXCD}, 1
        s_and_b32 s{sT1}, s{sXCD}, 1
        s_and_b32 s{sC}, s{sI}, 3
        s_lshr_b32 s{sT2}, s{sI}, 2
        s_lshl_b32 s{sH}, s{sT0}, 2
        s_add_u32 s{sH}, s{sH}, s{sC}
        s_lshl_b32 s{sH}, s{sH}, 2
        s_mov_b32 s{sA0}, {self.HMAP & 0xffffffff}
        s_mov_b32 s{sA1}, {self.HMAP >> 32}
        s_lshr_b64 s[{sA0}:{sA1}], s[{sA0}:{sA1}], s{sH}
        s_and_b32 s{sH}, s{sA0}, 15
        s_lshl_b32 s{sB}, s{sT1}, 3
        s_add_u32 s{sB}, s{sB}, s{sT2}
        s_lshl_b32 s{sT}, s{sT1}, 5
        s_lshl_b32 s{sT0}, s{sT0}, 3
        s_add_u32 s{sT}, s{sT}, s{sT0}
        s_add_u32 s{sT}, s{sT}, s{sT2}
        s_mov_b32 s{sONE}, 0x3f803f80
        s_mov_b32 s{sLO}, -1
        s_mov_b32 s{sLO+1}, 0
        s_mov_b32 s{sSPIN}, 0
        s_mov_b32 s{sPASS}, 0
        """)
        if self.rot:
            a(f"""
            s_lshl_b32 s{sA0}, s{sC}, 1
            s_add_u32 s{sA0}, s{sA0}, s{sT2}
            s_cmp_ge_u32 s{sA0}, 7
            s_cselect_b32 s{sA1}, 7, 0
            s_sub_u32 s{sA0}, s{sA0}, s{sA1}
            """)
        else:
            a(f"s_mov_b32 s{sA0}, 0")
        a(f"""
        v_lshrrev_b32 v22, 3, v0
        v_mul_u32_u24 v22, 896, v22
        v_lshrrev_b32 v23, 4, v0
        v_and_b32 v24, 7, v0
        v_xor_b32 v23, v23, v24
        v_lshl_add_u32 v1, v23, 4, v22
        v_xor_b32 v23, 4, v23
        v_lshl_add_u32 v2, v23, 4, v22
        v_add_u32 v2, {7168-1024}, v2
        v_add_u32 v3, {2*(7168-1024)}, v1
        v_add_u32 v4, {2*(7168-1024)}, v2
        v_lshrrev_b32 v22, 2, v0
        v_mul_u32_u24 v22, 2688, v22
        v_and_b32 v23, 3, v0
        v_lshlrev_b32 v23, 4, v23
        v_min_u32 v23, 40, v23
        v_add_u32 v5, v23, v22
        """)
        a(f"""
        s_lshl_b32 s{sXO}, s{sB}, 2
        s_add_u32 s{sXO}, s{sXO}, s{sW}
        s_mul_i32 s{sXO}, s{sXO}, {32*896}
        """)
        for G in range(7):
            a(f"s_mov_b32 s{sKG+G}, s{sA0}")
            if G < 6:
                a(f"""
                s_add_u32 s{sA0}, s{sA0}, 1
                s_cmp_eq_u32 s{sA0}, 7
                s_cselect_b32 s{sA0}, 0, s{sA0}
                """)
        a(f"""
        s_mul_i32 s{sA1}, s{sW}, {16*2688}
        s_mul_i32 s{sA2}, s{sH}, 56
        s_add_u32 s{sA1}, s{sA1}, s{sA2}
        s_add_u32 s{sA1}, s{sA1}, 896
        s_lshl_b32 s{sA2}, s{sW}, 14
        s_add_u32 s{sA2}, s{sA2}, {L_XR}
        s_mul_i32 s{sA3}, s{sW}, 21504
        s_waitcnt lgkmcnt(0)
        s_load_dword s{sNON}, s[84:85], 0
        s_mov_b32 s{SX}, s64
        s_mov_b32 s{SX+1}, s65
        s_mov_b32 s{SX+2}, {2048*896}
        s_mov_b32 s{SX+3}, 0x20000
        s_mov_b32 s{SWQ}, s66
        s_mov_b32 s{SWQ+1}, s67
        s_mov_b32 s{SWQ+2}, {448*2688}
        s_mov_b32 s{SWQ+3}, 0x20000
        """)
        self.dma_group(0)
        for r, p, n in ((SWS, 84, WS_SIZE), (SWO, 68, 448 * 896), (SOUT, 80, 2048 * 896), (SWG, 74, 448 * 3584),
                        (SWU, 76, 448 * 3584), (SWD, 78, 1792 * 896), (SWR, 72, 896)):
            a(f"""
            s_mov_b32 s{r}, s{p}
            s_mov_b32 s{r+1}, s{p+1}
            s_mov_b32 s{r+2}, {n}
            s_mov_b32 s{r+3}, 0x20000
            """)
        a(f"""
        v_and_b32 v22, 31, v0
        v_lshrrev_b32 v23, 5, v0
        v_lshrrev_b32 v24, 1, v22
        v_and_b32 v24, 7, v24
        v_xor_b32 v24, v24, v23
        v_lshlrev_b32 v22, 7, v22
        v_add_u32 v22, s{sA2}, v22
        v_lshrrev_b32 v25, 2, v0
        v_and_b32 v25, 3, v25
        v_lshl_add_u32 v25, v23, 3, v25
        v_lshlrev_b32 v25, 6, v25
        v_lshrrev_b32 v26, 4, v0
        v_and_b32 v26, 1, v26
        v_lshl_add_u32 v25, v26, 5, v25
        v_lshrrev_b32 v27, 1, v0
        v_and_b32 v27, v27, v26
        v_and_b32 v26, 3, v0
        v_xor_b32 v26, v26, v27
        v_lshl_add_u32 v25, v26, 3, v25
        """)
        for p in range(4):
            a(f"""
            s_add_u32 s{sT0}, s{sW}, {p}
            s_and_b32 s{sT0}, s{sT0}, 3
            s_lshl_b32 s{sT1}, s{sT0}, 1
            s_mul_i32 s{sT2}, s{sT0}, 21504
            v_xor_b32 v26, s{sT1}, v24
            v_lshl_add_u32 v{6+p}, v26, 4, v22
            v_add_u32 v{10+p}, s{sT2}, v25
            """)
        for r in list(range(14, 22)) + [31, 97, 98, 99, 101, 102, 103, 105, 106, 107]:
            a(f"v_mov_b32 v{r}, 0")
        for G in range(1, self.LA):
            self.dma_group(G)
        self.stamp("issued")

    def dma_group(self, G, emit=True):
        t = f"""
        s_lshl_b32 s{sT0}, s{sKG+G}, 7
        s_add_u32 s{sT0}, s{sT0}, s{sXO}
        s_add_u32 m0, s{sA2}, {(G%4)*4096}
        s_mul_i32 s{sKG+G}, s{sKG+G}, {64*2688}
        buffer_load_dwordx4 v1, {srd(SX)}, s{sT0} offen lds
        buffer_load_dwordx4 v2, {srd(SX)}, s{sT0} offen offset:1024 lds
        buffer_load_dwordx4 v3, {srd(SX)}, s{sT0} offen offset:2048 lds
        buffer_load_dwordx4 v4, {srd(SX)}, s{sT0} offen offset:3072 lds
        s_add_u32 m0, s{sA3}, {L_W+G*3072}
        s_add_u32 s{sKG+G}, s{sKG+G}, s{sA1}
        s_sub_u32 s{sT1}, s{sKG+G}, 128
        buffer_load_dwordx4 v5, {srd(SWQ)}, s{sKG+G} offen lds
        buffer_load_dwordx4 v5, {srd(SWQ)}, s{sT1} offen offset:1024 lds
        """
        if emit:
            self.a(t)
        return [x.strip() for x in t.strip().split("\n")]

    def dma_q(self, G):
        return [f"s_add_u32 m0, s{sA3}, {L_W+G*3072+2048}", f"s_sub_u32 s{sT1}, s{sKG+G}, 896",
                f"buffer_load_dwordx4 v5, {srd(SWQ)}, s{sT1} offen lds"]

    LA = 2
    HMAP = sum(h << (4 * k) for k, h in enumerate([2, 4, 6, 0, 9, 11, 13, 15, 1, 3, 5, 7, 8, 10, 12, 14]))
    TSV = 'v29'
    p1_stamps = ()
    NT = 0

    def touches(self):
        return []

    def p1(self):
        a = self.a
        XF, AK, AV, AQ, WF = 128, 32, 48, 64, 80
        XE = 96
        RS = 108
        KO, VO = 240, 248
        s1, s2, csK, csV = (14, 15), (16, 17), 18, 19
        WEK, WEV = 100, 104
        nt = self.NT
        LA = self.LA
        queue = [("g", g) for g in range(LA) for _ in range(6)]

        def newer(tag):
            k = max(i for i, t in enumerate(queue) if t == tag)
            return len(queue) - 1 - k

        def xstats(n):
            for i in range(4):
                a(f"v_dot2c_f32_bf16 v{s1[i%2]}, s{sONE}, v{XF+4*n+i}")
                a(f"v_dot2c_f32_bf16 v{s2[i%2]}, v{XF+4*n+i}, v{XF+4*n+i}")

        WBS = ([80, 88, 240, 248], [64, 72, 108, 116])

        def greads(G):
            WB = WBS[G % 2]
            r = [f"ds_read_b128 {vr(XF+4*(4*G+q),4)}, v{6+q} offset:{(G%4)*4096}" for q in range(4)]
            r += [f"ds_read_b64_tr_b16 {vr(WB[p]+4*t+2*hlf,2)}, v{10+p} offset:{G*3072+t*1024+hlf*256}"
                  for p in range(4) for t in range(2) for hlf in range(2)]
            return r

        def lines(t):
            return [x.strip() for x in t.strip().split("\n") if x.strip()]

        a(f"s_waitcnt vmcnt({newer(('g', 0))})\ns_barrier")
        self.stamp("g0")
        for x in greads(0):
            a(x)
        qnext = 0
        for G in range(7):
            WB = WBS[G % 2]
            if G in self.p1_stamps:
                self.stamp(f"G{G}")
            a("s_waitcnt lgkmcnt(12)")
            for i in range(4):
                a(f"v_dot2c_f32_bf16 v{csK}, s{sONE}, v{WB[0]+i}")
                a(f"v_dot2c_f32_bf16 v{csV}, s{sONE}, v{WB[0]+4+i}")
            xstats(4 * G)
            if G == 6:
                a(f"""
                ds_write_b32 v24, v{csK}
                ds_write_b32 v24, v{csV} offset:1024
                """)
            for q in range(1, 4):
                xstats(4 * G + q)
            gaps = [[] for _ in range(8)]
            early = []
            if G + LA <= 6:
                early = self.dma_group(G + LA, emit=False)
                queue += [("g", G + LA)] * 6
            elif G < 6:
                nq = 7 - qnext if G == 5 else -(-7 // (LA - 1))
                for k in range(qnext, qnext + nq):
                    early += self.dma_q(k)
                    queue.append(("q", 0))
                qnext += nq
                if G == 5:
                    early += self.touches()
                    queue += [("t", 0)] * nt
            if G == 0:
                early += lines(f"""s_waitcnt lgkmcnt(0)
                s_mul_i32 s{sNON}, s{sNON}, 0x19660d
                s_add_u32 s{sNON}, s{sNON}, 0x3c6ef35f
                v_mov_b32 v30, s{sNON}""")
            if G == 4:
                early += lines(f"""v_and_b32 v22, 31, v0
                v_lshlrev_b32 v22, 5, v22
                v_add_u32 v23, {L_CS}, v22
                v_lshrrev_b32 v24, 5, v0
                s_lshl_b32 s{sT0}, s{sW}, 3
                v_lshl_add_u32 v24, v24, 2, v23
                v_add_u32 v24, s{sT0}, v24""")
            if G < 6:
                per = -(-len(early) // 3)
                for k in range(3):
                    gaps[k] = early[k * per:(k + 1) * per]
                rd = greads(G + 1)
                gaps[2] += [f"s_waitcnt vmcnt({newer(('g', G+1))})", "s_barrier"]
                for k in range(5):
                    gaps[3 + k] = rd[4 * k:4 * k + 4]
            else:
                sub = Gen()
                sub.a(f"""
                v_add_f32 v14, v14, v15
                v_add_f32 v16, v16, v17
                v_permlane32_swap_b32 v14, v16
                v_add_f32 v14, v14, v16
                v_mov_b32 v16, v14
                v_permlane32_swap_b32 v14, v16
                """)
                sub.ln_scalars(14, 16, 26, 28, 24, 25)
                sub.a(f"""
                v_lshrrev_b32 v24, 16, v26
                v_or_b32 v24, v24, v26
                v_cndmask_b32 v{XE}, 0, v24, s[{sLO}:{sLO+1}]
                v_and_b32 v24, 31, v0
                s_lshl_b32 s{sT0}, s{sW}, 7
                s_add_u32 s{sT0}, s{sT0}, {L_RS}
                v_lshl_add_u32 v24, v24, 2, s{sT0}
                v_lshrrev_b32 v25, 5, v0
                v_lshl_add_u32 v25, v25, 4, s{sT0}
                ds_write_b32 v24, v28
                """)
                A = [x[1].text for x in sub.a.items]
                sub = Gen()
                for mat, we in ((0, WEK), (1, WEV)):
                    r = RS + 8 * mat
                    sub.a(f"""
                    v_add_f32 v{r}, v{r}, v{r+1}
                    v_add_f32 v{r+2}, v{r+2}, v{r+3}
                    v_add_f32 v{r+4}, v{r+4}, v{r+5}
                    v_add_f32 v{r+6}, v{r+6}, v{r+7}
                    v_add_f32 v{r}, v{r}, v{r+2}
                    v_add_f32 v{r+4}, v{r+4}, v{r+6}
                    v_add_f32 v{r}, v{r}, v{r+4}
                    """)
                    sub.neg_split2(we, r, 22)
                Bc = [x[1].text for x in sub.a.items]
                gaps[0] = A[:5] + ["s_waitcnt lgkmcnt(0)", "s_barrier"] + \
                    [f"ds_read_b128 {vr(RS+4*i,4)}, v23 offset:{(i//2)*1024+(i%2)*16}" for i in range(4)]
                A = A[5:]
                mix = A[:10] + ["s_waitcnt lgkmcnt(0)"]
                A = A[10:]
                while A or Bc:
                    mix += A[:1] + Bc[:1]
                    A, Bc = A[1:], Bc[1:]
                per = -(-len(mix) // 7)
                for k in range(7):
                    gaps[1 + k] = mix[k * per:(k + 1) * per]
            for p in range(4):
                m = 4 * G + p
                if p == 1 and G < 6:
                    a("s_waitcnt lgkmcnt(0)")
                a(M32(AK, WB[p], XF + 4 * m, AK if m else None))
                for x in gaps[2 * p]:
                    a(x)
                a(M32(AV, XF + 4 * m, WB[p] + 4, AV if m else None))
                for x in gaps[2 * p + 1]:
                    a(x)
        a(M32(AK, WEK, XE, AK))
        a(M32(AV, XE, WEV, AV))
        a("s_waitcnt lgkmcnt(0)")
        for g in range(4):
            a(f"ds_read_b128 {vr(RS+4*g,4)}, v25 offset:{g*32}")
        a(f"""
        v_lshlrev_b32 v1, 4, v0
        s_lshl_b32 s{sA0}, s{sH}, 4
        s_add_u32 s{sA0}, s{sA0}, s{sB}
        s_lshl_b32 s{sA0}, s{sA0}, 2
        s_add_u32 s{sA0}, s{sA0}, s{sW}
        s_lshl_b32 s{sA0}, s{sA0}, 12
        s_add_u32 s{sA0}, s{sA0}, {WS_KV}
        v_and_b32 v22, 31, v0
        v_cmp_gt_u32 vcc, 28, v22
        v_cndmask_b32 v23, 0, -1, vcc
        v_cmp_eq_u32 vcc, 28, v22
        v_mov_b32 v24, s{sONE}
        v_mov_b32 v27, 0x3f80
        v_cndmask_b32 v22, 0, v24, vcc
        """)
        for i in range(8):
            a(f"v_pk_mul_f32 {vr(AK+2*i,2)}, {vr(AK+2*i,2)}, {vr(28,2)} op_sel_hi:[1,0]")
        for i in range(8):
            a(f"v_cvt_pk_bf16_f32 v{KO+i}, v{AK+2*i}, v{AK+2*i+1}")
        a(f"""
        v_cndmask_b32 v{KO+6}, v24, v{KO+6}, s[{sLO}:{sLO+1}]
        v_cndmask_b32 v{KO+7}, v27, v{KO+7}, s[{sLO}:{sLO+1}]
        buffer_store_dwordx4 {vr(KO,4)}, v1, {srd(SWS)}, s{sA0} offen sc1
        buffer_store_dwordx4 {vr(KO+4,4)}, v1, {srd(SWS)}, s{sA0} offen offset:1024 sc1
        s_waitcnt lgkmcnt(0)
        """)
        for i in range(8):
            a(f"v_pk_mul_f32 {vr(AV+2*i,2)}, {vr(AV+2*i,2)}, {vr(RS+2*i,2)}")
        for i in range(8):
            a(f"v_cvt_pk_bf16_f32 v{VO+i}, v{AV+2*i}, v{AV+2*i+1}")
        for i in range(8):
            a(f"v_and_or_b32 v{VO+i}, v{VO+i}, v23, v22")
        a(f"""
        buffer_store_dwordx4 {vr(VO,4)}, v1, {srd(SWS)}, s{sA0} offen offset:2048 sc1
        buffer_store_dwordx4 {vr(VO+4,4)}, v1, {srd(SWS)}, s{sA0} offen offset:3072 sc1
        """)
        self.stamp("kvpub")
        ncl = self.clears()
        QW = 32
        a(f"s_waitcnt vmcnt({nt+4+ncl})")
        for G in range(7):
            for hlf in range(2):
                a(f"ds_read_b64_tr_b16 {vr(QW+4*G+2*hlf,2)}, v10 offset:{G*3072+2048+hlf*256}")
        a(f"""
        v_and_b32 v22, 31, v0
        v_lshlrev_b32 v22, 5, v22
        v_add_u32 v23, {L_CS}, v22
        v_lshrrev_b32 v24, 5, v0
        s_lshl_b32 s{sT0}, s{sW}, 3
        v_lshl_add_u32 v24, v24, 2, v23
        v_add_u32 v24, s{sT0}, v24
        """)
        for G in range(7):
            a(f"s_waitcnt lgkmcnt({12-2*G})")
            for i in range(4):
                a(f"v_dot2c_f32_bf16 v{20+i%2}, s{sONE}, v{QW+4*G+i}")
        a(f"""
        v_add_f32 v20, v20, v21
        ds_write_b32 v24, v20 offset:2048
        s_waitcnt lgkmcnt(0)
        s_barrier
        ds_read_b128 {vr(RS,4)}, v23 offset:2048
        ds_read_b128 {vr(RS+4,4)}, v23 offset:2064
        """)
        steps = [(G, p) for p in range(1, 4) for G in range(7)]

        def qread(n):
            G, p = steps[n]
            return [f"ds_read_b64_tr_b16 {vr(WF+4*(n%4)+2*hlf,2)}, v{10+p} offset:{G*3072+2048+hlf*256}" for hlf in range(2)]

        for G in range(7):
            a(M32(AQ, QW + 4 * G, XF + 16 * G, AQ if G else None))
            if G < 3:
                for x in qread(G):
                    a(x)
            if G == 3:
                a(f"""
                s_waitcnt lgkmcnt(6)
                v_add_f32 v{RS}, v{RS}, v{RS+1}
                v_add_f32 v{RS+2}, v{RS+2}, v{RS+3}
                v_add_f32 v{RS+4}, v{RS+4}, v{RS+5}
                v_add_f32 v{RS+6}, v{RS+6}, v{RS+7}
                """)
            if G == 4:
                a(f"""
                v_add_f32 v{RS}, v{RS}, v{RS+2}
                v_add_f32 v{RS+4}, v{RS+4}, v{RS+6}
                v_add_f32 v{RS}, v{RS}, v{RS+4}
                """)
            if G == 5:
                self.neg_split2(WEV, RS, 22)
        for n in range(21):
            G, p = steps[n]
            a(f"s_waitcnt lgkmcnt({min(4, 2*(20-n))})")
            a(M32(AQ, WF + 4 * (n % 4), XF + 4 * (4 * G + p), AQ))
            if n + 3 < 21:
                for x in qread(n + 3):
                    a(x)
        a(M32(AQ, WEV, XE, AQ))
        a(f"""
        s_waitcnt vmcnt({ncl})
        s_lshl_b32 s{sT0}, s{sH}, 2
        s_add_u32 s{sT0}, s{sT0}, s{sW}
        s_lshl_b32 s{sT0}, s{sT0}, 7
        s_add_u32 s{sA1}, s{sT0}, {WS_KVF}
        s_lshl_b32 s{sT1}, s{sB}, 2
        s_add_u32 s{sT1}, s{sT1}, s{sA1}
        s_mov_b64 exec, 1
        buffer_store_dword v30, v31, {srd(SWS)}, s{sT1} offen sc1
        s_mov_b64 exec, -1
        """)
        a(f"v_mul_f32 v28, {hex(fbits(LOG2E*28**-0.5))}, v28")
        QO = 80
        for i in range(8):
            a(f"v_pk_mul_f32 {vr(AQ+2*i,2)}, {vr(AQ+2*i,2)}, {vr(28,2)} op_sel_hi:[1,0]")
        for i in range(8):
            a(f"v_cvt_pk_bf16_f32 v{QO+i}, v{AQ+2*i}, v{AQ+2*i+1}")
        a(f"""
        v_cndmask_b32 v{QO+6}, 0, v{QO+6}, s[{sLO}:{sLO+1}]
        v_cndmask_b32 v{QO+7}, 0, v{QO+7}, s[{sLO}:{sLO+1}]
        """)
        S = 32
        a(M32(S, KO, QO))
        a(M32(S, KO + 4, QO + 4, S))
        a(f"""
        s_lshl_b32 s{sT0}, s{sW}, 11
        s_add_u32 s{sT0}, s{sT0}, {L_QX}
        v_add_u32 v2, s{sT0}, v1
        """)
        for p in range(4):
            a(f"""
            s_add_u32 s{sT0}, s{sW}, {p+1}
            s_and_b32 s{sT0}, s{sT0}, 3
            s_lshl_b32 s{sT0}, s{sT0}, 11
            s_add_u32 s{sT0}, s{sT0}, {L_QX}
            v_add_u32 v{3+p}, s{sT0}, v1
            """)
        self.rowmax16(S, 22)
        if self.force_fb:
            a("v_add_f32 v22, 0xc3480000, v22")
        self.shift_split(22, 23, 24, 25)
        a(f"""
        v_cndmask_b32 v{QO+6}, v23, v{QO+6}, s[{sLO}:{sLO+1}]
        v_cndmask_b32 v{QO+7}, v24, v{QO+7}, s[{sLO}:{sLO+1}]
        ds_write_b128 v2, {vr(QO,4)}
        ds_write_b128 v2, {vr(QO+4,4)} offset:1024
        s_waitcnt lgkmcnt(0)
        s_barrier
        """)
        for p in range(4):
            a(f"ds_read_b128 {vr(128+8*p,4)}, v{3+p}")
            a(f"ds_read_b128 {vr(128+8*p+4,4)}, v{3+p} offset:1024")
        self.stamp("qdone")

    def rowmax16(self, S, d):
        self.a(f"""
        v_max3_f32 v{d}, v{S}, v{S+1}, v{S+2}
        v_max3_f32 v{d+1}, v{S+3}, v{S+4}, v{S+5}
        v_max3_f32 v{d}, v{d}, v{S+6}, v{S+7}
        v_max3_f32 v{d+1}, v{d+1}, v{S+8}, v{S+9}
        v_max3_f32 v{d}, v{d}, v{S+10}, v{S+11}
        v_max3_f32 v{d+1}, v{d+1}, v{S+12}, v{S+13}
        v_max3_f32 v{d}, v{d}, v{S+14}, v{S+15}
        v_max_f32 v{d}, v{d}, v{d+1}
        v_mov_b32 v{d+1}, v{d}
        v_permlane32_swap_b32 v{d}, v{d+1}
        v_max_f32 v{d}, v{d}, v{d+1}
        """)

    def shift_split(self, m, d6, d7, t):
        self.a(f"""
        v_cvt_pk_bf16_f32 v{d6}, -v{m}, -v{m}
        v_and_b32 v{d6}, 0xffff0000, v{d6}
        v_sub_f32_e64 v{d7}, -v{m}, v{d6}
        v_cvt_pk_bf16_f32 v{t}, v{d7}, v{d7}
        v_and_b32 v{t}, 0xffff0000, v{t}
        v_sub_f32 v{d7}, v{d7}, v{t}
        v_cvt_pk_bf16_f32 v{d6}, v{d6}, v{t}
        v_cvt_pk_bf16_f32 v{d7}, v{d7}, 0
        """)

    def clears(self):
        a = self.a
        n = 0
        a(f"""
        v_mov_b32 v124, -1
        v_mov_b32 v125, -1
        v_mov_b32 v126, -1
        v_mov_b32 v127, -1
        s_lshl_b32 s{sT0}, s{sB}, 2
        s_add_u32 s{sT0}, s{sT0}, s{sW}
        s_lshl_b32 s{sT0}, s{sT0}, 4
        s_add_u32 s{sT0}, s{sT0}, s{sH}
        s_lshl_b32 s{sT0}, s{sT0}, 11
        s_add_u32 s99, s{sT0}, {WS_OF}
        buffer_store_dwordx4 v[124:127], v1, {srd(SWS)}, s99 offen sc1
        buffer_store_dwordx4 v[124:127], v1, {srd(SWS)}, s99 offen offset:1024 sc1
        """)
        n += 2
        return n + self.clears_tail()

    def clears_tail(self):
        return 0

    Q, O, SA, SB, TT, P = 128, 160, 32, 48, 64, 72
    KVB = (240, 224, 80)

    def unit(self, n, buf, bufn, bufp, qt, first_tile=False, extra=None):
        a = self.a
        Q, O, TT, P = self.Q, self.O, self.TT, self.P
        Sc, Sn = (self.SA, self.SB) if n % 2 == 0 else (self.SB, self.SA)
        kn = buf if qt < 3 else bufn
        qn, qp = (qt + 1) % 4, (qt - 1) % 4
        vp = (buf if qt > 0 else bufp) + 8
        ms = [M32(Sn, kn, Q + 8 * qn), M32(O + 16 * qp, vp + 4, P + 4, O + 16 * qp),
              M32(Sn, kn + 4, Q + 8 * qn + 4, Sn),
              M32(O + 16 * qt, buf + 8, P, None if first_tile else O + 16 * qt)]
        very_first = first_tile and qt == 0
        extra = extra or {}
        for g in range(4):
            for x in extra.get(("pre", g), ()):
                a(x)
            if not (very_first and g == 1):
                a(ms[g])
            for x in extra.get(g, ()):
                a(x)
            tb, tp, pp = TT + 4 * (g % 2), TT + 4 * ((g + 1) % 2), P + 2 * ((g - 1) % 4)
            a(f"v_exp_f32 v{tb}, v{Sc+4*g}")
            a(f"v_exp_f32 v{tb+1}, v{Sc+4*g+1}")
            if not (very_first and g == 0):
                a(f"v_cvt_pk_bf16_f32 v{pp}, v{tp}, v{tp+1}")
                a(f"v_cvt_pk_bf16_f32 v{pp+1}, v{tp+2}, v{tp+3}")
            a(f"v_exp_f32 v{tb+2}, v{Sc+4*g+2}")
            a(f"v_exp_f32 v{tb+3}, v{Sc+4*g+3}")

    def kv_next(self):
        return [f"s_add_u32 s{sA2}, s{sA2}, 16384", f"s_and_b32 s{sA2}, s{sA2}, {16*16384-1}",
                f"s_add_u32 s{sA3}, s{sA2}, s{sA0}"]

    def kv_load(self, buf, part):
        return f"buffer_load_dwordx4 {vr(buf+4*part,4)}, v1, {srd(SWS)}, s{sA3} offen offset:{1024*part} sc1"

    def wo_dma(self):
        return []

    def attention(self):
        a = self.a
        Q, O, P, TT = self.Q, self.O, self.P, self.TT
        B = self.KVB
        a(f"""
        s_lshl_b32 s{sA0}, s{sH}, 6
        s_add_u32 s{sA0}, s{sA0}, s{sW}
        s_lshl_b32 s{sA0}, s{sA0}, 12
        s_add_u32 s{sA0}, s{sA0}, {WS_KV}
        v_and_b32 v2, 15, v0
        v_lshlrev_b32 v2, 2, v2
        L_kvpoll:
        """)
        self.spin_guard("L_kvok")
        a(f"""
        buffer_load_dword v3, v2, {srd(SWS)}, s{sA1} offen sc1
        s_waitcnt vmcnt(0)
        v_cmp_ne_u32 vcc, s{sNON}, v3
        s_cbranch_vccnz L_kvpoll
        L_kvok:
        """)
        self.stamp("kvok")
        self.pre_attention()
        a(f"""
        L_att:
        s_lshl_b32 s{sA2}, s{sB}, 14
        """)
        for x in self.kv_next():
            a(x)
        for part in range(4):
            a(self.kv_load(B[1], part))
        a("s_waitcnt lgkmcnt(0)")
        a(M32(self.SA, B[0], Q))
        a(M32(self.SA, B[0] + 4, Q + 4, self.SA))
        n = 0
        for qt in range(4):
            ex = {2: ([] if qt else self.kv_next()) + [self.kv_load(B[2], qt)]}
            if qt == 3:
                ex[("pre", 0)] = ["s_waitcnt vmcnt(3)"]
                ex[0] = self.cl_flag()
            self.unit(n, B[0], B[1], B[2], qt, first_tile=True, extra=ex)
            n += 1
        a(f"s_mov_b32 s{sA5}, 5")
        a(".p2align 6")
        a("L_loop:")
        nwo = len([x for x in self.wo_dma() if x.startswith("buffer")])
        for it in range(3):
            i = 1 + it
            buf, bufn, bufp = B[i % 3], B[(i + 1) % 3], B[(i - 1) % 3]
            for qt in range(4):
                ex = {2: ([] if qt else self.kv_next()) + [self.kv_load(bufp, qt)]}
                if qt in (1, 2):
                    ex[0] = self.wo_dma()
                if qt == 3:
                    ex[("pre", 0)] = [f"s_waitcnt vmcnt({3+2*nwo})"]
                self.unit(n, buf, bufn, bufp, qt, extra=ex)
                n += 1
        a(f"""
        s_sub_u32 s{sA5}, s{sA5}, 1
        s_cmp_lg_u32 s{sA5}, 0
        s_cbranch_scc1 L_loop
        v_cvt_pk_bf16_f32 v{P+6}, v{TT+4}, v{TT+5}
        v_cvt_pk_bf16_f32 v{P+7}, v{TT+6}, v{TT+7}
        """)
        a(M32(O + 48, B[0] + 12, P + 4, O + 48))
        self.stamp("attn")

    def pre_attention(self):
        pass

    def cl_flag(self):
        return [f"s_lshl_b32 s{sT0}, s2, 4", f"s_lshl_b32 s{sT1}, s{sW}, 2", f"s_add_u32 s{sT0}, s{sT0}, s{sT1}",
                f"s_add_u32 s{sT0}, s{sT0}, {WS_CLF}", "s_mov_b64 exec, 1",
                f"buffer_store_dword v30, v31, {srd(SWS)}, s{sT0} offen sc1", "s_mov_b64 exec, -1"]

    def combine(self):
        a = self.a
        O = self.O
        a(f"""
        s_lshl_b32 s{sA4}, s{sW}, 10
        s_add_u32 s{sA4}, s{sA4}, {WS_CLF}
        buffer_load_dwordx4 v[4:7], v1, {srd(SWS)}, s{sA4} offen sc1
        """)
        a(f"""
        v_mov_b32 v8, {hex(fbits(2.0**64))}
        v_max3_f32 v9, v{O+12}, v{O+16+12}, v{O+32+12}
        """)
        for p in range(3):
            a(f"""
            s_add_u32 s{sT0}, s{sW}, {p+1}
            s_and_b32 s{sT0}, s{sT0}, 3
            s_mul_i32 s{sT0}, s{sT0}, 12288
            s_add_u32 s{sT0}, s{sT0}, {L_CB+p*4096}
            v_add_u32 v{10+p}, s{sT0}, v1
            """)
        a(f"""
        s_mul_i32 s{sT0}, s{sW}, 12288
        s_add_u32 s{sT0}, s{sT0}, {L_CB}
        v_add_u32 v13, s{sT0}, v1
        v_max_f32 v9, v9, v{O+48+12}
        v_cmp_nlt_f32 vcc, v9, v8
        s_andn2_b64 vcc, vcc, s[{sLO}:{sLO+1}]
        s_cmp_lg_u64 vcc, 0
        s_cselect_b32 s{sT1}, 0x3f800000, 0
        v_mov_b32 v8, s{sT1}
        """)
        for p in range(4):
            a(f"v_cndmask_b32 v{O+16*p+13}, v8, v{O+16*p+13}, s[{sLO}:{sLO+1}]")
        for p in range(3):
            for k in range(4):
                a(f"ds_write_b128 v{10+p}, {vr(O+16*p+4*k,4)} offset:{k*1024}")
        a("L_clpoll:")
        a(f"""
        s_waitcnt vmcnt(0)
        v_cmp_ne_u32 vcc, s{sNON}, v4
        v_cmp_ne_u32 s[{sM}:{sM+1}], s{sNON}, v5
        s_or_b64 vcc, vcc, s[{sM}:{sM+1}]
        v_cmp_ne_u32 s[{sM}:{sM+1}], s{sNON}, v6
        s_or_b64 vcc, vcc, s[{sM}:{sM+1}]
        v_cmp_ne_u32 s[{sM}:{sM+1}], s{sNON}, v7
        s_or_b64 vcc, vcc, s[{sM}:{sM+1}]
        s_cbranch_vccz L_clok
        """)
        self.spin_guard("L_clok")
        a(f"""
        buffer_load_dwordx4 v[4:7], v1, {srd(SWS)}, s{sA4} offen sc1
        s_branch L_clpoll
        L_clok:
        s_waitcnt lgkmcnt(0)
        s_barrier
        """)
        for p in range(3):
            for k in range(4):
                a(f"ds_read_b128 {vr(O+16*p+4*k,4)}, v13 offset:{p*4096+k*1024}")
        R = O + 48
        for p in range(3):
            a(f"s_waitcnt lgkmcnt({8-4*p})")
            for i in range(8):
                a(f"v_pk_add_f32 {vr(R+2*i,2)}, {vr(R+2*i,2)}, {vr(O+16*p+2*i,2)}")
        a(f"""
        v_readlane_b32 s{sT0}, v{R+13}, 32
        v_mov_b32 v8, v{R+12}
        v_mov_b32 v9, v{R+12}
        s_cmp_eq_u32 s{sT0}, 0
        s_cbranch_scc1 L_noredo
        s_cmp_eq_u32 s{sPASS}, 0
        s_cbranch_scc1 L_redo
        L_noredo:
        v_permlane32_swap_b32 v8, v9
        v_rcp_f32 v8, v9
        """)
        for i in range(8):
            a(f"v_pk_mul_f32 {vr(R+2*i,2)}, {vr(R+2*i,2)}, {vr(8,2)} op_sel_hi:[1,0]")
        OP = 32
        for i in range(8):
            a(f"v_cvt_pk_bf16_f32 v{OP+i}, v{R+2*i}, v{R+2*i+1}")
        a(f"""
        v_cndmask_b32 v{OP+6}, 0, v{OP+6}, s[{sLO}:{sLO+1}]
        v_cndmask_b32 v{OP+7}, 0, v{OP+7}, s[{sLO}:{sLO+1}]
        buffer_store_dwordx4 {vr(OP,4)}, v1, {srd(SWS)}, s99 offen sc1
        buffer_store_dwordx4 {vr(OP+4,4)}, v1, {srd(SWS)}, s99 offen offset:1024 sc1
        """)
        a(f"""
        s_or_b32 s{sT0}, s2, s{sW}
        s_cmp_lg_u32 s{sT0}, 0
        s_cbranch_scc1 L_noepoch
        s_mov_b64 exec, 1
        buffer_store_dword v30, v31, {srd(SWS)}, 0 offen sc1
        s_mov_b64 exec, -1
        L_noepoch:
        """)
        self.stamp("opub")

    def redo(self):
        a = self.a
        Q, B, S = self.Q, self.KVB, self.SA
        MX = 8
        a(f"""
        L_redo:
        s_mov_b32 s{sPASS}, 1
        s_waitcnt vmcnt(0)
        s_barrier
        s_lshl_b32 s{sA2}, s{sB}, 14
        s_mov_b32 s{sA5}, 16
        """)
        for p in range(4):
            a(f"v_mov_b32 v{MX+p}, 0xff800000")
        a("L_redo_loop:")
        for x in self.kv_next():
            a(x)
        a(self.kv_load(B[1], 0))
        a(self.kv_load(B[1], 1))
        a("s_waitcnt vmcnt(0)")
        for p in range(4):
            a(M32(S, B[1], Q + 8 * p))
            a(M32(S, B[1] + 4, Q + 8 * p + 4, S))
            self.rowmax16(S, 22)
            a(f"v_max_f32 v{MX+p}, v{MX+p}, v22")
        a(f"""
        s_sub_u32 s{sA5}, s{sA5}, 1
        s_cmp_lg_u32 s{sA5}, 0
        s_cbranch_scc1 L_redo_loop
        """)
        for p in range(4):
            a(f"""
            s_add_u32 s{sT0}, s{sW}, {p+1}
            s_and_b32 s{sT0}, s{sT0}, 3
            s_lshl_b32 s{sT0}, s{sT0}, 10
            s_add_u32 s{sT0}, s{sT0}, {L_CB}
            v_lshl_add_u32 v{12+p}, v0, 2, s{sT0}
            s_lshl_b32 s{sT1}, s{sW}, 8
            v_add_u32 v16, s{sT1}, v{12+p}
            ds_write_b32 v16, v{MX+p}
            """)
        a("s_waitcnt lgkmcnt(0)\ns_barrier")
        for p in range(4):
            for k in range(4):
                a(f"ds_read_b32 v{16+k}, v{12+p} offset:{k*256}")
            q6, q7 = Q + 8 * p + 6, Q + 8 * p + 7
            a(f"""
            s_waitcnt lgkmcnt(0)
            v_max3_f32 v16, v16, v17, v18
            v_max_f32 v16, v16, v19
            v_lshlrev_b32 v17, 16, v{q6}
            v_and_b32 v18, 0xffff0000, v{q6}
            v_lshlrev_b32 v19, 16, v{q7}
            v_add_f32 v18, v18, v19
            v_add_f32 v17, v17, v18
            v_sub_f32 v22, v16, v17
            """)
            self.shift_split(22, 23, 24, 25)
            a(f"""
            v_cndmask_b32 v{q6}, v23, v{q6}, s[{sLO}:{sLO+1}]
            v_cndmask_b32 v{q7}, v24, v{q7}, s[{sLO}:{sLO+1}]
            """)
        a(f"""
        s_lshl_b32 s{sA2}, s{sB}, 14
        s_add_u32 s{sA3}, s{sA2}, s{sA0}
        """)
        for part in range(4):
            a(self.kv_load(B[0], part))
        a(f"""
        s_waitcnt vmcnt(0)
        s_barrier
        """)
        self.redo_reset()
        a("s_branch L_att")

    def redo_reset(self):
        pass

    def finish(self):
        a = self.a
        a("L_fin:")
        if self.ts:
            a(f"""
            s_lshl_b32 s{sT0}, s2, 2
            s_add_u32 s{sT0}, s{sT0}, s{sW}
            s_lshl_b32 s{sT0}, s{sT0}, 8
            s_add_u32 s{sT0}, s{sT0}, {WS_TS}
            s_mov_b64 exec, -1
            v_lshlrev_b32 v2, 2, v0
            buffer_store_dword {self.TSV}, v2, {srd(SWS)}, s{sT0} offen
            """)
        a("L_end:\ns_endpgm")

    def tail(self):
        pass

    def build(self):
        self.prologue()
        self.p1()
        self.attention()
        self.combine()
        self.tail()
        self.finish()
        self.redo()
        npad = self.a.pad()
        body = self.a.text()
        hdr = open(os.path.join(os.path.dirname(os.path.abspath(__file__)), "header.txt")).read()
        out = hdr + f"""; @launch grid=(256,1,1) block=(256,1,1) lds={LDS_BYTES}
.amdgcn_target "amdgcn-amd-amdhsa--gfx950"
.text
.globl {NAME}
.p2align 8
.type {NAME},@function
{NAME}:
{body}
.section .rodata,"a"
.p2align 6
.amdhsa_kernel {NAME}
  .amdhsa_next_free_vgpr 256
  .amdhsa_next_free_sgpr 102
  .amdhsa_accum_offset 256
  .amdhsa_group_segment_fixed_size 0
  .amdhsa_kernarg_size 88
  .amdhsa_user_sgpr_count 2
  .amdhsa_user_sgpr_kernarg_segment_ptr 1
  .amdhsa_system_sgpr_workgroup_id_x 1
  .amdhsa_float_denorm_mode_32 3
.end_amdhsa_kernel
"""
        return out, npad


class LQ:
    def __init__(self, a):
        self.a, self.q = a, []

    def op(self, text, tag):
        self.a(text)
        self.q.append(tag)

    def wait(self, tag):
        k = max(i for i, t in enumerate(self.q) if t == tag)
        self.a(f"s_waitcnt lgkmcnt({min(len(self.q) - 1 - k, 15)})")


sF, sU = 3, 4
sWOS, sWOM = 5, 6
sROW = 7
OOB = 0x7F000000


class Full(Gen):
    XR2, W2, S4 = 96, 104, 112
    VTG = 116
    VWD = 118

    def roles(self):
        self.a(f"""
        s_lshr_b32 s{sT0}, s{sI}, 2
        s_sub_u32 s{sT0}, s{sI}, s{sT0}
        s_sub_u32 s{sT0}, s{sT0}, 1
        s_mul_i32 s{sT1}, s{sXCD}, 7
        s_add_u32 s{sF}, s{sT0}, s{sT1}
        s_cmp_lt_u32 s{sI}, 10
        s_cselect_b32 s{sF}, s{sF}, -1
        s_cmp_eq_u32 s{sC}, 0
        s_cselect_b32 s{sF}, -1, s{sF}
        s_mul_i32 s{sT1}, s{sXCD}, 14
        s_sub_u32 s{sT0}, s{sI}, 10
        s_add_u32 s{sU}, s{sT0}, s{sT1}
        s_cmp_lt_u32 s{sT0}, 14
        s_cselect_b32 s{sU}, s{sU}, -1
        s_mul_i32 s{sROW}, s{sT}, {32*896}
        s_mul_i32 s{sT0}, s{sC}, 224
        s_add_u32 s{sROW}, s{sROW}, s{sT0}
        """)

    def piece_idx(self, i, tok, ch):
        self.a(f"""
        v_add_u32 v{ch}, {64*i}, v0
        v_mul_u32_u24 v{tok}, 4682, v{ch}
        v_lshrrev_b32 v{tok}, 16, v{tok}
        v_mul_u32_u24 v27, 14, v{tok}
        v_sub_u32 v{ch}, v{ch}, v27
        s_lshl_b32 s{sT0}, s{sW}, 3
        v_add_u32 v{tok}, s{sT0}, v{tok}
        """)

    def clears_tail(self):
        a = self.a
        self.roles()
        for i in range(2):
            self.piece_idx(i, 22, 23)
            a(f"""
            v_mul_u32_u24 v22, 896, v22
            v_lshl_add_u32 v{self.VTG+i}, v23, 4, v22
            """)
        a(f"""
        s_add_u32 s{sT0}, s{sROW}, {WS_HN}
        s_add_u32 s{sT1}, s{sROW}, {WS_HH}
        buffer_store_dwordx4 v[124:127], v{self.VTG}, {srd(SWS)}, s{sT0} offen sc1
        buffer_store_dwordx4 v[124:127], v{self.VTG}, {srd(SWS)}, s{sT1} offen sc1
        s_mov_b32 exec_hi, 0xffff
        buffer_store_dwordx4 v[124:127], v{self.VTG+1}, {srd(SWS)}, s{sT0} offen sc1
        buffer_store_dwordx4 v[124:127], v{self.VTG+1}, {srd(SWS)}, s{sT1} offen sc1
        s_lshl_b32 s{sT0}, s{sT}, 2
        s_add_u32 s{sT0}, s{sT0}, s{sC}
        s_lshl_b32 s{sT0}, s{sT0}, 9
        s_add_u32 s{sT0}, s{sT0}, {WS_STATS}
        s_lshl_b32 s{sT1}, s{sT}, 5
        s_add_u32 s{sT1}, s{sT1}, {WS_KEYS}
        s_cmp_eq_u32 s{sW}, 0
        s_cselect_b32 s{sT0}, s{sT0}, {OOB}
        s_or_b32 s{sT2}, s{sW}, s{sC}
        s_cmp_eq_u32 s{sT2}, 0
        s_cselect_b32 s{sT1}, s{sT1}, {OOB}
        s_mov_b32 exec_hi, 0
        buffer_store_dwordx4 v[124:127], v1, {srd(SWS)}, s{sT0} offen sc1
        s_mov_b64 exec, 3
        buffer_store_dwordx4 v[124:127], v1, {srd(SWS)}, s{sT1} offen sc1
        s_mov_b64 exec, -1
        s_mul_i32 s{sT0}, s{sF}, 14336
        s_mul_i32 s{sT1}, s{sW}, 3584
        s_add_u32 s{sT0}, s{sT0}, s{sT1}
        s_add_u32 s{sT0}, s{sT0}, {WS_Y}
        s_cmp_lt_i32 s{sF}, 0
        s_cselect_b32 s{sT0}, {OOB}, s{sT0}
        buffer_store_dwordx4 v[124:127], v1, {srd(SWS)}, s{sT0} offen sc1
        buffer_store_dwordx4 v[124:127], v1, {srd(SWS)}, s{sT0} offen offset:1024 sc1
        buffer_store_dwordx4 v[124:127], v1, {srd(SWS)}, s{sT0} offen offset:2048 sc1
        buffer_store_dwordx4 v[124:127], v1, {srd(SWS)}, s{sT0} offen offset:2560 sc1
        """)
        return 10

    def pre_attention(self):
        a = self.a
        XR2, W2 = self.XR2, self.W2
        a(f"""
        v_and_b32 v22, 31, v0
        v_lshrrev_b32 v23, 5, v0
        v_lshlrev_b32 v23, 3, v23
        v_mad_u32_u24 v22, v22, v28, v23
        """.replace("v_mad_u32_u24 v22, v22, v28, v23", "v_mul_u32_u24 v22, 896, v22\nv_add_u32 v22, v22, v23"))
        a(f"""
        s_mul_i32 s{sT1}, s{sW}, 56
        s_add_u32 s{sT0}, s{sROW}, s{sT1}
        s_mul_i32 s{sT2}, s{sC}, 224
        s_add_u32 s{sT1}, s{sT1}, s{sT2}
        """)
        for g in range(4):
            a(f"buffer_load_dwordx2 {vr(XR2+2*g,2)}, v22, {srd(SX)}, s{sT0} offen offset:{16*g}")
        for g in range(4):
            a(f"buffer_load_dwordx2 {vr(W2+2*g,2)}, v23, {srd(SWR)}, s{sT1} offen offset:{16*g}")
        a(f"""
        v_lshrrev_b32 v22, 4, v0
        v_lshrrev_b32 v23, 2, v0
        v_sub_u32 v23, v23, v22
        v_and_b32 v23, 3, v23
        v_mul_u32_u24 v23, 56, v23
        v_mul_u32_u24 v22, 896, v22
        v_add_u32 v22, v22, v23
        v_and_b32 v23, 3, v0
        v_lshlrev_b32 v23, 4, v23
        v_min_u32 v23, 40, v23
        v_add_u32 v{self.VWD}, v22, v23
        """)
        self.redo_reset()

    def redo_reset(self):
        self.a(f"""
        s_mul_i32 s{sWOS}, s{sW}, {4*896}
        s_mul_i32 s{sT2}, s{sC}, 224
        s_add_u32 s{sWOS}, s{sWOS}, s{sT2}
        s_lshl_b32 s{sWOM}, s{sW}, 10
        s_add_u32 s100, s{sWOS}, {27*16*896}
        s_add_u32 s101, s{sWOM}, {27*4096}
        """.replace("s100", f"s{sKG}").replace("s101", f"s{sKG+1}"))

    def wo_dma(self):
        return [f"s_mov_b32 m0, s{sWOM}", f"s_add_u32 s{sWOM}, s{sWOM}, 4096",
                f"buffer_load_dwordx4 v{self.VWD}, {srd(SWO)}, s{sWOS} offen lds",
                f"s_add_u32 s{sWOS}, s{sWOS}, {16*896}", f"s_min_u32 s{sWOM}, s{sWOM}, s{sKG+1}",
                f"s_min_u32 s{sWOS}, s{sWOS}, s{sKG}"]

    def sentinel_any(self, regs, t):
        a = self.a
        regs = list(regs)
        a(f"v_max3_u32 v{t}, v{regs[0]}, v{regs[1]}, v{regs[2] if len(regs) > 2 else regs[1]}")
        for k in range(3, len(regs), 2):
            a(f"v_max3_u32 v{t}, v{t}, v{regs[k]}, v{regs[min(k+1, len(regs)-1)]}")
        a(f"v_cmp_eq_u32 vcc, -1, v{t}")

    def unpack(self, d, s):
        self.a(f"v_lshlrev_b32 v{d}, 16, v{s}\nv_and_b32 v{d+1}, 0xffff0000, v{s}")

    def tr_write(self, src, arr):
        a = self.a
        for g in range(3):
            a(f"ds_write_b64 v14, {vr(src+2*g,2)} offset:{arr*7680+16*g}")
        a(f"""
        s_mov_b32 exec_hi, 0
        ds_write_b64 v14, {vr(src+6,2)} offset:{arr*7680+48}
        s_mov_b32 exec_hi, -1
        """)

    def tr_publish(self, arr, base, t):
        self.a(f"""
        ds_read_b128 {vr(t,4)}, v15 offset:{arr*7680}
        ds_read_b128 {vr(t+4,4)}, v16 offset:{arr*7680}
        s_add_u32 s{sT0}, s{sROW}, {base}
        s_waitcnt lgkmcnt(1)
        buffer_store_dwordx4 {vr(t,4)}, v{self.VTG}, {srd(SWS)}, s{sT0} offen sc1
        s_mov_b32 exec_hi, 0xffff
        s_waitcnt lgkmcnt(0)
        buffer_store_dwordx4 {vr(t+4,4)}, v{self.VTG+1}, {srd(SWS)}, s{sT0} offen sc1
        s_mov_b32 exec_hi, -1
        """)

    def p3(self):
        a = self.a
        XR2, W2, S4 = self.XR2, self.W2, self.S4
        XC, ACC, OFR, WR = 64, 48, 128, 80
        a(f"""
        v_lshrrev_b32 v23, 5, v0
        v_lshrrev_b32 v25, 2, v0
        v_and_b32 v25, 3, v25
        v_add_u32 v24, s{sW}, v25
        v_and_b32 v24, 3, v24
        v_lshl_add_u32 v25, v23, 2, v25
        v_lshlrev_b32 v25, 8, v25
        v_lshl_add_u32 v25, v24, 6, v25
        v_lshrrev_b32 v26, 4, v0
        v_and_b32 v26, 1, v26
        v_lshl_add_u32 v25, v26, 5, v25
        v_lshrrev_b32 v27, 1, v0
        v_and_b32 v27, v27, v26
        v_and_b32 v26, 3, v0
        v_xor_b32 v26, v26, v27
        v_lshl_add_u32 v25, v26, 3, v25
        v_lshlrev_b32 v23, 11, v23
        """)
        for qr in range(4):
            a(f"""
            s_add_u32 s{sT0}, s{sW}, {qr}
            s_and_b32 s{sT0}, s{sT0}, 3
            s_lshl_b32 s{sT1}, s{sT0}, 13
            s_add_u32 s{sT1}, s{sT1}, {L_CB}
            s_mul_i32 s{sT0}, s{sT0}, 28672
            v_add_u32 v{2+qr}, s{sT1}, v1
            v_add_u32 v{6+qr}, s{sT0}, v25
            v_sub_u32 v{10+qr}, v{6+qr}, v23
            """)
        for k in range(8):
            self.unpack(XC + 2 * k, XR2 + k)
        a(f"""
        v_cndmask_b32 v{W2+6}, 0, v{W2+6}, s[{sLO}:{sLO+1}]
        v_cndmask_b32 v{W2+7}, 0, v{W2+7}, s[{sLO}:{sLO+1}]
        v_mov_b32 v{S4}, 0
        """)
        for k in range(8):
            a(f"v_dot2c_f32_bf16 v{S4}, s{sONE}, v{W2+k}")
        a(f"""
        s_lshl_b32 s{sA0}, s{sT}, 2
        s_add_u32 s{sA0}, s{sA0}, s{sW}
        s_lshl_b32 s{sA0}, s{sA0}, 13
        s_add_u32 s{sA0}, s{sA0}, {WS_OF}
        s_add_u32 s{sA1}, s{sA0}, 4096
        s_lshl_b32 s{sA2}, s{sW}, 13
        s_add_u32 s{sA2}, s{sA2}, {L_CB}
        s_add_u32 s{sA3}, s{sA2}, 4096
        s_waitcnt vmcnt(0)
        s_barrier
        """)
        self.stamp("oack")
        a("L_odma:")
        for hf in range(2):
            a(f"s_mov_b32 m0, s{sA2+hf}")
            for k in range(4):
                a(f"buffer_load_dwordx4 v1, {srd(SWS)}, s{sA0+hf} offen offset:{1024*k} sc1 lds")
        lq = LQ(a)

        def oread(n):
            lq.op(f"ds_read_b128 {vr(OFR+4*n,4)}, v{2+n//8} offset:{(n%8)*1024}", ("o", n))

        def wread(n):
            qr, hl, j = n // 8, (n % 8) // 2, n % 2
            lq.op(f"ds_read_b64_tr_b16 {vr(WR+4*(n%4),2)}, v{6+qr} offset:{hl*7168+j*4096}", ("w", n))
            lq.op(f"ds_read_b64_tr_b16 {vr(WR+4*(n%4)+2,2)}, v{(10 if j else 6)+qr} offset:{hl*7168+j*4096+2048}", ("w", n))

        for n in range(3):
            wread(n)
        a("s_waitcnt vmcnt(0)")
        for n in range(8):
            oread(n)
        onext = 8
        for n in range(32):
            lq.wait(("o", n) if lq.q.index(("o", n)) > max(i for i, t in enumerate(lq.q) if t == ("w", n)) else ("w", n))
            a(M32(ACC, WR + 4 * (n % 4), OFR + 4 * n, ACC if n else XC))
            if n + 3 < 32:
                wread(n + 3)
            if n < 4:
                if n == 0:
                    lq.wait(("o", 1))
                    a(f"v_max3_u32 v22, v{OFR}, v{OFR+1}, v{OFR+2}")
                    a(f"v_max3_u32 v23, v{OFR+3}, v{OFR+4}, v{OFR+5}")
                    a(f"v_max3_u32 v22, v22, v{OFR+6}, v{OFR+7}")
                else:
                    lq.wait(("o", 2 * n + 1))
                    for k in range(4):
                        r = OFR + 8 * n + 2 * k
                        a(f"v_max3_u32 v{22+k%2}, v{22+k%2}, v{r}, v{r+1}")
            if n == 3:
                a(f"""
                v_max_u32 v22, v22, v23
                v_cmp_eq_u32 vcc, -1, v22
                s_cbranch_vccz L_ook
                """)
                self.spin_guard("L_ook")
                a(f"""
                s_waitcnt lgkmcnt(0)
                s_branch L_odma
                L_ook:
                s_barrier
                """)
            if n >= 4:
                for _ in range(2):
                    if onext < 32 and onext <= n + 8:
                        oread(onext)
                        onext += 1
        self.stamp("gemm")
        H2 = 32
        a(f"""
        v_and_b32 v22, 31, v0
        v_lshrrev_b32 v23, 5, v0
        v_lshlrev_b32 v23, 3, v23
        v_lshl_add_u32 v17, v22, 4, v23
        s_lshl_b32 s{sT0}, s{sW}, 9
        s_add_u32 s{sT0}, s{sT0}, {L_ST}
        v_add_u32 v18, s{sT0}, v17
        v_add_u32 v19, {L_ST}, v17
        v_mul_u32_u24 v22, 240, v22
        s_mul_i32 s{sT0}, s{sW}, 56
        s_add_u32 s{sT0}, s{sT0}, {L_TR}
        v_add3_u32 v14, v22, v23, s{sT0}
        v_mov_b32 v40, 0
        v_mov_b32 v41, 0
        v_mov_b32 v42, 0
        """)
        for k in range(8):
            a(f"v_cvt_pk_bf16_f32 v{H2+k}, v{ACC+2*k}, v{ACC+2*k+1}")
        a(f"""
        v_cndmask_b32 v{H2+6}, 0, v{H2+6}, s[{sLO}:{sLO+1}]
        v_cndmask_b32 v{H2+7}, 0, v{H2+7}, s[{sLO}:{sLO+1}]
        """)
        for k in range(8):
            a(f"v_dot2c_f32_bf16 v40, s{sONE}, v{H2+k}")
            a(f"v_dot2c_f32_bf16 v42, v{H2+k}, v{H2+k}")
            a(f"v_dot2c_f32_bf16 v41, v{W2+k}, v{H2+k}")
        a(f"""
        v_permlane32_swap_b32 v40, v42
        v_permlane32_swap_b32 v41, v{S4}
        v_add_f32 v40, v40, v42
        v_add_f32 v41, v41, v{S4}
        ds_write_b64 v18, v[40:41]
        s_lshl_b32 s{sA0}, s{sT}, 11
        s_add_u32 s{sA0}, s{sA0}, {WS_STATS}
        s_lshl_b32 s{sT0}, s{sC}, 9
        s_add_u32 s{sA1}, s{sA0}, s{sT0}
        s_waitcnt lgkmcnt(0)
        s_barrier
        s_cmp_lg_u32 s{sW}, 0
        s_cbranch_scc1 L_nostat
        ds_read_b64 v[40:41], v19
        ds_read_b64 v[42:43], v19 offset:512
        ds_read_b64 v[44:45], v19 offset:1024
        ds_read_b64 v[46:47], v19 offset:1536
        s_waitcnt lgkmcnt(2)
        v_pk_add_f32 v[40:41], v[40:41], v[42:43]
        s_waitcnt lgkmcnt(0)
        v_pk_add_f32 v[44:45], v[44:45], v[46:47]
        v_pk_add_f32 v[40:41], v[40:41], v[44:45]
        buffer_store_dwordx2 v[40:41], v17, {srd(SWS)}, s{sA1} offen sc1
        L_nostat:
        """)
        self.ffn_weights()
        self.tr_write(H2, 0)
        for i in range(2):
            self.piece_idx(i, 22, 23)
            a(f"""
            v_mov_b32 v{20+i}, v22
            v_mul_u32_u24 v22, 240, v22
            v_lshl_add_u32 v22, v23, 4, v22
            v_add_u32 v{15+i}, {L_TR}, v22
            """)
        a("s_waitcnt lgkmcnt(0)\ns_barrier")
        self.tr_publish(0, WS_HH, 48)
        HF = 64
        for k in range(8):
            self.unpack(HF + 2 * k, H2 + k)
        a("s_waitcnt vmcnt(0)")
        self.stamp("hack")
        a("L_stpoll:")
        for c in range(4):
            a(f"buffer_load_dwordx2 {vr(40+2*c,2)}, v17, {srd(SWS)}, s{sA0} offen offset:{512*c} sc1")
        a("s_waitcnt vmcnt(0)")
        self.sentinel_any(range(40, 48), 22)
        a("s_cbranch_vccz L_stok")
        self.spin_guard("L_stok")
        a("s_branch L_stpoll\nL_stok:")
        self.stamp("stok")
        a(f"""
        v_pk_add_f32 v[40:41], v[40:41], v[42:43]
        v_pk_add_f32 v[44:45], v[44:45], v[46:47]
        v_pk_add_f32 v[40:41], v[40:41], v[44:45]
        v_mov_b32 v42, v40
        v_mov_b32 v43, v41
        v_permlane32_swap_b32 v40, v42
        v_permlane32_swap_b32 v41, v43
        """)
        self.ln_scalars(40, 42, 44, 46, 22, 23)
        KEY = 47
        a(f"""
        v_fma_f32 v41, -v44, v43, v41
        v_mul_f32 v41, v41, v46
        v_cvt_pk_bf16_f32 v41, v41, v41
        v_ashrrev_i32 v22, 31, v41
        v_or_b32 v22, 0x80000000, v22
        v_xor_b32 v41, v41, v22
        v_and_b32 v41, 0xffff0000, v41
        v_lshrrev_b32 v41, 1, v41
        v_and_b32 v22, 31, v0
        s_lshl_b32 s{sT0}, s{sT}, 5
        s_sub_u32 s{sT0}, 2047, s{sT0}
        v_sub_u32 v22, s{sT0}, v22
        v_or_b32 v{KEY}, v41, v22
        s_or_b32 s{sT0}, s{sW}, s{sC}
        s_cmp_lg_u32 s{sT0}, 0
        s_cbranch_scc1 L_norank
        v_mov_b32 v48, v{KEY}
        v_mov_b32 v49, v{KEY}
        v_permlane16_swap_b32 v48, v49
        v_cndmask_b32 v48, v49, v48, s[{sLO}:{sLO+1}]
        v_sub_u32 v80, v48, v{KEY}
        """)
        for n in range(1, 16):
            a(f"v_sub_u32_dpp v{80+n}, v48, v{KEY} row_ror:{n} row_mask:0xf bank_mask:0xf bound_ctrl:0".replace(" bound_ctrl:0", " bound_ctrl:1"))
        a("v_lshrrev_b32 v48, 31, v80\nv_lshrrev_b32 v49, 31, v81")
        for n in range(2, 16):
            a(f"v_alignbit_b32 v{48+n%2}, v{48+n%2}, v{80+n}, 31")
        a(f"""
        v_bcnt_u32_b32 v48, v48, 0
        v_bcnt_u32_b32 v48, v49, v48
        v_mov_b32 v49, v48
        v_permlane32_swap_b32 v48, v49
        v_add_u32 v48, v48, v49
        v_sub_u32 v48, 31, v48
        v_cmp_gt_u32 vcc, 8, v48
        v_lshlrev_b32 v48, 2, v48
        s_lshl_b32 s{sT0}, s{sT}, 5
        s_add_u32 s{sT0}, s{sT0}, {WS_KEYS}
        s_and_b64 exec, vcc, s[{sLO}:{sLO+1}]
        buffer_store_dword v{KEY}, v48, {srd(SWS)}, s{sT0} offen sc1
        s_mov_b64 exec, -1
        L_norank:
        """)
        for k in range(8):
            self.unpack(HF + 2 * k, H2 + k) if False else None
        D, HN2, OUT2 = 80, 48, 56
        for k in range(8):
            a(f"v_pk_add_f32 {vr(D+2*k,2)}, {vr(HF+2*k,2)}, v[44:45] op_sel_hi:[1,0] neg_lo:[0,1] neg_hi:[0,1]")
        for k in range(8):
            a(f"v_cvt_pk_bf16_f32 v{HN2+k}, v{D+2*k}, v{D+2*k+1}")
        for k in range(8):
            self.unpack(D + 2 * k, HN2 + k)
        for k in range(8):
            a(f"v_pk_mul_f32 {vr(D+2*k,2)}, {vr(D+2*k,2)}, v[46:47] op_sel_hi:[1,0]")
        for k in range(8):
            a(f"v_cvt_pk_bf16_f32 v{HN2+k}, v{D+2*k}, v{D+2*k+1}")
        self.tr_write(HN2, 1)
        for k in range(8):
            self.unpack(D + 2 * k, HN2 + k)
        for k in range(8):
            a(f"v_pk_add_f32 {vr(D+2*k,2)}, {vr(D+2*k,2)}, {vr(HF+2*k,2)}")
        for k in range(8):
            a(f"v_cvt_pk_bf16_f32 v{OUT2+k}, v{D+2*k}, v{D+2*k+1}")
        self.tr_write(OUT2, 2)
        a("s_waitcnt lgkmcnt(0)\ns_barrier")
        self.tr_publish(1, WS_HN, 48)
        self.KEY = KEY

    def ffn_weights(self):
        a = self.a
        a(f"""
        s_cmp_lt_i32 s{sF}, 0
        s_cbranch_scc1 L_noffw
        v_lshrrev_b32 v22, 2, v0
        v_mul_u32_u24 v22, 3584, v22
        v_and_b32 v23, 3, v0
        v_lshl_add_u32 v22, v23, 4, v22
        s_mul_i32 s{sT0}, s{sW}, {7*16*3584}
        s_lshl_b32 s{sT1}, s{sF}, 6
        s_add_u32 s{sT0}, s{sT0}, s{sT1}
        s_mul_i32 s{sT1}, s{sW}, 7168
        """)
        for j in range(7):
            a(f"""
            s_add_u32 m0, s{sT1}, {L_WG+j*1024}
            s_add_u32 s{sT2}, s{sT0}, {j*16*3584}
            buffer_load_dwordx4 v22, {srd(SWG)}, s{sT2} offen lds
            s_add_u32 m0, s{sT1}, {L_WU+j*1024}
            buffer_load_dwordx4 v22, {srd(SWU)}, s{sT2} offen lds
            """)
        a(f"""
        s_lshl_b32 s{sT0}, s{sF}, 2
        s_add_u32 s{sT0}, s{sT0}, s{sW}
        s_mul_i32 s{sT0}, s{sT0}, {8*896}
        s_mul_i32 s{sT1}, s{sW}, {8*928}
        s_mov_b32 exec_hi, 0xffffff
        """)
        for r in range(8):
            a(f"""
            s_add_u32 m0, s{sT1}, {L_WD+r*928}
            s_add_u32 s{sT2}, s{sT0}, {r*896}
            buffer_load_dwordx4 v1, {srd(SWD)}, s{sT2} offen lds
            """)
        a("s_mov_b32 exec_hi, -1\nL_noffw:")

    def bisect(self, levels, tag):
        a = self.a
        L = 32
        lo, hi, mid = sA0, sA1, sTH
        a(f"""
        s_mov_b32 s{lo}, 0
        s_mov_b32 s{hi}, 0x80000000
        L_bis{tag}:
        s_add_u32 s{mid}, s{lo}, s{hi}
        s_lshr_b32 s{mid}, s{mid}, 1
        """)
        for j in range(levels):
            a(f"v_cmp_le_u32 s[{64+2*j}:{65+2*j}], s{mid}, v{L+j}")
        a(f"s_bcnt1_i32_b64 s{sA2}, s[64:65]")
        for j in range(1, levels):
            a(f"s_bcnt1_i32_b64 s{sA3}, s[{64+2*j}:{65+2*j}]\ns_add_u32 s{sA2}, s{sA2}, s{sA3}")
        a(f"""
        s_cmp_eq_u32 s{sA2}, 8
        s_cbranch_scc1 L_bisdone{tag}
        s_cmp_eq_u32 s{mid}, s{lo}
        s_cbranch_scc1 L_bisdone{tag}
        s_cmp_gt_u32 s{sA2}, 8
        s_cselect_b32 s{lo}, s{mid}, s{lo}
        s_cselect_b32 s{hi}, s{hi}, s{mid}
        s_branch L_bis{tag}
        L_bisdone{tag}:
        """)

    def extract(self, levels):
        a = self.a
        a(f"s_mov_b32 s{sA2}, 0")
        for j in range(levels):
            m = 64 + 2 * j
            a(f"""
            v_mbcnt_lo_u32_b32 v22, s{m}, 0
            v_mbcnt_hi_u32_b32 v22, s{m+1}, v22
            v_add_u32 v22, s{sA2}, v22
            v_min_u32 v22, 7, v22
            v_lshl_add_u32 v22, v22, 2, s{sA4}
            s_mov_b64 exec, s[{m}:{m+1}]
            ds_write_b32 v22, v{32+j}
            s_mov_b64 exec, -1
            """)
            if j + 1 < levels:
                a(f"s_bcnt1_i32_b64 s{sA3}, s[{m}:{m+1}]\ns_add_u32 s{sA2}, s{sA2}, s{sA3}")

    def topk(self):
        a = self.a
        a(f"""
        v_lshlrev_b32 v2, 5, v0
        s_mov_b32 s{sA1}, {WS_KEYS}
        s_lshl_b32 s{sA4}, s{sW}, 5
        s_add_u32 s{sA4}, s{sA4}, {L_SEL}
        s_waitcnt vmcnt(0)
        """)
        self.stamp("nack")
        a(f"""
        L_kpoll:
        buffer_load_dwordx4 v[32:35], v2, {srd(SWS)}, s{sA1} offen sc1
        buffer_load_dwordx4 v[36:39], v2, {srd(SWS)}, s{sA1} offen offset:16 sc1
        s_waitcnt vmcnt(0)
        """)
        self.sentinel_any(range(32, 40), 22)
        a("s_cbranch_vccz L_kok")
        self.spin_guard("L_kok")
        a("s_branch L_kpoll\nL_kok:")
        self.stamp("kok")
        self.bisect(2, "a")
        a(f"""
        v_cmp_le_u32 vcc, s{sTH}, v34
        s_cbranch_vccnz L_topslow
        """)
        self.extract(2)
        a(f"L_topdone:\nv_cmp_le_u32 s[80:81], s{sTH}, v{self.KEY}\ns_waitcnt lgkmcnt(0)")
        self.stamp("topk")

    def topk_slow(self):
        self.a("L_topslow:")
        self.bisect(8, "b")
        self.extract(8)
        self.a("s_branch L_topdone")

    def key_token(self, d, k):
        self.a(f"v_and_b32 v{d}, 0x7ff, v{k}\nv_sub_u32 v{d}, 2047, v{d}")

    def ffn(self):
        a = self.a
        a(f"""
        s_cmp_lt_i32 s{sF}, 0
        s_cbranch_scc1 L_noffn
        s_lshl_b32 s{sT0}, s{sW}, 3
        s_add_u32 s{sT0}, s{sT0}, s{sA4}
        v_mov_b32 v2, s{sT0}
        ds_read_b64 v[4:5], v2
        v_min_u32 v3, 55, v0
        v_lshlrev_b32 v3, 4, v3
        s_mul_i32 s{sT0}, s{sW}, 2112
        s_add_u32 s{sT0}, s{sT0}, {L_G}
        v_add_u32 v6, s{sT0}, v3
        s_mov_b32 s{sA0}, {WS_HN}
        s_movk_i32 s{sA1}, 896
        s_waitcnt lgkmcnt(0)
        """)
        self.key_token(4, 4)
        self.key_token(5, 5)
        a(f"""
        v_mad_u32_u24 v4, v4, s{sA1}, v3
        v_mad_u32_u24 v5, v5, s{sA1}, v3
        L_gpoll:
        buffer_load_dwordx4 v[32:35], v4, {srd(SWS)}, s{sA0} offen sc1
        buffer_load_dwordx4 v[36:39], v5, {srd(SWS)}, s{sA0} offen sc1
        v_lshrrev_b32 v8, 4, v0
        v_lshrrev_b32 v9, 2, v0
        v_and_b32 v9, 3, v9
        v_and_b32 v10, 3, v0
        v_lshlrev_b32 v10, 3, v10
        v_lshl_add_u32 v11, v8, 3, v9
        v_lshl_add_u32 v11, v11, 6, v10
        s_lshr_b32 s{sT0}, s{sW}, 1
        s_mul_i32 s{sT0}, s{sT0}, 28672
        s_and_b32 s{sT1}, s{sW}, 1
        s_lshl_b32 s{sT1}, s{sT1}, 5
        s_add_u32 s{sT0}, s{sT0}, s{sT1}
        v_add_u32 v11, s{sT0}, v11
        v_lshl_add_u32 v12, v8, 2, v9
        v_mul_u32_u24 v12, 928, v12
        s_mul_i32 s{sT0}, s{sW}, 224
        s_add_u32 s{sT0}, s{sT0}, {L_WD}
        v_add3_u32 v12, v12, v10, s{sT0}
        v_and_b32 v9, 7, v0
        v_mul_u32_u24 v13, 1056, v9
        v_lshl_add_u32 v13, v8, 4, v13
        v_add_u32 v13, {L_G}, v13
        v_lshlrev_b32 v9, 4, v9
        v_lshl_add_u32 v9, v8, 7, v9
        v_lshlrev_b32 v8, 3, v0
        v_add_u32 v8, {L_AX}, v8
        s_lshl_b32 s{sT0}, s{sW}, 9
        v_add_u32 v7, s{sT0}, v8
        s_waitcnt vmcnt(0)
        """)
        self.sentinel_any(range(32, 40), 22)
        a("s_cbranch_vccz L_gok")
        self.spin_guard("L_gok")
        a(f"""
        s_branch L_gpoll
        L_gok:
        ds_write_b128 v6, v[32:35]
        ds_write_b128 v6, v[36:39] offset:1056
        s_waitcnt lgkmcnt(0)
        s_barrier
        """)
        lq = LQ(a)
        AF, BF, WD, D = 128, 192, 64, 40

        def rd(s):
            lq.op(f"ds_read_b128 {vr(BF+4*s,4)}, v13 offset:{s*64}", s)
            lq.op(f"ds_read_b64_tr_b16 {vr(AF+4*s,2)}, v11 offset:{s*2048}", s)
            lq.op(f"ds_read_b64_tr_b16 {vr(AF+4*s+2,2)}, v11 offset:{s*2048+256}", s)

        for s in range(4):
            rd(s)
        for s in range(14):
            lq.wait(s)
            a(M16(D, AF + 4 * s, BF + 4 * s, D if s else None))
            if s + 4 < 14:
                rd(s + 4)
        for i in range(7):
            a(f"ds_read_b64_tr_b16 {vr(WD+4*i,2)}, v12 offset:{i*32}")
            a(f"ds_read_b64_tr_b16 {vr(WD+4*i+2,2)}, v12 offset:{i*32+16*928}")
        a(f"""
        v_cvt_pk_bf16_f32 v44, v{D}, v{D+1}
        v_cvt_pk_bf16_f32 v45, v{D+2}, v{D+3}
        s_cmp_ge_u32 s{sW}, 2
        s_cbranch_scc1 L_nosilu
        """)
        self.unpack(48, 44)
        self.unpack(50, 45)
        for k in range(4):
            a(f"v_mul_f32 v{52+k}, {hex(fbits(-LOG2E))}, v{48+k}")
        for k in range(4):
            a(f"v_exp_f32 v{52+k}, v{52+k}")
        for k in range(4):
            a(f"v_add_f32 v{52+k}, 1.0, v{52+k}")
        for k in range(4):
            a(f"v_rcp_f32 v{52+k}, v{52+k}")
        for k in range(4):
            a(f"v_mul_f32 v{48+k}, v{48+k}, v{52+k}")
        a(f"""
        v_cvt_pk_bf16_f32 v44, v48, v49
        v_cvt_pk_bf16_f32 v45, v50, v51
        L_nosilu:
        ds_write_b64 v7, v[44:45]
        s_waitcnt lgkmcnt(0)
        s_barrier
        ds_read_b64 v[32:33], v8
        ds_read_b64 v[36:37], v8 offset:1024
        ds_read_b64 v[34:35], v8 offset:512
        ds_read_b64 v[38:39], v8 offset:1536
        s_mul_i32 s{sT0}, s{sF}, 14336
        s_mul_i32 s{sT1}, s{sW}, 3584
        s_add_u32 s{sT0}, s{sT0}, s{sT1}
        s_add_u32 s{sT0}, s{sT0}, {WS_Y}
        s_waitcnt lgkmcnt(0)
        """)
        for k in range(4):
            self.unpack(48 + 2 * k, 32 + k)
            self.unpack(56 + 2 * k, 36 + k)
        for k in range(4):
            a(f"v_pk_mul_f32 {vr(48+2*k,2)}, {vr(48+2*k,2)}, {vr(56+2*k,2)}")
        for k in range(4):
            a(f"v_cvt_pk_bf16_f32 v{44+k}, v{48+2*k}, v{49+2*k}")
        for i in range(7):
            a(M16(128 + 4 * i, WD + 4 * i, 44))
        a("s_mov_b32 exec_lo, 0x00ff00ff\ns_mov_b32 exec_hi, 0x00ff00ff")
        for i in range(7):
            a(f"buffer_store_dwordx4 {vr(128+4*i,4)}, v9, {srd(SWS)}, s{sT0} offen offset:{512*i} sc1")
        a("s_mov_b64 exec, -1\nL_noffn:")

    def out_rows(self):
        a = self.a
        a(f"""
        ds_read_b128 v[48:51], v15 offset:{2*7680}
        ds_read_b128 v[52:55], v16 offset:{2*7680}
        v_lshrrev_b32_e64 v22, v20, s80
        v_lshrrev_b32_e64 v23, v21, s80
        v_and_b32 v22, 1, v22
        v_and_b32 v23, 1, v23
        v_cmp_eq_u32 s[{sM}:{sM+1}], 0, v22
        v_cmp_eq_u32 vcc, 0, v23
        s_waitcnt lgkmcnt(0)
        s_mov_b64 exec, s[{sM}:{sM+1}]
        s_cbranch_execz L_out1
        buffer_store_dwordx4 v[48:51], v{self.VTG}, {srd(SOUT)}, s{sROW} offen
        L_out1:
        s_and_b32 vcc_hi, vcc_hi, 0xffff
        s_mov_b64 exec, vcc
        s_cbranch_execz L_out2
        buffer_store_dwordx4 v[52:55], v{self.VTG+1}, {srd(SOUT)}, s{sROW} offen
        L_out2:
        s_mov_b64 exec, -1
        """)

    def reducer(self):
        a = self.a
        a(f"""
        s_cmp_lt_i32 s{sU}, 0
        s_cbranch_scc1 L_fin
        s_cmp_lg_u32 s{sW}, 0
        s_cbranch_scc1 L_fin
        v_and_b32 v2, 7, v0
        v_lshl_add_u32 v3, v2, 2, s{sA4}
        ds_read_b32 v4, v3
        v_lshrrev_b32 v5, 3, v0
        v_mul_u32_u24 v5, 14336, v5
        v_lshl_add_u32 v5, v2, 4, v5
        v_lshrrev_b32 v6, 4, v0
        s_lshl_b32 s{sT0}, s{sU}, 3
        v_lshl_add_u32 v6, v6, 1, s{sT0}
        s_movk_i32 s{sA1}, 896
        s_mov_b32 s{sA2}, {WS_HH}
        s_mov_b32 s{sA3}, {WS_HN}
        s_lshl_b32 s{sA0}, s{sU}, 7
        s_add_u32 s{sA0}, s{sA0}, {WS_Y}
        s_waitcnt lgkmcnt(0)
        """)
        self.key_token(7, 4)
        a(f"""
        v_mad_u32_u24 v6, v7, s{sA1}, v6
        L_rpoll:
        buffer_load_ushort v8, v6, {srd(SWS)}, s{sA2} offen sc1
        buffer_load_ushort v9, v6, {srd(SWS)}, s{sA3} offen sc1
        v_lshlrev_b32 v10, 1, v4
        v_and_b32 v10, 0xffff0000, v10
        v_ashrrev_i32 v11, 31, v10
        v_not_b32 v11, v11
        v_or_b32 v11, 0x80000000, v11
        v_xor_b32 v10, v10, v11
        v_and_b32 v10, 0xffff0000, v10
        v_mul_f32 v10, {hex(fbits(-LOG2E))}, v10
        v_exp_f32 v10, v10
        v_add_f32 v10, 1.0, v10
        v_rcp_f32 v10, v10
        v_cvt_pk_bf16_f32 v10, v10, v10
        v_and_b32 v10, 0xffff0000, v10
        s_waitcnt vmcnt(0)
        v_max_u32 v11, v8, v9
        v_cmp_eq_u32 vcc, 0xffff, v11
        s_cbranch_vccz L_rok
        """)
        self.spin_guard("L_rok")
        a(f"""
        s_branch L_rpoll
        L_rok:
        v_lshlrev_b32 v8, 16, v8
        v_lshlrev_b32 v9, 16, v9
        """)
        self.stamp("rpre")
        a("L_ypoll:")
        for i in range(7):
            a(f"""
            s_add_u32 s{sT0}, s{sA0}, {i*8*14336}
            buffer_load_dwordx4 {vr(32+4*i,4)}, v5, {srd(SWS)}, s{sT0} offen sc1
            """)
        a("s_waitcnt vmcnt(0)")
        self.sentinel_any(range(32, 60), 22)
        a("s_cbranch_vccz L_yok")
        self.spin_guard("L_yok")
        a("s_sleep 4\ns_branch L_ypoll\nL_yok:")
        for (x, y) in ((32, 36), (40, 44), (48, 52), (32, 40), (48, 56), (32, 48)):
            a(f"v_pk_add_f32 {vr(x,2)}, {vr(x,2)}, {vr(y,2)}\nv_pk_add_f32 {vr(x+2,2)}, {vr(x+2,2)}, {vr(y+2,2)}")
        for k in range(4):
            a(f"v_add_f32_dpp v{36+k}, v{32+k}, v{32+k} row_ror:8 row_mask:0xf bank_mask:0xf bound_ctrl:1")
        a(f"""
        v_permlane16_swap_b32 v36, v37
        v_permlane16_swap_b32 v38, v39
        v_add_f32 v36, v36, v37
        v_add_f32 v38, v38, v39
        v_permlane32_swap_b32 v36, v38
        v_add_f32 v36, v36, v38
        v_cvt_pk_bf16_f32 v36, v36, v36
        v_and_b32 v36, 0xffff0000, v36
        v_mul_f32 v36, v36, v10
        v_cvt_pk_bf16_f32 v36, v36, v36
        v_and_b32 v36, 0xffff0000, v36
        v_add_f32 v36, v36, v9
        v_cvt_pk_bf16_f32 v36, v36, v36
        v_and_b32 v36, 0xffff0000, v36
        v_add_f32 v36, v36, v8
        v_cvt_pk_bf16_f32 v36, v36, v36
        s_mov_b32 exec_lo, 0x00ff00ff
        s_mov_b32 exec_hi, 0x00ff00ff
        buffer_store_short v36, v6, {srd(SOUT)}, 0 offen
        s_mov_b64 exec, -1
        """)
        self.stamp("rend")

    def tail(self):
        self.p3()
        self.topk()
        self.ffn()
        self.out_rows()
        self.reducer()

    def redo(self):
        self.topk_slow()
        super().redo()


if __name__ == "__main__":
    g = Full()
    s, n = g.build()
    sys.stdout.write(s)
    print("pads:", n, file=sys.stderr)
```

```python
import sys, os, struct
sys.path.insert(0, os.path.dirname(os.path.abspath(__file__)))
from asmb import Asm

NAME = "sequential_preLN__mha_block__moe_arch_mod__prompt_kernel"

WS_EPOCH = 0
WS_KVF = 0x1000
WS_CLF = 0x3000
WS_KEYS = 0x4000
WS_STATS = 0x20000
WS_KV = 0x100000
WS_OF = 0x500000
WS_HN = 0x700000
WS_HH = 0x900000
WS_Y = 0xB00000
WS_TS = 0xC00000
WS_SIZE = 0x1000000

L_W = 0
L_XR = 86016
L_CS = 151552
L_RS = 154624
L_QX = 155648
L_WO = 0
L_CB = 114688
L_ST = 147456
L_TR = 114688
L_SEL = 149504
L_AX = 149760
L_G = 138240
L_WG = 0
L_WU = 28672
L_WD = 57344
LDS_BYTES = 163840

SX, SWQ, SWS, SWO, SOUT, SWG, SWU, SWD, SWR = 8, 12, 16, 20, 24, 28, 32, 36, 40
sW, sH, sB, sT, sC, sNON, sI, sXCD = 44, 45, 46, 47, 48, 49, 50, 51
sKG = 52
sXO = 59
sONE = 60
sT0, sT1, sT2 = 61, 62, 63
sLO = 86
sM = 88
sA0, sA1, sA2, sA3, sA4, sA5 = 90, 91, 92, 93, 94, 95
sSPIN = 96
sPASS = 97
sTH = 98
sTS = 64
SPIN_MAX = 1 << 17

LOG2E = 1.4426950408889634


def fbits(x):
    return struct.unpack("<I", struct.pack("<f", x))[0]


def srd(r):
    return f"s[{r}:{r+3}]"


def vr(a, n):
    return f"v[{a}:{a+n-1}]" if n > 1 else f"v{a}"


def M32(d, a, b, c=None):
    return f"v_mfma_f32_32x32x16_bf16 {vr(d,16)}, {vr(a,4)}, {vr(b,4)}, {vr(c,16) if c is not None else 0}"


def M16(d, a, b, c=None):
    return f"v_mfma_f32_16x16x32_bf16 {vr(d,4)}, {vr(a,4)}, {vr(b,4)}, {vr(c,4) if c is not None else 0}"


class Gen:
    def __init__(self, stop=None, ts=False, rot=True, force_fb=False, **kw):
        self.a = Asm()
        self.stop = stop
        self.ts = ts
        self.rot = rot
        self.force_fb = force_fb
        self.nts = 0
        self.tsn = []
        for k, v in kw.items():
            setattr(self, k, v)

    amp = None
    ampg = 80

    def stamp(self, name=""):
        if self.amp:
            if name == "entry":
                self.a("s_memrealtime s[100:101]")
            elif name == self.amp:
                self.a("s_memrealtime s[84:85]\ns_waitcnt lgkmcnt(0)")
        if not self.ts:
            return
        k = self.nts
        self.nts += 1
        self.tsn.append(name)
        assert k < 32
        self.a(f"""
        s_memrealtime s[100:101]
        s_waitcnt lgkmcnt(0)
        v_writelane_b32 v254, s100, {k}
        s_memtime s[100:101]
        s_waitcnt lgkmcnt(0)
        v_writelane_b32 v254, s100, {32+k}
        """.replace("v254", self.TSV))

    def spin_guard(self, out_label):
        self.a(f"""
        s_add_u32 s{sSPIN}, s{sSPIN}, 1
        s_cmp_gt_u32 s{sSPIN}, {SPIN_MAX}
        s_cbranch_scc1 {out_label}
        """)

    def xhalf_sum(self, x, t):
        self.a(f"""
        v_mov_b32 v{t}, v{x}
        v_permlane32_swap_b32 v{x}, v{t}
        v_add_f32 v{x}, v{x}, v{t}
        """)

    def ln_scalars(self, S1, S2, mb, rs, t0, t1):
        self.a(f"""
        v_mul_f32 v{mb}, {hex(fbits(1/448))}, v{S1}
        v_mul_f32 v{t0}, {hex(fbits(1/448))}, v{S2}
        v_fma_f32 v{t0}, -v{mb}, v{mb}, v{t0}
        v_max_f32 v{t0}, 0, v{t0}
        v_cvt_pk_bf16_f32 v{t1}, v{mb}, v{t0}
        v_lshlrev_b32 v{mb}, 16, v{t1}
        v_and_b32 v{t0}, 0xffff0000, v{t1}
        v_add_f32 v{t0}, {hex(fbits(1e-5))}, v{t0}
        v_cvt_pk_bf16_f32 v{t0}, v{t0}, v{t0}
        v_and_b32 v{t0}, 0xffff0000, v{t0}
        v_sqrt_f32 v{t0}, v{t0}
        v_cvt_pk_bf16_f32 v{t0}, v{t0}, v{t0}
        v_and_b32 v{t0}, 0xffff0000, v{t0}
        v_rcp_f32 v{rs}, v{t0}
        """)

    def neg_split2(self, d, x, t):
        self.a(f"""
        v_cvt_pk_bf16_f32 v{t}, -v{x}, -v{x}
        v_and_b32 v{t}, 0xffff0000, v{t}
        v_sub_f32 v{d}, -v{x}, v{t}
        v_cvt_pk_bf16_f32 v{d}, v{t}, v{d}
        """.replace("v_sub_f32 ", "v_sub_f32_e64 "))

    def prologue(self):
        a = self.a
        a(f"""
        s_cmp_ge_u32 s2, 256
        s_cbranch_scc1 L_end
        """)
        self.stamp("entry")
        a(f"""
        s_load_dwordx16 s[64:79], s[0:1], 0
        s_load_dwordx4 s[80:83], s[0:1], 64
        s_load_dwordx2 s[84:85], s[0:1], 80
        v_lshrrev_b32 v1, 6, v0
        v_and_b32 v0, 63, v0
        s_and_b32 s{sXCD}, s2, 7
        s_lshr_b32 s{sI}, s2, 3
        v_readfirstlane_b32 s{sW}, v1
        s_lshr_b32 s{sT0}, s{sXCD}, 1
        s_and_b32 s{sT1}, s{sXCD}, 1
        s_and_b32 s{sC}, s{sI}, 3
        s_lshr_b32 s{sT2}, s{sI}, 2
        s_lshl_b32 s{sH}, s{sT0}, 2
        s_add_u32 s{sH}, s{sH}, s{sC}
        s_lshl_b32 s{sH}, s{sH}, 2
        s_mov_b32 s{sA0}, {self.HMAP & 0xffffffff}
        s_mov_b32 s{sA1}, {self.HMAP >> 32}
        s_lshr_b64 s[{sA0}:{sA1}], s[{sA0}:{sA1}], s{sH}
        s_and_b32 s{sH}, s{sA0}, 15
        s_lshl_b32 s{sB}, s{sT1}, 3
        s_add_u32 s{sB}, s{sB}, s{sT2}
        s_lshl_b32 s{sT}, s{sT1}, 5
        s_lshl_b32 s{sT0}, s{sT0}, 3
        s_add_u32 s{sT}, s{sT}, s{sT0}
        s_add_u32 s{sT}, s{sT}, s{sT2}
        s_mov_b32 s{sONE}, 0x3f803f80
        s_mov_b32 s{sLO}, -1
        s_mov_b32 s{sLO+1}, 0
        s_mov_b32 s{sSPIN}, 0
        s_mov_b32 s{sPASS}, 0
        """)
        if self.rot:
            a(f"""
            s_lshl_b32 s{sA0}, s{sC}, 1
            s_add_u32 s{sA0}, s{sA0}, s{sT2}
            s_cmp_ge_u32 s{sA0}, 7
            s_cselect_b32 s{sA1}, 7, 0
            s_sub_u32 s{sA0}, s{sA0}, s{sA1}
            """)
        else:
            a(f"s_mov_b32 s{sA0}, 0")
        a(f"""
        v_lshrrev_b32 v22, 3, v0
        v_mul_u32_u24 v22, 896, v22
        v_lshrrev_b32 v23, 4, v0
        v_and_b32 v24, 7, v0
        v_xor_b32 v23, v23, v24
        v_lshl_add_u32 v1, v23, 4, v22
        v_xor_b32 v23, 4, v23
        v_lshl_add_u32 v2, v23, 4, v22
        v_add_u32 v2, {7168-1024}, v2
        v_add_u32 v3, {2*(7168-1024)}, v1
        v_add_u32 v4, {2*(7168-1024)}, v2
        v_lshrrev_b32 v22, 2, v0
        v_mul_u32_u24 v22, 2688, v22
        v_and_b32 v23, 3, v0
        v_lshlrev_b32 v23, 4, v23
        v_min_u32 v23, 40, v23
        v_add_u32 v5, v23, v22
        """)
        a(f"""
        s_lshl_b32 s{sXO}, s{sB}, 2
        s_add_u32 s{sXO}, s{sXO}, s{sW}
        s_mul_i32 s{sXO}, s{sXO}, {32*896}
        """)
        for G in range(7):
            a(f"s_mov_b32 s{sKG+G}, s{sA0}")
            if G < 6:
                a(f"""
                s_add_u32 s{sA0}, s{sA0}, 1
                s_cmp_eq_u32 s{sA0}, 7
                s_cselect_b32 s{sA0}, 0, s{sA0}
                """)
        a(f"""
        s_mul_i32 s{sA1}, s{sW}, {16*2688}
        s_mul_i32 s{sA2}, s{sH}, 56
        s_add_u32 s{sA1}, s{sA1}, s{sA2}
        s_add_u32 s{sA1}, s{sA1}, 896
        s_lshl_b32 s{sA2}, s{sW}, 14
        s_add_u32 s{sA2}, s{sA2}, {L_XR}
        s_mul_i32 s{sA3}, s{sW}, 21504
        s_waitcnt lgkmcnt(0)
        s_load_dword s{sNON}, s[84:85], 0
        s_mov_b32 s{SX}, s64
        s_mov_b32 s{SX+1}, s65
        s_mov_b32 s{SX+2}, {2048*896}
        s_mov_b32 s{SX+3}, 0x20000
        s_mov_b32 s{SWQ}, s66
        s_mov_b32 s{SWQ+1}, s67
        s_mov_b32 s{SWQ+2}, {448*2688}
        s_mov_b32 s{SWQ+3}, 0x20000
        """)
        self.dma_group(0)
        for r, p, n in ((SWS, 84, WS_SIZE), (SWO, 68, 448 * 896), (SOUT, 80, 2048 * 896), (SWG, 74, 448 * 3584),
                        (SWU, 76, 448 * 3584), (SWD, 78, 1792 * 896), (SWR, 72, 896)):
            a(f"""
            s_mov_b32 s{r}, s{p}
            s_mov_b32 s{r+1}, s{p+1}
            s_mov_b32 s{r+2}, {n}
            s_mov_b32 s{r+3}, 0x20000
            """)
        a(f"""
        v_and_b32 v22, 31, v0
        v_lshrrev_b32 v23, 5, v0
        v_lshrrev_b32 v24, 1, v22
        v_and_b32 v24, 7, v24
        v_xor_b32 v24, v24, v23
        v_lshlrev_b32 v22, 7, v22
        v_add_u32 v22, s{sA2}, v22
        v_lshrrev_b32 v25, 2, v0
        v_and_b32 v25, 3, v25
        v_lshl_add_u32 v25, v23, 3, v25
        v_lshlrev_b32 v25, 6, v25
        v_lshrrev_b32 v26, 4, v0
        v_and_b32 v26, 1, v26
        v_lshl_add_u32 v25, v26, 5, v25
        v_lshrrev_b32 v27, 1, v0
        v_and_b32 v27, v27, v26
        v_and_b32 v26, 3, v0
        v_xor_b32 v26, v26, v27
        v_lshl_add_u32 v25, v26, 3, v25
        """)
        for p in range(4):
            a(f"""
            s_add_u32 s{sT0}, s{sW}, {p}
            s_and_b32 s{sT0}, s{sT0}, 3
            s_lshl_b32 s{sT1}, s{sT0}, 1
            s_mul_i32 s{sT2}, s{sT0}, 21504
            v_xor_b32 v26, s{sT1}, v24
            v_lshl_add_u32 v{6+p}, v26, 4, v22
            v_add_u32 v{10+p}, s{sT2}, v25
            """)
        for r in list(range(14, 22)) + [31, 97, 98, 99, 101, 102, 103, 105, 106, 107]:
            a(f"v_mov_b32 v{r}, 0")
        for G in range(1, self.LA):
            self.dma_group(G)
        self.stamp("issued")

    def dma_group(self, G, emit=True):
        t = f"""
        s_lshl_b32 s{sT0}, s{sKG+G}, 7
        s_add_u32 s{sT0}, s{sT0}, s{sXO}
        s_add_u32 m0, s{sA2}, {(G%4)*4096}
        s_mul_i32 s{sKG+G}, s{sKG+G}, {64*2688}
        buffer_load_dwordx4 v1, {srd(SX)}, s{sT0} offen lds
        buffer_load_dwordx4 v2, {srd(SX)}, s{sT0} offen offset:1024 lds
        buffer_load_dwordx4 v3, {srd(SX)}, s{sT0} offen offset:2048 lds
        buffer_load_dwordx4 v4, {srd(SX)}, s{sT0} offen offset:3072 lds
        s_add_u32 m0, s{sA3}, {L_W+G*3072}
        s_add_u32 s{sKG+G}, s{sKG+G}, s{sA1}
        s_sub_u32 s{sT1}, s{sKG+G}, 128
        buffer_load_dwordx4 v5, {srd(SWQ)}, s{sKG+G} offen lds
        buffer_load_dwordx4 v5, {srd(SWQ)}, s{sT1} offen offset:1024 lds
        """
        if emit:
            self.a(t)
        return [x.strip() for x in t.strip().split("\n")]

    def dma_q(self, G):
        return [f"s_add_u32 m0, s{sA3}, {L_W+G*3072+2048}", f"s_sub_u32 s{sT1}, s{sKG+G}, 896",
                f"buffer_load_dwordx4 v5, {srd(SWQ)}, s{sT1} offen lds"]

    LA = 2
    HMAP = sum(h << (4 * k) for k, h in enumerate([2, 4, 6, 0, 9, 11, 13, 15, 1, 3, 5, 7, 8, 10, 12, 14]))
    TSV = 'v29'
    p1_stamps = ()
    NT = 0

    def touches(self):
        return []

    def p1(self):
        a = self.a
        XF, AK, AV, AQ, WF = 128, 32, 48, 64, 80
        XE = 96
        RS = 108
        KO, VO = 240, 248
        s1, s2, csK, csV = (14, 15), (16, 17), 18, 19
        WEK, WEV = 100, 104
        nt = self.NT
        LA = self.LA
        queue = [("g", g) for g in range(LA) for _ in range(6)]

        def newer(tag):
            k = max(i for i, t in enumerate(queue) if t == tag)
            return len(queue) - 1 - k

        def xstats(n):
            for i in range(4):
                a(f"v_dot2c_f32_bf16 v{s1[i%2]}, s{sONE}, v{XF+4*n+i}")
                a(f"v_dot2c_f32_bf16 v{s2[i%2]}, v{XF+4*n+i}, v{XF+4*n+i}")

        WBS = ([80, 88, 240, 248], [64, 72, 108, 116])

        def greads(G):
            WB = WBS[G % 2]
            r = [f"ds_read_b128 {vr(XF+4*(4*G+q),4)}, v{6+q} offset:{(G%4)*4096}" for q in range(4)]
            r += [f"ds_read_b64_tr_b16 {vr(WB[p]+4*t+2*hlf,2)}, v{10+p} offset:{G*3072+t*1024+hlf*256}"
                  for p in range(4) for t in range(2) for hlf in range(2)]
            return r

        def lines(t):
            return [x.strip() for x in t.strip().split("\n") if x.strip()]

        a(f"s_waitcnt vmcnt({newer(('g', 0))})\ns_barrier")
        self.stamp("g0")
        for x in greads(0):
            a(x)
        qnext = 0
        for G in range(7):
            WB = WBS[G % 2]
            if G in self.p1_stamps:
                self.stamp(f"G{G}")
            a("s_waitcnt lgkmcnt(12)")
            for i in range(4):
                a(f"v_dot2c_f32_bf16 v{csK}, s{sONE}, v{WB[0]+i}")
                a(f"v_dot2c_f32_bf16 v{csV}, s{sONE}, v{WB[0]+4+i}")
            xstats(4 * G)
            if G == 6:
                a(f"""
                ds_write_b32 v24, v{csK}
                ds_write_b32 v24, v{csV} offset:1024
                """)
            for q in range(1, 4):
                xstats(4 * G + q)
            gaps = [[] for _ in range(8)]
            early = []
            if G + LA <= 6:
                early = self.dma_group(G + LA, emit=False)
                queue += [("g", G + LA)] * 6
            elif G < 6:
                nq = 7 - qnext if G == 5 else -(-7 // (LA - 1))
                for k in range(qnext, qnext + nq):
                    early += self.dma_q(k)
                    queue.append(("q", 0))
                qnext += nq
                if G == 5:
                    early += self.touches()
                    queue += [("t", 0)] * nt
            if G == 0:
                early += lines(f"""s_waitcnt lgkmcnt(0)
                s_mul_i32 s{sNON}, s{sNON}, 0x19660d
                s_add_u32 s{sNON}, s{sNON}, 0x3c6ef35f
                v_mov_b32 v30, s{sNON}""")
            if G == 4:
                early += lines(f"""v_and_b32 v22, 31, v0
                v_lshlrev_b32 v22, 5, v22
                v_add_u32 v23, {L_CS}, v22
                v_lshrrev_b32 v24, 5, v0
                s_lshl_b32 s{sT0}, s{sW}, 3
                v_lshl_add_u32 v24, v24, 2, v23
                v_add_u32 v24, s{sT0}, v24""")
            if G < 6:
                per = -(-len(early) // 3)
                for k in range(3):
                    gaps[k] = early[k * per:(k + 1) * per]
                rd = greads(G + 1)
                gaps[2] += [f"s_waitcnt vmcnt({newer(('g', G+1))})", "s_barrier"]
                for k in range(5):
                    gaps[3 + k] = rd[4 * k:4 * k + 4]
            else:
                sub = Gen()
                sub.a(f"""
                v_add_f32 v14, v14, v15
                v_add_f32 v16, v16, v17
                v_permlane32_swap_b32 v14, v16
                v_add_f32 v14, v14, v16
                v_mov_b32 v16, v14
                v_permlane32_swap_b32 v14, v16
                """)
                sub.ln_scalars(14, 16, 26, 28, 24, 25)
                sub.a(f"""
                v_lshrrev_b32 v24, 16, v26
                v_or_b32 v24, v24, v26
                v_cndmask_b32 v{XE}, 0, v24, s[{sLO}:{sLO+1}]
                v_and_b32 v24, 31, v0
                s_lshl_b32 s{sT0}, s{sW}, 7
                s_add_u32 s{sT0}, s{sT0}, {L_RS}
                v_lshl_add_u32 v24, v24, 2, s{sT0}
                v_lshrrev_b32 v25, 5, v0
                v_lshl_add_u32 v25, v25, 4, s{sT0}
                ds_write_b32 v24, v28
                """)
                A = [x[1].text for x in sub.a.items]
                sub = Gen()
                for mat, we in ((0, WEK), (1, WEV)):
                    r = RS + 8 * mat
                    sub.a(f"""
                    v_add_f32 v{r}, v{r}, v{r+1}
                    v_add_f32 v{r+2}, v{r+2}, v{r+3}
                    v_add_f32 v{r+4}, v{r+4}, v{r+5}
                    v_add_f32 v{r+6}, v{r+6}, v{r+7}
                    v_add_f32 v{r}, v{r}, v{r+2}
                    v_add_f32 v{r+4}, v{r+4}, v{r+6}
                    v_add_f32 v{r}, v{r}, v{r+4}
                    """)
                    sub.neg_split2(we, r, 22)
                Bc = [x[1].text for x in sub.a.items]
                gaps[0] = A[:5] + ["s_waitcnt lgkmcnt(0)", "s_barrier"] + \
                    [f"ds_read_b128 {vr(RS+4*i,4)}, v23 offset:{(i//2)*1024+(i%2)*16}" for i in range(4)]
                A = A[5:]
                mix = A[:10] + ["s_waitcnt lgkmcnt(0)"]
                A = A[10:]
                while A or Bc:
                    mix += A[:1] + Bc[:1]
                    A, Bc = A[1:], Bc[1:]
                per = -(-len(mix) // 7)
                for k in range(7):
                    gaps[1 + k] = mix[k * per:(k + 1) * per]
            for p in range(4):
                m = 4 * G + p
                if p == 1 and G < 6:
                    a("s_waitcnt lgkmcnt(0)")
                a(M32(AK, WB[p], XF + 4 * m, AK if m else None))
                for x in gaps[2 * p]:
                    a(x)
                a(M32(AV, XF + 4 * m, WB[p] + 4, AV if m else None))
                for x in gaps[2 * p + 1]:
                    a(x)
        a(M32(AK, WEK, XE, AK))
        a(M32(AV, XE, WEV, AV))
        a("s_waitcnt lgkmcnt(0)")
        for g in range(4):
            a(f"ds_read_b128 {vr(RS+4*g,4)}, v25 offset:{g*32}")
        a(f"""
        v_lshlrev_b32 v1, 4, v0
        s_lshl_b32 s{sA0}, s{sH}, 4
        s_add_u32 s{sA0}, s{sA0}, s{sB}
        s_lshl_b32 s{sA0}, s{sA0}, 2
        s_add_u32 s{sA0}, s{sA0}, s{sW}
        s_lshl_b32 s{sA0}, s{sA0}, 12
        s_add_u32 s{sA0}, s{sA0}, {WS_KV}
        v_and_b32 v22, 31, v0
        v_cmp_gt_u32 vcc, 28, v22
        v_cndmask_b32 v23, 0, -1, vcc
        v_cmp_eq_u32 vcc, 28, v22
        v_mov_b32 v24, s{sONE}
        v_mov_b32 v27, 0x3f80
        v_cndmask_b32 v22, 0, v24, vcc
        """)
        for i in range(8):
            a(f"v_pk_mul_f32 {vr(AK+2*i,2)}, {vr(AK+2*i,2)}, {vr(28,2)} op_sel_hi:[1,0]")
        for i in range(8):
            a(f"v_cvt_pk_bf16_f32 v{KO+i}, v{AK+2*i}, v{AK+2*i+1}")
        a(f"""
        v_cndmask_b32 v{KO+6}, v24, v{KO+6}, s[{sLO}:{sLO+1}]
        v_cndmask_b32 v{KO+7}, v27, v{KO+7}, s[{sLO}:{sLO+1}]
        buffer_store_dwordx4 {vr(KO,4)}, v1, {srd(SWS)}, s{sA0} offen sc1
        buffer_store_dwordx4 {vr(KO+4,4)}, v1, {srd(SWS)}, s{sA0} offen offset:1024 sc1
        s_waitcnt lgkmcnt(0)
        """)
        for i in range(8):
            a(f"v_pk_mul_f32 {vr(AV+2*i,2)}, {vr(AV+2*i,2)}, {vr(RS+2*i,2)}")
        for i in range(8):
            a(f"v_cvt_pk_bf16_f32 v{VO+i}, v{AV+2*i}, v{AV+2*i+1}")
        for i in range(8):
            a(f"v_and_or_b32 v{VO+i}, v{VO+i}, v23, v22")
        a(f"""
        buffer_store_dwordx4 {vr(VO,4)}, v1, {srd(SWS)}, s{sA0} offen offset:2048 sc1
        buffer_store_dwordx4 {vr(VO+4,4)}, v1, {srd(SWS)}, s{sA0} offen offset:3072 sc1
        """)
        self.stamp("kvpub")
        ncl = self.clears()
        QW = 32
        a(f"s_waitcnt vmcnt({nt+4+ncl})")
        for G in range(7):
            for hlf in range(2):
                a(f"ds_read_b64_tr_b16 {vr(QW+4*G+2*hlf,2)}, v10 offset:{G*3072+2048+hlf*256}")
        a(f"""
        v_and_b32 v22, 31, v0
        v_lshlrev_b32 v22, 5, v22
        v_add_u32 v23, {L_CS}, v22
        v_lshrrev_b32 v24, 5, v0
        s_lshl_b32 s{sT0}, s{sW}, 3
        v_lshl_add_u32 v24, v24, 2, v23
        v_add_u32 v24, s{sT0}, v24
        """)
        for G in range(7):
            a(f"s_waitcnt lgkmcnt({12-2*G})")
            for i in range(4):
                a(f"v_dot2c_f32_bf16 v{20+i%2}, s{sONE}, v{QW+4*G+i}")
        a(f"""
        v_add_f32 v20, v20, v21
        ds_write_b32 v24, v20 offset:2048
        s_waitcnt lgkmcnt(0)
        s_barrier
        ds_read_b128 {vr(RS,4)}, v23 offset:2048
        ds_read_b128 {vr(RS+4,4)}, v23 offset:2064
        """)
        steps = [(G, p) for p in range(1, 4) for G in range(7)]

        def qread(n):
            G, p = steps[n]
            return [f"ds_read_b64_tr_b16 {vr(WF+4*(n%4)+2*hlf,2)}, v{10+p} offset:{G*3072+2048+hlf*256}" for hlf in range(2)]

        for G in range(7):
            a(M32(AQ, QW + 4 * G, XF + 16 * G, AQ if G else None))
            if G < 3:
                for x in qread(G):
                    a(x)
            if G == 3:
                a(f"""
                s_waitcnt lgkmcnt(6)
                v_add_f32 v{RS}, v{RS}, v{RS+1}
                v_add_f32 v{RS+2}, v{RS+2}, v{RS+3}
                v_add_f32 v{RS+4}, v{RS+4}, v{RS+5}
                v_add_f32 v{RS+6}, v{RS+6}, v{RS+7}
                """)
            if G == 4:
                a(f"""
                v_add_f32 v{RS}, v{RS}, v{RS+2}
                v_add_f32 v{RS+4}, v{RS+4}, v{RS+6}
                v_add_f32 v{RS}, v{RS}, v{RS+4}
                """)
            if G == 5:
                self.neg_split2(WEV, RS, 22)
        for n in range(21):
            G, p = steps[n]
            a(f"s_waitcnt lgkmcnt({min(4, 2*(20-n))})")
            a(M32(AQ, WF + 4 * (n % 4), XF + 4 * (4 * G + p), AQ))
            if n + 3 < 21:
                for x in qread(n + 3):
                    a(x)
        a(M32(AQ, WEV, XE, AQ))
        a(f"""
        s_waitcnt vmcnt({ncl})
        s_lshl_b32 s{sT0}, s{sH}, 2
        s_add_u32 s{sT0}, s{sT0}, s{sW}
        s_lshl_b32 s{sT0}, s{sT0}, 7
        s_add_u32 s{sA1}, s{sT0}, {WS_KVF}
        s_lshl_b32 s{sT1}, s{sB}, 2
        s_add_u32 s{sT1}, s{sT1}, s{sA1}
        s_mov_b64 exec, 1
        buffer_store_dword v30, v31, {srd(SWS)}, s{sT1} offen sc1
        s_mov_b64 exec, -1
        """)
        a(f"v_mul_f32 v28, {hex(fbits(LOG2E*28**-0.5))}, v28")
        QO = 80
        for i in range(8):
            a(f"v_pk_mul_f32 {vr(AQ+2*i,2)}, {vr(AQ+2*i,2)}, {vr(28,2)} op_sel_hi:[1,0]")
        for i in range(8):
            a(f"v_cvt_pk_bf16_f32 v{QO+i}, v{AQ+2*i}, v{AQ+2*i+1}")
        a(f"""
        v_cndmask_b32 v{QO+6}, 0, v{QO+6}, s[{sLO}:{sLO+1}]
        v_cndmask_b32 v{QO+7}, 0, v{QO+7}, s[{sLO}:{sLO+1}]
        """)
        S = 32
        a(M32(S, KO, QO))
        a(M32(S, KO + 4, QO + 4, S))
        a(f"""
        s_lshl_b32 s{sT0}, s{sW}, 11
        s_add_u32 s{sT0}, s{sT0}, {L_QX}
        v_add_u32 v2, s{sT0}, v1
        """)
        for p in range(4):
            a(f"""
            s_add_u32 s{sT0}, s{sW}, {p+1}
            s_and_b32 s{sT0}, s{sT0}, 3
            s_lshl_b32 s{sT0}, s{sT0}, 11
            s_add_u32 s{sT0}, s{sT0}, {L_QX}
            v_add_u32 v{3+p}, s{sT0}, v1
            """)
        self.rowmax16(S, 22)
        if self.force_fb:
            a("v_add_f32 v22, 0xc3480000, v22")
        self.shift_split(22, 23, 24, 25)
        a(f"""
        v_cndmask_b32 v{QO+6}, v23, v{QO+6}, s[{sLO}:{sLO+1}]
        v_cndmask_b32 v{QO+7}, v24, v{QO+7}, s[{sLO}:{sLO+1}]
        ds_write_b128 v2, {vr(QO,4)}
        ds_write_b128 v2, {vr(QO+4,4)} offset:1024
        s_waitcnt lgkmcnt(0)
        s_barrier
        """)
        for p in range(4):
            a(f"ds_read_b128 {vr(128+8*p,4)}, v{3+p}")
            a(f"ds_read_b128 {vr(128+8*p+4,4)}, v{3+p} offset:1024")
        self.stamp("qdone")

    def rowmax16(self, S, d):
        self.a(f"""
        v_max3_f32 v{d}, v{S}, v{S+1}, v{S+2}
        v_max3_f32 v{d+1}, v{S+3}, v{S+4}, v{S+5}
        v_max3_f32 v{d}, v{d}, v{S+6}, v{S+7}
        v_max3_f32 v{d+1}, v{d+1}, v{S+8}, v{S+9}
        v_max3_f32 v{d}, v{d}, v{S+10}, v{S+11}
        v_max3_f32 v{d+1}, v{d+1}, v{S+12}, v{S+13}
        v_max3_f32 v{d}, v{d}, v{S+14}, v{S+15}
        v_max_f32 v{d}, v{d}, v{d+1}
        v_mov_b32 v{d+1}, v{d}
        v_permlane32_swap_b32 v{d}, v{d+1}
        v_max_f32 v{d}, v{d}, v{d+1}
        """)

    def shift_split(self, m, d6, d7, t):
        self.a(f"""
        v_cvt_pk_bf16_f32 v{d6}, -v{m}, -v{m}
        v_and_b32 v{d6}, 0xffff0000, v{d6}
        v_sub_f32_e64 v{d7}, -v{m}, v{d6}
        v_cvt_pk_bf16_f32 v{t}, v{d7}, v{d7}
        v_and_b32 v{t}, 0xffff0000, v{t}
        v_sub_f32 v{d7}, v{d7}, v{t}
        v_cvt_pk_bf16_f32 v{d6}, v{d6}, v{t}
        v_cvt_pk_bf16_f32 v{d7}, v{d7}, 0
        """)

    def clears(self):
        a = self.a
        n = 0
        a(f"""
        v_mov_b32 v124, -1
        v_mov_b32 v125, -1
        v_mov_b32 v126, -1
        v_mov_b32 v127, -1
        s_lshl_b32 s{sT0}, s{sB}, 2
        s_add_u32 s{sT0}, s{sT0}, s{sW}
        s_lshl_b32 s{sT0}, s{sT0}, 4
        s_add_u32 s{sT0}, s{sT0}, s{sH}
        s_lshl_b32 s{sT0}, s{sT0}, 11
        s_add_u32 s99, s{sT0}, {WS_OF}
        buffer_store_dwordx4 v[124:127], v1, {srd(SWS)}, s99 offen sc1
        buffer_store_dwordx4 v[124:127], v1, {srd(SWS)}, s99 offen offset:1024 sc1
        """)
        n += 2
        return n + self.clears_tail()

    def clears_tail(self):
        return 0

    Q, O, SA, SB, TT, P = 128, 160, 32, 48, 64, 72
    KVB = (240, 224, 80)

    def unit(self, n, buf, bufn, bufp, qt, first_tile=False, extra=None):
        a = self.a
        Q, O, TT, P = self.Q, self.O, self.TT, self.P
        Sc, Sn = (self.SA, self.SB) if n % 2 == 0 else (self.SB, self.SA)
        kn = buf if qt < 3 else bufn
        qn, qp = (qt + 1) % 4, (qt - 1) % 4
        vp = (buf if qt > 0 else bufp) + 8
        ms = [M32(Sn, kn, Q + 8 * qn), M32(O + 16 * qp, vp + 4, P + 4, O + 16 * qp),
              M32(Sn, kn + 4, Q + 8 * qn + 4, Sn),
              M32(O + 16 * qt, buf + 8, P, None if first_tile else O + 16 * qt)]
        very_first = first_tile and qt == 0
        extra = extra or {}
        for g in range(4):
            for x in extra.get(("pre", g), ()):
                a(x)
            if not (very_first and g == 1):
                a(ms[g])
            for x in extra.get(g, ()):
                a(x)
            tb, tp, pp = TT + 4 * (g % 2), TT + 4 * ((g + 1) % 2), P + 2 * ((g - 1) % 4)
            a(f"v_exp_f32 v{tb}, v{Sc+4*g}")
            a(f"v_exp_f32 v{tb+1}, v{Sc+4*g+1}")
            if not (very_first and g == 0):
                a(f"v_cvt_pk_bf16_f32 v{pp}, v{tp}, v{tp+1}")
                a(f"v_cvt_pk_bf16_f32 v{pp+1}, v{tp+2}, v{tp+3}")
            a(f"v_exp_f32 v{tb+2}, v{Sc+4*g+2}")
            a(f"v_exp_f32 v{tb+3}, v{Sc+4*g+3}")

    def kv_next(self):
        return [f"s_add_u32 s{sA2}, s{sA2}, 16384", f"s_and_b32 s{sA2}, s{sA2}, {16*16384-1}",
                f"s_add_u32 s{sA3}, s{sA2}, s{sA0}"]

    def kv_load(self, buf, part):
        return f"buffer_load_dwordx4 {vr(buf+4*part,4)}, v1, {srd(SWS)}, s{sA3} offen offset:{1024*part} sc1"

    def wo_dma(self):
        return []

    def attention(self):
        a = self.a
        Q, O, P, TT = self.Q, self.O, self.P, self.TT
        B = self.KVB
        a(f"""
        s_lshl_b32 s{sA0}, s{sH}, 6
        s_add_u32 s{sA0}, s{sA0}, s{sW}
        s_lshl_b32 s{sA0}, s{sA0}, 12
        s_add_u32 s{sA0}, s{sA0}, {WS_KV}
        v_and_b32 v2, 15, v0
        v_lshlrev_b32 v2, 2, v2
        L_kvpoll:
        """)
        self.spin_guard("L_kvok")
        a(f"""
        buffer_load_dword v3, v2, {srd(SWS)}, s{sA1} offen sc1
        s_waitcnt vmcnt(0)
        v_cmp_ne_u32 vcc, s{sNON}, v3
        s_cbranch_vccnz L_kvpoll
        L_kvok:
        """)
        self.stamp("kvok")
        self.pre_attention()
        a(f"""
        L_att:
        s_lshl_b32 s{sA2}, s{sB}, 14
        """)
        for x in self.kv_next():
            a(x)
        for part in range(4):
            a(self.kv_load(B[1], part))
        a("s_waitcnt lgkmcnt(0)")
        a(M32(self.SA, B[0], Q))
        a(M32(self.SA, B[0] + 4, Q + 4, self.SA))
        n = 0
        for qt in range(4):
            ex = {2: ([] if qt else self.kv_next()) + [self.kv_load(B[2], qt)]}
            if qt == 3:
                ex[("pre", 0)] = ["s_waitcnt vmcnt(3)"]
                ex[0] = self.cl_flag()
            self.unit(n, B[0], B[1], B[2], qt, first_tile=True, extra=ex)
            n += 1
        a(f"s_mov_b32 s{sA5}, 5")
        a(".p2align 6")
        a("L_loop:")
        nwo = len([x for x in self.wo_dma() if x.startswith("buffer")])
        for it in range(3):
            i = 1 + it
            buf, bufn, bufp = B[i % 3], B[(i + 1) % 3], B[(i - 1) % 3]
            for qt in range(4):
                ex = {2: ([] if qt else self.kv_next()) + [self.kv_load(bufp, qt)]}
                if qt in (1, 2):
                    ex[0] = self.wo_dma()
                if qt == 3:
                    ex[("pre", 0)] = [f"s_waitcnt vmcnt({3+2*nwo})"]
                self.unit(n, buf, bufn, bufp, qt, extra=ex)
                n += 1
        a(f"""
        s_sub_u32 s{sA5}, s{sA5}, 1
        s_cmp_lg_u32 s{sA5}, 0
        s_cbranch_scc1 L_loop
        v_cvt_pk_bf16_f32 v{P+6}, v{TT+4}, v{TT+5}
        v_cvt_pk_bf16_f32 v{P+7}, v{TT+6}, v{TT+7}
        """)
        a(M32(O + 48, B[0] + 12, P + 4, O + 48))
        self.stamp("attn")

    def pre_attention(self):
        pass

    def cl_flag(self):
        return [f"s_lshl_b32 s{sT0}, s2, 4", f"s_lshl_b32 s{sT1}, s{sW}, 2", f"s_add_u32 s{sT0}, s{sT0}, s{sT1}",
                f"s_add_u32 s{sT0}, s{sT0}, {WS_CLF}", "s_mov_b64 exec, 1",
                f"buffer_store_dword v30, v31, {srd(SWS)}, s{sT0} offen sc1", "s_mov_b64 exec, -1"]

    def combine(self):
        a = self.a
        O = self.O
        a(f"""
        s_lshl_b32 s{sA4}, s{sW}, 10
        s_add_u32 s{sA4}, s{sA4}, {WS_CLF}
        buffer_load_dwordx4 v[4:7], v1, {srd(SWS)}, s{sA4} offen sc1
        """)
        a(f"""
        v_mov_b32 v8, {hex(fbits(2.0**64))}
        v_max3_f32 v9, v{O+12}, v{O+16+12}, v{O+32+12}
        """)
        for p in range(3):
            a(f"""
            s_add_u32 s{sT0}, s{sW}, {p+1}
            s_and_b32 s{sT0}, s{sT0}, 3
            s_mul_i32 s{sT0}, s{sT0}, 12288
            s_add_u32 s{sT0}, s{sT0}, {L_CB+p*4096}
            v_add_u32 v{10+p}, s{sT0}, v1
            """)
        a(f"""
        s_mul_i32 s{sT0}, s{sW}, 12288
        s_add_u32 s{sT0}, s{sT0}, {L_CB}
        v_add_u32 v13, s{sT0}, v1
        v_max_f32 v9, v9, v{O+48+12}
        v_cmp_nlt_f32 vcc, v9, v8
        s_andn2_b64 vcc, vcc, s[{sLO}:{sLO+1}]
        s_cmp_lg_u64 vcc, 0
        s_cselect_b32 s{sT1}, 0x3f800000, 0
        v_mov_b32 v8, s{sT1}
        """)
        for p in range(4):
            a(f"v_cndmask_b32 v{O+16*p+13}, v8, v{O+16*p+13}, s[{sLO}:{sLO+1}]")
        for p in range(3):
            for k in range(4):
                a(f"ds_write_b128 v{10+p}, {vr(O+16*p+4*k,4)} offset:{k*1024}")
        a("L_clpoll:")
        a(f"""
        s_waitcnt vmcnt(0)
        v_cmp_ne_u32 vcc, s{sNON}, v4
        v_cmp_ne_u32 s[{sM}:{sM+1}], s{sNON}, v5
        s_or_b64 vcc, vcc, s[{sM}:{sM+1}]
        v_cmp_ne_u32 s[{sM}:{sM+1}], s{sNON}, v6
        s_or_b64 vcc, vcc, s[{sM}:{sM+1}]
        v_cmp_ne_u32 s[{sM}:{sM+1}], s{sNON}, v7
        s_or_b64 vcc, vcc, s[{sM}:{sM+1}]
        s_cbranch_vccz L_clok
        """)
        self.spin_guard("L_clok")
        a(f"""
        buffer_load_dwordx4 v[4:7], v1, {srd(SWS)}, s{sA4} offen sc1
        s_branch L_clpoll
        L_clok:
        s_waitcnt lgkmcnt(0)
        s_barrier
        """)
        for p in range(3):
            for k in range(4):
                a(f"ds_read_b128 {vr(O+16*p+4*k,4)}, v13 offset:{p*4096+k*1024}")
        R = O + 48
        for p in range(3):
            a(f"s_waitcnt lgkmcnt({8-4*p})")
            for i in range(8):
                a(f"v_pk_add_f32 {vr(R+2*i,2)}, {vr(R+2*i,2)}, {vr(O+16*p+2*i,2)}")
        a(f"""
        v_readlane_b32 s{sT0}, v{R+13}, 32
        v_mov_b32 v8, v{R+12}
        v_mov_b32 v9, v{R+12}
        s_cmp_eq_u32 s{sT0}, 0
        s_cbranch_scc1 L_noredo
        s_cmp_eq_u32 s{sPASS}, 0
        s_cbranch_scc1 L_redo
        L_noredo:
        v_permlane32_swap_b32 v8, v9
        v_rcp_f32 v8, v9
        """)
        for i in range(8):
            a(f"v_pk_mul_f32 {vr(R+2*i,2)}, {vr(R+2*i,2)}, {vr(8,2)} op_sel_hi:[1,0]")
        OP = 32
        for i in range(8):
            a(f"v_cvt_pk_bf16_f32 v{OP+i}, v{R+2*i}, v{R+2*i+1}")
        a(f"""
        v_cndmask_b32 v{OP+6}, 0, v{OP+6}, s[{sLO}:{sLO+1}]
        v_cndmask_b32 v{OP+7}, 0, v{OP+7}, s[{sLO}:{sLO+1}]
        buffer_store_dwordx4 {vr(OP,4)}, v1, {srd(SWS)}, s99 offen sc1
        buffer_store_dwordx4 {vr(OP+4,4)}, v1, {srd(SWS)}, s99 offen offset:1024 sc1
        """)
        a(f"""
        s_or_b32 s{sT0}, s2, s{sW}
        s_cmp_lg_u32 s{sT0}, 0
        s_cbranch_scc1 L_noepoch
        s_mov_b64 exec, 1
        buffer_store_dword v30, v31, {srd(SWS)}, 0 offen sc1
        s_mov_b64 exec, -1
        L_noepoch:
        """)
        self.stamp("opub")

    def redo(self):
        a = self.a
        Q, B, S = self.Q, self.KVB, self.SA
        MX = 8
        a(f"""
        L_redo:
        s_mov_b32 s{sPASS}, 1
        s_waitcnt vmcnt(0)
        s_barrier
        s_lshl_b32 s{sA2}, s{sB}, 14
        s_mov_b32 s{sA5}, 16
        """)
        for p in range(4):
            a(f"v_mov_b32 v{MX+p}, 0xff800000")
        a("L_redo_loop:")
        for x in self.kv_next():
            a(x)
        a(self.kv_load(B[1], 0))
        a(self.kv_load(B[1], 1))
        a("s_waitcnt vmcnt(0)")
        for p in range(4):
            a(M32(S, B[1], Q + 8 * p))
            a(M32(S, B[1] + 4, Q + 8 * p + 4, S))
            self.rowmax16(S, 22)
            a(f"v_max_f32 v{MX+p}, v{MX+p}, v22")
        a(f"""
        s_sub_u32 s{sA5}, s{sA5}, 1
        s_cmp_lg_u32 s{sA5}, 0
        s_cbranch_scc1 L_redo_loop
        """)
        for p in range(4):
            a(f"""
            s_add_u32 s{sT0}, s{sW}, {p+1}
            s_and_b32 s{sT0}, s{sT0}, 3
            s_lshl_b32 s{sT0}, s{sT0}, 10
            s_add_u32 s{sT0}, s{sT0}, {L_CB}
            v_lshl_add_u32 v{12+p}, v0, 2, s{sT0}
            s_lshl_b32 s{sT1}, s{sW}, 8
            v_add_u32 v16, s{sT1}, v{12+p}
            ds_write_b32 v16, v{MX+p}
            """)
        a("s_waitcnt lgkmcnt(0)\ns_barrier")
        for p in range(4):
            for k in range(4):
                a(f"ds_read_b32 v{16+k}, v{12+p} offset:{k*256}")
            q6, q7 = Q + 8 * p + 6, Q + 8 * p + 7
            a(f"""
            s_waitcnt lgkmcnt(0)
            v_max3_f32 v16, v16, v17, v18
            v_max_f32 v16, v16, v19
            v_lshlrev_b32 v17, 16, v{q6}
            v_and_b32 v18, 0xffff0000, v{q6}
            v_lshlrev_b32 v19, 16, v{q7}
            v_add_f32 v18, v18, v19
            v_add_f32 v17, v17, v18
            v_sub_f32 v22, v16, v17
            """)
            self.shift_split(22, 23, 24, 25)
            a(f"""
            v_cndmask_b32 v{q6}, v23, v{q6}, s[{sLO}:{sLO+1}]
            v_cndmask_b32 v{q7}, v24, v{q7}, s[{sLO}:{sLO+1}]
            """)
        a(f"""
        s_lshl_b32 s{sA2}, s{sB}, 14
        s_add_u32 s{sA3}, s{sA2}, s{sA0}
        """)
        for part in range(4):
            a(self.kv_load(B[0], part))
        a(f"""
        s_waitcnt vmcnt(0)
        s_barrier
        """)
        self.redo_reset()
        a("s_branch L_att")

    def redo_reset(self):
        pass

    def finish(self):
        a = self.a
        a("L_fin:")
        if self.amp:
            a(f"""
            s_cmp_lg_u32 s2, {self.ampg}
            s_cbranch_scc1 L_end
            s_cmp_lg_u32 s{sW}, 0
            s_cbranch_scc1 L_end
            s_sub_u32 s84, s84, s100
            s_min_u32 s84, s84, 20000
            s_lshl_b32 s84, s84, 3
            s_memrealtime s[100:101]
            s_waitcnt lgkmcnt(0)
            L_amp:
            s_memrealtime s[82:83]
            s_waitcnt lgkmcnt(0)
            s_sub_u32 s82, s82, s100
            s_cmp_lt_u32 s82, s84
            s_cbranch_scc1 L_amp
            """)
        if self.ts:
            a(f"""
            s_lshl_b32 s{sT0}, s2, 2
            s_add_u32 s{sT0}, s{sT0}, s{sW}
            s_lshl_b32 s{sT0}, s{sT0}, 8
            s_add_u32 s{sT0}, s{sT0}, {WS_TS}
            s_mov_b64 exec, -1
            v_lshlrev_b32 v2, 2, v0
            buffer_store_dword {self.TSV}, v2, {srd(SWS)}, s{sT0} offen
            """)
        a("L_end:\ns_endpgm")

    def tail(self):
        pass

    def build(self):
        self.prologue()
        self.p1()
        self.attention()
        self.combine()
        self.tail()
        self.finish()
        self.redo()
        npad = self.a.pad()
        body = self.a.text()
        hdr = open(os.path.join(os.path.dirname(os.path.abspath(__file__)), "header.txt")).read()
        out = hdr + f"""; @launch grid=(256,1,1) block=(256,1,1) lds={LDS_BYTES}
.amdgcn_target "amdgcn-amd-amdhsa--gfx950"
.text
.globl {NAME}
.p2align 8
.type {NAME},@function
{NAME}:
{body}
.section .rodata,"a"
.p2align 6
.amdhsa_kernel {NAME}
  .amdhsa_next_free_vgpr 256
  .amdhsa_next_free_sgpr 102
  .amdhsa_accum_offset 256
  .amdhsa_group_segment_fixed_size 0
  .amdhsa_kernarg_size 88
  .amdhsa_user_sgpr_count 2
  .amdhsa_user_sgpr_kernarg_segment_ptr 1
  .amdhsa_system_sgpr_workgroup_id_x 1
  .amdhsa_float_denorm_mode_32 3
.end_amdhsa_kernel
"""
        return out, npad


class LQ:
    def __init__(self, a):
        self.a, self.q = a, []

    def op(self, text, tag):
        self.a(text)
        self.q.append(tag)

    def wait(self, tag):
        k = max(i for i, t in enumerate(self.q) if t == tag)
        self.a(f"s_waitcnt lgkmcnt({min(len(self.q) - 1 - k, 15)})")


sF, sU = 3, 4
sWOS, sWOM = 5, 6
sROW = 7
OOB = 0x7F000000


class Full(Gen):
    XR2, W2, S4 = 96, 104, 112
    VTG = 116
    VWD = 118

    def roles(self):
        self.a(f"""
        s_lshr_b32 s{sT0}, s{sI}, 2
        s_sub_u32 s{sT0}, s{sI}, s{sT0}
        s_sub_u32 s{sT0}, s{sT0}, 1
        s_mul_i32 s{sT1}, s{sXCD}, 7
        s_add_u32 s{sF}, s{sT0}, s{sT1}
        s_cmp_lt_u32 s{sI}, 10
        s_cselect_b32 s{sF}, s{sF}, -1
        s_cmp_eq_u32 s{sC}, 0
        s_cselect_b32 s{sF}, -1, s{sF}
        s_mul_i32 s{sT1}, s{sXCD}, 14
        s_sub_u32 s{sT0}, s{sI}, 10
        s_add_u32 s{sU}, s{sT0}, s{sT1}
        s_cmp_lt_u32 s{sT0}, 14
        s_cselect_b32 s{sU}, s{sU}, -1
        s_mul_i32 s{sROW}, s{sT}, {32*896}
        s_mul_i32 s{sT0}, s{sC}, 224
        s_add_u32 s{sROW}, s{sROW}, s{sT0}
        """)

    def piece_idx(self, i, tok, ch):
        self.a(f"""
        v_add_u32 v{ch}, {64*i}, v0
        v_mul_u32_u24 v{tok}, 4682, v{ch}
        v_lshrrev_b32 v{tok}, 16, v{tok}
        v_mul_u32_u24 v27, 14, v{tok}
        v_sub_u32 v{ch}, v{ch}, v27
        s_lshl_b32 s{sT0}, s{sW}, 3
        v_add_u32 v{tok}, s{sT0}, v{tok}
        """)

    def clears_tail(self):
        a = self.a
        self.roles()
        for i in range(2):
            self.piece_idx(i, 22, 23)
            a(f"""
            v_mul_u32_u24 v22, 896, v22
            v_lshl_add_u32 v{self.VTG+i}, v23, 4, v22
            """)
        a(f"""
        s_add_u32 s{sT0}, s{sROW}, {WS_HN}
        s_add_u32 s{sT1}, s{sROW}, {WS_HH}
        buffer_store_dwordx4 v[124:127], v{self.VTG}, {srd(SWS)}, s{sT0} offen sc1
        buffer_store_dwordx4 v[124:127], v{self.VTG}, {srd(SWS)}, s{sT1} offen sc1
        s_mov_b32 exec_hi, 0xffff
        buffer_store_dwordx4 v[124:127], v{self.VTG+1}, {srd(SWS)}, s{sT0} offen sc1
        buffer_store_dwordx4 v[124:127], v{self.VTG+1}, {srd(SWS)}, s{sT1} offen sc1
        s_lshl_b32 s{sT0}, s{sT}, 2
        s_add_u32 s{sT0}, s{sT0}, s{sC}
        s_lshl_b32 s{sT0}, s{sT0}, 9
        s_add_u32 s{sT0}, s{sT0}, {WS_STATS}
        s_lshl_b32 s{sT1}, s{sT}, 5
        s_add_u32 s{sT1}, s{sT1}, {WS_KEYS}
        s_cmp_eq_u32 s{sW}, 0
        s_cselect_b32 s{sT0}, s{sT0}, {OOB}
        s_or_b32 s{sT2}, s{sW}, s{sC}
        s_cmp_eq_u32 s{sT2}, 0
        s_cselect_b32 s{sT1}, s{sT1}, {OOB}
        s_mov_b32 exec_hi, 0
        buffer_store_dwordx4 v[124:127], v1, {srd(SWS)}, s{sT0} offen sc1
        s_mov_b64 exec, 3
        buffer_store_dwordx4 v[124:127], v1, {srd(SWS)}, s{sT1} offen sc1
        s_mov_b64 exec, -1
        s_mul_i32 s{sT0}, s{sF}, 14336
        s_mul_i32 s{sT1}, s{sW}, 3584
        s_add_u32 s{sT0}, s{sT0}, s{sT1}
        s_add_u32 s{sT0}, s{sT0}, {WS_Y}
        s_cmp_lt_i32 s{sF}, 0
        s_cselect_b32 s{sT0}, {OOB}, s{sT0}
        buffer_store_dwordx4 v[124:127], v1, {srd(SWS)}, s{sT0} offen sc1
        buffer_store_dwordx4 v[124:127], v1, {srd(SWS)}, s{sT0} offen offset:1024 sc1
        buffer_store_dwordx4 v[124:127], v1, {srd(SWS)}, s{sT0} offen offset:2048 sc1
        buffer_store_dwordx4 v[124:127], v1, {srd(SWS)}, s{sT0} offen offset:2560 sc1
        """)
        return 10

    def pre_attention(self):
        a = self.a
        XR2, W2 = self.XR2, self.W2
        a(f"""
        v_and_b32 v22, 31, v0
        v_lshrrev_b32 v23, 5, v0
        v_lshlrev_b32 v23, 3, v23
        v_mad_u32_u24 v22, v22, v28, v23
        """.replace("v_mad_u32_u24 v22, v22, v28, v23", "v_mul_u32_u24 v22, 896, v22\nv_add_u32 v22, v22, v23"))
        a(f"""
        s_mul_i32 s{sT1}, s{sW}, 56
        s_add_u32 s{sT0}, s{sROW}, s{sT1}
        s_mul_i32 s{sT2}, s{sC}, 224
        s_add_u32 s{sT1}, s{sT1}, s{sT2}
        """)
        for g in range(4):
            a(f"buffer_load_dwordx2 {vr(XR2+2*g,2)}, v22, {srd(SX)}, s{sT0} offen offset:{16*g}")
        for g in range(4):
            a(f"buffer_load_dwordx2 {vr(W2+2*g,2)}, v23, {srd(SWR)}, s{sT1} offen offset:{16*g}")
        a(f"""
        v_lshrrev_b32 v22, 4, v0
        v_lshrrev_b32 v23, 2, v0
        v_sub_u32 v23, v23, v22
        v_and_b32 v23, 3, v23
        v_mul_u32_u24 v23, 56, v23
        v_mul_u32_u24 v22, 896, v22
        v_add_u32 v22, v22, v23
        v_and_b32 v23, 3, v0
        v_lshlrev_b32 v23, 4, v23
        v_min_u32 v23, 40, v23
        v_add_u32 v{self.VWD}, v22, v23
        """)
        self.redo_reset()

    def redo_reset(self):
        self.a(f"""
        s_mul_i32 s{sWOS}, s{sW}, {4*896}
        s_mul_i32 s{sT2}, s{sC}, 224
        s_add_u32 s{sWOS}, s{sWOS}, s{sT2}
        s_lshl_b32 s{sWOM}, s{sW}, 10
        s_add_u32 s100, s{sWOS}, {27*16*896}
        s_add_u32 s101, s{sWOM}, {27*4096}
        """.replace("s100", f"s{sKG}").replace("s101", f"s{sKG+1}"))

    def wo_dma(self):
        return [f"s_mov_b32 m0, s{sWOM}", f"s_add_u32 s{sWOM}, s{sWOM}, 4096",
                f"buffer_load_dwordx4 v{self.VWD}, {srd(SWO)}, s{sWOS} offen lds",
                f"s_add_u32 s{sWOS}, s{sWOS}, {16*896}", f"s_min_u32 s{sWOM}, s{sWOM}, s{sKG+1}",
                f"s_min_u32 s{sWOS}, s{sWOS}, s{sKG}"]

    def sentinel_any(self, regs, t):
        a = self.a
        regs = list(regs)
        a(f"v_max3_u32 v{t}, v{regs[0]}, v{regs[1]}, v{regs[2] if len(regs) > 2 else regs[1]}")
        for k in range(3, len(regs), 2):
            a(f"v_max3_u32 v{t}, v{t}, v{regs[k]}, v{regs[min(k+1, len(regs)-1)]}")
        a(f"v_cmp_eq_u32 vcc, -1, v{t}")

    def unpack(self, d, s):
        self.a(f"v_lshlrev_b32 v{d}, 16, v{s}\nv_and_b32 v{d+1}, 0xffff0000, v{s}")

    def tr_write(self, src, arr):
        a = self.a
        for g in range(3):
            a(f"ds_write_b64 v14, {vr(src+2*g,2)} offset:{arr*7680+16*g}")
        a(f"""
        s_mov_b32 exec_hi, 0
        ds_write_b64 v14, {vr(src+6,2)} offset:{arr*7680+48}
        s_mov_b32 exec_hi, -1
        """)

    def tr_publish(self, arr, base, t):
        self.a(f"""
        ds_read_b128 {vr(t,4)}, v15 offset:{arr*7680}
        ds_read_b128 {vr(t+4,4)}, v16 offset:{arr*7680}
        s_add_u32 s{sT0}, s{sROW}, {base}
        s_waitcnt lgkmcnt(1)
        buffer_store_dwordx4 {vr(t,4)}, v{self.VTG}, {srd(SWS)}, s{sT0} offen sc1
        s_mov_b32 exec_hi, 0xffff
        s_waitcnt lgkmcnt(0)
        buffer_store_dwordx4 {vr(t+4,4)}, v{self.VTG+1}, {srd(SWS)}, s{sT0} offen sc1
        s_mov_b32 exec_hi, -1
        """)

    def p3(self):
        a = self.a
        XR2, W2, S4 = self.XR2, self.W2, self.S4
        XC, ACC, OFR, WR = 64, 48, 128, 80
        a(f"""
        v_lshrrev_b32 v23, 5, v0
        v_lshrrev_b32 v25, 2, v0
        v_and_b32 v25, 3, v25
        v_add_u32 v24, s{sW}, v25
        v_and_b32 v24, 3, v24
        v_lshl_add_u32 v25, v23, 2, v25
        v_lshlrev_b32 v25, 8, v25
        v_lshl_add_u32 v25, v24, 6, v25
        v_lshrrev_b32 v26, 4, v0
        v_and_b32 v26, 1, v26
        v_lshl_add_u32 v25, v26, 5, v25
        v_lshrrev_b32 v27, 1, v0
        v_and_b32 v27, v27, v26
        v_and_b32 v26, 3, v0
        v_xor_b32 v26, v26, v27
        v_lshl_add_u32 v25, v26, 3, v25
        v_lshlrev_b32 v23, 11, v23
        """)
        for qr in range(4):
            a(f"""
            s_add_u32 s{sT0}, s{sW}, {qr}
            s_and_b32 s{sT0}, s{sT0}, 3
            s_lshl_b32 s{sT1}, s{sT0}, 13
            s_add_u32 s{sT1}, s{sT1}, {L_CB}
            s_mul_i32 s{sT0}, s{sT0}, 28672
            v_add_u32 v{2+qr}, s{sT1}, v1
            v_add_u32 v{6+qr}, s{sT0}, v25
            v_sub_u32 v{10+qr}, v{6+qr}, v23
            """)
        for k in range(8):
            self.unpack(XC + 2 * k, XR2 + k)
        a(f"""
        v_cndmask_b32 v{W2+6}, 0, v{W2+6}, s[{sLO}:{sLO+1}]
        v_cndmask_b32 v{W2+7}, 0, v{W2+7}, s[{sLO}:{sLO+1}]
        v_mov_b32 v{S4}, 0
        """)
        for k in range(8):
            a(f"v_dot2c_f32_bf16 v{S4}, s{sONE}, v{W2+k}")
        a(f"""
        s_lshl_b32 s{sA0}, s{sT}, 2
        s_add_u32 s{sA0}, s{sA0}, s{sW}
        s_lshl_b32 s{sA0}, s{sA0}, 13
        s_add_u32 s{sA0}, s{sA0}, {WS_OF}
        s_add_u32 s{sA1}, s{sA0}, 4096
        s_lshl_b32 s{sA2}, s{sW}, 13
        s_add_u32 s{sA2}, s{sA2}, {L_CB}
        s_add_u32 s{sA3}, s{sA2}, 4096
        s_waitcnt vmcnt(0)
        s_barrier
        """)
        self.stamp("oack")
        a("L_odma:")
        for hf in range(2):
            a(f"s_mov_b32 m0, s{sA2+hf}")
            for k in range(4):
                a(f"buffer_load_dwordx4 v1, {srd(SWS)}, s{sA0+hf} offen offset:{1024*k} sc1 lds")
        lq = LQ(a)

        def oread(n):
            lq.op(f"ds_read_b128 {vr(OFR+4*n,4)}, v{2+n//8} offset:{(n%8)*1024}", ("o", n))

        def wread(n):
            qr, hl, j = n // 8, (n % 8) // 2, n % 2
            lq.op(f"ds_read_b64_tr_b16 {vr(WR+4*(n%4),2)}, v{6+qr} offset:{hl*7168+j*4096}", ("w", n))
            lq.op(f"ds_read_b64_tr_b16 {vr(WR+4*(n%4)+2,2)}, v{(10 if j else 6)+qr} offset:{hl*7168+j*4096+2048}", ("w", n))

        for n in range(3):
            wread(n)
        a("s_waitcnt vmcnt(0)")
        for n in range(8):
            oread(n)
        onext = 8
        for n in range(32):
            lq.wait(("o", n) if lq.q.index(("o", n)) > max(i for i, t in enumerate(lq.q) if t == ("w", n)) else ("w", n))
            a(M32(ACC, WR + 4 * (n % 4), OFR + 4 * n, ACC if n else XC))
            if n + 3 < 32:
                wread(n + 3)
            if n < 4:
                if n == 0:
                    lq.wait(("o", 1))
                    a(f"v_max3_u32 v22, v{OFR}, v{OFR+1}, v{OFR+2}")
                    a(f"v_max3_u32 v23, v{OFR+3}, v{OFR+4}, v{OFR+5}")
                    a(f"v_max3_u32 v22, v22, v{OFR+6}, v{OFR+7}")
                else:
                    lq.wait(("o", 2 * n + 1))
                    for k in range(4):
                        r = OFR + 8 * n + 2 * k
                        a(f"v_max3_u32 v{22+k%2}, v{22+k%2}, v{r}, v{r+1}")
            if n == 3:
                a(f"""
                v_max_u32 v22, v22, v23
                v_cmp_eq_u32 vcc, -1, v22
                s_cbranch_vccz L_ook
                """)
                self.spin_guard("L_ook")
                a(f"""
                s_waitcnt lgkmcnt(0)
                s_branch L_odma
                L_ook:
                s_barrier
                """)
            if n >= 4:
                for _ in range(2):
                    if onext < 32 and onext <= n + 8:
                        oread(onext)
                        onext += 1
        self.stamp("gemm")
        H2 = 32
        a(f"""
        v_and_b32 v22, 31, v0
        v_lshrrev_b32 v23, 5, v0
        v_lshlrev_b32 v23, 3, v23
        v_lshl_add_u32 v17, v22, 4, v23
        s_lshl_b32 s{sT0}, s{sW}, 9
        s_add_u32 s{sT0}, s{sT0}, {L_ST}
        v_add_u32 v18, s{sT0}, v17
        v_add_u32 v19, {L_ST}, v17
        v_mul_u32_u24 v22, 240, v22
        s_mul_i32 s{sT0}, s{sW}, 56
        s_add_u32 s{sT0}, s{sT0}, {L_TR}
        v_add3_u32 v14, v22, v23, s{sT0}
        v_mov_b32 v40, 0
        v_mov_b32 v41, 0
        v_mov_b32 v42, 0
        """)
        for k in range(8):
            a(f"v_cvt_pk_bf16_f32 v{H2+k}, v{ACC+2*k}, v{ACC+2*k+1}")
        a(f"""
        v_cndmask_b32 v{H2+6}, 0, v{H2+6}, s[{sLO}:{sLO+1}]
        v_cndmask_b32 v{H2+7}, 0, v{H2+7}, s[{sLO}:{sLO+1}]
        """)
        for k in range(8):
            a(f"v_dot2c_f32_bf16 v40, s{sONE}, v{H2+k}")
            a(f"v_dot2c_f32_bf16 v42, v{H2+k}, v{H2+k}")
            a(f"v_dot2c_f32_bf16 v41, v{W2+k}, v{H2+k}")
        a(f"""
        v_permlane32_swap_b32 v40, v42
        v_permlane32_swap_b32 v41, v{S4}
        v_add_f32 v40, v40, v42
        v_add_f32 v41, v41, v{S4}
        ds_write_b64 v18, v[40:41]
        s_lshl_b32 s{sA0}, s{sT}, 11
        s_add_u32 s{sA0}, s{sA0}, {WS_STATS}
        s_lshl_b32 s{sT0}, s{sC}, 9
        s_add_u32 s{sA1}, s{sA0}, s{sT0}
        s_waitcnt lgkmcnt(0)
        s_barrier
        s_cmp_lg_u32 s{sW}, 0
        s_cbranch_scc1 L_nostat
        ds_read_b64 v[40:41], v19
        ds_read_b64 v[42:43], v19 offset:512
        ds_read_b64 v[44:45], v19 offset:1024
        ds_read_b64 v[46:47], v19 offset:1536
        s_waitcnt lgkmcnt(2)
        v_pk_add_f32 v[40:41], v[40:41], v[42:43]
        s_waitcnt lgkmcnt(0)
        v_pk_add_f32 v[44:45], v[44:45], v[46:47]
        v_pk_add_f32 v[40:41], v[40:41], v[44:45]
        buffer_store_dwordx2 v[40:41], v17, {srd(SWS)}, s{sA1} offen sc1
        L_nostat:
        """)
        self.ffn_weights()
        self.tr_write(H2, 0)
        for i in range(2):
            self.piece_idx(i, 22, 23)
            a(f"""
            v_mov_b32 v{20+i}, v22
            v_mul_u32_u24 v22, 240, v22
            v_lshl_add_u32 v22, v23, 4, v22
            v_add_u32 v{15+i}, {L_TR}, v22
            """)
        a("s_waitcnt lgkmcnt(0)\ns_barrier")
        self.tr_publish(0, WS_HH, 48)
        HF = 64
        for k in range(8):
            self.unpack(HF + 2 * k, H2 + k)
        a("s_waitcnt vmcnt(0)")
        self.stamp("hack")
        a("L_stpoll:")
        for c in range(4):
            a(f"buffer_load_dwordx2 {vr(40+2*c,2)}, v17, {srd(SWS)}, s{sA0} offen offset:{512*c} sc1")
        a("s_waitcnt vmcnt(0)")
        self.sentinel_any(range(40, 48), 22)
        a("s_cbranch_vccz L_stok")
        self.spin_guard("L_stok")
        a("s_branch L_stpoll\nL_stok:")
        self.stamp("stok")
        a(f"""
        v_pk_add_f32 v[40:41], v[40:41], v[42:43]
        v_pk_add_f32 v[44:45], v[44:45], v[46:47]
        v_pk_add_f32 v[40:41], v[40:41], v[44:45]
        v_mov_b32 v42, v40
        v_mov_b32 v43, v41
        v_permlane32_swap_b32 v40, v42
        v_permlane32_swap_b32 v41, v43
        """)
        self.ln_scalars(40, 42, 44, 46, 22, 23)
        KEY = 47
        a(f"""
        v_fma_f32 v41, -v44, v43, v41
        v_mul_f32 v41, v41, v46
        v_cvt_pk_bf16_f32 v41, v41, v41
        v_ashrrev_i32 v22, 31, v41
        v_or_b32 v22, 0x80000000, v22
        v_xor_b32 v41, v41, v22
        v_and_b32 v41, 0xffff0000, v41
        v_lshrrev_b32 v41, 1, v41
        v_and_b32 v22, 31, v0
        s_lshl_b32 s{sT0}, s{sT}, 5
        s_sub_u32 s{sT0}, 2047, s{sT0}
        v_sub_u32 v22, s{sT0}, v22
        v_or_b32 v{KEY}, v41, v22
        s_or_b32 s{sT0}, s{sW}, s{sC}
        s_cmp_lg_u32 s{sT0}, 0
        s_cbranch_scc1 L_norank
        v_mov_b32 v48, v{KEY}
        v_mov_b32 v49, v{KEY}
        v_permlane16_swap_b32 v48, v49
        v_cndmask_b32 v48, v49, v48, s[{sLO}:{sLO+1}]
        v_sub_u32 v80, v48, v{KEY}
        """)
        for n in range(1, 16):
            a(f"v_sub_u32_dpp v{80+n}, v48, v{KEY} row_ror:{n} row_mask:0xf bank_mask:0xf bound_ctrl:0".replace(" bound_ctrl:0", " bound_ctrl:1"))
        a("v_lshrrev_b32 v48, 31, v80\nv_lshrrev_b32 v49, 31, v81")
        for n in range(2, 16):
            a(f"v_alignbit_b32 v{48+n%2}, v{48+n%2}, v{80+n}, 31")
        a(f"""
        v_bcnt_u32_b32 v48, v48, 0
        v_bcnt_u32_b32 v48, v49, v48
        v_mov_b32 v49, v48
        v_permlane32_swap_b32 v48, v49
        v_add_u32 v48, v48, v49
        v_sub_u32 v48, 31, v48
        v_cmp_gt_u32 vcc, 8, v48
        v_lshlrev_b32 v48, 2, v48
        s_lshl_b32 s{sT0}, s{sT}, 5
        s_add_u32 s{sT0}, s{sT0}, {WS_KEYS}
        s_and_b64 exec, vcc, s[{sLO}:{sLO+1}]
        buffer_store_dword v{KEY}, v48, {srd(SWS)}, s{sT0} offen sc1
        s_mov_b64 exec, -1
        L_norank:
        """)
        for k in range(8):
            self.unpack(HF + 2 * k, H2 + k) if False else None
        D, HN2, OUT2 = 80, 48, 56
        for k in range(8):
            a(f"v_pk_add_f32 {vr(D+2*k,2)}, {vr(HF+2*k,2)}, v[44:45] op_sel_hi:[1,0] neg_lo:[0,1] neg_hi:[0,1]")
        for k in range(8):
            a(f"v_cvt_pk_bf16_f32 v{HN2+k}, v{D+2*k}, v{D+2*k+1}")
        for k in range(8):
            self.unpack(D + 2 * k, HN2 + k)
        for k in range(8):
            a(f"v_pk_mul_f32 {vr(D+2*k,2)}, {vr(D+2*k,2)}, v[46:47] op_sel_hi:[1,0]")
        for k in range(8):
            a(f"v_cvt_pk_bf16_f32 v{HN2+k}, v{D+2*k}, v{D+2*k+1}")
        self.tr_write(HN2, 1)
        for k in range(8):
            self.unpack(D + 2 * k, HN2 + k)
        for k in range(8):
            a(f"v_pk_add_f32 {vr(D+2*k,2)}, {vr(D+2*k,2)}, {vr(HF+2*k,2)}")
        for k in range(8):
            a(f"v_cvt_pk_bf16_f32 v{OUT2+k}, v{D+2*k}, v{D+2*k+1}")
        self.tr_write(OUT2, 2)
        a("s_waitcnt lgkmcnt(0)\ns_barrier")
        self.tr_publish(1, WS_HN, 48)
        self.KEY = KEY

    def ffn_weights(self):
        a = self.a
        a(f"""
        s_cmp_lt_i32 s{sF}, 0
        s_cbranch_scc1 L_noffw
        v_lshrrev_b32 v22, 2, v0
        v_mul_u32_u24 v22, 3584, v22
        v_and_b32 v23, 3, v0
        v_lshl_add_u32 v22, v23, 4, v22
        s_mul_i32 s{sT0}, s{sW}, {7*16*3584}
        s_lshl_b32 s{sT1}, s{sF}, 6
        s_add_u32 s{sT0}, s{sT0}, s{sT1}
        s_mul_i32 s{sT1}, s{sW}, 7168
        """)
        for j in range(7):
            a(f"""
            s_add_u32 m0, s{sT1}, {L_WG+j*1024}
            s_add_u32 s{sT2}, s{sT0}, {j*16*3584}
            buffer_load_dwordx4 v22, {srd(SWG)}, s{sT2} offen lds
            s_add_u32 m0, s{sT1}, {L_WU+j*1024}
            buffer_load_dwordx4 v22, {srd(SWU)}, s{sT2} offen lds
            """)
        a(f"""
        s_lshl_b32 s{sT0}, s{sF}, 2
        s_add_u32 s{sT0}, s{sT0}, s{sW}
        s_mul_i32 s{sT0}, s{sT0}, {8*896}
        s_mul_i32 s{sT1}, s{sW}, {8*928}
        s_mov_b32 exec_hi, 0xffffff
        """)
        for r in range(8):
            a(f"""
            s_add_u32 m0, s{sT1}, {L_WD+r*928}
            s_add_u32 s{sT2}, s{sT0}, {r*896}
            buffer_load_dwordx4 v1, {srd(SWD)}, s{sT2} offen lds
            """)
        a("s_mov_b32 exec_hi, -1\nL_noffw:")

    def bisect(self, levels, tag):
        a = self.a
        L = 32
        lo, hi, mid = sA0, sA1, sTH
        a(f"""
        s_mov_b32 s{lo}, 0
        s_mov_b32 s{hi}, 0x80000000
        L_bis{tag}:
        s_add_u32 s{mid}, s{lo}, s{hi}
        s_lshr_b32 s{mid}, s{mid}, 1
        """)
        for j in range(levels):
            a(f"v_cmp_le_u32 s[{64+2*j}:{65+2*j}], s{mid}, v{L+j}")
        a(f"s_bcnt1_i32_b64 s{sA2}, s[64:65]")
        for j in range(1, levels):
            a(f"s_bcnt1_i32_b64 s{sA3}, s[{64+2*j}:{65+2*j}]\ns_add_u32 s{sA2}, s{sA2}, s{sA3}")
        a(f"""
        s_cmp_eq_u32 s{sA2}, 8
        s_cbranch_scc1 L_bisdone{tag}
        s_cmp_eq_u32 s{mid}, s{lo}
        s_cbranch_scc1 L_bisdone{tag}
        s_cmp_gt_u32 s{sA2}, 8
        s_cselect_b32 s{lo}, s{mid}, s{lo}
        s_cselect_b32 s{hi}, s{hi}, s{mid}
        s_branch L_bis{tag}
        L_bisdone{tag}:
        """)

    def extract(self, levels):
        a = self.a
        a(f"s_mov_b32 s{sA2}, 0")
        for j in range(levels):
            m = 64 + 2 * j
            a(f"""
            v_mbcnt_lo_u32_b32 v22, s{m}, 0
            v_mbcnt_hi_u32_b32 v22, s{m+1}, v22
            v_add_u32 v22, s{sA2}, v22
            v_min_u32 v22, 7, v22
            v_lshl_add_u32 v22, v22, 2, s{sA4}
            s_mov_b64 exec, s[{m}:{m+1}]
            ds_write_b32 v22, v{32+j}
            s_mov_b64 exec, -1
            """)
            if j + 1 < levels:
                a(f"s_bcnt1_i32_b64 s{sA3}, s[{m}:{m+1}]\ns_add_u32 s{sA2}, s{sA2}, s{sA3}")

    def topk(self):
        a = self.a
        a(f"""
        v_lshlrev_b32 v2, 5, v0
        s_mov_b32 s{sA1}, {WS_KEYS}
        s_lshl_b32 s{sA4}, s{sW}, 5
        s_add_u32 s{sA4}, s{sA4}, {L_SEL}
        s_waitcnt vmcnt(0)
        """)
        self.stamp("nack")
        a(f"""
        L_kpoll:
        buffer_load_dwordx4 v[32:35], v2, {srd(SWS)}, s{sA1} offen sc1
        buffer_load_dwordx4 v[36:39], v2, {srd(SWS)}, s{sA1} offen offset:16 sc1
        s_waitcnt vmcnt(0)
        """)
        self.sentinel_any(range(32, 40), 22)
        a("s_cbranch_vccz L_kok")
        self.spin_guard("L_kok")
        a("s_branch L_kpoll\nL_kok:")
        self.stamp("kok")
        self.bisect(2, "a")
        a(f"""
        v_cmp_le_u32 vcc, s{sTH}, v34
        s_cbranch_vccnz L_topslow
        """)
        self.extract(2)
        a(f"L_topdone:\nv_cmp_le_u32 s[80:81], s{sTH}, v{self.KEY}\ns_waitcnt lgkmcnt(0)")
        self.stamp("topk")

    def topk_slow(self):
        self.a("L_topslow:")
        self.bisect(8, "b")
        self.extract(8)
        self.a("s_branch L_topdone")

    def key_token(self, d, k):
        self.a(f"v_and_b32 v{d}, 0x7ff, v{k}\nv_sub_u32 v{d}, 2047, v{d}")

    def ffn(self):
        a = self.a
        a(f"""
        s_cmp_lt_i32 s{sF}, 0
        s_cbranch_scc1 L_noffn
        s_lshl_b32 s{sT0}, s{sW}, 3
        s_add_u32 s{sT0}, s{sT0}, s{sA4}
        v_mov_b32 v2, s{sT0}
        ds_read_b64 v[4:5], v2
        v_min_u32 v3, 55, v0
        v_lshlrev_b32 v3, 4, v3
        s_mul_i32 s{sT0}, s{sW}, 2112
        s_add_u32 s{sT0}, s{sT0}, {L_G}
        v_add_u32 v6, s{sT0}, v3
        s_mov_b32 s{sA0}, {WS_HN}
        s_movk_i32 s{sA1}, 896
        s_waitcnt lgkmcnt(0)
        """)
        self.key_token(4, 4)
        self.key_token(5, 5)
        a(f"""
        v_mad_u32_u24 v4, v4, s{sA1}, v3
        v_mad_u32_u24 v5, v5, s{sA1}, v3
        L_gpoll:
        buffer_load_dwordx4 v[32:35], v4, {srd(SWS)}, s{sA0} offen sc1
        buffer_load_dwordx4 v[36:39], v5, {srd(SWS)}, s{sA0} offen sc1
        v_lshrrev_b32 v8, 4, v0
        v_lshrrev_b32 v9, 2, v0
        v_and_b32 v9, 3, v9
        v_and_b32 v10, 3, v0
        v_lshlrev_b32 v10, 3, v10
        v_lshl_add_u32 v11, v8, 3, v9
        v_lshl_add_u32 v11, v11, 6, v10
        s_lshr_b32 s{sT0}, s{sW}, 1
        s_mul_i32 s{sT0}, s{sT0}, 28672
        s_and_b32 s{sT1}, s{sW}, 1
        s_lshl_b32 s{sT1}, s{sT1}, 5
        s_add_u32 s{sT0}, s{sT0}, s{sT1}
        v_add_u32 v11, s{sT0}, v11
        v_lshl_add_u32 v12, v8, 2, v9
        v_mul_u32_u24 v12, 928, v12
        s_mul_i32 s{sT0}, s{sW}, 224
        s_add_u32 s{sT0}, s{sT0}, {L_WD}
        v_add3_u32 v12, v12, v10, s{sT0}
        v_and_b32 v9, 7, v0
        v_mul_u32_u24 v13, 1056, v9
        v_lshl_add_u32 v13, v8, 4, v13
        v_add_u32 v13, {L_G}, v13
        v_lshlrev_b32 v9, 4, v9
        v_lshl_add_u32 v9, v8, 7, v9
        v_lshlrev_b32 v8, 3, v0
        v_add_u32 v8, {L_AX}, v8
        s_lshl_b32 s{sT0}, s{sW}, 9
        v_add_u32 v7, s{sT0}, v8
        s_waitcnt vmcnt(0)
        """)
        self.sentinel_any(range(32, 40), 22)
        a("s_cbranch_vccz L_gok")
        self.spin_guard("L_gok")
        a(f"""
        s_branch L_gpoll
        L_gok:
        ds_write_b128 v6, v[32:35]
        ds_write_b128 v6, v[36:39] offset:1056
        s_waitcnt lgkmcnt(0)
        s_barrier
        """)
        lq = LQ(a)
        AF, BF, WD, D = 128, 192, 64, 40

        def rd(s):
            lq.op(f"ds_read_b128 {vr(BF+4*s,4)}, v13 offset:{s*64}", s)
            lq.op(f"ds_read_b64_tr_b16 {vr(AF+4*s,2)}, v11 offset:{s*2048}", s)
            lq.op(f"ds_read_b64_tr_b16 {vr(AF+4*s+2,2)}, v11 offset:{s*2048+256}", s)

        for s in range(4):
            rd(s)
        for s in range(14):
            lq.wait(s)
            a(M16(D, AF + 4 * s, BF + 4 * s, D if s else None))
            if s + 4 < 14:
                rd(s + 4)
        for i in range(7):
            a(f"ds_read_b64_tr_b16 {vr(WD+4*i,2)}, v12 offset:{i*32}")
            a(f"ds_read_b64_tr_b16 {vr(WD+4*i+2,2)}, v12 offset:{i*32+16*928}")
        a(f"""
        v_cvt_pk_bf16_f32 v44, v{D}, v{D+1}
        v_cvt_pk_bf16_f32 v45, v{D+2}, v{D+3}
        s_cmp_ge_u32 s{sW}, 2
        s_cbranch_scc1 L_nosilu
        """)
        self.unpack(48, 44)
        self.unpack(50, 45)
        for k in range(4):
            a(f"v_mul_f32 v{52+k}, {hex(fbits(-LOG2E))}, v{48+k}")
        for k in range(4):
            a(f"v_exp_f32 v{52+k}, v{52+k}")
        for k in range(4):
            a(f"v_add_f32 v{52+k}, 1.0, v{52+k}")
        for k in range(4):
            a(f"v_rcp_f32 v{52+k}, v{52+k}")
        for k in range(4):
            a(f"v_mul_f32 v{48+k}, v{48+k}, v{52+k}")
        a(f"""
        v_cvt_pk_bf16_f32 v44, v48, v49
        v_cvt_pk_bf16_f32 v45, v50, v51
        L_nosilu:
        ds_write_b64 v7, v[44:45]
        s_waitcnt lgkmcnt(0)
        s_barrier
        ds_read_b64 v[32:33], v8
        ds_read_b64 v[36:37], v8 offset:1024
        ds_read_b64 v[34:35], v8 offset:512
        ds_read_b64 v[38:39], v8 offset:1536
        s_mul_i32 s{sT0}, s{sF}, 14336
        s_mul_i32 s{sT1}, s{sW}, 3584
        s_add_u32 s{sT0}, s{sT0}, s{sT1}
        s_add_u32 s{sT0}, s{sT0}, {WS_Y}
        s_waitcnt lgkmcnt(0)
        """)
        for k in range(4):
            self.unpack(48 + 2 * k, 32 + k)
            self.unpack(56 + 2 * k, 36 + k)
        for k in range(4):
            a(f"v_pk_mul_f32 {vr(48+2*k,2)}, {vr(48+2*k,2)}, {vr(56+2*k,2)}")
        for k in range(4):
            a(f"v_cvt_pk_bf16_f32 v{44+k}, v{48+2*k}, v{49+2*k}")
        for i in range(7):
            a(M16(128 + 4 * i, WD + 4 * i, 44))
        a("s_mov_b32 exec_lo, 0x00ff00ff\ns_mov_b32 exec_hi, 0x00ff00ff")
        for i in range(7):
            a(f"buffer_store_dwordx4 {vr(128+4*i,4)}, v9, {srd(SWS)}, s{sT0} offen offset:{512*i} sc1")
        a("s_mov_b64 exec, -1\nL_noffn:")

    def out_rows(self):
        a = self.a
        a(f"""
        ds_read_b128 v[48:51], v15 offset:{2*7680}
        ds_read_b128 v[52:55], v16 offset:{2*7680}
        v_lshrrev_b32_e64 v22, v20, s80
        v_lshrrev_b32_e64 v23, v21, s80
        v_and_b32 v22, 1, v22
        v_and_b32 v23, 1, v23
        v_cmp_eq_u32 s[{sM}:{sM+1}], 0, v22
        v_cmp_eq_u32 vcc, 0, v23
        s_waitcnt lgkmcnt(0)
        s_mov_b64 exec, s[{sM}:{sM+1}]
        s_cbranch_execz L_out1
        buffer_store_dwordx4 v[48:51], v{self.VTG}, {srd(SOUT)}, s{sROW} offen
        L_out1:
        s_and_b32 vcc_hi, vcc_hi, 0xffff
        s_mov_b64 exec, vcc
        s_cbranch_execz L_out2
        buffer_store_dwordx4 v[52:55], v{self.VTG+1}, {srd(SOUT)}, s{sROW} offen
        L_out2:
        s_mov_b64 exec, -1
        """)

    def reducer(self):
        a = self.a
        a(f"""
        s_cmp_lt_i32 s{sU}, 0
        s_cbranch_scc1 L_fin
        s_cmp_lg_u32 s{sW}, 0
        s_cbranch_scc1 L_fin
        v_and_b32 v2, 7, v0
        v_lshl_add_u32 v3, v2, 2, s{sA4}
        ds_read_b32 v4, v3
        v_lshrrev_b32 v5, 3, v0
        v_mul_u32_u24 v5, 14336, v5
        v_lshl_add_u32 v5, v2, 4, v5
        v_lshrrev_b32 v6, 4, v0
        s_lshl_b32 s{sT0}, s{sU}, 3
        v_lshl_add_u32 v6, v6, 1, s{sT0}
        s_movk_i32 s{sA1}, 896
        s_mov_b32 s{sA2}, {WS_HH}
        s_mov_b32 s{sA3}, {WS_HN}
        s_lshl_b32 s{sA0}, s{sU}, 7
        s_add_u32 s{sA0}, s{sA0}, {WS_Y}
        s_waitcnt lgkmcnt(0)
        """)
        self.key_token(7, 4)
        a(f"""
        v_mad_u32_u24 v6, v7, s{sA1}, v6
        L_rpoll:
        buffer_load_ushort v8, v6, {srd(SWS)}, s{sA2} offen sc1
        buffer_load_ushort v9, v6, {srd(SWS)}, s{sA3} offen sc1
        v_lshlrev_b32 v10, 1, v4
        v_and_b32 v10, 0xffff0000, v10
        v_ashrrev_i32 v11, 31, v10
        v_not_b32 v11, v11
        v_or_b32 v11, 0x80000000, v11
        v_xor_b32 v10, v10, v11
        v_and_b32 v10, 0xffff0000, v10
        v_mul_f32 v10, {hex(fbits(-LOG2E))}, v10
        v_exp_f32 v10, v10
        v_add_f32 v10, 1.0, v10
        v_rcp_f32 v10, v10
        v_cvt_pk_bf16_f32 v10, v10, v10
        v_and_b32 v10, 0xffff0000, v10
        s_waitcnt vmcnt(0)
        v_max_u32 v11, v8, v9
        v_cmp_eq_u32 vcc, 0xffff, v11
        s_cbranch_vccz L_rok
        """)
        self.spin_guard("L_rok")
        a(f"""
        s_branch L_rpoll
        L_rok:
        v_lshlrev_b32 v8, 16, v8
        v_lshlrev_b32 v9, 16, v9
        """)
        self.stamp("rpre")
        a("L_ypoll:")
        for i in range(7):
            a(f"""
            s_add_u32 s{sT0}, s{sA0}, {i*8*14336}
            buffer_load_dwordx4 {vr(32+4*i,4)}, v5, {srd(SWS)}, s{sT0} offen sc1
            """)
        a("s_waitcnt vmcnt(0)")
        self.sentinel_any(range(32, 60), 22)
        a("s_cbranch_vccz L_yok")
        self.spin_guard("L_yok")
        a("s_sleep 4\ns_branch L_ypoll\nL_yok:")
        for (x, y) in ((32, 36), (40, 44), (48, 52), (32, 40), (48, 56), (32, 48)):
            a(f"v_pk_add_f32 {vr(x,2)}, {vr(x,2)}, {vr(y,2)}\nv_pk_add_f32 {vr(x+2,2)}, {vr(x+2,2)}, {vr(y+2,2)}")
        for k in range(4):
            a(f"v_add_f32_dpp v{36+k}, v{32+k}, v{32+k} row_ror:8 row_mask:0xf bank_mask:0xf bound_ctrl:1")
        a(f"""
        v_permlane16_swap_b32 v36, v37
        v_permlane16_swap_b32 v38, v39
        v_add_f32 v36, v36, v37
        v_add_f32 v38, v38, v39
        v_permlane32_swap_b32 v36, v38
        v_add_f32 v36, v36, v38
        v_cvt_pk_bf16_f32 v36, v36, v36
        v_and_b32 v36, 0xffff0000, v36
        v_mul_f32 v36, v36, v10
        v_cvt_pk_bf16_f32 v36, v36, v36
        v_and_b32 v36, 0xffff0000, v36
        v_add_f32 v36, v36, v9
        v_cvt_pk_bf16_f32 v36, v36, v36
        v_and_b32 v36, 0xffff0000, v36
        v_add_f32 v36, v36, v8
        v_cvt_pk_bf16_f32 v36, v36, v36
        s_mov_b32 exec_lo, 0x00ff00ff
        s_mov_b32 exec_hi, 0x00ff00ff
        buffer_store_short v36, v6, {srd(SOUT)}, 0 offen
        s_mov_b64 exec, -1
        """)
        self.stamp("rend")

    def tail(self):
        self.p3()
        self.topk()
        self.ffn()
        self.out_rows()
        self.reducer()

    def redo(self):
        self.topk_slow()
        super().redo()


if __name__ == "__main__":
    g = Full()
    s, n = g.build()
    sys.stdout.write(s)
    print("pads:", n, file=sys.stderr)
```

```python
import sys, gen2 as gen
kw={}
for x in sys.argv[2:]:
    k,v=x.split("=")
    try: v=int(v,0)
    except ValueError: v=v.replace('_',' ')
    kw[k]=v
g=getattr(gen, kw.pop('cls','Full'))(**kw); s,n=g.build(); open(sys.argv[1],"w").write(s); print(sys.argv[1],"pads",n)
```

```python
import sys, os, struct
sys.path.insert(0, os.path.dirname(os.path.abspath(__file__)))
from asmb import Asm

NAME = "sequential_preLN__mha_block__moe_arch_mod__prompt_kernel"

WS_EPOCH = 0
WS_KVF = 0x1000
WS_CLF = 0x3000
WS_KEYS = 0x4000
WS_STATS = 0x20000
WS_KV = 0x100000
WS_OF = 0x500000
WS_HN = 0x700000
WS_HH = 0x900000
WS_Y = 0xB00000
WS_TS = 0xC00000
WS_SIZE = 0x1000000

L_W = 0
L_XR = 86016
L_CS = 151552
L_RS = 154624
L_QX = 155648
L_WO = 0
L_CB = 114688
L_ST = 147456
L_TR = 114688
L_SEL = 149504
L_AX = 149760
L_G = 138240
L_WG = 0
L_WU = 28672
L_WD = 57344
LDS_BYTES = 163840

SX, SWQ, SWS, SWO, SOUT, SWG, SWU, SWD, SWR = 8, 12, 16, 20, 24, 28, 32, 36, 40
sW, sH, sB, sT, sC, sNON, sI, sXCD = 44, 45, 46, 47, 48, 49, 50, 51
sKG = 52
sXO = 59
sONE = 60
sT0, sT1, sT2 = 61, 62, 63
sLO = 86
sM = 88
sA0, sA1, sA2, sA3, sA4, sA5 = 90, 91, 92, 93, 94, 95
sKVF, sKVO = 82, 83
sSPIN = 96
sPASS = 97
sTH = 98
sKT = 64
SPIN_MAX = 1 << 17

LOG2E = 1.4426950408889634


def fbits(x):
    return struct.unpack("<I", struct.pack("<f", x))[0]


def srd(r):
    return f"s[{r}:{r+3}]"


def vr(a, n):
    return f"v[{a}:{a+n-1}]" if n > 1 else f"v{a}"


def M32(d, a, b, c=None):
    return f"v_mfma_f32_32x32x16_bf16 {vr(d,16)}, {vr(a,4)}, {vr(b,4)}, {vr(c,16) if c is not None else 0}"


def M16(d, a, b, c=None):
    return f"v_mfma_f32_16x16x32_bf16 {vr(d,4)}, {vr(a,4)}, {vr(b,4)}, {vr(c,4) if c is not None else 0}"


def lines(t):
    return [x.strip() for x in t.strip().split("\n") if x.strip()]


class LQ:
    def __init__(self, a):
        self.a, self.q = a, []

    def op(self, text, tag):
        self.a(text)
        self.q.append(tag)

    def wait(self, tag):
        k = max(i for i, t in enumerate(self.q) if t == tag)
        self.a(f"s_waitcnt lgkmcnt({min(len(self.q) - 1 - k, 15)})")


sF, sU = 3, 4
sWOS, sWOM = 5, 6
sROW = 7
OOB = 0x7F000000


class Gen:
    def __init__(self, stop=None, ts=False, rot=True, force_fb=False, **kw):
        self.a = Asm()
        self.stop = stop
        self.ts = ts
        self.rot = rot
        self.force_fb = force_fb
        self.nts = 0
        self.tsn = []
        for k, v in kw.items():
            setattr(self, k, v)

    amp = None
    ampg = 80

    def stamp(self, name=""):
        if self.amp:
            if name == "entry":
                self.a("s_memrealtime s[100:101]")
            elif name == self.amp:
                self.a("s_memrealtime s[84:85]\ns_waitcnt lgkmcnt(0)")
        if not self.ts:
            return
        k = self.nts
        self.nts += 1
        self.tsn.append(name)
        assert k < 32
        self.a(f"""
        s_memrealtime s[100:101]
        s_waitcnt lgkmcnt(0)
        v_writelane_b32 v254, s100, {k}
        s_memtime s[100:101]
        s_waitcnt lgkmcnt(0)
        v_writelane_b32 v254, s100, {32+k}
        """.replace("v254", self.TSV))

    def spin_guard(self, out_label):
        self.a(f"""
        s_add_u32 s{sSPIN}, s{sSPIN}, 1
        s_cmp_gt_u32 s{sSPIN}, {SPIN_MAX}
        s_cbranch_scc1 {out_label}
        """)

    def xhalf_sum(self, x, t):
        self.a(f"""
        v_mov_b32 v{t}, v{x}
        v_permlane32_swap_b32 v{x}, v{t}
        v_add_f32 v{x}, v{x}, v{t}
        """)

    def ln_scalars(self, S1, S2, mb, rs, t0, t1):
        self.a(f"""
        v_mul_f32 v{mb}, {hex(fbits(1/448))}, v{S1}
        v_mul_f32 v{t0}, {hex(fbits(1/448))}, v{S2}
        v_fma_f32 v{t0}, -v{mb}, v{mb}, v{t0}
        v_max_f32 v{t0}, 0, v{t0}
        v_cvt_pk_bf16_f32 v{t1}, v{mb}, v{t0}
        v_lshlrev_b32 v{mb}, 16, v{t1}
        v_and_b32 v{t0}, 0xffff0000, v{t1}
        v_add_f32 v{t0}, {hex(fbits(1e-5))}, v{t0}
        v_cvt_pk_bf16_f32 v{t0}, v{t0}, v{t0}
        v_and_b32 v{t0}, 0xffff0000, v{t0}
        v_sqrt_f32 v{t0}, v{t0}
        v_cvt_pk_bf16_f32 v{t0}, v{t0}, v{t0}
        v_and_b32 v{t0}, 0xffff0000, v{t0}
        v_rcp_f32 v{rs}, v{t0}
        """)

    def neg_split2(self, d, x, t):
        self.a(f"""
        v_cvt_pk_bf16_f32 v{t}, -v{x}, -v{x}
        v_and_b32 v{t}, 0xffff0000, v{t}
        v_sub_f32 v{d}, -v{x}, v{t}
        v_cvt_pk_bf16_f32 v{d}, v{t}, v{d}
        """.replace("v_sub_f32 ", "v_sub_f32_e64 "))

    def prologue(self):
        a = self.a
        a(f"""
        s_cmp_ge_u32 s2, 256
        s_cbranch_scc1 L_end
        """)
        self.stamp("entry")
        a(f"""
        s_load_dwordx16 s[64:79], s[0:1], 0
        s_load_dwordx4 s[80:83], s[0:1], 64
        s_load_dwordx2 s[84:85], s[0:1], 80
        v_lshrrev_b32 v1, 6, v0
        v_and_b32 v0, 63, v0
        s_and_b32 s{sXCD}, s2, 7
        s_lshr_b32 s{sI}, s2, 3
        v_readfirstlane_b32 s{sW}, v1
        s_lshr_b32 s{sT0}, s{sXCD}, 1
        s_and_b32 s{sT1}, s{sXCD}, 1
        s_and_b32 s{sC}, s{sI}, 3
        s_lshr_b32 s{sT2}, s{sI}, 2
        s_lshl_b32 s{sH}, s{sT0}, 2
        s_add_u32 s{sH}, s{sH}, s{sC}
        s_lshl_b32 s{sH}, s{sH}, 2
        s_mov_b32 s{sA0}, {self.HMAP & 0xffffffff}
        s_mov_b32 s{sA1}, {self.HMAP >> 32}
        s_lshr_b64 s[{sA0}:{sA1}], s[{sA0}:{sA1}], s{sH}
        s_and_b32 s{sH}, s{sA0}, 15
        s_lshl_b32 s{sB}, s{sT1}, 3
        s_add_u32 s{sB}, s{sB}, s{sT2}
        s_lshl_b32 s{sT}, s{sT1}, 5
        s_lshl_b32 s{sT0}, s{sT0}, 3
        s_add_u32 s{sT}, s{sT}, s{sT0}
        s_add_u32 s{sT}, s{sT}, s{sT2}
        s_mov_b32 s{sONE}, 0x3f803f80
        s_mov_b32 s{sLO}, -1
        s_mov_b32 s{sLO+1}, 0
        s_mov_b32 s{sSPIN}, 0
        s_mov_b32 s{sPASS}, 0
        """)
        self.roles()
        a(f"""
        s_cmp_eq_u32 s{sW}, 4
        s_cbranch_scc1 L_helper
        """)
        if self.ROT == 7:
            a(f"""
            s_lshl_b32 s{sA0}, s{sC}, 1
            s_add_u32 s{sA0}, s{sA0}, s{sT2}
            s_cmp_ge_u32 s{sA0}, 7
            s_cselect_b32 s{sA1}, 7, 0
            s_sub_u32 s{sA0}, s{sA0}, s{sA1}
            """)
        elif self.ROT in (2, 4):
            a(f"""
            s_add_u32 s{sA0}, s{sC}, s{sT2}
            s_and_b32 s{sA0}, s{sA0}, {self.ROT-1}
            s_mul_i32 s{sA0}, s{sA0}, {self.ROTS}
            """)
        else:
            a(f"s_mov_b32 s{sA0}, 0")
        a(f"""
        v_lshrrev_b32 v22, 3, v0
        v_mul_u32_u24 v22, 896, v22
        v_lshrrev_b32 v23, 4, v0
        v_and_b32 v24, 7, v0
        v_xor_b32 v23, v23, v24
        v_lshl_add_u32 v1, v23, 4, v22
        v_xor_b32 v23, 4, v23
        v_lshl_add_u32 v2, v23, 4, v22
        v_add_u32 v2, {7168-1024}, v2
        v_add_u32 v3, {2*(7168-1024)}, v1
        v_add_u32 v4, {2*(7168-1024)}, v2
        v_lshrrev_b32 v22, 2, v0
        v_mul_u32_u24 v22, 2688, v22
        v_and_b32 v23, 3, v0
        v_lshlrev_b32 v23, 4, v23
        v_min_u32 v23, 40, v23
        v_add_u32 v5, v23, v22
        """)
        a(f"""
        s_lshl_b32 s{sXO}, s{sB}, 2
        s_add_u32 s{sXO}, s{sXO}, s{sW}
        s_mul_i32 s{sXO}, s{sXO}, {32*896}
        """)
        for G in range(7):
            a(f"s_mov_b32 s{sKG+G}, s{sA0}")
            if G < 6:
                a(f"""
                s_add_u32 s{sA0}, s{sA0}, 1
                s_cmp_eq_u32 s{sA0}, 7
                s_cselect_b32 s{sA0}, 0, s{sA0}
                """)
        a(f"""
        s_mul_i32 s{sA1}, s{sW}, {16*2688}
        s_mul_i32 s{sA2}, s{sH}, 56
        s_add_u32 s{sA1}, s{sA1}, s{sA2}
        s_add_u32 s{sA1}, s{sA1}, 896
        s_lshl_b32 s{sA2}, s{sW}, 14
        s_add_u32 s{sA2}, s{sA2}, {L_XR}
        s_mul_i32 s{sA3}, s{sW}, 21504
        s_waitcnt lgkmcnt(0)
        s_add_u32 s84, s84, {self.WSB << 20}
        s_addc_u32 s85, s85, 0
        s_load_dword s{sNON}, s[84:85], 0
        s_mov_b32 s{SX}, s64
        s_mov_b32 s{SX+1}, s65
        s_mov_b32 s{SX+2}, {2048*896}
        s_mov_b32 s{SX+3}, 0x20000
        s_mov_b32 s{SWQ}, s66
        s_mov_b32 s{SWQ+1}, s67
        s_mov_b32 s{SWQ+2}, {448*2688}
        s_mov_b32 s{SWQ+3}, 0x20000
        """)
        a("\n".join(self.dma_x(0) + self.dma_w(0) + self.dma_x(1)))
        self.srds()
        a(f"""
        v_and_b32 v22, 31, v0
        v_lshrrev_b32 v23, 5, v0
        v_lshrrev_b32 v24, 1, v22
        v_and_b32 v24, 7, v24
        v_xor_b32 v24, v24, v23
        v_lshlrev_b32 v22, 7, v22
        v_add_u32 v22, s{sA2}, v22
        v_lshrrev_b32 v25, 2, v0
        v_and_b32 v25, 3, v25
        v_lshl_add_u32 v25, v23, 3, v25
        v_lshlrev_b32 v25, 6, v25
        v_lshrrev_b32 v26, 4, v0
        v_and_b32 v26, 1, v26
        v_lshl_add_u32 v25, v26, 5, v25
        v_lshrrev_b32 v27, 1, v0
        v_and_b32 v27, v27, v26
        v_and_b32 v26, 3, v0
        v_xor_b32 v26, v26, v27
        v_lshl_add_u32 v25, v26, 3, v25
        """)
        for p in range(4):
            a(f"""
            s_add_u32 s{sT0}, s{sW}, {p}
            s_and_b32 s{sT0}, s{sT0}, 3
            s_lshl_b32 s{sT1}, s{sT0}, 1
            s_mul_i32 s{sT2}, s{sT0}, 21504
            v_xor_b32 v26, s{sT1}, v24
            v_lshl_add_u32 v{6+p}, v26, 4, v22
            v_add_u32 v{10+p}, s{sT2}, v25
            """)
        for r in list(range(14, 22)) + [31, 97, 98, 99, 101, 102, 103, 105, 106, 107]:
            a(f"v_mov_b32 v{r}, 0")
        a("\n".join(self.dma_w(1) + self.dma_x(2)))
        a(f"""
        s_lshl_b32 s{sT0}, s{sH}, 2
        s_add_u32 s{sT0}, s{sT0}, s{sW}
        s_lshl_b32 s{sT0}, s{sT0}, 7
        s_add_u32 s{sKVF}, s{sT0}, {WS_KVF}
        s_lshl_b32 s{sT1}, s{sB}, 2
        s_add_u32 s{sKVO}, s{sT1}, s{sKVF}
        s_lshl_b32 s{sT0}, s{sH}, 6
        s_add_u32 s{sT0}, s{sT0}, s{sW}
        s_lshl_b32 s{sT0}, s{sT0}, 12
        s_add_u32 s{sT0}, s{sT0}, {WS_KV}
        s_lshl_b32 s{sT1}, s{sB}, 14
        """)
        for i in range(16):
            a(f"s_add_u32 s{sKT+i}, s{sT1}, s{sT0}")
            if i < 15:
                a(f"s_add_u32 s{sT1}, s{sT1}, 16384\ns_and_b32 s{sT1}, s{sT1}, {16*16384-1}")
        self.stamp("issued")

    def roles(self):
        self.a(f"""
        s_lshr_b32 s{sT0}, s{sI}, 2
        s_sub_u32 s{sT0}, s{sI}, s{sT0}
        s_sub_u32 s{sT0}, s{sT0}, 1
        s_mul_i32 s{sT1}, s{sXCD}, 7
        s_add_u32 s{sF}, s{sT0}, s{sT1}
        s_cmp_lt_u32 s{sI}, 10
        s_cselect_b32 s{sF}, s{sF}, -1
        s_cmp_eq_u32 s{sC}, 0
        s_cselect_b32 s{sF}, -1, s{sF}
        s_mul_i32 s{sT1}, s{sXCD}, 14
        s_sub_u32 s{sT0}, s{sI}, 10
        s_add_u32 s{sU}, s{sT0}, s{sT1}
        s_cmp_lt_u32 s{sT0}, 14
        s_cselect_b32 s{sU}, s{sU}, -1
        s_mul_i32 s{sROW}, s{sT}, {32*896}
        s_mul_i32 s{sT0}, s{sC}, 224
        s_add_u32 s{sROW}, s{sROW}, s{sT0}
        """)

    def srds(self):
        for r, p, n in ((SWS, 84, WS_SIZE), (SWO, 68, 448 * 896), (SOUT, 80, 2048 * 896), (SWG, 74, 448 * 3584),
                        (SWU, 76, 448 * 3584), (SWD, 78, 1792 * 896), (SWR, 72, 896)):
            self.a(f"""
            s_mov_b32 s{r}, s{p}
            s_mov_b32 s{r+1}, s{p+1}
            s_mov_b32 s{r+2}, {n}
            s_mov_b32 s{r+3}, 0x20000
            """)

    def dma_x(self, G):
        if G > 6:
            return []
        return lines(f"""
        s_lshl_b32 s{sT0}, s{sKG+G}, 7
        s_add_u32 m0, s{sA2}, {(G%4)*4096}
        s_add_u32 s{sT0}, s{sT0}, s{sXO}
        buffer_load_dwordx4 v1, {srd(SX)}, s{sT0} offen lds
        buffer_load_dwordx4 v2, {srd(SX)}, s{sT0} offen offset:1024 lds
        buffer_load_dwordx4 v3, {srd(SX)}, s{sT0} offen offset:2048 lds
        buffer_load_dwordx4 v4, {srd(SX)}, s{sT0} offen offset:3072 lds
        """)

    def dma_w(self, G):
        return lines(f"""
        s_mul_i32 s{sKG+G}, s{sKG+G}, {64*2688}
        s_add_u32 m0, s{sA3}, {L_W+G*3072}
        s_add_u32 s{sKG+G}, s{sKG+G}, s{sA1}
        s_sub_u32 s{sT1}, s{sKG+G}, 128
        buffer_load_dwordx4 v5, {srd(SWQ)}, s{sKG+G} offen lds
        buffer_load_dwordx4 v5, {srd(SWQ)}, s{sT1} offen offset:1024 lds
        """)

    def dma_q(self, G):
        return [f"s_add_u32 m0, s{sA3}, {L_W+G*3072+2048}", f"s_sub_u32 s{sT1}, s{sKG+G}, 896",
                f"buffer_load_dwordx4 v5, {srd(SWQ)}, s{sT1} offen lds"]

    LA = 2
    HMAP = sum(h << (4 * k) for k, h in enumerate([2, 4, 6, 0, 9, 11, 13, 15, 1, 3, 5, 7, 8, 10, 12, 14]))
    TSV = 'v29'
    P1S = 0
    ROT = 2
    ROTS = 1
    NT = 0

    def touches(self):
        return []

    def p1(self):
        a = self.a
        XF, AK, AV, AQ, WF = 128, 32, 48, 64, 80
        XE = 96
        RS = 108
        KO, VO = 240, 248
        s1, s2, csK, csV = (14, 15), (16, 17), 18, 19
        WEK, WEV = 100, 104
        queue = [("x", 0)] * 4 + [("w", 0)] * 2 + [("x", 1)] * 4 + [("w", 1)] * 2 + [("x", 2)] * 4

        def newer(tag):
            k = max(i for i, t in enumerate(queue) if t == tag)
            return len(queue) - 1 - k

        def xstats(G):
            for n in range(4 * G, 4 * G + 4):
                for i in range(4):
                    a(f"v_dot2c_f32_bf16 v{s1[i%2]}, s{sONE}, v{XF+4*n+i}")
                    a(f"v_dot2c_f32_bf16 v{s2[i%2]}, v{XF+4*n+i}, v{XF+4*n+i}")

        WBS = ([80, 88, 240, 248], [64, 72, 108, 116])

        def xreads(G):
            return [f"ds_read_b128 {vr(XF+4*(4*G+q),4)}, v{6+q} offset:{(G%4)*4096}" for q in range(4)] if G < 7 else []

        def wreads(G):
            WB = WBS[G % 2]
            return [f"ds_read_b64_tr_b16 {vr(WB[p]+4*t+2*hlf,2)}, v{10+p} offset:{G*3072+t*1024+hlf*256}"
                    for p in range(4) for t in range(2) for hlf in range(2)]

        def batch(G):
            r = []
            if G <= 6:
                r = self.dma_w(G) + self.dma_x(G + 1)
                queue.extend([("w", G)] * 2 + ([("x", G + 1)] * 4 if G < 6 else []))
            return r

        a(f"s_waitcnt vmcnt({newer(('x', 0))})")
        for x in xreads(0):
            a(x)
        a("s_waitcnt lgkmcnt(0)")
        a(f"""
        s_mul_i32 s{sNON}, s{sNON}, 0x19660d
        s_add_u32 s{sNON}, s{sNON}, 0x3c6ef35f
        v_mov_b32 v30, s{sNON}
        """)
        xstats(0)
        a(f"s_waitcnt vmcnt({newer(('x', 1))})\ns_barrier")
        self.stamp("g0")
        for x in wreads(0)[:4] + xreads(1) + wreads(0)[4:]:
            a(x)
        for x in batch(2):
            a(x)
        qsched = {4: [0, 1, 2, 3], 5: [4, 5, 6]}
        for G in range(7):
            WB = WBS[G % 2]
            if self.P1S:
                self.stamp(f"G{G}")
            a("s_waitcnt lgkmcnt(12)")
            for i in range(4):
                a(f"v_dot2c_f32_bf16 v{csK}, s{sONE}, v{WB[0]+i}")
                a(f"v_dot2c_f32_bf16 v{csV}, s{sONE}, v{WB[0]+4+i}")
            if G < 6:
                xstats(G + 1)
            else:
                a(f"""
                ds_write_b32 v24, v{csK}
                ds_write_b32 v24, v{csV} offset:1024
                """)
            gaps = [[] for _ in range(8)]
            early = batch(G + 3)
            for k in qsched.get(G, ()):
                early += self.dma_q(k)
                queue.append(("q", k))
            if G == 4:
                early += lines(f"""v_and_b32 v22, 31, v0
                v_lshlrev_b32 v22, 5, v22
                v_add_u32 v23, {L_CS}, v22
                v_lshrrev_b32 v24, 5, v0
                s_lshl_b32 s{sT0}, s{sW}, 3
                v_lshl_add_u32 v24, v24, 2, v23
                v_add_u32 v24, s{sT0}, v24""")
            if G == 5:
                sub = Gen()
                sub.a(f"""
                v_add_f32 v14, v14, v15
                v_add_f32 v16, v16, v17
                v_permlane32_swap_b32 v14, v16
                v_add_f32 v14, v14, v16
                v_mov_b32 v16, v14
                v_permlane32_swap_b32 v14, v16
                """)
                sub.ln_scalars(14, 16, 26, 28, 15, 17)
                sub.a(f"""
                v_lshrrev_b32 v15, 16, v26
                v_or_b32 v15, v15, v26
                v_cndmask_b32 v{XE}, 0, v15, s[{sLO}:{sLO+1}]
                v_and_b32 v15, 31, v0
                s_lshl_b32 s{sT0}, s{sW}, 7
                s_add_u32 s{sT0}, s{sT0}, {L_RS}
                v_lshl_add_u32 v15, v15, 2, s{sT0}
                v_lshrrev_b32 v25, 5, v0
                v_lshl_add_u32 v25, v25, 4, s{sT0}
                ds_write_b32 v15, v28
                """)
                stats = [x[1].text for x in sub.a.items]
                early = early + stats[:8]
                stats = stats[8:]
            if G < 6:
                per = -(-len(early) // 3)
                for k in range(3):
                    gaps[k] = early[k * per:(k + 1) * per]
                w = wreads(G + 1)
                rd = w[:4] + xreads(G + 2) + w[4:]
                gaps[2] += [f"s_waitcnt vmcnt({newer(('x', G+2) if G < 5 else ('w', 6))})", "s_barrier"]
                per = -(-len(rd) // 5)
                for k in range(5):
                    gaps[3 + k] = rd[per * k:per * k + per]
            else:
                sub = Gen()
                for mat, we in ((0, WEK), (1, WEV)):
                    r = RS + 8 * mat
                    sub.a(f"""
                    v_add_f32 v{r}, v{r}, v{r+1}
                    v_add_f32 v{r+2}, v{r+2}, v{r+3}
                    v_add_f32 v{r+4}, v{r+4}, v{r+5}
                    v_add_f32 v{r+6}, v{r+6}, v{r+7}
                    v_add_f32 v{r}, v{r}, v{r+2}
                    v_add_f32 v{r+4}, v{r+4}, v{r+6}
                    v_add_f32 v{r}, v{r}, v{r+4}
                    """)
                    sub.neg_split2(we, r, 22)
                Bc = [x[1].text for x in sub.a.items]
                gaps[0] = stats[:4] + ["s_waitcnt lgkmcnt(0)", "s_barrier"] + \
                    [f"ds_read_b128 {vr(RS+4*i,4)}, v23 offset:{(i//2)*1024+(i%2)*16}" for i in range(4)]
                A = stats[4:]
                mix = A[:6] + ["s_waitcnt lgkmcnt(0)"]
                A = A[6:]
                while A or Bc:
                    mix += A[:1] + Bc[:2]
                    A, Bc = A[1:], Bc[2:]
                per = -(-len(mix) // 7)
                for k in range(7):
                    gaps[1 + k] = mix[k * per:(k + 1) * per]
            for p in range(4):
                m = 4 * G + p
                if p == 1 and G < 6:
                    a("s_waitcnt lgkmcnt(0)")
                a(M32(AK, WB[p], XF + 4 * m, AK if m else None))
                for x in gaps[2 * p]:
                    a(x)
                a(M32(AV, XF + 4 * m, WB[p] + 4, AV if m else None))
                for x in gaps[2 * p + 1]:
                    a(x)
        a(M32(AK, WEK, XE, AK))
        a("s_waitcnt lgkmcnt(0)")
        for g in range(4):
            a(f"ds_read_b128 {vr(RS+4*g,4)}, v25 offset:{g*32}")
        a(M32(AV, XE, WEV, AV))
        a(f"""
        v_lshlrev_b32 v1, 4, v0
        v_and_b32 v22, 31, v0
        v_cmp_gt_u32 vcc, 28, v22
        v_mov_b32 v14, s{sONE}
        v_mov_b32 v27, 0x3f80
        v_cndmask_b32 v15, 0, -1, vcc
        v_cmp_eq_u32 vcc, 28, v22
        """)
        for i in range(8):
            a(f"v_pk_mul_f32 {vr(AK+2*i,2)}, {vr(AK+2*i,2)}, {vr(28,2)} op_sel_hi:[1,0]")
        a("v_cndmask_b32 v22, 0, v14, vcc")
        for i in range(8):
            a(f"v_cvt_pk_bf16_f32 v{KO+i}, v{AK+2*i}, v{AK+2*i+1}")
            if i == 3:
                a(f"buffer_store_dwordx4 {vr(KO,4)}, v1, {srd(SWS)}, s{sKT} offen sc1")
        a(f"""
        v_cndmask_b32 v{KO+6}, v14, v{KO+6}, s[{sLO}:{sLO+1}]
        v_cndmask_b32 v{KO+7}, v27, v{KO+7}, s[{sLO}:{sLO+1}]
        buffer_store_dwordx4 {vr(KO+4,4)}, v1, {srd(SWS)}, s{sKT} offen offset:1024 sc1
        s_waitcnt lgkmcnt(0)
        """)
        for hf in range(2):
            for i in range(4 * hf, 4 * hf + 4):
                a(f"v_pk_mul_f32 {vr(AV+2*i,2)}, {vr(AV+2*i,2)}, {vr(RS+2*i,2)}")
            for i in range(4 * hf, 4 * hf + 4):
                a(f"v_cvt_pk_bf16_f32 v{VO+i}, v{AV+2*i}, v{AV+2*i+1}")
            for i in range(4 * hf, 4 * hf + 4):
                a(f"v_and_or_b32 v{VO+i}, v{VO+i}, v15, v22")
            a(f"buffer_store_dwordx4 {vr(VO+4*hf,4)}, v1, {srd(SWS)}, s{sKT} offen offset:{2048+1024*hf} sc1")
        queue.extend([("st", 0)] * 4)
        self.stamp("kvpub")
        QR = 32
        lq = LQ(a)
        stage_end = {0: 1, 8: 3, 16: 5, 24: 6}

        def qread(n):
            G, p = divmod(n, 4)
            if n in stage_end:
                if self.P1S and n:
                    self.stamp(f"q{n}")
                if n == 24:
                    a(f"""
                    s_waitcnt vmcnt(0)
                    s_mov_b64 exec, 1
                    buffer_store_dword v30, v31, {srd(SWS)}, s{sKVO} offen sc1
                    s_mov_b64 exec, -1
                    s_barrier
                    """)
                else:
                    a(f"s_waitcnt vmcnt({newer(('q', stage_end[n]))})\ns_barrier")
            for hlf in range(2):
                lq.op(f"ds_read_b64_tr_b16 {vr(QR+4*(n%8)+2*hlf,2)}, v{10+p} offset:{G*3072+2048+hlf*256}", n)

        PD = 3
        for n in range(PD):
            qread(n)
        U = 108
        for n in range(28):
            G, p = divmod(n, 4)
            lq.wait(n)
            a(M32(AQ, QR + 4 * (n % 8), XF + 4 * n, AQ if n else None))
            fr = QR + 4 * ((n - p) % 8)
            unp = lambda k: f"v_lshlrev_b32 v{U+2*k}, 16, v{fr+k}\nv_and_b32 v{U+2*k+1}, 0xffff0000, v{fr+k}"
            add = lambda k: f"v_add_f32 v{20+k%2}, v{20+k%2}, v{U+k}"
            if G < 6:
                if p < 2:
                    a(unp(2 * p) + "\n" + unp(2 * p + 1))
                else:
                    for k in range(4 * (p - 2), 4 * (p - 2) + 4):
                        a(add(k))
                if n + PD < 28:
                    qread(n + PD)
            elif p == 0:
                qread(27)
                for k in range(4):
                    a(unp(k))
            elif p == 1:
                for k in range(8):
                    a(add(k))
                a("v_add_f32 v20, v20, v21")
                lq.op("ds_write_b32 v24, v20 offset:2048", "cs")
            elif p == 2:
                a(f"""
                s_waitcnt lgkmcnt(0)
                s_barrier
                ds_read_b128 {vr(RS,4)}, v23 offset:2048
                ds_read_b128 {vr(RS+4,4)}, v23 offset:2064
                """)
                lq.q += ["r", "r"]
        if self.P1S:
            self.stamp("qmm")
        a(f"""
        s_waitcnt lgkmcnt(0)
        v_add_f32 v{RS}, v{RS}, v{RS+1}
        v_add_f32 v{RS+2}, v{RS+2}, v{RS+3}
        v_add_f32 v{RS+4}, v{RS+4}, v{RS+5}
        v_add_f32 v{RS+6}, v{RS+6}, v{RS+7}
        v_add_f32 v{RS}, v{RS}, v{RS+2}
        v_add_f32 v{RS+4}, v{RS+4}, v{RS+6}
        v_add_f32 v{RS}, v{RS}, v{RS+4}
        """)
        self.neg_split2(WEV, RS, 22)
        a(M32(AQ, WEV, XE, AQ))
        a(f"v_mul_f32 v28, {hex(fbits(LOG2E*28**-0.5))}, v28")
        QO = 80
        for i in range(8):
            a(f"v_pk_mul_f32 {vr(AQ+2*i,2)}, {vr(AQ+2*i,2)}, {vr(28,2)} op_sel_hi:[1,0]")
        for i in range(8):
            a(f"v_cvt_pk_bf16_f32 v{QO+i}, v{AQ+2*i}, v{AQ+2*i+1}")
        a(f"""
        v_cndmask_b32 v{QO+6}, 0, v{QO+6}, s[{sLO}:{sLO+1}]
        v_cndmask_b32 v{QO+7}, 0, v{QO+7}, s[{sLO}:{sLO+1}]
        """)
        S = 32
        a(M32(S, KO, QO))
        a(M32(S, KO + 4, QO + 4, S))
        a(f"""
        s_lshl_b32 s{sT0}, s{sW}, 11
        s_add_u32 s{sT0}, s{sT0}, {L_QX}
        v_add_u32 v2, s{sT0}, v1
        """)
        for p in range(4):
            a(f"""
            s_add_u32 s{sT0}, s{sW}, {p+1}
            s_and_b32 s{sT0}, s{sT0}, 3
            s_lshl_b32 s{sT0}, s{sT0}, 11
            s_add_u32 s{sT0}, s{sT0}, {L_QX}
            v_add_u32 v{3+p}, s{sT0}, v1
            """)
        if self.P1S:
            self.stamp("smm")
        self.rowmax16(S, 22)
        if self.force_fb:
            a("v_add_f32 v22, 0xc3480000, v22")
        self.shift_split(22, 23, 24, 25)
        a(f"""
        v_cndmask_b32 v{QO+6}, v23, v{QO+6}, s[{sLO}:{sLO+1}]
        v_cndmask_b32 v{QO+7}, v24, v{QO+7}, s[{sLO}:{sLO+1}]
        ds_write_b128 v2, {vr(QO,4)}
        ds_write_b128 v2, {vr(QO+4,4)} offset:1024
        s_waitcnt lgkmcnt(0)
        s_barrier
        """)
        for p in range(4):
            a(f"ds_read_b128 {vr(128+8*p,4)}, v{3+p}")
            a(f"ds_read_b128 {vr(128+8*p+4,4)}, v{3+p} offset:1024")
        self.stamp("qdone")

    def rowmax16(self, S, d):
        self.a(f"""
        v_max3_f32 v{d}, v{S}, v{S+1}, v{S+2}
        v_max3_f32 v{d+1}, v{S+3}, v{S+4}, v{S+5}
        v_max3_f32 v{d}, v{d}, v{S+6}, v{S+7}
        v_max3_f32 v{d+1}, v{d+1}, v{S+8}, v{S+9}
        v_max3_f32 v{d}, v{d}, v{S+10}, v{S+11}
        v_max3_f32 v{d+1}, v{d+1}, v{S+12}, v{S+13}
        v_max3_f32 v{d}, v{d}, v{S+14}, v{S+15}
        v_max_f32 v{d}, v{d}, v{d+1}
        v_mov_b32 v{d+1}, v{d}
        v_permlane32_swap_b32 v{d}, v{d+1}
        v_max_f32 v{d}, v{d}, v{d+1}
        """)

    def shift_split(self, m, d6, d7, t):
        self.a(f"""
        v_cvt_pk_bf16_f32 v{d6}, -v{m}, -v{m}
        v_and_b32 v{d6}, 0xffff0000, v{d6}
        v_sub_f32_e64 v{d7}, -v{m}, v{d6}
        v_cvt_pk_bf16_f32 v{t}, v{d7}, v{d7}
        v_and_b32 v{t}, 0xffff0000, v{t}
        v_sub_f32 v{d7}, v{d7}, v{t}
        v_cvt_pk_bf16_f32 v{d6}, v{d6}, v{t}
        v_cvt_pk_bf16_f32 v{d7}, v{d7}, 0
        """)

    Q, O, SA, SB, TT, P = 128, 160, 32, 48, 64, 72
    KVB = (240, 224, 80, 96)
    XR2, W2, S4 = 240, 120, 112
    VTG = 116

    def unit(self, i, qt, extra):
        a = self.a
        Q, O, TT, P, B = self.Q, self.O, self.TT, self.P, self.KVB
        n = 4 * i + qt
        buf, bufn, bufp = B[i % 4], B[(i + 1) % 4], B[(i - 1) % 4]
        Sc, Sn = (self.SA, self.SB) if n % 2 == 0 else (self.SB, self.SA)
        kn = buf if qt < 3 else bufn
        qn, qp = (qt + 1) % 4, (qt - 1) % 4
        vp = (buf if qt > 0 else bufp) + 8
        ms = [M32(Sn, kn, Q + 8 * qn), M32(O + 16 * qp, vp + 4, P + 4, O + 16 * qp),
              M32(Sn, kn + 4, Q + 8 * qn + 4, Sn),
              M32(O + 16 * qt, buf + 8, P, None if i == 0 else O + 16 * qt)]
        for g in range(4):
            for x in extra.get(("pre", g), ()):
                a(x)
            if not (n == 0 and g == 1) and not (n == 63 and g in (0, 2)):
                a(ms[g])
            for x in extra.get(g, ()):
                a(x)
            tb, tp, pp = TT + 4 * (g % 2), TT + 4 * ((g + 1) % 2), P + 2 * ((g - 1) % 4)
            a(f"v_exp_f32 v{tb}, v{Sc+4*g}")
            a(f"v_exp_f32 v{tb+1}, v{Sc+4*g+1}")
            if not (n == 0 and g == 0):
                a(f"v_cvt_pk_bf16_f32 v{pp}, v{tp}, v{tp+1}")
                a(f"v_cvt_pk_bf16_f32 v{pp+1}, v{tp+2}, v{tp+3}")
            a(f"v_exp_f32 v{tb+2}, v{Sc+4*g+2}")
            a(f"v_exp_f32 v{tb+3}, v{Sc+4*g+3}")

    def kv_load(self, i, part, buf=None):
        buf = self.KVB[i % 4] if buf is None else buf
        return f"buffer_load_dwordx4 {vr(buf+4*part,4)}, v1, {srd(SWS)}, s{sKT+i} offen offset:{1024*part} sc1"

    CHK = 1

    def attention(self):
        a = self.a
        Q, O, P, TT, B = self.Q, self.O, self.P, self.TT, self.KVB
        a(f"""
        v_and_b32 v2, 15, v0
        v_lshlrev_b32 v2, 2, v2
        s_mov_b32 s{sA2}, 0x00010001
        s_lshl_b32 s{sA2}, s{sA2}, s{sB}
        s_mov_b32 s{sA3}, s{sA2}
        L_att:
        buffer_load_dword v3, v2, {srd(SWS)}, s{sKVF} offen sc1
        s_waitcnt lgkmcnt(0)
        """)
        a(M32(self.SA, B[0], Q))
        a(M32(self.SA, B[0] + 4, Q + 4, self.SA))
        queue = []

        def newer(tag):
            k = max(i for i, t in enumerate(queue) if t == tag)
            return len(queue) - 1 - k

        def ld(i, part):
            queue.append((i, part))
            return self.kv_load(i, part)

        def other(text):
            if text.startswith("buffer_"):
                queue.append("o")
            return text

        late = {}
        late[(12, 1)] = lines(f"""
        v_and_b32 v22, 31, v0
        v_lshrrev_b32 v23, 5, v0
        v_lshlrev_b32 v23, 3, v23
        v_mul_u32_u24 v22, 896, v22""")
        late[(12, 2)] = lines(f"""
        v_add_u32 v22, v22, v23
        s_mul_i32 s{sT1}, s{sW}, 56
        s_add_u32 s{sT0}, s{sROW}, s{sT1}
        s_mul_i32 s{sT2}, s{sC}, 224
        s_add_u32 s{sT1}, s{sT1}, s{sT2}""")
        xl = [f"buffer_load_dwordx2 {vr(self.XR2+2*g,2)}, v22, {srd(SX)}, s{sT0} offen offset:{16*g}" for g in range(4)]
        wl = [f"buffer_load_dwordx2 {vr(self.W2+2*g,2)}, v23, {srd(SWR)}, s{sT1} offen offset:{16*g}" for g in range(4)]
        late[(13, 0)] = wl[:1]
        late[(13, 1)] = wl[1:2] + xl[:1]
        late[(13, 2)] = wl[2:3] + xl[1:2]
        late[(13, 3)] = wl[3:] + xl[2:3]
        late[(14, 0)] = xl[3:] + lines(f"""
        s_lshl_b32 s{sA4}, s{sW}, 8
        s_add_u32 s{sA4}, s{sA4}, {WS_CLF}
        v_lshlrev_b32 v5, 2, v0""")
        late[(14, 1)] = [f"buffer_load_dword v4, v5, {srd(SWS)}, s{sA4} offen sc1"]
        cb = []
        for p in range(3):
            cb += lines(f"""
            s_add_u32 s{sT0}, s{sW}, {p+1}
            s_and_b32 s{sT0}, s{sT0}, 3
            s_mul_i32 s{sT0}, s{sT0}, 12288
            s_add_u32 s{sT0}, s{sT0}, {L_CB+p*4096}
            v_add_u32 v{10+p}, s{sT0}, v1""")
        cb += lines(f"""
        s_mul_i32 s{sT0}, s{sW}, 12288
        s_add_u32 s{sT0}, s{sT0}, {L_CB}
        v_add_u32 v13, s{sT0}, v1
        v_mov_b32 v8, {hex(fbits(2.0**100))}""")
        late[(14, 2)], late[(14, 3)], late[(15, 0)] = cb[:7], cb[7:13], cb[13:]
        wr = lambda p, k: f"ds_write_b128 v{10+p}, {vr(O+16*p+4*k,4)} offset:{k*1024}"
        for i in range(16):
            for qt in range(4):
                ex = {}
                if i == 0:
                    if qt == self.CHK + 1:
                        ex[("pre", 0)] = lines(f"""
                        s_waitcnt vmcnt(0)
                        L_kvpoll:
                        v_cmp_ne_u32 vcc, s{sNON}, v3
                        s_andn2_b64 vcc, vcc, s[{sA2}:{sA3}]
                        s_cbranch_vccz L_kvok
                        s_add_u32 s{sSPIN}, s{sSPIN}, 1
                        s_cmp_gt_u32 s{sSPIN}, {SPIN_MAX}
                        s_cbranch_scc1 L_kvok
                        buffer_load_dword v3, v2, {srd(SWS)}, s{sKVF} offen sc1
                        s_waitcnt vmcnt(0)
                        s_branch L_kvpoll
                        L_kvok:""") + [ld(1, k) for k in range(4)]
                    if qt > self.CHK:
                        todo = [(t, k) for t in (2, 3) for k in range(4) if (t, k) not in queue]
                        per = -(-len(todo) // (4 * (4 - qt)))
                        for g in range(4):
                            if qt == 3 and g in (0, 2):
                                ex[("pre", g)] = ex.get(("pre", g), []) + [f"s_waitcnt vmcnt({newer((1, g // 2))})"]
                            ex[g] = [ld(t, k) for t, k in todo[g * per:(g + 1) * per]]
                else:
                    if i == 1 and qt == 0:
                        ex[("pre", 3)] = [f"s_waitcnt vmcnt({newer((1, 2)) + (1 if i + 3 <= 15 else 0)})"]
                    if i == 1 and qt == 1:
                        ex[("pre", 1)] = [f"s_waitcnt vmcnt({newer((1, 3))})"]
                    if qt == 3 and i < 15:
                        ex[("pre", 0)] = [f"s_waitcnt vmcnt({newer((i + 1, 3))})"]
                    ex[0] = [other(x) for x in late.get((i, qt), [])]
                    if i + 3 <= 15:
                        ex[2] = [ld(i + 3, qt)]
                if i == 15:
                    if qt == 1:
                        ex[3] = [wr(0, 0)]
                    if qt == 2:
                        ex[0], ex[2], ex[3] = [wr(0, 1)], [wr(0, 2)], [wr(1, 0)]
                    if qt == 3:
                        ex[0], ex[2], ex[3] = [wr(1, 1)], [wr(1, 2)], [wr(2, 0)]
                self.unit(i, qt, ex)
                if i == 0 and qt == self.CHK + 1:
                    self.stamp("kvok")
                if i == 0 and qt == 3:
                    a("s_barrier")
        a(f"""
        v_cvt_pk_bf16_f32 v{P+6}, v{TT+4}, v{TT+5}
        v_cvt_pk_bf16_f32 v{P+7}, v{TT+6}, v{TT+7}
        v_max3_f32 v9, v{O+12}, v{O+16+12}, v{O+32+12}
        """)
        a(M32(O + 48, B[3] + 12, P + 4, O + 48))
        a(wr(2, 1))
        a(wr(2, 2))
        self.stamp("attn")

    def combine(self):
        a = self.a
        O = self.O
        a(f"""
        L_clpoll:
        s_waitcnt vmcnt(0)
        v_cmp_ne_u32 vcc, s{sNON}, v4
        s_cbranch_vccz L_clok
        """)
        self.spin_guard("L_clok")
        a(f"""
        buffer_load_dword v4, v5, {srd(SWS)}, s{sA4} offen sc1
        s_branch L_clpoll
        L_clok:
        v_max_f32 v9, v9, v{O+48+12}
        v_cmp_nlt_f32 vcc, v9, v8
        s_andn2_b64 vcc, vcc, s[{sLO}:{sLO+1}]
        s_cmp_lg_u64 vcc, 0
        s_cselect_b32 s{sT1}, 0x3f800000, 0
        v_mov_b32 v8, s{sT1}
        """)
        for p in range(4):
            a(f"v_cndmask_b32 v{O+16*p+13}, v8, v{O+16*p+13}, s[{sLO}:{sLO+1}]")
        for p in range(3):
            a(f"ds_write_b128 v{10+p}, {vr(O+16*p+12,4)} offset:3072")
        a(f"""
        s_lshl_b32 s{sT0}, s{sB}, 2
        s_add_u32 s{sT0}, s{sT0}, s{sW}
        s_lshl_b32 s{sT0}, s{sT0}, 4
        s_add_u32 s{sT0}, s{sT0}, s{sH}
        s_lshl_b32 s{sT0}, s{sT0}, 11
        s_add_u32 s99, s{sT0}, {WS_OF}
        s_waitcnt lgkmcnt(0)
        s_barrier
        """)
        order = (3, 0, 1, 2)
        for k in order:
            for p in range(3):
                a(f"ds_read_b128 {vr(O+16*p+4*k,4)}, v13 offset:{p*4096+k*1024}")
        R = O + 48
        for c, k in enumerate(order):
            a(f"s_waitcnt lgkmcnt({9-3*c})")
            for i in range(2):
                r = 4 * k + 2 * i
                a(f"v_pk_add_f32 {vr(R+r,2)}, {vr(R+r,2)}, {vr(O+r,2)}")
                a(f"v_pk_add_f32 {vr(O+16+r,2)}, {vr(O+16+r,2)}, {vr(O+32+r,2)}")
            for i in range(2):
                r = 4 * k + 2 * i
                a(f"v_pk_add_f32 {vr(R+r,2)}, {vr(R+r,2)}, {vr(O+16+r,2)}")
            if c == 0:
                a(f"""
                v_mov_b32 v8, v{R+12}
                v_mov_b32 v9, v{R+12}
                v_readlane_b32 s{sT0}, v{R+13}, 32
                v_permlane32_swap_b32 v8, v9
                s_cmp_eq_u32 s{sT0}, 0
                s_cbranch_scc1 L_noredo
                s_cmp_eq_u32 s{sPASS}, 0
                s_cbranch_scc1 L_redo
                L_noredo:
                v_rcp_f32 v8, v9
                """)
        OP = 32
        for hf in range(2):
            for i in range(4 * hf, 4 * hf + 4):
                a(f"v_pk_mul_f32 {vr(R+2*i,2)}, {vr(R+2*i,2)}, {vr(8,2)} op_sel_hi:[1,0]")
            for i in range(4 * hf, 4 * hf + 4):
                a(f"v_cvt_pk_bf16_f32 v{OP+i}, v{R+2*i}, v{R+2*i+1}")
            if hf:
                a(f"""
                v_cndmask_b32 v{OP+6}, 0, v{OP+6}, s[{sLO}:{sLO+1}]
                v_cndmask_b32 v{OP+7}, 0, v{OP+7}, s[{sLO}:{sLO+1}]
                """)
            a(f"buffer_store_dwordx4 {vr(OP+4*hf,4)}, v1, {srd(SWS)}, s99 offen offset:{1024*hf} sc1")
        a(f"""
        s_or_b32 s{sT0}, s2, s{sW}
        s_cmp_lg_u32 s{sT0}, 0
        s_cbranch_scc1 L_noepoch
        s_mov_b64 exec, 1
        buffer_store_dword v30, v31, {srd(SWS)}, 0 offen sc1
        s_mov_b64 exec, -1
        L_noepoch:
        """)
        self.stamp("opub")

    def helper(self, nbar):
        a = self.a
        a(f"""
        L_helper:
        s_waitcnt lgkmcnt(0)
        s_add_u32 s84, s84, {self.WSB << 20}
        s_addc_u32 s85, s85, 0
        s_load_dword s{sNON}, s[84:85], 0
        """)
        self.srds()
        a(f"""
        v_lshlrev_b32 v1, 4, v0
        v_mov_b32 v4, -1
        v_mov_b32 v5, -1
        v_mov_b32 v6, -1
        v_mov_b32 v7, -1
        v_mov_b32 v31, 0
        v_lshrrev_b32 v22, 4, v0
        v_lshrrev_b32 v23, 2, v0
        v_sub_u32 v23, v23, v22
        v_and_b32 v23, 3, v23
        v_mul_u32_u24 v23, 56, v23
        v_mul_u32_u24 v22, 896, v22
        v_add_u32 v22, v22, v23
        v_and_b32 v23, 3, v0
        v_lshlrev_b32 v23, 4, v23
        v_min_u32 v23, 40, v23
        v_add_u32 v2, v22, v23
        v_lshlrev_b32 v3, 7, v0
        """)
        for i in range(7):
            a(f"""
            v_add_u32 v23, {64*i}, v0
            v_mul_u32_u24 v22, 4682, v23
            v_lshrrev_b32 v22, 16, v22
            v_mul_u32_u24 v27, 14, v22
            v_sub_u32 v23, v23, v27
            v_mul_u32_u24 v22, 896, v22
            v_lshl_add_u32 v{8+i}, v23, 4, v22
            """)
        a(f"""
        s_waitcnt lgkmcnt(0)
        s_mul_i32 s{sNON}, s{sNON}, 0x19660d
        s_add_u32 s{sNON}, s{sNON}, 0x3c6ef35f
        v_mov_b32 v30, s{sNON}
        """)
        for _ in range(nbar):
            a("s_barrier")
        if self.HD1:
            a(f"s_sleep {self.HD1}")
        if self.NOCL:
            a("s_branch L_h_noy")
        a(f"""
        s_lshl_b32 s{sT0}, s{sB}, 6
        s_add_u32 s{sT0}, s{sT0}, s{sH}
        s_lshl_b32 s{sT0}, s{sT0}, 11
        s_add_u32 s{sT0}, s{sT0}, {WS_OF}
        """)
        for w in range(4):
            a(f"""
            buffer_store_dwordx4 v[4:7], v1, {srd(SWS)}, s{sT0} offen sc1
            buffer_store_dwordx4 v[4:7], v1, {srd(SWS)}, s{sT0} offen offset:1024 sc1
            s_add_u32 s{sT0}, s{sT0}, 32768
            """)
        a(f"""
        s_add_u32 s{sT0}, s{sROW}, {WS_HN}
        s_add_u32 s{sT1}, s{sROW}, {WS_HH}
        """)
        for i in range(7):
            a(f"buffer_store_dwordx4 v[4:7], v{8+i}, {srd(SWS)}, s{sT0} offen sc1")
            a(f"buffer_store_dwordx4 v[4:7], v{8+i}, {srd(SWS)}, s{sT1} offen sc1")
        a(f"""
        s_lshl_b32 s{sT0}, s{sT}, 2
        s_add_u32 s{sT0}, s{sT0}, s{sC}
        s_lshl_b32 s{sT0}, s{sT0}, 9
        s_add_u32 s{sT0}, s{sT0}, {WS_STATS}
        s_mov_b32 exec_hi, 0
        buffer_store_dwordx4 v[4:7], v1, {srd(SWS)}, s{sT0} offen sc1
        s_cmp_lg_u32 s{sC}, 0
        s_cbranch_scc1 L_h_nokey
        s_lshl_b32 s{sT1}, s{sT}, 5
        s_add_u32 s{sT1}, s{sT1}, {WS_KEYS}
        s_mov_b64 exec, 3
        buffer_store_dwordx4 v[4:7], v1, {srd(SWS)}, s{sT1} offen sc1
        L_h_nokey:
        s_mov_b64 exec, -1
        s_cmp_lt_i32 s{sF}, 0
        s_cbranch_scc1 L_h_noy
        s_mul_i32 s{sT0}, s{sF}, 14336
        s_add_u32 s{sT0}, s{sT0}, {WS_Y}
        """)
        for k in range(14):
            a(f"buffer_store_dwordx4 v[4:7], v1, {srd(SWS)}, s{sT0} offen offset:{1024*(k%4)} sc1")
            if k % 4 == 3:
                a(f"s_add_u32 s{sT0}, s{sT0}, 4096")
        a(f"""
        L_h_noy:
        s_lshl_b32 s{sT0}, s2, 2
        s_add_u32 s{sT0}, s{sT0}, {WS_CLF}
        s_waitcnt vmcnt(0)
        s_mov_b64 exec, 1
        buffer_store_dword v30, v31, {srd(SWS)}, s{sT0} offen sc1
        s_mov_b64 exec, -1
        """)
        a(f"""
        v_lshrrev_b32 v22, 2, v0
        v_min_u32 v22, 13, v22
        v_mul_u32_u24 v22, 3584, v22
        v_and_b32 v23, 3, v0
        v_lshl_add_u32 v22, v23, 7, v22
        s_mul_i32 s{sA0}, s{sXCD}, {7*32*896}
        s_mul_i32 s{sT1}, s{sI}, {49*128}
        s_add_u32 s{sA0}, s{sA0}, s{sT1}
        s_mul_i32 s{sA1}, s{sI}, {14*3584}
        s_mul_i32 s{sT1}, s{sXCD}, 448
        s_and_b32 s{sT1}, s{sT1}, -128
        s_add_u32 s{sA1}, s{sA1}, s{sT1}
        s_lshr_b32 s{sA2}, s{sI}, 2
        s_mul_i32 s{sA2}, s{sA2}, {self.WOROT}
        s_lshr_b32 s{sA2}, s{sA2}, 1
        s_mul_i32 s{sA4}, s{sC}, 224
        s_mul_i32 s{sA5}, s{sI}, {self.TSTAG}
        s_lshr_b32 s{sA5}, s{sA5}, 3
        s_add_u32 s{sA5}, s{sA5}, {self.TOFF}
        s_mov_b32 s{sA3}, 0
        {"s_endpgm" if self.NOWO else ""}
        L_h_wo:
        s_mul_i32 s{sWOS}, s{sA2}, {16*896}
        s_add_u32 s{sWOS}, s{sWOS}, s{sA4}
        s_lshl_b32 s{sWOM}, s{sA2}, 12
        """)
        for k in range(4):
            a(f"""
            s_add_u32 m0, s{sWOM}, {1024*k}
            s_add_u32 s{sT0}, s{sWOS}, {4*896*k}
            buffer_load_dwordx4 v2, {srd(SWO)}, s{sT0} offen lds
            """)
        if self.TOUCH:
            a(f"""
            s_cmp_lg_u32 s{sA3}, s{sA5}
            s_cbranch_scc1 L_h_notouch
            buffer_load_dword v20, v3, {srd(SWD)}, s{sA0} offen
            buffer_load_dword v20, v22, {srd(SWG)}, s{sA1} offen
            buffer_load_dword v20, v22, {srd(SWU)}, s{sA1} offen
            L_h_notouch:
            """)
        a(f"""
        s_waitcnt vmcnt({self.WOQ})
        s_add_u32 s{sA2}, s{sA2}, 1
        s_cmp_eq_u32 s{sA2}, 28
        s_cselect_b32 s{sA2}, 0, s{sA2}
        s_add_u32 s{sA3}, s{sA3}, 1
        s_cmp_lt_u32 s{sA3}, 28
        s_cbranch_scc1 L_h_wo
        s_waitcnt vmcnt(0)
        s_endpgm
        """)

    WOROT = 7
    TSTAG = 7
    TOFF = 0
    WSB = 0
    NOCL = 0
    NOWO = 0
    TOUCH = 1
    HD1 = 0
    HD2 = 0
    HD3 = 0
    WOQ = 4

    def redo(self):
        a = self.a
        Q, B, S = self.Q, self.KVB, self.SA
        MX = 8
        a(f"""
        L_redo:
        s_mov_b32 s{sPASS}, 1
        s_waitcnt vmcnt(0) lgkmcnt(0)
        s_barrier
        s_mov_b32 s{sA5}, 16
        s_lshl_b32 s{sT2}, s{sH}, 6
        s_add_u32 s{sT2}, s{sT2}, s{sW}
        s_lshl_b32 s{sT2}, s{sT2}, 12
        s_add_u32 s{sT2}, s{sT2}, {WS_KV}
        """)
        for p in range(4):
            a(f"v_mov_b32 v{MX+p}, 0xff800000")
        a(f"""
        L_redo_loop:
        buffer_load_dwordx4 {vr(B[1],4)}, v1, {srd(SWS)}, s{sT2} offen sc1
        buffer_load_dwordx4 {vr(B[1]+4,4)}, v1, {srd(SWS)}, s{sT2} offen offset:1024 sc1
        s_add_u32 s{sT2}, s{sT2}, 16384
        s_waitcnt vmcnt(0)
        """)
        for p in range(4):
            a(M32(S, B[1], Q + 8 * p))
            a(M32(S, B[1] + 4, Q + 8 * p + 4, S))
            self.rowmax16(S, 22)
            a(f"v_max_f32 v{MX+p}, v{MX+p}, v22")
        a(f"""
        s_sub_u32 s{sA5}, s{sA5}, 1
        s_cmp_lg_u32 s{sA5}, 0
        s_cbranch_scc1 L_redo_loop
        """)
        for p in range(4):
            a(f"""
            s_add_u32 s{sT0}, s{sW}, {p+1}
            s_and_b32 s{sT0}, s{sT0}, 3
            s_lshl_b32 s{sT0}, s{sT0}, 10
            s_add_u32 s{sT0}, s{sT0}, {L_CB}
            v_lshl_add_u32 v{12+p}, v0, 2, s{sT0}
            s_lshl_b32 s{sT1}, s{sW}, 8
            v_add_u32 v16, s{sT1}, v{12+p}
            ds_write_b32 v16, v{MX+p}
            """)
        a("s_waitcnt lgkmcnt(0)\ns_barrier")
        for p in range(4):
            for k in range(4):
                a(f"ds_read_b32 v{16+k}, v{12+p} offset:{k*256}")
            q6, q7 = Q + 8 * p + 6, Q + 8 * p + 7
            a(f"""
            s_waitcnt lgkmcnt(0)
            v_max3_f32 v16, v16, v17, v18
            v_max_f32 v16, v16, v19
            v_lshlrev_b32 v17, 16, v{q6}
            v_and_b32 v18, 0xffff0000, v{q6}
            v_lshlrev_b32 v19, 16, v{q7}
            v_add_f32 v18, v18, v19
            v_add_f32 v17, v17, v18
            v_sub_f32 v22, v16, v17
            """)
            self.shift_split(22, 23, 24, 25)
            a(f"""
            v_cndmask_b32 v{q6}, v23, v{q6}, s[{sLO}:{sLO+1}]
            v_cndmask_b32 v{q7}, v24, v{q7}, s[{sLO}:{sLO+1}]
            """)
        for part in range(4):
            a(self.kv_load(0, part))
        a(f"""
        s_waitcnt vmcnt(0)
        s_barrier
        s_branch L_att
        """)

    def finish(self):
        a = self.a
        a("L_fin:")
        if self.amp:
            a(f"""
            s_cmp_lg_u32 s2, {self.ampg}
            s_cbranch_scc1 L_end
            s_cmp_lg_u32 s{sW}, 0
            s_cbranch_scc1 L_end
            s_sub_u32 s84, s84, s100
            s_min_u32 s84, s84, 20000
            s_lshl_b32 s84, s84, 3
            s_memrealtime s[100:101]
            s_waitcnt lgkmcnt(0)
            L_amp:
            s_memrealtime s[82:83]
            s_waitcnt lgkmcnt(0)
            s_sub_u32 s82, s82, s100
            s_cmp_lt_u32 s82, s84
            s_cbranch_scc1 L_amp
            """)
        if self.ts:
            a(f"""
            s_lshl_b32 s{sT0}, s2, 2
            s_add_u32 s{sT0}, s{sT0}, s{sW}
            s_lshl_b32 s{sT0}, s{sT0}, 8
            s_add_u32 s{sT0}, s{sT0}, {WS_TS}
            s_mov_b64 exec, -1
            v_lshlrev_b32 v2, 2, v0
            buffer_store_dword {self.TSV}, v2, {srd(SWS)}, s{sT0} offen
            """)
        a("L_end:\ns_endpgm")

    def tail(self):
        pass

    def build(self):
        self.prologue()
        self.p1()
        nbar = sum(1 for k, x in self.a.items if k == "i" and x.op == "s_barrier")
        self.attention()
        self.combine()
        self.tail()
        self.finish()
        self.redo()
        self.helper(nbar + 1)
        npad = self.a.pad()
        body = self.a.text()
        hdr = open(os.path.join(os.path.dirname(os.path.abspath(__file__)), "header.txt")).read()
        out = hdr + f"""; @launch grid=(256,1,1) block=(320,1,1) lds={LDS_BYTES}
.amdgcn_target "amdgcn-amd-amdhsa--gfx950"
.text
.globl {NAME}
.p2align 8
.type {NAME},@function
{NAME}:
{body}
.section .rodata,"a"
.p2align 6
.amdhsa_kernel {NAME}
  .amdhsa_next_free_vgpr 256
  .amdhsa_next_free_sgpr 102
  .amdhsa_accum_offset 256
  .amdhsa_group_segment_fixed_size 0
  .amdhsa_kernarg_size 88
  .amdhsa_user_sgpr_count 2
  .amdhsa_user_sgpr_kernarg_segment_ptr 1
  .amdhsa_system_sgpr_workgroup_id_x 1
  .amdhsa_float_denorm_mode_32 3
.end_amdhsa_kernel
"""
        return out, npad


class Full(Gen):

    def piece_idx(self, i, tok, ch):
        self.a(f"""
        v_add_u32 v{ch}, {64*i}, v0
        v_mul_u32_u24 v{tok}, 4682, v{ch}
        v_lshrrev_b32 v{tok}, 16, v{tok}
        v_mul_u32_u24 v27, 14, v{tok}
        v_sub_u32 v{ch}, v{ch}, v27
        s_lshl_b32 s{sT0}, s{sW}, 3
        v_add_u32 v{tok}, s{sT0}, v{tok}
        """)

    def sentinel_any(self, regs, t):
        a = self.a
        regs = list(regs)
        a(f"v_max3_u32 v{t}, v{regs[0]}, v{regs[1]}, v{regs[2] if len(regs) > 2 else regs[1]}")
        for k in range(3, len(regs), 2):
            a(f"v_max3_u32 v{t}, v{t}, v{regs[k]}, v{regs[min(k+1, len(regs)-1)]}")
        a(f"v_cmp_eq_u32 vcc, -1, v{t}")

    def unpack(self, d, s):
        self.a(f"v_lshlrev_b32 v{d}, 16, v{s}\nv_and_b32 v{d+1}, 0xffff0000, v{s}")

    def tr_write(self, src, arr):
        a = self.a
        for g in range(3):
            a(f"ds_write_b64 v14, {vr(src+2*g,2)} offset:{arr*7680+16*g}")
        a(f"""
        s_mov_b32 exec_hi, 0
        ds_write_b64 v14, {vr(src+6,2)} offset:{arr*7680+48}
        s_mov_b32 exec_hi, -1
        """)

    def tr_publish(self, arr, base, t):
        self.a(f"""
        ds_read_b128 {vr(t,4)}, v15 offset:{arr*7680}
        ds_read_b128 {vr(t+4,4)}, v16 offset:{arr*7680}
        s_add_u32 s{sT0}, s{sROW}, {base}
        s_waitcnt lgkmcnt(1)
        buffer_store_dwordx4 {vr(t,4)}, v{self.VTG}, {srd(SWS)}, s{sT0} offen sc1
        s_mov_b32 exec_hi, 0xffff
        s_waitcnt lgkmcnt(0)
        buffer_store_dwordx4 {vr(t+4,4)}, v{self.VTG+1}, {srd(SWS)}, s{sT0} offen sc1
        s_mov_b32 exec_hi, -1
        """)

    def p3(self):
        a = self.a
        XR2, W2, S4 = self.XR2, self.W2, self.S4
        XC, ACC, OFR, WR = 64, 48, 128, 80
        a(f"""
        v_lshrrev_b32 v23, 5, v0
        v_lshrrev_b32 v25, 2, v0
        v_and_b32 v25, 3, v25
        v_add_u32 v24, s{sW}, v25
        v_and_b32 v24, 3, v24
        v_lshl_add_u32 v25, v23, 2, v25
        v_lshlrev_b32 v25, 8, v25
        v_lshl_add_u32 v25, v24, 6, v25
        v_lshrrev_b32 v26, 4, v0
        v_and_b32 v26, 1, v26
        v_lshl_add_u32 v25, v26, 5, v25
        v_lshrrev_b32 v27, 1, v0
        v_and_b32 v27, v27, v26
        v_and_b32 v26, 3, v0
        v_xor_b32 v26, v26, v27
        v_lshl_add_u32 v25, v26, 3, v25
        v_lshlrev_b32 v23, 11, v23
        """)
        for qr in range(4):
            a(f"""
            s_add_u32 s{sT0}, s{sW}, {qr}
            s_and_b32 s{sT0}, s{sT0}, 3
            s_lshl_b32 s{sT1}, s{sT0}, 13
            s_add_u32 s{sT1}, s{sT1}, {L_CB}
            s_mul_i32 s{sT0}, s{sT0}, 28672
            v_add_u32 v{2+qr}, s{sT1}, v1
            v_add_u32 v{6+qr}, s{sT0}, v25
            v_sub_u32 v{10+qr}, v{6+qr}, v23
            """)
        for k in range(8):
            self.unpack(XC + 2 * k, XR2 + k)
        a(f"""
        v_cndmask_b32 v{W2+6}, 0, v{W2+6}, s[{sLO}:{sLO+1}]
        v_cndmask_b32 v{W2+7}, 0, v{W2+7}, s[{sLO}:{sLO+1}]
        v_mov_b32 v{S4}, 0
        """)
        for k in range(8):
            a(f"v_dot2c_f32_bf16 v{S4}, s{sONE}, v{W2+k}")
        a(f"""
        s_lshl_b32 s{sA0}, s{sT}, 2
        s_add_u32 s{sA0}, s{sA0}, s{sW}
        s_lshl_b32 s{sA0}, s{sA0}, 13
        s_add_u32 s{sA0}, s{sA0}, {WS_OF}
        s_add_u32 s{sA1}, s{sA0}, 4096
        s_lshl_b32 s{sA2}, s{sW}, 13
        s_add_u32 s{sA2}, s{sA2}, {L_CB}
        s_add_u32 s{sA3}, s{sA2}, 4096
        s_waitcnt vmcnt(0)
        s_barrier
        """)
        self.stamp("oack")
        a("L_odma:")
        for hf in range(2):
            a(f"s_mov_b32 m0, s{sA2+hf}")
            for k in range(4):
                a(f"buffer_load_dwordx4 v1, {srd(SWS)}, s{sA0+hf} offen offset:{1024*k} sc1 lds")
        lq = LQ(a)

        def oread(n):
            lq.op(f"ds_read_b128 {vr(OFR+4*n,4)}, v{2+n//8} offset:{(n%8)*1024}", ("o", n))

        def wread(n):
            qr, hl, j = n // 8, (n % 8) // 2, n % 2
            lq.op(f"ds_read_b64_tr_b16 {vr(WR+4*(n%4),2)}, v{6+qr} offset:{hl*7168+j*4096}", ("w", n))
            lq.op(f"ds_read_b64_tr_b16 {vr(WR+4*(n%4)+2,2)}, v{(10 if j else 6)+qr} offset:{hl*7168+j*4096+2048}", ("w", n))

        for n in range(3):
            wread(n)
        a("s_waitcnt vmcnt(0)")
        for n in range(8):
            oread(n)
        onext = 8
        for n in range(32):
            lq.wait(("o", n) if lq.q.index(("o", n)) > max(i for i, t in enumerate(lq.q) if t == ("w", n)) else ("w", n))
            a(M32(ACC, WR + 4 * (n % 4), OFR + 4 * n, ACC if n else XC))
            if n + 3 < 32:
                wread(n + 3)
            if n < 4:
                if n == 0:
                    lq.wait(("o", 1))
                    a(f"v_max3_u32 v22, v{OFR}, v{OFR+1}, v{OFR+2}")
                    a(f"v_max3_u32 v23, v{OFR+3}, v{OFR+4}, v{OFR+5}")
                    a(f"v_max3_u32 v22, v22, v{OFR+6}, v{OFR+7}")
                else:
                    lq.wait(("o", 2 * n + 1))
                    for k in range(4):
                        r = OFR + 8 * n + 2 * k
                        a(f"v_max3_u32 v{22+k%2}, v{22+k%2}, v{r}, v{r+1}")
            if n == 3:
                a(f"""
                v_max_u32 v22, v22, v23
                v_cmp_eq_u32 vcc, -1, v22
                s_cbranch_vccz L_ook
                """)
                self.spin_guard("L_ook")
                a(f"""
                s_waitcnt lgkmcnt(0)
                s_branch L_odma
                L_ook:
                s_barrier
                """)
            if n >= 4:
                for _ in range(2):
                    if onext < 32 and onext <= n + 8:
                        oread(onext)
                        onext += 1
        self.stamp("gemm")
        H2 = 32
        a(f"""
        v_and_b32 v22, 31, v0
        v_lshrrev_b32 v23, 5, v0
        v_lshlrev_b32 v23, 3, v23
        v_lshl_add_u32 v17, v22, 4, v23
        s_lshl_b32 s{sT0}, s{sW}, 9
        s_add_u32 s{sT0}, s{sT0}, {L_ST}
        v_add_u32 v18, s{sT0}, v17
        v_add_u32 v19, {L_ST}, v17
        v_mul_u32_u24 v22, 240, v22
        s_mul_i32 s{sT0}, s{sW}, 56
        s_add_u32 s{sT0}, s{sT0}, {L_TR}
        v_add3_u32 v14, v22, v23, s{sT0}
        v_mov_b32 v40, 0
        v_mov_b32 v41, 0
        v_mov_b32 v42, 0
        """)
        for k in range(8):
            a(f"v_cvt_pk_bf16_f32 v{H2+k}, v{ACC+2*k}, v{ACC+2*k+1}")
        a(f"""
        v_cndmask_b32 v{H2+6}, 0, v{H2+6}, s[{sLO}:{sLO+1}]
        v_cndmask_b32 v{H2+7}, 0, v{H2+7}, s[{sLO}:{sLO+1}]
        """)
        for k in range(8):
            a(f"v_dot2c_f32_bf16 v40, s{sONE}, v{H2+k}")
            a(f"v_dot2c_f32_bf16 v42, v{H2+k}, v{H2+k}")
            a(f"v_dot2c_f32_bf16 v41, v{W2+k}, v{H2+k}")
        a(f"""
        v_permlane32_swap_b32 v40, v42
        v_permlane32_swap_b32 v41, v{S4}
        v_add_f32 v40, v40, v42
        v_add_f32 v41, v41, v{S4}
        ds_write_b64 v18, v[40:41]
        s_lshl_b32 s{sA0}, s{sT}, 11
        s_add_u32 s{sA0}, s{sA0}, {WS_STATS}
        s_lshl_b32 s{sT0}, s{sC}, 9
        s_add_u32 s{sA1}, s{sA0}, s{sT0}
        s_waitcnt lgkmcnt(0)
        s_barrier
        s_cmp_lg_u32 s{sW}, 0
        s_cbranch_scc1 L_nostat
        ds_read_b64 v[40:41], v19
        ds_read_b64 v[42:43], v19 offset:512
        ds_read_b64 v[44:45], v19 offset:1024
        ds_read_b64 v[46:47], v19 offset:1536
        s_waitcnt lgkmcnt(2)
        v_pk_add_f32 v[40:41], v[40:41], v[42:43]
        s_waitcnt lgkmcnt(0)
        v_pk_add_f32 v[44:45], v[44:45], v[46:47]
        v_pk_add_f32 v[40:41], v[40:41], v[44:45]
        buffer_store_dwordx2 v[40:41], v17, {srd(SWS)}, s{sA1} offen sc1
        L_nostat:
        """)
        self.ffn_weights()
        self.tr_write(H2, 0)
        for i in range(2):
            self.piece_idx(i, 22, 23)
            a(f"""
            v_mov_b32 v{20+i}, v22
            v_mul_u32_u24 v27, 896, v22
            v_lshl_add_u32 v{self.VTG+i}, v23, 4, v27
            v_mul_u32_u24 v22, 240, v22
            v_lshl_add_u32 v22, v23, 4, v22
            v_add_u32 v{15+i}, {L_TR}, v22
            """)
        a("s_waitcnt lgkmcnt(0)\ns_barrier")
        self.tr_publish(0, WS_HH, 48)
        HF = 64
        for k in range(8):
            self.unpack(HF + 2 * k, H2 + k)
        a("s_waitcnt vmcnt(0)")
        self.stamp("hack")
        a("L_stpoll:")
        for c in range(4):
            a(f"buffer_load_dwordx2 {vr(40+2*c,2)}, v17, {srd(SWS)}, s{sA0} offen offset:{512*c} sc1")
        a("s_waitcnt vmcnt(0)")
        self.sentinel_any(range(40, 48), 22)
        a("s_cbranch_vccz L_stok")
        self.spin_guard("L_stok")
        a("s_branch L_stpoll\nL_stok:")
        self.stamp("stok")
        a(f"""
        v_pk_add_f32 v[40:41], v[40:41], v[42:43]
        v_pk_add_f32 v[44:45], v[44:45], v[46:47]
        v_pk_add_f32 v[40:41], v[40:41], v[44:45]
        v_mov_b32 v42, v40
        v_mov_b32 v43, v41
        v_permlane32_swap_b32 v40, v42
        v_permlane32_swap_b32 v41, v43
        """)
        self.ln_scalars(40, 42, 44, 46, 22, 23)
        KEY = 47
        a(f"""
        v_fma_f32 v41, -v44, v43, v41
        v_mul_f32 v41, v41, v46
        v_cvt_pk_bf16_f32 v41, v41, v41
        v_ashrrev_i32 v22, 31, v41
        v_or_b32 v22, 0x80000000, v22
        v_xor_b32 v41, v41, v22
        v_and_b32 v41, 0xffff0000, v41
        v_lshrrev_b32 v41, 1, v41
        v_and_b32 v22, 31, v0
        s_lshl_b32 s{sT0}, s{sT}, 5
        s_sub_u32 s{sT0}, 2047, s{sT0}
        v_sub_u32 v22, s{sT0}, v22
        v_or_b32 v{KEY}, v41, v22
        s_or_b32 s{sT0}, s{sW}, s{sC}
        s_cmp_lg_u32 s{sT0}, 0
        s_cbranch_scc1 L_norank
        v_mov_b32 v48, v{KEY}
        v_mov_b32 v49, v{KEY}
        v_permlane16_swap_b32 v48, v49
        v_cndmask_b32 v48, v49, v48, s[{sLO}:{sLO+1}]
        v_sub_u32 v80, v48, v{KEY}
        """)
        for n in range(1, 16):
            a(f"v_sub_u32_dpp v{80+n}, v48, v{KEY} row_ror:{n} row_mask:0xf bank_mask:0xf bound_ctrl:0".replace(" bound_ctrl:0", " bound_ctrl:1"))
        a("v_lshrrev_b32 v48, 31, v80\nv_lshrrev_b32 v49, 31, v81")
        for n in range(2, 16):
            a(f"v_alignbit_b32 v{48+n%2}, v{48+n%2}, v{80+n}, 31")
        a(f"""
        v_bcnt_u32_b32 v48, v48, 0
        v_bcnt_u32_b32 v48, v49, v48
        v_mov_b32 v49, v48
        v_permlane32_swap_b32 v48, v49
        v_add_u32 v48, v48, v49
        v_sub_u32 v48, 31, v48
        v_cmp_gt_u32 vcc, 8, v48
        v_lshlrev_b32 v48, 2, v48
        s_lshl_b32 s{sT0}, s{sT}, 5
        s_add_u32 s{sT0}, s{sT0}, {WS_KEYS}
        s_and_b64 exec, vcc, s[{sLO}:{sLO+1}]
        buffer_store_dword v{KEY}, v48, {srd(SWS)}, s{sT0} offen sc1
        s_mov_b64 exec, -1
        L_norank:
        """)
        for k in range(8):
            self.unpack(HF + 2 * k, H2 + k) if False else None
        D, HN2, OUT2 = 80, 48, 56
        for k in range(8):
            a(f"v_pk_add_f32 {vr(D+2*k,2)}, {vr(HF+2*k,2)}, v[44:45] op_sel_hi:[1,0] neg_lo:[0,1] neg_hi:[0,1]")
        for k in range(8):
            a(f"v_cvt_pk_bf16_f32 v{HN2+k}, v{D+2*k}, v{D+2*k+1}")
        for k in range(8):
            self.unpack(D + 2 * k, HN2 + k)
        for k in range(8):
            a(f"v_pk_mul_f32 {vr(D+2*k,2)}, {vr(D+2*k,2)}, v[46:47] op_sel_hi:[1,0]")
        for k in range(8):
            a(f"v_cvt_pk_bf16_f32 v{HN2+k}, v{D+2*k}, v{D+2*k+1}")
        self.tr_write(HN2, 1)
        for k in range(8):
            self.unpack(D + 2 * k, HN2 + k)
        for k in range(8):
            a(f"v_pk_add_f32 {vr(D+2*k,2)}, {vr(D+2*k,2)}, {vr(HF+2*k,2)}")
        for k in range(8):
            a(f"v_cvt_pk_bf16_f32 v{OUT2+k}, v{D+2*k}, v{D+2*k+1}")
        self.tr_write(OUT2, 2)
        a("s_waitcnt lgkmcnt(0)\ns_barrier")
        self.tr_publish(1, WS_HN, 48)
        self.KEY = KEY

    def ffn_weights(self):
        a = self.a
        a(f"""
        s_cmp_lt_i32 s{sF}, 0
        s_cbranch_scc1 L_noffw
        v_lshrrev_b32 v22, 2, v0
        v_mul_u32_u24 v22, 3584, v22
        v_and_b32 v23, 3, v0
        v_lshl_add_u32 v22, v23, 4, v22
        s_mul_i32 s{sT0}, s{sW}, {7*16*3584}
        s_lshl_b32 s{sT1}, s{sF}, 6
        s_add_u32 s{sT0}, s{sT0}, s{sT1}
        s_mul_i32 s{sT1}, s{sW}, 7168
        """)
        for j in range(7):
            a(f"""
            s_add_u32 m0, s{sT1}, {L_WG+j*1024}
            s_add_u32 s{sT2}, s{sT0}, {j*16*3584}
            buffer_load_dwordx4 v22, {srd(SWG)}, s{sT2} offen lds
            s_add_u32 m0, s{sT1}, {L_WU+j*1024}
            buffer_load_dwordx4 v22, {srd(SWU)}, s{sT2} offen lds
            """)
        a(f"""
        s_lshl_b32 s{sT0}, s{sF}, 2
        s_add_u32 s{sT0}, s{sT0}, s{sW}
        s_mul_i32 s{sT0}, s{sT0}, {8*896}
        s_mul_i32 s{sT1}, s{sW}, {8*928}
        s_mov_b32 exec_hi, 0xffffff
        """)
        for r in range(8):
            a(f"""
            s_add_u32 m0, s{sT1}, {L_WD+r*928}
            s_add_u32 s{sT2}, s{sT0}, {r*896}
            buffer_load_dwordx4 v1, {srd(SWD)}, s{sT2} offen lds
            """)
        a("s_mov_b32 exec_hi, -1\nL_noffw:")

    def bisect(self, levels, tag):
        a = self.a
        L = 32
        lo, hi, mid = sA0, sA1, sTH
        a(f"""
        s_mov_b32 s{lo}, 0
        s_mov_b32 s{hi}, 0x80000000
        L_bis{tag}:
        s_add_u32 s{mid}, s{lo}, s{hi}
        s_lshr_b32 s{mid}, s{mid}, 1
        """)
        for j in range(levels):
            a(f"v_cmp_le_u32 s[{64+2*j}:{65+2*j}], s{mid}, v{L+j}")
        a(f"s_bcnt1_i32_b64 s{sA2}, s[64:65]")
        for j in range(1, levels):
            a(f"s_bcnt1_i32_b64 s{sA3}, s[{64+2*j}:{65+2*j}]\ns_add_u32 s{sA2}, s{sA2}, s{sA3}")
        a(f"""
        s_cmp_eq_u32 s{sA2}, 8
        s_cbranch_scc1 L_bisdone{tag}
        s_cmp_eq_u32 s{mid}, s{lo}
        s_cbranch_scc1 L_bisdone{tag}
        s_cmp_gt_u32 s{sA2}, 8
        s_cselect_b32 s{lo}, s{mid}, s{lo}
        s_cselect_b32 s{hi}, s{hi}, s{mid}
        s_branch L_bis{tag}
        L_bisdone{tag}:
        """)

    def extract(self, levels):
        a = self.a
        a(f"s_mov_b32 s{sA2}, 0")
        for j in range(levels):
            m = 64 + 2 * j
            a(f"""
            v_mbcnt_lo_u32_b32 v22, s{m}, 0
            v_mbcnt_hi_u32_b32 v22, s{m+1}, v22
            v_add_u32 v22, s{sA2}, v22
            v_min_u32 v22, 7, v22
            v_lshl_add_u32 v22, v22, 2, s{sA4}
            s_mov_b64 exec, s[{m}:{m+1}]
            ds_write_b32 v22, v{32+j}
            s_mov_b64 exec, -1
            """)
            if j + 1 < levels:
                a(f"s_bcnt1_i32_b64 s{sA3}, s[{m}:{m+1}]\ns_add_u32 s{sA2}, s{sA2}, s{sA3}")

    def topk(self):
        a = self.a
        a(f"""
        v_lshlrev_b32 v2, 5, v0
        s_mov_b32 s{sA1}, {WS_KEYS}
        s_lshl_b32 s{sA4}, s{sW}, 5
        s_add_u32 s{sA4}, s{sA4}, {L_SEL}
        s_waitcnt vmcnt(0)
        """)
        self.stamp("nack")
        a(f"""
        L_kpoll:
        buffer_load_dwordx4 v[32:35], v2, {srd(SWS)}, s{sA1} offen sc1
        buffer_load_dwordx4 v[36:39], v2, {srd(SWS)}, s{sA1} offen offset:16 sc1
        s_waitcnt vmcnt(0)
        """)
        self.sentinel_any(range(32, 40), 22)
        a("s_cbranch_vccz L_kok")
        self.spin_guard("L_kok")
        a("s_branch L_kpoll\nL_kok:")
        self.stamp("kok")
        self.bisect(2, "a")
        a(f"""
        v_cmp_le_u32 vcc, s{sTH}, v34
        s_cbranch_vccnz L_topslow
        """)
        self.extract(2)
        a(f"L_topdone:\nv_cmp_le_u32 s[80:81], s{sTH}, v{self.KEY}\ns_waitcnt lgkmcnt(0)")
        self.stamp("topk")

    def topk_slow(self):
        self.a("L_topslow:")
        self.bisect(8, "b")
        self.extract(8)
        self.a("s_branch L_topdone")

    def key_token(self, d, k):
        self.a(f"v_and_b32 v{d}, 0x7ff, v{k}\nv_sub_u32 v{d}, 2047, v{d}")

    def ffn(self):
        a = self.a
        a(f"""
        s_cmp_lt_i32 s{sF}, 0
        s_cbranch_scc1 L_noffn
        s_lshl_b32 s{sT0}, s{sW}, 3
        s_add_u32 s{sT0}, s{sT0}, s{sA4}
        v_mov_b32 v2, s{sT0}
        ds_read_b64 v[4:5], v2
        v_min_u32 v3, 55, v0
        v_lshlrev_b32 v3, 4, v3
        s_mul_i32 s{sT0}, s{sW}, 2112
        s_add_u32 s{sT0}, s{sT0}, {L_G}
        v_add_u32 v6, s{sT0}, v3
        s_mov_b32 s{sA0}, {WS_HN}
        s_movk_i32 s{sA1}, 896
        s_waitcnt lgkmcnt(0)
        """)
        self.key_token(4, 4)
        self.key_token(5, 5)
        a(f"""
        v_mad_u32_u24 v4, v4, s{sA1}, v3
        v_mad_u32_u24 v5, v5, s{sA1}, v3
        L_gpoll:
        buffer_load_dwordx4 v[32:35], v4, {srd(SWS)}, s{sA0} offen sc1
        buffer_load_dwordx4 v[36:39], v5, {srd(SWS)}, s{sA0} offen sc1
        v_lshrrev_b32 v8, 4, v0
        v_lshrrev_b32 v9, 2, v0
        v_and_b32 v9, 3, v9
        v_and_b32 v10, 3, v0
        v_lshlrev_b32 v10, 3, v10
        v_lshl_add_u32 v11, v8, 3, v9
        v_lshl_add_u32 v11, v11, 6, v10
        s_lshr_b32 s{sT0}, s{sW}, 1
        s_mul_i32 s{sT0}, s{sT0}, 28672
        s_and_b32 s{sT1}, s{sW}, 1
        s_lshl_b32 s{sT1}, s{sT1}, 5
        s_add_u32 s{sT0}, s{sT0}, s{sT1}
        v_add_u32 v11, s{sT0}, v11
        v_lshl_add_u32 v12, v8, 2, v9
        v_mul_u32_u24 v12, 928, v12
        s_mul_i32 s{sT0}, s{sW}, 224
        s_add_u32 s{sT0}, s{sT0}, {L_WD}
        v_add3_u32 v12, v12, v10, s{sT0}
        v_and_b32 v9, 7, v0
        v_mul_u32_u24 v13, 1056, v9
        v_lshl_add_u32 v13, v8, 4, v13
        v_add_u32 v13, {L_G}, v13
        v_lshlrev_b32 v9, 4, v9
        v_lshl_add_u32 v9, v8, 7, v9
        v_lshlrev_b32 v8, 3, v0
        v_add_u32 v8, {L_AX}, v8
        s_lshl_b32 s{sT0}, s{sW}, 9
        v_add_u32 v7, s{sT0}, v8
        s_waitcnt vmcnt(0)
        """)
        self.sentinel_any(range(32, 40), 22)
        a("s_cbranch_vccz L_gok")
        self.spin_guard("L_gok")
        a(f"""
        s_branch L_gpoll
        L_gok:
        ds_write_b128 v6, v[32:35]
        ds_write_b128 v6, v[36:39] offset:1056
        s_waitcnt lgkmcnt(0)
        s_barrier
        """)
        lq = LQ(a)
        AF, BF, WD, D = 128, 192, 64, 40

        def rd(s):
            lq.op(f"ds_read_b128 {vr(BF+4*s,4)}, v13 offset:{s*64}", s)
            lq.op(f"ds_read_b64_tr_b16 {vr(AF+4*s,2)}, v11 offset:{s*2048}", s)
            lq.op(f"ds_read_b64_tr_b16 {vr(AF+4*s+2,2)}, v11 offset:{s*2048+256}", s)

        for s in range(4):
            rd(s)
        for s in range(14):
            lq.wait(s)
            a(M16(D, AF + 4 * s, BF + 4 * s, D if s else None))
            if s + 4 < 14:
                rd(s + 4)
        for i in range(7):
            a(f"ds_read_b64_tr_b16 {vr(WD+4*i,2)}, v12 offset:{i*32}")
            a(f"ds_read_b64_tr_b16 {vr(WD+4*i+2,2)}, v12 offset:{i*32+16*928}")
        a(f"""
        v_cvt_pk_bf16_f32 v44, v{D}, v{D+1}
        v_cvt_pk_bf16_f32 v45, v{D+2}, v{D+3}
        s_cmp_ge_u32 s{sW}, 2
        s_cbranch_scc1 L_nosilu
        """)
        self.unpack(48, 44)
        self.unpack(50, 45)
        for k in range(4):
            a(f"v_mul_f32 v{52+k}, {hex(fbits(-LOG2E))}, v{48+k}")
        for k in range(4):
            a(f"v_exp_f32 v{52+k}, v{52+k}")
        for k in range(4):
            a(f"v_add_f32 v{52+k}, 1.0, v{52+k}")
        for k in range(4):
            a(f"v_rcp_f32 v{52+k}, v{52+k}")
        for k in range(4):
            a(f"v_mul_f32 v{48+k}, v{48+k}, v{52+k}")
        a(f"""
        v_cvt_pk_bf16_f32 v44, v48, v49
        v_cvt_pk_bf16_f32 v45, v50, v51
        L_nosilu:
        ds_write_b64 v7, v[44:45]
        s_waitcnt lgkmcnt(0)
        s_barrier
        ds_read_b64 v[32:33], v8
        ds_read_b64 v[36:37], v8 offset:1024
        ds_read_b64 v[34:35], v8 offset:512
        ds_read_b64 v[38:39], v8 offset:1536
        s_mul_i32 s{sT0}, s{sF}, 14336
        s_mul_i32 s{sT1}, s{sW}, 3584
        s_add_u32 s{sT0}, s{sT0}, s{sT1}
        s_add_u32 s{sT0}, s{sT0}, {WS_Y}
        s_waitcnt lgkmcnt(0)
        """)
        for k in range(4):
            self.unpack(48 + 2 * k, 32 + k)
            self.unpack(56 + 2 * k, 36 + k)
        for k in range(4):
            a(f"v_pk_mul_f32 {vr(48+2*k,2)}, {vr(48+2*k,2)}, {vr(56+2*k,2)}")
        for k in range(4):
            a(f"v_cvt_pk_bf16_f32 v{44+k}, v{48+2*k}, v{49+2*k}")
        for i in range(7):
            a(M16(128 + 4 * i, WD + 4 * i, 44))
        a("s_mov_b32 exec_lo, 0x00ff00ff\ns_mov_b32 exec_hi, 0x00ff00ff")
        for i in range(7):
            a(f"buffer_store_dwordx4 {vr(128+4*i,4)}, v9, {srd(SWS)}, s{sT0} offen offset:{512*i} sc1")
        a("s_mov_b64 exec, -1\nL_noffn:")

    def out_rows(self):
        a = self.a
        a(f"""
        ds_read_b128 v[48:51], v15 offset:{2*7680}
        ds_read_b128 v[52:55], v16 offset:{2*7680}
        v_lshrrev_b32_e64 v22, v20, s80
        v_lshrrev_b32_e64 v23, v21, s80
        v_and_b32 v22, 1, v22
        v_and_b32 v23, 1, v23
        v_cmp_eq_u32 s[{sM}:{sM+1}], 0, v22
        v_cmp_eq_u32 vcc, 0, v23
        s_waitcnt lgkmcnt(0)
        s_mov_b64 exec, s[{sM}:{sM+1}]
        s_cbranch_execz L_out1
        buffer_store_dwordx4 v[48:51], v{self.VTG}, {srd(SOUT)}, s{sROW} offen
        L_out1:
        s_and_b32 vcc_hi, vcc_hi, 0xffff
        s_mov_b64 exec, vcc
        s_cbranch_execz L_out2
        buffer_store_dwordx4 v[52:55], v{self.VTG+1}, {srd(SOUT)}, s{sROW} offen
        L_out2:
        s_mov_b64 exec, -1
        """)

    def reducer(self):
        a = self.a
        a(f"""
        s_cmp_lt_i32 s{sU}, 0
        s_cbranch_scc1 L_fin
        s_cmp_lg_u32 s{sW}, 0
        s_cbranch_scc1 L_fin
        v_and_b32 v2, 7, v0
        v_lshl_add_u32 v3, v2, 2, s{sA4}
        ds_read_b32 v4, v3
        v_lshrrev_b32 v5, 3, v0
        v_mul_u32_u24 v5, 14336, v5
        v_lshl_add_u32 v5, v2, 4, v5
        v_lshrrev_b32 v6, 4, v0
        s_lshl_b32 s{sT0}, s{sU}, 3
        v_lshl_add_u32 v6, v6, 1, s{sT0}
        s_movk_i32 s{sA1}, 896
        s_mov_b32 s{sA2}, {WS_HH}
        s_mov_b32 s{sA3}, {WS_HN}
        s_lshl_b32 s{sA0}, s{sU}, 7
        s_add_u32 s{sA0}, s{sA0}, {WS_Y}
        s_waitcnt lgkmcnt(0)
        """)
        self.key_token(7, 4)
        a(f"""
        v_mad_u32_u24 v6, v7, s{sA1}, v6
        L_rpoll:
        buffer_load_ushort v8, v6, {srd(SWS)}, s{sA2} offen sc1
        buffer_load_ushort v9, v6, {srd(SWS)}, s{sA3} offen sc1
        v_lshlrev_b32 v10, 1, v4
        v_and_b32 v10, 0xffff0000, v10
        v_ashrrev_i32 v11, 31, v10
        v_not_b32 v11, v11
        v_or_b32 v11, 0x80000000, v11
        v_xor_b32 v10, v10, v11
        v_and_b32 v10, 0xffff0000, v10
        v_mul_f32 v10, {hex(fbits(-LOG2E))}, v10
        v_exp_f32 v10, v10
        v_add_f32 v10, 1.0, v10
        v_rcp_f32 v10, v10
        v_cvt_pk_bf16_f32 v10, v10, v10
        v_and_b32 v10, 0xffff0000, v10
        s_waitcnt vmcnt(0)
        v_max_u32 v11, v8, v9
        v_cmp_eq_u32 vcc, 0xffff, v11
        s_cbranch_vccz L_rok
        """)
        self.spin_guard("L_rok")
        a(f"""
        s_branch L_rpoll
        L_rok:
        v_lshlrev_b32 v8, 16, v8
        v_lshlrev_b32 v9, 16, v9
        """)
        self.stamp("rpre")
        a("L_ypoll:")
        for i in range(7):
            a(f"""
            s_add_u32 s{sT0}, s{sA0}, {i*8*14336}
            buffer_load_dwordx4 {vr(32+4*i,4)}, v5, {srd(SWS)}, s{sT0} offen sc1
            """)
        a("s_waitcnt vmcnt(0)")
        self.sentinel_any(range(32, 60), 22)
        a("s_cbranch_vccz L_yok")
        self.spin_guard("L_yok")
        a("s_sleep 4\ns_branch L_ypoll\nL_yok:")
        for (x, y) in ((32, 36), (40, 44), (48, 52), (32, 40), (48, 56), (32, 48)):
            a(f"v_pk_add_f32 {vr(x,2)}, {vr(x,2)}, {vr(y,2)}\nv_pk_add_f32 {vr(x+2,2)}, {vr(x+2,2)}, {vr(y+2,2)}")
        for k in range(4):
            a(f"v_add_f32_dpp v{36+k}, v{32+k}, v{32+k} row_ror:8 row_mask:0xf bank_mask:0xf bound_ctrl:1")
        a(f"""
        v_permlane16_swap_b32 v36, v37
        v_permlane16_swap_b32 v38, v39
        v_add_f32 v36, v36, v37
        v_add_f32 v38, v38, v39
        v_permlane32_swap_b32 v36, v38
        v_add_f32 v36, v36, v38
        v_cvt_pk_bf16_f32 v36, v36, v36
        v_and_b32 v36, 0xffff0000, v36
        v_mul_f32 v36, v36, v10
        v_cvt_pk_bf16_f32 v36, v36, v36
        v_and_b32 v36, 0xffff0000, v36
        v_add_f32 v36, v36, v9
        v_cvt_pk_bf16_f32 v36, v36, v36
        v_and_b32 v36, 0xffff0000, v36
        v_add_f32 v36, v36, v8
        v_cvt_pk_bf16_f32 v36, v36, v36
        s_mov_b32 exec_lo, 0x00ff00ff
        s_mov_b32 exec_hi, 0x00ff00ff
        buffer_store_short v36, v6, {srd(SOUT)}, 0 offen
        s_mov_b64 exec, -1
        """)
        self.stamp("rend")

    def tail(self):
        self.p3()
        self.topk()
        self.ffn()
        self.out_rows()
        self.reducer()

    def redo(self):
        self.topk_slow()
        super().redo()


if __name__ == "__main__":
    g = Full()
    s, n = g.build()
    sys.stdout.write(s)
    print("pads:", n, file=sys.stderr)
```

```python
import sys, os, struct
sys.path.insert(0, os.path.dirname(os.path.abspath(__file__)))
from asmb import Asm

NAME = "sequential_preLN__mha_block__moe_arch_mod__prompt_kernel"

WS_EPOCH = 0
WS_KVF = 0x1000
WS_CLF = 0x3000
WS_KEYS = 0x4000
WS_STATS = 0x20000
WS_KV = 0x100000
KVS = 4352
WS_OF = 0x580000
WS_HN = 0x780000
WS_HH = 0x800000
WS_Y = 0xB00000
WS_TS = 0xC00000
WS_SIZE = 0x1000000

L_W = 0
L_XR = 86016
L_CS = 151552
L_RS = 154624
L_QX = 155648
L_WO = 0
L_CB = 114688
L_ST = 147456
L_TR = 114688
L_SEL = 149504
L_AX = 149760
L_G = 138240
L_WG = 0
L_WU = 28672
L_WD = 57344
LDS_BYTES = 163840

SX, SWQ, SWS, SWO, SOUT, SWG, SWU, SWD, SWR = 8, 12, 16, 20, 24, 28, 32, 36, 40
sW, sH, sB, sT, sC, sNON, sI, sXCD = 44, 45, 46, 47, 48, 49, 50, 51
sKG = 52
sXO = 59
sONE = 60
sT0, sT1, sT2 = 61, 62, 63
sLO = 86
sM = 88
sA0, sA1, sA2, sA3, sA4, sA5 = 90, 91, 92, 93, 94, 95
sKVF, sKVO = 82, 83
sSPIN = 96
sPASS = 97
sTH = 98
sKT = 64
SPIN_MAX = 1 << 17

LOG2E = 1.4426950408889634


def fbits(x):
    return struct.unpack("<I", struct.pack("<f", x))[0]


def srd(r):
    return f"s[{r}:{r+3}]"


def vr(a, n):
    return f"v[{a}:{a+n-1}]" if n > 1 else f"v{a}"


def M32(d, a, b, c=None):
    return f"v_mfma_f32_32x32x16_bf16 {vr(d,16)}, {vr(a,4)}, {vr(b,4)}, {vr(c,16) if c is not None else 0}"


def M16(d, a, b, c=None):
    return f"v_mfma_f32_16x16x32_bf16 {vr(d,4)}, {vr(a,4)}, {vr(b,4)}, {vr(c,4) if c is not None else 0}"


def lines(t):
    return [x.strip() for x in t.strip().split("\n") if x.strip()]


class LQ:
    def __init__(self, a):
        self.a, self.q = a, []

    def op(self, text, tag):
        self.a(text)
        self.q.append(tag)

    def wait(self, tag):
        k = max(i for i, t in enumerate(self.q) if t == tag)
        self.a(f"s_waitcnt lgkmcnt({min(len(self.q) - 1 - k, 15)})")


sF, sU = 3, 4
sWOS, sWOM = 5, 6
sROW = 7
OOB = 0x7F000000


class Gen:
    def __init__(self, stop=None, ts=False, rot=True, force_fb=False, **kw):
        self.a = Asm()
        self.stop = stop
        self.ts = ts
        self.rot = rot
        self.force_fb = force_fb
        self.nts = 0
        self.tsn = []
        for k, v in kw.items():
            setattr(self, k, v)

    amp = None
    ampg = 80

    def stamp(self, name=""):
        if self.amp:
            if name == "entry":
                self.a("s_memrealtime s[100:101]")
            elif name == self.amp:
                self.a("s_memrealtime s[84:85]\ns_waitcnt lgkmcnt(0)")
        if not self.ts:
            return
        k = self.nts
        self.nts += 1
        self.tsn.append(name)
        assert k < 32
        self.a(f"""
        s_memrealtime s[100:101]
        s_waitcnt lgkmcnt(0)
        v_writelane_b32 v254, s100, {k}
        s_memtime s[100:101]
        s_waitcnt lgkmcnt(0)
        v_writelane_b32 v254, s100, {32+k}
        """.replace("v254", self.TSV))

    def spin_guard(self, out_label):
        self.a(f"""
        s_add_u32 s{sSPIN}, s{sSPIN}, 1
        s_cmp_gt_u32 s{sSPIN}, {SPIN_MAX}
        s_cbranch_scc1 {out_label}
        """)

    def xhalf_sum(self, x, t):
        self.a(f"""
        v_mov_b32 v{t}, v{x}
        v_permlane32_swap_b32 v{x}, v{t}
        v_add_f32 v{x}, v{x}, v{t}
        """)

    def ln_scalars(self, S1, S2, mb, rs, t0, t1):
        self.a(f"""
        v_mul_f32 v{mb}, {hex(fbits(1/448))}, v{S1}
        v_mul_f32 v{t0}, {hex(fbits(1/448))}, v{S2}
        v_fma_f32 v{t0}, -v{mb}, v{mb}, v{t0}
        v_max_f32 v{t0}, 0, v{t0}
        v_cvt_pk_bf16_f32 v{t1}, v{mb}, v{t0}
        v_lshlrev_b32 v{mb}, 16, v{t1}
        v_and_b32 v{t0}, 0xffff0000, v{t1}
        v_add_f32 v{t0}, {hex(fbits(1e-5))}, v{t0}
        v_cvt_pk_bf16_f32 v{t0}, v{t0}, v{t0}
        v_and_b32 v{t0}, 0xffff0000, v{t0}
        v_sqrt_f32 v{t0}, v{t0}
        v_cvt_pk_bf16_f32 v{t0}, v{t0}, v{t0}
        v_and_b32 v{t0}, 0xffff0000, v{t0}
        v_rcp_f32 v{rs}, v{t0}
        """)

    def neg_split2(self, d, x, t):
        self.a(f"""
        v_cvt_pk_bf16_f32 v{t}, -v{x}, -v{x}
        v_and_b32 v{t}, 0xffff0000, v{t}
        v_sub_f32 v{d}, -v{x}, v{t}
        v_cvt_pk_bf16_f32 v{d}, v{t}, v{d}
        """.replace("v_sub_f32 ", "v_sub_f32_e64 "))

    def prologue(self):
        a = self.a
        a(f"""
        s_cmp_ge_u32 s2, 256
        s_cbranch_scc1 L_end
        """)
        self.stamp("entry")
        a(f"""
        s_load_dwordx16 s[64:79], s[0:1], 0
        s_load_dwordx4 s[80:83], s[0:1], 64
        s_load_dwordx2 s[84:85], s[0:1], 80
        v_lshrrev_b32 v1, 6, v0
        v_and_b32 v0, 63, v0
        s_and_b32 s{sXCD}, s2, 7
        s_lshr_b32 s{sI}, s2, 3
        v_readfirstlane_b32 s{sW}, v1
        s_lshr_b32 s{sT0}, s{sXCD}, 1
        s_and_b32 s{sT1}, s{sXCD}, 1
        s_and_b32 s{sC}, s{sI}, 3
        s_lshr_b32 s{sT2}, s{sI}, 2
        s_lshl_b32 s{sH}, s{sT0}, 2
        s_add_u32 s{sH}, s{sH}, s{sC}
        s_lshl_b32 s{sH}, s{sH}, 2
        s_mov_b32 s{sA0}, {self.HMAP & 0xffffffff}
        s_mov_b32 s{sA1}, {self.HMAP >> 32}
        s_lshr_b64 s[{sA0}:{sA1}], s[{sA0}:{sA1}], s{sH}
        s_and_b32 s{sH}, s{sA0}, 15
        s_lshl_b32 s{sB}, s{sT1}, 3
        s_add_u32 s{sB}, s{sB}, s{sT2}
        s_lshl_b32 s{sT}, s{sT1}, 5
        s_lshl_b32 s{sT0}, s{sT0}, 3
        s_add_u32 s{sT}, s{sT}, s{sT0}
        s_add_u32 s{sT}, s{sT}, s{sT2}
        s_mov_b32 s{sONE}, 0x3f803f80
        s_mov_b32 s{sLO}, -1
        s_mov_b32 s{sLO+1}, 0
        s_mov_b32 s{sSPIN}, 0
        s_mov_b32 s{sPASS}, 0
        """)
        self.roles()
        a(f"""
        s_cmp_eq_u32 s{sW}, 4
        s_cbranch_scc1 L_helper
        """)
        if self.ROT == 7:
            a(f"""
            s_lshl_b32 s{sA0}, s{sC}, 1
            s_add_u32 s{sA0}, s{sA0}, s{sT2}
            s_cmp_ge_u32 s{sA0}, 7
            s_cselect_b32 s{sA1}, 7, 0
            s_sub_u32 s{sA0}, s{sA0}, s{sA1}
            """)
        elif self.ROT in (2, 4):
            a(f"""
            s_add_u32 s{sA0}, s{sC}, s{sT2}
            s_and_b32 s{sA0}, s{sA0}, {self.ROT-1}
            s_mul_i32 s{sA0}, s{sA0}, {self.ROTS}
            """)
        else:
            a(f"s_mov_b32 s{sA0}, 0")
        a(f"""
        v_lshrrev_b32 v22, 3, v0
        v_mul_u32_u24 v22, 896, v22
        v_lshrrev_b32 v23, 4, v0
        v_and_b32 v24, 7, v0
        v_xor_b32 v23, v23, v24
        v_lshl_add_u32 v1, v23, 4, v22
        v_xor_b32 v23, 4, v23
        v_lshl_add_u32 v2, v23, 4, v22
        v_add_u32 v2, {7168-1024}, v2
        v_add_u32 v3, {2*(7168-1024)}, v1
        v_add_u32 v4, {2*(7168-1024)}, v2
        v_lshrrev_b32 v22, 2, v0
        v_mul_u32_u24 v22, 2688, v22
        v_and_b32 v23, 3, v0
        v_lshlrev_b32 v23, 4, v23
        v_min_u32 v23, 40, v23
        v_add_u32 v5, v23, v22
        """)
        a(f"""
        s_lshl_b32 s{sXO}, s{sB}, 2
        s_add_u32 s{sXO}, s{sXO}, s{sW}
        s_mul_i32 s{sXO}, s{sXO}, {32*896}
        """)
        for G in range(7):
            a(f"s_mov_b32 s{sKG+G}, s{sA0}")
            if G < 6:
                a(f"""
                s_add_u32 s{sA0}, s{sA0}, 1
                s_cmp_eq_u32 s{sA0}, 7
                s_cselect_b32 s{sA0}, 0, s{sA0}
                """)
        a(f"""
        s_mul_i32 s{sA1}, s{sW}, {16*2688}
        s_mul_i32 s{sA2}, s{sH}, 56
        s_add_u32 s{sA1}, s{sA1}, s{sA2}
        s_add_u32 s{sA1}, s{sA1}, 896
        s_lshl_b32 s{sA2}, s{sW}, 14
        s_add_u32 s{sA2}, s{sA2}, {L_XR}
        s_mul_i32 s{sA3}, s{sW}, 21504
        s_waitcnt lgkmcnt(0)
        s_add_u32 s84, s84, {self.WSB << 20}
        s_addc_u32 s85, s85, 0
        s_load_dword s{sNON}, s[84:85], 0
        s_mov_b32 s{SX}, s64
        s_mov_b32 s{SX+1}, s65
        s_mov_b32 s{SX+2}, {2048*896}
        s_mov_b32 s{SX+3}, 0x20000
        s_mov_b32 s{SWQ}, s66
        s_mov_b32 s{SWQ+1}, s67
        s_mov_b32 s{SWQ+2}, {448*2688}
        s_mov_b32 s{SWQ+3}, 0x20000
        """)
        a("\n".join(self.dma_x(0) + self.dma_w(0) + self.dma_x(1)))
        self.srds()
        a(f"""
        v_and_b32 v22, 31, v0
        v_lshrrev_b32 v23, 5, v0
        v_lshrrev_b32 v24, 1, v22
        v_and_b32 v24, 7, v24
        v_xor_b32 v24, v24, v23
        v_lshlrev_b32 v22, 7, v22
        v_add_u32 v22, s{sA2}, v22
        v_lshrrev_b32 v25, 2, v0
        v_and_b32 v25, 3, v25
        v_lshl_add_u32 v25, v23, 3, v25
        v_lshlrev_b32 v25, 6, v25
        v_lshrrev_b32 v26, 4, v0
        v_and_b32 v26, 1, v26
        v_lshl_add_u32 v25, v26, 5, v25
        v_lshrrev_b32 v27, 1, v0
        v_and_b32 v27, v27, v26
        v_and_b32 v26, 3, v0
        v_xor_b32 v26, v26, v27
        v_lshl_add_u32 v25, v26, 3, v25
        """)
        for p in range(4):
            a(f"""
            s_add_u32 s{sT0}, s{sW}, {p}
            s_and_b32 s{sT0}, s{sT0}, 3
            s_lshl_b32 s{sT1}, s{sT0}, 1
            s_mul_i32 s{sT2}, s{sT0}, 21504
            v_xor_b32 v26, s{sT1}, v24
            v_lshl_add_u32 v{6+p}, v26, 4, v22
            v_add_u32 v{10+p}, s{sT2}, v25
            """)
        for r in list(range(14, 22)) + [31, 97, 98, 99, 101, 102, 103, 105, 106, 107]:
            a(f"v_mov_b32 v{r}, 0")
        a("\n".join(self.dma_w(1) + self.dma_x(2)))
        for p in range(4):
            a(f"""
            s_add_u32 s{sT0}, s{sW}, {p+1}
            s_and_b32 s{sT0}, s{sT0}, 3
            s_lshl_b32 s{sT0}, s{sT0}, 11
            s_add_u32 s{sT0}, s{sT0}, {L_QX}
            v_lshl_add_u32 v{124+p}, v0, 4, s{sT0}
            """)
        a(f"""
        s_lshl_b32 s{sT0}, s{sH}, 2
        s_add_u32 s{sT0}, s{sT0}, s{sW}
        s_lshl_b32 s{sT0}, s{sT0}, 7
        s_add_u32 s{sKVF}, s{sT0}, {WS_KVF}
        s_lshl_b32 s{sT1}, s{sB}, 2
        s_add_u32 s{sKVO}, s{sT1}, s{sKVF}
        s_lshl_b32 s{sT0}, s{sH}, 6
        s_add_u32 s{sT0}, s{sT0}, s{sW}
        s_mul_i32 s{sT0}, s{sT0}, {KVS}
        s_add_u32 s{sT0}, s{sT0}, {WS_KV}
        """)
        for i in range(16):
            a(f"""
            s_add_u32 s{sT1}, s{sB}, {i}
            s_and_b32 s{sT1}, s{sT1}, 15
            s_mul_i32 s{sT1}, s{sT1}, {4*KVS}
            s_add_u32 s{sKT+i}, s{sT1}, s{sT0}
            """)
        self.stamp("issued")

    def roles(self):
        self.a(f"""
        s_lshr_b32 s{sT0}, s{sI}, 2
        s_sub_u32 s{sT0}, s{sI}, s{sT0}
        s_sub_u32 s{sT0}, s{sT0}, 1
        s_mul_i32 s{sT1}, s{sXCD}, 7
        s_add_u32 s{sF}, s{sT0}, s{sT1}
        s_cmp_lt_u32 s{sI}, 10
        s_cselect_b32 s{sF}, s{sF}, -1
        s_cmp_eq_u32 s{sC}, 0
        s_cselect_b32 s{sF}, -1, s{sF}
        s_mul_i32 s{sT1}, s{sXCD}, 14
        s_sub_u32 s{sT0}, s{sI}, 10
        s_add_u32 s{sU}, s{sT0}, s{sT1}
        s_cmp_lt_u32 s{sT0}, 14
        s_cselect_b32 s{sU}, s{sU}, -1
        s_mul_i32 s{sROW}, s{sT}, {32*896}
        s_mul_i32 s{sT0}, s{sC}, 224
        s_add_u32 s{sROW}, s{sROW}, s{sT0}
        """)

    def cand_base(self, d, w):
        w = f"s{w}" if w >= 4 else str(w)
        self.a(f"""
        s_lshl_b32 s{sT0}, s{sT}, 1
        s_and_b32 s{sT1}, {w}, 1
        s_add_u32 s{sT0}, s{sT0}, s{sT1}
        s_mul_i32 s{sT0}, s{sT0}, {4*896}
        s_mul_i32 s{sT1}, s{sC}, 224
        s_add_u32 s{sT0}, s{sT0}, s{sT1}
        s_lshr_b32 s{sT1}, {w}, 1
        s_mul_i32 s{sT1}, s{sT1}, {WS_HH-WS_HN}
        s_add_u32 s{sT0}, s{sT0}, s{sT1}
        s_add_u32 s{d}, s{sT0}, {WS_HN}
        """)

    def srds(self):
        for r, p, n in ((SWS, 84, WS_SIZE), (SWO, 68, 448 * 896), (SOUT, 80, 2048 * 896), (SWG, 74, 448 * 3584),
                        (SWU, 76, 448 * 3584), (SWD, 78, 1792 * 896), (SWR, 72, 896)):
            self.a(f"""
            s_mov_b32 s{r}, s{p}
            s_mov_b32 s{r+1}, s{p+1}
            s_mov_b32 s{r+2}, {n}
            s_mov_b32 s{r+3}, 0x20000
            """)

    def dma_x(self, G):
        if G > 6:
            return []
        return lines(f"""
        s_lshl_b32 s{sT0}, s{sKG+G}, 7
        s_add_u32 m0, s{sA2}, {(G%4)*4096}
        s_add_u32 s{sT0}, s{sT0}, s{sXO}
        buffer_load_dwordx4 v1, {srd(SX)}, s{sT0} offen lds
        buffer_load_dwordx4 v2, {srd(SX)}, s{sT0} offen offset:1024 lds
        buffer_load_dwordx4 v3, {srd(SX)}, s{sT0} offen offset:2048 lds
        buffer_load_dwordx4 v4, {srd(SX)}, s{sT0} offen offset:3072 lds
        """)

    def dma_w(self, G):
        return lines(f"""
        s_mul_i32 s{sKG+G}, s{sKG+G}, {64*2688}
        s_add_u32 m0, s{sA3}, {L_W+G*3072}
        s_add_u32 s{sKG+G}, s{sKG+G}, s{sA1}
        s_sub_u32 s{sT1}, s{sKG+G}, 128
        buffer_load_dwordx4 v5, {srd(SWQ)}, s{sKG+G} offen lds
        buffer_load_dwordx4 v5, {srd(SWQ)}, s{sT1} offen offset:1024 lds
        """)

    def dma_q(self, G):
        return [f"s_add_u32 m0, s{sA3}, {L_W+G*3072+2048}", f"s_sub_u32 s{sT1}, s{sKG+G}, 896",
                f"buffer_load_dwordx4 v5, {srd(SWQ)}, s{sT1} offen lds"]

    LA = 2
    HMAP = sum(h << (4 * k) for k, h in enumerate(range(16)))
    TSV = 'v29'
    ATS = 0
    P1S = 0
    FLAGAT = 24
    ROT = 2
    ROTS = 1
    NT = 0

    def touches(self):
        return []

    def p1(self):
        a = self.a
        XF, AK, AV, AQ, WF = 128, 32, 48, 64, 80
        XE = 96
        RS = 108
        KO, VO = 240, 248
        s1, s2, csK, csV = (14, 15), (16, 17), 18, 19
        WEK, WEV = 100, 104
        queue = [("x", 0)] * 4 + [("w", 0)] * 2 + [("x", 1)] * 4 + [("w", 1)] * 2 + [("x", 2)] * 4

        def newer(tag):
            k = max(i for i, t in enumerate(queue) if t == tag)
            return len(queue) - 1 - k

        def xstats(G):
            for n in range(4 * G, 4 * G + 4):
                for i in range(4):
                    a(f"v_dot2c_f32_bf16 v{s1[i%2]}, s{sONE}, v{XF+4*n+i}")
                    a(f"v_dot2c_f32_bf16 v{s2[i%2]}, v{XF+4*n+i}, v{XF+4*n+i}")

        WBS = ([80, 88, 240, 248], [64, 72, 108, 116])

        def xreads(G):
            return [f"ds_read_b128 {vr(XF+4*(4*G+q),4)}, v{6+q} offset:{(G%4)*4096}" for q in range(4)] if G < 7 else []

        def wreads(G):
            WB = WBS[G % 2]
            return [f"ds_read_b64_tr_b16 {vr(WB[p]+4*t+2*hlf,2)}, v{10+p} offset:{G*3072+t*1024+hlf*256}"
                    for p in range(4) for t in range(2) for hlf in range(2)]

        def batch(G):
            r = []
            if G <= 6:
                r = self.dma_w(G) + self.dma_x(G + 1)
                queue.extend([("w", G)] * 2 + ([("x", G + 1)] * 4 if G < 6 else []))
            return r

        a(f"s_waitcnt vmcnt({newer(('x', 0))})")
        for x in xreads(0):
            a(x)
        a("s_waitcnt lgkmcnt(0)")
        a(f"""
        s_mul_i32 s{sNON}, s{sNON}, 0x19660d
        s_add_u32 s{sNON}, s{sNON}, 0x3c6ef35f
        v_mov_b32 v30, s{sNON}
        """)
        xstats(0)
        a(f"s_waitcnt vmcnt({newer(('x', 1))})\ns_barrier")
        self.stamp("g0")
        for x in wreads(0)[:4] + xreads(1) + wreads(0)[4:]:
            a(x)
        for x in batch(2):
            a(x)
        qsched = {4: [0, 1, 2, 3], 5: [4, 5, 6]}
        for G in range(7):
            WB = WBS[G % 2]
            if self.P1S:
                self.stamp(f"G{G}")
            a("s_waitcnt lgkmcnt(12)")
            for i in range(4):
                a(f"v_dot2c_f32_bf16 v{csK}, s{sONE}, v{WB[0]+i}")
                a(f"v_dot2c_f32_bf16 v{csV}, s{sONE}, v{WB[0]+4+i}")
            if G < 6:
                xstats(G + 1)
            else:
                a(f"""
                ds_write_b32 v24, v{csK}
                ds_write_b32 v24, v{csV} offset:1024
                """)
            gaps = [[] for _ in range(8)]
            early = batch(G + 3)
            for k in qsched.get(G, ()):
                early += self.dma_q(k)
                queue.append(("q", k))
            if G == 4:
                early += lines(f"""v_and_b32 v22, 31, v0
                v_lshlrev_b32 v22, 5, v22
                v_add_u32 v23, {L_CS}, v22
                v_lshrrev_b32 v24, 5, v0
                s_lshl_b32 s{sT0}, s{sW}, 3
                v_lshl_add_u32 v24, v24, 2, v23
                v_add_u32 v24, s{sT0}, v24""")
            if G == 5:
                sub = Gen()
                sub.a(f"""
                v_add_f32 v14, v14, v15
                v_add_f32 v16, v16, v17
                v_permlane32_swap_b32 v14, v16
                v_add_f32 v14, v14, v16
                v_mov_b32 v16, v14
                v_permlane32_swap_b32 v14, v16
                """)
                sub.ln_scalars(14, 16, 26, 28, 15, 17)
                sub.a(f"""
                v_lshrrev_b32 v15, 16, v26
                v_or_b32 v15, v15, v26
                v_cndmask_b32 v{XE}, 0, v15, s[{sLO}:{sLO+1}]
                v_and_b32 v15, 31, v0
                s_lshl_b32 s{sT0}, s{sW}, 7
                s_add_u32 s{sT0}, s{sT0}, {L_RS}
                v_lshl_add_u32 v15, v15, 2, s{sT0}
                v_lshrrev_b32 v25, 5, v0
                v_lshl_add_u32 v25, v25, 4, s{sT0}
                ds_write_b32 v15, v28
                """)
                stats = [x[1].text for x in sub.a.items]
                early = early + stats[:8]
                stats = stats[8:]
            if G < 6:
                per = -(-len(early) // 3)
                for k in range(3):
                    gaps[k] = early[k * per:(k + 1) * per]
                w = wreads(G + 1)
                rd = w[:4] + xreads(G + 2) + w[4:]
                gaps[2] += [f"s_waitcnt vmcnt({newer(('x', G+2) if G < 5 else ('w', 6))})", "s_barrier"]
                per = -(-len(rd) // 5)
                for k in range(5):
                    gaps[3 + k] = rd[per * k:per * k + per]
            else:
                sub = Gen()
                for mat, we in ((0, WEK), (1, WEV)):
                    r = RS + 8 * mat
                    sub.a(f"""
                    v_add_f32 v{r}, v{r}, v{r+1}
                    v_add_f32 v{r+2}, v{r+2}, v{r+3}
                    v_add_f32 v{r+4}, v{r+4}, v{r+5}
                    v_add_f32 v{r+6}, v{r+6}, v{r+7}
                    v_add_f32 v{r}, v{r}, v{r+2}
                    v_add_f32 v{r+4}, v{r+4}, v{r+6}
                    v_add_f32 v{r}, v{r}, v{r+4}
                    """)
                    sub.neg_split2(we, r, 22)
                Bc = [x[1].text for x in sub.a.items]
                gaps[0] = stats[:4] + ["s_waitcnt lgkmcnt(0)", "s_barrier"] + \
                    [f"ds_read_b128 {vr(RS+4*i,4)}, v23 offset:{(i//2)*1024+(i%2)*16}" for i in range(4)]
                A = stats[4:]
                mix = A[:6] + ["s_waitcnt lgkmcnt(0)"]
                A = A[6:]
                while A or Bc:
                    mix += A[:1] + Bc[:2]
                    A, Bc = A[1:], Bc[2:]
                per = -(-len(mix) // 7)
                for k in range(7):
                    gaps[1 + k] = mix[k * per:(k + 1) * per]
            for p in range(4):
                m = 4 * G + p
                if p == 1 and G < 6:
                    a("s_waitcnt lgkmcnt(0)")
                a(M32(AK, WB[p], XF + 4 * m, AK if m else None))
                for x in gaps[2 * p]:
                    a(x)
                a(M32(AV, XF + 4 * m, WB[p] + 4, AV if m else None))
                for x in gaps[2 * p + 1]:
                    a(x)
        a(M32(AK, WEK, XE, AK))
        a("s_waitcnt lgkmcnt(0)")
        for g in range(4):
            a(f"ds_read_b128 {vr(RS+4*g,4)}, v25 offset:{g*32}")
        a(M32(AV, XE, WEV, AV))
        a(f"""
        v_lshlrev_b32 v1, 4, v0
        v_and_b32 v22, 31, v0
        v_cmp_gt_u32 vcc, 28, v22
        v_mov_b32 v14, s{sONE}
        v_mov_b32 v27, 0x3f80
        v_cndmask_b32 v15, 0, -1, vcc
        v_cmp_eq_u32 vcc, 28, v22
        """)
        for i in range(8):
            a(f"v_pk_mul_f32 {vr(AK+2*i,2)}, {vr(AK+2*i,2)}, {vr(28,2)} op_sel_hi:[1,0]")
        a("v_cndmask_b32 v22, 0, v14, vcc")
        for i in range(8):
            a(f"v_cvt_pk_bf16_f32 v{KO+i}, v{AK+2*i}, v{AK+2*i+1}")
            if i == 3:
                a(f"buffer_store_dwordx4 {vr(KO,4)}, v1, {srd(SWS)}, s{sKT} offen sc1")
        a(f"""
        v_cndmask_b32 v{KO+6}, v14, v{KO+6}, s[{sLO}:{sLO+1}]
        v_cndmask_b32 v{KO+7}, v27, v{KO+7}, s[{sLO}:{sLO+1}]
        buffer_store_dwordx4 {vr(KO+4,4)}, v1, {srd(SWS)}, s{sKT} offen offset:1024 sc1
        s_waitcnt lgkmcnt(0)
        """)
        for hf in range(2):
            for i in range(4 * hf, 4 * hf + 4):
                a(f"v_pk_mul_f32 {vr(AV+2*i,2)}, {vr(AV+2*i,2)}, {vr(RS+2*i,2)}")
            for i in range(4 * hf, 4 * hf + 4):
                a(f"v_cvt_pk_bf16_f32 v{VO+i}, v{AV+2*i}, v{AV+2*i+1}")
            for i in range(4 * hf, 4 * hf + 4):
                a(f"v_and_or_b32 v{VO+i}, v{VO+i}, v15, v22")
            a(f"buffer_store_dwordx4 {vr(VO+4*hf,4)}, v1, {srd(SWS)}, s{sKT} offen offset:{2048+1024*hf} sc1")
        a(f"v_lshlrev_b32 v6, 2, v0\nv_add_u32 v6, 4096, v6")
        a("\n".join(self.kv_sum(KO, 7)))
        a(f"buffer_store_dword v7, v6, {srd(SWS)}, s{sKT} offen sc1")
        queue.extend([("st", 0)] * 5)
        self.stamp("kvpub")
        QR = 32
        lq = LQ(a)
        order = list(range(20)) + [24, 20, 21, 22, 23, 25, 26, 27]
        stage_end = {0: 1, 8: 4, 20: 6}

        def qread(n):
            G, p = divmod(order[n], 4)
            if n in stage_end:
                if self.P1S and n:
                    self.stamp(f"q{n}")
                a(f"s_waitcnt vmcnt({newer(('q', stage_end[n]))})\ns_barrier")
            for hlf in range(2):
                lq.op(f"ds_read_b64_tr_b16 {vr(QR+4*(n%8)+2*hlf,2)}, v{10+p} offset:{G*3072+2048+hlf*256}", n)

        PD = 3
        a(f"s_mov_b32 s{sA0}, 0xffff0000")
        for n in range(PD):
            qread(n)
        U = 108
        sub = Gen()
        sub.a(f"""
        v_add_f32 v{RS}, v{RS}, v{RS+1}
        v_add_f32 v{RS+2}, v{RS+2}, v{RS+3}
        v_add_f32 v{RS+4}, v{RS+4}, v{RS+5}
        v_add_f32 v{RS+6}, v{RS+6}, v{RS+7}
        v_add_f32 v{RS}, v{RS}, v{RS+2}
        v_add_f32 v{RS+4}, v{RS+4}, v{RS+6}
        v_add_f32 v{RS}, v{RS}, v{RS+4}
        """)
        sub.neg_split2(WEV, RS, 22)
        fin = [x[1].text for x in sub.a.items]
        for n in range(28):
            lq.wait(n)
            a(M32(AQ, QR + 4 * (n % 8), XF + 4 * order[n], AQ if n else None))
            if n + PD < 28:
                qread(n + PD)
            unp = lambda fr, u, k: f"v_lshlrev_b32 v{u+2*k}, 16, v{fr+k}\nv_and_b32 v{u+2*k+1}, s{sA0}, v{fr+k}"
            add = lambda u, k: f"v_add_f32 v{20+k%2}, v{20+k%2}, v{u+k}"
            if n < 20:
                p = n % 4
                fr = QR + 4 * ((n - p) % 8)
                if p < 2:
                    a(unp(fr, U, 2 * p) + "\n" + unp(fr, U, 2 * p + 1))
                else:
                    for k in range(4 * (p - 2), 4 * (p - 2) + 4):
                        a(add(U, k))
            elif n in (20, 21):
                for k in range(4):
                    a(unp(QR + 4 * (n % 8), U + 8 * (n - 20), k))
            elif n == 22:
                for k in range(16):
                    a(add(U, k))
                a("v_add_f32 v20, v20, v21")
                lq.op("ds_write_b32 v24, v20 offset:2048", "cs")
            elif n == 23:
                a(f"v_mul_f32 v28, {hex(fbits(LOG2E*28**-0.5))}, v28")
                lq.wait("cs")
                a("s_barrier")
                lq.op(f"ds_read_b128 {vr(RS,4)}, v23 offset:2048", "r")
                lq.op(f"ds_read_b128 {vr(RS+4,4)}, v23 offset:2064", "r")
            if n == self.FLAGAT:
                a(f"""
                s_waitcnt vmcnt(0)
                s_mov_b64 exec, 1
                buffer_store_dword v30, v31, {srd(SWS)}, s{sKVO} offen sc1
                s_mov_b64 exec, -1
                """)
            if n == 25:
                lq.wait("r")
                a("\n".join(fin[:6]))
            if n == 26:
                a("\n".join(fin[6:]))
        if self.P1S:
            self.stamp("qmm")
        a(M32(AQ, WEV, XE, AQ))
        if self.EARLY:
            a("\n".join(self.kv_load(1, k) for k in range(5)))
        QO = 80
        for i in range(8):
            a(f"v_pk_mul_f32 {vr(AQ+2*i,2)}, {vr(AQ+2*i,2)}, {vr(28,2)} op_sel_hi:[1,0]")
        for i in range(8):
            a(f"v_cvt_pk_bf16_f32 v{QO+i}, v{AQ+2*i}, v{AQ+2*i+1}")
        a(f"""
        v_cndmask_b32 v{QO+6}, 0, v{QO+6}, s[{sLO}:{sLO+1}]
        v_cndmask_b32 v{QO+7}, 0, v{QO+7}, s[{sLO}:{sLO+1}]
        """)
        S = 32
        a(M32(S, KO, QO))
        a(M32(S, KO + 4, QO + 4, S))
        a(f"ds_write_b128 v127, {vr(QO,4)}")
        a(f"""
        v_and_b32 v2, 15, v0
        v_lshlrev_b32 v2, 2, v2
        s_mov_b32 s{sA2}, 0x00010001
        s_lshl_b32 s{sA2}, s{sA2}, s{sB}
        s_mov_b32 s{sA3}, s{sA2}
        """)
        if self.P1S:
            self.stamp("smm")
        self.rowmax16(S, 22)
        if self.force_fb:
            a("v_add_f32 v22, 0xc3480000, v22")
        self.shift_split(22, 23, 24, 25)
        a(f"""
        v_cndmask_b32 v{QO+6}, v23, v{QO+6}, s[{sLO}:{sLO+1}]
        v_cndmask_b32 v{QO+7}, v24, v{QO+7}, s[{sLO}:{sLO+1}]
        ds_write_b128 v127, {vr(QO+4,4)} offset:1024
        s_waitcnt lgkmcnt(0)
        s_barrier
        """)
        for p in range(4):
            a(f"ds_read_b128 {vr(128+8*p,4)}, v{124+p}")
            a(f"ds_read_b128 {vr(128+8*p+4,4)}, v{124+p} offset:1024")
        self.stamp("qdone")

    def rowmax16(self, S, d):
        self.a(f"""
        v_max3_f32 v{d}, v{S}, v{S+1}, v{S+2}
        v_max3_f32 v{d+1}, v{S+3}, v{S+4}, v{S+5}
        v_max3_f32 v{d}, v{d}, v{S+6}, v{S+7}
        v_max3_f32 v{d+1}, v{d+1}, v{S+8}, v{S+9}
        v_max3_f32 v{d}, v{d}, v{S+10}, v{S+11}
        v_max3_f32 v{d+1}, v{d+1}, v{S+12}, v{S+13}
        v_max3_f32 v{d}, v{d}, v{S+14}, v{S+15}
        v_max_f32 v{d}, v{d}, v{d+1}
        v_mov_b32 v{d+1}, v{d}
        v_permlane32_swap_b32 v{d}, v{d+1}
        v_max_f32 v{d}, v{d}, v{d+1}
        """)

    def shift_split(self, m, d6, d7, t):
        self.a(f"""
        v_cvt_pk_bf16_f32 v{d6}, -v{m}, -v{m}
        v_and_b32 v{d6}, 0xffff0000, v{d6}
        v_sub_f32_e64 v{d7}, -v{m}, v{d6}
        v_cvt_pk_bf16_f32 v{t}, v{d7}, v{d7}
        v_and_b32 v{t}, 0xffff0000, v{t}
        v_sub_f32 v{d7}, v{d7}, v{t}
        v_cvt_pk_bf16_f32 v{d6}, v{d6}, v{t}
        v_cvt_pk_bf16_f32 v{d7}, v{d7}, 0
        """)

    Q, O, SA, SB, TT, P = 128, 160, 32, 48, 64, 72
    KVB = (240, 224, 80, 96)
    XR2, W2, S4 = 240, 120, 112
    VTG = 116

    def unit(self, i, qt, extra):
        a = self.a
        Q, O, TT, P, B = self.Q, self.O, self.TT, self.P, self.KVB
        n = 4 * i + qt
        buf, bufn, bufp = B[i % 4], B[(i + 1) % 4], B[(i - 1) % 4]
        Sc, Sn = (self.SA, self.SB) if n % 2 == 0 else (self.SB, self.SA)
        kn = buf if qt < 3 else bufn
        qn, qp = (qt + 1) % 4, (qt - 1) % 4
        vp = (buf if qt > 0 else bufp) + 8
        ms = [M32(Sn, kn, Q + 8 * qn), M32(O + 16 * qp, vp + 4, P + 4, O + 16 * qp),
              M32(Sn, kn + 4, Q + 8 * qn + 4, Sn),
              M32(O + 16 * qt, buf + 8, P, None if i == 0 else O + 16 * qt)]
        for g in range(4):
            for x in extra.get(("pre", g), ()):
                a(x)
            if not (n == 0 and g == 1) and not (n == 63 and g in (0, 2)):
                a(ms[g])
            for x in extra.get(g, ()):
                a(x)
            tb, tp, pp = TT + 4 * (g % 2), TT + 4 * ((g + 1) % 2), P + 2 * ((g - 1) % 4)
            a(f"v_exp_f32 v{tb}, v{Sc+4*g}")
            a(f"v_exp_f32 v{tb+1}, v{Sc+4*g+1}")
            if not (n == 0 and g == 0):
                a(f"v_cvt_pk_bf16_f32 v{pp}, v{tp}, v{tp+1}")
                a(f"v_cvt_pk_bf16_f32 v{pp+1}, v{tp+2}, v{tp+3}")
            a(f"v_exp_f32 v{tb+2}, v{Sc+4*g+2}")
            a(f"v_exp_f32 v{tb+3}, v{Sc+4*g+3}")

    def kv_sum(self, buf, d):
        return [f"v_add3_u32 v{d}, v{buf+2*k}, v{buf+2*k+1}, v{d if k else 30}" for k in range(8)]

    def kv_load(self, i, part, buf=None):
        buf = self.KVB[i % 4] if buf is None else buf
        if part == 4:
            return f"buffer_load_dword v{14+i%4}, v6, {srd(SWS)}, s{sKT+i} offen sc1"
        return f"buffer_load_dwordx4 {vr(buf+4*part,4)}, v1, {srd(SWS)}, s{sKT+i} offen offset:{1024*part} sc1"

    NV = 3
    EARLY = 1
    POLLQ = 2

    def attention(self):
        a = self.a
        Q, O, P, TT, B = self.Q, self.O, self.P, self.TT, self.KVB
        NV = self.NV
        queue = []

        def newer(tag):
            k = max(i for i, t in enumerate(queue) if t == tag)
            return len(queue) - 1 - k

        def ld(i, part):
            queue.append((i, part))
            return self.kv_load(i, part)

        def other(text):
            if text.startswith("buffer_"):
                queue.append("o")
            return text

        first = [ld(1, k) for k in range(5)]
        if not self.EARLY:
            a("L_att:")
            a("\n".join(first))
        else:
            a("L_att:")
        a("s_waitcnt lgkmcnt(4)")
        a(M32(self.SA, B[0], Q))
        a(M32(self.SA, B[0] + 4, Q + 4, self.SA))
        self.retry = []

        def check(t):
            self.retry.append(t)
            return [f"s_waitcnt vmcnt({newer((t, 4))})", f"L_kvc{t}:"] + self.kv_sum(B[t % 4], 7) + \
                [f"v_cmp_ne_u32 vcc, v7, v{14+t%4}", f"s_cbranch_vccnz L_kvr{t}", f"L_kvd{t}:"]

        late = {}
        self.first_waits = True
        late[(12, 1)] = lines(f"""
        v_and_b32 v22, 31, v0
        v_lshrrev_b32 v23, 5, v0
        v_lshlrev_b32 v23, 3, v23
        v_mul_u32_u24 v22, 896, v22""")
        late[(12, 2)] = lines(f"""
        v_add_u32 v22, v22, v23
        s_mul_i32 s{sT1}, s{sW}, 56
        s_add_u32 s{sT0}, s{sROW}, s{sT1}
        s_mul_i32 s{sT2}, s{sC}, 224
        s_add_u32 s{sT1}, s{sT1}, s{sT2}""")
        xl = [f"buffer_load_dwordx2 {vr(self.XR2+2*g,2)}, v22, {srd(SX)}, s{sT0} offen offset:{16*g}" for g in range(4)]
        wl = [f"buffer_load_dwordx2 {vr(self.W2+2*g,2)}, v23, {srd(SWR)}, s{sT1} offen offset:{16*g}" for g in range(4)]
        late[(13, 0)] = wl[:1]
        late[(13, 1)] = wl[1:2] + xl[:1]
        late[(13, 2)] = wl[2:3] + xl[1:2]
        late[(13, 3)] = wl[3:] + xl[2:3]
        late[(14, 0)] = xl[3:] + lines(f"""
        s_lshl_b32 s{sA4}, s{sW}, 8
        s_add_u32 s{sA4}, s{sA4}, {WS_CLF}
        v_lshlrev_b32 v5, 2, v0""")
        late[(14, 1)] = [f"buffer_load_dword v4, v5, {srd(SWS)}, s{sA4} offen sc1"]
        cb = []
        for p in range(3):
            cb += lines(f"""
            s_add_u32 s{sT0}, s{sW}, {p+1}
            s_and_b32 s{sT0}, s{sT0}, 3
            s_mul_i32 s{sT0}, s{sT0}, 12288
            s_add_u32 s{sT0}, s{sT0}, {L_CB+p*4096}
            v_add_u32 v{10+p}, s{sT0}, v1""")
        cb += lines(f"""
        s_mul_i32 s{sT0}, s{sW}, 12288
        s_add_u32 s{sT0}, s{sT0}, {L_CB}
        v_add_u32 v13, s{sT0}, v1
        v_mov_b32 v8, {hex(fbits(2.0**100))}""")
        late[(14, 2)], late[(14, 3)], late[(15, 0)] = cb[:7], cb[7:13], cb[13:]
        wr = lambda p, k: f"ds_write_b128 v{10+p}, {vr(O+16*p+4*k,4)} offset:{k*1024}"
        for i in range(16):
            for qt in range(4):
                ex = {}
                if i == 0 and qt == 1:
                    ex[("pre", 0)] = ["s_waitcnt lgkmcnt(0)"]
                pre0 = ex.get(("pre", 0), [])
                if qt == 3 and i < 15:
                    pre0 = pre0 + (check(i + 1) if i + 1 <= NV else [f"s_waitcnt vmcnt({newer((i + 1, 3))})"])
                if i == NV - 2 and qt == 0:
                    pre0 = pre0 + lines(f"""
                    s_waitcnt vmcnt({newer("p")})
                    L_kvpoll:
                    v_cmp_ne_u32 vcc, s{sNON}, v3
                    s_andn2_b64 vcc, vcc, s[{sA2}:{sA3}]
                    s_cbranch_vccnz L_kvpr
                    L_kvok:""")
                ex[("pre", 0)] = pre0
                if i == NV - 3 and qt == self.POLLQ:
                    ex[1] = [f"buffer_load_dword v3, v2, {srd(SWS)}, s{sKVF} offen sc1"]
                    queue.append("p")
                if i == 0:
                    t = 2 + qt // 2
                    lds_ = [ld(t, k) for k in ((0, 1) if qt % 2 == 0 else (2, 3, 4))]
                    ex[2], ex[3] = lds_[:-1], lds_[-1:]
                else:
                    ex[0] = [other(x) for x in late.get((i, qt), [])]
                    if i + 3 <= 15:
                        ex[2] = [ld(i + 3, qt)]
                        if qt == 3 and i + 3 <= NV:
                            ex[3] = [ld(i + 3, 4)]
                if i == 15:
                    if qt == 1:
                        ex[3] = [wr(0, 0)]
                    if qt == 2:
                        ex[0], ex[2], ex[3] = [wr(0, 1)], [wr(0, 2)], [wr(1, 0)]
                    if qt == 3:
                        ex[0], ex[2], ex[3] = [wr(1, 1)], [wr(1, 2)], [wr(2, 0)]
                self.unit(i, qt, ex)
                if i == 0 and qt == 3:
                    self.stamp("kvok")
                if i == 0 and qt == 3:
                    a("s_barrier")
                if self.ATS and qt == 3 and i in (0, 1, 2, 4, 6, 8, 10, 12, 14):
                    self.stamp(f"t{i}")
        a(f"""
        v_cvt_pk_bf16_f32 v{P+6}, v{TT+4}, v{TT+5}
        v_cvt_pk_bf16_f32 v{P+7}, v{TT+6}, v{TT+7}
        v_max3_f32 v9, v{O+12}, v{O+16+12}, v{O+32+12}
        """)
        a(M32(O + 48, B[3] + 12, P + 4, O + 48))
        a(wr(2, 1))
        a(wr(2, 2))
        self.stamp("attn")

    def combine(self):
        a = self.a
        O = self.O
        a(f"""
        L_clpoll:
        s_waitcnt vmcnt(0)
        v_cmp_ne_u32 vcc, s{sNON}, v4
        s_cbranch_vccz L_clok
        """)
        self.spin_guard("L_clok")
        a(f"""
        buffer_load_dword v4, v5, {srd(SWS)}, s{sA4} offen sc1
        s_branch L_clpoll
        L_clok:
        v_max_f32 v9, v9, v{O+48+12}
        v_cmp_nlt_f32 vcc, v9, v8
        s_andn2_b64 vcc, vcc, s[{sLO}:{sLO+1}]
        s_cmp_lg_u64 vcc, 0
        s_cselect_b32 s{sT1}, 0x3f800000, 0
        v_mov_b32 v8, s{sT1}
        """)
        for p in range(4):
            a(f"v_cndmask_b32 v{O+16*p+13}, v8, v{O+16*p+13}, s[{sLO}:{sLO+1}]")
        for p in range(3):
            a(f"ds_write_b128 v{10+p}, {vr(O+16*p+12,4)} offset:3072")
        a(f"""
        s_lshl_b32 s{sT0}, s{sB}, 2
        s_add_u32 s{sT0}, s{sT0}, s{sW}
        s_lshl_b32 s{sT0}, s{sT0}, 4
        s_add_u32 s{sT0}, s{sT0}, s{sH}
        s_lshl_b32 s{sT0}, s{sT0}, 11
        s_add_u32 s99, s{sT0}, {WS_OF}
        s_waitcnt lgkmcnt(0)
        s_barrier
        """)
        order = (3, 0, 1, 2)
        for k in order:
            for p in range(3):
                a(f"ds_read_b128 {vr(O+16*p+4*k,4)}, v13 offset:{p*4096+k*1024}")
        R = O + 48
        for c, k in enumerate(order):
            a(f"s_waitcnt lgkmcnt({9-3*c})")
            for i in range(2):
                r = 4 * k + 2 * i
                a(f"v_pk_add_f32 {vr(R+r,2)}, {vr(R+r,2)}, {vr(O+r,2)}")
                a(f"v_pk_add_f32 {vr(O+16+r,2)}, {vr(O+16+r,2)}, {vr(O+32+r,2)}")
            for i in range(2):
                r = 4 * k + 2 * i
                a(f"v_pk_add_f32 {vr(R+r,2)}, {vr(R+r,2)}, {vr(O+16+r,2)}")
            if c == 0:
                a(f"""
                v_mov_b32 v8, v{R+12}
                v_mov_b32 v9, v{R+12}
                v_readlane_b32 s{sT0}, v{R+13}, 32
                v_permlane32_swap_b32 v8, v9
                s_cmp_eq_u32 s{sT0}, 0
                s_cbranch_scc1 L_noredo
                s_cmp_eq_u32 s{sPASS}, 0
                s_cbranch_scc1 L_redo
                L_noredo:
                v_rcp_f32 v8, v9
                """)
        OP = 32
        for hf in range(2):
            for i in range(4 * hf, 4 * hf + 4):
                a(f"v_pk_mul_f32 {vr(R+2*i,2)}, {vr(R+2*i,2)}, {vr(8,2)} op_sel_hi:[1,0]")
            for i in range(4 * hf, 4 * hf + 4):
                a(f"v_cvt_pk_bf16_f32 v{OP+i}, v{R+2*i}, v{R+2*i+1}")
            if hf:
                a(f"""
                v_cndmask_b32 v{OP+6}, 0, v{OP+6}, s[{sLO}:{sLO+1}]
                v_cndmask_b32 v{OP+7}, 0, v{OP+7}, s[{sLO}:{sLO+1}]
                """)
            a(f"buffer_store_dwordx4 {vr(OP+4*hf,4)}, v1, {srd(SWS)}, s99 offen offset:{1024*hf} sc1")
        a(f"""
        s_or_b32 s{sT0}, s2, s{sW}
        s_cmp_lg_u32 s{sT0}, 0
        s_cbranch_scc1 L_noepoch
        s_mov_b64 exec, 1
        buffer_store_dword v30, v31, {srd(SWS)}, 0 offen sc1
        s_mov_b64 exec, -1
        L_noepoch:
        """)
        self.stamp("opub")

    def helper(self, nbar):
        a = self.a
        a(f"""
        L_helper:
        s_waitcnt lgkmcnt(0)
        s_add_u32 s84, s84, {self.WSB << 20}
        s_addc_u32 s85, s85, 0
        s_load_dword s{sNON}, s[84:85], 0
        """)
        self.srds()
        a(f"""
        v_lshlrev_b32 v1, 4, v0
        v_mov_b32 v4, -1
        v_mov_b32 v5, -1
        v_mov_b32 v6, -1
        v_mov_b32 v7, -1
        v_mov_b32 v31, 0
        v_lshrrev_b32 v22, 4, v0
        v_lshrrev_b32 v23, 2, v0
        v_sub_u32 v23, v23, v22
        v_and_b32 v23, 3, v23
        v_mul_u32_u24 v23, 56, v23
        v_mul_u32_u24 v22, 896, v22
        v_add_u32 v22, v22, v23
        v_and_b32 v23, 3, v0
        v_lshlrev_b32 v23, 4, v23
        v_min_u32 v23, 40, v23
        v_add_u32 v2, v22, v23
        v_lshlrev_b32 v3, 7, v0
        """)
        a(f"""
        v_mul_u32_u24 v22, 4682, v0
        v_lshrrev_b32 v22, 16, v22
        v_mul_u32_u24 v27, 14, v22
        v_sub_u32 v23, v0, v27
        v_mul_u32_u24 v27, 896, v22
        v_lshl_add_u32 v8, v23, 4, v27
        v_lshrrev_b32 v22, 2, v0
        v_min_u32 v22, 13, v22
        v_mul_u32_u24 v22, 3584, v22
        v_and_b32 v23, 3, v0
        v_lshl_add_u32 v22, v23, 7, v22
        s_mul_i32 s{sA0}, s{sXCD}, {7*32*896}
        s_mul_i32 s{sT1}, s{sI}, {49*128}
        s_add_u32 s{sA0}, s{sA0}, s{sT1}
        s_mul_i32 s{sA1}, s{sI}, {14*3584}
        s_mul_i32 s{sT1}, s{sXCD}, 448
        s_and_b32 s{sT1}, s{sT1}, -128
        s_add_u32 s{sA1}, s{sA1}, s{sT1}
        s_lshr_b32 s{sA2}, s{sI}, 2
        s_mul_i32 s{sA2}, s{sA2}, {self.WOROT}
        s_lshr_b32 s{sA2}, s{sA2}, 1
        s_mul_i32 s{sA4}, s{sC}, 224
        s_mul_i32 s{sA5}, s{sI}, {self.TSTAG}
        s_lshr_b32 s{sA5}, s{sA5}, 3
        s_add_u32 s{sA5}, s{sA5}, {self.TOFF}
        s_lshl_b32 s{sT0}, s{sB}, 6
        s_add_u32 s{sT0}, s{sT0}, s{sH}
        s_lshl_b32 s{sT0}, s{sT0}, 11
        s_add_u32 s64, s{sT0}, {WS_OF}
        s_add_u32 s65, s64, 32768
        s_add_u32 s66, s65, 32768
        s_add_u32 s67, s66, 32768
        s_lshl_b32 s{sT0}, s{sT}, 2
        s_add_u32 s{sT0}, s{sT0}, s{sC}
        s_lshl_b32 s{sT0}, s{sT0}, 9
        s_add_u32 s72, s{sT0}, {WS_STATS}
        s_lshl_b32 s{sT1}, s{sT}, 7
        s_add_u32 s73, s{sT1}, {WS_KEYS}
        s_cmp_eq_u32 s{sC}, 0
        s_cselect_b32 s73, s73, {OOB}
        s_mul_i32 s{sT0}, s{sF}, 14336
        s_add_u32 s74, s{sT0}, {WS_Y}
        s_add_u32 s75, s74, 4096
        s_add_u32 s76, s75, 4096
        s_add_u32 s77, s76, 4096
        s_lshl_b32 s{sT0}, s2, 2
        s_add_u32 s78, s{sT0}, {WS_CLF}
        """)
        for w in range(4):
            self.cand_base(68 + w, w)
        a(f"""
        s_waitcnt lgkmcnt(0)
        s_mul_i32 s{sNON}, s{sNON}, 0x19660d
        s_add_u32 s{sNON}, s{sNON}, 0x3c6ef35f
        v_mov_b32 v30, s{sNON}
        """)
        for nb in range(nbar):
            a("s_barrier")
        st = lambda v, so, off=0: f"buffer_store_dwordx4 v[4:7], v{v}, {srd(SWS)}, s{so} offen offset:{off} sc1"
        cl = [[st(1, 64 + w, 1024 * k)] for w in range(4) for k in range(2)]
        cl += [["s_mov_b32 exec_hi, 0xffffff", st(8, 68 + w), "s_mov_b32 exec_hi, -1"] for w in range(4)]
        cl += [["s_mov_b32 exec_hi, 0", st(1, 72), "s_mov_b64 exec, 3", st(1, 73), "s_mov_b64 exec, -1"]]
        ycl = [st(1, 74 + k // 4, 1024 * (k % 4)) for k in range(14)]
        if self.NOCL:
            cl, ycl = [], []
        for n in range(28):
            a(f"""
            s_mul_i32 s{sWOS}, s{sA2}, {16*896}
            s_add_u32 s{sWOS}, s{sWOS}, s{sA4}
            s_lshl_b32 s{sWOM}, s{sA2}, 12
            """)
            for k in range(4):
                a(f"""
                s_add_u32 m0, s{sWOM}, {1024*k}
                s_add_u32 s{sT0}, s{sWOS}, {4*896*k}
                buffer_load_dwordx4 v2, {srd(SWO)}, s{sT0} offen lds
                """)
            if cl:
                a("\n".join(cl.pop(0)))
            if ycl:
                a(f"s_cmp_lt_i32 s{sF}, 0\ns_cbranch_scc1 L_h_y{n}\n{ycl.pop(0)}\nL_h_y{n}:")
            if self.TOUCH:
                a(f"""
                s_cmp_lg_u32 s{sA5}, {n}
                s_cbranch_scc1 L_h_t{n}
                buffer_load_dword v20, v3, {srd(SWD)}, s{sA0} offen
                buffer_load_dword v20, v22, {srd(SWG)}, s{sA1} offen
                buffer_load_dword v20, v22, {srd(SWU)}, s{sA1} offen
                L_h_t{n}:
                """)
            a(f"""
            s_waitcnt vmcnt({self.WOQ})
            s_add_u32 s{sA2}, s{sA2}, 1
            s_cmp_eq_u32 s{sA2}, 28
            s_cselect_b32 s{sA2}, 0, s{sA2}
            """)
            if n == 13 + -(-self.WOQ // 4):
                a(f"""
                s_mov_b64 exec, 1
                buffer_store_dword v30, v31, {srd(SWS)}, s78 offen sc1
                s_mov_b64 exec, -1
                """)
        a(f"""
        s_waitcnt vmcnt(0)
        s_cmp_lt_i32 s{sF}, 0
        s_cbranch_scc1 L_h_end
        v_lshrrev_b32 v22, 2, v0
        v_mul_u32_u24 v22, 3584, v22
        v_and_b32 v23, 3, v0
        v_lshl_add_u32 v22, v23, 4, v22
        v_lshlrev_b32 v23, 12, v23
        v_add_u32 v23, {L_CB+3072+32*16+4}, v23
        s_lshl_b32 s{sA0}, s{sF}, 6
        s_mul_i32 s{sA1}, s{sF}, {32*896}
        L_h_comb:
        s_barrier
        ds_read_b32 v24, v23
        s_waitcnt lgkmcnt(0)
        v_cmp_ne_u32 vcc, 0, v24
        s_cbranch_vccz L_h_go
        s_cmp_lg_u32 s{sPASS}, 0
        s_cbranch_scc1 L_h_go
        s_mov_b32 s{sPASS}, 1
        s_barrier
        s_barrier
        s_barrier
        s_barrier
        s_branch L_h_comb
        L_h_go:
        s_barrier
        s_barrier
        s_barrier
        """)
        for j in range(28):
            a(f"""
            s_mov_b32 m0, {L_WG+j*1024}
            s_add_u32 s{sT2}, s{sA0}, {j*16*3584}
            buffer_load_dwordx4 v22, {srd(SWG)}, s{sT2} offen lds
            s_mov_b32 m0, {L_WU+j*1024}
            buffer_load_dwordx4 v22, {srd(SWU)}, s{sT2} offen lds
            """)
        a("s_mov_b32 exec_hi, 0xffffff")
        for r in range(32):
            a(f"""
            s_mov_b32 m0, {L_WD+r*928}
            s_add_u32 s{sT2}, s{sA1}, {r*896}
            buffer_load_dwordx4 v1, {srd(SWD)}, s{sT2} offen lds
            """)
        a("s_waitcnt vmcnt(0)\nL_h_end:\ns_endpgm")

    WOROT = 7
    TSTAG = 7
    TOFF = 0
    KVC = -1
    KVCN = 16
    WSB = 0
    NOCL = 0
    NOWO = 0
    TOUCH = 1
    HD1 = 0
    HD2 = 0
    HD3 = 0
    WOQ = 8

    def redo(self):
        a = self.a
        Q, B, S = self.Q, self.KVB, self.SA
        for t in self.retry:
            a(f"L_kvr{t}:")
            self.spin_guard(f"L_kvd{t}")
            a("\n".join(self.kv_load(t, k) for k in range(5)))
            a(f"s_waitcnt vmcnt(0)\ns_branch L_kvc{t}")
        a("L_kvpr:")
        self.spin_guard("L_kvok")
        a(f"""
        buffer_load_dword v3, v2, {srd(SWS)}, s{sKVF} offen sc1
        s_waitcnt vmcnt(0)
        s_branch L_kvpoll
        """)
        MX = 8
        a(f"""
        L_redo:
        s_mov_b32 s{sPASS}, 1
        s_waitcnt vmcnt(0) lgkmcnt(0)
        s_barrier
        s_mov_b32 s{sA5}, 16
        s_lshl_b32 s{sT2}, s{sH}, 6
        s_add_u32 s{sT2}, s{sT2}, s{sW}
        s_mul_i32 s{sT2}, s{sT2}, {KVS}
        s_add_u32 s{sT2}, s{sT2}, {WS_KV}
        """)
        for p in range(4):
            a(f"v_mov_b32 v{MX+p}, 0xff800000")
        a(f"""
        L_redo_loop:
        buffer_load_dwordx4 {vr(B[1],4)}, v1, {srd(SWS)}, s{sT2} offen sc1
        buffer_load_dwordx4 {vr(B[1]+4,4)}, v1, {srd(SWS)}, s{sT2} offen offset:1024 sc1
        s_add_u32 s{sT2}, s{sT2}, {4*KVS}
        s_waitcnt vmcnt(0)
        """)
        for p in range(4):
            a(M32(S, B[1], Q + 8 * p))
            a(M32(S, B[1] + 4, Q + 8 * p + 4, S))
            self.rowmax16(S, 22)
            a(f"v_max_f32 v{MX+p}, v{MX+p}, v22")
        a(f"""
        s_sub_u32 s{sA5}, s{sA5}, 1
        s_cmp_lg_u32 s{sA5}, 0
        s_cbranch_scc1 L_redo_loop
        """)
        for p in range(4):
            a(f"""
            s_add_u32 s{sT0}, s{sW}, {p+1}
            s_and_b32 s{sT0}, s{sT0}, 3
            s_lshl_b32 s{sT0}, s{sT0}, 10
            s_add_u32 s{sT0}, s{sT0}, {L_CB}
            v_lshl_add_u32 v{12+p}, v0, 2, s{sT0}
            s_lshl_b32 s{sT1}, s{sW}, 8
            v_add_u32 v16, s{sT1}, v{12+p}
            ds_write_b32 v16, v{MX+p}
            """)
        a("s_waitcnt lgkmcnt(0)\ns_barrier")
        for p in range(4):
            for k in range(4):
                a(f"ds_read_b32 v{16+k}, v{12+p} offset:{k*256}")
            q6, q7 = Q + 8 * p + 6, Q + 8 * p + 7
            a(f"""
            s_waitcnt lgkmcnt(0)
            v_max3_f32 v16, v16, v17, v18
            v_max_f32 v16, v16, v19
            v_lshlrev_b32 v17, 16, v{q6}
            v_and_b32 v18, 0xffff0000, v{q6}
            v_lshlrev_b32 v19, 16, v{q7}
            v_add_f32 v18, v18, v19
            v_add_f32 v17, v17, v18
            v_sub_f32 v22, v16, v17
            """)
            self.shift_split(22, 23, 24, 25)
            a(f"""
            v_cndmask_b32 v{q6}, v23, v{q6}, s[{sLO}:{sLO+1}]
            v_cndmask_b32 v{q7}, v24, v{q7}, s[{sLO}:{sLO+1}]
            """)
        for part in range(4):
            a(self.kv_load(0, part))
        if self.EARLY:
            a("\n".join(self.kv_load(1, k) for k in range(5)))
        a(f"""
        s_waitcnt vmcnt(0)
        s_barrier
        s_branch L_att
        """)

    def finish(self):
        a = self.a
        a("L_fin:")
        if self.amp:
            a(f"""
            s_cmp_lg_u32 s2, {self.ampg}
            s_cbranch_scc1 L_end
            s_cmp_lg_u32 s{sW}, 0
            s_cbranch_scc1 L_end
            s_sub_u32 s84, s84, s100
            s_min_u32 s84, s84, 20000
            s_lshl_b32 s84, s84, 3
            s_memrealtime s[100:101]
            s_waitcnt lgkmcnt(0)
            L_amp:
            s_memrealtime s[82:83]
            s_waitcnt lgkmcnt(0)
            s_sub_u32 s82, s82, s100
            s_cmp_lt_u32 s82, s84
            s_cbranch_scc1 L_amp
            """)
        if self.ts:
            a(f"""
            s_lshl_b32 s{sT0}, s2, 2
            s_add_u32 s{sT0}, s{sT0}, s{sW}
            s_lshl_b32 s{sT0}, s{sT0}, 8
            s_add_u32 s{sT0}, s{sT0}, {WS_TS}
            s_mov_b64 exec, -1
            v_lshlrev_b32 v2, 2, v0
            buffer_store_dword {self.TSV}, v2, {srd(SWS)}, s{sT0} offen
            """)
        a("L_end:\ns_endpgm")

    def tail(self):
        pass

    def build(self):
        self.prologue()
        self.p1()
        nbar = sum(1 for k, x in self.a.items if k == "i" and x.op == "s_barrier")
        self.attention()
        self.combine()
        self.tail()
        self.finish()
        self.redo()
        self.helper(nbar + 1)
        npad = self.a.pad()
        body = self.a.text()
        hdr = open(os.path.join(os.path.dirname(os.path.abspath(__file__)), "header.txt")).read()
        out = hdr + f"""; @launch grid=(256,1,1) block=(320,1,1) lds={LDS_BYTES}
.amdgcn_target "amdgcn-amd-amdhsa--gfx950"
.text
.globl {NAME}
.p2align 8
.type {NAME},@function
{NAME}:
{body}
.section .rodata,"a"
.p2align 6
.amdhsa_kernel {NAME}
  .amdhsa_next_free_vgpr 256
  .amdhsa_next_free_sgpr 102
  .amdhsa_accum_offset 256
  .amdhsa_group_segment_fixed_size 0
  .amdhsa_kernarg_size 88
  .amdhsa_user_sgpr_count 2
  .amdhsa_user_sgpr_kernarg_segment_ptr 1
  .amdhsa_system_sgpr_workgroup_id_x 1
  .amdhsa_float_denorm_mode_32 3
.end_amdhsa_kernel
"""
        return out, npad


class Full(Gen):

    def piece_idx(self, i, tok, ch):
        self.a(f"""
        v_add_u32 v{ch}, {64*i}, v0
        v_mul_u32_u24 v{tok}, 4682, v{ch}
        v_lshrrev_b32 v{tok}, 16, v{tok}
        v_mul_u32_u24 v27, 14, v{tok}
        v_sub_u32 v{ch}, v{ch}, v27
        s_lshl_b32 s{sT0}, s{sW}, 3
        v_add_u32 v{tok}, s{sT0}, v{tok}
        """)

    def sentinel_any(self, regs, t):
        a = self.a
        regs = list(regs)
        a(f"v_max3_u32 v{t}, v{regs[0]}, v{regs[1]}, v{regs[2] if len(regs) > 2 else regs[1]}")
        for k in range(3, len(regs), 2):
            a(f"v_max3_u32 v{t}, v{t}, v{regs[k]}, v{regs[min(k+1, len(regs)-1)]}")
        a(f"v_cmp_eq_u32 vcc, -1, v{t}")

    def unpack(self, d, s):
        self.a(f"v_lshlrev_b32 v{d}, 16, v{s}\nv_and_b32 v{d+1}, 0xffff0000, v{s}")

    def tr_write(self, src, arr):
        a = self.a
        for g in range(3):
            a(f"ds_write_b64 v14, {vr(src+2*g,2)} offset:{arr*7680+16*g}")
        a(f"""
        s_mov_b32 exec_hi, 0
        ds_write_b64 v14, {vr(src+6,2)} offset:{arr*7680+48}
        s_mov_b32 exec_hi, -1
        """)

    def cand_write(self, src, off):
        a = self.a
        a(f"s_mov_b64 exec, s[{sM}:{sM+1}]")
        for g in range(3):
            a(f"ds_write_b64 v13, {vr(src+2*g,2)} offset:{off+16*g}")
        a(f"""
        s_mov_b32 exec_hi, 0
        ds_write_b64 v13, {vr(src+6,2)} offset:{off+48}
        s_mov_b64 exec, -1
        """)

    def p3(self):
        a = self.a
        XR2, W2, S4 = self.XR2, self.W2, self.S4
        XC, ACC, OFR, WR = 64, 48, 128, 80
        a(f"""
        v_lshrrev_b32 v23, 5, v0
        v_lshrrev_b32 v25, 2, v0
        v_and_b32 v25, 3, v25
        v_add_u32 v24, s{sW}, v25
        v_and_b32 v24, 3, v24
        v_lshl_add_u32 v25, v23, 2, v25
        v_lshlrev_b32 v25, 8, v25
        v_lshl_add_u32 v25, v24, 6, v25
        v_lshrrev_b32 v26, 4, v0
        v_and_b32 v26, 1, v26
        v_lshl_add_u32 v25, v26, 5, v25
        v_lshrrev_b32 v27, 1, v0
        v_and_b32 v27, v27, v26
        v_and_b32 v26, 3, v0
        v_xor_b32 v26, v26, v27
        v_lshl_add_u32 v25, v26, 3, v25
        v_lshlrev_b32 v23, 11, v23
        """)
        for qr in range(4):
            a(f"""
            s_add_u32 s{sT0}, s{sW}, {qr}
            s_and_b32 s{sT0}, s{sT0}, 3
            s_lshl_b32 s{sT1}, s{sT0}, 13
            s_add_u32 s{sT1}, s{sT1}, {L_CB}
            s_mul_i32 s{sT0}, s{sT0}, 28672
            v_add_u32 v{2+qr}, s{sT1}, v1
            v_add_u32 v{6+qr}, s{sT0}, v25
            v_sub_u32 v{10+qr}, v{6+qr}, v23
            """)
        for k in range(8):
            self.unpack(XC + 2 * k, XR2 + k)
        a(f"""
        v_cndmask_b32 v{W2+6}, 0, v{W2+6}, s[{sLO}:{sLO+1}]
        v_cndmask_b32 v{W2+7}, 0, v{W2+7}, s[{sLO}:{sLO+1}]
        v_mov_b32 v{S4}, 0
        """)
        for k in range(8):
            a(f"v_dot2c_f32_bf16 v{S4}, s{sONE}, v{W2+k}")
        a(f"""
        s_lshl_b32 s{sA0}, s{sT}, 2
        s_add_u32 s{sA0}, s{sA0}, s{sW}
        s_lshl_b32 s{sA0}, s{sA0}, 13
        s_add_u32 s{sA0}, s{sA0}, {WS_OF}
        s_add_u32 s{sA1}, s{sA0}, 4096
        s_lshl_b32 s{sA2}, s{sW}, 13
        s_add_u32 s{sA2}, s{sA2}, {L_CB}
        s_add_u32 s{sA3}, s{sA2}, 4096
        s_waitcnt vmcnt(0)
        s_barrier
        """)
        self.stamp("oack")
        a("L_odma:")
        for hf in range(2):
            a(f"s_mov_b32 m0, s{sA2+hf}")
            for k in range(4):
                a(f"buffer_load_dwordx4 v1, {srd(SWS)}, s{sA0+hf} offen offset:{1024*k} sc1 lds")
        lq = LQ(a)

        def oread(n):
            lq.op(f"ds_read_b128 {vr(OFR+4*n,4)}, v{2+n//8} offset:{(n%8)*1024}", ("o", n))

        def wread(n):
            qr, hl, j = n // 8, (n % 8) // 2, n % 2
            lq.op(f"ds_read_b64_tr_b16 {vr(WR+4*(n%4),2)}, v{6+qr} offset:{hl*7168+j*4096}", ("w", n))
            lq.op(f"ds_read_b64_tr_b16 {vr(WR+4*(n%4)+2,2)}, v{(10 if j else 6)+qr} offset:{hl*7168+j*4096+2048}", ("w", n))

        for n in range(3):
            wread(n)
        a("s_waitcnt vmcnt(0)")
        self.stamp("odma")
        for n in range(8):
            oread(n)
        onext = 8
        for n in range(32):
            lq.wait(("o", n) if lq.q.index(("o", n)) > max(i for i, t in enumerate(lq.q) if t == ("w", n)) else ("w", n))
            a(M32(ACC, WR + 4 * (n % 4), OFR + 4 * n, ACC if n else XC))
            if n + 3 < 32:
                wread(n + 3)
            if n < 4:
                if n == 0:
                    lq.wait(("o", 1))
                    a(f"v_max3_u32 v22, v{OFR}, v{OFR+1}, v{OFR+2}")
                    a(f"v_max3_u32 v23, v{OFR+3}, v{OFR+4}, v{OFR+5}")
                    a(f"v_max3_u32 v22, v22, v{OFR+6}, v{OFR+7}")
                else:
                    lq.wait(("o", 2 * n + 1))
                    for k in range(4):
                        r = OFR + 8 * n + 2 * k
                        a(f"v_max3_u32 v{22+k%2}, v{22+k%2}, v{r}, v{r+1}")
            if n == 3:
                a(f"""
                v_max_u32 v22, v22, v23
                v_cmp_eq_u32 vcc, -1, v22
                s_cbranch_vccz L_ook
                """)
                self.spin_guard("L_ook")
                a(f"""
                s_waitcnt lgkmcnt(0)
                s_branch L_odma
                L_ook:
                s_barrier
                """)
            if n >= 4:
                for _ in range(2):
                    if onext < 32 and onext <= n + 8:
                        oread(onext)
                        onext += 1
        self.stamp("gemm")
        H2 = 32
        a(f"""
        v_and_b32 v22, 31, v0
        v_lshrrev_b32 v23, 5, v0
        v_lshlrev_b32 v23, 3, v23
        v_lshl_add_u32 v17, v22, 4, v23
        s_lshl_b32 s{sT0}, s{sW}, 9
        s_add_u32 s{sT0}, s{sT0}, {L_ST}
        v_add_u32 v18, s{sT0}, v17
        v_add_u32 v19, {L_ST}, v17
        v_mul_u32_u24 v22, 240, v22
        s_mul_i32 s{sT0}, s{sW}, 56
        s_add_u32 s{sT0}, s{sT0}, {L_TR}
        v_add3_u32 v14, v22, v23, s{sT0}
        v_mov_b32 v40, 0
        v_mov_b32 v41, 0
        v_mov_b32 v42, 0
        """)
        for k in range(8):
            a(f"v_cvt_pk_bf16_f32 v{H2+k}, v{ACC+2*k}, v{ACC+2*k+1}")
        a(f"""
        v_cndmask_b32 v{H2+6}, 0, v{H2+6}, s[{sLO}:{sLO+1}]
        v_cndmask_b32 v{H2+7}, 0, v{H2+7}, s[{sLO}:{sLO+1}]
        """)
        for k in range(8):
            a(f"v_dot2c_f32_bf16 v40, s{sONE}, v{H2+k}")
            a(f"v_dot2c_f32_bf16 v42, v{H2+k}, v{H2+k}")
            a(f"v_dot2c_f32_bf16 v41, v{W2+k}, v{H2+k}")
        a(f"""
        v_permlane32_swap_b32 v40, v42
        v_permlane32_swap_b32 v41, v{S4}
        v_add_f32 v40, v40, v42
        v_add_f32 v41, v41, v{S4}
        ds_write_b64 v18, v[40:41]
        s_lshl_b32 s{sA0}, s{sT}, 11
        s_add_u32 s{sA0}, s{sA0}, {WS_STATS}
        s_lshl_b32 s{sT0}, s{sC}, 9
        s_add_u32 s{sA1}, s{sA0}, s{sT0}
        s_lshl_b32 s{sT0}, s{sW}, 3
        s_lshl_b32 s{sT0}, 0xff, s{sT0}
        s_waitcnt lgkmcnt(0)
        s_barrier
        ds_read_b64 v[40:41], v19
        ds_read_b64 v[42:43], v19 offset:512
        ds_read_b64 v[44:45], v19 offset:1024
        ds_read_b64 v[46:47], v19 offset:1536
        s_waitcnt lgkmcnt(2)
        v_pk_add_f32 v[40:41], v[40:41], v[42:43]
        s_waitcnt lgkmcnt(0)
        v_pk_add_f32 v[44:45], v[44:45], v[46:47]
        v_pk_add_f32 v[40:41], v[40:41], v[44:45]
        v_mov_b32 v42, v40
        v_mov_b32 v43, v41
        v_permlane32_swap_b32 v40, v42
        v_permlane32_swap_b32 v41, v43
        s_mov_b32 exec_lo, s{sT0}
        s_mov_b32 exec_hi, 0
        buffer_store_dwordx4 v[40:43], v17, {srd(SWS)}, s{sA1} offen sc1
        s_mov_b64 exec, -1
        v_and_b32 v22, 31, v0
        v_lshrrev_b32 v23, 5, v0
        v_lshlrev_b32 v23, 10, v23
        v_lshl_add_u32 v17, v22, 4, v23
        """)
        for i in range(2):
            self.piece_idx(i, 22, 23)
            a(f"""
            v_mov_b32 v{20+i}, v22
            v_mul_u32_u24 v27, 896, v22
            v_lshl_add_u32 v{self.VTG+i}, v23, 4, v27
            v_mul_u32_u24 v22, 240, v22
            v_lshl_add_u32 v22, v23, 4, v22
            v_add_u32 v{15+i}, {L_TR}, v22
            """)
        a(f"""
        v_mul_u32_u24 v22, 4682, v0
        v_lshrrev_b32 v22, 16, v22
        v_mul_u32_u24 v27, 14, v22
        v_sub_u32 v23, v0, v27
        v_mul_u32_u24 v27, 896, v22
        v_lshl_add_u32 v19, v23, 4, v27
        v_mul_u32_u24 v22, 240, v22
        v_lshl_add_u32 v22, v23, 4, v22
        s_mul_i32 s{sT0}, s{sW}, 960
        s_add_u32 s{sT0}, s{sT0}, {L_TR+7680}
        v_add_u32 v18, s{sT0}, v22
        """)
        self.cand_base(sA5, sW)
        HF = 64
        for k in range(8):
            self.unpack(HF + 2 * k, H2 + k)
        a("s_waitcnt vmcnt(0)")
        self.stamp("hack")
        a("L_stpoll:")
        for c in range(2):
            a(f"buffer_load_dwordx4 {vr(40+4*c,4)}, v17, {srd(SWS)}, s{sA0} offen offset:{512*c} sc1")
        a("s_waitcnt vmcnt(0)")
        self.sentinel_any(range(40, 48), 22)
        a("s_cbranch_vccz L_stok")
        self.spin_guard("L_stok")
        a("s_branch L_stpoll\nL_stok:")
        self.stamp("stok")
        a(f"""
        v_pk_add_f32 v[40:41], v[40:41], v[44:45]
        v_pk_add_f32 v[42:43], v[42:43], v[46:47]
        v_permlane32_swap_b32 v40, v42
        v_permlane32_swap_b32 v41, v43
        v_pk_add_f32 v[40:41], v[40:41], v[42:43]
        v_mov_b32 v42, v40
        v_mov_b32 v43, v41
        v_permlane32_swap_b32 v40, v42
        v_permlane32_swap_b32 v41, v43
        """)
        self.ln_scalars(40, 42, 44, 46, 22, 23)
        KEY = 47
        a(f"""
        v_fma_f32 v41, -v44, v43, v41
        v_mul_f32 v41, v41, v46
        v_cvt_pk_bf16_f32 v41, v41, v41
        v_ashrrev_i32 v22, 31, v41
        v_or_b32 v22, 0x80000000, v22
        v_xor_b32 v41, v41, v22
        v_and_b32 v41, 0xffff0000, v41
        v_lshrrev_b32 v41, 1, v41
        v_and_b32 v22, 31, v0
        s_lshl_b32 s{sT0}, s{sT}, 5
        s_sub_u32 s{sT0}, 2047, s{sT0}
        v_sub_u32 v22, s{sT0}, v22
        v_or_b32 v{KEY}, v41, v22
        v_mov_b32 v48, v{KEY}
        v_mov_b32 v49, v{KEY}
        v_permlane16_swap_b32 v48, v49
        v_cndmask_b32 v48, v49, v48, s[{sLO}:{sLO+1}]
        v_sub_u32 v80, v48, v{KEY}
        """)
        for n in range(1, 16):
            a(f"v_sub_u32_dpp v{80+n}, v48, v{KEY} row_ror:{n} row_mask:0xf bank_mask:0xf bound_ctrl:0".replace(" bound_ctrl:0", " bound_ctrl:1"))
        a("v_lshrrev_b32 v48, 31, v80\nv_lshrrev_b32 v49, 31, v81")
        for n in range(2, 16):
            a(f"v_alignbit_b32 v{48+n%2}, v{48+n%2}, v{80+n}, 31")
        a(f"""
        v_bcnt_u32_b32 v48, v48, 0
        v_bcnt_u32_b32 v48, v49, v48
        v_mov_b32 v49, v48
        v_permlane32_swap_b32 v48, v49
        v_add_u32 v48, v48, v49
        v_sub_u32 v48, 31, v48
        v_cmp_gt_u32 s[{sM}:{sM+1}], 8, v48
        v_lshlrev_b32 v49, 2, v48
        s_or_b32 s{sT0}, s{sW}, s{sC}
        s_cmp_lg_u32 s{sT0}, 0
        s_cbranch_scc1 L_norank
        ds_permute_b32 v49, v49, v{KEY}
        s_lshl_b32 s{sT0}, s{sT}, 7
        s_add_u32 s{sT0}, s{sT0}, {WS_KEYS}
        v_lshlrev_b32 v22, 2, v0
        s_mov_b64 exec, 0xff
        s_waitcnt lgkmcnt(0)
        buffer_store_dword v49, v22, {srd(SWS)}, s{sT0} offen sc1
        s_mov_b64 exec, -1
        L_norank:
        v_and_b32 v22, 31, v0
        v_sub_u32 v22, v48, v22
        v_mul_i32_i24 v22, 240, v22
        v_add_u32 v13, v14, v22
        """)
        self.cand_write(H2, 7680 + 1920)
        for k in range(8):
            self.unpack(HF + 2 * k, H2 + k) if False else None
        D, HN2, OUT2 = 80, 48, 56
        for k in range(8):
            a(f"v_pk_add_f32 {vr(D+2*k,2)}, {vr(HF+2*k,2)}, v[44:45] op_sel_hi:[1,0] neg_lo:[0,1] neg_hi:[0,1]")
        for k in range(8):
            a(f"v_cvt_pk_bf16_f32 v{HN2+k}, v{D+2*k}, v{D+2*k+1}")
        for k in range(8):
            self.unpack(D + 2 * k, HN2 + k)
        for k in range(8):
            a(f"v_pk_mul_f32 {vr(D+2*k,2)}, {vr(D+2*k,2)}, v[46:47] op_sel_hi:[1,0]")
        for k in range(8):
            a(f"v_cvt_pk_bf16_f32 v{HN2+k}, v{D+2*k}, v{D+2*k+1}")
        self.cand_write(HN2, 7680)
        a(f"""
        s_waitcnt lgkmcnt(0)
        s_barrier
        ds_read_b128 v[40:43], v18
        """)
        for k in range(8):
            self.unpack(D + 2 * k, HN2 + k)
        a(f"""
        s_mov_b32 exec_hi, 0xffffff
        s_waitcnt lgkmcnt(0)
        buffer_store_dwordx4 v[40:43], v19, {srd(SWS)}, s{sA5} offen sc1
        s_mov_b32 exec_hi, -1
        """)
        for k in range(8):
            a(f"v_pk_add_f32 {vr(D+2*k,2)}, {vr(D+2*k,2)}, {vr(HF+2*k,2)}")
        for k in range(8):
            a(f"v_cvt_pk_bf16_f32 v{OUT2+k}, v{D+2*k}, v{D+2*k+1}")
        self.tr_write(OUT2, 0)
        self.KEY = KEY

    def ffn_weights(self):
        a = self.a
        a(f"""
        s_cmp_lt_i32 s{sF}, 0
        s_cbranch_scc1 L_noffw
        v_lshrrev_b32 v22, 2, v0
        v_mul_u32_u24 v22, 3584, v22
        v_and_b32 v23, 3, v0
        v_lshl_add_u32 v22, v23, 4, v22
        s_mul_i32 s{sT0}, s{sW}, {7*16*3584}
        s_lshl_b32 s{sT1}, s{sF}, 6
        s_add_u32 s{sT0}, s{sT0}, s{sT1}
        s_mul_i32 s{sT1}, s{sW}, 7168
        """)
        for j in range(7):
            a(f"""
            s_add_u32 m0, s{sT1}, {L_WG+j*1024}
            s_add_u32 s{sT2}, s{sT0}, {j*16*3584}
            buffer_load_dwordx4 v22, {srd(SWG)}, s{sT2} offen lds
            s_add_u32 m0, s{sT1}, {L_WU+j*1024}
            buffer_load_dwordx4 v22, {srd(SWU)}, s{sT2} offen lds
            """)
        a(f"""
        s_lshl_b32 s{sT0}, s{sF}, 2
        s_add_u32 s{sT0}, s{sT0}, s{sW}
        s_mul_i32 s{sT0}, s{sT0}, {8*896}
        s_mul_i32 s{sT1}, s{sW}, {8*928}
        s_mov_b32 exec_hi, 0xffffff
        """)
        for r in range(8):
            a(f"""
            s_add_u32 m0, s{sT1}, {L_WD+r*928}
            s_add_u32 s{sT2}, s{sT0}, {r*896}
            buffer_load_dwordx4 v1, {srd(SWD)}, s{sT2} offen lds
            """)
        a("s_mov_b32 exec_hi, -1\nL_noffw:")

    def bisect(self, levels, tag):
        a = self.a
        L = 32
        lo, hi, mid = sA0, sA1, sTH
        a(f"""
        s_mov_b32 s{lo}, 0
        s_mov_b32 s{hi}, 0x80000000
        L_bis{tag}:
        s_add_u32 s{mid}, s{lo}, s{hi}
        s_lshr_b32 s{mid}, s{mid}, 1
        """)
        for j in range(levels):
            a(f"v_cmp_le_u32 s[{64+2*j}:{65+2*j}], s{mid}, v{L+j}")
        a(f"s_bcnt1_i32_b64 s{sA2}, s[64:65]")
        for j in range(1, levels):
            a(f"s_bcnt1_i32_b64 s{sA3}, s[{64+2*j}:{65+2*j}]\ns_add_u32 s{sA2}, s{sA2}, s{sA3}")
        a(f"""
        s_cmp_eq_u32 s{sA2}, 8
        s_cbranch_scc1 L_bisdone{tag}
        s_cmp_eq_u32 s{mid}, s{lo}
        s_cbranch_scc1 L_bisdone{tag}
        s_cmp_gt_u32 s{sA2}, 8
        s_cselect_b32 s{lo}, s{mid}, s{lo}
        s_cselect_b32 s{hi}, s{hi}, s{mid}
        s_branch L_bis{tag}
        L_bisdone{tag}:
        """)

    def extract(self, levels):
        a = self.a
        a(f"s_mov_b32 s{sA2}, 0")
        for j in range(levels):
            m = 64 + 2 * j
            a(f"""
            v_mbcnt_lo_u32_b32 v22, s{m}, 0
            v_mbcnt_hi_u32_b32 v22, s{m+1}, v22
            v_add_u32 v22, s{sA2}, v22
            v_min_u32 v22, 7, v22
            v_lshl_add_u32 v22, v22, 3, s{sA4}
            v_add_u32 v23, {j}, v3
            s_mov_b64 exec, s[{m}:{m+1}]
            ds_write2_b32 v22, v{32+j}, v23 offset1:1
            s_mov_b64 exec, -1
            """)
            if j + 1 < levels:
                a(f"s_bcnt1_i32_b64 s{sA3}, s[{m}:{m+1}]\ns_add_u32 s{sA2}, s{sA2}, s{sA3}")

    AF, BF, WD = 128, 192, 64

    def ffn_pre(self):
        a = self.a
        a(f"""
        v_lshrrev_b32 v8, 4, v0
        v_lshrrev_b32 v9, 2, v0
        v_and_b32 v9, 3, v9
        v_and_b32 v10, 3, v0
        v_lshlrev_b32 v10, 3, v10
        v_lshl_add_u32 v11, v8, 3, v9
        v_lshl_add_u32 v11, v11, 6, v10
        s_lshr_b32 s{sT0}, s{sW}, 1
        s_mul_i32 s{sT0}, s{sT0}, 28672
        s_and_b32 s{sT1}, s{sW}, 1
        s_lshl_b32 s{sT1}, s{sT1}, 5
        s_add_u32 s{sT0}, s{sT0}, s{sT1}
        v_add_u32 v11, s{sT0}, v11
        v_lshl_add_u32 v12, v8, 2, v9
        v_mul_u32_u24 v12, 928, v12
        s_mul_i32 s{sT0}, s{sW}, 224
        s_add_u32 s{sT0}, s{sT0}, {L_WD}
        v_add3_u32 v12, v12, v10, s{sT0}
        """)
        for s_ in range(14):
            a(f"ds_read_b64_tr_b16 {vr(self.AF+4*s_,2)}, v11 offset:{s_*2048}")
            a(f"ds_read_b64_tr_b16 {vr(self.AF+4*s_+2,2)}, v11 offset:{s_*2048+256}")
        a(f"""
        s_lshl_b32 s{sT0}, s{sW}, 4
        s_add_u32 s{sT0}, s{sT0}, s{sA4}
        v_mov_b32 v11, s{sT0}
        v_min_u32 v10, 55, v0
        v_lshlrev_b32 v10, 4, v10
        s_mul_i32 s{sT0}, s{sW}, 2112
        s_add_u32 s{sT0}, s{sT0}, {L_G}
        v_add_u32 v6, s{sT0}, v10
        """)

    def ffn_pre2(self):
        a = self.a
        for i in range(7):
            a(f"ds_read_b64_tr_b16 {vr(self.WD+4*i,2)}, v12 offset:{i*32}")
            a(f"ds_read_b64_tr_b16 {vr(self.WD+4*i+2,2)}, v12 offset:{i*32+16*928}")
        a(f"""
        v_lshrrev_b32 v8, 4, v0
        v_and_b32 v9, 7, v0
        v_mul_u32_u24 v13, 1056, v9
        v_lshl_add_u32 v13, v8, 4, v13
        v_add_u32 v13, {L_G}, v13
        v_lshlrev_b32 v9, 4, v9
        v_lshl_add_u32 v9, v8, 7, v9
        v_lshlrev_b32 v8, 3, v0
        v_add_u32 v8, {L_AX}, v8
        s_lshl_b32 s{sT0}, s{sW}, 9
        v_add_u32 v7, s{sT0}, v8
        s_mul_i32 s{sT0}, s{sF}, 14336
        s_mul_i32 s{sT1}, s{sW}, 3584
        s_add_u32 s{sT0}, s{sT0}, s{sT1}
        s_add_u32 s99, s{sT0}, {WS_Y}
        """)

    def topk(self):
        a = self.a
        ld = f"""
        buffer_load_dwordx4 v[32:35], v2, {srd(SWS)}, s{sA1} offen sc1
        buffer_load_dwordx4 v[36:39], v2, {srd(SWS)}, s{sA1} offen offset:16 sc1
        """
        a(f"""
        v_lshlrev_b32 v2, 7, v0
        s_mov_b32 s{sA1}, {WS_KEYS}
        s_lshl_b32 s{sA4}, s{sW}, 6
        s_add_u32 s{sA4}, s{sA4}, {L_SEL}
        v_lshlrev_b32 v3, 3, v0
        s_waitcnt lgkmcnt(0)
        s_barrier
        s_cmp_lt_i32 s{sF}, 0
        s_cbranch_scc1 L_kwait
        """)
        if self.FPRE:
            self.ffn_pre()
            a(ld)
        else:
            a(ld)
            self.ffn_pre()
        a(f"""
        s_branch L_kchk
        L_kwait:
        s_waitcnt vmcnt(0)
        s_cmp_lt_i32 s{sU}, 0
        s_cbranch_scc1 L_klate
        s_cmp_eq_u32 s{sW}, 0
        s_cbranch_scc0 L_klate
        {f"s_sleep {self.KS1}" if self.KS1 else ""}
        s_branch L_kpoll
        L_klate:
        {f"s_sleep {self.KS2}" if self.KS2 else ""}
        L_kpoll:
        {ld}
        L_kchk:
        s_waitcnt vmcnt(0)
        """)
        self.sentinel_any(range(32, 40), 22)
        a("s_cbranch_vccz L_kok")
        self.spin_guard("L_kok")
        a("s_branch L_kpoll\nL_kok:")
        self.stamp("kok")
        lo, hi, mid = sA0, sA1, sTH
        a(f"""
        v_max_u32_dpp v22, v32, v32 row_ror:1 row_mask:0xf bank_mask:0xf bound_ctrl:1
        v_max_u32_dpp v22, v22, v22 row_ror:2 row_mask:0xf bank_mask:0xf bound_ctrl:1
        v_max_u32_dpp v22, v22, v22 row_ror:4 row_mask:0xf bank_mask:0xf bound_ctrl:1
        v_max_u32_dpp v23, v22, v22 row_ror:8 row_mask:0xf bank_mask:0xf bound_ctrl:1
        v_min_u32_dpp v22, v22, v22 row_ror:8 row_mask:0xf bank_mask:0xf bound_ctrl:1
        v_readlane_b32 s64, v23, 0
        v_readlane_b32 s65, v23, 16
        v_readlane_b32 s66, v23, 32
        v_readlane_b32 s67, v23, 48
        v_readlane_b32 s68, v22, 0
        v_readlane_b32 s69, v22, 16
        v_readlane_b32 s70, v22, 32
        v_readlane_b32 s71, v22, 48
        s_max_u32 s64, s64, s65
        s_max_u32 s66, s66, s67
        s_min_u32 s68, s68, s69
        s_min_u32 s70, s70, s71
        s_max_u32 s{hi}, s64, s66
        s_min_u32 s{lo}, s68, s70
        s_min_u32 s{hi}, s{hi}, 0x7fffffff
        s_min_u32 s{lo}, s{lo}, s{hi}
        s_sub_u32 s{lo}, s{lo}, 1
        s_max_i32 s{lo}, s{lo}, 0
        L_bisa:
        """)
        for k in range(self.BIS):
            a(f"""
            s_add_u32 s{mid}, s{lo}, s{hi}
            s_lshr_b32 s{mid}, s{mid}, 1
            v_cmp_lt_u32 s[64:65], s{mid}, v32
            v_cmp_lt_u32 s[66:67], s{mid}, v33
            s_bcnt1_i32_b64 s{sA2}, s[64:65]
            s_bcnt1_i32_b64 s{sA3}, s[66:67]
            s_add_u32 s{sA2}, s{sA2}, s{sA3}
            s_cmp_eq_u32 s{sA2}, 8
            s_cbranch_scc1 L_bisdonea
            s_cmp_gt_u32 s{sA2}, 8
            s_cselect_b32 s{lo}, s{mid}, s{lo}
            s_cselect_b32 s{hi}, s{hi}, s{mid}
            """)
        a(f"""
        s_sub_u32 s{sA2}, s{hi}, s{lo}
        s_cmp_gt_u32 s{sA2}, 1
        s_cbranch_scc1 L_bisa
        s_branch L_topslow
        L_bisdonea:
        v_cmp_lt_u32 vcc, s{mid}, v34
        s_add_u32 s{mid}, s{mid}, 1
        s_cbranch_vccnz L_topslow
        """)
        self.extract(2)
        a(f"L_topdone:\nv_cmp_le_u32 s[80:81], s{sTH}, v{self.KEY}\ns_waitcnt lgkmcnt(0)")
        self.stamp("topk")

    BIS = 6
    KS1 = 12
    KS2 = 40
    YL = 1
    FPRE = 0

    def topk_slow(self):
        self.a("L_topslow:")
        self.bisect(8, "b")
        self.extract(8)
        self.a("s_branch L_topdone")

    def key_token(self, d, k):
        self.a(f"v_and_b32 v{d}, 0x7ff, v{k}\nv_sub_u32 v{d}, 2047, v{d}")

    def ffn(self):
        a = self.a
        a(f"""
        s_cmp_lt_i32 s{sF}, 0
        s_cbranch_scc1 L_noffn
        ds_read2_b32 v[4:5], v11 offset0:1 offset1:3
        s_mov_b32 s{sA0}, {WS_HN}
        s_movk_i32 s{sA1}, 896
        s_waitcnt lgkmcnt(0)
        v_and_b32 v4, 511, v4
        v_and_b32 v5, 511, v5
        v_mad_u32_u24 v4, v4, s{sA1}, v10
        v_mad_u32_u24 v5, v5, s{sA1}, v10
        L_gpoll:
        buffer_load_dwordx4 v[32:35], v4, {srd(SWS)}, s{sA0} offen sc1
        buffer_load_dwordx4 v[36:39], v5, {srd(SWS)}, s{sA0} offen sc1
        """)
        self.ffn_pre2()
        a(f"""
        s_waitcnt vmcnt(1)
        ds_write_b128 v6, v[32:35]
        v_max3_u32 v22, v32, v33, v34
        s_waitcnt vmcnt(0)
        ds_write_b128 v6, v[36:39] offset:1056
        v_max3_u32 v22, v22, v35, v36
        v_max3_u32 v22, v22, v37, v38
        v_max_u32 v22, v22, v39
        v_cmp_eq_u32 vcc, -1, v22
        s_cbranch_vccz L_gok
        """)
        self.spin_guard("L_gok")
        a(f"""
        s_branch L_gpoll
        L_gok:
        """)
        self.stamp("gath")
        a("s_waitcnt lgkmcnt(0)\ns_barrier")
        lq = LQ(a)
        AF, BF, WD, D = self.AF, self.BF, self.WD, 40
        for s_ in range(14):
            lq.op(f"ds_read_b128 {vr(BF+4*s_,4)}, v13 offset:{s_*64}", s_)
        for s_ in range(14):
            if s_ % 2 == 0:
                lq.wait(s_ + 1)
            a(M16(D + 4 * (s_ % 2), AF + 4 * s_, BF + 4 * s_, D + 4 * (s_ % 2) if s_ > 1 else None))
        for k in range(4):
            a(f"v_add_f32 v{D+k}, v{D+k}, v{D+4+k}")
        a(f"""
        v_cvt_pk_bf16_f32 v44, v{D}, v{D+1}
        v_cvt_pk_bf16_f32 v45, v{D+2}, v{D+3}
        s_cmp_ge_u32 s{sW}, 2
        s_cbranch_scc1 L_nosilu
        """)
        self.unpack(48, 44)
        self.unpack(50, 45)
        for k in range(4):
            a(f"v_mul_f32 v{52+k}, {hex(fbits(-LOG2E))}, v{48+k}")
        for k in range(4):
            a(f"v_exp_f32 v{52+k}, v{52+k}")
        for k in range(4):
            a(f"v_add_f32 v{52+k}, 1.0, v{52+k}")
        for k in range(4):
            a(f"v_rcp_f32 v{52+k}, v{52+k}")
        for k in range(4):
            a(f"v_mul_f32 v{48+k}, v{48+k}, v{52+k}")
        a(f"""
        v_cvt_pk_bf16_f32 v44, v48, v49
        v_cvt_pk_bf16_f32 v45, v50, v51
        L_nosilu:
        ds_write_b64 v7, v[44:45]
        s_waitcnt lgkmcnt(0)
        s_barrier
        ds_read_b64 v[32:33], v8
        ds_read_b64 v[36:37], v8 offset:1024
        ds_read_b64 v[34:35], v8 offset:512
        ds_read_b64 v[38:39], v8 offset:1536
        s_waitcnt lgkmcnt(0)
        """)
        for k in range(4):
            self.unpack(48 + 2 * k, 32 + k)
            self.unpack(56 + 2 * k, 36 + k)
        for k in range(4):
            a(f"v_pk_mul_f32 {vr(48+2*k,2)}, {vr(48+2*k,2)}, {vr(56+2*k,2)}")
        for k in range(4):
            a(f"v_cvt_pk_bf16_f32 v{44+k}, v{48+2*k}, v{49+2*k}")
        for i in range(7):
            a(M16(128 + 4 * i, WD + 4 * i, 44))
        a("s_mov_b32 exec_lo, 0x00ff00ff\ns_mov_b32 exec_hi, 0x00ff00ff")
        for i in range(7):
            a(f"buffer_store_dwordx4 {vr(128+4*i,4)}, v9, {srd(SWS)}, s99 offen offset:{512*i} sc1")
        a("s_mov_b64 exec, -1")
        self.stamp("ypub")
        a("L_noffn:")

    def out_rows(self):
        a = self.a
        a(f"""
        ds_read_b128 v[48:51], v15
        ds_read_b128 v[52:55], v16
        v_lshrrev_b32_e64 v22, v20, s80
        v_lshrrev_b32_e64 v23, v21, s80
        v_and_b32 v22, 1, v22
        v_and_b32 v23, 1, v23
        v_cmp_eq_u32 s[{sM}:{sM+1}], 0, v22
        v_cmp_eq_u32 vcc, 0, v23
        s_waitcnt lgkmcnt(0)
        s_mov_b64 exec, s[{sM}:{sM+1}]
        s_cbranch_execz L_out1
        buffer_store_dwordx4 v[48:51], v{self.VTG}, {srd(SOUT)}, s{sROW} offen
        L_out1:
        s_and_b32 vcc_hi, vcc_hi, 0xffff
        s_mov_b64 exec, vcc
        s_cbranch_execz L_out2
        buffer_store_dwordx4 v[52:55], v{self.VTG+1}, {srd(SOUT)}, s{sROW} offen
        L_out2:
        s_mov_b64 exec, -1
        """)

    def reducer(self):
        a = self.a
        a(f"""
        s_cmp_lt_i32 s{sU}, 0
        s_cbranch_scc1 L_fin
        s_cmp_lg_u32 s{sW}, 0
        s_cbranch_scc1 L_fin
        v_and_b32 v2, 7, v0
        v_lshl_add_u32 v3, v2, 3, s{sA4}
        ds_read_b64 v[12:13], v3
        v_lshrrev_b32 v5, 3, v0
        v_mul_u32_u24 v5, 14336, v5
        v_lshl_add_u32 v5, v2, 4, v5
        v_lshrrev_b32 v6, 4, v0
        s_lshl_b32 s{sT0}, s{sU}, 3
        v_lshl_add_u32 v6, v6, 1, s{sT0}
        s_movk_i32 s{sA1}, 896
        s_mov_b32 s{sA2}, {WS_HH}
        s_mov_b32 s{sA3}, {WS_HN}
        s_lshl_b32 s{sA0}, s{sU}, 7
        s_add_u32 s{sA0}, s{sA0}, {WS_Y}
        s_waitcnt lgkmcnt(0)
        """)
        self.key_token(7, 12)
        a(f"""
        v_and_b32 v13, 511, v13
        v_mad_u32_u24 v13, v13, s{sA1}, v6
        v_mad_u32_u24 v6, v7, s{sA1}, v6
        L_rpoll:
        buffer_load_ushort v8, v13, {srd(SWS)}, s{sA2} offen sc1
        buffer_load_ushort v9, v13, {srd(SWS)}, s{sA3} offen sc1
        v_lshlrev_b32 v10, 1, v12
        v_and_b32 v10, 0xffff0000, v10
        v_ashrrev_i32 v11, 31, v10
        v_not_b32 v11, v11
        v_or_b32 v11, 0x80000000, v11
        v_xor_b32 v10, v10, v11
        v_and_b32 v10, 0xffff0000, v10
        v_mul_f32 v10, {hex(fbits(-LOG2E))}, v10
        v_exp_f32 v10, v10
        v_add_f32 v10, 1.0, v10
        v_rcp_f32 v10, v10
        v_cvt_pk_bf16_f32 v10, v10, v10
        v_and_b32 v10, 0xffff0000, v10
        s_waitcnt vmcnt(0)
        v_max_u32 v11, v8, v9
        v_cmp_eq_u32 vcc, 0xffff, v11
        s_cbranch_vccz L_rok
        """)
        self.spin_guard("L_rok")
        a(f"""
        s_branch L_rpoll
        L_rok:
        v_lshlrev_b32 v8, 16, v8
        v_lshlrev_b32 v9, 16, v9
        """)
        self.stamp("rpre")
        if self.YL:
            a(f"""
            s_cmp_ge_u32 s{sU}, 56
            s_cselect_b32 s{sT0}, 56, 0
            s_sub_u32 s{sT0}, s{sU}, s{sT0}
            s_mul_i32 s{sT0}, s{sT0}, 14336
            s_add_u32 s{sA1}, s{sA0}, s{sT0}
            L_yhint:
            buffer_load_dword v32, v31, {srd(SWS)}, s{sA1} offen sc1
            s_waitcnt vmcnt(0)
            v_cmp_eq_u32 vcc, -1, v32
            s_cbranch_vccz L_ypoll
            """)
            self.spin_guard("L_ypoll")
            a(f"s_sleep {self.YL}\ns_branch L_yhint")
        a("L_ypoll:")
        for i in range(7):
            a(f"""
            s_add_u32 s{sT0}, s{sA0}, {i*8*14336}
            buffer_load_dwordx4 {vr(32+4*i,4)}, v5, {srd(SWS)}, s{sT0} offen sc1
            """)
        a("s_waitcnt vmcnt(0)")
        self.sentinel_any(range(32, 60), 22)
        a("s_cbranch_vccz L_yok")
        self.spin_guard("L_yok")
        a("s_branch L_ypoll\nL_yok:")
        self.stamp("yok")
        for (x, y) in ((32, 36), (40, 44), (48, 52), (32, 40), (48, 56), (32, 48)):
            a(f"v_pk_add_f32 {vr(x,2)}, {vr(x,2)}, {vr(y,2)}\nv_pk_add_f32 {vr(x+2,2)}, {vr(x+2,2)}, {vr(y+2,2)}")
        for k in range(4):
            a(f"v_add_f32_dpp v{36+k}, v{32+k}, v{32+k} row_ror:8 row_mask:0xf bank_mask:0xf bound_ctrl:1")
        a(f"""
        v_permlane16_swap_b32 v36, v37
        v_permlane16_swap_b32 v38, v39
        v_add_f32 v36, v36, v37
        v_add_f32 v38, v38, v39
        v_permlane32_swap_b32 v36, v38
        v_add_f32 v36, v36, v38
        v_cvt_pk_bf16_f32 v36, v36, v36
        v_and_b32 v36, 0xffff0000, v36
        v_mul_f32 v36, v36, v10
        v_cvt_pk_bf16_f32 v36, v36, v36
        v_and_b32 v36, 0xffff0000, v36
        v_add_f32 v36, v36, v9
        v_cvt_pk_bf16_f32 v36, v36, v36
        v_and_b32 v36, 0xffff0000, v36
        v_add_f32 v36, v36, v8
        v_cvt_pk_bf16_f32 v36, v36, v36
        s_mov_b32 exec_lo, 0x00ff00ff
        s_mov_b32 exec_hi, 0x00ff00ff
        buffer_store_short v36, v6, {srd(SOUT)}, 0 offen
        s_mov_b64 exec, -1
        """)
        self.stamp("rend")

    def tail(self):
        self.p3()
        self.topk()
        self.ffn()
        self.out_rows()
        self.reducer()

    def redo(self):
        self.topk_slow()
        super().redo()


if __name__ == "__main__":
    g = Full()
    s, n = g.build()
    sys.stdout.write(s)
    print("pads:", n, file=sys.stderr)
```

```python
import sys, os, struct
sys.path.insert(0, os.path.dirname(os.path.abspath(__file__)))
from asmb import Asm

NAME = "sequential_preLN__mha_block__moe_arch_mod__prompt_kernel"

WS_EPOCH = 0
WS_KVF = 0x1000
WS_CLF = 0x3000
WS_KEYS = 0x4000
WS_STATS = 0x20000
WS_KV = 0x100000
KVS = 4352
WS_OF = 0x580000
WS_HN = 0x780000
WS_HH = 0x800000
WS_Y = 0xB00000
WS_TS = 0xC00000
WS_SIZE = 0x1000000

L_W = 0
L_XR = 86016
L_CS = 151552
L_RS = 154624
L_QX = 155648
L_WO = 0
L_CB = 114688
L_ST = 147456
L_TR = 114688
L_SEL = 149504
L_AX = 149760
L_G = 138240
L_WG = 0
L_WU = 28672
L_WD = 57344
LDS_BYTES = 163840

SX, SWQ, SWS, SWO, SOUT, SWG, SWU, SWD, SWR = 8, 12, 16, 20, 24, 28, 32, 36, 40
sW, sH, sB, sT, sC, sNON, sI, sXCD = 44, 45, 46, 47, 48, 49, 50, 51
sKG = 52
sXO = 59
sONE = 60
sT0, sT1, sT2 = 61, 62, 63
sLO = 86
sM = 88
sA0, sA1, sA2, sA3, sA4, sA5 = 90, 91, 92, 93, 94, 95
sKVF, sKVO = 82, 83
sSPIN = 96
sPASS = 97
sTH = 98
sKT = 64
SPIN_MAX = 1 << 17

LOG2E = 1.4426950408889634


def fbits(x):
    return struct.unpack("<I", struct.pack("<f", x))[0]


def srd(r):
    return f"s[{r}:{r+3}]"


def vr(a, n):
    return f"v[{a}:{a+n-1}]" if n > 1 else f"v{a}"


def M32(d, a, b, c=None):
    return f"v_mfma_f32_32x32x16_bf16 {vr(d,16)}, {vr(a,4)}, {vr(b,4)}, {vr(c,16) if c is not None else 0}"


def M16(d, a, b, c=None):
    return f"v_mfma_f32_16x16x32_bf16 {vr(d,4)}, {vr(a,4)}, {vr(b,4)}, {vr(c,4) if c is not None else 0}"


def lines(t):
    return [x.strip() for x in t.strip().split("\n") if x.strip()]


class LQ:
    def __init__(self, a):
        self.a, self.q = a, []

    def op(self, text, tag):
        self.a(text)
        self.q.append(tag)

    def wait(self, tag):
        k = max(i for i, t in enumerate(self.q) if t == tag)
        self.a(f"s_waitcnt lgkmcnt({min(len(self.q) - 1 - k, 15)})")


sF, sU = 3, 4
sWOS, sWOM = 5, 6
sROW = 7
OOB = 0x7F000000


class Gen:
    def __init__(self, stop=None, ts=False, rot=True, force_fb=False, **kw):
        self.a = Asm()
        self.stop = stop
        self.ts = ts
        self.rot = rot
        self.force_fb = force_fb
        self.nts = 0
        self.tsn = []
        for k, v in kw.items():
            setattr(self, k, v)

    amp = None
    ampg = 80

    def stamp(self, name=""):
        if self.amp:
            if name == "entry":
                self.a("s_memrealtime s[100:101]")
            elif name == self.amp:
                self.a("s_memrealtime s[84:85]\ns_waitcnt lgkmcnt(0)")
        if not self.ts:
            return
        k = self.nts
        self.nts += 1
        self.tsn.append(name)
        assert k < 32
        self.a(f"""
        s_memrealtime s[100:101]
        s_waitcnt lgkmcnt(0)
        v_writelane_b32 v254, s100, {k}
        s_memtime s[100:101]
        s_waitcnt lgkmcnt(0)
        v_writelane_b32 v254, s100, {32+k}
        """.replace("v254", self.TSV))

    def spin_guard(self, out_label):
        self.a(f"""
        s_add_u32 s{sSPIN}, s{sSPIN}, 1
        s_cmp_gt_u32 s{sSPIN}, {SPIN_MAX}
        s_cbranch_scc1 {out_label}
        """)

    def xhalf_sum(self, x, t):
        self.a(f"""
        v_mov_b32 v{t}, v{x}
        v_permlane32_swap_b32 v{x}, v{t}
        v_add_f32 v{x}, v{x}, v{t}
        """)

    def ln_scalars(self, S1, S2, mb, rs, t0, t1):
        self.a(f"""
        v_mul_f32 v{mb}, {hex(fbits(1/448))}, v{S1}
        v_mul_f32 v{t0}, {hex(fbits(1/448))}, v{S2}
        v_fma_f32 v{t0}, -v{mb}, v{mb}, v{t0}
        v_max_f32 v{t0}, 0, v{t0}
        v_cvt_pk_bf16_f32 v{t1}, v{mb}, v{t0}
        v_lshlrev_b32 v{mb}, 16, v{t1}
        v_and_b32 v{t0}, 0xffff0000, v{t1}
        v_add_f32 v{t0}, {hex(fbits(1e-5))}, v{t0}
        v_cvt_pk_bf16_f32 v{t0}, v{t0}, v{t0}
        v_and_b32 v{t0}, 0xffff0000, v{t0}
        v_sqrt_f32 v{t0}, v{t0}
        v_cvt_pk_bf16_f32 v{t0}, v{t0}, v{t0}
        v_and_b32 v{t0}, 0xffff0000, v{t0}
        v_rcp_f32 v{rs}, v{t0}
        """)

    def neg_split2(self, d, x, t):
        self.a(f"""
        v_cvt_pk_bf16_f32 v{t}, -v{x}, -v{x}
        v_and_b32 v{t}, 0xffff0000, v{t}
        v_sub_f32 v{d}, -v{x}, v{t}
        v_cvt_pk_bf16_f32 v{d}, v{t}, v{d}
        """.replace("v_sub_f32 ", "v_sub_f32_e64 "))

    def prologue(self):
        a = self.a
        a(f"""
        s_cmp_ge_u32 s2, 256
        s_cbranch_scc1 L_end
        """)
        self.stamp("entry")
        a(f"""
        s_load_dwordx16 s[64:79], s[0:1], 0
        s_load_dwordx4 s[80:83], s[0:1], 64
        s_load_dwordx2 s[84:85], s[0:1], 80
        v_lshrrev_b32 v1, 6, v0
        v_and_b32 v0, 63, v0
        s_and_b32 s{sXCD}, s2, 7
        s_lshr_b32 s{sI}, s2, 3
        v_readfirstlane_b32 s{sW}, v1
        s_lshr_b32 s{sT0}, s{sXCD}, 1
        s_and_b32 s{sT1}, s{sXCD}, 1
        s_and_b32 s{sC}, s{sI}, 3
        s_lshr_b32 s{sT2}, s{sI}, 2
        s_lshl_b32 s{sH}, s{sT0}, 2
        s_add_u32 s{sH}, s{sH}, s{sC}
        s_lshl_b32 s{sH}, s{sH}, 2
        s_mov_b32 s{sA0}, {self.HMAP & 0xffffffff}
        s_mov_b32 s{sA1}, {self.HMAP >> 32}
        s_lshr_b64 s[{sA0}:{sA1}], s[{sA0}:{sA1}], s{sH}
        s_and_b32 s{sH}, s{sA0}, 15
        s_lshl_b32 s{sB}, s{sT1}, 3
        s_add_u32 s{sB}, s{sB}, s{sT2}
        s_lshl_b32 s{sT}, s{sT1}, 5
        s_lshl_b32 s{sT0}, s{sT0}, 3
        s_add_u32 s{sT}, s{sT}, s{sT0}
        s_add_u32 s{sT}, s{sT}, s{sT2}
        s_mov_b32 s{sONE}, 0x3f803f80
        s_mov_b32 s{sLO}, -1
        s_mov_b32 s{sLO+1}, 0
        s_mov_b32 s{sSPIN}, 0
        s_mov_b32 s{sPASS}, 0
        """)
        self.roles()
        a(f"""
        s_cmp_eq_u32 s{sW}, 4
        s_cbranch_scc1 L_helper
        """)
        if self.ROT == 7:
            a(f"""
            s_lshl_b32 s{sA0}, s{sC}, 1
            s_add_u32 s{sA0}, s{sA0}, s{sT2}
            s_cmp_ge_u32 s{sA0}, 7
            s_cselect_b32 s{sA1}, 7, 0
            s_sub_u32 s{sA0}, s{sA0}, s{sA1}
            """)
        elif self.ROT in (2, 4):
            a(f"""
            s_add_u32 s{sA0}, s{sC}, s{sT2}
            s_and_b32 s{sA0}, s{sA0}, {self.ROT-1}
            s_mul_i32 s{sA0}, s{sA0}, {self.ROTS}
            """)
        else:
            a(f"s_mov_b32 s{sA0}, 0")
        a(f"""
        v_lshrrev_b32 v22, 3, v0
        v_mul_u32_u24 v22, 896, v22
        v_lshrrev_b32 v23, 4, v0
        v_and_b32 v24, 7, v0
        v_xor_b32 v23, v23, v24
        v_lshl_add_u32 v1, v23, 4, v22
        v_xor_b32 v23, 4, v23
        v_lshl_add_u32 v2, v23, 4, v22
        v_add_u32 v2, {7168-1024}, v2
        v_add_u32 v3, {2*(7168-1024)}, v1
        v_add_u32 v4, {2*(7168-1024)}, v2
        v_lshrrev_b32 v22, 2, v0
        v_mul_u32_u24 v22, 2688, v22
        v_and_b32 v23, 3, v0
        v_lshlrev_b32 v23, 4, v23
        v_min_u32 v23, 40, v23
        v_add_u32 v5, v23, v22
        """)
        a(f"""
        s_lshl_b32 s{sXO}, s{sB}, 2
        s_add_u32 s{sXO}, s{sXO}, s{sW}
        s_mul_i32 s{sXO}, s{sXO}, {32*896}
        """)
        for G in range(7):
            a(f"s_mov_b32 s{sKG+G}, s{sA0}")
            if G < 6:
                a(f"""
                s_add_u32 s{sA0}, s{sA0}, 1
                s_cmp_eq_u32 s{sA0}, 7
                s_cselect_b32 s{sA0}, 0, s{sA0}
                """)
        a(f"""
        s_mul_i32 s{sA1}, s{sW}, {16*2688}
        s_mul_i32 s{sA2}, s{sH}, 56
        s_add_u32 s{sA1}, s{sA1}, s{sA2}
        s_add_u32 s{sA1}, s{sA1}, 896
        s_lshl_b32 s{sA2}, s{sW}, 14
        s_add_u32 s{sA2}, s{sA2}, {L_XR}
        s_mul_i32 s{sA3}, s{sW}, 21504
        s_waitcnt lgkmcnt(0)
        s_add_u32 s84, s84, {self.WSB << 20}
        s_addc_u32 s85, s85, 0
        s_load_dword s{sNON}, s[84:85], 0
        s_mov_b32 s{SX}, s64
        s_mov_b32 s{SX+1}, s65
        s_mov_b32 s{SX+2}, {2048*896}
        s_mov_b32 s{SX+3}, 0x20000
        s_mov_b32 s{SWQ}, s66
        s_mov_b32 s{SWQ+1}, s67
        s_mov_b32 s{SWQ+2}, {448*2688}
        s_mov_b32 s{SWQ+3}, 0x20000
        """)
        a("\n".join(self.dma_x(0) + self.dma_w(0) + self.dma_x(1)))
        self.srds()
        a(f"""
        v_and_b32 v22, 31, v0
        v_lshrrev_b32 v23, 5, v0
        v_lshrrev_b32 v24, 1, v22
        v_and_b32 v24, 7, v24
        v_xor_b32 v24, v24, v23
        v_lshlrev_b32 v22, 7, v22
        v_add_u32 v22, s{sA2}, v22
        v_lshrrev_b32 v25, 2, v0
        v_and_b32 v25, 3, v25
        v_lshl_add_u32 v25, v23, 3, v25
        v_lshlrev_b32 v25, 6, v25
        v_lshrrev_b32 v26, 4, v0
        v_and_b32 v26, 1, v26
        v_lshl_add_u32 v25, v26, 5, v25
        v_lshrrev_b32 v27, 1, v0
        v_and_b32 v27, v27, v26
        v_and_b32 v26, 3, v0
        v_xor_b32 v26, v26, v27
        v_lshl_add_u32 v25, v26, 3, v25
        """)
        for p in range(4):
            a(f"""
            s_add_u32 s{sT0}, s{sW}, {p}
            s_and_b32 s{sT0}, s{sT0}, 3
            s_lshl_b32 s{sT1}, s{sT0}, 1
            s_mul_i32 s{sT2}, s{sT0}, 21504
            v_xor_b32 v26, s{sT1}, v24
            v_lshl_add_u32 v{6+p}, v26, 4, v22
            v_add_u32 v{10+p}, s{sT2}, v25
            """)
        for r in list(range(14, 22)) + [31, 97, 98, 99, 101, 102, 103, 105, 106, 107]:
            a(f"v_mov_b32 v{r}, 0")
        a("\n".join(self.dma_w(1) + self.dma_x(2)))
        for p in range(4):
            a(f"""
            s_add_u32 s{sT0}, s{sW}, {p+1}
            s_and_b32 s{sT0}, s{sT0}, 3
            s_lshl_b32 s{sT0}, s{sT0}, 11
            s_add_u32 s{sT0}, s{sT0}, {L_QX}
            v_lshl_add_u32 v{124+p}, v0, 4, s{sT0}
            """)
        a(f"""
        s_lshl_b32 s{sT0}, s{sH}, 2
        s_add_u32 s{sT0}, s{sT0}, s{sW}
        s_lshl_b32 s{sT0}, s{sT0}, 7
        s_add_u32 s{sKVF}, s{sT0}, {WS_KVF}
        s_lshl_b32 s{sT1}, s{sB}, 2
        s_add_u32 s{sKVO}, s{sT1}, s{sKVF}
        s_lshl_b32 s{sT0}, s{sH}, 6
        s_add_u32 s{sT0}, s{sT0}, s{sW}
        s_mul_i32 s{sT0}, s{sT0}, {KVS}
        s_add_u32 s{sT0}, s{sT0}, {WS_KV}
        """)
        for i in range(16):
            a(f"""
            s_add_u32 s{sT1}, s{sB}, {i}
            s_and_b32 s{sT1}, s{sT1}, 15
            s_mul_i32 s{sT1}, s{sT1}, {4*KVS}
            s_add_u32 s{sKT+i}, s{sT1}, s{sT0}
            """)
        self.stamp("issued")

    def roles(self):
        self.a(f"""
        s_lshr_b32 s{sT0}, s{sI}, 2
        s_sub_u32 s{sT0}, s{sI}, s{sT0}
        s_sub_u32 s{sT0}, s{sT0}, 1
        s_mul_i32 s{sT1}, s{sXCD}, 7
        s_add_u32 s{sF}, s{sT0}, s{sT1}
        s_cmp_lt_u32 s{sI}, 10
        s_cselect_b32 s{sF}, s{sF}, -1
        s_cmp_eq_u32 s{sC}, 0
        s_cselect_b32 s{sF}, -1, s{sF}
        s_mul_i32 s{sT1}, s{sXCD}, 14
        s_sub_u32 s{sT0}, s{sI}, 10
        s_add_u32 s{sU}, s{sT0}, s{sT1}
        s_cmp_lt_u32 s{sT0}, 14
        s_cselect_b32 s{sU}, s{sU}, -1
        s_mul_i32 s{sROW}, s{sT}, {32*896}
        s_mul_i32 s{sT0}, s{sC}, 224
        s_add_u32 s{sROW}, s{sROW}, s{sT0}
        """)

    def cand_base(self, d, w):
        w = f"s{w}" if w >= 4 else str(w)
        self.a(f"""
        s_lshl_b32 s{sT0}, s{sT}, 1
        s_and_b32 s{sT1}, {w}, 1
        s_add_u32 s{sT0}, s{sT0}, s{sT1}
        s_mul_i32 s{sT0}, s{sT0}, {4*896}
        s_mul_i32 s{sT1}, s{sC}, 224
        s_add_u32 s{sT0}, s{sT0}, s{sT1}
        s_lshr_b32 s{sT1}, {w}, 1
        s_mul_i32 s{sT1}, s{sT1}, {WS_HH-WS_HN}
        s_add_u32 s{sT0}, s{sT0}, s{sT1}
        s_add_u32 s{d}, s{sT0}, {WS_HN}
        """)

    def srds(self):
        for r, p, n in ((SWS, 84, WS_SIZE), (SWO, 68, 448 * 896), (SOUT, 80, 2048 * 896), (SWG, 74, 448 * 3584),
                        (SWU, 76, 448 * 3584), (SWD, 78, 1792 * 896), (SWR, 72, 896)):
            self.a(f"""
            s_mov_b32 s{r}, s{p}
            s_mov_b32 s{r+1}, s{p+1}
            s_mov_b32 s{r+2}, {n}
            s_mov_b32 s{r+3}, 0x20000
            """)

    def dma_x(self, G):
        if G > 6:
            return []
        return lines(f"""
        s_lshl_b32 s{sT0}, s{sKG+G}, 7
        s_add_u32 m0, s{sA2}, {(G%4)*4096}
        s_add_u32 s{sT0}, s{sT0}, s{sXO}
        buffer_load_dwordx4 v1, {srd(SX)}, s{sT0} offen lds
        buffer_load_dwordx4 v2, {srd(SX)}, s{sT0} offen offset:1024 lds
        buffer_load_dwordx4 v3, {srd(SX)}, s{sT0} offen offset:2048 lds
        buffer_load_dwordx4 v4, {srd(SX)}, s{sT0} offen offset:3072 lds
        """)

    def dma_w(self, G):
        return lines(f"""
        s_mul_i32 s{sKG+G}, s{sKG+G}, {64*2688}
        s_add_u32 m0, s{sA3}, {L_W+G*3072}
        s_add_u32 s{sKG+G}, s{sKG+G}, s{sA1}
        s_sub_u32 s{sT1}, s{sKG+G}, 128
        buffer_load_dwordx4 v5, {srd(SWQ)}, s{sKG+G} offen lds
        buffer_load_dwordx4 v5, {srd(SWQ)}, s{sT1} offen offset:1024 lds
        """)

    def dma_q(self, G):
        return [f"s_add_u32 m0, s{sA3}, {L_W+G*3072+2048}", f"s_sub_u32 s{sT1}, s{sKG+G}, 896",
                f"buffer_load_dwordx4 v5, {srd(SWQ)}, s{sT1} offen lds"]

    LA = 2
    HMAP = sum(h << (4 * k) for k, h in enumerate(range(16)))
    TSV = 'v29'
    ATS = 0
    P1S = 0
    FLAGAT = 24
    ROT = 2
    ROTS = 1
    NT = 0

    def touches(self):
        return []

    def p1(self):
        a = self.a
        XF, AK, AV, AQ, WF = 128, 32, 48, 64, 80
        XE = 96
        RS = 108
        KO, VO = 240, 248
        s1, s2, csK, csV = (14, 15), (16, 17), 18, 19
        WEK, WEV = 100, 104
        queue = [("x", 0)] * 4 + [("w", 0)] * 2 + [("x", 1)] * 4 + [("w", 1)] * 2 + [("x", 2)] * 4

        def newer(tag):
            k = max(i for i, t in enumerate(queue) if t == tag)
            return len(queue) - 1 - k

        def xstats(G):
            for n in range(4 * G, 4 * G + 4):
                for i in range(4):
                    a(f"v_dot2c_f32_bf16 v{s1[i%2]}, s{sONE}, v{XF+4*n+i}")
                    a(f"v_dot2c_f32_bf16 v{s2[i%2]}, v{XF+4*n+i}, v{XF+4*n+i}")

        WBS = ([80, 88, 240, 248], [64, 72, 108, 116])

        def xreads(G):
            return [f"ds_read_b128 {vr(XF+4*(4*G+q),4)}, v{6+q} offset:{(G%4)*4096}" for q in range(4)] if G < 7 else []

        def wreads(G):
            WB = WBS[G % 2]
            return [f"ds_read_b64_tr_b16 {vr(WB[p]+4*t+2*hlf,2)}, v{10+p} offset:{G*3072+t*1024+hlf*256}"
                    for p in range(4) for t in range(2) for hlf in range(2)]

        def batch(G):
            r = []
            if G <= 6:
                r = self.dma_w(G) + self.dma_x(G + 1)
                queue.extend([("w", G)] * 2 + ([("x", G + 1)] * 4 if G < 6 else []))
            return r

        a(f"s_waitcnt vmcnt({newer(('x', 0))})")
        for x in xreads(0):
            a(x)
        a("s_waitcnt lgkmcnt(0)")
        a(f"""
        s_mul_i32 s{sNON}, s{sNON}, 0x19660d
        s_add_u32 s{sNON}, s{sNON}, 0x3c6ef35f
        v_mov_b32 v30, s{sNON}
        """)
        xstats(0)
        a(f"s_waitcnt vmcnt({newer(('x', 1))})\ns_barrier")
        self.stamp("g0")
        for x in wreads(0)[:4] + xreads(1) + wreads(0)[4:]:
            a(x)
        for x in batch(2):
            a(x)
        qsched = {4: [0, 1, 2, 3], 5: [4, 5, 6]}
        for G in range(7):
            WB = WBS[G % 2]
            if self.P1S:
                self.stamp(f"G{G}")
            a("s_waitcnt lgkmcnt(12)")
            for i in range(4):
                a(f"v_dot2c_f32_bf16 v{csK}, s{sONE}, v{WB[0]+i}")
                a(f"v_dot2c_f32_bf16 v{csV}, s{sONE}, v{WB[0]+4+i}")
            if G < 6:
                xstats(G + 1)
            else:
                a(f"""
                ds_write_b32 v24, v{csK}
                ds_write_b32 v24, v{csV} offset:1024
                """)
            gaps = [[] for _ in range(8)]
            early = batch(G + 3)
            for k in qsched.get(G, ()):
                early += self.dma_q(k)
                queue.append(("q", k))
            if G == 4:
                early += lines(f"""v_and_b32 v22, 31, v0
                v_lshlrev_b32 v22, 5, v22
                v_add_u32 v23, {L_CS}, v22
                v_lshrrev_b32 v24, 5, v0
                s_lshl_b32 s{sT0}, s{sW}, 3
                v_lshl_add_u32 v24, v24, 2, v23
                v_add_u32 v24, s{sT0}, v24""")
            if G == 5:
                sub = Gen()
                sub.a(f"""
                v_add_f32 v14, v14, v15
                v_add_f32 v16, v16, v17
                v_permlane32_swap_b32 v14, v16
                v_add_f32 v14, v14, v16
                v_mov_b32 v16, v14
                v_permlane32_swap_b32 v14, v16
                """)
                sub.ln_scalars(14, 16, 26, 28, 15, 17)
                sub.a(f"""
                v_lshrrev_b32 v15, 16, v26
                v_or_b32 v15, v15, v26
                v_cndmask_b32 v{XE}, 0, v15, s[{sLO}:{sLO+1}]
                v_and_b32 v15, 31, v0
                s_lshl_b32 s{sT0}, s{sW}, 7
                s_add_u32 s{sT0}, s{sT0}, {L_RS}
                v_lshl_add_u32 v15, v15, 2, s{sT0}
                v_lshrrev_b32 v25, 5, v0
                v_lshl_add_u32 v25, v25, 4, s{sT0}
                ds_write_b32 v15, v28
                """)
                stats = [x[1].text for x in sub.a.items]
                early = early + stats[:8]
                stats = stats[8:]
            if G < 6:
                per = -(-len(early) // 3)
                for k in range(3):
                    gaps[k] = early[k * per:(k + 1) * per]
                w = wreads(G + 1)
                rd = w[:4] + xreads(G + 2) + w[4:]
                gaps[2] += [f"s_waitcnt vmcnt({newer(('x', G+2) if G < 5 else ('w', 6))})", "s_barrier"]
                per = -(-len(rd) // 5)
                for k in range(5):
                    gaps[3 + k] = rd[per * k:per * k + per]
            else:
                sub = Gen()
                for mat, we in ((0, WEK), (1, WEV)):
                    r = RS + 8 * mat
                    sub.a(f"""
                    v_add_f32 v{r}, v{r}, v{r+1}
                    v_add_f32 v{r+2}, v{r+2}, v{r+3}
                    v_add_f32 v{r+4}, v{r+4}, v{r+5}
                    v_add_f32 v{r+6}, v{r+6}, v{r+7}
                    v_add_f32 v{r}, v{r}, v{r+2}
                    v_add_f32 v{r+4}, v{r+4}, v{r+6}
                    v_add_f32 v{r}, v{r}, v{r+4}
                    """)
                    sub.neg_split2(we, r, 22)
                Bc = [x[1].text for x in sub.a.items]
                gaps[0] = stats[:4] + ["s_waitcnt lgkmcnt(0)", "s_barrier"] + \
                    [f"ds_read_b128 {vr(RS+4*i,4)}, v23 offset:{(i//2)*1024+(i%2)*16}" for i in range(4)]
                A = stats[4:]
                mix = A[:6] + ["s_waitcnt lgkmcnt(0)"]
                A = A[6:]
                while A or Bc:
                    mix += A[:1] + Bc[:2]
                    A, Bc = A[1:], Bc[2:]
                per = -(-len(mix) // 7)
                for k in range(7):
                    gaps[1 + k] = mix[k * per:(k + 1) * per]
            for p in range(4):
                m = 4 * G + p
                if p == 1 and G < 6:
                    a("s_waitcnt lgkmcnt(0)")
                a(M32(AK, WB[p], XF + 4 * m, AK if m else None))
                for x in gaps[2 * p]:
                    a(x)
                a(M32(AV, XF + 4 * m, WB[p] + 4, AV if m else None))
                for x in gaps[2 * p + 1]:
                    a(x)
        a(M32(AK, WEK, XE, AK))
        a("s_waitcnt lgkmcnt(0)")
        for g in range(4):
            a(f"ds_read_b128 {vr(RS+4*g,4)}, v25 offset:{g*32}")
        a(M32(AV, XE, WEV, AV))
        a(f"""
        v_lshlrev_b32 v1, 4, v0
        v_and_b32 v22, 31, v0
        v_cmp_gt_u32 vcc, 28, v22
        v_mov_b32 v14, s{sONE}
        v_mov_b32 v27, 0x3f80
        v_cndmask_b32 v15, 0, -1, vcc
        v_cmp_eq_u32 vcc, 28, v22
        """)
        for i in range(8):
            a(f"v_pk_mul_f32 {vr(AK+2*i,2)}, {vr(AK+2*i,2)}, {vr(28,2)} op_sel_hi:[1,0]")
        a("v_cndmask_b32 v22, 0, v14, vcc")
        for i in range(8):
            a(f"v_cvt_pk_bf16_f32 v{KO+i}, v{AK+2*i}, v{AK+2*i+1}")
            if i == 3:
                a(f"buffer_store_dwordx4 {vr(KO,4)}, v1, {srd(SWS)}, s{sKT} offen sc1")
        a(f"""
        v_cndmask_b32 v{KO+6}, v14, v{KO+6}, s[{sLO}:{sLO+1}]
        v_cndmask_b32 v{KO+7}, v27, v{KO+7}, s[{sLO}:{sLO+1}]
        buffer_store_dwordx4 {vr(KO+4,4)}, v1, {srd(SWS)}, s{sKT} offen offset:1024 sc1
        s_waitcnt lgkmcnt(0)
        """)
        for hf in range(2):
            for i in range(4 * hf, 4 * hf + 4):
                a(f"v_pk_mul_f32 {vr(AV+2*i,2)}, {vr(AV+2*i,2)}, {vr(RS+2*i,2)}")
            for i in range(4 * hf, 4 * hf + 4):
                a(f"v_cvt_pk_bf16_f32 v{VO+i}, v{AV+2*i}, v{AV+2*i+1}")
            for i in range(4 * hf, 4 * hf + 4):
                a(f"v_and_or_b32 v{VO+i}, v{VO+i}, v15, v22")
            a(f"buffer_store_dwordx4 {vr(VO+4*hf,4)}, v1, {srd(SWS)}, s{sKT} offen offset:{2048+1024*hf} sc1")
        a(f"v_lshlrev_b32 v6, 2, v0\nv_add_u32 v6, 4096, v6")
        a("\n".join(self.kv_sum(KO, 7)))
        a(f"buffer_store_dword v7, v6, {srd(SWS)}, s{sKT} offen sc1")
        queue.extend([("st", 0)] * 5)
        self.stamp("kvpub")
        QR = 32
        lq = LQ(a)
        order = list(range(20)) + [24, 20, 21, 22, 23, 25, 26, 27]
        stage_end = {0: 1, 8: 4, 20: 6}

        def qread(n):
            G, p = divmod(order[n], 4)
            if n in stage_end:
                if self.P1S and n:
                    self.stamp(f"q{n}")
                a(f"s_waitcnt vmcnt({newer(('q', stage_end[n]))})\ns_barrier")
            for hlf in range(2):
                lq.op(f"ds_read_b64_tr_b16 {vr(QR+4*(n%8)+2*hlf,2)}, v{10+p} offset:{G*3072+2048+hlf*256}", n)

        PD = 3
        a(f"s_mov_b32 s{sA0}, 0xffff0000")
        for n in range(PD):
            qread(n)
        U = 108
        sub = Gen()
        sub.a(f"""
        v_add_f32 v{RS}, v{RS}, v{RS+1}
        v_add_f32 v{RS+2}, v{RS+2}, v{RS+3}
        v_add_f32 v{RS+4}, v{RS+4}, v{RS+5}
        v_add_f32 v{RS+6}, v{RS+6}, v{RS+7}
        v_add_f32 v{RS}, v{RS}, v{RS+2}
        v_add_f32 v{RS+4}, v{RS+4}, v{RS+6}
        v_add_f32 v{RS}, v{RS}, v{RS+4}
        """)
        sub.neg_split2(WEV, RS, 22)
        fin = [x[1].text for x in sub.a.items]
        for n in range(28):
            lq.wait(n)
            a(M32(AQ, QR + 4 * (n % 8), XF + 4 * order[n], AQ if n else None))
            if n + PD < 28:
                qread(n + PD)
            unp = lambda fr, u, k: f"v_lshlrev_b32 v{u+2*k}, 16, v{fr+k}\nv_and_b32 v{u+2*k+1}, s{sA0}, v{fr+k}"
            add = lambda u, k: f"v_add_f32 v{20+k%2}, v{20+k%2}, v{u+k}"
            if n < 20:
                p = n % 4
                fr = QR + 4 * ((n - p) % 8)
                if p < 2:
                    a(unp(fr, U, 2 * p) + "\n" + unp(fr, U, 2 * p + 1))
                else:
                    for k in range(4 * (p - 2), 4 * (p - 2) + 4):
                        a(add(U, k))
            elif n in (20, 21):
                for k in range(4):
                    a(unp(QR + 4 * (n % 8), U + 8 * (n - 20), k))
            elif n == 22:
                for k in range(16):
                    a(add(U, k))
                a("v_add_f32 v20, v20, v21")
                lq.op("ds_write_b32 v24, v20 offset:2048", "cs")
            elif n == 23:
                a(f"v_mul_f32 v28, {hex(fbits(LOG2E*28**-0.5))}, v28")
                lq.wait("cs")
                a("s_barrier")
                lq.op(f"ds_read_b128 {vr(RS,4)}, v23 offset:2048", "r")
                lq.op(f"ds_read_b128 {vr(RS+4,4)}, v23 offset:2064", "r")
            if n == self.FLAGAT:
                a(f"""
                s_waitcnt vmcnt(0)
                s_mov_b64 exec, 1
                buffer_store_dword v30, v31, {srd(SWS)}, s{sKVO} offen sc1
                s_mov_b64 exec, -1
                """)
            if n == 25:
                lq.wait("r")
                a("\n".join(fin[:6]))
            if n == 26:
                a("\n".join(fin[6:]))
        if self.P1S:
            self.stamp("qmm")
        a(M32(AQ, WEV, XE, AQ))
        if self.EARLY:
            a("\n".join(self.kv_load(1, k) for k in range(5)))
        QO = 80
        for i in range(8):
            a(f"v_pk_mul_f32 {vr(AQ+2*i,2)}, {vr(AQ+2*i,2)}, {vr(28,2)} op_sel_hi:[1,0]")
        for i in range(8):
            a(f"v_cvt_pk_bf16_f32 v{QO+i}, v{AQ+2*i}, v{AQ+2*i+1}")
        a(f"""
        v_cndmask_b32 v{QO+6}, 0, v{QO+6}, s[{sLO}:{sLO+1}]
        v_cndmask_b32 v{QO+7}, 0, v{QO+7}, s[{sLO}:{sLO+1}]
        """)
        S = 32
        a(M32(S, KO, QO))
        a(M32(S, KO + 4, QO + 4, S))
        a(f"ds_write_b128 v127, {vr(QO,4)}")
        a(f"""
        v_and_b32 v2, 15, v0
        v_lshlrev_b32 v2, 2, v2
        s_mov_b32 s{sA2}, 0x00010001
        s_lshl_b32 s{sA2}, s{sA2}, s{sB}
        s_mov_b32 s{sA3}, s{sA2}
        """)
        if self.P1S:
            self.stamp("smm")
        self.rowmax16(S, 22)
        if self.force_fb:
            a("v_add_f32 v22, 0xc3480000, v22")
        self.shift_split(22, 23, 24, 25)
        a(f"""
        v_cndmask_b32 v{QO+6}, v23, v{QO+6}, s[{sLO}:{sLO+1}]
        v_cndmask_b32 v{QO+7}, v24, v{QO+7}, s[{sLO}:{sLO+1}]
        ds_write_b128 v127, {vr(QO+4,4)} offset:1024
        s_waitcnt lgkmcnt(0)
        s_barrier
        """)
        for p in range(4):
            a(f"ds_read_b128 {vr(128+8*p,4)}, v{124+p}")
            a(f"ds_read_b128 {vr(128+8*p+4,4)}, v{124+p} offset:1024")
        self.stamp("qdone")

    def rowmax16(self, S, d):
        self.a(f"""
        v_max3_f32 v{d}, v{S}, v{S+1}, v{S+2}
        v_max3_f32 v{d+1}, v{S+3}, v{S+4}, v{S+5}
        v_max3_f32 v{d}, v{d}, v{S+6}, v{S+7}
        v_max3_f32 v{d+1}, v{d+1}, v{S+8}, v{S+9}
        v_max3_f32 v{d}, v{d}, v{S+10}, v{S+11}
        v_max3_f32 v{d+1}, v{d+1}, v{S+12}, v{S+13}
        v_max3_f32 v{d}, v{d}, v{S+14}, v{S+15}
        v_max_f32 v{d}, v{d}, v{d+1}
        v_mov_b32 v{d+1}, v{d}
        v_permlane32_swap_b32 v{d}, v{d+1}
        v_max_f32 v{d}, v{d}, v{d+1}
        """)

    def shift_split(self, m, d6, d7, t):
        self.a(f"""
        v_cvt_pk_bf16_f32 v{d6}, -v{m}, -v{m}
        v_and_b32 v{d6}, 0xffff0000, v{d6}
        v_sub_f32_e64 v{d7}, -v{m}, v{d6}
        v_cvt_pk_bf16_f32 v{t}, v{d7}, v{d7}
        v_and_b32 v{t}, 0xffff0000, v{t}
        v_sub_f32 v{d7}, v{d7}, v{t}
        v_cvt_pk_bf16_f32 v{d6}, v{d6}, v{t}
        v_cvt_pk_bf16_f32 v{d7}, v{d7}, 0
        """)

    Q, O, SA, SB, TT, P = 128, 160, 32, 48, 64, 72
    KVB = (240, 224, 80, 96)
    XR2, W2, S4 = 240, 120, 112
    VTG = 116

    def unit(self, i, qt, extra):
        a = self.a
        Q, O, TT, P, B = self.Q, self.O, self.TT, self.P, self.KVB
        n = 4 * i + qt
        buf, bufn, bufp = B[i % 4], B[(i + 1) % 4], B[(i - 1) % 4]
        Sc, Sn = (self.SA, self.SB) if n % 2 == 0 else (self.SB, self.SA)
        kn = buf if qt < 3 else bufn
        qn, qp = (qt + 1) % 4, (qt - 1) % 4
        vp = (buf if qt > 0 else bufp) + 8
        ms = [M32(Sn, kn, Q + 8 * qn), M32(O + 16 * qp, vp + 4, P + 4, O + 16 * qp),
              M32(Sn, kn + 4, Q + 8 * qn + 4, Sn),
              M32(O + 16 * qt, buf + 8, P, None if i == 0 else O + 16 * qt)]
        for g in range(4):
            for x in extra.get(("pre", g), ()):
                a(x)
            if not (n == 0 and g == 1) and not (n == 63 and g in (0, 2)):
                a(ms[g])
            for x in extra.get(g, ()):
                a(x)
            tb, tp, pp = TT + 4 * (g % 2), TT + 4 * ((g + 1) % 2), P + 2 * ((g - 1) % 4)
            a(f"v_exp_f32 v{tb}, v{Sc+4*g}")
            a(f"v_exp_f32 v{tb+1}, v{Sc+4*g+1}")
            if not (n == 0 and g == 0):
                a(f"v_cvt_pk_bf16_f32 v{pp}, v{tp}, v{tp+1}")
                a(f"v_cvt_pk_bf16_f32 v{pp+1}, v{tp+2}, v{tp+3}")
            a(f"v_exp_f32 v{tb+2}, v{Sc+4*g+2}")
            a(f"v_exp_f32 v{tb+3}, v{Sc+4*g+3}")

    def kv_sum(self, buf, d):
        return [f"v_add3_u32 v{d}, v{buf+2*k}, v{buf+2*k+1}, v{d if k else 30}" for k in range(8)]

    def kv_load(self, i, part, buf=None):
        buf = self.KVB[i % 4] if buf is None else buf
        if part == 4:
            return f"buffer_load_dword v{14+i%4}, v6, {srd(SWS)}, s{sKT+i} offen sc1"
        return f"buffer_load_dwordx4 {vr(buf+4*part,4)}, v1, {srd(SWS)}, s{sKT+i} offen offset:{1024*part} sc1"

    NV = 3
    EARLY = 1
    POLLQ = 2

    def attention(self):
        a = self.a
        Q, O, P, TT, B = self.Q, self.O, self.P, self.TT, self.KVB
        NV = self.NV
        queue = []

        def newer(tag):
            k = max(i for i, t in enumerate(queue) if t == tag)
            return len(queue) - 1 - k

        def ld(i, part):
            queue.append((i, part))
            return self.kv_load(i, part)

        def other(text):
            if text.startswith("buffer_"):
                queue.append("o")
            return text

        first = [ld(1, k) for k in range(5)]
        if not self.EARLY:
            a("L_att:")
            a("\n".join(first))
        else:
            a("L_att:")
        a("s_waitcnt lgkmcnt(4)")
        a(M32(self.SA, B[0], Q))
        a(M32(self.SA, B[0] + 4, Q + 4, self.SA))
        self.retry = []

        def check(t):
            self.retry.append(t)
            return [f"s_waitcnt vmcnt({newer((t, 4))})", f"L_kvc{t}:"] + self.kv_sum(B[t % 4], 7) + \
                [f"v_cmp_ne_u32 vcc, v7, v{14+t%4}", f"s_cbranch_vccnz L_kvr{t}", f"L_kvd{t}:"]

        late = {}
        self.first_waits = True
        late[(12, 1)] = lines(f"""
        v_and_b32 v22, 31, v0
        v_lshrrev_b32 v23, 5, v0
        v_lshlrev_b32 v23, 3, v23
        v_mul_u32_u24 v22, 896, v22""")
        late[(12, 2)] = lines(f"""
        v_add_u32 v22, v22, v23
        s_mul_i32 s{sT1}, s{sW}, 56
        s_add_u32 s{sT0}, s{sROW}, s{sT1}
        s_mul_i32 s{sT2}, s{sC}, 224
        s_add_u32 s{sT1}, s{sT1}, s{sT2}""")
        xl = [f"buffer_load_dwordx2 {vr(self.XR2+2*g,2)}, v22, {srd(SX)}, s{sT0} offen offset:{16*g}" for g in range(4)]
        wl = [f"buffer_load_dwordx2 {vr(self.W2+2*g,2)}, v23, {srd(SWR)}, s{sT1} offen offset:{16*g}" for g in range(4)]
        late[(13, 0)] = wl[:1]
        late[(13, 1)] = wl[1:2] + xl[:1]
        late[(13, 2)] = wl[2:3] + xl[1:2]
        late[(13, 3)] = wl[3:] + xl[2:3]
        late[(14, 0)] = xl[3:] + lines(f"""
        s_lshl_b32 s{sA4}, s{sW}, 8
        s_add_u32 s{sA4}, s{sA4}, {WS_CLF}
        v_lshlrev_b32 v5, 2, v0""")
        late[(14, 1)] = [f"buffer_load_dword v4, v5, {srd(SWS)}, s{sA4} offen sc1"]
        cb = []
        for p in range(3):
            cb += lines(f"""
            s_add_u32 s{sT0}, s{sW}, {p+1}
            s_and_b32 s{sT0}, s{sT0}, 3
            s_mul_i32 s{sT0}, s{sT0}, 12288
            s_add_u32 s{sT0}, s{sT0}, {L_CB+p*4096}
            v_add_u32 v{10+p}, s{sT0}, v1""")
        cb += lines(f"""
        s_mul_i32 s{sT0}, s{sW}, 12288
        s_add_u32 s{sT0}, s{sT0}, {L_CB}
        v_add_u32 v13, s{sT0}, v1
        v_mov_b32 v8, {hex(fbits(2.0**100))}""")
        late[(14, 2)], late[(14, 3)], late[(15, 0)] = cb[:7], cb[7:13], cb[13:]
        wr = lambda p, k: f"ds_write_b128 v{10+p}, {vr(O+16*p+4*k,4)} offset:{k*1024}"
        for i in range(16):
            for qt in range(4):
                ex = {}
                if i == 0 and qt == 1:
                    ex[("pre", 0)] = ["s_waitcnt lgkmcnt(0)"]
                pre0 = ex.get(("pre", 0), [])
                if qt == 3 and i < 15:
                    pre0 = pre0 + (check(i + 1) if i + 1 <= NV else [f"s_waitcnt vmcnt({newer((i + 1, 3))})"])
                if i == NV - 2 and qt == 0:
                    pre0 = pre0 + lines(f"""
                    s_waitcnt vmcnt({newer("p")})
                    L_kvpoll:
                    v_cmp_ne_u32 vcc, s{sNON}, v3
                    s_andn2_b64 vcc, vcc, s[{sA2}:{sA3}]
                    s_cbranch_vccnz L_kvpr
                    L_kvok:""")
                ex[("pre", 0)] = pre0
                if i == NV - 3 and qt == self.POLLQ:
                    ex[1] = [f"buffer_load_dword v3, v2, {srd(SWS)}, s{sKVF} offen sc1"]
                    queue.append("p")
                if i == 0:
                    t = 2 + qt // 2
                    lds_ = [ld(t, k) for k in ((0, 1) if qt % 2 == 0 else (2, 3, 4))]
                    ex[2], ex[3] = lds_[:-1], lds_[-1:]
                else:
                    ex[0] = [other(x) for x in late.get((i, qt), [])]
                    if i + 3 <= 15:
                        ex[2] = [ld(i + 3, qt)]
                        if qt == 3 and i + 3 <= NV:
                            ex[3] = [ld(i + 3, 4)]
                if i == 15:
                    if qt == 1:
                        ex[3] = [wr(0, 0)]
                    if qt == 2:
                        ex[0], ex[2], ex[3] = [wr(0, 1)], [wr(0, 2)], [wr(1, 0)]
                    if qt == 3:
                        ex[0], ex[2], ex[3] = [wr(1, 1)], [wr(1, 2)], [wr(2, 0)]
                self.unit(i, qt, ex)
                if i == 0 and qt == 3:
                    self.stamp("kvok")
                if i == 0 and qt == 3:
                    a("s_barrier")
                if self.ATS and qt == 3 and i in (0, 1, 2, 4, 6, 8, 10, 12, 14):
                    self.stamp(f"t{i}")
        a(f"""
        v_cvt_pk_bf16_f32 v{P+6}, v{TT+4}, v{TT+5}
        v_cvt_pk_bf16_f32 v{P+7}, v{TT+6}, v{TT+7}
        v_max3_f32 v9, v{O+12}, v{O+16+12}, v{O+32+12}
        """)
        a(M32(O + 48, B[3] + 12, P + 4, O + 48))
        a(wr(2, 1))
        a(wr(2, 2))
        self.stamp("attn")

    def combine(self):
        a = self.a
        O = self.O
        a(f"""
        L_clpoll:
        s_waitcnt vmcnt(0)
        v_cmp_ne_u32 vcc, s{sNON}, v4
        s_cbranch_vccz L_clok
        """)
        self.spin_guard("L_clok")
        a(f"""
        buffer_load_dword v4, v5, {srd(SWS)}, s{sA4} offen sc1
        s_branch L_clpoll
        L_clok:
        v_max_f32 v9, v9, v{O+48+12}
        v_cmp_nlt_f32 vcc, v9, v8
        s_andn2_b64 vcc, vcc, s[{sLO}:{sLO+1}]
        s_cmp_lg_u64 vcc, 0
        s_cselect_b32 s{sT1}, 0x3f800000, 0
        v_mov_b32 v8, s{sT1}
        """)
        for p in range(4):
            a(f"v_cndmask_b32 v{O+16*p+13}, v8, v{O+16*p+13}, s[{sLO}:{sLO+1}]")
        for p in range(3):
            a(f"ds_write_b128 v{10+p}, {vr(O+16*p+12,4)} offset:3072")
        a(f"""
        s_lshl_b32 s{sT0}, s{sB}, 2
        s_add_u32 s{sT0}, s{sT0}, s{sW}
        s_lshl_b32 s{sT0}, s{sT0}, 4
        s_add_u32 s{sT0}, s{sT0}, s{sH}
        s_lshl_b32 s{sT0}, s{sT0}, 11
        s_add_u32 s99, s{sT0}, {WS_OF}
        s_waitcnt lgkmcnt(0)
        s_barrier
        """)
        order = (3, 0, 1, 2)
        for k in order:
            for p in range(3):
                a(f"ds_read_b128 {vr(O+16*p+4*k,4)}, v13 offset:{p*4096+k*1024}")
        R = O + 48
        for c, k in enumerate(order):
            a(f"s_waitcnt lgkmcnt({9-3*c})")
            for i in range(2):
                r = 4 * k + 2 * i
                a(f"v_pk_add_f32 {vr(R+r,2)}, {vr(R+r,2)}, {vr(O+r,2)}")
                a(f"v_pk_add_f32 {vr(O+16+r,2)}, {vr(O+16+r,2)}, {vr(O+32+r,2)}")
            for i in range(2):
                r = 4 * k + 2 * i
                a(f"v_pk_add_f32 {vr(R+r,2)}, {vr(R+r,2)}, {vr(O+16+r,2)}")
            if c == 0:
                a(f"""
                v_mov_b32 v8, v{R+12}
                v_mov_b32 v9, v{R+12}
                v_readlane_b32 s{sT0}, v{R+13}, 32
                v_permlane32_swap_b32 v8, v9
                s_cmp_eq_u32 s{sT0}, 0
                s_cbranch_scc1 L_noredo
                s_cmp_eq_u32 s{sPASS}, 0
                s_cbranch_scc1 L_redo
                L_noredo:
                v_rcp_f32 v8, v9
                """)
        OP = 32
        for hf in range(2):
            for i in range(4 * hf, 4 * hf + 4):
                a(f"v_pk_mul_f32 {vr(R+2*i,2)}, {vr(R+2*i,2)}, {vr(8,2)} op_sel_hi:[1,0]")
            for i in range(4 * hf, 4 * hf + 4):
                a(f"v_cvt_pk_bf16_f32 v{OP+i}, v{R+2*i}, v{R+2*i+1}")
            if hf:
                a(f"""
                v_cndmask_b32 v{OP+6}, 0, v{OP+6}, s[{sLO}:{sLO+1}]
                v_cndmask_b32 v{OP+7}, 0, v{OP+7}, s[{sLO}:{sLO+1}]
                """)
            a(f"buffer_store_dwordx4 {vr(OP+4*hf,4)}, v1, {srd(SWS)}, s99 offen offset:{1024*hf} sc1")
        a(f"""
        s_or_b32 s{sT0}, s2, s{sW}
        s_cmp_lg_u32 s{sT0}, 0
        s_cbranch_scc1 L_noepoch
        s_mov_b64 exec, 1
        buffer_store_dword v30, v31, {srd(SWS)}, 0 offen sc1
        s_mov_b64 exec, -1
        L_noepoch:
        """)
        self.stamp("opub")

    def helper(self, nbar):
        a = self.a
        a(f"""
        L_helper:
        s_waitcnt lgkmcnt(0)
        s_add_u32 s84, s84, {self.WSB << 20}
        s_addc_u32 s85, s85, 0
        s_load_dword s{sNON}, s[84:85], 0
        """)
        self.srds()
        a(f"""
        v_lshlrev_b32 v1, 4, v0
        v_mov_b32 v4, -1
        v_mov_b32 v5, -1
        v_mov_b32 v6, -1
        v_mov_b32 v7, -1
        v_mov_b32 v31, 0
        v_lshrrev_b32 v22, 4, v0
        v_lshrrev_b32 v23, 2, v0
        v_sub_u32 v23, v23, v22
        v_and_b32 v23, 3, v23
        v_mul_u32_u24 v23, 56, v23
        v_mul_u32_u24 v22, 896, v22
        v_add_u32 v22, v22, v23
        v_and_b32 v23, 3, v0
        v_lshlrev_b32 v23, 4, v23
        v_min_u32 v23, 40, v23
        v_add_u32 v2, v22, v23
        v_lshlrev_b32 v3, 7, v0
        """)
        a(f"""
        v_mul_u32_u24 v22, 4682, v0
        v_lshrrev_b32 v22, 16, v22
        v_mul_u32_u24 v27, 14, v22
        v_sub_u32 v23, v0, v27
        v_mul_u32_u24 v27, 896, v22
        v_lshl_add_u32 v8, v23, 4, v27
        v_lshrrev_b32 v22, 2, v0
        v_min_u32 v22, 13, v22
        v_mul_u32_u24 v22, 3584, v22
        v_and_b32 v23, 3, v0
        v_lshl_add_u32 v22, v23, 7, v22
        s_mul_i32 s{sA0}, s{sXCD}, {7*32*896}
        s_mul_i32 s{sT1}, s{sI}, {49*128}
        s_add_u32 s{sA0}, s{sA0}, s{sT1}
        s_mul_i32 s{sA1}, s{sI}, {14*3584}
        s_mul_i32 s{sT1}, s{sXCD}, 448
        s_and_b32 s{sT1}, s{sT1}, -128
        s_add_u32 s{sA1}, s{sA1}, s{sT1}
        s_lshr_b32 s{sA2}, s{sI}, 2
        s_mul_i32 s{sA2}, s{sA2}, {self.WOROT}
        s_lshr_b32 s{sA2}, s{sA2}, 1
        s_mul_i32 s{sA4}, s{sC}, 224
        s_mul_i32 s{sA5}, s{sI}, {self.TSTAG}
        s_lshr_b32 s{sA5}, s{sA5}, 3
        s_add_u32 s{sA5}, s{sA5}, {self.TOFF}
        s_lshl_b32 s{sT0}, s{sB}, 6
        s_add_u32 s{sT0}, s{sT0}, s{sH}
        s_lshl_b32 s{sT0}, s{sT0}, 11
        s_add_u32 s64, s{sT0}, {WS_OF}
        s_add_u32 s65, s64, 32768
        s_add_u32 s66, s65, 32768
        s_add_u32 s67, s66, 32768
        s_lshl_b32 s{sT0}, s{sT}, 2
        s_add_u32 s{sT0}, s{sT0}, s{sC}
        s_lshl_b32 s{sT0}, s{sT0}, 9
        s_add_u32 s72, s{sT0}, {WS_STATS}
        s_lshl_b32 s{sT1}, s{sT}, 7
        s_add_u32 s73, s{sT1}, {WS_KEYS}
        s_cmp_eq_u32 s{sC}, 0
        s_cselect_b32 s73, s73, {OOB}
        s_mul_i32 s{sT0}, s{sF}, 14336
        s_add_u32 s74, s{sT0}, {WS_Y}
        s_add_u32 s75, s74, 4096
        s_add_u32 s76, s75, 4096
        s_add_u32 s77, s76, 4096
        s_lshl_b32 s{sT0}, s2, 2
        s_add_u32 s78, s{sT0}, {WS_CLF}
        """)
        for w in range(4):
            self.cand_base(68 + w, w)
        a(f"""
        s_waitcnt lgkmcnt(0)
        s_mul_i32 s{sNON}, s{sNON}, 0x19660d
        s_add_u32 s{sNON}, s{sNON}, 0x3c6ef35f
        v_mov_b32 v30, s{sNON}
        """)
        for nb in range(nbar):
            a("s_barrier")
        st = lambda v, so, off=0: f"buffer_store_dwordx4 v[4:7], v{v}, {srd(SWS)}, s{so} offen offset:{off} sc1"
        cl = [[st(1, 64 + w, 1024 * k)] for w in range(4) for k in range(2)]
        cl += [["s_mov_b32 exec_hi, 0xffffff", st(8, 68 + w), "s_mov_b32 exec_hi, -1"] for w in range(4)]
        cl += [["s_mov_b32 exec_hi, 0", st(1, 72), "s_mov_b64 exec, 3", st(1, 73), "s_mov_b64 exec, -1"]]
        ycl = [st(1, 74 + k // 4, 1024 * (k % 4)) for k in range(14)]
        if self.NOCL:
            cl, ycl = [], []
        for n in range(28):
            a(f"""
            s_mul_i32 s{sWOS}, s{sA2}, {16*896}
            s_add_u32 s{sWOS}, s{sWOS}, s{sA4}
            s_lshl_b32 s{sWOM}, s{sA2}, 12
            """)
            for k in range(4):
                a(f"""
                s_add_u32 m0, s{sWOM}, {1024*k}
                s_add_u32 s{sT0}, s{sWOS}, {4*896*k}
                buffer_load_dwordx4 v2, {srd(SWO)}, s{sT0} offen lds
                """)
            if cl:
                a("\n".join(cl.pop(0)))
            if ycl:
                a(f"s_cmp_lt_i32 s{sF}, 0\ns_cbranch_scc1 L_h_y{n}\n{ycl.pop(0)}\nL_h_y{n}:")
            if self.TOUCH:
                a(f"""
                s_cmp_lg_u32 s{sA5}, {n}
                s_cbranch_scc1 L_h_t{n}
                buffer_load_dword v20, v3, {srd(SWD)}, s{sA0} offen
                buffer_load_dword v20, v22, {srd(SWG)}, s{sA1} offen
                buffer_load_dword v20, v22, {srd(SWU)}, s{sA1} offen
                L_h_t{n}:
                """)
            a(f"""
            s_waitcnt vmcnt({self.WOQ})
            s_add_u32 s{sA2}, s{sA2}, 1
            s_cmp_eq_u32 s{sA2}, 28
            s_cselect_b32 s{sA2}, 0, s{sA2}
            """)
            if n == 13 + -(-self.WOQ // 4):
                a(f"""
                s_mov_b64 exec, 1
                buffer_store_dword v30, v31, {srd(SWS)}, s78 offen sc1
                s_mov_b64 exec, -1
                """)
        a(f"""
        s_waitcnt vmcnt(0)
        s_cmp_lt_i32 s{sF}, 0
        s_cbranch_scc1 L_h_end
        v_lshrrev_b32 v22, 2, v0
        v_mul_u32_u24 v22, 3584, v22
        v_and_b32 v23, 3, v0
        v_lshl_add_u32 v22, v23, 4, v22
        v_lshlrev_b32 v23, 12, v23
        v_add_u32 v23, {L_CB+3072+32*16+4}, v23
        s_lshl_b32 s{sA0}, s{sF}, 6
        s_mul_i32 s{sA1}, s{sF}, {32*896}
        L_h_comb:
        s_barrier
        ds_read_b32 v24, v23
        s_waitcnt lgkmcnt(0)
        v_cmp_ne_u32 vcc, 0, v24
        s_cbranch_vccz L_h_go
        s_cmp_lg_u32 s{sPASS}, 0
        s_cbranch_scc1 L_h_go
        s_mov_b32 s{sPASS}, 1
        s_barrier
        s_barrier
        s_barrier
        s_barrier
        s_branch L_h_comb
        L_h_go:
        s_barrier
        s_barrier
        s_barrier
        """)
        for j in range(28):
            a(f"""
            s_mov_b32 m0, {L_WG+j*1024}
            s_add_u32 s{sT2}, s{sA0}, {j*16*3584}
            buffer_load_dwordx4 v22, {srd(SWG)}, s{sT2} offen lds
            s_mov_b32 m0, {L_WU+j*1024}
            buffer_load_dwordx4 v22, {srd(SWU)}, s{sT2} offen lds
            """)
        a("s_mov_b32 exec_hi, 0xffffff")
        for r in range(32):
            a(f"""
            s_mov_b32 m0, {L_WD+r*928}
            s_add_u32 s{sT2}, s{sA1}, {r*896}
            buffer_load_dwordx4 v1, {srd(SWD)}, s{sT2} offen lds
            """)
        a("s_waitcnt vmcnt(0)\nL_h_end:\ns_endpgm")

    WOROT = 7
    TSTAG = 7
    TOFF = 0
    KVC = -1
    KVCN = 16
    WSB = 0
    NOCL = 0
    NOWO = 0
    TOUCH = 1
    HD1 = 0
    HD2 = 0
    HD3 = 0
    WOQ = 8

    def redo(self):
        a = self.a
        Q, B, S = self.Q, self.KVB, self.SA
        for t in self.retry:
            a(f"L_kvr{t}:")
            self.spin_guard(f"L_kvd{t}")
            a("\n".join(self.kv_load(t, k) for k in range(5)))
            a(f"s_waitcnt vmcnt(0)\ns_branch L_kvc{t}")
        a("L_kvpr:")
        self.spin_guard("L_kvok")
        a(f"""
        buffer_load_dword v3, v2, {srd(SWS)}, s{sKVF} offen sc1
        s_waitcnt vmcnt(0)
        s_branch L_kvpoll
        """)
        MX = 8
        a(f"""
        L_redo:
        s_mov_b32 s{sPASS}, 1
        s_waitcnt vmcnt(0) lgkmcnt(0)
        s_barrier
        s_mov_b32 s{sA5}, 16
        s_lshl_b32 s{sT2}, s{sH}, 6
        s_add_u32 s{sT2}, s{sT2}, s{sW}
        s_mul_i32 s{sT2}, s{sT2}, {KVS}
        s_add_u32 s{sT2}, s{sT2}, {WS_KV}
        """)
        for p in range(4):
            a(f"v_mov_b32 v{MX+p}, 0xff800000")
        a(f"""
        L_redo_loop:
        buffer_load_dwordx4 {vr(B[1],4)}, v1, {srd(SWS)}, s{sT2} offen sc1
        buffer_load_dwordx4 {vr(B[1]+4,4)}, v1, {srd(SWS)}, s{sT2} offen offset:1024 sc1
        s_add_u32 s{sT2}, s{sT2}, {4*KVS}
        s_waitcnt vmcnt(0)
        """)
        for p in range(4):
            a(M32(S, B[1], Q + 8 * p))
            a(M32(S, B[1] + 4, Q + 8 * p + 4, S))
            self.rowmax16(S, 22)
            a(f"v_max_f32 v{MX+p}, v{MX+p}, v22")
        a(f"""
        s_sub_u32 s{sA5}, s{sA5}, 1
        s_cmp_lg_u32 s{sA5}, 0
        s_cbranch_scc1 L_redo_loop
        """)
        for p in range(4):
            a(f"""
            s_add_u32 s{sT0}, s{sW}, {p+1}
            s_and_b32 s{sT0}, s{sT0}, 3
            s_lshl_b32 s{sT0}, s{sT0}, 10
            s_add_u32 s{sT0}, s{sT0}, {L_CB}
            v_lshl_add_u32 v{12+p}, v0, 2, s{sT0}
            s_lshl_b32 s{sT1}, s{sW}, 8
            v_add_u32 v16, s{sT1}, v{12+p}
            ds_write_b32 v16, v{MX+p}
            """)
        a("s_waitcnt lgkmcnt(0)\ns_barrier")
        for p in range(4):
            for k in range(4):
                a(f"ds_read_b32 v{16+k}, v{12+p} offset:{k*256}")
            q6, q7 = Q + 8 * p + 6, Q + 8 * p + 7
            a(f"""
            s_waitcnt lgkmcnt(0)
            v_max3_f32 v16, v16, v17, v18
            v_max_f32 v16, v16, v19
            v_lshlrev_b32 v17, 16, v{q6}
            v_and_b32 v18, 0xffff0000, v{q6}
            v_lshlrev_b32 v19, 16, v{q7}
            v_add_f32 v18, v18, v19
            v_add_f32 v17, v17, v18
            v_sub_f32 v22, v16, v17
            """)
            self.shift_split(22, 23, 24, 25)
            a(f"""
            v_cndmask_b32 v{q6}, v23, v{q6}, s[{sLO}:{sLO+1}]
            v_cndmask_b32 v{q7}, v24, v{q7}, s[{sLO}:{sLO+1}]
            """)
        for part in range(4):
            a(self.kv_load(0, part))
        if self.EARLY:
            a("\n".join(self.kv_load(1, k) for k in range(5)))
        a(f"""
        s_waitcnt vmcnt(0)
        s_barrier
        s_branch L_att
        """)

    def finish(self):
        a = self.a
        a("L_fin:")
        if self.amp:
            a(f"""
            s_cmp_lg_u32 s2, {self.ampg}
            s_cbranch_scc1 L_end
            s_cmp_lg_u32 s{sW}, 0
            s_cbranch_scc1 L_end
            s_sub_u32 s84, s84, s100
            s_min_u32 s84, s84, 20000
            s_lshl_b32 s84, s84, 3
            s_memrealtime s[100:101]
            s_waitcnt lgkmcnt(0)
            L_amp:
            s_memrealtime s[82:83]
            s_waitcnt lgkmcnt(0)
            s_sub_u32 s82, s82, s100
            s_cmp_lt_u32 s82, s84
            s_cbranch_scc1 L_amp
            """)
        if self.ts:
            a(f"""
            s_lshl_b32 s{sT0}, s2, 2
            s_add_u32 s{sT0}, s{sT0}, s{sW}
            s_lshl_b32 s{sT0}, s{sT0}, 8
            s_add_u32 s{sT0}, s{sT0}, {WS_TS}
            s_mov_b64 exec, -1
            v_lshlrev_b32 v2, 2, v0
            buffer_store_dword {self.TSV}, v2, {srd(SWS)}, s{sT0} offen
            """)
        a("L_end:\ns_endpgm")

    def tail(self):
        pass

    def build(self):
        self.prologue()
        self.p1()
        nbar = sum(1 for k, x in self.a.items if k == "i" and x.op == "s_barrier")
        self.attention()
        self.combine()
        self.tail()
        self.finish()
        self.redo()
        self.helper(nbar + 1)
        npad = self.a.pad()
        body = self.a.text()
        hdr = open(os.path.join(os.path.dirname(os.path.abspath(__file__)), "header.txt")).read()
        out = hdr + f"""; @launch grid=(256,1,1) block=(320,1,1) lds={LDS_BYTES}
.amdgcn_target "amdgcn-amd-amdhsa--gfx950"
.text
.globl {NAME}
.p2align 8
.type {NAME},@function
{NAME}:
{body}
.section .rodata,"a"
.p2align 6
.amdhsa_kernel {NAME}
  .amdhsa_next_free_vgpr 256
  .amdhsa_next_free_sgpr 102
  .amdhsa_accum_offset 256
  .amdhsa_group_segment_fixed_size 0
  .amdhsa_kernarg_size 88
  .amdhsa_user_sgpr_count 2
  .amdhsa_user_sgpr_kernarg_segment_ptr 1
  .amdhsa_system_sgpr_workgroup_id_x 1
  .amdhsa_float_denorm_mode_32 3
.end_amdhsa_kernel
"""
        return out, npad


class Full(Gen):

    def piece_idx(self, i, tok, ch):
        self.a(f"""
        v_add_u32 v{ch}, {64*i}, v0
        v_mul_u32_u24 v{tok}, 4682, v{ch}
        v_lshrrev_b32 v{tok}, 16, v{tok}
        v_mul_u32_u24 v27, 14, v{tok}
        v_sub_u32 v{ch}, v{ch}, v27
        s_lshl_b32 s{sT0}, s{sW}, 3
        v_add_u32 v{tok}, s{sT0}, v{tok}
        """)

    def sentinel_any(self, regs, t):
        a = self.a
        regs = list(regs)
        a(f"v_max3_u32 v{t}, v{regs[0]}, v{regs[1]}, v{regs[2] if len(regs) > 2 else regs[1]}")
        for k in range(3, len(regs), 2):
            a(f"v_max3_u32 v{t}, v{t}, v{regs[k]}, v{regs[min(k+1, len(regs)-1)]}")
        a(f"v_cmp_eq_u32 vcc, -1, v{t}")

    def unpack(self, d, s):
        self.a(f"v_lshlrev_b32 v{d}, 16, v{s}\nv_and_b32 v{d+1}, 0xffff0000, v{s}")

    def tr_write(self, src, arr):
        a = self.a
        for g in range(3):
            a(f"ds_write_b64 v14, {vr(src+2*g,2)} offset:{arr*7680+16*g}")
        a(f"""
        s_mov_b32 exec_hi, 0
        ds_write_b64 v14, {vr(src+6,2)} offset:{arr*7680+48}
        s_mov_b32 exec_hi, -1
        """)

    def cand_write(self, src, off):
        a = self.a
        a(f"s_mov_b64 exec, s[{sM}:{sM+1}]")
        for g in range(3):
            a(f"ds_write_b64 v13, {vr(src+2*g,2)} offset:{off+16*g}")
        a(f"""
        s_mov_b32 exec_hi, 0
        ds_write_b64 v13, {vr(src+6,2)} offset:{off+48}
        s_mov_b64 exec, -1
        """)

    def p3(self):
        a = self.a
        XR2, W2, S4 = self.XR2, self.W2, self.S4
        XC, ACC, OFR, WR = 64, 48, 128, 80
        a(f"""
        v_lshrrev_b32 v23, 5, v0
        v_lshrrev_b32 v25, 2, v0
        v_and_b32 v25, 3, v25
        v_add_u32 v24, s{sW}, v25
        v_and_b32 v24, 3, v24
        v_lshl_add_u32 v25, v23, 2, v25
        v_lshlrev_b32 v25, 8, v25
        v_lshl_add_u32 v25, v24, 6, v25
        v_lshrrev_b32 v26, 4, v0
        v_and_b32 v26, 1, v26
        v_lshl_add_u32 v25, v26, 5, v25
        v_lshrrev_b32 v27, 1, v0
        v_and_b32 v27, v27, v26
        v_and_b32 v26, 3, v0
        v_xor_b32 v26, v26, v27
        v_lshl_add_u32 v25, v26, 3, v25
        v_lshlrev_b32 v23, 11, v23
        """)
        for qr in range(4):
            a(f"""
            s_add_u32 s{sT0}, s{sW}, {qr}
            s_and_b32 s{sT0}, s{sT0}, 3
            s_lshl_b32 s{sT1}, s{sT0}, 13
            s_add_u32 s{sT1}, s{sT1}, {L_CB}
            s_mul_i32 s{sT0}, s{sT0}, 28672
            v_add_u32 v{2+qr}, s{sT1}, v1
            v_add_u32 v{6+qr}, s{sT0}, v25
            v_sub_u32 v{10+qr}, v{6+qr}, v23
            """)
        for k in range(8):
            self.unpack(XC + 2 * k, XR2 + k)
        a(f"""
        v_cndmask_b32 v{W2+6}, 0, v{W2+6}, s[{sLO}:{sLO+1}]
        v_cndmask_b32 v{W2+7}, 0, v{W2+7}, s[{sLO}:{sLO+1}]
        v_mov_b32 v{S4}, 0
        """)
        for k in range(8):
            a(f"v_dot2c_f32_bf16 v{S4}, s{sONE}, v{W2+k}")
        a(f"""
        s_lshl_b32 s{sA0}, s{sT}, 2
        s_add_u32 s{sA0}, s{sA0}, s{sW}
        s_lshl_b32 s{sA0}, s{sA0}, 13
        s_add_u32 s{sA0}, s{sA0}, {WS_OF}
        s_add_u32 s{sA1}, s{sA0}, 4096
        s_lshl_b32 s{sA2}, s{sW}, 13
        s_add_u32 s{sA2}, s{sA2}, {L_CB}
        s_add_u32 s{sA3}, s{sA2}, 4096
        s_waitcnt vmcnt(0)
        s_barrier
        """)
        self.stamp("oack")
        a("L_odma:")
        for hf in range(2):
            a(f"s_mov_b32 m0, s{sA2+hf}")
            for k in range(4):
                a(f"buffer_load_dwordx4 v1, {srd(SWS)}, s{sA0+hf} offen offset:{1024*k} sc1 lds")
        lq = LQ(a)

        def oread(n):
            lq.op(f"ds_read_b128 {vr(OFR+4*n,4)}, v{2+n//8} offset:{(n%8)*1024}", ("o", n))

        def wread(n):
            qr, hl, j = n // 8, (n % 8) // 2, n % 2
            lq.op(f"ds_read_b64_tr_b16 {vr(WR+4*(n%4),2)}, v{6+qr} offset:{hl*7168+j*4096}", ("w", n))
            lq.op(f"ds_read_b64_tr_b16 {vr(WR+4*(n%4)+2,2)}, v{(10 if j else 6)+qr} offset:{hl*7168+j*4096+2048}", ("w", n))

        for n in range(3):
            wread(n)
        a("s_waitcnt vmcnt(0)")
        self.stamp("odma")
        for n in range(8):
            oread(n)
        onext = 8
        for n in range(32):
            lq.wait(("o", n) if lq.q.index(("o", n)) > max(i for i, t in enumerate(lq.q) if t == ("w", n)) else ("w", n))
            a(M32(ACC, WR + 4 * (n % 4), OFR + 4 * n, ACC if n else XC))
            if n + 3 < 32:
                wread(n + 3)
            if n < 4:
                if n == 0:
                    lq.wait(("o", 1))
                    a(f"v_max3_u32 v22, v{OFR}, v{OFR+1}, v{OFR+2}")
                    a(f"v_max3_u32 v23, v{OFR+3}, v{OFR+4}, v{OFR+5}")
                    a(f"v_max3_u32 v22, v22, v{OFR+6}, v{OFR+7}")
                else:
                    lq.wait(("o", 2 * n + 1))
                    for k in range(4):
                        r = OFR + 8 * n + 2 * k
                        a(f"v_max3_u32 v{22+k%2}, v{22+k%2}, v{r}, v{r+1}")
            if n == 3:
                a(f"""
                v_max_u32 v22, v22, v23
                v_cmp_eq_u32 vcc, -1, v22
                s_cbranch_vccz L_ook
                """)
                self.spin_guard("L_ook")
                a(f"""
                s_waitcnt lgkmcnt(0)
                s_branch L_odma
                L_ook:
                s_barrier
                """)
            if n >= 4:
                for _ in range(2):
                    if onext < 32 and onext <= n + 8:
                        oread(onext)
                        onext += 1
        self.stamp("gemm")
        H2 = 32
        a(f"""
        v_and_b32 v22, 31, v0
        v_lshrrev_b32 v23, 5, v0
        v_lshlrev_b32 v23, 3, v23
        v_lshl_add_u32 v17, v22, 4, v23
        s_lshl_b32 s{sT0}, s{sW}, 9
        s_add_u32 s{sT0}, s{sT0}, {L_ST}
        v_add_u32 v18, s{sT0}, v17
        v_add_u32 v19, {L_ST}, v17
        v_mul_u32_u24 v22, 240, v22
        s_mul_i32 s{sT0}, s{sW}, 56
        s_add_u32 s{sT0}, s{sT0}, {L_TR}
        v_add3_u32 v14, v22, v23, s{sT0}
        v_mov_b32 v40, 0
        v_mov_b32 v41, 0
        v_mov_b32 v42, 0
        """)
        for k in range(8):
            a(f"v_cvt_pk_bf16_f32 v{H2+k}, v{ACC+2*k}, v{ACC+2*k+1}")
        a(f"""
        v_cndmask_b32 v{H2+6}, 0, v{H2+6}, s[{sLO}:{sLO+1}]
        v_cndmask_b32 v{H2+7}, 0, v{H2+7}, s[{sLO}:{sLO+1}]
        """)
        for k in range(8):
            a(f"v_dot2c_f32_bf16 v40, s{sONE}, v{H2+k}")
            a(f"v_dot2c_f32_bf16 v42, v{H2+k}, v{H2+k}")
            a(f"v_dot2c_f32_bf16 v41, v{W2+k}, v{H2+k}")
        a(f"""
        v_permlane32_swap_b32 v40, v42
        v_permlane32_swap_b32 v41, v{S4}
        v_add_f32 v40, v40, v42
        v_add_f32 v41, v41, v{S4}
        ds_write_b64 v18, v[40:41]
        s_lshl_b32 s{sA0}, s{sT}, 11
        s_add_u32 s{sA0}, s{sA0}, {WS_STATS}
        s_lshl_b32 s{sT0}, s{sC}, 9
        s_add_u32 s{sA1}, s{sA0}, s{sT0}
        s_lshl_b32 s{sT0}, s{sW}, 3
        s_lshl_b32 s{sT0}, 0xff, s{sT0}
        s_waitcnt lgkmcnt(0)
        s_barrier
        ds_read_b64 v[40:41], v19
        ds_read_b64 v[42:43], v19 offset:512
        ds_read_b64 v[44:45], v19 offset:1024
        ds_read_b64 v[46:47], v19 offset:1536
        s_waitcnt lgkmcnt(2)
        v_pk_add_f32 v[40:41], v[40:41], v[42:43]
        s_waitcnt lgkmcnt(0)
        v_pk_add_f32 v[44:45], v[44:45], v[46:47]
        v_pk_add_f32 v[40:41], v[40:41], v[44:45]
        v_mov_b32 v42, v40
        v_mov_b32 v43, v41
        v_permlane32_swap_b32 v40, v42
        v_permlane32_swap_b32 v41, v43
        s_mov_b32 exec_lo, s{sT0}
        s_mov_b32 exec_hi, 0
        buffer_store_dwordx4 v[40:43], v17, {srd(SWS)}, s{sA1} offen sc1
        s_mov_b64 exec, -1
        v_and_b32 v22, 31, v0
        v_lshrrev_b32 v23, 5, v0
        v_lshlrev_b32 v23, 10, v23
        v_lshl_add_u32 v17, v22, 4, v23
        """)
        for i in range(2):
            self.piece_idx(i, 22, 23)
            a(f"""
            v_mov_b32 v{20+i}, v22
            v_mul_u32_u24 v27, 896, v22
            v_lshl_add_u32 v{self.VTG+i}, v23, 4, v27
            v_mul_u32_u24 v22, 240, v22
            v_lshl_add_u32 v22, v23, 4, v22
            v_add_u32 v{15+i}, {L_TR}, v22
            """)
        a(f"""
        v_mul_u32_u24 v22, 4682, v0
        v_lshrrev_b32 v22, 16, v22
        v_mul_u32_u24 v27, 14, v22
        v_sub_u32 v23, v0, v27
        v_mul_u32_u24 v27, 896, v22
        v_lshl_add_u32 v19, v23, 4, v27
        v_mul_u32_u24 v22, 240, v22
        v_lshl_add_u32 v22, v23, 4, v22
        s_mul_i32 s{sT0}, s{sW}, 960
        s_add_u32 s{sT0}, s{sT0}, {L_TR+7680}
        v_add_u32 v18, s{sT0}, v22
        """)
        self.cand_base(sA5, sW)
        HF = 64
        for k in range(8):
            self.unpack(HF + 2 * k, H2 + k)
        a("s_waitcnt vmcnt(0)")
        self.stamp("hack")
        a("L_stpoll:")
        for c in range(2):
            a(f"buffer_load_dwordx4 {vr(40+4*c,4)}, v17, {srd(SWS)}, s{sA0} offen offset:{512*c} sc1")
        a("s_waitcnt vmcnt(0)")
        self.sentinel_any(range(40, 48), 22)
        a("s_cbranch_vccz L_stok")
        self.spin_guard("L_stok")
        a("s_branch L_stpoll\nL_stok:")
        self.stamp("stok")
        a(f"""
        v_pk_add_f32 v[40:41], v[40:41], v[44:45]
        v_pk_add_f32 v[42:43], v[42:43], v[46:47]
        v_permlane32_swap_b32 v40, v42
        v_permlane32_swap_b32 v41, v43
        v_pk_add_f32 v[40:41], v[40:41], v[42:43]
        v_mov_b32 v42, v40
        v_mov_b32 v43, v41
        v_permlane32_swap_b32 v40, v42
        v_permlane32_swap_b32 v41, v43
        """)
        self.ln_scalars(40, 42, 44, 46, 22, 23)
        KEY = 47
        a(f"""
        v_fma_f32 v41, -v44, v43, v41
        v_mul_f32 v41, v41, v46
        v_cvt_pk_bf16_f32 v41, v41, v41
        v_ashrrev_i32 v22, 31, v41
        v_or_b32 v22, 0x80000000, v22
        v_xor_b32 v41, v41, v22
        v_and_b32 v41, 0xffff0000, v41
        v_lshrrev_b32 v41, 1, v41
        v_and_b32 v22, 31, v0
        s_lshl_b32 s{sT0}, s{sT}, 5
        s_sub_u32 s{sT0}, 2047, s{sT0}
        v_sub_u32 v22, s{sT0}, v22
        v_or_b32 v{KEY}, v41, v22
        v_mov_b32 v48, v{KEY}
        v_mov_b32 v49, v{KEY}
        v_permlane16_swap_b32 v48, v49
        v_cndmask_b32 v48, v49, v48, s[{sLO}:{sLO+1}]
        v_sub_u32 v80, v48, v{KEY}
        """)
        for n in range(1, 16):
            a(f"v_sub_u32_dpp v{80+n}, v48, v{KEY} row_ror:{n} row_mask:0xf bank_mask:0xf bound_ctrl:0".replace(" bound_ctrl:0", " bound_ctrl:1"))
        a("v_lshrrev_b32 v48, 31, v80\nv_lshrrev_b32 v49, 31, v81")
        for n in range(2, 16):
            a(f"v_alignbit_b32 v{48+n%2}, v{48+n%2}, v{80+n}, 31")
        a(f"""
        v_bcnt_u32_b32 v48, v48, 0
        v_bcnt_u32_b32 v48, v49, v48
        v_mov_b32 v49, v48
        v_permlane32_swap_b32 v48, v49
        v_add_u32 v48, v48, v49
        v_sub_u32 v48, 31, v48
        v_cmp_gt_u32 s[{sM}:{sM+1}], 8, v48
        v_lshlrev_b32 v49, 2, v48
        s_or_b32 s{sT0}, s{sW}, s{sC}
        s_cmp_lg_u32 s{sT0}, 0
        s_cbranch_scc1 L_norank
        ds_permute_b32 v49, v49, v{KEY}
        s_lshl_b32 s{sT0}, s{sT}, 7
        s_add_u32 s{sT0}, s{sT0}, {WS_KEYS}
        v_lshlrev_b32 v22, 2, v0
        s_mov_b64 exec, 0xff
        s_waitcnt lgkmcnt(0)
        buffer_store_dword v49, v22, {srd(SWS)}, s{sT0} offen sc1
        s_mov_b64 exec, -1
        L_norank:
        v_and_b32 v22, 31, v0
        v_sub_u32 v22, v48, v22
        v_mul_i32_i24 v22, 240, v22
        v_add_u32 v13, v14, v22
        """)
        self.cand_write(H2, 7680 + 1920)
        for k in range(8):
            self.unpack(HF + 2 * k, H2 + k) if False else None
        D, HN2, OUT2 = 80, 48, 56
        for k in range(8):
            a(f"v_pk_add_f32 {vr(D+2*k,2)}, {vr(HF+2*k,2)}, v[44:45] op_sel_hi:[1,0] neg_lo:[0,1] neg_hi:[0,1]")
        for k in range(8):
            a(f"v_cvt_pk_bf16_f32 v{HN2+k}, v{D+2*k}, v{D+2*k+1}")
        for k in range(8):
            self.unpack(D + 2 * k, HN2 + k)
        for k in range(8):
            a(f"v_pk_mul_f32 {vr(D+2*k,2)}, {vr(D+2*k,2)}, v[46:47] op_sel_hi:[1,0]")
        for k in range(8):
            a(f"v_cvt_pk_bf16_f32 v{HN2+k}, v{D+2*k}, v{D+2*k+1}")
        self.cand_write(HN2, 7680)
        a(f"""
        s_waitcnt lgkmcnt(0)
        s_barrier
        ds_read_b128 v[40:43], v18
        """)
        for k in range(8):
            self.unpack(D + 2 * k, HN2 + k)
        a(f"""
        s_mov_b32 exec_hi, 0xffffff
        s_waitcnt lgkmcnt(0)
        buffer_store_dwordx4 v[40:43], v19, {srd(SWS)}, s{sA5} offen sc1
        s_mov_b32 exec_hi, -1
        """)
        for k in range(8):
            a(f"v_pk_add_f32 {vr(D+2*k,2)}, {vr(D+2*k,2)}, {vr(HF+2*k,2)}")
        for k in range(8):
            a(f"v_cvt_pk_bf16_f32 v{OUT2+k}, v{D+2*k}, v{D+2*k+1}")
        self.tr_write(OUT2, 0)
        self.KEY = KEY

    def ffn_weights(self):
        a = self.a
        a(f"""
        s_cmp_lt_i32 s{sF}, 0
        s_cbranch_scc1 L_noffw
        v_lshrrev_b32 v22, 2, v0
        v_mul_u32_u24 v22, 3584, v22
        v_and_b32 v23, 3, v0
        v_lshl_add_u32 v22, v23, 4, v22
        s_mul_i32 s{sT0}, s{sW}, {7*16*3584}
        s_lshl_b32 s{sT1}, s{sF}, 6
        s_add_u32 s{sT0}, s{sT0}, s{sT1}
        s_mul_i32 s{sT1}, s{sW}, 7168
        """)
        for j in range(7):
            a(f"""
            s_add_u32 m0, s{sT1}, {L_WG+j*1024}
            s_add_u32 s{sT2}, s{sT0}, {j*16*3584}
            buffer_load_dwordx4 v22, {srd(SWG)}, s{sT2} offen lds
            s_add_u32 m0, s{sT1}, {L_WU+j*1024}
            buffer_load_dwordx4 v22, {srd(SWU)}, s{sT2} offen lds
            """)
        a(f"""
        s_lshl_b32 s{sT0}, s{sF}, 2
        s_add_u32 s{sT0}, s{sT0}, s{sW}
        s_mul_i32 s{sT0}, s{sT0}, {8*896}
        s_mul_i32 s{sT1}, s{sW}, {8*928}
        s_mov_b32 exec_hi, 0xffffff
        """)
        for r in range(8):
            a(f"""
            s_add_u32 m0, s{sT1}, {L_WD+r*928}
            s_add_u32 s{sT2}, s{sT0}, {r*896}
            buffer_load_dwordx4 v1, {srd(SWD)}, s{sT2} offen lds
            """)
        a("s_mov_b32 exec_hi, -1\nL_noffw:")

    def bisect(self, levels, tag):
        a = self.a
        L = 32
        lo, hi, mid = sA0, sA1, sTH
        a(f"""
        s_mov_b32 s{lo}, 0
        s_mov_b32 s{hi}, 0x80000000
        L_bis{tag}:
        s_add_u32 s{mid}, s{lo}, s{hi}
        s_lshr_b32 s{mid}, s{mid}, 1
        """)
        for j in range(levels):
            a(f"v_cmp_le_u32 s[{64+2*j}:{65+2*j}], s{mid}, v{L+j}")
        a(f"s_bcnt1_i32_b64 s{sA2}, s[64:65]")
        for j in range(1, levels):
            a(f"s_bcnt1_i32_b64 s{sA3}, s[{64+2*j}:{65+2*j}]\ns_add_u32 s{sA2}, s{sA2}, s{sA3}")
        a(f"""
        s_cmp_eq_u32 s{sA2}, 8
        s_cbranch_scc1 L_bisdone{tag}
        s_cmp_eq_u32 s{mid}, s{lo}
        s_cbranch_scc1 L_bisdone{tag}
        s_cmp_gt_u32 s{sA2}, 8
        s_cselect_b32 s{lo}, s{mid}, s{lo}
        s_cselect_b32 s{hi}, s{hi}, s{mid}
        s_branch L_bis{tag}
        L_bisdone{tag}:
        """)

    def extract(self, levels):
        a = self.a
        a(f"s_mov_b32 s{sA2}, 0")
        for j in range(levels):
            m = 64 + 2 * j
            a(f"""
            v_mbcnt_lo_u32_b32 v22, s{m}, 0
            v_mbcnt_hi_u32_b32 v22, s{m+1}, v22
            v_add_u32 v22, s{sA2}, v22
            v_min_u32 v22, 7, v22
            v_lshl_add_u32 v22, v22, 3, s{sA4}
            v_add_u32 v23, {j}, v3
            s_mov_b64 exec, s[{m}:{m+1}]
            ds_write2_b32 v22, v{32+j}, v23 offset1:1
            s_mov_b64 exec, -1
            """)
            if j + 1 < levels:
                a(f"s_bcnt1_i32_b64 s{sA3}, s[{m}:{m+1}]\ns_add_u32 s{sA2}, s{sA2}, s{sA3}")

    AF, BF, WD = 128, 192, 64

    def ffn_pre(self):
        a = self.a
        a(f"""
        v_lshrrev_b32 v8, 4, v0
        v_lshrrev_b32 v9, 2, v0
        v_and_b32 v9, 3, v9
        v_and_b32 v10, 3, v0
        v_lshlrev_b32 v10, 3, v10
        v_lshl_add_u32 v11, v8, 3, v9
        v_lshl_add_u32 v11, v11, 6, v10
        s_lshr_b32 s{sT0}, s{sW}, 1
        s_mul_i32 s{sT0}, s{sT0}, 28672
        s_and_b32 s{sT1}, s{sW}, 1
        s_lshl_b32 s{sT1}, s{sT1}, 5
        s_add_u32 s{sT0}, s{sT0}, s{sT1}
        v_add_u32 v11, s{sT0}, v11
        v_lshl_add_u32 v12, v8, 2, v9
        v_mul_u32_u24 v12, 928, v12
        s_mul_i32 s{sT0}, s{sW}, 224
        s_add_u32 s{sT0}, s{sT0}, {L_WD}
        v_add3_u32 v12, v12, v10, s{sT0}
        """)
        for s_ in range(14):
            a(f"ds_read_b64_tr_b16 {vr(self.AF+4*s_,2)}, v11 offset:{s_*2048}")
            a(f"ds_read_b64_tr_b16 {vr(self.AF+4*s_+2,2)}, v11 offset:{s_*2048+256}")
        a(f"""
        s_lshl_b32 s{sT0}, s{sW}, 4
        s_add_u32 s{sT0}, s{sT0}, s{sA4}
        v_mov_b32 v11, s{sT0}
        v_min_u32 v10, 55, v0
        v_lshlrev_b32 v10, 4, v10
        s_mul_i32 s{sT0}, s{sW}, 2112
        s_add_u32 s{sT0}, s{sT0}, {L_G}
        v_add_u32 v6, s{sT0}, v10
        """)

    def ffn_pre2(self):
        a = self.a
        for i in range(7):
            a(f"ds_read_b64_tr_b16 {vr(self.WD+4*i,2)}, v12 offset:{i*32}")
            a(f"ds_read_b64_tr_b16 {vr(self.WD+4*i+2,2)}, v12 offset:{i*32+16*928}")
        a(f"""
        v_lshrrev_b32 v8, 4, v0
        v_and_b32 v9, 7, v0
        v_mul_u32_u24 v13, 1056, v9
        v_lshl_add_u32 v13, v8, 4, v13
        v_add_u32 v13, {L_G}, v13
        v_lshlrev_b32 v9, 4, v9
        v_lshl_add_u32 v9, v8, 7, v9
        v_lshlrev_b32 v8, 3, v0
        v_add_u32 v8, {L_AX}, v8
        s_lshl_b32 s{sT0}, s{sW}, 9
        v_add_u32 v7, s{sT0}, v8
        s_mul_i32 s{sT0}, s{sF}, 14336
        s_mul_i32 s{sT1}, s{sW}, 3584
        s_add_u32 s{sT0}, s{sT0}, s{sT1}
        s_add_u32 s99, s{sT0}, {WS_Y}
        """)

    def topk(self):
        a = self.a
        ld = f"""
        buffer_load_dwordx4 v[32:35], v2, {srd(SWS)}, s{sA1} offen sc1
        buffer_load_dwordx4 v[36:39], v2, {srd(SWS)}, s{sA1} offen offset:16 sc1
        """
        a(f"""
        v_lshlrev_b32 v2, 7, v0
        s_mov_b32 s{sA1}, {WS_KEYS}
        s_lshl_b32 s{sA4}, s{sW}, 6
        s_add_u32 s{sA4}, s{sA4}, {L_SEL}
        v_lshlrev_b32 v3, 3, v0
        s_waitcnt lgkmcnt(0)
        s_barrier
        s_cmp_lt_i32 s{sF}, 0
        s_cbranch_scc1 L_kwait
        """)
        if self.FPRE:
            self.ffn_pre()
            a(ld)
        else:
            a(ld)
            self.ffn_pre()
        a(f"""
        s_branch L_kchk
        L_kwait:
        s_waitcnt vmcnt(0)
        s_cmp_lt_i32 s{sU}, 0
        s_cbranch_scc1 L_klate
        s_cmp_eq_u32 s{sW}, 0
        s_cbranch_scc0 L_klate
        {f"s_sleep {self.KS1}" if self.KS1 else ""}
        s_branch L_kpoll
        L_klate:
        {f"s_sleep {self.KS2}" if self.KS2 else ""}
        L_kpoll:
        {ld}
        L_kchk:
        s_waitcnt vmcnt(0)
        """)
        self.sentinel_any(range(32, 40), 22)
        a("s_cbranch_vccz L_kok")
        self.spin_guard("L_kok")
        a("s_branch L_kpoll\nL_kok:")
        self.stamp("kok")
        lo, hi, mid = sA0, sA1, sTH
        a(f"""
        v_max_u32_dpp v22, v32, v32 row_ror:1 row_mask:0xf bank_mask:0xf bound_ctrl:1
        v_max_u32_dpp v22, v22, v22 row_ror:2 row_mask:0xf bank_mask:0xf bound_ctrl:1
        v_max_u32_dpp v22, v22, v22 row_ror:4 row_mask:0xf bank_mask:0xf bound_ctrl:1
        v_max_u32_dpp v23, v22, v22 row_ror:8 row_mask:0xf bank_mask:0xf bound_ctrl:1
        v_min_u32_dpp v22, v22, v22 row_ror:8 row_mask:0xf bank_mask:0xf bound_ctrl:1
        v_readlane_b32 s64, v23, 0
        v_readlane_b32 s65, v23, 16
        v_readlane_b32 s66, v23, 32
        v_readlane_b32 s67, v23, 48
        v_readlane_b32 s68, v22, 0
        v_readlane_b32 s69, v22, 16
        v_readlane_b32 s70, v22, 32
        v_readlane_b32 s71, v22, 48
        s_max_u32 s64, s64, s65
        s_max_u32 s66, s66, s67
        s_min_u32 s68, s68, s69
        s_min_u32 s70, s70, s71
        s_max_u32 s{hi}, s64, s66
        s_min_u32 s{lo}, s68, s70
        s_min_u32 s{hi}, s{hi}, 0x7fffffff
        s_min_u32 s{lo}, s{lo}, s{hi}
        s_sub_u32 s{lo}, s{lo}, 1
        s_max_i32 s{lo}, s{lo}, 0
        L_bisa:
        """)
        for k in range(self.BIS):
            a(f"""
            s_add_u32 s{mid}, s{lo}, s{hi}
            s_lshr_b32 s{mid}, s{mid}, 1
            v_cmp_lt_u32 s[64:65], s{mid}, v32
            v_cmp_lt_u32 s[66:67], s{mid}, v33
            s_bcnt1_i32_b64 s{sA2}, s[64:65]
            s_bcnt1_i32_b64 s{sA3}, s[66:67]
            s_add_u32 s{sA2}, s{sA2}, s{sA3}
            s_cmp_eq_u32 s{sA2}, 8
            s_cbranch_scc1 L_bisdonea
            s_cmp_gt_u32 s{sA2}, 8
            s_cselect_b32 s{lo}, s{mid}, s{lo}
            s_cselect_b32 s{hi}, s{hi}, s{mid}
            """)
        a(f"""
        s_sub_u32 s{sA2}, s{hi}, s{lo}
        s_cmp_gt_u32 s{sA2}, 1
        s_cbranch_scc1 L_bisa
        s_branch L_topslow
        L_bisdonea:
        v_cmp_lt_u32 vcc, s{mid}, v34
        s_add_u32 s{mid}, s{mid}, 1
        s_cbranch_vccnz L_topslow
        """)
        self.extract(2)
        a(f"L_topdone:\nv_cmp_le_u32 s[80:81], s{sTH}, v{self.KEY}\ns_waitcnt lgkmcnt(0)")
        self.stamp("topk")

    BIS = 6
    OUTP = ''
    KS1 = 12
    KS2 = 40
    YL = 1
    FPRE = 0

    def topk_slow(self):
        self.a("L_topslow:")
        self.bisect(8, "b")
        self.extract(8)
        self.a("s_branch L_topdone")

    def key_token(self, d, k):
        self.a(f"v_and_b32 v{d}, 0x7ff, v{k}\nv_sub_u32 v{d}, 2047, v{d}")

    def ffn(self):
        a = self.a
        a(f"""
        s_cmp_lt_i32 s{sF}, 0
        s_cbranch_scc1 L_noffn
        ds_read2_b32 v[4:5], v11 offset0:1 offset1:3
        s_mov_b32 s{sA0}, {WS_HN}
        s_movk_i32 s{sA1}, 896
        s_waitcnt lgkmcnt(0)
        v_and_b32 v4, 511, v4
        v_and_b32 v5, 511, v5
        v_mad_u32_u24 v4, v4, s{sA1}, v10
        v_mad_u32_u24 v5, v5, s{sA1}, v10
        L_gpoll:
        buffer_load_dwordx4 v[32:35], v4, {srd(SWS)}, s{sA0} offen sc1
        buffer_load_dwordx4 v[36:39], v5, {srd(SWS)}, s{sA0} offen sc1
        """)
        self.ffn_pre2()
        a(f"""
        s_waitcnt vmcnt(1)
        ds_write_b128 v6, v[32:35]
        v_max3_u32 v22, v32, v33, v34
        s_waitcnt vmcnt(0)
        ds_write_b128 v6, v[36:39] offset:1056
        v_max3_u32 v22, v22, v35, v36
        v_max3_u32 v22, v22, v37, v38
        v_max_u32 v22, v22, v39
        v_cmp_eq_u32 vcc, -1, v22
        s_cbranch_vccz L_gok
        """)
        self.spin_guard("L_gok")
        a(f"""
        s_branch L_gpoll
        L_gok:
        """)
        self.stamp("gath")
        a("s_waitcnt lgkmcnt(0)\ns_barrier")
        lq = LQ(a)
        AF, BF, WD, D = self.AF, self.BF, self.WD, 40
        for s_ in range(14):
            lq.op(f"ds_read_b128 {vr(BF+4*s_,4)}, v13 offset:{s_*64}", s_)
        for s_ in range(14):
            if s_ % 2 == 0:
                lq.wait(s_ + 1)
            a(M16(D + 4 * (s_ % 2), AF + 4 * s_, BF + 4 * s_, D + 4 * (s_ % 2) if s_ > 1 else None))
        for k in range(4):
            a(f"v_add_f32 v{D+k}, v{D+k}, v{D+4+k}")
        a(f"""
        v_cvt_pk_bf16_f32 v44, v{D}, v{D+1}
        v_cvt_pk_bf16_f32 v45, v{D+2}, v{D+3}
        s_cmp_ge_u32 s{sW}, 2
        s_cbranch_scc1 L_nosilu
        """)
        self.unpack(48, 44)
        self.unpack(50, 45)
        for k in range(4):
            a(f"v_mul_f32 v{52+k}, {hex(fbits(-LOG2E))}, v{48+k}")
        for k in range(4):
            a(f"v_exp_f32 v{52+k}, v{52+k}")
        for k in range(4):
            a(f"v_add_f32 v{52+k}, 1.0, v{52+k}")
        for k in range(4):
            a(f"v_rcp_f32 v{52+k}, v{52+k}")
        for k in range(4):
            a(f"v_mul_f32 v{48+k}, v{48+k}, v{52+k}")
        a(f"""
        v_cvt_pk_bf16_f32 v44, v48, v49
        v_cvt_pk_bf16_f32 v45, v50, v51
        L_nosilu:
        ds_write_b64 v7, v[44:45]
        s_waitcnt lgkmcnt(0)
        s_barrier
        ds_read_b64 v[32:33], v8
        ds_read_b64 v[36:37], v8 offset:1024
        ds_read_b64 v[34:35], v8 offset:512
        ds_read_b64 v[38:39], v8 offset:1536
        s_waitcnt lgkmcnt(0)
        """)
        for k in range(4):
            self.unpack(48 + 2 * k, 32 + k)
            self.unpack(56 + 2 * k, 36 + k)
        for k in range(4):
            a(f"v_pk_mul_f32 {vr(48+2*k,2)}, {vr(48+2*k,2)}, {vr(56+2*k,2)}")
        for k in range(4):
            a(f"v_cvt_pk_bf16_f32 v{44+k}, v{48+2*k}, v{49+2*k}")
        for i in range(7):
            a(M16(128 + 4 * i, WD + 4 * i, 44))
        a("s_mov_b32 exec_lo, 0x00ff00ff\ns_mov_b32 exec_hi, 0x00ff00ff")
        for i in range(7):
            a(f"buffer_store_dwordx4 {vr(128+4*i,4)}, v9, {srd(SWS)}, s99 offen offset:{512*i} sc1")
        a("s_mov_b64 exec, -1")
        self.stamp("ypub")
        a("L_noffn:")

    def out_rows(self):
        a = self.a
        a(f"""
        ds_read_b128 v[48:51], v15
        ds_read_b128 v[52:55], v16
        v_lshrrev_b32_e64 v22, v20, s80
        v_lshrrev_b32_e64 v23, v21, s80
        v_and_b32 v22, 1, v22
        v_and_b32 v23, 1, v23
        v_cmp_eq_u32 s[{sM}:{sM+1}], 0, v22
        v_cmp_eq_u32 vcc, 0, v23
        s_waitcnt lgkmcnt(0)
        s_mov_b64 exec, s[{sM}:{sM+1}]
        s_cbranch_execz L_out1
        buffer_store_dwordx4 v[48:51], v{self.VTG}, {srd(SOUT)}, s{sROW} offen{self.OUTP}
        L_out1:
        s_and_b32 vcc_hi, vcc_hi, 0xffff
        s_mov_b64 exec, vcc
        s_cbranch_execz L_out2
        buffer_store_dwordx4 v[52:55], v{self.VTG+1}, {srd(SOUT)}, s{sROW} offen{self.OUTP}
        L_out2:
        s_mov_b64 exec, -1
        """)

    def reducer(self):
        a = self.a
        a(f"""
        s_cmp_lt_i32 s{sU}, 0
        s_cbranch_scc1 L_fin
        s_cmp_lg_u32 s{sW}, 0
        s_cbranch_scc1 L_fin
        v_and_b32 v2, 7, v0
        v_lshl_add_u32 v3, v2, 3, s{sA4}
        ds_read_b64 v[12:13], v3
        v_lshrrev_b32 v5, 3, v0
        v_mul_u32_u24 v5, 14336, v5
        v_lshl_add_u32 v5, v2, 4, v5
        v_lshrrev_b32 v6, 4, v0
        s_lshl_b32 s{sT0}, s{sU}, 3
        v_lshl_add_u32 v6, v6, 1, s{sT0}
        s_movk_i32 s{sA1}, 896
        s_mov_b32 s{sA2}, {WS_HH}
        s_mov_b32 s{sA3}, {WS_HN}
        s_lshl_b32 s{sA0}, s{sU}, 7
        s_add_u32 s{sA0}, s{sA0}, {WS_Y}
        s_waitcnt lgkmcnt(0)
        """)
        self.key_token(7, 12)
        a(f"""
        v_and_b32 v13, 511, v13
        v_mad_u32_u24 v13, v13, s{sA1}, v6
        v_mad_u32_u24 v6, v7, s{sA1}, v6
        L_rpoll:
        buffer_load_ushort v8, v13, {srd(SWS)}, s{sA2} offen sc1
        buffer_load_ushort v9, v13, {srd(SWS)}, s{sA3} offen sc1
        v_lshlrev_b32 v10, 1, v12
        v_and_b32 v10, 0xffff0000, v10
        v_ashrrev_i32 v11, 31, v10
        v_not_b32 v11, v11
        v_or_b32 v11, 0x80000000, v11
        v_xor_b32 v10, v10, v11
        v_and_b32 v10, 0xffff0000, v10
        v_mul_f32 v10, {hex(fbits(-LOG2E))}, v10
        v_exp_f32 v10, v10
        v_add_f32 v10, 1.0, v10
        v_rcp_f32 v10, v10
        v_cvt_pk_bf16_f32 v10, v10, v10
        v_and_b32 v10, 0xffff0000, v10
        s_waitcnt vmcnt(0)
        v_max_u32 v11, v8, v9
        v_cmp_eq_u32 vcc, 0xffff, v11
        s_cbranch_vccz L_rok
        """)
        self.spin_guard("L_rok")
        a(f"""
        s_branch L_rpoll
        L_rok:
        v_lshlrev_b32 v8, 16, v8
        v_lshlrev_b32 v9, 16, v9
        """)
        self.stamp("rpre")
        if self.YL:
            a(f"""
            s_cmp_ge_u32 s{sU}, 56
            s_cselect_b32 s{sT0}, 56, 0
            s_sub_u32 s{sT0}, s{sU}, s{sT0}
            s_mul_i32 s{sT0}, s{sT0}, 14336
            s_add_u32 s{sA1}, s{sA0}, s{sT0}
            L_yhint:
            buffer_load_dword v32, v31, {srd(SWS)}, s{sA1} offen sc1
            s_waitcnt vmcnt(0)
            v_cmp_eq_u32 vcc, -1, v32
            s_cbranch_vccz L_ypoll
            """)
            self.spin_guard("L_ypoll")
            a(f"s_sleep {self.YL}\ns_branch L_yhint")
        a("L_ypoll:")
        for i in range(7):
            a(f"""
            s_add_u32 s{sT0}, s{sA0}, {i*8*14336}
            buffer_load_dwordx4 {vr(32+4*i,4)}, v5, {srd(SWS)}, s{sT0} offen sc1
            """)
        a("s_waitcnt vmcnt(0)")
        self.sentinel_any(range(32, 60), 22)
        a("s_cbranch_vccz L_yok")
        self.spin_guard("L_yok")
        a("s_branch L_ypoll\nL_yok:")
        self.stamp("yok")
        for (x, y) in ((32, 36), (40, 44), (48, 52), (32, 40), (48, 56), (32, 48)):
            a(f"v_pk_add_f32 {vr(x,2)}, {vr(x,2)}, {vr(y,2)}\nv_pk_add_f32 {vr(x+2,2)}, {vr(x+2,2)}, {vr(y+2,2)}")
        for k in range(4):
            a(f"v_add_f32_dpp v{36+k}, v{32+k}, v{32+k} row_ror:8 row_mask:0xf bank_mask:0xf bound_ctrl:1")
        a(f"""
        v_permlane16_swap_b32 v36, v37
        v_permlane16_swap_b32 v38, v39
        v_add_f32 v36, v36, v37
        v_add_f32 v38, v38, v39
        v_permlane32_swap_b32 v36, v38
        v_add_f32 v36, v36, v38
        v_cvt_pk_bf16_f32 v36, v36, v36
        v_and_b32 v36, 0xffff0000, v36
        v_mul_f32 v36, v36, v10
        v_cvt_pk_bf16_f32 v36, v36, v36
        v_and_b32 v36, 0xffff0000, v36
        v_add_f32 v36, v36, v9
        v_cvt_pk_bf16_f32 v36, v36, v36
        v_and_b32 v36, 0xffff0000, v36
        v_add_f32 v36, v36, v8
        v_cvt_pk_bf16_f32 v36, v36, v36
        s_mov_b32 exec_lo, 0x00ff00ff
        s_mov_b32 exec_hi, 0x00ff00ff
        buffer_store_short v36, v6, {srd(SOUT)}, 0 offen{self.OUTP}
        s_mov_b64 exec, -1
        """)
        self.stamp("rend")

    def tail(self):
        self.p3()
        self.topk()
        self.ffn()
        self.out_rows()
        self.reducer()

    def redo(self):
        self.topk_slow()
        super().redo()


if __name__ == "__main__":
    g = Full()
    s, n = g.build()
    sys.stdout.write(s)
    print("pads:", n, file=sys.stderr)
```

```python
import sys, os, struct
sys.path.insert(0, os.path.dirname(os.path.abspath(__file__)))
from asmb import Asm

NAME = "sequential_preLN__mha_block__moe_arch_mod__prompt_kernel"

WS_EPOCH = 0
WS_KVF = 0x1000
WS_CLF = 0x3000
WS_KEYS = 0x4000
WS_STATS = 0x20000
WS_KV = 0x100000
KVS = 4352
WS_OF = 0x580000
WS_HN = 0x780000
WS_HH = 0x800000
WS_Y = 0xB00000
WS_TS = 0xC00000
WS_SIZE = 0x1000000

L_W = 0
L_XR = 86016
L_CS = 151552
L_RS = 154624
L_QX = 155648
L_WO = 0
L_CB = 114688
L_ST = 147456
L_TR = 114688
L_SEL = 149504
L_AX = 149760
L_G = 138240
L_WG = 0
L_WU = 28672
L_WD = 57344
LDS_BYTES = 163840

SX, SWQ, SWS, SWO, SOUT, SWG, SWU, SWD, SWR = 8, 12, 16, 20, 24, 28, 32, 36, 40
sW, sH, sB, sT, sC, sNON, sI, sXCD = 44, 45, 46, 47, 48, 49, 50, 51
sKG = 52
sXO = 59
sONE = 60
sT0, sT1, sT2 = 61, 62, 63
sLO = 86
sM = 88
sA0, sA1, sA2, sA3, sA4, sA5 = 90, 91, 92, 93, 94, 95
sKVF, sKVO = 82, 83
sSPIN = 96
sPASS = 97
sTH = 98
sKT = 64
SPIN_MAX = 1 << 17

LOG2E = 1.4426950408889634


def fbits(x):
    return struct.unpack("<I", struct.pack("<f", x))[0]


def srd(r):
    return f"s[{r}:{r+3}]"


def vr(a, n):
    return f"v[{a}:{a+n-1}]" if n > 1 else f"v{a}"


def M32(d, a, b, c=None):
    return f"v_mfma_f32_32x32x16_bf16 {vr(d,16)}, {vr(a,4)}, {vr(b,4)}, {vr(c,16) if c is not None else 0}"


def M16(d, a, b, c=None):
    return f"v_mfma_f32_16x16x32_bf16 {vr(d,4)}, {vr(a,4)}, {vr(b,4)}, {vr(c,4) if c is not None else 0}"


def lines(t):
    return [x.strip() for x in t.strip().split("\n") if x.strip()]


class LQ:
    def __init__(self, a):
        self.a, self.q = a, []

    def op(self, text, tag):
        self.a(text)
        self.q.append(tag)

    def wait(self, tag):
        k = max(i for i, t in enumerate(self.q) if t == tag)
        self.a(f"s_waitcnt lgkmcnt({min(len(self.q) - 1 - k, 15)})")


sF, sU = 3, 4
sWOS, sWOM = 5, 6
sROW = 7
OOB = 0x7F000000


class Gen:
    def __init__(self, stop=None, ts=False, rot=True, force_fb=False, **kw):
        self.a = Asm()
        self.stop = stop
        self.ts = ts
        self.rot = rot
        self.force_fb = force_fb
        self.nts = 0
        self.tsn = []
        for k, v in kw.items():
            setattr(self, k, v)

    amp = None
    ampg = 80

    def stamp(self, name=""):
        if self.amp:
            if name == "entry":
                self.a("s_memrealtime s[100:101]")
            elif name == self.amp:
                self.a("s_memrealtime s[84:85]\ns_waitcnt lgkmcnt(0)")
        if not self.ts:
            return
        k = self.nts
        self.nts += 1
        self.tsn.append(name)
        assert k < 32
        self.a(f"""
        s_memrealtime s[100:101]
        s_waitcnt lgkmcnt(0)
        v_writelane_b32 v254, s100, {k}
        s_memtime s[100:101]
        s_waitcnt lgkmcnt(0)
        v_writelane_b32 v254, s100, {32+k}
        """.replace("v254", self.TSV))

    def spin_guard(self, out_label):
        self.a(f"""
        s_add_u32 s{sSPIN}, s{sSPIN}, 1
        s_cmp_gt_u32 s{sSPIN}, {SPIN_MAX}
        s_cbranch_scc1 {out_label}
        """)

    def xhalf_sum(self, x, t):
        self.a(f"""
        v_mov_b32 v{t}, v{x}
        v_permlane32_swap_b32 v{x}, v{t}
        v_add_f32 v{x}, v{x}, v{t}
        """)

    def ln_scalars(self, S1, S2, mb, rs, t0, t1):
        self.a(f"""
        v_mul_f32 v{mb}, {hex(fbits(1/448))}, v{S1}
        v_mul_f32 v{t0}, {hex(fbits(1/448))}, v{S2}
        v_fma_f32 v{t0}, -v{mb}, v{mb}, v{t0}
        v_max_f32 v{t0}, 0, v{t0}
        v_cvt_pk_bf16_f32 v{t1}, v{mb}, v{t0}
        v_lshlrev_b32 v{mb}, 16, v{t1}
        v_and_b32 v{t0}, 0xffff0000, v{t1}
        v_add_f32 v{t0}, {hex(fbits(1e-5))}, v{t0}
        v_cvt_pk_bf16_f32 v{t0}, v{t0}, v{t0}
        v_and_b32 v{t0}, 0xffff0000, v{t0}
        v_sqrt_f32 v{t0}, v{t0}
        v_cvt_pk_bf16_f32 v{t0}, v{t0}, v{t0}
        v_and_b32 v{t0}, 0xffff0000, v{t0}
        v_rcp_f32 v{rs}, v{t0}
        """)

    def neg_split2(self, d, x, t):
        self.a(f"""
        v_cvt_pk_bf16_f32 v{t}, -v{x}, -v{x}
        v_and_b32 v{t}, 0xffff0000, v{t}
        v_sub_f32 v{d}, -v{x}, v{t}
        v_cvt_pk_bf16_f32 v{d}, v{t}, v{d}
        """.replace("v_sub_f32 ", "v_sub_f32_e64 "))

    def prologue(self):
        a = self.a
        a(f"""
        s_cmp_ge_u32 s2, 256
        s_cbranch_scc1 L_end
        """)
        self.stamp("entry")
        a(f"""
        s_load_dwordx16 s[64:79], s[0:1], 0
        s_load_dwordx4 s[80:83], s[0:1], 64
        s_load_dwordx2 s[84:85], s[0:1], 80
        v_lshrrev_b32 v1, 6, v0
        v_and_b32 v0, 63, v0
        s_and_b32 s{sXCD}, s2, 7
        s_lshr_b32 s{sI}, s2, 3
        v_readfirstlane_b32 s{sW}, v1
        s_lshr_b32 s{sT0}, s{sXCD}, 1
        s_and_b32 s{sT1}, s{sXCD}, 1
        s_and_b32 s{sC}, s{sI}, 3
        s_lshr_b32 s{sT2}, s{sI}, 2
        s_lshl_b32 s{sH}, s{sT0}, 2
        s_add_u32 s{sH}, s{sH}, s{sC}
        s_lshl_b32 s{sH}, s{sH}, 2
        s_mov_b32 s{sA0}, {self.HMAP & 0xffffffff}
        s_mov_b32 s{sA1}, {self.HMAP >> 32}
        s_lshr_b64 s[{sA0}:{sA1}], s[{sA0}:{sA1}], s{sH}
        s_and_b32 s{sH}, s{sA0}, 15
        s_lshl_b32 s{sB}, s{sT1}, 3
        s_add_u32 s{sB}, s{sB}, s{sT2}
        s_lshl_b32 s{sT}, s{sT1}, 5
        s_lshl_b32 s{sT0}, s{sT0}, 3
        s_add_u32 s{sT}, s{sT}, s{sT0}
        s_add_u32 s{sT}, s{sT}, s{sT2}
        s_mov_b32 s{sONE}, 0x3f803f80
        s_mov_b32 s{sLO}, -1
        s_mov_b32 s{sLO+1}, 0
        s_mov_b32 s{sSPIN}, 0
        s_mov_b32 s{sPASS}, 0
        """)
        self.roles()
        a(f"""
        s_cmp_eq_u32 s{sW}, 4
        s_cbranch_scc1 L_helper
        """)
        if self.ROT == 7:
            a(f"""
            s_lshl_b32 s{sA0}, s{sC}, 1
            s_add_u32 s{sA0}, s{sA0}, s{sT2}
            s_cmp_ge_u32 s{sA0}, 7
            s_cselect_b32 s{sA1}, 7, 0
            s_sub_u32 s{sA0}, s{sA0}, s{sA1}
            """)
        elif self.ROT in (2, 4):
            a(f"""
            s_add_u32 s{sA0}, s{sC}, s{sT2}
            s_and_b32 s{sA0}, s{sA0}, {self.ROT-1}
            s_mul_i32 s{sA0}, s{sA0}, {self.ROTS}
            """)
        else:
            a(f"s_mov_b32 s{sA0}, 0")
        a(f"""
        v_lshrrev_b32 v22, 3, v0
        v_mul_u32_u24 v22, 896, v22
        v_lshrrev_b32 v23, 4, v0
        v_and_b32 v24, 7, v0
        v_xor_b32 v23, v23, v24
        v_lshl_add_u32 v1, v23, 4, v22
        v_xor_b32 v23, 4, v23
        v_lshl_add_u32 v2, v23, 4, v22
        v_add_u32 v2, {7168-1024}, v2
        v_add_u32 v3, {2*(7168-1024)}, v1
        v_add_u32 v4, {2*(7168-1024)}, v2
        v_lshrrev_b32 v22, 2, v0
        v_mul_u32_u24 v22, 2688, v22
        v_and_b32 v23, 3, v0
        v_lshlrev_b32 v23, 4, v23
        v_min_u32 v23, 40, v23
        v_add_u32 v5, v23, v22
        """)
        a(f"""
        s_lshl_b32 s{sXO}, s{sB}, 2
        s_add_u32 s{sXO}, s{sXO}, s{sW}
        s_mul_i32 s{sXO}, s{sXO}, {32*896}
        """)
        for G in range(7):
            a(f"s_mov_b32 s{sKG+G}, s{sA0}")
            if G < 6:
                a(f"""
                s_add_u32 s{sA0}, s{sA0}, 1
                s_cmp_eq_u32 s{sA0}, 7
                s_cselect_b32 s{sA0}, 0, s{sA0}
                """)
        a(f"""
        s_mul_i32 s{sA1}, s{sW}, {16*2688}
        s_mul_i32 s{sA2}, s{sH}, 56
        s_add_u32 s{sA1}, s{sA1}, s{sA2}
        s_add_u32 s{sA1}, s{sA1}, 896
        s_lshl_b32 s{sA2}, s{sW}, 14
        s_add_u32 s{sA2}, s{sA2}, {L_XR}
        s_mul_i32 s{sA3}, s{sW}, 21504
        s_waitcnt lgkmcnt(0)
        s_add_u32 s84, s84, {self.WSB << 20}
        s_addc_u32 s85, s85, 0
        s_load_dword s{sNON}, s[84:85], 0
        s_mov_b32 s{SX}, s64
        s_mov_b32 s{SX+1}, s65
        s_mov_b32 s{SX+2}, {2048*896}
        s_mov_b32 s{SX+3}, 0x20000
        s_mov_b32 s{SWQ}, s66
        s_mov_b32 s{SWQ+1}, s67
        s_mov_b32 s{SWQ+2}, {448*2688}
        s_mov_b32 s{SWQ+3}, 0x20000
        """)
        a("\n".join(self.dma_x(0) + self.dma_w(0) + self.dma_x(1)))
        self.srds()
        a(f"""
        v_and_b32 v22, 31, v0
        v_lshrrev_b32 v23, 5, v0
        v_lshrrev_b32 v24, 1, v22
        v_and_b32 v24, 7, v24
        v_xor_b32 v24, v24, v23
        v_lshlrev_b32 v22, 7, v22
        v_add_u32 v22, s{sA2}, v22
        v_lshrrev_b32 v25, 2, v0
        v_and_b32 v25, 3, v25
        v_lshl_add_u32 v25, v23, 3, v25
        v_lshlrev_b32 v25, 6, v25
        v_lshrrev_b32 v26, 4, v0
        v_and_b32 v26, 1, v26
        v_lshl_add_u32 v25, v26, 5, v25
        v_lshrrev_b32 v27, 1, v0
        v_and_b32 v27, v27, v26
        v_and_b32 v26, 3, v0
        v_xor_b32 v26, v26, v27
        v_lshl_add_u32 v25, v26, 3, v25
        """)
        for p in range(4):
            a(f"""
            s_add_u32 s{sT0}, s{sW}, {p}
            s_and_b32 s{sT0}, s{sT0}, 3
            s_lshl_b32 s{sT1}, s{sT0}, 1
            s_mul_i32 s{sT2}, s{sT0}, 21504
            v_xor_b32 v26, s{sT1}, v24
            v_lshl_add_u32 v{6+p}, v26, 4, v22
            v_add_u32 v{10+p}, s{sT2}, v25
            """)
        for r in list(range(14, 22)) + [31, 97, 98, 99, 101, 102, 103, 105, 106, 107]:
            a(f"v_mov_b32 v{r}, 0")
        a("\n".join(self.dma_w(1) + self.dma_x(2)))
        for p in range(4):
            a(f"""
            s_add_u32 s{sT0}, s{sW}, {p+1}
            s_and_b32 s{sT0}, s{sT0}, 3
            s_lshl_b32 s{sT0}, s{sT0}, 11
            s_add_u32 s{sT0}, s{sT0}, {L_QX}
            v_lshl_add_u32 v{124+p}, v0, 4, s{sT0}
            """)
        a(f"""
        s_lshl_b32 s{sT0}, s{sH}, 2
        s_add_u32 s{sT0}, s{sT0}, s{sW}
        s_lshl_b32 s{sT0}, s{sT0}, 7
        s_add_u32 s{sKVF}, s{sT0}, {WS_KVF}
        s_lshl_b32 s{sT1}, s{sB}, 2
        s_add_u32 s{sKVO}, s{sT1}, s{sKVF}
        s_lshl_b32 s{sT0}, s{sH}, 6
        s_add_u32 s{sT0}, s{sT0}, s{sW}
        s_mul_i32 s{sT0}, s{sT0}, {KVS}
        s_add_u32 s{sT0}, s{sT0}, {WS_KV}
        """)
        for i in range(16):
            a(f"""
            s_add_u32 s{sT1}, s{sB}, {i}
            s_and_b32 s{sT1}, s{sT1}, 15
            s_mul_i32 s{sT1}, s{sT1}, {4*KVS}
            s_add_u32 s{sKT+i}, s{sT1}, s{sT0}
            """)
        self.stamp("issued")

    def roles(self):
        self.a(f"""
        s_lshr_b32 s{sT0}, s{sI}, 2
        s_sub_u32 s{sT0}, s{sI}, s{sT0}
        s_sub_u32 s{sT0}, s{sT0}, 1
        s_mul_i32 s{sT1}, s{sXCD}, 7
        s_add_u32 s{sF}, s{sT0}, s{sT1}
        s_cmp_lt_u32 s{sI}, 10
        s_cselect_b32 s{sF}, s{sF}, -1
        s_cmp_eq_u32 s{sC}, 0
        s_cselect_b32 s{sF}, -1, s{sF}
        s_mul_i32 s{sT1}, s{sXCD}, 14
        s_sub_u32 s{sT0}, s{sI}, 10
        s_add_u32 s{sU}, s{sT0}, s{sT1}
        s_cmp_lt_u32 s{sT0}, 14
        s_cselect_b32 s{sU}, s{sU}, -1
        s_mul_i32 s{sROW}, s{sT}, {32*896}
        s_mul_i32 s{sT0}, s{sC}, 224
        s_add_u32 s{sROW}, s{sROW}, s{sT0}
        """)

    def cand_base(self, d, w):
        w = f"s{w}" if w >= 4 else str(w)
        self.a(f"""
        s_lshl_b32 s{sT0}, s{sT}, 1
        s_and_b32 s{sT1}, {w}, 1
        s_add_u32 s{sT0}, s{sT0}, s{sT1}
        s_mul_i32 s{sT0}, s{sT0}, {4*896}
        s_mul_i32 s{sT1}, s{sC}, 224
        s_add_u32 s{sT0}, s{sT0}, s{sT1}
        s_lshr_b32 s{sT1}, {w}, 1
        s_mul_i32 s{sT1}, s{sT1}, {WS_HH-WS_HN}
        s_add_u32 s{sT0}, s{sT0}, s{sT1}
        s_add_u32 s{d}, s{sT0}, {WS_HN}
        """)

    def srds(self):
        for r, p, n in ((SWS, 84, WS_SIZE), (SWO, 68, 448 * 896), (SOUT, 80, 2048 * 896), (SWG, 74, 448 * 3584),
                        (SWU, 76, 448 * 3584), (SWD, 78, 1792 * 896), (SWR, 72, 896)):
            self.a(f"""
            s_mov_b32 s{r}, s{p}
            s_mov_b32 s{r+1}, s{p+1}
            s_mov_b32 s{r+2}, {n}
            s_mov_b32 s{r+3}, 0x20000
            """)

    def dma_x(self, G):
        if G > 6:
            return []
        return lines(f"""
        s_lshl_b32 s{sT0}, s{sKG+G}, 7
        s_add_u32 m0, s{sA2}, {(G%4)*4096}
        s_add_u32 s{sT0}, s{sT0}, s{sXO}
        buffer_load_dwordx4 v1, {srd(SX)}, s{sT0} offen lds
        buffer_load_dwordx4 v2, {srd(SX)}, s{sT0} offen offset:1024 lds
        buffer_load_dwordx4 v3, {srd(SX)}, s{sT0} offen offset:2048 lds
        buffer_load_dwordx4 v4, {srd(SX)}, s{sT0} offen offset:3072 lds
        """)

    def dma_w(self, G):
        return lines(f"""
        s_mul_i32 s{sKG+G}, s{sKG+G}, {64*2688}
        s_add_u32 m0, s{sA3}, {L_W+G*3072}
        s_add_u32 s{sKG+G}, s{sKG+G}, s{sA1}
        s_sub_u32 s{sT1}, s{sKG+G}, 128
        buffer_load_dwordx4 v5, {srd(SWQ)}, s{sKG+G} offen lds
        buffer_load_dwordx4 v5, {srd(SWQ)}, s{sT1} offen offset:1024 lds
        """)

    def dma_q(self, G):
        return [f"s_add_u32 m0, s{sA3}, {L_W+G*3072+2048}", f"s_sub_u32 s{sT1}, s{sKG+G}, 896",
                f"buffer_load_dwordx4 v5, {srd(SWQ)}, s{sT1} offen lds"]

    LA = 2
    HMAP = sum(h << (4 * k) for k, h in enumerate(range(16)))
    TSV = 'v29'
    ATS = 0
    P1S = 0
    FLAGAT = 24
    ROT = 2
    ROTS = 1
    NT = 0

    def touches(self):
        return []

    def p1(self):
        a = self.a
        XF, AK, AV, AQ, WF = 128, 32, 48, 64, 80
        XE = 96
        RS = 108
        KO, VO = 240, 248
        s1, s2, csK, csV = (14, 15), (16, 17), 18, 19
        WEK, WEV = 100, 104
        queue = [("x", 0)] * 4 + [("w", 0)] * 2 + [("x", 1)] * 4 + [("w", 1)] * 2 + [("x", 2)] * 4

        def newer(tag):
            k = max(i for i, t in enumerate(queue) if t == tag)
            return len(queue) - 1 - k

        def xstats(G):
            for n in range(4 * G, 4 * G + 4):
                for i in range(4):
                    a(f"v_dot2c_f32_bf16 v{s1[i%2]}, s{sONE}, v{XF+4*n+i}")
                    a(f"v_dot2c_f32_bf16 v{s2[i%2]}, v{XF+4*n+i}, v{XF+4*n+i}")

        WBS = ([80, 88, 240, 248], [64, 72, 108, 116])

        def xreads(G):
            return [f"ds_read_b128 {vr(XF+4*(4*G+q),4)}, v{6+q} offset:{(G%4)*4096}" for q in range(4)] if G < 7 else []

        def wreads(G):
            WB = WBS[G % 2]
            return [f"ds_read_b64_tr_b16 {vr(WB[p]+4*t+2*hlf,2)}, v{10+p} offset:{G*3072+t*1024+hlf*256}"
                    for p in range(4) for t in range(2) for hlf in range(2)]

        def batch(G):
            r = []
            if G <= 6:
                r = self.dma_w(G) + self.dma_x(G + 1)
                queue.extend([("w", G)] * 2 + ([("x", G + 1)] * 4 if G < 6 else []))
            return r

        a(f"s_waitcnt vmcnt({newer(('x', 0))})")
        for x in xreads(0):
            a(x)
        a("s_waitcnt lgkmcnt(0)")
        a(f"""
        s_mul_i32 s{sNON}, s{sNON}, 0x19660d
        s_add_u32 s{sNON}, s{sNON}, 0x3c6ef35f
        v_mov_b32 v30, s{sNON}
        """)
        xstats(0)
        a(f"s_waitcnt vmcnt({newer(('x', 1))})\ns_barrier")
        self.stamp("g0")
        for x in wreads(0)[:4] + xreads(1) + wreads(0)[4:]:
            a(x)
        for x in batch(2):
            a(x)
        qsched = {4: [0, 1, 2, 3], 5: [4, 5, 6]}
        for G in range(7):
            WB = WBS[G % 2]
            if self.P1S:
                self.stamp(f"G{G}")
            a("s_waitcnt lgkmcnt(12)")
            for i in range(4):
                a(f"v_dot2c_f32_bf16 v{csK}, s{sONE}, v{WB[0]+i}")
                a(f"v_dot2c_f32_bf16 v{csV}, s{sONE}, v{WB[0]+4+i}")
            if G < 6:
                xstats(G + 1)
            else:
                a(f"""
                ds_write_b32 v24, v{csK}
                ds_write_b32 v24, v{csV} offset:1024
                """)
            gaps = [[] for _ in range(8)]
            early = batch(G + 3)
            for k in qsched.get(G, ()):
                early += self.dma_q(k)
                queue.append(("q", k))
            if G == 4:
                early += lines(f"""v_and_b32 v22, 31, v0
                v_lshlrev_b32 v22, 5, v22
                v_add_u32 v23, {L_CS}, v22
                v_lshrrev_b32 v24, 5, v0
                s_lshl_b32 s{sT0}, s{sW}, 3
                v_lshl_add_u32 v24, v24, 2, v23
                v_add_u32 v24, s{sT0}, v24""")
            if G == 5:
                sub = Gen()
                sub.a(f"""
                v_add_f32 v14, v14, v15
                v_add_f32 v16, v16, v17
                v_permlane32_swap_b32 v14, v16
                v_add_f32 v14, v14, v16
                v_mov_b32 v16, v14
                v_permlane32_swap_b32 v14, v16
                """)
                sub.ln_scalars(14, 16, 26, 28, 15, 17)
                sub.a(f"""
                v_lshrrev_b32 v15, 16, v26
                v_or_b32 v15, v15, v26
                v_cndmask_b32 v{XE}, 0, v15, s[{sLO}:{sLO+1}]
                v_and_b32 v15, 31, v0
                s_lshl_b32 s{sT0}, s{sW}, 7
                s_add_u32 s{sT0}, s{sT0}, {L_RS}
                v_lshl_add_u32 v15, v15, 2, s{sT0}
                v_lshrrev_b32 v25, 5, v0
                v_lshl_add_u32 v25, v25, 4, s{sT0}
                ds_write_b32 v15, v28
                """)
                stats = [x[1].text for x in sub.a.items]
                early = early + stats[:8]
                stats = stats[8:]
            if G < 6:
                per = -(-len(early) // 3)
                for k in range(3):
                    gaps[k] = early[k * per:(k + 1) * per]
                w = wreads(G + 1)
                rd = w[:4] + xreads(G + 2) + w[4:]
                gaps[2] += [f"s_waitcnt vmcnt({newer(('x', G+2) if G < 5 else ('w', 6))})", "s_barrier"]
                per = -(-len(rd) // 5)
                for k in range(5):
                    gaps[3 + k] = rd[per * k:per * k + per]
            else:
                sub = Gen()
                for mat, we in ((0, WEK), (1, WEV)):
                    r = RS + 8 * mat
                    sub.a(f"""
                    v_add_f32 v{r}, v{r}, v{r+1}
                    v_add_f32 v{r+2}, v{r+2}, v{r+3}
                    v_add_f32 v{r+4}, v{r+4}, v{r+5}
                    v_add_f32 v{r+6}, v{r+6}, v{r+7}
                    v_add_f32 v{r}, v{r}, v{r+2}
                    v_add_f32 v{r+4}, v{r+4}, v{r+6}
                    v_add_f32 v{r}, v{r}, v{r+4}
                    """)
                    sub.neg_split2(we, r, 22)
                Bc = [x[1].text for x in sub.a.items]
                gaps[0] = stats[:4] + ["s_waitcnt lgkmcnt(0)", "s_barrier"] + \
                    [f"ds_read_b128 {vr(RS+4*i,4)}, v23 offset:{(i//2)*1024+(i%2)*16}" for i in range(4)]
                A = stats[4:]
                mix = A[:6] + ["s_waitcnt lgkmcnt(0)"]
                A = A[6:]
                while A or Bc:
                    mix += A[:1] + Bc[:2]
                    A, Bc = A[1:], Bc[2:]
                per = -(-len(mix) // 7)
                for k in range(7):
                    gaps[1 + k] = mix[k * per:(k + 1) * per]
            for p in range(4):
                m = 4 * G + p
                if p == 1 and G < 6:
                    a("s_waitcnt lgkmcnt(0)")
                a(M32(AK, WB[p], XF + 4 * m, AK if m else None))
                for x in gaps[2 * p]:
                    a(x)
                a(M32(AV, XF + 4 * m, WB[p] + 4, AV if m else None))
                for x in gaps[2 * p + 1]:
                    a(x)
        a(M32(AK, WEK, XE, AK))
        a("s_waitcnt lgkmcnt(0)")
        for g in range(4):
            a(f"ds_read_b128 {vr(RS+4*g,4)}, v25 offset:{g*32}")
        a(M32(AV, XE, WEV, AV))
        a(f"""
        v_lshlrev_b32 v1, 4, v0
        v_and_b32 v22, 31, v0
        v_cmp_gt_u32 vcc, 28, v22
        v_mov_b32 v14, s{sONE}
        v_mov_b32 v27, 0x3f80
        v_cndmask_b32 v15, 0, -1, vcc
        v_cmp_eq_u32 vcc, 28, v22
        """)
        for i in range(8):
            a(f"v_pk_mul_f32 {vr(AK+2*i,2)}, {vr(AK+2*i,2)}, {vr(28,2)} op_sel_hi:[1,0]")
        a("v_cndmask_b32 v22, 0, v14, vcc")
        for i in range(8):
            a(f"v_cvt_pk_bf16_f32 v{KO+i}, v{AK+2*i}, v{AK+2*i+1}")
            if i == 3:
                a(f"buffer_store_dwordx4 {vr(KO,4)}, v1, {srd(SWS)}, s{sKT} offen sc1")
        a(f"""
        v_cndmask_b32 v{KO+6}, v14, v{KO+6}, s[{sLO}:{sLO+1}]
        v_cndmask_b32 v{KO+7}, v27, v{KO+7}, s[{sLO}:{sLO+1}]
        buffer_store_dwordx4 {vr(KO+4,4)}, v1, {srd(SWS)}, s{sKT} offen offset:1024 sc1
        s_waitcnt lgkmcnt(0)
        """)
        for hf in range(2):
            for i in range(4 * hf, 4 * hf + 4):
                a(f"v_pk_mul_f32 {vr(AV+2*i,2)}, {vr(AV+2*i,2)}, {vr(RS+2*i,2)}")
            for i in range(4 * hf, 4 * hf + 4):
                a(f"v_cvt_pk_bf16_f32 v{VO+i}, v{AV+2*i}, v{AV+2*i+1}")
            for i in range(4 * hf, 4 * hf + 4):
                a(f"v_and_or_b32 v{VO+i}, v{VO+i}, v15, v22")
            a(f"buffer_store_dwordx4 {vr(VO+4*hf,4)}, v1, {srd(SWS)}, s{sKT} offen offset:{2048+1024*hf} sc1")
        a(f"v_lshlrev_b32 v6, 2, v0\nv_add_u32 v6, 4096, v6")
        a("\n".join(self.kv_sum(KO, 7)))
        a(f"buffer_store_dword v7, v6, {srd(SWS)}, s{sKT} offen sc1")
        queue.extend([("st", 0)] * 5)
        self.stamp("kvpub")
        QR = 32
        lq = LQ(a)
        order = list(range(20)) + [24, 20, 21, 22, 23, 25, 26, 27]
        stage_end = {0: 1, 8: 4, 20: 6}

        def qread(n):
            G, p = divmod(order[n], 4)
            if n in stage_end:
                if self.P1S and n:
                    self.stamp(f"q{n}")
                a(f"s_waitcnt vmcnt({newer(('q', stage_end[n]))})\ns_barrier")
            for hlf in range(2):
                lq.op(f"ds_read_b64_tr_b16 {vr(QR+4*(n%8)+2*hlf,2)}, v{10+p} offset:{G*3072+2048+hlf*256}", n)

        PD = 3
        a(f"s_mov_b32 s{sA0}, 0xffff0000")
        for n in range(PD):
            qread(n)
        U = 108
        sub = Gen()
        sub.a(f"""
        v_add_f32 v{RS}, v{RS}, v{RS+1}
        v_add_f32 v{RS+2}, v{RS+2}, v{RS+3}
        v_add_f32 v{RS+4}, v{RS+4}, v{RS+5}
        v_add_f32 v{RS+6}, v{RS+6}, v{RS+7}
        v_add_f32 v{RS}, v{RS}, v{RS+2}
        v_add_f32 v{RS+4}, v{RS+4}, v{RS+6}
        v_add_f32 v{RS}, v{RS}, v{RS+4}
        """)
        sub.neg_split2(WEV, RS, 22)
        fin = [x[1].text for x in sub.a.items]
        for n in range(28):
            lq.wait(n)
            a(M32(AQ, QR + 4 * (n % 8), XF + 4 * order[n], AQ if n else None))
            if n + PD < 28:
                qread(n + PD)
            unp = lambda fr, u, k: f"v_lshlrev_b32 v{u+2*k}, 16, v{fr+k}\nv_and_b32 v{u+2*k+1}, s{sA0}, v{fr+k}"
            add = lambda u, k: f"v_add_f32 v{20+k%2}, v{20+k%2}, v{u+k}"
            if n < 20:
                p = n % 4
                fr = QR + 4 * ((n - p) % 8)
                if p < 2:
                    a(unp(fr, U, 2 * p) + "\n" + unp(fr, U, 2 * p + 1))
                else:
                    for k in range(4 * (p - 2), 4 * (p - 2) + 4):
                        a(add(U, k))
            elif n in (20, 21):
                for k in range(4):
                    a(unp(QR + 4 * (n % 8), U + 8 * (n - 20), k))
            elif n == 22:
                for k in range(16):
                    a(add(U, k))
                a("v_add_f32 v20, v20, v21")
                lq.op("ds_write_b32 v24, v20 offset:2048", "cs")
            elif n == 23:
                a(f"v_mul_f32 v28, {hex(fbits(LOG2E*28**-0.5))}, v28")
                lq.wait("cs")
                a("s_barrier")
                lq.op(f"ds_read_b128 {vr(RS,4)}, v23 offset:2048", "r")
                lq.op(f"ds_read_b128 {vr(RS+4,4)}, v23 offset:2064", "r")
            if n == self.FLAGAT:
                a(f"""
                s_waitcnt vmcnt(0)
                s_mov_b64 exec, 1
                buffer_store_dword v30, v31, {srd(SWS)}, s{sKVO} offen sc1
                s_mov_b64 exec, -1
                """)
            if n == 25:
                lq.wait("r")
                a("\n".join(fin[:6]))
            if n == 26:
                a("\n".join(fin[6:]))
        if self.P1S:
            self.stamp("qmm")
        a(M32(AQ, WEV, XE, AQ))
        if self.EARLY:
            a("\n".join(self.kv_load(1, k) for k in range(5)))
        QO = 80
        for i in range(8):
            a(f"v_pk_mul_f32 {vr(AQ+2*i,2)}, {vr(AQ+2*i,2)}, {vr(28,2)} op_sel_hi:[1,0]")
        for i in range(8):
            a(f"v_cvt_pk_bf16_f32 v{QO+i}, v{AQ+2*i}, v{AQ+2*i+1}")
        a(f"""
        v_cndmask_b32 v{QO+6}, 0, v{QO+6}, s[{sLO}:{sLO+1}]
        v_cndmask_b32 v{QO+7}, 0, v{QO+7}, s[{sLO}:{sLO+1}]
        """)
        S = 32
        a(M32(S, KO, QO))
        a(M32(S, KO + 4, QO + 4, S))
        a(f"ds_write_b128 v127, {vr(QO,4)}")
        a(f"""
        v_and_b32 v2, 15, v0
        v_lshlrev_b32 v2, 2, v2
        s_mov_b32 s{sA2}, 0x00010001
        s_lshl_b32 s{sA2}, s{sA2}, s{sB}
        s_mov_b32 s{sA3}, s{sA2}
        """)
        if self.P1S:
            self.stamp("smm")
        self.rowmax16(S, 22)
        if self.force_fb:
            a("v_add_f32 v22, 0xc3480000, v22")
        self.shift_split(22, 23, 24, 25)
        a(f"""
        v_cndmask_b32 v{QO+6}, v23, v{QO+6}, s[{sLO}:{sLO+1}]
        v_cndmask_b32 v{QO+7}, v24, v{QO+7}, s[{sLO}:{sLO+1}]
        ds_write_b128 v127, {vr(QO+4,4)} offset:1024
        s_waitcnt lgkmcnt(0)
        s_barrier
        """)
        for p in range(4):
            a(f"ds_read_b128 {vr(128+8*p,4)}, v{124+p}")
            a(f"ds_read_b128 {vr(128+8*p+4,4)}, v{124+p} offset:1024")
        self.stamp("qdone")

    def rowmax16(self, S, d):
        self.a(f"""
        v_max3_f32 v{d}, v{S}, v{S+1}, v{S+2}
        v_max3_f32 v{d+1}, v{S+3}, v{S+4}, v{S+5}
        v_max3_f32 v{d}, v{d}, v{S+6}, v{S+7}
        v_max3_f32 v{d+1}, v{d+1}, v{S+8}, v{S+9}
        v_max3_f32 v{d}, v{d}, v{S+10}, v{S+11}
        v_max3_f32 v{d+1}, v{d+1}, v{S+12}, v{S+13}
        v_max3_f32 v{d}, v{d}, v{S+14}, v{S+15}
        v_max_f32 v{d}, v{d}, v{d+1}
        v_mov_b32 v{d+1}, v{d}
        v_permlane32_swap_b32 v{d}, v{d+1}
        v_max_f32 v{d}, v{d}, v{d+1}
        """)

    def shift_split(self, m, d6, d7, t):
        self.a(f"""
        v_cvt_pk_bf16_f32 v{d6}, -v{m}, -v{m}
        v_and_b32 v{d6}, 0xffff0000, v{d6}
        v_sub_f32_e64 v{d7}, -v{m}, v{d6}
        v_cvt_pk_bf16_f32 v{t}, v{d7}, v{d7}
        v_and_b32 v{t}, 0xffff0000, v{t}
        v_sub_f32 v{d7}, v{d7}, v{t}
        v_cvt_pk_bf16_f32 v{d6}, v{d6}, v{t}
        v_cvt_pk_bf16_f32 v{d7}, v{d7}, 0
        """)

    Q, O, SA, SB, TT, P = 128, 160, 32, 48, 64, 72
    KVB = (240, 224, 80, 96)
    XR2, W2, S4 = 240, 120, 112
    VTG = 116

    def unit(self, i, qt, extra):
        a = self.a
        Q, O, TT, P, B = self.Q, self.O, self.TT, self.P, self.KVB
        n = 4 * i + qt
        buf, bufn, bufp = B[i % 4], B[(i + 1) % 4], B[(i - 1) % 4]
        Sc, Sn = (self.SA, self.SB) if n % 2 == 0 else (self.SB, self.SA)
        kn = buf if qt < 3 else bufn
        qn, qp = (qt + 1) % 4, (qt - 1) % 4
        vp = (buf if qt > 0 else bufp) + 8
        ms = [M32(Sn, kn, Q + 8 * qn), M32(O + 16 * qp, vp + 4, P + 4, O + 16 * qp),
              M32(Sn, kn + 4, Q + 8 * qn + 4, Sn),
              M32(O + 16 * qt, buf + 8, P, None if i == 0 else O + 16 * qt)]
        for g in range(4):
            for x in extra.get(("pre", g), ()):
                a(x)
            if not (n == 0 and g == 1) and not (n == 63 and g in (0, 2)):
                a(ms[g])
            for x in extra.get(g, ()):
                a(x)
            tb, tp, pp = TT + 4 * (g % 2), TT + 4 * ((g + 1) % 2), P + 2 * ((g - 1) % 4)
            a(f"v_exp_f32 v{tb}, v{Sc+4*g}")
            a(f"v_exp_f32 v{tb+1}, v{Sc+4*g+1}")
            if not (n == 0 and g == 0):
                a(f"v_cvt_pk_bf16_f32 v{pp}, v{tp}, v{tp+1}")
                a(f"v_cvt_pk_bf16_f32 v{pp+1}, v{tp+2}, v{tp+3}")
            a(f"v_exp_f32 v{tb+2}, v{Sc+4*g+2}")
            a(f"v_exp_f32 v{tb+3}, v{Sc+4*g+3}")

    def kv_sum(self, buf, d):
        return [f"v_add3_u32 v{d}, v{buf+2*k}, v{buf+2*k+1}, v{d if k else 30}" for k in range(8)]

    def kv_load(self, i, part, buf=None):
        buf = self.KVB[i % 4] if buf is None else buf
        if part == 4:
            return f"buffer_load_dword v{14+i%4}, v6, {srd(SWS)}, s{sKT+i} offen sc1"
        return f"buffer_load_dwordx4 {vr(buf+4*part,4)}, v1, {srd(SWS)}, s{sKT+i} offen offset:{1024*part} sc1"

    NV = 3
    EARLY = 1
    POLLQ = 2

    def attention(self):
        a = self.a
        Q, O, P, TT, B = self.Q, self.O, self.P, self.TT, self.KVB
        NV = self.NV
        queue = []

        def newer(tag):
            k = max(i for i, t in enumerate(queue) if t == tag)
            return len(queue) - 1 - k

        def ld(i, part):
            queue.append((i, part))
            return self.kv_load(i, part)

        def other(text):
            if text.startswith("buffer_"):
                queue.append("o")
            return text

        first = [ld(1, k) for k in range(5)]
        if not self.EARLY:
            a("L_att:")
            a("\n".join(first))
        else:
            a("L_att:")
        a("s_waitcnt lgkmcnt(4)")
        a(M32(self.SA, B[0], Q))
        a(M32(self.SA, B[0] + 4, Q + 4, self.SA))
        self.retry = []

        def check(t):
            self.retry.append(t)
            return [f"s_waitcnt vmcnt({newer((t, 4))})", f"L_kvc{t}:"] + self.kv_sum(B[t % 4], 7) + \
                [f"v_cmp_ne_u32 vcc, v7, v{14+t%4}", f"s_cbranch_vccnz L_kvr{t}", f"L_kvd{t}:"]

        late = {}
        self.first_waits = True
        late[(12, 1)] = lines(f"""
        v_and_b32 v22, 31, v0
        v_lshrrev_b32 v23, 5, v0
        v_lshlrev_b32 v23, 3, v23
        v_mul_u32_u24 v22, 896, v22""")
        late[(12, 2)] = lines(f"""
        v_add_u32 v22, v22, v23
        s_mul_i32 s{sT1}, s{sW}, 56
        s_add_u32 s{sT0}, s{sROW}, s{sT1}
        s_mul_i32 s{sT2}, s{sC}, 224
        s_add_u32 s{sT1}, s{sT1}, s{sT2}""")
        xl = [f"buffer_load_dwordx2 {vr(self.XR2+2*g,2)}, v22, {srd(SX)}, s{sT0} offen offset:{16*g}" for g in range(4)]
        wl = [f"buffer_load_dwordx2 {vr(self.W2+2*g,2)}, v23, {srd(SWR)}, s{sT1} offen offset:{16*g}" for g in range(4)]
        late[(13, 0)] = wl[:1]
        late[(13, 1)] = wl[1:2] + xl[:1]
        late[(13, 2)] = wl[2:3] + xl[1:2]
        late[(13, 3)] = wl[3:] + xl[2:3]
        late[(14, 0)] = xl[3:] + lines(f"""
        s_lshl_b32 s{sA4}, s{sW}, 8
        s_add_u32 s{sA4}, s{sA4}, {WS_CLF}
        v_lshlrev_b32 v5, 2, v0""")
        late[(14, 1)] = [f"buffer_load_dword v4, v5, {srd(SWS)}, s{sA4} offen sc1"]
        cb = []
        for p in range(3):
            cb += lines(f"""
            s_add_u32 s{sT0}, s{sW}, {p+1}
            s_and_b32 s{sT0}, s{sT0}, 3
            s_mul_i32 s{sT0}, s{sT0}, 12288
            s_add_u32 s{sT0}, s{sT0}, {L_CB+p*4096}
            v_add_u32 v{10+p}, s{sT0}, v1""")
        cb += lines(f"""
        s_mul_i32 s{sT0}, s{sW}, 12288
        s_add_u32 s{sT0}, s{sT0}, {L_CB}
        v_add_u32 v13, s{sT0}, v1
        v_mov_b32 v8, {hex(fbits(2.0**100))}""")
        late[(14, 2)], late[(14, 3)], late[(15, 0)] = cb[:7], cb[7:13], cb[13:]
        wr = lambda p, k: f"ds_write_b128 v{10+p}, {vr(O+16*p+4*k,4)} offset:{k*1024}"
        for i in range(16):
            for qt in range(4):
                ex = {}
                if i == 0 and qt == 1:
                    ex[("pre", 0)] = ["s_waitcnt lgkmcnt(0)"]
                pre0 = ex.get(("pre", 0), [])
                if qt == 3 and i < 15:
                    pre0 = pre0 + (check(i + 1) if i + 1 <= NV else [f"s_waitcnt vmcnt({newer((i + 1, 3))})"])
                if i == NV - 2 and qt == 0:
                    pre0 = pre0 + lines(f"""
                    s_waitcnt vmcnt({newer("p")})
                    L_kvpoll:
                    v_cmp_ne_u32 vcc, s{sNON}, v3
                    s_andn2_b64 vcc, vcc, s[{sA2}:{sA3}]
                    s_cbranch_vccnz L_kvpr
                    L_kvok:""")
                ex[("pre", 0)] = pre0
                if i == NV - 3 and qt == self.POLLQ:
                    ex[1] = [f"buffer_load_dword v3, v2, {srd(SWS)}, s{sKVF} offen sc1"]
                    queue.append("p")
                if i == 0:
                    t = 2 + qt // 2
                    lds_ = [ld(t, k) for k in ((0, 1) if qt % 2 == 0 else (2, 3, 4))]
                    ex[2], ex[3] = lds_[:-1], lds_[-1:]
                else:
                    ex[0] = [other(x) for x in late.get((i, qt), [])]
                    if i + 3 <= 15:
                        ex[2] = [ld(i + 3, qt)]
                        if qt == 3 and i + 3 <= NV:
                            ex[3] = [ld(i + 3, 4)]
                if i == 15:
                    if qt == 1:
                        ex[3] = [wr(0, 0)]
                    if qt == 2:
                        ex[0], ex[2], ex[3] = [wr(0, 1)], [wr(0, 2)], [wr(1, 0)]
                    if qt == 3:
                        ex[0], ex[2], ex[3] = [wr(1, 1)], [wr(1, 2)], [wr(2, 0)]
                self.unit(i, qt, ex)
                if i == 0 and qt == 3:
                    self.stamp("kvok")
                if i == 0 and qt == 3:
                    a("s_barrier")
                if self.ATS and qt == 3 and i in (0, 1, 2, 4, 6, 8, 10, 12, 14):
                    self.stamp(f"t{i}")
        a(f"""
        v_cvt_pk_bf16_f32 v{P+6}, v{TT+4}, v{TT+5}
        v_cvt_pk_bf16_f32 v{P+7}, v{TT+6}, v{TT+7}
        v_max3_f32 v9, v{O+12}, v{O+16+12}, v{O+32+12}
        """)
        a(M32(O + 48, B[3] + 12, P + 4, O + 48))
        a(wr(2, 1))
        a(wr(2, 2))
        self.stamp("attn")

    def combine(self):
        a = self.a
        O = self.O
        a(f"""
        L_clpoll:
        s_waitcnt vmcnt(0)
        v_cmp_ne_u32 vcc, s{sNON}, v4
        s_cbranch_vccz L_clok
        """)
        self.spin_guard("L_clok")
        a(f"""
        buffer_load_dword v4, v5, {srd(SWS)}, s{sA4} offen sc1
        s_branch L_clpoll
        L_clok:
        v_max_f32 v9, v9, v{O+48+12}
        v_cmp_nlt_f32 vcc, v9, v8
        s_andn2_b64 vcc, vcc, s[{sLO}:{sLO+1}]
        s_cmp_lg_u64 vcc, 0
        s_cselect_b32 s{sT1}, 0x3f800000, 0
        v_mov_b32 v8, s{sT1}
        """)
        for p in range(4):
            a(f"v_cndmask_b32 v{O+16*p+13}, v8, v{O+16*p+13}, s[{sLO}:{sLO+1}]")
        for p in range(3):
            a(f"ds_write_b128 v{10+p}, {vr(O+16*p+12,4)} offset:3072")
        a(f"""
        s_lshl_b32 s{sT0}, s{sB}, 2
        s_add_u32 s{sT0}, s{sT0}, s{sW}
        s_lshl_b32 s{sT0}, s{sT0}, 4
        s_add_u32 s{sT0}, s{sT0}, s{sH}
        s_lshl_b32 s{sT0}, s{sT0}, 11
        s_add_u32 s99, s{sT0}, {WS_OF}
        s_waitcnt lgkmcnt(0)
        s_barrier
        """)
        order = (3, 0, 1, 2)
        for k in order:
            for p in range(3):
                a(f"ds_read_b128 {vr(O+16*p+4*k,4)}, v13 offset:{p*4096+k*1024}")
        R = O + 48
        for c, k in enumerate(order):
            a(f"s_waitcnt lgkmcnt({9-3*c})")
            for i in range(2):
                r = 4 * k + 2 * i
                a(f"v_pk_add_f32 {vr(R+r,2)}, {vr(R+r,2)}, {vr(O+r,2)}")
                a(f"v_pk_add_f32 {vr(O+16+r,2)}, {vr(O+16+r,2)}, {vr(O+32+r,2)}")
            for i in range(2):
                r = 4 * k + 2 * i
                a(f"v_pk_add_f32 {vr(R+r,2)}, {vr(R+r,2)}, {vr(O+16+r,2)}")
            if c == 0:
                a(f"""
                v_mov_b32 v8, v{R+12}
                v_mov_b32 v9, v{R+12}
                v_readlane_b32 s{sT0}, v{R+13}, 32
                v_permlane32_swap_b32 v8, v9
                s_cmp_eq_u32 s{sT0}, 0
                s_cbranch_scc1 L_noredo
                s_cmp_eq_u32 s{sPASS}, 0
                s_cbranch_scc1 L_redo
                L_noredo:
                v_rcp_f32 v8, v9
                """)
        OP = 32
        for hf in range(2):
            for i in range(4 * hf, 4 * hf + 4):
                a(f"v_pk_mul_f32 {vr(R+2*i,2)}, {vr(R+2*i,2)}, {vr(8,2)} op_sel_hi:[1,0]")
            for i in range(4 * hf, 4 * hf + 4):
                a(f"v_cvt_pk_bf16_f32 v{OP+i}, v{R+2*i}, v{R+2*i+1}")
            if hf:
                a(f"""
                v_cndmask_b32 v{OP+6}, 0, v{OP+6}, s[{sLO}:{sLO+1}]
                v_cndmask_b32 v{OP+7}, 0, v{OP+7}, s[{sLO}:{sLO+1}]
                """)
            a(f"buffer_store_dwordx4 {vr(OP+4*hf,4)}, v1, {srd(SWS)}, s99 offen offset:{1024*hf} sc1")
        a(f"""
        s_or_b32 s{sT0}, s2, s{sW}
        s_cmp_lg_u32 s{sT0}, 0
        s_cbranch_scc1 L_noepoch
        s_mov_b64 exec, 1
        buffer_store_dword v30, v31, {srd(SWS)}, 0 offen sc1
        s_mov_b64 exec, -1
        L_noepoch:
        """)
        self.stamp("opub")

    def helper(self, nbar):
        a = self.a
        a(f"""
        L_helper:
        """)
        if self.CPF:
            a(f"""
            s_getpc_b64 s[{sA0}:{sA1}]
            L_pc:
            s_sub_u32 s{sA0}, s{sA0}, L_pc-{NAME}
            s_subb_u32 s{sA1}, s{sA1}, 0
            s_mul_i32 s{sT0}, s{sI}, {self.CPF*128}
            v_min_u32 v25, {self.CPF-1}, v0
            v_lshl_add_u32 v25, v25, 7, s{sT0}
            v_min_u32 v25, L_last-{NAME}, v25
            """.replace(f"s{sA0}", "s52").replace(f"s{sA1}", "s53").replace(f"s[{sA0}:{sA1}]", "s[52:53]"))
        a(f"""
        s_waitcnt lgkmcnt(0)
        s_add_u32 s84, s84, {self.WSB << 20}
        s_addc_u32 s85, s85, 0
        s_load_dword s{sNON}, s[84:85], 0
        """)
        self.srds()
        a(f"""
        v_lshlrev_b32 v1, 4, v0
        v_mov_b32 v4, -1
        v_mov_b32 v5, -1
        v_mov_b32 v6, -1
        v_mov_b32 v7, -1
        v_mov_b32 v31, 0
        v_lshrrev_b32 v22, 4, v0
        v_lshrrev_b32 v23, 2, v0
        v_sub_u32 v23, v23, v22
        v_and_b32 v23, 3, v23
        v_mul_u32_u24 v23, 56, v23
        v_mul_u32_u24 v22, 896, v22
        v_add_u32 v22, v22, v23
        v_and_b32 v23, 3, v0
        v_lshlrev_b32 v23, 4, v23
        v_min_u32 v23, 40, v23
        v_add_u32 v2, v22, v23
        v_lshlrev_b32 v3, 7, v0
        """)
        a(f"""
        v_mul_u32_u24 v22, 4682, v0
        v_lshrrev_b32 v22, 16, v22
        v_mul_u32_u24 v27, 14, v22
        v_sub_u32 v23, v0, v27
        v_mul_u32_u24 v27, 896, v22
        v_lshl_add_u32 v8, v23, 4, v27
        v_lshrrev_b32 v22, 2, v0
        v_min_u32 v22, 13, v22
        v_mul_u32_u24 v22, 3584, v22
        v_and_b32 v23, 3, v0
        v_lshl_add_u32 v22, v23, 7, v22
        s_mul_i32 s{sA0}, s{sXCD}, {7*32*896}
        s_mul_i32 s{sT1}, s{sI}, {49*128}
        s_add_u32 s{sA0}, s{sA0}, s{sT1}
        s_mul_i32 s{sA1}, s{sI}, {14*3584}
        s_mul_i32 s{sT1}, s{sXCD}, 448
        s_and_b32 s{sT1}, s{sT1}, -128
        s_add_u32 s{sA1}, s{sA1}, s{sT1}
        s_lshr_b32 s{sA2}, s{sI}, 2
        s_mul_i32 s{sA2}, s{sA2}, {self.WOROT}
        s_lshr_b32 s{sA2}, s{sA2}, 1
        s_mul_i32 s{sA4}, s{sC}, 224
        s_mul_i32 s{sA5}, s{sI}, {self.TSTAG}
        s_lshr_b32 s{sA5}, s{sA5}, 3
        s_add_u32 s{sA5}, s{sA5}, {self.TOFF}
        s_lshl_b32 s{sT0}, s{sB}, 6
        s_add_u32 s{sT0}, s{sT0}, s{sH}
        s_lshl_b32 s{sT0}, s{sT0}, 11
        s_add_u32 s64, s{sT0}, {WS_OF}
        s_add_u32 s65, s64, 32768
        s_add_u32 s66, s65, 32768
        s_add_u32 s67, s66, 32768
        s_lshl_b32 s{sT0}, s{sT}, 2
        s_add_u32 s{sT0}, s{sT0}, s{sC}
        s_lshl_b32 s{sT0}, s{sT0}, 9
        s_add_u32 s72, s{sT0}, {WS_STATS}
        s_lshl_b32 s{sT1}, s{sT}, 7
        s_add_u32 s73, s{sT1}, {WS_KEYS}
        s_cmp_eq_u32 s{sC}, 0
        s_cselect_b32 s73, s73, {OOB}
        s_mul_i32 s{sT0}, s{sF}, 14336
        s_add_u32 s74, s{sT0}, {WS_Y}
        s_add_u32 s75, s74, 4096
        s_add_u32 s76, s75, 4096
        s_add_u32 s77, s76, 4096
        s_lshl_b32 s{sT0}, s2, 2
        s_add_u32 s78, s{sT0}, {WS_CLF}
        """)
        for w in range(4):
            self.cand_base(68 + w, w)
        a(f"""
        s_waitcnt lgkmcnt(0)
        s_mul_i32 s{sNON}, s{sNON}, 0x19660d
        s_add_u32 s{sNON}, s{sNON}, 0x3c6ef35f
        v_mov_b32 v30, s{sNON}
        """)
        for nb in range(nbar):
            if self.CPF and nb == self.CPB:
                a("global_load_dword v26, v25, s[52:53]")
            a("s_barrier")
        st = lambda v, so, off=0: f"buffer_store_dwordx4 v[4:7], v{v}, {srd(SWS)}, s{so} offen offset:{off} sc1"
        cl = [[st(1, 64 + w, 1024 * k)] for w in range(4) for k in range(2)]
        cl += [["s_mov_b32 exec_hi, 0xffffff", st(8, 68 + w), "s_mov_b32 exec_hi, -1"] for w in range(4)]
        cl += [["s_mov_b32 exec_hi, 0", st(1, 72), "s_mov_b64 exec, 3", st(1, 73), "s_mov_b64 exec, -1"]]
        ycl = [st(1, 74 + k // 4, 1024 * (k % 4)) for k in range(14)]
        if self.NOCL:
            cl, ycl = [], []
        for n in range(28):
            a(f"""
            s_mul_i32 s{sWOS}, s{sA2}, {16*896}
            s_add_u32 s{sWOS}, s{sWOS}, s{sA4}
            s_lshl_b32 s{sWOM}, s{sA2}, 12
            """)
            for k in range(4):
                a(f"""
                s_add_u32 m0, s{sWOM}, {1024*k}
                s_add_u32 s{sT0}, s{sWOS}, {4*896*k}
                buffer_load_dwordx4 v2, {srd(SWO)}, s{sT0} offen lds
                """)
            if cl:
                a("\n".join(cl.pop(0)))
            if ycl:
                a(f"s_cmp_lt_i32 s{sF}, 0\ns_cbranch_scc1 L_h_y{n}\n{ycl.pop(0)}\nL_h_y{n}:")
            if self.TOUCH:
                a(f"""
                s_cmp_lg_u32 s{sA5}, {n}
                s_cbranch_scc1 L_h_t{n}
                buffer_load_dword v20, v3, {srd(SWD)}, s{sA0} offen
                buffer_load_dword v20, v22, {srd(SWG)}, s{sA1} offen
                buffer_load_dword v20, v22, {srd(SWU)}, s{sA1} offen
                L_h_t{n}:
                """)
            a(f"""
            s_waitcnt vmcnt({self.WOQ})
            s_add_u32 s{sA2}, s{sA2}, 1
            s_cmp_eq_u32 s{sA2}, 28
            s_cselect_b32 s{sA2}, 0, s{sA2}
            """)
            if n == 13 + -(-self.WOQ // 4):
                a(f"""
                s_mov_b64 exec, 1
                buffer_store_dword v30, v31, {srd(SWS)}, s78 offen sc1
                s_mov_b64 exec, -1
                """)
        a(f"""
        s_waitcnt vmcnt(0)
        s_cmp_lt_i32 s{sF}, 0
        s_cbranch_scc1 L_h_end
        v_lshrrev_b32 v22, 2, v0
        v_mul_u32_u24 v22, 3584, v22
        v_and_b32 v23, 3, v0
        v_lshl_add_u32 v22, v23, 4, v22
        v_lshlrev_b32 v23, 12, v23
        v_add_u32 v23, {L_CB+3072+32*16+4}, v23
        s_lshl_b32 s{sA0}, s{sF}, 6
        s_mul_i32 s{sA1}, s{sF}, {32*896}
        L_h_comb:
        s_barrier
        ds_read_b32 v24, v23
        s_waitcnt lgkmcnt(0)
        v_cmp_ne_u32 vcc, 0, v24
        s_cbranch_vccz L_h_go
        s_cmp_lg_u32 s{sPASS}, 0
        s_cbranch_scc1 L_h_go
        s_mov_b32 s{sPASS}, 1
        s_barrier
        s_barrier
        s_barrier
        s_barrier
        s_branch L_h_comb
        L_h_go:
        s_barrier
        s_barrier
        s_barrier
        """)
        for j in range(28):
            a(f"""
            s_mov_b32 m0, {L_WG+j*1024}
            s_add_u32 s{sT2}, s{sA0}, {j*16*3584}
            buffer_load_dwordx4 v22, {srd(SWG)}, s{sT2} offen lds
            s_mov_b32 m0, {L_WU+j*1024}
            buffer_load_dwordx4 v22, {srd(SWU)}, s{sT2} offen lds
            """)
        a("s_mov_b32 exec_hi, 0xffffff")
        for r in range(32):
            a(f"""
            s_mov_b32 m0, {L_WD+r*928}
            s_add_u32 s{sT2}, s{sA1}, {r*896}
            buffer_load_dwordx4 v1, {srd(SWD)}, s{sT2} offen lds
            """)
        a("s_waitcnt vmcnt(0)\nL_h_end:\nL_last:\ns_endpgm")

    WOROT = 7
    TSTAG = 7
    TOFF = 0
    CPF = 11
    CPB = 1
    KVC = -1
    KVCN = 16
    WSB = 0
    NOCL = 0
    NOWO = 0
    TOUCH = 1
    HD1 = 0
    HD2 = 0
    HD3 = 0
    WOQ = 8

    def redo(self):
        a = self.a
        Q, B, S = self.Q, self.KVB, self.SA
        for t in self.retry:
            a(f"L_kvr{t}:")
            self.spin_guard(f"L_kvd{t}")
            a("\n".join(self.kv_load(t, k) for k in range(5)))
            a(f"s_waitcnt vmcnt(0)\ns_branch L_kvc{t}")
        a("L_kvpr:")
        self.spin_guard("L_kvok")
        a(f"""
        buffer_load_dword v3, v2, {srd(SWS)}, s{sKVF} offen sc1
        s_waitcnt vmcnt(0)
        s_branch L_kvpoll
        """)
        MX = 8
        a(f"""
        L_redo:
        s_mov_b32 s{sPASS}, 1
        s_waitcnt vmcnt(0) lgkmcnt(0)
        s_barrier
        s_mov_b32 s{sA5}, 16
        s_lshl_b32 s{sT2}, s{sH}, 6
        s_add_u32 s{sT2}, s{sT2}, s{sW}
        s_mul_i32 s{sT2}, s{sT2}, {KVS}
        s_add_u32 s{sT2}, s{sT2}, {WS_KV}
        """)
        for p in range(4):
            a(f"v_mov_b32 v{MX+p}, 0xff800000")
        a(f"""
        L_redo_loop:
        buffer_load_dwordx4 {vr(B[1],4)}, v1, {srd(SWS)}, s{sT2} offen sc1
        buffer_load_dwordx4 {vr(B[1]+4,4)}, v1, {srd(SWS)}, s{sT2} offen offset:1024 sc1
        s_add_u32 s{sT2}, s{sT2}, {4*KVS}
        s_waitcnt vmcnt(0)
        """)
        for p in range(4):
            a(M32(S, B[1], Q + 8 * p))
            a(M32(S, B[1] + 4, Q + 8 * p + 4, S))
            self.rowmax16(S, 22)
            a(f"v_max_f32 v{MX+p}, v{MX+p}, v22")
        a(f"""
        s_sub_u32 s{sA5}, s{sA5}, 1
        s_cmp_lg_u32 s{sA5}, 0
        s_cbranch_scc1 L_redo_loop
        """)
        for p in range(4):
            a(f"""
            s_add_u32 s{sT0}, s{sW}, {p+1}
            s_and_b32 s{sT0}, s{sT0}, 3
            s_lshl_b32 s{sT0}, s{sT0}, 10
            s_add_u32 s{sT0}, s{sT0}, {L_CB}
            v_lshl_add_u32 v{12+p}, v0, 2, s{sT0}
            s_lshl_b32 s{sT1}, s{sW}, 8
            v_add_u32 v16, s{sT1}, v{12+p}
            ds_write_b32 v16, v{MX+p}
            """)
        a("s_waitcnt lgkmcnt(0)\ns_barrier")
        for p in range(4):
            for k in range(4):
                a(f"ds_read_b32 v{16+k}, v{12+p} offset:{k*256}")
            q6, q7 = Q + 8 * p + 6, Q + 8 * p + 7
            a(f"""
            s_waitcnt lgkmcnt(0)
            v_max3_f32 v16, v16, v17, v18
            v_max_f32 v16, v16, v19
            v_lshlrev_b32 v17, 16, v{q6}
            v_and_b32 v18, 0xffff0000, v{q6}
            v_lshlrev_b32 v19, 16, v{q7}
            v_add_f32 v18, v18, v19
            v_add_f32 v17, v17, v18
            v_sub_f32 v22, v16, v17
            """)
            self.shift_split(22, 23, 24, 25)
            a(f"""
            v_cndmask_b32 v{q6}, v23, v{q6}, s[{sLO}:{sLO+1}]
            v_cndmask_b32 v{q7}, v24, v{q7}, s[{sLO}:{sLO+1}]
            """)
        for part in range(4):
            a(self.kv_load(0, part))
        if self.EARLY:
            a("\n".join(self.kv_load(1, k) for k in range(5)))
        a(f"""
        s_waitcnt vmcnt(0)
        s_barrier
        s_branch L_att
        """)

    def finish(self):
        a = self.a
        a("L_fin:")
        if self.amp:
            a(f"""
            s_cmp_lg_u32 s2, {self.ampg}
            s_cbranch_scc1 L_end
            s_cmp_lg_u32 s{sW}, 0
            s_cbranch_scc1 L_end
            s_sub_u32 s84, s84, s100
            s_min_u32 s84, s84, 20000
            s_lshl_b32 s84, s84, 3
            s_memrealtime s[100:101]
            s_waitcnt lgkmcnt(0)
            L_amp:
            s_memrealtime s[82:83]
            s_waitcnt lgkmcnt(0)
            s_sub_u32 s82, s82, s100
            s_cmp_lt_u32 s82, s84
            s_cbranch_scc1 L_amp
            """)
        if self.ts:
            a(f"""
            s_lshl_b32 s{sT0}, s2, 2
            s_add_u32 s{sT0}, s{sT0}, s{sW}
            s_lshl_b32 s{sT0}, s{sT0}, 8
            s_add_u32 s{sT0}, s{sT0}, {WS_TS}
            s_mov_b64 exec, -1
            v_lshlrev_b32 v2, 2, v0
            buffer_store_dword {self.TSV}, v2, {srd(SWS)}, s{sT0} offen
            """)
        a("L_end:\ns_endpgm")

    def tail(self):
        pass

    def build(self):
        self.prologue()
        self.p1()
        nbar = sum(1 for k, x in self.a.items if k == "i" and x.op == "s_barrier")
        self.attention()
        self.combine()
        self.tail()
        self.finish()
        self.redo()
        self.helper(nbar + 1)
        npad = self.a.pad()
        body = self.a.text()
        hdr = open(os.path.join(os.path.dirname(os.path.abspath(__file__)), "header.txt")).read()
        out = hdr + f"""; @launch grid=(256,1,1) block=(320,1,1) lds={LDS_BYTES}
.amdgcn_target "amdgcn-amd-amdhsa--gfx950"
.text
.globl {NAME}
.p2align 8
.type {NAME},@function
{NAME}:
{body}
.section .rodata,"a"
.p2align 6
.amdhsa_kernel {NAME}
  .amdhsa_next_free_vgpr 256
  .amdhsa_next_free_sgpr 102
  .amdhsa_accum_offset 256
  .amdhsa_group_segment_fixed_size 0
  .amdhsa_kernarg_size 88
  .amdhsa_user_sgpr_count 2
  .amdhsa_user_sgpr_kernarg_segment_ptr 1
  .amdhsa_system_sgpr_workgroup_id_x 1
  .amdhsa_float_denorm_mode_32 3
.end_amdhsa_kernel
"""
        return out, npad


class Full(Gen):

    def piece_idx(self, i, tok, ch):
        self.a(f"""
        v_add_u32 v{ch}, {64*i}, v0
        v_mul_u32_u24 v{tok}, 4682, v{ch}
        v_lshrrev_b32 v{tok}, 16, v{tok}
        v_mul_u32_u24 v27, 14, v{tok}
        v_sub_u32 v{ch}, v{ch}, v27
        s_lshl_b32 s{sT0}, s{sW}, 3
        v_add_u32 v{tok}, s{sT0}, v{tok}
        """)

    def sentinel_any(self, regs, t):
        a = self.a
        regs = list(regs)
        a(f"v_max3_u32 v{t}, v{regs[0]}, v{regs[1]}, v{regs[2] if len(regs) > 2 else regs[1]}")
        for k in range(3, len(regs), 2):
            a(f"v_max3_u32 v{t}, v{t}, v{regs[k]}, v{regs[min(k+1, len(regs)-1)]}")
        a(f"v_cmp_eq_u32 vcc, -1, v{t}")

    def unpack(self, d, s):
        self.a(f"v_lshlrev_b32 v{d}, 16, v{s}\nv_and_b32 v{d+1}, 0xffff0000, v{s}")

    def tr_write(self, src, arr):
        a = self.a
        for g in range(3):
            a(f"ds_write_b64 v14, {vr(src+2*g,2)} offset:{arr*7680+16*g}")
        a(f"""
        s_mov_b32 exec_hi, 0
        ds_write_b64 v14, {vr(src+6,2)} offset:{arr*7680+48}
        s_mov_b32 exec_hi, -1
        """)

    def cand_write(self, src, off):
        a = self.a
        a(f"s_mov_b64 exec, s[{sM}:{sM+1}]")
        for g in range(3):
            a(f"ds_write_b64 v13, {vr(src+2*g,2)} offset:{off+16*g}")
        a(f"""
        s_mov_b32 exec_hi, 0
        ds_write_b64 v13, {vr(src+6,2)} offset:{off+48}
        s_mov_b64 exec, -1
        """)

    def p3(self):
        a = self.a
        XR2, W2, S4 = self.XR2, self.W2, self.S4
        XC, ACC, OFR, WR = 64, 48, 128, 80
        a(f"""
        v_lshrrev_b32 v23, 5, v0
        v_lshrrev_b32 v25, 2, v0
        v_and_b32 v25, 3, v25
        v_add_u32 v24, s{sW}, v25
        v_and_b32 v24, 3, v24
        v_lshl_add_u32 v25, v23, 2, v25
        v_lshlrev_b32 v25, 8, v25
        v_lshl_add_u32 v25, v24, 6, v25
        v_lshrrev_b32 v26, 4, v0
        v_and_b32 v26, 1, v26
        v_lshl_add_u32 v25, v26, 5, v25
        v_lshrrev_b32 v27, 1, v0
        v_and_b32 v27, v27, v26
        v_and_b32 v26, 3, v0
        v_xor_b32 v26, v26, v27
        v_lshl_add_u32 v25, v26, 3, v25
        v_lshlrev_b32 v23, 11, v23
        """)
        for qr in range(4):
            a(f"""
            s_add_u32 s{sT0}, s{sW}, {qr}
            s_and_b32 s{sT0}, s{sT0}, 3
            s_lshl_b32 s{sT1}, s{sT0}, 13
            s_add_u32 s{sT1}, s{sT1}, {L_CB}
            s_mul_i32 s{sT0}, s{sT0}, 28672
            v_add_u32 v{2+qr}, s{sT1}, v1
            v_add_u32 v{6+qr}, s{sT0}, v25
            v_sub_u32 v{10+qr}, v{6+qr}, v23
            """)
        for k in range(8):
            self.unpack(XC + 2 * k, XR2 + k)
        a(f"""
        v_cndmask_b32 v{W2+6}, 0, v{W2+6}, s[{sLO}:{sLO+1}]
        v_cndmask_b32 v{W2+7}, 0, v{W2+7}, s[{sLO}:{sLO+1}]
        v_mov_b32 v{S4}, 0
        """)
        for k in range(8):
            a(f"v_dot2c_f32_bf16 v{S4}, s{sONE}, v{W2+k}")
        a(f"""
        s_lshl_b32 s{sA0}, s{sT}, 2
        s_add_u32 s{sA0}, s{sA0}, s{sW}
        s_lshl_b32 s{sA0}, s{sA0}, 13
        s_add_u32 s{sA0}, s{sA0}, {WS_OF}
        s_add_u32 s{sA1}, s{sA0}, 4096
        s_lshl_b32 s{sA2}, s{sW}, 13
        s_add_u32 s{sA2}, s{sA2}, {L_CB}
        s_add_u32 s{sA3}, s{sA2}, 4096
        s_waitcnt vmcnt(0)
        s_barrier
        """)
        self.stamp("oack")
        a("L_odma:")
        for hf in range(2):
            a(f"s_mov_b32 m0, s{sA2+hf}")
            for k in range(4):
                a(f"buffer_load_dwordx4 v1, {srd(SWS)}, s{sA0+hf} offen offset:{1024*k} sc1 lds")
        lq = LQ(a)

        def oread(n):
            lq.op(f"ds_read_b128 {vr(OFR+4*n,4)}, v{2+n//8} offset:{(n%8)*1024}", ("o", n))

        def wread(n):
            qr, hl, j = n // 8, (n % 8) // 2, n % 2
            lq.op(f"ds_read_b64_tr_b16 {vr(WR+4*(n%4),2)}, v{6+qr} offset:{hl*7168+j*4096}", ("w", n))
            lq.op(f"ds_read_b64_tr_b16 {vr(WR+4*(n%4)+2,2)}, v{(10 if j else 6)+qr} offset:{hl*7168+j*4096+2048}", ("w", n))

        for n in range(3):
            wread(n)
        a("s_waitcnt vmcnt(0)")
        self.stamp("odma")
        for n in range(8):
            oread(n)
        onext = 8
        for n in range(32):
            lq.wait(("o", n) if lq.q.index(("o", n)) > max(i for i, t in enumerate(lq.q) if t == ("w", n)) else ("w", n))
            a(M32(ACC, WR + 4 * (n % 4), OFR + 4 * n, ACC if n else XC))
            if n + 3 < 32:
                wread(n + 3)
            if n < 4:
                if n == 0:
                    lq.wait(("o", 1))
                    a(f"v_max3_u32 v22, v{OFR}, v{OFR+1}, v{OFR+2}")
                    a(f"v_max3_u32 v23, v{OFR+3}, v{OFR+4}, v{OFR+5}")
                    a(f"v_max3_u32 v22, v22, v{OFR+6}, v{OFR+7}")
                else:
                    lq.wait(("o", 2 * n + 1))
                    for k in range(4):
                        r = OFR + 8 * n + 2 * k
                        a(f"v_max3_u32 v{22+k%2}, v{22+k%2}, v{r}, v{r+1}")
            if n == 3:
                a(f"""
                v_max_u32 v22, v22, v23
                v_cmp_eq_u32 vcc, -1, v22
                s_cbranch_vccz L_ook
                """)
                self.spin_guard("L_ook")
                a(f"""
                s_waitcnt lgkmcnt(0)
                s_branch L_odma
                L_ook:
                s_barrier
                """)
            if n >= 4:
                for _ in range(2):
                    if onext < 32 and onext <= n + 8:
                        oread(onext)
                        onext += 1
        self.stamp("gemm")
        H2 = 32
        a(f"""
        v_and_b32 v22, 31, v0
        v_lshrrev_b32 v23, 5, v0
        v_lshlrev_b32 v23, 3, v23
        v_lshl_add_u32 v17, v22, 4, v23
        s_lshl_b32 s{sT0}, s{sW}, 9
        s_add_u32 s{sT0}, s{sT0}, {L_ST}
        v_add_u32 v18, s{sT0}, v17
        v_add_u32 v19, {L_ST}, v17
        v_mul_u32_u24 v22, 240, v22
        s_mul_i32 s{sT0}, s{sW}, 56
        s_add_u32 s{sT0}, s{sT0}, {L_TR}
        v_add3_u32 v14, v22, v23, s{sT0}
        v_mov_b32 v40, 0
        v_mov_b32 v41, 0
        v_mov_b32 v42, 0
        """)
        for k in range(8):
            a(f"v_cvt_pk_bf16_f32 v{H2+k}, v{ACC+2*k}, v{ACC+2*k+1}")
        a(f"""
        v_cndmask_b32 v{H2+6}, 0, v{H2+6}, s[{sLO}:{sLO+1}]
        v_cndmask_b32 v{H2+7}, 0, v{H2+7}, s[{sLO}:{sLO+1}]
        """)
        for k in range(8):
            a(f"v_dot2c_f32_bf16 v40, s{sONE}, v{H2+k}")
            a(f"v_dot2c_f32_bf16 v42, v{H2+k}, v{H2+k}")
            a(f"v_dot2c_f32_bf16 v41, v{W2+k}, v{H2+k}")
        a(f"""
        v_permlane32_swap_b32 v40, v42
        v_permlane32_swap_b32 v41, v{S4}
        v_add_f32 v40, v40, v42
        v_add_f32 v41, v41, v{S4}
        ds_write_b64 v18, v[40:41]
        s_lshl_b32 s{sA0}, s{sT}, 11
        s_add_u32 s{sA0}, s{sA0}, {WS_STATS}
        s_lshl_b32 s{sT0}, s{sC}, 9
        s_add_u32 s{sA1}, s{sA0}, s{sT0}
        s_lshl_b32 s{sT0}, s{sW}, 3
        s_lshl_b32 s{sT0}, 0xff, s{sT0}
        s_waitcnt lgkmcnt(0)
        s_barrier
        ds_read_b64 v[40:41], v19
        ds_read_b64 v[42:43], v19 offset:512
        ds_read_b64 v[44:45], v19 offset:1024
        ds_read_b64 v[46:47], v19 offset:1536
        s_waitcnt lgkmcnt(2)
        v_pk_add_f32 v[40:41], v[40:41], v[42:43]
        s_waitcnt lgkmcnt(0)
        v_pk_add_f32 v[44:45], v[44:45], v[46:47]
        v_pk_add_f32 v[40:41], v[40:41], v[44:45]
        v_mov_b32 v42, v40
        v_mov_b32 v43, v41
        v_permlane32_swap_b32 v40, v42
        v_permlane32_swap_b32 v41, v43
        s_mov_b32 exec_lo, s{sT0}
        s_mov_b32 exec_hi, 0
        buffer_store_dwordx4 v[40:43], v17, {srd(SWS)}, s{sA1} offen sc1
        s_mov_b64 exec, -1
        v_and_b32 v22, 31, v0
        v_lshrrev_b32 v23, 5, v0
        v_lshlrev_b32 v23, 10, v23
        v_lshl_add_u32 v17, v22, 4, v23
        """)
        for i in range(2):
            self.piece_idx(i, 22, 23)
            a(f"""
            v_mov_b32 v{20+i}, v22
            v_mul_u32_u24 v27, 896, v22
            v_lshl_add_u32 v{self.VTG+i}, v23, 4, v27
            v_mul_u32_u24 v22, 240, v22
            v_lshl_add_u32 v22, v23, 4, v22
            v_add_u32 v{15+i}, {L_TR}, v22
            """)
        a(f"""
        v_mul_u32_u24 v22, 4682, v0
        v_lshrrev_b32 v22, 16, v22
        v_mul_u32_u24 v27, 14, v22
        v_sub_u32 v23, v0, v27
        v_mul_u32_u24 v27, 896, v22
        v_lshl_add_u32 v19, v23, 4, v27
        v_mul_u32_u24 v22, 240, v22
        v_lshl_add_u32 v22, v23, 4, v22
        s_mul_i32 s{sT0}, s{sW}, 960
        s_add_u32 s{sT0}, s{sT0}, {L_TR+7680}
        v_add_u32 v18, s{sT0}, v22
        """)
        self.cand_base(sA5, sW)
        HF = 64
        for k in range(8):
            self.unpack(HF + 2 * k, H2 + k)
        a("s_waitcnt vmcnt(0)")
        self.stamp("hack")
        a("L_stpoll:")
        for c in range(2):
            a(f"buffer_load_dwordx4 {vr(40+4*c,4)}, v17, {srd(SWS)}, s{sA0} offen offset:{512*c} sc1")
        a("s_waitcnt vmcnt(0)")
        self.sentinel_any(range(40, 48), 22)
        a("s_cbranch_vccz L_stok")
        self.spin_guard("L_stok")
        a("s_branch L_stpoll\nL_stok:")
        self.stamp("stok")
        a(f"""
        v_pk_add_f32 v[40:41], v[40:41], v[44:45]
        v_pk_add_f32 v[42:43], v[42:43], v[46:47]
        v_permlane32_swap_b32 v40, v42
        v_permlane32_swap_b32 v41, v43
        v_pk_add_f32 v[40:41], v[40:41], v[42:43]
        v_mov_b32 v42, v40
        v_mov_b32 v43, v41
        v_permlane32_swap_b32 v40, v42
        v_permlane32_swap_b32 v41, v43
        """)
        self.ln_scalars(40, 42, 44, 46, 22, 23)
        KEY = 47
        a(f"""
        v_fma_f32 v41, -v44, v43, v41
        v_mul_f32 v41, v41, v46
        v_cvt_pk_bf16_f32 v41, v41, v41
        v_ashrrev_i32 v22, 31, v41
        v_or_b32 v22, 0x80000000, v22
        v_xor_b32 v41, v41, v22
        v_and_b32 v41, 0xffff0000, v41
        v_lshrrev_b32 v41, 1, v41
        v_and_b32 v22, 31, v0
        s_lshl_b32 s{sT0}, s{sT}, 5
        s_sub_u32 s{sT0}, 2047, s{sT0}
        v_sub_u32 v22, s{sT0}, v22
        v_or_b32 v{KEY}, v41, v22
        v_mov_b32 v48, v{KEY}
        v_mov_b32 v49, v{KEY}
        v_permlane16_swap_b32 v48, v49
        v_cndmask_b32 v48, v49, v48, s[{sLO}:{sLO+1}]
        v_sub_u32 v80, v48, v{KEY}
        """)
        for n in range(1, 16):
            a(f"v_sub_u32_dpp v{80+n}, v48, v{KEY} row_ror:{n} row_mask:0xf bank_mask:0xf bound_ctrl:0".replace(" bound_ctrl:0", " bound_ctrl:1"))
        a("v_lshrrev_b32 v48, 31, v80\nv_lshrrev_b32 v49, 31, v81")
        for n in range(2, 16):
            a(f"v_alignbit_b32 v{48+n%2}, v{48+n%2}, v{80+n}, 31")
        a(f"""
        v_bcnt_u32_b32 v48, v48, 0
        v_bcnt_u32_b32 v48, v49, v48
        v_mov_b32 v49, v48
        v_permlane32_swap_b32 v48, v49
        v_add_u32 v48, v48, v49
        v_sub_u32 v48, 31, v48
        v_cmp_gt_u32 s[{sM}:{sM+1}], 8, v48
        v_lshlrev_b32 v49, 2, v48
        s_or_b32 s{sT0}, s{sW}, s{sC}
        s_cmp_lg_u32 s{sT0}, 0
        s_cbranch_scc1 L_norank
        ds_permute_b32 v49, v49, v{KEY}
        s_lshl_b32 s{sT0}, s{sT}, 7
        s_add_u32 s{sT0}, s{sT0}, {WS_KEYS}
        v_lshlrev_b32 v22, 2, v0
        s_mov_b64 exec, 0xff
        s_waitcnt lgkmcnt(0)
        buffer_store_dword v49, v22, {srd(SWS)}, s{sT0} offen sc1
        s_mov_b64 exec, -1
        L_norank:
        v_and_b32 v22, 31, v0
        v_sub_u32 v22, v48, v22
        v_mul_i32_i24 v22, 240, v22
        v_add_u32 v13, v14, v22
        """)
        self.cand_write(H2, 7680 + 1920)
        for k in range(8):
            self.unpack(HF + 2 * k, H2 + k) if False else None
        D, HN2, OUT2 = 80, 48, 56
        for k in range(8):
            a(f"v_pk_add_f32 {vr(D+2*k,2)}, {vr(HF+2*k,2)}, v[44:45] op_sel_hi:[1,0] neg_lo:[0,1] neg_hi:[0,1]")
        for k in range(8):
            a(f"v_cvt_pk_bf16_f32 v{HN2+k}, v{D+2*k}, v{D+2*k+1}")
        for k in range(8):
            self.unpack(D + 2 * k, HN2 + k)
        for k in range(8):
            a(f"v_pk_mul_f32 {vr(D+2*k,2)}, {vr(D+2*k,2)}, v[46:47] op_sel_hi:[1,0]")
        for k in range(8):
            a(f"v_cvt_pk_bf16_f32 v{HN2+k}, v{D+2*k}, v{D+2*k+1}")
        self.cand_write(HN2, 7680)
        a(f"""
        s_waitcnt lgkmcnt(0)
        s_barrier
        ds_read_b128 v[40:43], v18
        """)
        for k in range(8):
            self.unpack(D + 2 * k, HN2 + k)
        a(f"""
        s_mov_b32 exec_hi, 0xffffff
        s_waitcnt lgkmcnt(0)
        buffer_store_dwordx4 v[40:43], v19, {srd(SWS)}, s{sA5} offen sc1
        s_mov_b32 exec_hi, -1
        """)
        for k in range(8):
            a(f"v_pk_add_f32 {vr(D+2*k,2)}, {vr(D+2*k,2)}, {vr(HF+2*k,2)}")
        for k in range(8):
            a(f"v_cvt_pk_bf16_f32 v{OUT2+k}, v{D+2*k}, v{D+2*k+1}")
        self.tr_write(OUT2, 0)
        self.KEY = KEY

    def ffn_weights(self):
        a = self.a
        a(f"""
        s_cmp_lt_i32 s{sF}, 0
        s_cbranch_scc1 L_noffw
        v_lshrrev_b32 v22, 2, v0
        v_mul_u32_u24 v22, 3584, v22
        v_and_b32 v23, 3, v0
        v_lshl_add_u32 v22, v23, 4, v22
        s_mul_i32 s{sT0}, s{sW}, {7*16*3584}
        s_lshl_b32 s{sT1}, s{sF}, 6
        s_add_u32 s{sT0}, s{sT0}, s{sT1}
        s_mul_i32 s{sT1}, s{sW}, 7168
        """)
        for j in range(7):
            a(f"""
            s_add_u32 m0, s{sT1}, {L_WG+j*1024}
            s_add_u32 s{sT2}, s{sT0}, {j*16*3584}
            buffer_load_dwordx4 v22, {srd(SWG)}, s{sT2} offen lds
            s_add_u32 m0, s{sT1}, {L_WU+j*1024}
            buffer_load_dwordx4 v22, {srd(SWU)}, s{sT2} offen lds
            """)
        a(f"""
        s_lshl_b32 s{sT0}, s{sF}, 2
        s_add_u32 s{sT0}, s{sT0}, s{sW}
        s_mul_i32 s{sT0}, s{sT0}, {8*896}
        s_mul_i32 s{sT1}, s{sW}, {8*928}
        s_mov_b32 exec_hi, 0xffffff
        """)
        for r in range(8):
            a(f"""
            s_add_u32 m0, s{sT1}, {L_WD+r*928}
            s_add_u32 s{sT2}, s{sT0}, {r*896}
            buffer_load_dwordx4 v1, {srd(SWD)}, s{sT2} offen lds
            """)
        a("s_mov_b32 exec_hi, -1\nL_noffw:")

    def bisect(self, levels, tag):
        a = self.a
        L = 32
        lo, hi, mid = sA0, sA1, sTH
        a(f"""
        s_mov_b32 s{lo}, 0
        s_mov_b32 s{hi}, 0x80000000
        L_bis{tag}:
        s_add_u32 s{mid}, s{lo}, s{hi}
        s_lshr_b32 s{mid}, s{mid}, 1
        """)
        for j in range(levels):
            a(f"v_cmp_le_u32 s[{64+2*j}:{65+2*j}], s{mid}, v{L+j}")
        a(f"s_bcnt1_i32_b64 s{sA2}, s[64:65]")
        for j in range(1, levels):
            a(f"s_bcnt1_i32_b64 s{sA3}, s[{64+2*j}:{65+2*j}]\ns_add_u32 s{sA2}, s{sA2}, s{sA3}")
        a(f"""
        s_cmp_eq_u32 s{sA2}, 8
        s_cbranch_scc1 L_bisdone{tag}
        s_cmp_eq_u32 s{mid}, s{lo}
        s_cbranch_scc1 L_bisdone{tag}
        s_cmp_gt_u32 s{sA2}, 8
        s_cselect_b32 s{lo}, s{mid}, s{lo}
        s_cselect_b32 s{hi}, s{hi}, s{mid}
        s_branch L_bis{tag}
        L_bisdone{tag}:
        """)

    def extract(self, levels):
        a = self.a
        a(f"s_mov_b32 s{sA2}, 0")
        for j in range(levels):
            m = 64 + 2 * j
            a(f"""
            v_mbcnt_lo_u32_b32 v22, s{m}, 0
            v_mbcnt_hi_u32_b32 v22, s{m+1}, v22
            v_add_u32 v22, s{sA2}, v22
            v_min_u32 v22, 7, v22
            v_lshl_add_u32 v22, v22, 3, s{sA4}
            v_add_u32 v23, {j}, v3
            s_mov_b64 exec, s[{m}:{m+1}]
            ds_write2_b32 v22, v{32+j}, v23 offset1:1
            s_mov_b64 exec, -1
            """)
            if j + 1 < levels:
                a(f"s_bcnt1_i32_b64 s{sA3}, s[{m}:{m+1}]\ns_add_u32 s{sA2}, s{sA2}, s{sA3}")

    AF, BF, WD = 128, 192, 64

    def ffn_pre(self):
        a = self.a
        a(f"""
        v_lshrrev_b32 v8, 4, v0
        v_lshrrev_b32 v9, 2, v0
        v_and_b32 v9, 3, v9
        v_and_b32 v10, 3, v0
        v_lshlrev_b32 v10, 3, v10
        v_lshl_add_u32 v11, v8, 3, v9
        v_lshl_add_u32 v11, v11, 6, v10
        s_lshr_b32 s{sT0}, s{sW}, 1
        s_mul_i32 s{sT0}, s{sT0}, 28672
        s_and_b32 s{sT1}, s{sW}, 1
        s_lshl_b32 s{sT1}, s{sT1}, 5
        s_add_u32 s{sT0}, s{sT0}, s{sT1}
        v_add_u32 v11, s{sT0}, v11
        v_lshl_add_u32 v12, v8, 2, v9
        v_mul_u32_u24 v12, 928, v12
        s_mul_i32 s{sT0}, s{sW}, 224
        s_add_u32 s{sT0}, s{sT0}, {L_WD}
        v_add3_u32 v12, v12, v10, s{sT0}
        """)
        for s_ in range(14):
            a(f"ds_read_b64_tr_b16 {vr(self.AF+4*s_,2)}, v11 offset:{s_*2048}")
            a(f"ds_read_b64_tr_b16 {vr(self.AF+4*s_+2,2)}, v11 offset:{s_*2048+256}")
        a(f"""
        s_lshl_b32 s{sT0}, s{sW}, 4
        s_add_u32 s{sT0}, s{sT0}, s{sA4}
        v_mov_b32 v11, s{sT0}
        v_min_u32 v10, 55, v0
        v_lshlrev_b32 v10, 4, v10
        s_mul_i32 s{sT0}, s{sW}, 2112
        s_add_u32 s{sT0}, s{sT0}, {L_G}
        v_add_u32 v6, s{sT0}, v10
        """)

    def ffn_pre2(self):
        a = self.a
        for i in range(7):
            a(f"ds_read_b64_tr_b16 {vr(self.WD+4*i,2)}, v12 offset:{i*32}")
            a(f"ds_read_b64_tr_b16 {vr(self.WD+4*i+2,2)}, v12 offset:{i*32+16*928}")
        a(f"""
        v_lshrrev_b32 v8, 4, v0
        v_and_b32 v9, 7, v0
        v_mul_u32_u24 v13, 1056, v9
        v_lshl_add_u32 v13, v8, 4, v13
        v_add_u32 v13, {L_G}, v13
        v_lshlrev_b32 v9, 4, v9
        v_lshl_add_u32 v9, v8, 7, v9
        v_lshlrev_b32 v8, 3, v0
        v_add_u32 v8, {L_AX}, v8
        s_lshl_b32 s{sT0}, s{sW}, 9
        v_add_u32 v7, s{sT0}, v8
        s_mul_i32 s{sT0}, s{sF}, 14336
        s_mul_i32 s{sT1}, s{sW}, 3584
        s_add_u32 s{sT0}, s{sT0}, s{sT1}
        s_add_u32 s99, s{sT0}, {WS_Y}
        """)

    def topk(self):
        a = self.a
        ld = f"""
        buffer_load_dwordx4 v[32:35], v2, {srd(SWS)}, s{sA1} offen sc1
        buffer_load_dwordx4 v[36:39], v2, {srd(SWS)}, s{sA1} offen offset:16 sc1
        """
        a(f"""
        v_lshlrev_b32 v2, 7, v0
        s_mov_b32 s{sA1}, {WS_KEYS}
        s_lshl_b32 s{sA4}, s{sW}, 6
        s_add_u32 s{sA4}, s{sA4}, {L_SEL}
        v_lshlrev_b32 v3, 3, v0
        s_waitcnt lgkmcnt(0)
        s_barrier
        s_cmp_lt_i32 s{sF}, 0
        s_cbranch_scc1 L_kwait
        """)
        if self.FPRE:
            self.ffn_pre()
            a(ld)
        else:
            a(ld)
            self.ffn_pre()
        a(f"""
        s_branch L_kchk
        L_kwait:
        s_waitcnt vmcnt(0)
        s_cmp_lt_i32 s{sU}, 0
        s_cbranch_scc1 L_klate
        s_cmp_eq_u32 s{sW}, 0
        s_cbranch_scc0 L_klate
        {f"s_sleep {self.KS1}" if self.KS1 else ""}
        s_branch L_kpoll
        L_klate:
        {f"s_sleep {self.KS2}" if self.KS2 else ""}
        L_kpoll:
        {ld}
        L_kchk:
        s_waitcnt vmcnt(0)
        """)
        self.sentinel_any(range(32, 40), 22)
        a("s_cbranch_vccz L_kok")
        self.spin_guard("L_kok")
        a("s_branch L_kpoll\nL_kok:")
        self.stamp("kok")
        lo, hi, mid = sA0, sA1, sTH
        a(f"""
        v_max_u32_dpp v22, v32, v32 row_ror:1 row_mask:0xf bank_mask:0xf bound_ctrl:1
        v_max_u32_dpp v22, v22, v22 row_ror:2 row_mask:0xf bank_mask:0xf bound_ctrl:1
        v_max_u32_dpp v22, v22, v22 row_ror:4 row_mask:0xf bank_mask:0xf bound_ctrl:1
        v_max_u32_dpp v23, v22, v22 row_ror:8 row_mask:0xf bank_mask:0xf bound_ctrl:1
        v_min_u32_dpp v22, v22, v22 row_ror:8 row_mask:0xf bank_mask:0xf bound_ctrl:1
        v_readlane_b32 s64, v23, 0
        v_readlane_b32 s65, v23, 16
        v_readlane_b32 s66, v23, 32
        v_readlane_b32 s67, v23, 48
        v_readlane_b32 s68, v22, 0
        v_readlane_b32 s69, v22, 16
        v_readlane_b32 s70, v22, 32
        v_readlane_b32 s71, v22, 48
        s_max_u32 s64, s64, s65
        s_max_u32 s66, s66, s67
        s_min_u32 s68, s68, s69
        s_min_u32 s70, s70, s71
        s_max_u32 s{hi}, s64, s66
        s_min_u32 s{lo}, s68, s70
        s_min_u32 s{hi}, s{hi}, 0x7fffffff
        s_min_u32 s{lo}, s{lo}, s{hi}
        s_sub_u32 s{lo}, s{lo}, 1
        s_max_i32 s{lo}, s{lo}, 0
        L_bisa:
        """)
        for k in range(self.BIS):
            a(f"""
            s_add_u32 s{mid}, s{lo}, s{hi}
            s_lshr_b32 s{mid}, s{mid}, 1
            v_cmp_lt_u32 s[64:65], s{mid}, v32
            v_cmp_lt_u32 s[66:67], s{mid}, v33
            s_bcnt1_i32_b64 s{sA2}, s[64:65]
            s_bcnt1_i32_b64 s{sA3}, s[66:67]
            s_add_u32 s{sA2}, s{sA2}, s{sA3}
            s_cmp_eq_u32 s{sA2}, 8
            s_cbranch_scc1 L_bisdonea
            s_cmp_gt_u32 s{sA2}, 8
            s_cselect_b32 s{lo}, s{mid}, s{lo}
            s_cselect_b32 s{hi}, s{hi}, s{mid}
            """)
        a(f"""
        s_sub_u32 s{sA2}, s{hi}, s{lo}
        s_cmp_gt_u32 s{sA2}, 1
        s_cbranch_scc1 L_bisa
        s_branch L_topslow
        L_bisdonea:
        v_cmp_lt_u32 vcc, s{mid}, v34
        s_add_u32 s{mid}, s{mid}, 1
        s_cbranch_vccnz L_topslow
        """)
        self.extract(2)
        a(f"L_topdone:\nv_cmp_le_u32 s[80:81], s{sTH}, v{self.KEY}\ns_waitcnt lgkmcnt(0)")
        self.stamp("topk")

    BIS = 6
    OUTP = ''
    KS1 = 12
    KS2 = 40
    YL = 1
    FPRE = 0

    def topk_slow(self):
        self.a("L_topslow:")
        self.bisect(8, "b")
        self.extract(8)
        self.a("s_branch L_topdone")

    def key_token(self, d, k):
        self.a(f"v_and_b32 v{d}, 0x7ff, v{k}\nv_sub_u32 v{d}, 2047, v{d}")

    def ffn(self):
        a = self.a
        a(f"""
        s_cmp_lt_i32 s{sF}, 0
        s_cbranch_scc1 L_noffn
        ds_read2_b32 v[4:5], v11 offset0:1 offset1:3
        s_mov_b32 s{sA0}, {WS_HN}
        s_movk_i32 s{sA1}, 896
        s_waitcnt lgkmcnt(0)
        v_and_b32 v4, 511, v4
        v_and_b32 v5, 511, v5
        v_mad_u32_u24 v4, v4, s{sA1}, v10
        v_mad_u32_u24 v5, v5, s{sA1}, v10
        L_gpoll:
        buffer_load_dwordx4 v[32:35], v4, {srd(SWS)}, s{sA0} offen sc1
        buffer_load_dwordx4 v[36:39], v5, {srd(SWS)}, s{sA0} offen sc1
        """)
        self.ffn_pre2()
        a(f"""
        s_waitcnt vmcnt(1)
        ds_write_b128 v6, v[32:35]
        v_max3_u32 v22, v32, v33, v34
        s_waitcnt vmcnt(0)
        ds_write_b128 v6, v[36:39] offset:1056
        v_max3_u32 v22, v22, v35, v36
        v_max3_u32 v22, v22, v37, v38
        v_max_u32 v22, v22, v39
        v_cmp_eq_u32 vcc, -1, v22
        s_cbranch_vccz L_gok
        """)
        self.spin_guard("L_gok")
        a(f"""
        s_branch L_gpoll
        L_gok:
        """)
        self.stamp("gath")
        a("s_waitcnt lgkmcnt(0)\ns_barrier")
        lq = LQ(a)
        AF, BF, WD, D = self.AF, self.BF, self.WD, 40
        for s_ in range(14):
            lq.op(f"ds_read_b128 {vr(BF+4*s_,4)}, v13 offset:{s_*64}", s_)
        for s_ in range(14):
            if s_ % 2 == 0:
                lq.wait(s_ + 1)
            a(M16(D + 4 * (s_ % 2), AF + 4 * s_, BF + 4 * s_, D + 4 * (s_ % 2) if s_ > 1 else None))
        for k in range(4):
            a(f"v_add_f32 v{D+k}, v{D+k}, v{D+4+k}")
        a(f"""
        v_cvt_pk_bf16_f32 v44, v{D}, v{D+1}
        v_cvt_pk_bf16_f32 v45, v{D+2}, v{D+3}
        s_cmp_ge_u32 s{sW}, 2
        s_cbranch_scc1 L_nosilu
        """)
        self.unpack(48, 44)
        self.unpack(50, 45)
        for k in range(4):
            a(f"v_mul_f32 v{52+k}, {hex(fbits(-LOG2E))}, v{48+k}")
        for k in range(4):
            a(f"v_exp_f32 v{52+k}, v{52+k}")
        for k in range(4):
            a(f"v_add_f32 v{52+k}, 1.0, v{52+k}")
        for k in range(4):
            a(f"v_rcp_f32 v{52+k}, v{52+k}")
        for k in range(4):
            a(f"v_mul_f32 v{48+k}, v{48+k}, v{52+k}")
        a(f"""
        v_cvt_pk_bf16_f32 v44, v48, v49
        v_cvt_pk_bf16_f32 v45, v50, v51
        L_nosilu:
        ds_write_b64 v7, v[44:45]
        s_waitcnt lgkmcnt(0)
        s_barrier
        ds_read_b64 v[32:33], v8
        ds_read_b64 v[36:37], v8 offset:1024
        ds_read_b64 v[34:35], v8 offset:512
        ds_read_b64 v[38:39], v8 offset:1536
        s_waitcnt lgkmcnt(0)
        """)
        for k in range(4):
            self.unpack(48 + 2 * k, 32 + k)
            self.unpack(56 + 2 * k, 36 + k)
        for k in range(4):
            a(f"v_pk_mul_f32 {vr(48+2*k,2)}, {vr(48+2*k,2)}, {vr(56+2*k,2)}")
        for k in range(4):
            a(f"v_cvt_pk_bf16_f32 v{44+k}, v{48+2*k}, v{49+2*k}")
        for i in range(7):
            a(M16(128 + 4 * i, WD + 4 * i, 44))
        a("s_mov_b32 exec_lo, 0x00ff00ff\ns_mov_b32 exec_hi, 0x00ff00ff")
        for i in range(7):
            a(f"buffer_store_dwordx4 {vr(128+4*i,4)}, v9, {srd(SWS)}, s99 offen offset:{512*i} sc1")
        a("s_mov_b64 exec, -1")
        self.stamp("ypub")
        a("L_noffn:")

    def out_rows(self):
        a = self.a
        a(f"""
        ds_read_b128 v[48:51], v15
        ds_read_b128 v[52:55], v16
        v_lshrrev_b32_e64 v22, v20, s80
        v_lshrrev_b32_e64 v23, v21, s80
        v_and_b32 v22, 1, v22
        v_and_b32 v23, 1, v23
        v_cmp_eq_u32 s[{sM}:{sM+1}], 0, v22
        v_cmp_eq_u32 vcc, 0, v23
        s_waitcnt lgkmcnt(0)
        s_mov_b64 exec, s[{sM}:{sM+1}]
        s_cbranch_execz L_out1
        buffer_store_dwordx4 v[48:51], v{self.VTG}, {srd(SOUT)}, s{sROW} offen{self.OUTP}
        L_out1:
        s_and_b32 vcc_hi, vcc_hi, 0xffff
        s_mov_b64 exec, vcc
        s_cbranch_execz L_out2
        buffer_store_dwordx4 v[52:55], v{self.VTG+1}, {srd(SOUT)}, s{sROW} offen{self.OUTP}
        L_out2:
        s_mov_b64 exec, -1
        """)

    def reducer(self):
        a = self.a
        a(f"""
        s_cmp_lt_i32 s{sU}, 0
        s_cbranch_scc1 L_fin
        s_cmp_lg_u32 s{sW}, 0
        s_cbranch_scc1 L_fin
        v_and_b32 v2, 7, v0
        v_lshl_add_u32 v3, v2, 3, s{sA4}
        ds_read_b64 v[12:13], v3
        v_lshrrev_b32 v5, 3, v0
        v_mul_u32_u24 v5, 14336, v5
        v_lshl_add_u32 v5, v2, 4, v5
        v_lshrrev_b32 v6, 4, v0
        s_lshl_b32 s{sT0}, s{sU}, 3
        v_lshl_add_u32 v6, v6, 1, s{sT0}
        s_movk_i32 s{sA1}, 896
        s_mov_b32 s{sA2}, {WS_HH}
        s_mov_b32 s{sA3}, {WS_HN}
        s_lshl_b32 s{sA0}, s{sU}, 7
        s_add_u32 s{sA0}, s{sA0}, {WS_Y}
        s_waitcnt lgkmcnt(0)
        """)
        self.key_token(7, 12)
        a(f"""
        v_and_b32 v13, 511, v13
        v_mad_u32_u24 v13, v13, s{sA1}, v6
        v_mad_u32_u24 v6, v7, s{sA1}, v6
        L_rpoll:
        buffer_load_ushort v8, v13, {srd(SWS)}, s{sA2} offen sc1
        buffer_load_ushort v9, v13, {srd(SWS)}, s{sA3} offen sc1
        v_lshlrev_b32 v10, 1, v12
        v_and_b32 v10, 0xffff0000, v10
        v_ashrrev_i32 v11, 31, v10
        v_not_b32 v11, v11
        v_or_b32 v11, 0x80000000, v11
        v_xor_b32 v10, v10, v11
        v_and_b32 v10, 0xffff0000, v10
        v_mul_f32 v10, {hex(fbits(-LOG2E))}, v10
        v_exp_f32 v10, v10
        v_add_f32 v10, 1.0, v10
        v_rcp_f32 v10, v10
        v_cvt_pk_bf16_f32 v10, v10, v10
        v_and_b32 v10, 0xffff0000, v10
        s_waitcnt vmcnt(0)
        v_max_u32 v11, v8, v9
        v_cmp_eq_u32 vcc, 0xffff, v11
        s_cbranch_vccz L_rok
        """)
        self.spin_guard("L_rok")
        a(f"""
        s_branch L_rpoll
        L_rok:
        v_lshlrev_b32 v8, 16, v8
        v_lshlrev_b32 v9, 16, v9
        """)
        self.stamp("rpre")
        if self.YL:
            a(f"""
            s_cmp_ge_u32 s{sU}, 56
            s_cselect_b32 s{sT0}, 56, 0
            s_sub_u32 s{sT0}, s{sU}, s{sT0}
            s_mul_i32 s{sT0}, s{sT0}, 14336
            s_add_u32 s{sA1}, s{sA0}, s{sT0}
            L_yhint:
            buffer_load_dword v32, v31, {srd(SWS)}, s{sA1} offen sc1
            s_waitcnt vmcnt(0)
            v_cmp_eq_u32 vcc, -1, v32
            s_cbranch_vccz L_ypoll
            """)
            self.spin_guard("L_ypoll")
            a(f"s_sleep {self.YL}\ns_branch L_yhint")
        a("L_ypoll:")
        for i in range(7):
            a(f"""
            s_add_u32 s{sT0}, s{sA0}, {i*8*14336}
            buffer_load_dwordx4 {vr(32+4*i,4)}, v5, {srd(SWS)}, s{sT0} offen sc1
            """)
        a("s_waitcnt vmcnt(0)")
        self.sentinel_any(range(32, 60), 22)
        a("s_cbranch_vccz L_yok")
        self.spin_guard("L_yok")
        a("s_branch L_ypoll\nL_yok:")
        self.stamp("yok")
        for (x, y) in ((32, 36), (40, 44), (48, 52), (32, 40), (48, 56), (32, 48)):
            a(f"v_pk_add_f32 {vr(x,2)}, {vr(x,2)}, {vr(y,2)}\nv_pk_add_f32 {vr(x+2,2)}, {vr(x+2,2)}, {vr(y+2,2)}")
        for k in range(4):
            a(f"v_add_f32_dpp v{36+k}, v{32+k}, v{32+k} row_ror:8 row_mask:0xf bank_mask:0xf bound_ctrl:1")
        a(f"""
        v_permlane16_swap_b32 v36, v37
        v_permlane16_swap_b32 v38, v39
        v_add_f32 v36, v36, v37
        v_add_f32 v38, v38, v39
        v_permlane32_swap_b32 v36, v38
        v_add_f32 v36, v36, v38
        v_cvt_pk_bf16_f32 v36, v36, v36
        v_and_b32 v36, 0xffff0000, v36
        v_mul_f32 v36, v36, v10
        v_cvt_pk_bf16_f32 v36, v36, v36
        v_and_b32 v36, 0xffff0000, v36
        v_add_f32 v36, v36, v9
        v_cvt_pk_bf16_f32 v36, v36, v36
        v_and_b32 v36, 0xffff0000, v36
        v_add_f32 v36, v36, v8
        v_cvt_pk_bf16_f32 v36, v36, v36
        s_mov_b32 exec_lo, 0x00ff00ff
        s_mov_b32 exec_hi, 0x00ff00ff
        buffer_store_short v36, v6, {srd(SOUT)}, 0 offen{self.OUTP}
        s_mov_b64 exec, -1
        """)
        self.stamp("rend")

    def tail(self):
        self.p3()
        self.topk()
        self.ffn()
        self.out_rows()
        self.reducer()

    def redo(self):
        self.topk_slow()
        super().redo()


if __name__ == "__main__":
    g = Full()
    s, n = g.build()
    sys.stdout.write(s)
    print("pads:", n, file=sys.stderr)
```

```python
import sys, os, struct
sys.path.insert(0, os.path.dirname(os.path.abspath(__file__)))
from asmb import Asm

NAME = "sequential_preLN__mha_block__moe_arch_mod__prompt_kernel"

WS_EPOCH = 0
WS_KVF = 0x1000
WS_CLF = 0x3000
WS_XID = 0x3800
WS_KEYS = 0x4000
WS_STATS = 0x20000
WS_KV = 0x100000
KVS = 4352
WS_OF = 0x580000
WS_HN = 0x780000
WS_HH = 0x800000
WS_Y = 0xB00000
WS_TS = 0xC00000
WS_SIZE = 0x1000000

L_W = 0
L_XR = 86016
L_CS = 151552
L_RS = 154624
L_QX = 155648
L_WO = 0
L_CB = 114688
L_ST = 147456
L_TR = 114688
L_SEL = 149504
L_AX = 149760
L_G = 138240
L_WG = 0
L_WU = 28672
L_WD = 57344
LDS_BYTES = 163840

SX, SWQ, SWS, SWO, SOUT, SWG, SWU, SWD, SWR = 8, 12, 16, 20, 24, 28, 32, 36, 40
sW, sH, sB, sT, sC, sNON, sI, sXCD = 44, 45, 46, 47, 48, 49, 50, 51
sKG = 52
sXO = 59
sONE = 60
sT0, sT1, sT2 = 61, 62, 63
sLO = 86
sM = 88
sA0, sA1, sA2, sA3, sA4, sA5 = 90, 91, 92, 93, 94, 95
sKVF, sKVO = 82, 83
sLOC = 56
sSPIN = 96
sPASS = 97
sTH = 98
sKT = 64
SPIN_MAX = 1 << 17

LOG2E = 1.4426950408889634


def fbits(x):
    return struct.unpack("<I", struct.pack("<f", x))[0]


def srd(r):
    return f"s[{r}:{r+3}]"


def vr(a, n):
    return f"v[{a}:{a+n-1}]" if n > 1 else f"v{a}"


def M32(d, a, b, c=None):
    return f"v_mfma_f32_32x32x16_bf16 {vr(d,16)}, {vr(a,4)}, {vr(b,4)}, {vr(c,16) if c is not None else 0}"


def M16(d, a, b, c=None):
    return f"v_mfma_f32_16x16x32_bf16 {vr(d,4)}, {vr(a,4)}, {vr(b,4)}, {vr(c,4) if c is not None else 0}"


def lines(t):
    return [x.strip() for x in t.strip().split("\n") if x.strip()]


class LQ:
    def __init__(self, a):
        self.a, self.q = a, []

    def op(self, text, tag):
        self.a(text)
        self.q.append(tag)

    def wait(self, tag):
        k = max(i for i, t in enumerate(self.q) if t == tag)
        self.a(f"s_waitcnt lgkmcnt({min(len(self.q) - 1 - k, 15)})")


sF, sU = 3, 4
sWOS, sWOM = 5, 6
sROW = 7
OOB = 0x7F000000


class Gen:
    def __init__(self, stop=None, ts=False, rot=True, force_fb=False, **kw):
        self.a = Asm()
        self.stop = stop
        self.ts = ts
        self.rot = rot
        self.force_fb = force_fb
        self.nts = 0
        self.tsn = []
        for k, v in kw.items():
            setattr(self, k, v)

    amp = None
    ampg = 80

    def stamp(self, name=""):
        if self.amp:
            if name == "entry":
                self.a("s_memrealtime s[100:101]")
            elif name == self.amp:
                self.a("s_memrealtime s[84:85]\ns_waitcnt lgkmcnt(0)")
        if not self.ts:
            return
        k = self.nts
        self.nts += 1
        self.tsn.append(name)
        assert k < 32
        self.a(f"""
        s_memrealtime s[100:101]
        s_waitcnt lgkmcnt(0)
        v_writelane_b32 v254, s100, {k}
        s_memtime s[100:101]
        s_waitcnt lgkmcnt(0)
        v_writelane_b32 v254, s100, {32+k}
        """.replace("v254", self.TSV))

    def spin_guard(self, out_label):
        self.a(f"""
        s_add_u32 s{sSPIN}, s{sSPIN}, 1
        s_cmp_gt_u32 s{sSPIN}, {SPIN_MAX}
        s_cbranch_scc1 {out_label}
        """)

    def xhalf_sum(self, x, t):
        self.a(f"""
        v_mov_b32 v{t}, v{x}
        v_permlane32_swap_b32 v{x}, v{t}
        v_add_f32 v{x}, v{x}, v{t}
        """)

    def ln_scalars(self, S1, S2, mb, rs, t0, t1):
        self.a(f"""
        v_mul_f32 v{mb}, {hex(fbits(1/448))}, v{S1}
        v_mul_f32 v{t0}, {hex(fbits(1/448))}, v{S2}
        v_fma_f32 v{t0}, -v{mb}, v{mb}, v{t0}
        v_max_f32 v{t0}, 0, v{t0}
        v_cvt_pk_bf16_f32 v{t1}, v{mb}, v{t0}
        v_lshlrev_b32 v{mb}, 16, v{t1}
        v_and_b32 v{t0}, 0xffff0000, v{t1}
        v_add_f32 v{t0}, {hex(fbits(1e-5))}, v{t0}
        v_cvt_pk_bf16_f32 v{t0}, v{t0}, v{t0}
        v_and_b32 v{t0}, 0xffff0000, v{t0}
        v_sqrt_f32 v{t0}, v{t0}
        v_cvt_pk_bf16_f32 v{t0}, v{t0}, v{t0}
        v_and_b32 v{t0}, 0xffff0000, v{t0}
        v_rcp_f32 v{rs}, v{t0}
        """)

    def neg_split2(self, d, x, t):
        self.a(f"""
        v_cvt_pk_bf16_f32 v{t}, -v{x}, -v{x}
        v_and_b32 v{t}, 0xffff0000, v{t}
        v_sub_f32 v{d}, -v{x}, v{t}
        v_cvt_pk_bf16_f32 v{d}, v{t}, v{d}
        """.replace("v_sub_f32 ", "v_sub_f32_e64 "))

    def common_setup(self, scalar=True, only=None):
        self.a(f"""
        {"s_load_dword s%d, s[84:85], 0" % sNON if scalar else ""}
        s_lshl_b32 s{sT}, s{sA5}, 5
        s_lshl_b32 s{sT0}, s{sA4}, 3
        s_add_u32 s{sT}, s{sT}, s{sT0}
        s_and_b32 s{sT0}, s{sB}, 7
        s_add_u32 s{sT}, s{sT}, s{sT0}
        s_mov_b32 s{sONE}, 0x3f803f80
        s_mov_b32 s{sLO}, -1
        s_mov_b32 s{sLO+1}, 0
        s_mov_b32 s{sSPIN}, 0
        s_mov_b32 s{sPASS}, 0
        """)
        self.roles()
        self.srds(only)

    def prologue(self):
        a = self.a
        a(f"""
        s_cmp_ge_u32 s2, 256
        s_cbranch_scc1 L_end
        """)
        self.stamp("entry")
        a(f"""
        s_load_dwordx16 s[64:79], s[0:1], 0
        s_load_dwordx4 s[80:83], s[0:1], 64
        s_load_dwordx2 s[84:85], s[0:1], 80
        v_lshrrev_b32 v1, 6, v0
        v_and_b32 v0, 63, v0
        s_and_b32 s{sXCD}, s2, 7
        s_lshr_b32 s{sI}, s2, 3
        v_readfirstlane_b32 s{sW}, v1
        s_lshr_b32 s{sA4}, s{sXCD}, 1
        s_and_b32 s{sA5}, s{sXCD}, 1
        s_and_b32 s{sC}, s{sI}, 3
        s_lshr_b32 s{sT2}, s{sI}, 2
        s_lshl_b32 s{sB}, s{sA5}, 3
        s_add_u32 s{sB}, s{sB}, s{sT2}
        s_lshl_b32 s{sH}, s{sA4}, 2
        s_add_u32 s{sH}, s{sH}, s{sC}
        s_cmp_eq_u32 s{sW}, 4
        s_cbranch_scc1 L_helper
        v_lshrrev_b32 v22, 3, v0
        v_mul_u32_u24 v22, 896, v22
        v_lshrrev_b32 v23, 4, v0
        v_and_b32 v24, 7, v0
        v_xor_b32 v23, v23, v24
        v_lshl_add_u32 v1, v23, 4, v22
        v_xor_b32 v23, 4, v23
        v_lshl_add_u32 v2, v23, 4, v22
        v_add_u32 v2, {7168-1024}, v2
        v_add_u32 v3, {2*(7168-1024)}, v1
        v_add_u32 v4, {2*(7168-1024)}, v2
        v_lshrrev_b32 v22, 2, v0
        v_mul_u32_u24 v22, 2688, v22
        v_and_b32 v23, 3, v0
        v_lshlrev_b32 v23, 4, v23
        v_min_u32 v23, 40, v23
        v_add_u32 v5, v23, v22
        s_lshl_b32 s{sXO}, s{sB}, 2
        s_add_u32 s{sXO}, s{sXO}, s{sW}
        s_mul_i32 s{sXO}, s{sXO}, {32*896}
        s_lshl_b32 s{sA2}, s{sW}, 14
        s_add_u32 s{sA2}, s{sA2}, {L_XR}
        s_mul_i32 s{sA1}, s{sW}, {16*2688}
        s_mul_i32 s{sA3}, s{sH}, 56
        s_add_u32 s{sA1}, s{sA1}, s{sA3}
        s_add_u32 s{sA1}, s{sA1}, 896
        s_mul_i32 s{sA3}, s{sW}, 21504
        s_mov_b32 s{SX+2}, {2048*896}
        s_mov_b32 s{SX+3}, 0x20000
        s_mov_b32 s{SWQ+2}, {448*2688}
        s_mov_b32 s{SWQ+3}, 0x20000
        """)
        if self.ROT == 7:
            a(f"""
            s_lshl_b32 s{sKG}, s{sC}, 1
            s_add_u32 s{sKG}, s{sKG}, s{sT2}
            s_cmp_ge_u32 s{sKG}, 7
            s_cselect_b32 s{sT0}, 7, 0
            s_sub_u32 s{sKG}, s{sKG}, s{sT0}
            """)
        elif self.ROT > 1:
            a(f"""
            s_add_u32 s{sKG}, s{sC}, s{sT2}
            s_and_b32 s{sKG}, s{sKG}, {self.ROT-1}
            s_mul_i32 s{sKG}, s{sKG}, {self.ROTS}
            """)
        else:
            a(f"s_mov_b32 s{sKG}, 0")

        def nxt(G):
            a(f"""
            s_add_u32 s{sKG+G}, s{sKG+G-1}, 1
            s_cmp_eq_u32 s{sKG+G}, 7
            s_cselect_b32 s{sKG+G}, 0, s{sKG+G}
            """)
        nxt(1)
        if self.LIN:
            n = self.LIN
            a(f"""
            v_lshlrev_b32 v26, 7, v0
            s_and_b32 s{sT0}, s2, {7 if n == 1 else 3}
            s_lshl_b32 s{sT1}, s{sI}, {3 if n == 1 else 2}
            s_add_u32 s{sT0}, s{sT0}, s{sT1}
            s_mul_i32 s{sT1}, s{sT0}, {4704*n}
            s_mul_i32 s{sT0}, s{sT0}, {7168*n}
            s_and_b32 s99, s{sW}, 1
            s_mul_i32 s99, s99, {7168 if n == 2 else 0}
            s_add_u32 s98, s{sT0}, s99
            s_and_b32 s99, s{sW}, 1
            s_mul_i32 s99, s99, {4704 if n == 2 else 0}
            s_add_u32 s99, s{sT1}, s99
            """)
        a(f"""
        s_waitcnt lgkmcnt(0)
        s_mov_b32 s{SX}, s64
        s_mov_b32 s{SX+1}, s65
        s_mov_b32 s{SWQ}, s66
        s_mov_b32 s{SWQ+1}, s67
        """)
        self.stamp("karg")
        lin = []
        if self.LIN:
            lin = lines(f"""
            s_cmp_ge_u32 s{sW}, 2
            s_cbranch_scc1 L_linw
            s_mov_b32 exec_hi, 0xffffff
            buffer_load_dword v28, v26, {srd(SX)}, s98 offen
            s_branch L_lind
            L_linw:
            s_mov_b32 exec_hi, 0x3f
            buffer_load_dword v28, v26, {srd(SWQ)}, s99 offen
            L_lind:
            s_mov_b32 exec_hi, -1
            """)
        if self.LINP == 0:
            a("\n".join(lin))
        a("\n".join(self.dma_x(0) + self.dma_w(0)))
        if self.LINP == 1:
            a("\n".join(lin))
        for G in range(2, 7):
            nxt(G)
        a(f"s_mov_b32 s{sONE}, 0x3f803f80")
        a(f"""
        v_and_b32 v22, 31, v0
        v_lshrrev_b32 v23, 5, v0
        v_lshrrev_b32 v24, 1, v22
        v_and_b32 v24, 7, v24
        v_xor_b32 v24, v24, v23
        v_lshlrev_b32 v22, 7, v22
        v_add_u32 v22, s{sA2}, v22
        v_lshl_add_u32 v22, v24, 4, v22
        v_lshrrev_b32 v25, 2, v0
        v_and_b32 v25, 3, v25
        v_lshl_add_u32 v25, v23, 3, v25
        v_lshlrev_b32 v25, 6, v25
        v_lshrrev_b32 v26, 4, v0
        v_and_b32 v26, 1, v26
        v_lshl_add_u32 v25, v26, 5, v25
        v_lshrrev_b32 v27, 1, v0
        v_and_b32 v27, v27, v26
        v_and_b32 v26, 3, v0
        v_xor_b32 v26, v26, v27
        v_lshl_add_u32 v25, v26, 3, v25
        """)
        for p in range(4):
            a(f"""
            s_add_u32 s{sT0}, s{sW}, {p}
            s_and_b32 s{sT0}, s{sT0}, 3
            s_lshl_b32 s{sT1}, s{sT0}, 5
            s_mul_i32 s{sT2}, s{sT0}, 21504
            v_xor_b32 v{6+p}, s{sT1}, v22
            v_add_u32 v{10+p}, s{sT2}, v25
            """)
        for r in (14, 15, 16, 17, 18, 19, 31):
            a(f"v_mov_b32 v{r}, 0")
        self.stamp("b1")
        a("\n".join(self.dma_x(1)))
        self.stamp("issued")

    def late_setup(self):
        sub = Gen()
        a = sub.a
        sub.common_setup(scalar=False, only=(SWS, SOUT, SWR))
        for r in (20, 21, 97, 98, 99, 101, 102, 103, 105, 106, 107):
            a(f"v_mov_b32 v{r}, 0")
        a(f"v_lshlrev_b32 v26, 4, v0\nv_add_u32 v26, {L_QX}, v26")
        for p in range(4):
            a(f"""
            s_add_u32 s99, s{sW}, {p+1}
            s_and_b32 s99, s99, 3
            v_lshl_add_u32 v{124+p}, s99, 11, v26
            """)
        a(f"""
        s_lshl_b32 s99, s{sH}, 2
        s_add_u32 s99, s99, s{sW}
        s_lshl_b32 s99, s99, 7
        s_add_u32 s{sKVF}, s99, {WS_KVF}
        s_lshl_b32 s99, s{sB}, 2
        s_add_u32 s{sKVO}, s99, s{sKVF}
        s_lshl_b32 s99, s{sH}, 6
        s_add_u32 s99, s99, s{sW}
        s_mul_i32 s99, s99, {KVS}
        s_add_u32 s99, s99, {WS_KV}
        v_add_u32 v26, s{sB}, v0
        v_and_b32 v26, 15, v26
        v_mul_u32_u24 v26, {4*KVS}, v26
        v_add_u32 v26, s99, v26
        """)
        for i in range(16):
            a(f"v_readlane_b32 s{sKT+i}, v26, {i}")
        a(f"""
        s_lshl_b32 s98, s{sB}, 2
        s_add_u32 s98, s98, s{sW}
        s_lshl_b32 s98, s98, 4
        s_add_u32 s98, s98, s{sH}
        s_lshl_b32 s98, s98, 11
        s_add_u32 s99, s98, {WS_OF}
        """)
        return [x[1].text.replace(f"s{sT0}", "s98").replace(f"s{sT1}", "s99") for x in a.items]

    def roles(self):
        self.a(f"""
        s_lshr_b32 s{sT0}, s{sI}, 2
        s_sub_u32 s{sT0}, s{sI}, s{sT0}
        s_sub_u32 s{sT0}, s{sT0}, 1
        s_mul_i32 s{sT1}, s{sXCD}, 7
        s_add_u32 s{sF}, s{sT0}, s{sT1}
        s_cmp_lt_u32 s{sI}, 10
        s_cselect_b32 s{sF}, s{sF}, -1
        s_cmp_eq_u32 s{sC}, 0
        s_cselect_b32 s{sF}, -1, s{sF}
        s_mul_i32 s{sT1}, s{sXCD}, 14
        s_sub_u32 s{sT0}, s{sI}, 10
        s_add_u32 s{sU}, s{sT0}, s{sT1}
        s_cmp_lt_u32 s{sT0}, 14
        s_cselect_b32 s{sU}, s{sU}, -1
        s_mul_i32 s{sROW}, s{sT}, {32*896}
        s_mul_i32 s{sT0}, s{sC}, 224
        s_add_u32 s{sROW}, s{sROW}, s{sT0}
        """)

    def cand_base(self, d, w):
        w = f"s{w}" if w >= 4 else str(w)
        self.a(f"""
        s_lshl_b32 s{sT0}, s{sT}, 1
        s_and_b32 s{sT1}, {w}, 1
        s_add_u32 s{sT0}, s{sT0}, s{sT1}
        s_mul_i32 s{sT0}, s{sT0}, {4*896}
        s_mul_i32 s{sT1}, s{sC}, 224
        s_add_u32 s{sT0}, s{sT0}, s{sT1}
        s_lshr_b32 s{sT1}, {w}, 1
        s_mul_i32 s{sT1}, s{sT1}, {WS_HH-WS_HN}
        s_add_u32 s{sT0}, s{sT0}, s{sT1}
        s_add_u32 s{d}, s{sT0}, {WS_HN}
        """)

    def srds(self, only=None):
        for r, p, n in ((SWS, 84, WS_SIZE), (SWO, 68, 448 * 896), (SOUT, 80, 2048 * 896), (SWG, 74, 448 * 3584),
                        (SWU, 76, 448 * 3584), (SWD, 78, 1792 * 896), (SWR, 72, 896)):
            if only and r not in only:
                continue
            self.a(f"""
            s_mov_b32 s{r}, s{p}
            s_mov_b32 s{r+1}, s{p+1}
            s_mov_b32 s{r+2}, {n}
            s_mov_b32 s{r+3}, 0x20000
            """)

    def dma_x(self, G):
        if G > 6:
            return []
        return lines(f"""
        s_lshl_b32 s{sT0}, s{sKG+G}, 7
        s_add_u32 m0, s{sA2}, {(G%4)*4096}
        s_add_u32 s{sT0}, s{sT0}, s{sXO}
        buffer_load_dwordx4 v1, {srd(SX)}, s{sT0} offen lds
        buffer_load_dwordx4 v2, {srd(SX)}, s{sT0} offen offset:1024 lds
        buffer_load_dwordx4 v3, {srd(SX)}, s{sT0} offen offset:2048 lds
        buffer_load_dwordx4 v4, {srd(SX)}, s{sT0} offen offset:3072 lds
        """)

    def dma_w(self, G):
        return lines(f"""
        s_mul_i32 s{sKG+G}, s{sKG+G}, {64*2688}
        s_add_u32 m0, s{sA3}, {L_W+G*3072}
        s_add_u32 s{sKG+G}, s{sKG+G}, s{sA1}
        s_sub_u32 s{sT1}, s{sKG+G}, 128
        buffer_load_dwordx4 v5, {srd(SWQ)}, s{sKG+G} offen lds
        buffer_load_dwordx4 v5, {srd(SWQ)}, s{sT1} offen offset:1024 lds
        """)

    def dma_q(self, G):
        return [f"s_add_u32 m0, s{sA3}, {L_W+G*3072+2048}", f"s_sub_u32 s{sT1}, s{sKG+G}, 896",
                f"buffer_load_dwordx4 v5, {srd(SWQ)}, s{sT1} offen lds"]

    LA = 2
    HMAP = sum(h << (4 * k) for k, h in enumerate(range(16)))
    TSV = 'v29'
    ATS = 0
    P1S = 0
    FLAGAT = 24
    ROT = 4
    ROTS = 2
    NT = 0

    def touches(self):
        return []

    def p1(self):
        a = self.a
        XF, AK, AV, AQ, WF = 128, 32, 48, 64, 80
        XE = 96
        RS = 108
        KO, VO = 240, 248
        s1, s2, csK, csV = (14, 15), (16, 17), 18, 19
        WEK, WEV = 100, 104
        queue = [("x", 0)] * 4 + [("w", 0)] * 2 + [("l", 0)] * (1 if self.LIN and self.LINP == 1 else 0) + [("x", 1)] * 4

        def newer(tag):
            k = max(i for i, t in enumerate(queue) if t == tag)
            return len(queue) - 1 - k

        def xstats(G):
            for n in range(4 * G, 4 * G + 4):
                for i in range(4):
                    a(f"v_dot2c_f32_bf16 v{s1[i%2]}, s{sONE}, v{XF+4*n+i}")
                    a(f"v_dot2c_f32_bf16 v{s2[i%2]}, v{XF+4*n+i}, v{XF+4*n+i}")

        WBS = ([80, 88, 240, 248], [64, 72, 108, 116])

        def xreads(G):
            return [f"ds_read_b128 {vr(XF+4*(4*G+q),4)}, v{6+q} offset:{(G%4)*4096}" for q in range(4)] if G < 7 else []

        def wreads(G):
            WB = WBS[G % 2]
            return [f"ds_read_b64_tr_b16 {vr(WB[p]+4*t+2*hlf,2)}, v{10+p} offset:{G*3072+t*1024+hlf*256}"
                    for p in range(4) for t in range(2) for hlf in range(2)]

        def batch(G):
            r = []
            if G <= 6:
                r = self.dma_w(G) + self.dma_x(G + 1)
                queue.extend([("w", G)] * 2 + ([("x", G + 1)] * 4 if G < 6 else []))
            return r

        a(f"s_waitcnt vmcnt({newer(('x', 0))})")
        for x in xreads(0):
            a(x)
        self.stamp("x0")
        for x in batch(1):
            a(x)
        a("s_waitcnt lgkmcnt(0)")
        xstats(0)
        a(f"s_waitcnt vmcnt({newer(('x', 1))})\ns_barrier")
        self.stamp("g0")
        for x in wreads(0)[:4] + xreads(1) + wreads(0)[4:]:
            a(x)
        for x in batch(2):
            a(x)
        a(f"global_load_dword v30, v31, s[84:85] sc1")
        queue.append(("n", 0))
        if self.CPS:
            a(f"""
            s_getpc_b64 s[{sM}:{sM+1}]
            s_lshl_b32 s{sT0}, s{sI}, 2
            s_add_u32 s{sT0}, s{sT0}, s{sW}
            s_lshl_b32 s{sT0}, s{sT0}, 7
            v_mov_b32 v26, s{sT0}
            global_load_dword v27, v26, s[{sM}:{sM+1}]
            """)
            queue.append(("n", 0))
        setup = self.late_setup()
        nset = -(-len(setup) // 4)
        qsched = {4: [0, 1, 2, 3], 5: [4, 5, 6]}
        for G in range(7):
            WB = WBS[G % 2]
            if self.P1S:
                self.stamp(f"G{G}")
            a("s_waitcnt lgkmcnt(12)")
            for i in range(4):
                a(f"v_dot2c_f32_bf16 v{csK}, s{sONE}, v{WB[0]+i}")
                a(f"v_dot2c_f32_bf16 v{csV}, s{sONE}, v{WB[0]+4+i}")
            if G < 6:
                xstats(G + 1)
            else:
                a(f"""
                ds_write_b32 v24, v{csK}
                ds_write_b32 v24, v{csV} offset:1024
                """)
            gaps = [[] for _ in range(8)]
            early = batch(G + 3)
            for k in qsched.get(G, ()):
                early += self.dma_q(k)
                queue.append(("q", k))
            if G == 3:
                early += lines(f"""v_readfirstlane_b32 s{sNON}, v30
                s_mul_i32 s{sNON}, s{sNON}, 0x19660d
                s_add_u32 s{sNON}, s{sNON}, 0x3c6ef35f
                v_mov_b32 v30, s{sNON}""")
            if G == 4:
                early += lines(f"""v_and_b32 v22, 31, v0
                v_lshlrev_b32 v22, 5, v22
                v_add_u32 v23, {L_CS}, v22
                v_lshrrev_b32 v24, 5, v0
                s_lshl_b32 s{sT0}, s{sW}, 3
                v_lshl_add_u32 v24, v24, 2, v23
                v_add_u32 v24, s{sT0}, v24""")
            if G == 5:
                sub = Gen()
                sub.a(f"""
                v_add_f32 v14, v14, v15
                v_add_f32 v16, v16, v17
                v_permlane32_swap_b32 v14, v16
                v_add_f32 v14, v14, v16
                v_mov_b32 v16, v14
                v_permlane32_swap_b32 v14, v16
                """)
                sub.ln_scalars(14, 16, 26, 28, 15, 17)
                sub.a(f"""
                v_lshrrev_b32 v15, 16, v26
                v_or_b32 v15, v15, v26
                v_cndmask_b32 v{XE}, 0, v15, s[{sLO}:{sLO+1}]
                v_and_b32 v15, 31, v0
                s_lshl_b32 s{sT0}, s{sW}, 7
                s_add_u32 s{sT0}, s{sT0}, {L_RS}
                v_lshl_add_u32 v15, v15, 2, s{sT0}
                v_lshrrev_b32 v25, 5, v0
                v_lshl_add_u32 v25, v25, 4, s{sT0}
                ds_write_b32 v15, v28
                """)
                stats = [x[1].text for x in sub.a.items]
                early = early + stats[:8]
                stats = stats[8:]
            if G < 6:
                per = -(-len(early) // 3)
                for k in range(3):
                    gaps[k] = early[k * per:(k + 1) * per]
                w = wreads(G + 1)
                rd = w[:4] + xreads(G + 2) + w[4:]
                gaps[2] += setup[:nset]
                setup = setup[nset:]
                gaps[2] += [f"s_waitcnt vmcnt({newer(('x', G+2) if G < 5 else ('w', 6))})", "s_barrier"]
                per = -(-len(rd) // 5)
                for k in range(5):
                    gaps[3 + k] = rd[per * k:per * k + per]
            else:
                sub = Gen()
                for mat, we in ((0, WEK), (1, WEV)):
                    r = RS + 8 * mat
                    sub.a(f"""
                    v_add_f32 v{r}, v{r}, v{r+1}
                    v_add_f32 v{r+2}, v{r+2}, v{r+3}
                    v_add_f32 v{r+4}, v{r+4}, v{r+5}
                    v_add_f32 v{r+6}, v{r+6}, v{r+7}
                    v_add_f32 v{r}, v{r}, v{r+2}
                    v_add_f32 v{r+4}, v{r+4}, v{r+6}
                    v_add_f32 v{r}, v{r}, v{r+4}
                    """)
                    sub.neg_split2(we, r, 22)
                Bc = [x[1].text for x in sub.a.items]
                gaps[0] = stats[:4] + ["s_waitcnt lgkmcnt(0)", "s_barrier"] + \
                    [f"ds_read_b128 {vr(RS+4*i,4)}, v23 offset:{(i//2)*1024+(i%2)*16}" for i in range(4)]
                A = stats[4:]
                mix = A[:6] + ["s_waitcnt lgkmcnt(0)"]
                A = A[6:]
                while A or Bc:
                    mix += A[:1] + Bc[:2]
                    A, Bc = A[1:], Bc[2:]
                per = -(-len(mix) // 7)
                for k in range(7):
                    gaps[1 + k] = mix[k * per:(k + 1) * per]
            for p in range(4):
                m = 4 * G + p
                if p == 1 and G < 6:
                    a("s_waitcnt lgkmcnt(0)")
                a(M32(AK, WB[p], XF + 4 * m, AK if m else None))
                for x in gaps[2 * p]:
                    a(x)
                a(M32(AV, XF + 4 * m, WB[p] + 4, AV if m else None))
                for x in gaps[2 * p + 1]:
                    a(x)
        a(M32(AK, WEK, XE, AK))
        a("s_waitcnt lgkmcnt(0)")
        for g in range(4):
            a(f"ds_read_b128 {vr(RS+4*g,4)}, v25 offset:{g*32}")
        a(M32(AV, XE, WEV, AV))
        a(f"""
        v_lshlrev_b32 v1, 4, v0
        v_and_b32 v22, 31, v0
        v_cmp_gt_u32 vcc, 28, v22
        v_mov_b32 v14, s{sONE}
        v_mov_b32 v27, 0x3f80
        v_cndmask_b32 v15, 0, -1, vcc
        v_cmp_eq_u32 vcc, 28, v22
        """)
        for i in range(8):
            a(f"v_pk_mul_f32 {vr(AK+2*i,2)}, {vr(AK+2*i,2)}, {vr(28,2)} op_sel_hi:[1,0]")
        a("v_cndmask_b32 v22, 0, v14, vcc")
        for i in range(8):
            a(f"v_cvt_pk_bf16_f32 v{KO+i}, v{AK+2*i}, v{AK+2*i+1}")
            if i == 3:
                a(f"buffer_store_dwordx4 {vr(KO,4)}, v1, {srd(SWS)}, s{sKT} offen sc1")
        a(f"""
        v_cndmask_b32 v{KO+6}, v14, v{KO+6}, s[{sLO}:{sLO+1}]
        v_cndmask_b32 v{KO+7}, v27, v{KO+7}, s[{sLO}:{sLO+1}]
        buffer_store_dwordx4 {vr(KO+4,4)}, v1, {srd(SWS)}, s{sKT} offen offset:1024 sc1
        s_waitcnt lgkmcnt(0)
        """)
        for hf in range(2):
            for i in range(4 * hf, 4 * hf + 4):
                a(f"v_pk_mul_f32 {vr(AV+2*i,2)}, {vr(AV+2*i,2)}, {vr(RS+2*i,2)}")
            for i in range(4 * hf, 4 * hf + 4):
                a(f"v_cvt_pk_bf16_f32 v{VO+i}, v{AV+2*i}, v{AV+2*i+1}")
            for i in range(4 * hf, 4 * hf + 4):
                a(f"v_and_or_b32 v{VO+i}, v{VO+i}, v15, v22")
            a(f"buffer_store_dwordx4 {vr(VO+4*hf,4)}, v1, {srd(SWS)}, s{sKT} offen offset:{2048+1024*hf} sc1")
        a(f"v_lshlrev_b32 v6, 2, v0\nv_add_u32 v6, 4096, v6")
        a("\n".join(self.kv_sum(KO, 7)))
        a(f"buffer_store_dword v7, v6, {srd(SWS)}, s{sKT} offen sc1")
        queue.extend([("st", 0)] * 5)
        self.stamp("kvpub")
        QR = 32
        lq = LQ(a)
        order = list(range(20)) + [24, 20, 21, 22, 23, 25, 26, 27]
        stage_end = {0: 1, 8: 4, 20: 6}

        def qread(n):
            G, p = divmod(order[n], 4)
            if n in stage_end:
                if self.P1S and n:
                    self.stamp(f"q{n}")
                a(f"s_waitcnt vmcnt({newer(('q', stage_end[n]))})\ns_barrier")
            for hlf in range(2):
                lq.op(f"ds_read_b64_tr_b16 {vr(QR+4*(n%8)+2*hlf,2)}, v{10+p} offset:{G*3072+2048+hlf*256}", n)

        PD = 3
        a(f"s_mov_b32 s{sA0}, 0xffff0000")
        for n in range(PD):
            qread(n)
        U = 108
        sub = Gen()
        sub.a(f"""
        v_add_f32 v{RS}, v{RS}, v{RS+1}
        v_add_f32 v{RS+2}, v{RS+2}, v{RS+3}
        v_add_f32 v{RS+4}, v{RS+4}, v{RS+5}
        v_add_f32 v{RS+6}, v{RS+6}, v{RS+7}
        v_add_f32 v{RS}, v{RS}, v{RS+2}
        v_add_f32 v{RS+4}, v{RS+4}, v{RS+6}
        v_add_f32 v{RS}, v{RS}, v{RS+4}
        """)
        sub.neg_split2(WEV, RS, 22)
        fin = [x[1].text for x in sub.a.items]
        for n in range(28):
            lq.wait(n)
            a(M32(AQ, QR + 4 * (n % 8), XF + 4 * order[n], AQ if n else None))
            if n + PD < 28:
                qread(n + PD)
            unp = lambda fr, u, k: f"v_lshlrev_b32 v{u+2*k}, 16, v{fr+k}\nv_and_b32 v{u+2*k+1}, s{sA0}, v{fr+k}"
            add = lambda u, k: f"v_add_f32 v{20+k%2}, v{20+k%2}, v{u+k}"
            if n < 20:
                p = n % 4
                fr = QR + 4 * ((n - p) % 8)
                if p < 2:
                    a(unp(fr, U, 2 * p) + "\n" + unp(fr, U, 2 * p + 1))
                else:
                    for k in range(4 * (p - 2), 4 * (p - 2) + 4):
                        a(add(U, k))
            elif n in (20, 21):
                for k in range(4):
                    a(unp(QR + 4 * (n % 8), U + 8 * (n - 20), k))
            elif n == 22:
                for k in range(16):
                    a(add(U, k))
                a("v_add_f32 v20, v20, v21")
                lq.op("ds_write_b32 v24, v20 offset:2048", "cs")
            elif n == 23:
                a(f"v_mul_f32 v28, {hex(fbits(LOG2E*28**-0.5))}, v28")
                lq.wait("cs")
                a("s_barrier")
                lq.op(f"ds_read_b128 {vr(RS,4)}, v23 offset:2048", "r")
                lq.op(f"ds_read_b128 {vr(RS+4,4)}, v23 offset:2064", "r")
            if n == self.FLAGAT:
                a(f"""
                s_waitcnt vmcnt(0)
                s_mov_b64 exec, 1
                buffer_store_dword v30, v31, {srd(SWS)}, s{sKVO} offen sc1
                s_mov_b64 exec, -1
                """)
            if n == 25:
                lq.wait("r")
                a("\n".join(fin[:6]))
            if n == 26:
                a("\n".join(fin[6:]))
        if self.P1S:
            self.stamp("qmm")
        a(M32(AQ, WEV, XE, AQ))
        if self.EARLY:
            a("\n".join(self.kv_load(1, k) for k in range(5)))
        QO = 80
        for i in range(8):
            a(f"v_pk_mul_f32 {vr(AQ+2*i,2)}, {vr(AQ+2*i,2)}, {vr(28,2)} op_sel_hi:[1,0]")
        for i in range(8):
            a(f"v_cvt_pk_bf16_f32 v{QO+i}, v{AQ+2*i}, v{AQ+2*i+1}")
        a(f"""
        v_cndmask_b32 v{QO+6}, 0, v{QO+6}, s[{sLO}:{sLO+1}]
        v_cndmask_b32 v{QO+7}, 0, v{QO+7}, s[{sLO}:{sLO+1}]
        """)
        S = 32
        a(M32(S, KO, QO))
        a(M32(S, KO + 4, QO + 4, S))
        a(f"ds_write_b128 v127, {vr(QO,4)}")
        a(f"""
        v_and_b32 v2, 15, v0
        v_lshlrev_b32 v2, 2, v2
        s_mov_b32 s{sA2}, 0x00010001
        s_lshl_b32 s{sA2}, s{sA2}, s{sB}
        s_mov_b32 s{sA3}, s{sA2}
        """)
        if self.P1S:
            self.stamp("smm")
        self.rowmax16(S, 22)
        if self.force_fb:
            a("v_add_f32 v22, 0xc3480000, v22")
        self.shift_split(22, 23, 24, 25)
        a(f"""
        v_cndmask_b32 v{QO+6}, v23, v{QO+6}, s[{sLO}:{sLO+1}]
        v_cndmask_b32 v{QO+7}, v24, v{QO+7}, s[{sLO}:{sLO+1}]
        ds_write_b128 v127, {vr(QO+4,4)} offset:1024
        """)
        if self.FLAGAT == 28:
            a(f"""
            s_waitcnt vmcnt({5 if self.EARLY else 0})
            s_mov_b64 exec, 1
            buffer_store_dword v30, v31, {srd(SWS)}, s{sKVO} offen sc1
            s_mov_b64 exec, -1
            """)
        a(f"""
        s_waitcnt lgkmcnt(0)
        s_barrier
        """)
        for p in range(4):
            a(f"ds_read_b128 {vr(128+8*p,4)}, v{124+p}")
            a(f"ds_read_b128 {vr(128+8*p+4,4)}, v{124+p} offset:1024")
        self.stamp("qdone")

    def rowmax16(self, S, d):
        self.a(f"""
        v_max3_f32 v{d}, v{S}, v{S+1}, v{S+2}
        v_max3_f32 v{d+1}, v{S+3}, v{S+4}, v{S+5}
        v_max3_f32 v{d}, v{d}, v{S+6}, v{S+7}
        v_max3_f32 v{d+1}, v{d+1}, v{S+8}, v{S+9}
        v_max3_f32 v{d}, v{d}, v{S+10}, v{S+11}
        v_max3_f32 v{d+1}, v{d+1}, v{S+12}, v{S+13}
        v_max3_f32 v{d}, v{d}, v{S+14}, v{S+15}
        v_max_f32 v{d}, v{d}, v{d+1}
        v_mov_b32 v{d+1}, v{d}
        v_permlane32_swap_b32 v{d}, v{d+1}
        v_max_f32 v{d}, v{d}, v{d+1}
        """)

    def shift_split(self, m, d6, d7, t):
        self.a(f"""
        v_cvt_pk_bf16_f32 v{d6}, -v{m}, -v{m}
        v_and_b32 v{d6}, 0xffff0000, v{d6}
        v_sub_f32_e64 v{d7}, -v{m}, v{d6}
        v_cvt_pk_bf16_f32 v{t}, v{d7}, v{d7}
        v_and_b32 v{t}, 0xffff0000, v{t}
        v_sub_f32 v{d7}, v{d7}, v{t}
        v_cvt_pk_bf16_f32 v{d6}, v{d6}, v{t}
        v_cvt_pk_bf16_f32 v{d7}, v{d7}, 0
        """)

    Q, O, SA, SB, TT, P = 128, 160, 32, 48, 64, 72
    KVB = (240, 224, 80, 96)
    XR2, W2, S4 = 240, 120, 112
    VTG = 116

    def unit(self, i, qt, extra):
        a = self.a
        Q, O, TT, P, B = self.Q, self.O, self.TT, self.P, self.KVB
        n = 4 * i + qt
        buf, bufn, bufp = B[i % 4], B[(i + 1) % 4], B[(i - 1) % 4]
        Sc, Sn = (self.SA, self.SB) if n % 2 == 0 else (self.SB, self.SA)
        kn = buf if qt < 3 else bufn
        qn, qp = (qt + 1) % 4, (qt - 1) % 4
        vp = (buf if qt > 0 else bufp) + 8
        ms = [M32(Sn, kn, Q + 8 * qn), M32(O + 16 * qp, vp + 4, P + 4, O + 16 * qp),
              M32(Sn, kn + 4, Q + 8 * qn + 4, Sn),
              M32(O + 16 * qt, buf + 8, P, None if i == 0 else O + 16 * qt)]
        for g in range(4):
            for x in extra.get(("pre", g), ()):
                a(x)
            if not (n == 0 and g == 1) and not (n == 63 and g in (0, 2)):
                a(ms[g])
            for x in extra.get(g, ()):
                a(x)
            tb, tp, pp = TT + 4 * (g % 2), TT + 4 * ((g + 1) % 2), P + 2 * ((g - 1) % 4)
            a(f"v_exp_f32 v{tb}, v{Sc+4*g}")
            a(f"v_exp_f32 v{tb+1}, v{Sc+4*g+1}")
            if not (n == 0 and g == 0):
                a(f"v_cvt_pk_bf16_f32 v{pp}, v{tp}, v{tp+1}")
                a(f"v_cvt_pk_bf16_f32 v{pp+1}, v{tp+2}, v{tp+3}")
            a(f"v_exp_f32 v{tb+2}, v{Sc+4*g+2}")
            a(f"v_exp_f32 v{tb+3}, v{Sc+4*g+3}")

    def kv_sum(self, buf, d):
        return [f"v_add3_u32 v{d}, v{buf+2*k}, v{buf+2*k+1}, v{d if k else 30}" for k in range(8)]

    def kv_load(self, i, part, buf=None):
        buf = self.KVB[i % 4] if buf is None else buf
        if part == 4:
            return f"buffer_load_dword v{14+i%4}, v6, {srd(SWS)}, s{sKT+i} offen sc1"
        return f"buffer_load_dwordx4 {vr(buf+4*part,4)}, v1, {srd(SWS)}, s{sKT+i} offen offset:{1024*part} sc1"

    NV = 3
    EARLY = 1
    POLLQ = 2

    def attention(self):
        a = self.a
        Q, O, P, TT, B = self.Q, self.O, self.P, self.TT, self.KVB
        NV = self.NV
        queue = []

        def newer(tag):
            k = max(i for i, t in enumerate(queue) if t == tag)
            return len(queue) - 1 - k

        def ld(i, part):
            queue.append((i, part))
            return self.kv_load(i, part)

        def other(text):
            if text.startswith("buffer_"):
                queue.append("o")
            return text

        first = [ld(1, k) for k in range(5)]
        if self.FLAGAT == 28 and self.EARLY:
            queue.append("f")
        if not self.EARLY:
            a("L_att:")
            a("\n".join(first))
        else:
            a("L_att:")
        a("s_waitcnt lgkmcnt(4)")
        a(M32(self.SA, B[0], Q))
        a(M32(self.SA, B[0] + 4, Q + 4, self.SA))
        self.retry = []

        def check(t):
            self.retry.append(t)
            return [f"s_waitcnt vmcnt({newer((t, 4))})", f"L_kvc{t}:"] + self.kv_sum(B[t % 4], 7) + \
                [f"v_cmp_ne_u32 vcc, v7, v{14+t%4}", f"s_cbranch_vccnz L_kvr{t}", f"L_kvd{t}:"]

        late = {}
        self.first_waits = True
        late[(12, 1)] = lines(f"""
        v_and_b32 v22, 31, v0
        v_lshrrev_b32 v23, 5, v0
        v_lshlrev_b32 v23, 3, v23
        v_mul_u32_u24 v22, 896, v22""")
        late[(12, 2)] = lines(f"""
        v_add_u32 v22, v22, v23
        s_mul_i32 s{sT1}, s{sW}, 56
        s_add_u32 s{sT0}, s{sROW}, s{sT1}
        s_mul_i32 s{sT2}, s{sC}, 224
        s_add_u32 s{sT1}, s{sT1}, s{sT2}""")
        xl = [f"buffer_load_dwordx2 {vr(self.XR2+2*g,2)}, v22, {srd(SX)}, s{sT0} offen offset:{16*g}" for g in range(4)]
        wl = [f"buffer_load_dwordx2 {vr(self.W2+2*g,2)}, v23, {srd(SWR)}, s{sT1} offen offset:{16*g}" for g in range(4)]
        late[(13, 0)] = wl[:1]
        late[(13, 1)] = wl[1:2] + xl[:1]
        late[(13, 2)] = wl[2:3] + xl[1:2]
        late[(13, 3)] = wl[3:] + xl[2:3]
        late[(14, 0)] = xl[3:] + lines(f"""
        s_lshl_b32 s{sA4}, s{sW}, 8
        s_add_u32 s{sA4}, s{sA4}, {WS_CLF}
        v_lshlrev_b32 v5, 2, v0""")
        late[(14, 1)] = [f"buffer_load_dword v4, v5, {srd(SWS)}, s{sA4} offen sc1"]
        cb = []
        for p in range(3):
            cb += lines(f"""
            s_add_u32 s{sT0}, s{sW}, {p+1}
            s_and_b32 s{sT0}, s{sT0}, 3
            s_mul_i32 s{sT0}, s{sT0}, 12288
            s_add_u32 s{sT0}, s{sT0}, {L_CB+p*4096}
            v_add_u32 v{10+p}, s{sT0}, v1""")
        cb += lines(f"""
        s_mul_i32 s{sT0}, s{sW}, 12288
        s_add_u32 s{sT0}, s{sT0}, {L_CB}
        v_add_u32 v13, s{sT0}, v1
        v_mov_b32 v8, {hex(fbits(2.0**100))}""")
        late[(14, 2)], late[(14, 3)], late[(15, 0)] = cb[:7], cb[7:13], cb[13:]
        wr = lambda p, k: f"ds_write_b128 v{10+p}, {vr(O+16*p+4*k,4)} offset:{k*1024}"
        for i in range(16):
            for qt in range(4):
                ex = {}
                if i == 0 and qt == 1:
                    ex[("pre", 0)] = ["s_waitcnt lgkmcnt(0)"]
                pre0 = ex.get(("pre", 0), [])
                if qt == 3 and i < 15:
                    pre0 = pre0 + (check(i + 1) if i + 1 <= NV else [f"s_waitcnt vmcnt({newer((i + 1, 3))})"])
                if i == NV - 2 and qt == 0:
                    pre0 = pre0 + lines(f"""
                    s_waitcnt vmcnt({newer("p")})
                    L_kvpoll:
                    v_cmp_ne_u32 vcc, s{sNON}, v3
                    s_andn2_b64 vcc, vcc, s[{sA2}:{sA3}]
                    s_cbranch_vccnz L_kvpr
                    L_kvok:""")
                ex[("pre", 0)] = pre0
                if i == NV - 3 and qt == self.POLLQ:
                    ex[1] = [f"buffer_load_dword v3, v2, {srd(SWS)}, s{sKVF} offen sc1"]
                    queue.append("p")
                if i == 0:
                    t = 2 + qt // 2
                    lds_ = [ld(t, k) for k in ((0, 1) if qt % 2 == 0 else (2, 3, 4))]
                    ex[2], ex[3] = lds_[:-1], lds_[-1:]
                else:
                    ex[0] = [other(x) for x in late.get((i, qt), [])]
                    if i + 3 <= 15:
                        ex[2] = [ld(i + 3, qt)]
                        if qt == 3 and i + 3 <= NV:
                            ex[3] = [ld(i + 3, 4)]
                if i == 15:
                    if qt == 1:
                        ex[3] = [wr(0, 0)]
                    if qt == 2:
                        ex[0], ex[1], ex[2], ex[3] = [wr(0, 1)], [wr(0, 2)], [wr(0, 3)], [wr(1, 0)]
                    if qt == 3:
                        ex[0], ex[1], ex[2], ex[3] = [wr(1, 1)], [wr(1, 2)], [wr(1, 3)], [wr(2, 0)]
                self.unit(i, qt, ex)
                if i == 0 and qt == 3:
                    self.stamp("kvok")
                if i == 0 and qt == 3:
                    a("s_barrier")
                if self.ATS and qt == 3 and i in (0, 1, 2, 4, 6, 8, 10, 12, 14):
                    self.stamp(f"t{i}")
        a(f"""
        v_cvt_pk_bf16_f32 v{P+6}, v{TT+4}, v{TT+5}
        v_cvt_pk_bf16_f32 v{P+7}, v{TT+6}, v{TT+7}
        v_add_f32 v9, v{O+12}, v{O+16+12}
        v_add_f32 v9, v9, v{O+32+12}
        """)
        a(M32(O + 48, B[3] + 12, P + 4, O + 48))
        a(wr(2, 1))
        a(wr(2, 2))
        a(wr(2, 3))
        self.stamp("attn")

    def combine(self):
        a = self.a
        O = self.O
        a(f"""
        L_clpoll:
        s_waitcnt vmcnt(0)
        v_cmp_ne_u32 vcc, s{sNON}, v4
        s_cbranch_vccz L_clok
        """)
        self.spin_guard("L_clok")
        a(f"""
        buffer_load_dword v4, v5, {srd(SWS)}, s{sA4} offen sc1
        s_branch L_clpoll
        L_clok:
        v_add_f32 v9, v9, v{O+48+12}
        v_cmp_nlt_f32 vcc, v9, v8
        s_andn2_b64 vcc, vcc, s[{sLO}:{sLO+1}]
        s_cbranch_vccnz L_bad
        L_badok:
        """)
        a(f"""
        s_waitcnt lgkmcnt(0)
        s_barrier
        """)
        if self.LOC:
            a(f"""
            s_and_b32 s{sT0}, s2, 0xe7
            s_lshl_b32 s{sT0}, s{sT0}, 2
            s_add_u32 s{sT0}, s{sT0}, {WS_XID}
            v_and_b32 v26, 3, v0
            v_lshlrev_b32 v26, 5, v26
            buffer_load_dword v28, v26, {srd(SWS)}, s{sT0} offen sc1
            """)
        order = (3, 0, 1, 2)
        for k in order:
            for p in range(3):
                a(f"ds_read_b128 {vr(O+16*p+4*k,4)}, v13 offset:{p*4096+k*1024}")
        R = O + 48
        for c, k in enumerate(order):
            a(f"s_waitcnt lgkmcnt({9-3*c})")
            for i in range(2):
                r = 4 * k + 2 * i
                a(f"v_pk_add_f32 {vr(R+r,2)}, {vr(R+r,2)}, {vr(O+r,2)}")
                a(f"v_pk_add_f32 {vr(O+16+r,2)}, {vr(O+16+r,2)}, {vr(O+32+r,2)}")
            for i in range(2):
                r = 4 * k + 2 * i
                a(f"v_pk_add_f32 {vr(R+r,2)}, {vr(R+r,2)}, {vr(O+16+r,2)}")
            if c == 0:
                a(f"""
                v_mov_b32 v8, v{R+12}
                v_mov_b32 v9, v{R+12}
                v_readlane_b32 s{sT0}, v{R+13}, 32
                v_permlane32_swap_b32 v8, v9
                s_cmp_eq_u32 s{sT0}, 0
                s_cbranch_scc1 L_noredo
                s_cmp_eq_u32 s{sPASS}, 0
                s_cbranch_scc1 L_redo
                L_noredo:
                v_rcp_f32 v8, v9
                """)
        OP = 32
        for hf in range(2):
            for i in range(4 * hf, 4 * hf + 4):
                a(f"v_pk_mul_f32 {vr(R+2*i,2)}, {vr(R+2*i,2)}, {vr(8,2)} op_sel_hi:[1,0]")
            for i in range(4 * hf, 4 * hf + 4):
                a(f"v_cvt_pk_bf16_f32 v{OP+i}, v{R+2*i}, v{R+2*i+1}")
            if hf:
                a(f"""
                v_cndmask_b32 v{OP+6}, 0, v{OP+6}, s[{sLO}:{sLO+1}]
                v_cndmask_b32 v{OP+7}, 0, v{OP+7}, s[{sLO}:{sLO+1}]
                """)
            a(f"buffer_store_dwordx4 {vr(OP+4*hf,4)}, v1, {srd(SWS)}, s99 offen offset:{1024*hf} sc1")
        a(f"""
        s_or_b32 s{sT0}, s2, s{sW}
        s_cmp_lg_u32 s{sT0}, 0
        s_cbranch_scc1 L_noepoch
        s_mov_b64 exec, 1
        buffer_store_dword v30, v31, {srd(SWS)}, 0 offen sc1
        s_mov_b64 exec, -1
        L_noepoch:
        """)
        self.stamp("opub")

    def helper_head(self):
        a = self.a
        if self.PT:
            a(f"""
            v_and_b32 v22, 31, v0
            v_mul_u32_u24 v22, 896, v22
            v_lshrrev_b32 v23, 5, v0
            v_lshl_add_u32 v2, v23, 7, v22
            s_lshl_b32 s{sA0}, s{sA5}, 5
            s_add_u32 s{sA0}, s{sA0}, s{sI}
            s_mul_i32 s{sA0}, s{sA0}, {32*896}
            v_mul_u32_u24 v22, 10923, v0
            v_lshrrev_b32 v22, 16, v22
            v_mul_u32_u24 v23, 6, v22
            v_sub_u32 v23, v0, v23
            v_min_u32 v22, 9, v22
            v_mul_u32_u24 v22, 2688, v22
            v_lshl_add_u32 v3, v23, 7, v22
            v_cmp_lt_u32 vcc, 2, v23
            v_add_u32 v4, {896-384}, v3
            v_cndmask_b32 v3, v3, v4, vcc
            v_mul_u32_u24 v22, 21846, v0
            v_lshrrev_b32 v22, 16, v22
            v_mul_u32_u24 v23, 3, v22
            v_sub_u32 v23, v0, v23
            v_min_u32 v22, 13, v22
            v_mul_u32_u24 v22, 2688, v22
            v_lshl_add_u32 v4, v23, 7, v22
            s_mul_i32 s{sT0}, s{sA4}, 224
            s_and_b32 s{sT0}, s{sT0}, -128
            s_mul_i32 s{sA1}, s{sI}, {10*2688}
            s_add_u32 s{sA1}, s{sA1}, s{sT0}
            s_add_u32 s{sA1}, s{sA1}, {128*2688+896}
            s_mul_i32 s{sA2}, s{sI}, {14*2688}
            s_add_u32 s{sA2}, s{sA2}, s{sT0}
            s_mov_b32 s{SX+2}, {2048*896}
            s_mov_b32 s{SX+3}, 0x20000
            s_mov_b32 s{SWQ+2}, {448*2688}
            s_mov_b32 s{SWQ+3}, 0x20000
            s_waitcnt lgkmcnt(0)
            s_mov_b32 s{SX}, s64
            s_mov_b32 s{SX+1}, s65
            s_mov_b32 s{SWQ}, s66
            s_mov_b32 s{SWQ+1}, s67
            {f"s_sleep {self.PT-1}" if self.PT > 1 else ""}
            buffer_load_dword v10, v2, {srd(SX)}, s{sA0} offen offset:256
            buffer_load_dword v11, v3, {srd(SWQ)}, s{sA1} offen
            buffer_load_dword v12, v2, {srd(SX)}, s{sA0} offen offset:512
            s_mov_b32 exec_hi, 0
            buffer_load_dword v13, v2, {srd(SX)}, s{sA0} offen offset:768
            s_mov_b32 exec_hi, -1
            buffer_load_dword v14, v4, {srd(SWQ)}, s{sA2} offen
            """)
        a("s_waitcnt lgkmcnt(0)")
        self.common_setup()
        self.a(f"""
        s_waitcnt lgkmcnt(0)
        s_mul_i32 s{sNON}, s{sNON}, 0x19660d
        s_add_u32 s{sNON}, s{sNON}, 0x3c6ef35f
        v_mov_b32 v30, s{sNON}
        """)
        return 0

    def helper(self, nbar):
        a = self.a
        a("L_helper:")
        done = self.helper_head()
        nbar -= done
        if self.CPF:
            a(f"""
            s_getpc_b64 s[52:53]
            L_pc:
            s_sub_u32 s52, s52, L_pc-{NAME}
            s_subb_u32 s53, s53, 0
            s_mul_i32 s{sT0}, s{sI}, {self.CPF*128}
            v_min_u32 v25, {self.CPF-1}, v0
            v_lshl_add_u32 v25, v25, 7, s{sT0}
            v_min_u32 v25, L_last-{NAME}, v25
            """)
        a(f"""
        v_lshlrev_b32 v1, 4, v0
        v_mov_b32 v4, -1
        v_mov_b32 v5, -1
        v_mov_b32 v6, -1
        v_mov_b32 v7, -1
        v_mov_b32 v31, 0
        v_lshrrev_b32 v22, 4, v0
        v_lshrrev_b32 v23, 2, v0
        v_sub_u32 v23, v23, v22
        v_and_b32 v23, 3, v23
        v_mul_u32_u24 v23, 56, v23
        v_mul_u32_u24 v22, 896, v22
        v_add_u32 v22, v22, v23
        v_and_b32 v23, 3, v0
        v_lshlrev_b32 v23, 4, v23
        v_min_u32 v23, 40, v23
        v_add_u32 v2, v22, v23
        v_lshlrev_b32 v3, 7, v0
        """)
        a(f"""
        v_mul_u32_u24 v22, 4682, v0
        v_lshrrev_b32 v22, 16, v22
        v_mul_u32_u24 v27, 14, v22
        v_sub_u32 v23, v0, v27
        v_mul_u32_u24 v27, 896, v22
        v_lshl_add_u32 v8, v23, 4, v27
        v_lshrrev_b32 v22, 2, v0
        v_min_u32 v22, 13, v22
        v_mul_u32_u24 v22, 3584, v22
        v_and_b32 v23, 3, v0
        v_lshl_add_u32 v22, v23, 7, v22
        s_mul_i32 s{sA0}, s{sXCD}, {7*32*896}
        s_mul_i32 s{sT1}, s{sI}, {49*128}
        s_add_u32 s{sA0}, s{sA0}, s{sT1}
        s_mul_i32 s{sA1}, s{sI}, {14*3584}
        s_mul_i32 s{sT1}, s{sXCD}, 448
        s_and_b32 s{sT1}, s{sT1}, -128
        s_add_u32 s{sA1}, s{sA1}, s{sT1}
        s_lshr_b32 s{sA2}, s{sI}, 2
        s_mul_i32 s{sA2}, s{sA2}, {self.WOROT}
        s_lshr_b32 s{sA2}, s{sA2}, 1
        s_mul_i32 s{sA4}, s{sC}, 224
        s_mul_i32 s{sA5}, s{sI}, {self.TSTAG}
        s_lshr_b32 s{sA5}, s{sA5}, 3
        s_add_u32 s{sA5}, s{sA5}, {self.TOFF}
        s_lshl_b32 s{sT0}, s{sB}, 6
        s_add_u32 s{sT0}, s{sT0}, s{sH}
        s_lshl_b32 s{sT0}, s{sT0}, 11
        s_add_u32 s64, s{sT0}, {WS_OF}
        s_add_u32 s65, s64, 32768
        s_add_u32 s66, s65, 32768
        s_add_u32 s67, s66, 32768
        s_lshl_b32 s{sT0}, s{sT}, 2
        s_add_u32 s{sT0}, s{sT0}, s{sC}
        s_lshl_b32 s{sT0}, s{sT0}, 9
        s_add_u32 s72, s{sT0}, {WS_STATS}
        s_lshl_b32 s{sT1}, s{sT}, 7
        s_add_u32 s73, s{sT1}, {WS_KEYS}
        s_cmp_eq_u32 s{sC}, 0
        s_cselect_b32 s73, s73, {OOB}
        s_mul_i32 s{sT0}, s{sF}, 14336
        s_add_u32 s74, s{sT0}, {WS_Y}
        s_add_u32 s75, s74, 4096
        s_add_u32 s76, s75, 4096
        s_add_u32 s77, s76, 4096
        s_lshl_b32 s{sT0}, s2, 2
        s_add_u32 s78, s{sT0}, {WS_CLF}
        """)
        for w in range(4):
            self.cand_base(68 + w, w)
        for nb in range(nbar):
            if self.KVT and nb == self.KVT - 1:
                a(f"""
                s_lshl_b32 s{sT0}, s{sH}, 4
                s_add_u32 s{sT0}, s{sT0}, s{sB}
                s_mul_i32 s{sT0}, s{sT0}, {4*KVS}
                s_add_u32 s{sT0}, s{sT0}, {WS_KV}
                buffer_load_dword v27, v3, {srd(SWS)}, s{sT0} offen sc1
                s_add_u32 s{sT0}, s{sT0}, 8192
                buffer_load_dword v27, v3, {srd(SWS)}, s{sT0} offen sc1
                s_add_u32 s{sT0}, s{sT0}, 8192
                s_mov_b64 exec, 0xff
                buffer_load_dword v27, v3, {srd(SWS)}, s{sT0} offen sc1
                s_mov_b64 exec, -1
                """.replace("buffer_load_dword v27", "buffer_atomic_add v31" if self.KVA else "buffer_load_dword v27"))
            if self.CPF and nb == self.CPB:
                a("global_load_dword v26, v25, s[52:53]")
            a("s_barrier")
        st = lambda v, so, off=0: f"buffer_store_dwordx4 v[4:7], v{v}, {srd(SWS)}, s{so} offen offset:{off} sc1"
        cl = [[st(1, 64 + w, 1024 * k)] for w in range(4) for k in range(2)]
        cl += [["s_mov_b32 exec_hi, 0xffffff", st(8, 68 + w), "s_mov_b32 exec_hi, -1"] for w in range(4)]
        cl += [["s_mov_b32 exec_hi, 0", st(1, 72), "s_mov_b64 exec, 3", st(1, 73), "s_mov_b64 exec, -1"]]
        if self.LOC:
            cl += [[f"s_getreg_b32 s{sT0}, hwreg(HW_REG_XCC_ID)", f"v_mov_b32 v21, s{sT0}", "s_mov_b64 exec, 1",
                    f"buffer_store_dword v21, v31, {srd(SWS)}, s78 offen offset:{WS_XID-WS_CLF} sc1", "s_mov_b64 exec, -1"]]
        ycl = [st(1, 74 + k // 4, 1024 * (k % 4)) for k in range(14)]
        if self.NOCL:
            cl, ycl = [], []
        for n in range(28):
            a(f"""
            s_mul_i32 s{sWOS}, s{sA2}, {16*896}
            s_add_u32 s{sWOS}, s{sWOS}, s{sA4}
            s_lshl_b32 s{sWOM}, s{sA2}, 12
            """)
            for k in range(4):
                a(f"""
                s_add_u32 m0, s{sWOM}, {1024*k}
                s_add_u32 s{sT0}, s{sWOS}, {4*896*k}
                buffer_load_dwordx4 v2, {srd(SWO)}, s{sT0} offen lds
                """)
            if cl:
                a("\n".join(cl.pop(0)))
            if ycl:
                a(f"s_cmp_lt_i32 s{sF}, 0\ns_cbranch_scc1 L_h_y{n}\n{ycl.pop(0)}\nL_h_y{n}:")
            if self.TOUCH:
                a(f"""
                s_cmp_lg_u32 s{sA5}, {n}
                s_cbranch_scc1 L_h_t{n}
                buffer_load_dword v20, v3, {srd(SWD)}, s{sA0} offen
                buffer_load_dword v20, v22, {srd(SWG)}, s{sA1} offen
                buffer_load_dword v20, v22, {srd(SWU)}, s{sA1} offen
                L_h_t{n}:
                """)
            a(f"""
            s_waitcnt vmcnt({self.WOQ})
            s_add_u32 s{sA2}, s{sA2}, 1
            s_cmp_eq_u32 s{sA2}, 28
            s_cselect_b32 s{sA2}, 0, s{sA2}
            """)
            if n == 13 + -(-self.WOQ // 4):
                a(f"""
                s_mov_b64 exec, 1
                buffer_store_dword v30, v31, {srd(SWS)}, s78 offen sc1
                s_mov_b64 exec, -1
                """)
        a(f"""
        s_waitcnt vmcnt(0)
        s_cmp_lt_i32 s{sF}, 0
        s_cbranch_scc1 L_h_end
        v_lshrrev_b32 v22, 2, v0
        v_mul_u32_u24 v22, 3584, v22
        v_and_b32 v23, 3, v0
        v_lshl_add_u32 v22, v23, 4, v22
        v_lshlrev_b32 v23, 12, v23
        v_add_u32 v23, {L_CB+3072+32*16+4}, v23
        s_lshl_b32 s{sA0}, s{sF}, 6
        s_mul_i32 s{sA1}, s{sF}, {32*896}
        """)
        if self.FREG:
            for j in range(28):
                a(f"""
                s_add_u32 s{sT2}, s{sA0}, {j*16*3584}
                buffer_load_dwordx4 {vr(32+8*j,4)}, v22, {srd(SWG)}, s{sT2} offen
                buffer_load_dwordx4 {vr(36+8*j,4)}, v22, {srd(SWU)}, s{sT2} offen
                """)
        a(f"""
        L_h_comb:
        s_barrier
        ds_read_b32 v24, v23
        s_waitcnt lgkmcnt(0)
        v_cmp_ne_u32 vcc, 0, v24
        s_cbranch_vccz L_h_go
        s_cmp_lg_u32 s{sPASS}, 0
        s_cbranch_scc1 L_h_go
        s_mov_b32 s{sPASS}, 1
        s_barrier
        s_barrier
        s_barrier
        s_barrier
        s_branch L_h_comb
        L_h_go:
        s_barrier
        s_barrier
        s_barrier
        """)
        wd = [f"""
            s_mov_b32 m0, {L_WD+r*928}
            s_add_u32 s{sT2}, s{sA1}, {r*896}
            s_mov_b32 exec_hi, 0xffffff
            buffer_load_dwordx4 v1, {srd(SWD)}, s{sT2} offen lds
            s_mov_b32 exec_hi, -1
            """ for r in range(32)]
        if self.FREG:
            a("s_waitcnt vmcnt(0)")
            for j in range(28):
                a(wd.pop(0))
                a(f"ds_write_b128 v1, {vr(32+8*j,4)} offset:{L_WG+j*1024}")
                a(f"ds_write_b128 v1, {vr(36+8*j,4)} offset:{L_WU+j*1024}")
        else:
            for j in range(28):
                a(f"""
                s_mov_b32 m0, {L_WG+j*1024}
                s_add_u32 s{sT2}, s{sA0}, {j*16*3584}
                buffer_load_dwordx4 v22, {srd(SWG)}, s{sT2} offen lds
                s_mov_b32 m0, {L_WU+j*1024}
                buffer_load_dwordx4 v22, {srd(SWU)}, s{sT2} offen lds
                """)
        for x in wd:
            a(x)
        a("s_waitcnt lgkmcnt(0)")
        a("s_waitcnt vmcnt(0)\nL_h_end:\nL_last:\ns_endpgm")

    WOROT = 7
    TSTAG = 7
    TOFF = 0
    FREG = 1
    KVT = 0
    KVA = 0
    LIN = 0
    LINP = 0
    PT = 0
    CPS = 1
    CPF = 11
    CPB = 1
    KVC = -1
    KVCN = 16
    WSB = 0
    NOCL = 0
    NOWO = 0
    TOUCH = 1
    HD1 = 0
    HD2 = 0
    HD3 = 0
    WOQ = 8

    def redo(self):
        a = self.a
        Q, B, S = self.Q, self.KVB, self.SA
        a(f"""
        L_bad:
        v_mov_b32 v8, 1.0
        v_cndmask_b32 v{self.O+48+13}, v8, v{self.O+48+13}, s[{sLO}:{sLO+1}]
        s_mov_b32 exec_lo, 0
        ds_write_b32 v10, v8 offset:3076
        ds_write_b32 v11, v8 offset:3076
        ds_write_b32 v12, v8 offset:3076
        s_mov_b32 exec_lo, -1
        s_branch L_badok
        """)
        for t in self.retry:
            a(f"L_kvr{t}:")
            self.spin_guard(f"L_kvd{t}")
            a("\n".join(self.kv_load(t, k) for k in range(5)))
            a(f"s_waitcnt vmcnt(0)\ns_branch L_kvc{t}")
        a("L_kvpr:")
        self.spin_guard("L_kvok")
        a(f"""
        buffer_load_dword v3, v2, {srd(SWS)}, s{sKVF} offen sc1
        s_waitcnt vmcnt(0)
        s_branch L_kvpoll
        """)
        MX = 8
        a(f"""
        L_redo:
        s_mov_b32 s{sPASS}, 1
        s_waitcnt vmcnt(0) lgkmcnt(0)
        s_barrier
        s_mov_b32 s{sA5}, 16
        s_lshl_b32 s{sT2}, s{sH}, 6
        s_add_u32 s{sT2}, s{sT2}, s{sW}
        s_mul_i32 s{sT2}, s{sT2}, {KVS}
        s_add_u32 s{sT2}, s{sT2}, {WS_KV}
        """)
        for p in range(4):
            a(f"v_mov_b32 v{MX+p}, 0xff800000")
        a(f"""
        L_redo_loop:
        buffer_load_dwordx4 {vr(B[1],4)}, v1, {srd(SWS)}, s{sT2} offen sc1
        buffer_load_dwordx4 {vr(B[1]+4,4)}, v1, {srd(SWS)}, s{sT2} offen offset:1024 sc1
        s_add_u32 s{sT2}, s{sT2}, {4*KVS}
        s_waitcnt vmcnt(0)
        """)
        for p in range(4):
            a(M32(S, B[1], Q + 8 * p))
            a(M32(S, B[1] + 4, Q + 8 * p + 4, S))
            self.rowmax16(S, 22)
            a(f"v_max_f32 v{MX+p}, v{MX+p}, v22")
        a(f"""
        s_sub_u32 s{sA5}, s{sA5}, 1
        s_cmp_lg_u32 s{sA5}, 0
        s_cbranch_scc1 L_redo_loop
        """)
        for p in range(4):
            a(f"""
            s_add_u32 s{sT0}, s{sW}, {p+1}
            s_and_b32 s{sT0}, s{sT0}, 3
            s_lshl_b32 s{sT0}, s{sT0}, 10
            s_add_u32 s{sT0}, s{sT0}, {L_CB}
            v_lshl_add_u32 v{12+p}, v0, 2, s{sT0}
            s_lshl_b32 s{sT1}, s{sW}, 8
            v_add_u32 v16, s{sT1}, v{12+p}
            ds_write_b32 v16, v{MX+p}
            """)
        a("s_waitcnt lgkmcnt(0)\ns_barrier")
        for p in range(4):
            for k in range(4):
                a(f"ds_read_b32 v{16+k}, v{12+p} offset:{k*256}")
            q6, q7 = Q + 8 * p + 6, Q + 8 * p + 7
            a(f"""
            s_waitcnt lgkmcnt(0)
            v_max3_f32 v16, v16, v17, v18
            v_max_f32 v16, v16, v19
            v_lshlrev_b32 v17, 16, v{q6}
            v_and_b32 v18, 0xffff0000, v{q6}
            v_lshlrev_b32 v19, 16, v{q7}
            v_add_f32 v18, v18, v19
            v_add_f32 v17, v17, v18
            v_sub_f32 v22, v16, v17
            """)
            self.shift_split(22, 23, 24, 25)
            a(f"""
            v_cndmask_b32 v{q6}, v23, v{q6}, s[{sLO}:{sLO+1}]
            v_cndmask_b32 v{q7}, v24, v{q7}, s[{sLO}:{sLO+1}]
            """)
        for part in range(4):
            a(self.kv_load(0, part))
        if self.EARLY:
            a("\n".join(self.kv_load(1, k) for k in range(5)))
        a(f"""
        s_waitcnt vmcnt(0)
        s_barrier
        s_branch L_att
        """)

    def finish(self):
        a = self.a
        a("L_fin:")
        if self.amp:
            a(f"""
            s_cmp_lg_u32 s2, {self.ampg}
            s_cbranch_scc1 L_end
            s_cmp_lg_u32 s{sW}, 0
            s_cbranch_scc1 L_end
            s_sub_u32 s84, s84, s100
            s_min_u32 s84, s84, 20000
            s_lshl_b32 s84, s84, 3
            s_memrealtime s[100:101]
            s_waitcnt lgkmcnt(0)
            L_amp:
            s_memrealtime s[82:83]
            s_waitcnt lgkmcnt(0)
            s_sub_u32 s82, s82, s100
            s_cmp_lt_u32 s82, s84
            s_cbranch_scc1 L_amp
            """)
        if self.ts:
            a(f"""
            s_lshl_b32 s{sT0}, s2, 2
            s_add_u32 s{sT0}, s{sT0}, s{sW}
            s_lshl_b32 s{sT0}, s{sT0}, 8
            s_add_u32 s{sT0}, s{sT0}, {WS_TS}
            s_mov_b64 exec, -1
            v_lshlrev_b32 v2, 2, v0
            buffer_store_dword {self.TSV}, v2, {srd(SWS)}, s{sT0} offen
            """)
        a("L_end:\ns_endpgm")

    def tail(self):
        pass

    def build(self):
        self.prologue()
        self.p1()
        nbar = sum(1 for k, x in self.a.items if k == "i" and x.op == "s_barrier")
        self.attention()
        self.combine()
        self.tail()
        self.finish()
        self.redo()
        self.helper(nbar + 1)
        npad = self.a.pad()
        body = self.a.text()
        hdr = open(os.path.join(os.path.dirname(os.path.abspath(__file__)), "header.txt")).read()
        out = hdr + f"""; @launch grid=(256,1,1) block=(320,1,1) lds={LDS_BYTES}
.amdgcn_target "amdgcn-amd-amdhsa--gfx950"
.text
.globl {NAME}
.p2align 8
.type {NAME},@function
{NAME}:
{body}
.section .rodata,"a"
.p2align 6
.amdhsa_kernel {NAME}
  .amdhsa_next_free_vgpr 256
  .amdhsa_next_free_sgpr 102
  .amdhsa_accum_offset 256
  .amdhsa_group_segment_fixed_size 0
  .amdhsa_kernarg_size 88
  .amdhsa_user_sgpr_count 2
  .amdhsa_user_sgpr_kernarg_segment_ptr 1
  .amdhsa_system_sgpr_workgroup_id_x 1
  .amdhsa_float_denorm_mode_32 3
.end_amdhsa_kernel
"""
        return out, npad


class Full(Gen):

    def piece_idx(self, i, tok, ch):
        self.a(f"""
        v_add_u32 v{ch}, {64*i}, v0
        v_mul_u32_u24 v{tok}, 4682, v{ch}
        v_lshrrev_b32 v{tok}, 16, v{tok}
        v_mul_u32_u24 v27, 14, v{tok}
        v_sub_u32 v{ch}, v{ch}, v27
        s_lshl_b32 s{sT0}, s{sW}, 3
        v_add_u32 v{tok}, s{sT0}, v{tok}
        """)

    def sentinel_any(self, regs, t):
        a = self.a
        regs = list(regs)
        a(f"v_max3_u32 v{t}, v{regs[0]}, v{regs[1]}, v{regs[2] if len(regs) > 2 else regs[1]}")
        for k in range(3, len(regs), 2):
            a(f"v_max3_u32 v{t}, v{t}, v{regs[k]}, v{regs[min(k+1, len(regs)-1)]}")
        a(f"v_cmp_eq_u32 vcc, -1, v{t}")

    def unpack(self, d, s):
        self.a(f"v_lshlrev_b32 v{d}, 16, v{s}\nv_and_b32 v{d+1}, 0xffff0000, v{s}")

    def tr_write(self, src, arr):
        a = self.a
        for g in range(3):
            a(f"ds_write_b64 v14, {vr(src+2*g,2)} offset:{arr*7680+16*g}")
        a(f"""
        s_mov_b32 exec_hi, 0
        ds_write_b64 v14, {vr(src+6,2)} offset:{arr*7680+48}
        s_mov_b32 exec_hi, -1
        """)

    def cand_write(self, src, off):
        a = self.a
        a(f"s_mov_b64 exec, s[{sM}:{sM+1}]")
        for g in range(3):
            a(f"ds_write_b64 v13, {vr(src+2*g,2)} offset:{off+16*g}")
        a(f"""
        s_mov_b32 exec_hi, 0
        ds_write_b64 v13, {vr(src+6,2)} offset:{off+48}
        s_mov_b64 exec, -1
        """)

    def p3(self):
        a = self.a
        XR2, W2, S4 = self.XR2, self.W2, self.S4
        XC, ACC, OFR, WR = 64, 48, 128, 80
        a(f"""
        v_lshrrev_b32 v23, 5, v0
        v_lshrrev_b32 v25, 2, v0
        v_and_b32 v25, 3, v25
        v_add_u32 v24, s{sW}, v25
        v_and_b32 v24, 3, v24
        v_lshl_add_u32 v25, v23, 2, v25
        v_lshlrev_b32 v25, 8, v25
        v_lshl_add_u32 v25, v24, 6, v25
        v_lshrrev_b32 v26, 4, v0
        v_and_b32 v26, 1, v26
        v_lshl_add_u32 v25, v26, 5, v25
        v_lshrrev_b32 v27, 1, v0
        v_and_b32 v27, v27, v26
        v_and_b32 v26, 3, v0
        v_xor_b32 v26, v26, v27
        v_lshl_add_u32 v25, v26, 3, v25
        v_lshlrev_b32 v23, 11, v23
        """)
        for qr in range(4):
            a(f"""
            s_add_u32 s{sT0}, s{sW}, {qr}
            s_and_b32 s{sT0}, s{sT0}, 3
            s_lshl_b32 s{sT1}, s{sT0}, 13
            s_add_u32 s{sT1}, s{sT1}, {L_CB}
            s_mul_i32 s{sT0}, s{sT0}, 28672
            v_add_u32 v{2+qr}, s{sT1}, v1
            v_add_u32 v{6+qr}, s{sT0}, v25
            v_sub_u32 v{10+qr}, v{6+qr}, v23
            """)
        for k in range(8):
            self.unpack(XC + 2 * k, XR2 + k)
        a(f"""
        v_cndmask_b32 v{W2+6}, 0, v{W2+6}, s[{sLO}:{sLO+1}]
        v_cndmask_b32 v{W2+7}, 0, v{W2+7}, s[{sLO}:{sLO+1}]
        v_mov_b32 v{S4}, 0
        """)
        for k in range(8):
            a(f"v_dot2c_f32_bf16 v{S4}, s{sONE}, v{W2+k}")
        a(f"""
        s_lshl_b32 s{sA0}, s{sT}, 2
        s_add_u32 s{sA0}, s{sA0}, s{sW}
        s_lshl_b32 s{sA0}, s{sA0}, 13
        s_add_u32 s{sA0}, s{sA0}, {WS_OF}
        s_add_u32 s{sA1}, s{sA0}, 4096
        s_lshl_b32 s{sA2}, s{sW}, 13
        s_add_u32 s{sA2}, s{sA2}, {L_CB}
        s_add_u32 s{sA3}, s{sA2}, 4096
        s_waitcnt vmcnt(0)
        """)
        if self.LOC:
            a(f"""
            s_getreg_b32 s{sT0}, hwreg(HW_REG_XCC_ID)
            v_cmp_ne_u32 s[{sLOC}:{sLOC+1}], s{sT0}, v28
            """)
        a("s_barrier")
        self.stamp("oack")
        a("L_odma:")
        for hf in range(2):
            a(f"s_mov_b32 m0, s{sA2+hf}")
            for k in range(4):
                a(f"buffer_load_dwordx4 v1, {srd(SWS)}, s{sA0+hf} offen offset:{1024*k} sc1 lds")
        lq = LQ(a)

        def oread(n):
            lq.op(f"ds_read_b128 {vr(OFR+4*n,4)}, v{2+n//8} offset:{(n%8)*1024}", ("o", n))

        def wread(n):
            qr, hl, j = n // 8, (n % 8) // 2, n % 2
            lq.op(f"ds_read_b64_tr_b16 {vr(WR+4*(n%4),2)}, v{6+qr} offset:{hl*7168+j*4096}", ("w", n))
            lq.op(f"ds_read_b64_tr_b16 {vr(WR+4*(n%4)+2,2)}, v{(10 if j else 6)+qr} offset:{hl*7168+j*4096+2048}", ("w", n))

        for n in range(3):
            wread(n)
        a("s_waitcnt vmcnt(0)")
        self.stamp("odma")
        for n in range(8):
            oread(n)
        onext = 8
        for n in range(32):
            lq.wait(("o", n) if lq.q.index(("o", n)) > max(i for i, t in enumerate(lq.q) if t == ("w", n)) else ("w", n))
            a(M32(ACC, WR + 4 * (n % 4), OFR + 4 * n, ACC if n else XC))
            if n + 3 < 32:
                wread(n + 3)
            if n < 4:
                if n == 0:
                    lq.wait(("o", 1))
                    a(f"v_max3_u32 v22, v{OFR}, v{OFR+1}, v{OFR+2}")
                    a(f"v_max3_u32 v23, v{OFR+3}, v{OFR+4}, v{OFR+5}")
                    a(f"v_max3_u32 v22, v22, v{OFR+6}, v{OFR+7}")
                else:
                    lq.wait(("o", 2 * n + 1))
                    for k in range(4):
                        r = OFR + 8 * n + 2 * k
                        a(f"v_max3_u32 v{22+k%2}, v{22+k%2}, v{r}, v{r+1}")
            if n == 3:
                a(f"""
                v_max_u32 v22, v22, v23
                v_cmp_eq_u32 vcc, -1, v22
                s_cbranch_vccz L_ook
                """)
                self.spin_guard("L_ook")
                a(f"""
                s_waitcnt lgkmcnt(0)
                s_branch {"L_ohint" if self.OL else "L_odma"}
                L_ook:
                s_barrier
                """)
            if n >= 4:
                for _ in range(2):
                    if onext < 32 and onext <= n + 8:
                        oread(onext)
                        onext += 1
        self.stamp("gemm")
        H2 = 32
        a(f"""
        v_and_b32 v22, 31, v0
        v_lshrrev_b32 v23, 5, v0
        v_lshlrev_b32 v23, 3, v23
        v_lshl_add_u32 v17, v22, 4, v23
        s_lshl_b32 s{sT0}, s{sW}, 9
        s_add_u32 s{sT0}, s{sT0}, {L_ST}
        v_add_u32 v18, s{sT0}, v17
        v_add_u32 v19, {L_ST}, v17
        v_mul_u32_u24 v22, 240, v22
        s_mul_i32 s{sT0}, s{sW}, 56
        s_add_u32 s{sT0}, s{sT0}, {L_TR}
        v_add3_u32 v14, v22, v23, s{sT0}
        v_mov_b32 v40, 0
        v_mov_b32 v41, 0
        v_mov_b32 v42, 0
        """)
        for k in range(8):
            a(f"v_cvt_pk_bf16_f32 v{H2+k}, v{ACC+2*k}, v{ACC+2*k+1}")
        a(f"""
        v_cndmask_b32 v{H2+6}, 0, v{H2+6}, s[{sLO}:{sLO+1}]
        v_cndmask_b32 v{H2+7}, 0, v{H2+7}, s[{sLO}:{sLO+1}]
        """)
        for k in range(8):
            a(f"v_dot2c_f32_bf16 v40, s{sONE}, v{H2+k}")
            a(f"v_dot2c_f32_bf16 v42, v{H2+k}, v{H2+k}")
            a(f"v_dot2c_f32_bf16 v41, v{W2+k}, v{H2+k}")
        a(f"""
        v_permlane32_swap_b32 v40, v42
        v_permlane32_swap_b32 v41, v{S4}
        v_add_f32 v40, v40, v42
        v_add_f32 v41, v41, v{S4}
        ds_write_b64 v18, v[40:41]
        s_lshl_b32 s{sA0}, s{sT}, 11
        s_add_u32 s{sA0}, s{sA0}, {WS_STATS}
        s_lshl_b32 s{sT0}, s{sC}, 9
        s_add_u32 s{sA1}, s{sA0}, s{sT0}
        s_lshl_b32 s{sT0}, s{sW}, 3
        s_lshl_b32 s{sT0}, 0xff, s{sT0}
        s_waitcnt lgkmcnt(0)
        s_barrier
        ds_read_b64 v[40:41], v19
        ds_read_b64 v[42:43], v19 offset:512
        ds_read_b64 v[44:45], v19 offset:1024
        ds_read_b64 v[46:47], v19 offset:1536
        s_waitcnt lgkmcnt(2)
        v_pk_add_f32 v[40:41], v[40:41], v[42:43]
        s_waitcnt lgkmcnt(0)
        v_pk_add_f32 v[44:45], v[44:45], v[46:47]
        v_pk_add_f32 v[40:41], v[40:41], v[44:45]
        v_mov_b32 v42, v40
        v_mov_b32 v43, v41
        v_permlane32_swap_b32 v40, v42
        v_permlane32_swap_b32 v41, v43
        s_mov_b32 exec_lo, s{sT0}
        s_mov_b32 exec_hi, 0
        """)
        if self.LOC:
            a(f"""
            s_cmp_eq_u64 s[{sLOC}:{sLOC+1}], 0
            s_cbranch_scc0 L_stfar
            buffer_store_dwordx4 v[40:43], v17, {srd(SWS)}, s{sA1} offen
            s_branch L_stdone
            L_stfar:
            """)
        a(f"""
        buffer_store_dwordx4 v[40:43], v17, {srd(SWS)}, s{sA1} offen sc1
        L_stdone:
        s_mov_b64 exec, -1
        v_and_b32 v22, 31, v0
        v_lshrrev_b32 v23, 5, v0
        v_lshlrev_b32 v23, 10, v23
        v_lshl_add_u32 v17, v22, 4, v23
        """)
        for i in range(2):
            self.piece_idx(i, 22, 23)
            a(f"""
            v_mov_b32 v{20+i}, v22
            v_mul_u32_u24 v27, 896, v22
            v_lshl_add_u32 v{self.VTG+i}, v23, 4, v27
            v_mul_u32_u24 v22, 240, v22
            v_lshl_add_u32 v22, v23, 4, v22
            v_add_u32 v{15+i}, {L_TR}, v22
            """)
        a(f"""
        v_mul_u32_u24 v22, 4682, v0
        v_lshrrev_b32 v22, 16, v22
        v_mul_u32_u24 v27, 14, v22
        v_sub_u32 v23, v0, v27
        v_mul_u32_u24 v27, 896, v22
        v_lshl_add_u32 v19, v23, 4, v27
        v_mul_u32_u24 v22, 240, v22
        v_lshl_add_u32 v22, v23, 4, v22
        s_mul_i32 s{sT0}, s{sW}, 960
        s_add_u32 s{sT0}, s{sT0}, {L_TR+7680}
        v_add_u32 v18, s{sT0}, v22
        """)
        self.cand_base(sA5, sW)
        HF = 64
        for k in range(8):
            self.unpack(HF + 2 * k, H2 + k)
        a("s_waitcnt vmcnt(0)")
        self.stamp("hack")
        a("L_stpoll:")
        for c in range(2):
            a(f"buffer_load_dwordx4 {vr(40+4*c,4)}, v17, {srd(SWS)}, s{sA0} offen offset:{512*c} sc1")
        a("s_waitcnt vmcnt(0)")
        self.sentinel_any(range(40, 48), 22)
        a("s_cbranch_vccz L_stok")
        self.spin_guard("L_stok")
        a("s_branch L_stpoll\nL_stok:")
        self.stamp("stok")
        a(f"""
        v_pk_add_f32 v[40:41], v[40:41], v[44:45]
        v_pk_add_f32 v[42:43], v[42:43], v[46:47]
        v_permlane32_swap_b32 v40, v42
        v_permlane32_swap_b32 v41, v43
        v_pk_add_f32 v[40:41], v[40:41], v[42:43]
        v_mov_b32 v42, v40
        v_mov_b32 v43, v41
        v_permlane32_swap_b32 v40, v42
        v_permlane32_swap_b32 v41, v43
        """)
        self.ln_scalars(40, 42, 44, 46, 22, 23)
        KEY = 47
        a(f"""
        v_fma_f32 v41, -v44, v43, v41
        v_mul_f32 v41, v41, v46
        v_cvt_pk_bf16_f32 v41, v41, v41
        v_ashrrev_i32 v22, 31, v41
        v_or_b32 v22, 0x80000000, v22
        v_xor_b32 v41, v41, v22
        v_and_b32 v41, 0xffff0000, v41
        v_lshrrev_b32 v41, 1, v41
        v_and_b32 v22, 31, v0
        s_lshl_b32 s{sT0}, s{sT}, 5
        s_sub_u32 s{sT0}, 2047, s{sT0}
        v_sub_u32 v22, s{sT0}, v22
        v_or_b32 v{KEY}, v41, v22
        v_mov_b32 v48, v{KEY}
        v_mov_b32 v49, v{KEY}
        v_permlane16_swap_b32 v48, v49
        v_cndmask_b32 v48, v49, v48, s[{sLO}:{sLO+1}]
        v_sub_u32 v80, v48, v{KEY}
        """)
        for n in range(1, 16):
            a(f"v_sub_u32_dpp v{80+n}, v48, v{KEY} row_ror:{n} row_mask:0xf bank_mask:0xf bound_ctrl:0".replace(" bound_ctrl:0", " bound_ctrl:1"))
        a("v_lshrrev_b32 v48, 31, v80\nv_lshrrev_b32 v49, 31, v81")
        for n in range(2, 16):
            a(f"v_alignbit_b32 v{48+n%2}, v{48+n%2}, v{80+n}, 31")
        a(f"""
        v_bcnt_u32_b32 v48, v48, 0
        v_bcnt_u32_b32 v48, v49, v48
        v_mov_b32 v49, v48
        v_permlane32_swap_b32 v48, v49
        v_add_u32 v48, v48, v49
        v_sub_u32 v48, 31, v48
        v_cmp_gt_u32 s[{sM}:{sM+1}], 8, v48
        v_lshlrev_b32 v49, 2, v48
        s_or_b32 s{sT0}, s{sW}, s{sC}
        s_cmp_lg_u32 s{sT0}, 0
        s_cbranch_scc1 L_norank
        ds_permute_b32 v49, v49, v{KEY}
        s_lshl_b32 s{sT0}, s{sT}, 7
        s_add_u32 s{sT0}, s{sT0}, {WS_KEYS}
        v_lshlrev_b32 v22, 2, v0
        s_mov_b64 exec, 0xff
        s_waitcnt lgkmcnt(0)
        buffer_store_dword v49, v22, {srd(SWS)}, s{sT0} offen sc1
        s_mov_b64 exec, -1
        L_norank:
        v_and_b32 v22, 31, v0
        v_sub_u32 v22, v48, v22
        v_mul_i32_i24 v22, 240, v22
        v_add_u32 v13, v14, v22
        """)
        self.cand_write(H2, 7680 + 1920)
        for k in range(8):
            self.unpack(HF + 2 * k, H2 + k) if False else None
        D, HN2, OUT2 = 80, 48, 56
        for k in range(8):
            a(f"v_pk_add_f32 {vr(D+2*k,2)}, {vr(HF+2*k,2)}, v[44:45] op_sel_hi:[1,0] neg_lo:[0,1] neg_hi:[0,1]")
        for k in range(8):
            a(f"v_cvt_pk_bf16_f32 v{HN2+k}, v{D+2*k}, v{D+2*k+1}")
        for k in range(8):
            self.unpack(D + 2 * k, HN2 + k)
        for k in range(8):
            a(f"v_pk_mul_f32 {vr(D+2*k,2)}, {vr(D+2*k,2)}, v[46:47] op_sel_hi:[1,0]")
        for k in range(8):
            a(f"v_cvt_pk_bf16_f32 v{HN2+k}, v{D+2*k}, v{D+2*k+1}")
        self.cand_write(HN2, 7680)
        a(f"""
        s_waitcnt lgkmcnt(0)
        s_barrier
        ds_read_b128 v[40:43], v18
        """)
        for k in range(8):
            self.unpack(D + 2 * k, HN2 + k)
        a(f"""
        s_mov_b32 exec_hi, 0xffffff
        s_waitcnt lgkmcnt(0)
        buffer_store_dwordx4 v[40:43], v19, {srd(SWS)}, s{sA5} offen sc1
        s_mov_b32 exec_hi, -1
        """)
        for k in range(8):
            a(f"v_pk_add_f32 {vr(D+2*k,2)}, {vr(D+2*k,2)}, {vr(HF+2*k,2)}")
        for k in range(8):
            a(f"v_cvt_pk_bf16_f32 v{OUT2+k}, v{D+2*k}, v{D+2*k+1}")
        self.tr_write(OUT2, 0)
        self.KEY = KEY

    def ffn_weights(self):
        a = self.a
        a(f"""
        s_cmp_lt_i32 s{sF}, 0
        s_cbranch_scc1 L_noffw
        v_lshrrev_b32 v22, 2, v0
        v_mul_u32_u24 v22, 3584, v22
        v_and_b32 v23, 3, v0
        v_lshl_add_u32 v22, v23, 4, v22
        s_mul_i32 s{sT0}, s{sW}, {7*16*3584}
        s_lshl_b32 s{sT1}, s{sF}, 6
        s_add_u32 s{sT0}, s{sT0}, s{sT1}
        s_mul_i32 s{sT1}, s{sW}, 7168
        """)
        for j in range(7):
            a(f"""
            s_add_u32 m0, s{sT1}, {L_WG+j*1024}
            s_add_u32 s{sT2}, s{sT0}, {j*16*3584}
            buffer_load_dwordx4 v22, {srd(SWG)}, s{sT2} offen lds
            s_add_u32 m0, s{sT1}, {L_WU+j*1024}
            buffer_load_dwordx4 v22, {srd(SWU)}, s{sT2} offen lds
            """)
        a(f"""
        s_lshl_b32 s{sT0}, s{sF}, 2
        s_add_u32 s{sT0}, s{sT0}, s{sW}
        s_mul_i32 s{sT0}, s{sT0}, {8*896}
        s_mul_i32 s{sT1}, s{sW}, {8*928}
        s_mov_b32 exec_hi, 0xffffff
        """)
        for r in range(8):
            a(f"""
            s_add_u32 m0, s{sT1}, {L_WD+r*928}
            s_add_u32 s{sT2}, s{sT0}, {r*896}
            buffer_load_dwordx4 v1, {srd(SWD)}, s{sT2} offen lds
            """)
        a("s_mov_b32 exec_hi, -1\nL_noffw:")

    def bisect(self, levels, tag):
        a = self.a
        L = 32
        lo, hi, mid = sA0, sA1, sTH
        a(f"""
        s_mov_b32 s{lo}, 0
        s_mov_b32 s{hi}, 0x80000000
        L_bis{tag}:
        s_add_u32 s{mid}, s{lo}, s{hi}
        s_lshr_b32 s{mid}, s{mid}, 1
        """)
        for j in range(levels):
            a(f"v_cmp_le_u32 s[{64+2*j}:{65+2*j}], s{mid}, v{L+j}")
        a(f"s_bcnt1_i32_b64 s{sA2}, s[64:65]")
        for j in range(1, levels):
            a(f"s_bcnt1_i32_b64 s{sA3}, s[{64+2*j}:{65+2*j}]\ns_add_u32 s{sA2}, s{sA2}, s{sA3}")
        a(f"""
        s_cmp_eq_u32 s{sA2}, 8
        s_cbranch_scc1 L_bisdone{tag}
        s_cmp_eq_u32 s{mid}, s{lo}
        s_cbranch_scc1 L_bisdone{tag}
        s_cmp_gt_u32 s{sA2}, 8
        s_cselect_b32 s{lo}, s{mid}, s{lo}
        s_cselect_b32 s{hi}, s{hi}, s{mid}
        s_branch L_bis{tag}
        L_bisdone{tag}:
        """)

    def extract(self, levels):
        a = self.a
        a(f"s_mov_b32 s{sA2}, 0")
        for j in range(levels):
            m = 64 + 2 * j
            a(f"""
            v_mbcnt_lo_u32_b32 v22, s{m}, 0
            v_mbcnt_hi_u32_b32 v22, s{m+1}, v22
            v_add_u32 v22, s{sA2}, v22
            v_min_u32 v22, 7, v22
            v_lshl_add_u32 v22, v22, 3, s{sA4}
            v_add_u32 v23, {j}, v3
            s_mov_b64 exec, s[{m}:{m+1}]
            ds_write2_b32 v22, v{32+j}, v23 offset1:1
            s_mov_b64 exec, -1
            """)
            if j + 1 < levels:
                a(f"s_bcnt1_i32_b64 s{sA3}, s[{m}:{m+1}]\ns_add_u32 s{sA2}, s{sA2}, s{sA3}")

    AF, BF, WD = 128, 192, 64

    def ffn_pre(self):
        a = self.a
        a(f"""
        v_lshrrev_b32 v8, 4, v0
        v_lshrrev_b32 v9, 2, v0
        v_and_b32 v9, 3, v9
        v_and_b32 v10, 3, v0
        v_lshlrev_b32 v10, 3, v10
        v_lshl_add_u32 v11, v8, 3, v9
        v_lshl_add_u32 v11, v11, 6, v10
        s_lshr_b32 s{sT0}, s{sW}, 1
        s_mul_i32 s{sT0}, s{sT0}, 28672
        s_and_b32 s{sT1}, s{sW}, 1
        s_lshl_b32 s{sT1}, s{sT1}, 5
        s_add_u32 s{sT0}, s{sT0}, s{sT1}
        v_add_u32 v11, s{sT0}, v11
        v_lshl_add_u32 v12, v8, 2, v9
        v_mul_u32_u24 v12, 928, v12
        s_mul_i32 s{sT0}, s{sW}, 224
        s_add_u32 s{sT0}, s{sT0}, {L_WD}
        v_add3_u32 v12, v12, v10, s{sT0}
        """)
        for s_ in range(14):
            a(f"ds_read_b64_tr_b16 {vr(self.AF+4*s_,2)}, v11 offset:{s_*2048}")
            a(f"ds_read_b64_tr_b16 {vr(self.AF+4*s_+2,2)}, v11 offset:{s_*2048+256}")
        a(f"""
        s_lshl_b32 s{sT0}, s{sW}, 4
        s_add_u32 s{sT0}, s{sT0}, s{sA4}
        v_mov_b32 v11, s{sT0}
        v_min_u32 v10, 55, v0
        v_lshlrev_b32 v10, 4, v10
        s_mul_i32 s{sT0}, s{sW}, 2112
        s_add_u32 s{sT0}, s{sT0}, {L_G}
        v_add_u32 v6, s{sT0}, v10
        """)

    def ffn_pre2(self):
        a = self.a
        for i in range(7):
            a(f"ds_read_b64_tr_b16 {vr(self.WD+4*i,2)}, v12 offset:{i*32}")
            a(f"ds_read_b64_tr_b16 {vr(self.WD+4*i+2,2)}, v12 offset:{i*32+16*928}")
        a(f"""
        v_lshrrev_b32 v8, 4, v0
        v_and_b32 v9, 7, v0
        v_mul_u32_u24 v13, 1056, v9
        v_lshl_add_u32 v13, v8, 4, v13
        v_add_u32 v13, {L_G}, v13
        v_lshlrev_b32 v9, 4, v9
        v_lshl_add_u32 v9, v8, 7, v9
        v_and_b32 v8, 8, v0
        v_lshl_add_u32 v9, v8, 6, v9
        v_lshlrev_b32 v8, 4, v0
        v_add_u32 v8, {L_AX}, v8
        s_lshl_b32 s{sT0}, s{sW}, 10
        v_add_u32 v7, s{sT0}, v8
        s_mul_i32 s{sT0}, s{sF}, 14336
        s_mul_i32 s{sT1}, s{sW}, 3584
        s_add_u32 s{sT0}, s{sT0}, s{sT1}
        s_add_u32 s99, s{sT0}, {WS_Y}
        """)

    def topk(self):
        a = self.a
        ld = f"""
        buffer_load_dwordx4 v[32:35], v2, {srd(SWS)}, s{sA1} offen sc1
        buffer_load_dwordx4 v[36:39], v2, {srd(SWS)}, s{sA1} offen offset:16 sc1
        """
        a(f"""
        v_lshlrev_b32 v2, 7, v0
        s_mov_b32 s{sA1}, {WS_KEYS}
        s_lshl_b32 s{sA4}, s{sW}, 6
        s_add_u32 s{sA4}, s{sA4}, {L_SEL}
        v_lshlrev_b32 v3, 3, v0
        s_waitcnt lgkmcnt(0)
        s_barrier
        s_cmp_lt_i32 s{sF}, 0
        s_cbranch_scc1 L_kwait
        """)
        if self.FPRE:
            self.ffn_pre()
            a(ld)
        else:
            a(ld)
            self.ffn_pre()
        a(f"""
        s_branch L_kchk
        L_kwait:
        s_waitcnt vmcnt(0)
        s_cmp_lt_i32 s{sU}, 0
        s_cbranch_scc1 L_klate
        s_cmp_eq_u32 s{sW}, 0
        s_cbranch_scc0 L_klate
        {f"s_sleep {self.KS1}" if self.KS1 else ""}
        s_branch L_kpoll
        L_klate:
        {f"s_sleep {self.KS2}" if self.KS2 else ""}
        L_kpoll:
        {ld}
        L_kchk:
        s_waitcnt vmcnt(0)
        """)
        self.sentinel_any(range(32, 40), 22)
        a("s_cbranch_vccz L_kok")
        self.spin_guard("L_kok")
        a("s_branch L_kpoll\nL_kok:")
        self.stamp("kok")
        lo, hi, mid = sA0, sA1, sTH
        a(f"""
        v_max_u32_dpp v22, v32, v32 row_ror:1 row_mask:0xf bank_mask:0xf bound_ctrl:1
        v_max_u32_dpp v22, v22, v22 row_ror:2 row_mask:0xf bank_mask:0xf bound_ctrl:1
        v_max_u32_dpp v22, v22, v22 row_ror:4 row_mask:0xf bank_mask:0xf bound_ctrl:1
        v_max_u32_dpp v23, v22, v22 row_ror:8 row_mask:0xf bank_mask:0xf bound_ctrl:1
        v_min_u32_dpp v22, v22, v22 row_ror:8 row_mask:0xf bank_mask:0xf bound_ctrl:1
        v_readlane_b32 s64, v23, 0
        v_readlane_b32 s65, v23, 16
        v_readlane_b32 s66, v23, 32
        v_readlane_b32 s67, v23, 48
        v_readlane_b32 s68, v22, 0
        v_readlane_b32 s69, v22, 16
        v_readlane_b32 s70, v22, 32
        v_readlane_b32 s71, v22, 48
        s_max_u32 s64, s64, s65
        s_max_u32 s66, s66, s67
        s_min_u32 s68, s68, s69
        s_min_u32 s70, s70, s71
        s_max_u32 s{hi}, s64, s66
        s_min_u32 s{lo}, s68, s70
        s_min_u32 s{hi}, s{hi}, 0x7fffffff
        s_min_u32 s{lo}, s{lo}, s{hi}
        s_sub_u32 s{lo}, s{lo}, 1
        s_max_i32 s{lo}, s{lo}, 0
        L_bisa:
        """)
        for k in range(self.BIS):
            a(f"""
            s_add_u32 s{mid}, s{lo}, s{hi}
            s_lshr_b32 s{mid}, s{mid}, 1
            v_cmp_lt_u32 s[64:65], s{mid}, v32
            v_cmp_lt_u32 s[66:67], s{mid}, v33
            s_bcnt1_i32_b64 s{sA2}, s[64:65]
            s_bcnt1_i32_b64 s{sA3}, s[66:67]
            s_add_u32 s{sA2}, s{sA2}, s{sA3}
            s_cmp_eq_u32 s{sA2}, 8
            s_cbranch_scc1 L_bisdonea
            s_cmp_gt_u32 s{sA2}, 8
            s_cselect_b32 s{lo}, s{mid}, s{lo}
            s_cselect_b32 s{hi}, s{hi}, s{mid}
            """)
        a(f"""
        s_sub_u32 s{sA2}, s{hi}, s{lo}
        s_cmp_gt_u32 s{sA2}, 1
        s_cbranch_scc1 L_bisa
        s_branch L_topslow
        L_bisdonea:
        v_cmp_lt_u32 vcc, s{mid}, v34
        s_add_u32 s{mid}, s{mid}, 1
        s_cbranch_vccnz L_topslow
        """)
        self.extract(2)
        a(f"L_topdone:\nv_cmp_le_u32 s[80:81], s{sTH}, v{self.KEY}\ns_waitcnt lgkmcnt(0)")
        self.stamp("topk")

    BIS = 6
    LOC = 1
    OUTP = ''
    KS1 = 12
    KS2 = 40
    YL = 1
    YS = 0
    OL = 0
    FPRE = 0

    def topk_slow(self):
        if self.OL:
            self.a(f"""
            L_ohint:
            v_and_b32 v22, 3, v0
            v_lshlrev_b32 v22, 11, v22
            v_add_u32 v22, 2044, v22
            L_ohint2:
            buffer_load_dword v23, v22, {srd(SWS)}, s{sA0} offen sc1
            s_waitcnt vmcnt(0)
            v_cmp_eq_u32 vcc, -1, v23
            s_cbranch_vccz L_odma
            """)
            self.spin_guard("L_odma")
            self.a("s_branch L_ohint2")
        self.a("L_topslow:")
        self.bisect(8, "b")
        self.extract(8)
        self.a("s_branch L_topdone")

    def key_token(self, d, k):
        self.a(f"v_and_b32 v{d}, 0x7ff, v{k}\nv_sub_u32 v{d}, 2047, v{d}")

    def ffn(self):
        a = self.a
        a(f"""
        s_cmp_lt_i32 s{sF}, 0
        s_cbranch_scc1 L_noffn
        ds_read2_b32 v[4:5], v11 offset0:1 offset1:3
        s_mov_b32 s{sA0}, {WS_HN}
        s_movk_i32 s{sA1}, 896
        s_waitcnt lgkmcnt(0)
        v_and_b32 v4, 511, v4
        v_and_b32 v5, 511, v5
        v_mad_u32_u24 v4, v4, s{sA1}, v10
        v_mad_u32_u24 v5, v5, s{sA1}, v10
        L_gpoll:
        buffer_load_dwordx4 v[32:35], v4, {srd(SWS)}, s{sA0} offen sc1
        buffer_load_dwordx4 v[36:39], v5, {srd(SWS)}, s{sA0} offen sc1
        """)
        self.ffn_pre2()
        a(f"""
        s_waitcnt vmcnt(1)
        ds_write_b128 v6, v[32:35]
        v_max3_u32 v22, v32, v33, v34
        s_waitcnt vmcnt(0)
        ds_write_b128 v6, v[36:39] offset:1056
        v_max3_u32 v22, v22, v35, v36
        v_max3_u32 v22, v22, v37, v38
        v_max_u32 v22, v22, v39
        v_cmp_eq_u32 vcc, -1, v22
        s_cbranch_vccz L_gok
        """)
        self.spin_guard("L_gok")
        a(f"""
        s_branch L_gpoll
        L_gok:
        """)
        self.stamp("gath")
        a("s_waitcnt lgkmcnt(0)\ns_barrier")
        lq = LQ(a)
        AF, BF, WD, D = self.AF, self.BF, self.WD, 40
        for s_ in range(14):
            lq.op(f"ds_read_b128 {vr(BF+4*s_,4)}, v13 offset:{s_*64}", s_)
        for s_ in range(14):
            if s_ % 2 == 0:
                lq.wait(s_ + 1)
            a(M16(D + 4 * (s_ % 2), AF + 4 * s_, BF + 4 * s_, D + 4 * (s_ % 2) if s_ > 1 else None))
        for k in range(4):
            a(f"v_add_f32 v{D+k}, v{D+k}, v{D+4+k}")
        a(f"""
        v_cvt_pk_bf16_f32 v44, v{D}, v{D+1}
        v_cvt_pk_bf16_f32 v45, v{D+2}, v{D+3}
        s_cmp_ge_u32 s{sW}, 2
        s_cbranch_scc1 L_nosilu
        """)
        self.unpack(48, 44)
        self.unpack(50, 45)
        for k in range(4):
            a(f"v_mul_f32 v{52+k}, {hex(fbits(-LOG2E))}, v{48+k}")
        for k in range(4):
            a(f"v_exp_f32 v{52+k}, v{52+k}")
        for k in range(4):
            a(f"v_add_f32 v{52+k}, 1.0, v{52+k}")
        for k in range(4):
            a(f"v_rcp_f32 v{52+k}, v{52+k}")
        for k in range(4):
            a(f"v_mul_f32 v{48+k}, v{48+k}, v{52+k}")
        a(f"""
        v_cvt_pk_bf16_f32 v44, v48, v49
        v_cvt_pk_bf16_f32 v45, v50, v51
        L_nosilu:
        v_lshlrev_b32 v40, 16, v44
        v_and_b32 v41, 0xffff0000, v44
        v_lshlrev_b32 v42, 16, v45
        v_and_b32 v43, 0xffff0000, v45
        ds_write_b128 v7, v[40:43]
        s_waitcnt lgkmcnt(0)
        s_barrier
        ds_read_b128 v[48:51], v8
        ds_read_b128 v[56:59], v8 offset:2048
        ds_read_b128 v[52:55], v8 offset:1024
        ds_read_b128 v[60:63], v8 offset:3072
        s_waitcnt lgkmcnt(2)
        v_pk_mul_f32 v[48:49], v[48:49], v[56:57]
        v_pk_mul_f32 v[50:51], v[50:51], v[58:59]
        s_waitcnt lgkmcnt(0)
        v_pk_mul_f32 v[52:53], v[52:53], v[60:61]
        v_pk_mul_f32 v[54:55], v[54:55], v[62:63]
        """)
        for k in range(4):
            a(f"v_cvt_pk_bf16_f32 v{44+k}, v{48+2*k}, v{49+2*k}")
        for i in range(7):
            a(M16(128 + 4 * i, WD + 4 * i, 44))
        a("s_mov_b32 vcc_lo, 0xff00ff00\ns_mov_b32 vcc_hi, 0xff00ff00")
        for i in range(0, 6, 2):
            for k in range(4):
                a(f"v_cndmask_b32 v{128+4*i+k}, v{128+4*i+k}, v{132+4*i+k}, vcc")
            a(f"buffer_store_dwordx4 {vr(128+4*i,4)}, v9, {srd(SWS)}, s99 offen offset:{512*i} sc1")
        a("s_mov_b32 exec_lo, 0x00ff00ff\ns_mov_b32 exec_hi, 0x00ff00ff")
        a(f"buffer_store_dwordx4 v[152:155], v9, {srd(SWS)}, s99 offen offset:3072 sc1")
        a("s_mov_b64 exec, -1")
        self.stamp("ypub")
        a("L_noffn:")

    def out_rows(self):
        a = self.a
        a(f"""
        ds_read_b128 v[48:51], v15
        ds_read_b128 v[52:55], v16
        v_lshrrev_b32_e64 v22, v20, s80
        v_lshrrev_b32_e64 v23, v21, s80
        v_and_b32 v22, 1, v22
        v_and_b32 v23, 1, v23
        v_cmp_eq_u32 s[{sM}:{sM+1}], 0, v22
        v_cmp_eq_u32 vcc, 0, v23
        s_waitcnt lgkmcnt(0)
        s_mov_b64 exec, s[{sM}:{sM+1}]
        s_cbranch_execz L_out1
        buffer_store_dwordx4 v[48:51], v{self.VTG}, {srd(SOUT)}, s{sROW} offen{self.OUTP}
        L_out1:
        s_and_b32 vcc_hi, vcc_hi, 0xffff
        s_mov_b64 exec, vcc
        s_cbranch_execz L_out2
        buffer_store_dwordx4 v[52:55], v{self.VTG+1}, {srd(SOUT)}, s{sROW} offen{self.OUTP}
        L_out2:
        s_mov_b64 exec, -1
        """)

    def reducer(self):
        a = self.a
        a(f"""
        s_cmp_lt_i32 s{sU}, 0
        s_cbranch_scc1 L_fin
        s_cmp_lg_u32 s{sW}, 0
        s_cbranch_scc1 L_fin
        v_and_b32 v2, 7, v0
        v_lshl_add_u32 v3, v2, 3, s{sA4}
        ds_read_b64 v[12:13], v3
        v_lshrrev_b32 v5, 3, v0
        v_mul_u32_u24 v5, 14336, v5
        v_lshl_add_u32 v5, v2, 4, v5
        v_lshrrev_b32 v6, 4, v0
        s_lshl_b32 s{sT0}, s{sU}, 3
        v_lshl_add_u32 v6, v6, 1, s{sT0}
        s_movk_i32 s{sA1}, 896
        s_mov_b32 s{sA2}, {WS_HH}
        s_mov_b32 s{sA3}, {WS_HN}
        s_lshl_b32 s{sA0}, s{sU}, 7
        s_add_u32 s{sA0}, s{sA0}, {WS_Y}
        s_waitcnt lgkmcnt(0)
        """)
        self.key_token(7, 12)
        a(f"""
        v_and_b32 v13, 511, v13
        v_mad_u32_u24 v13, v13, s{sA1}, v6
        v_mad_u32_u24 v6, v7, s{sA1}, v6
        L_rpoll:
        buffer_load_ushort v8, v13, {srd(SWS)}, s{sA2} offen sc1
        buffer_load_ushort v9, v13, {srd(SWS)}, s{sA3} offen sc1
        v_lshlrev_b32 v10, 1, v12
        v_and_b32 v10, 0xffff0000, v10
        v_ashrrev_i32 v11, 31, v10
        v_not_b32 v11, v11
        v_or_b32 v11, 0x80000000, v11
        v_xor_b32 v10, v10, v11
        v_and_b32 v10, 0xffff0000, v10
        v_mul_f32 v10, {hex(fbits(-LOG2E))}, v10
        v_exp_f32 v10, v10
        v_add_f32 v10, 1.0, v10
        v_rcp_f32 v10, v10
        v_cvt_pk_bf16_f32 v10, v10, v10
        v_and_b32 v10, 0xffff0000, v10
        s_waitcnt vmcnt(0)
        v_max_u32 v11, v8, v9
        v_cmp_eq_u32 vcc, 0xffff, v11
        s_cbranch_vccz L_rok
        """)
        self.spin_guard("L_rok")
        a(f"""
        s_branch L_rpoll
        L_rok:
        v_lshlrev_b32 v8, 16, v8
        v_lshlrev_b32 v9, 16, v9
        """)
        self.stamp("rpre")
        if self.YS:
            a(f"s_sleep {self.YS}")
        if self.YL:
            a(f"""
            s_cmp_ge_u32 s{sU}, 56
            s_cselect_b32 s{sT0}, 56, 0
            s_sub_u32 s{sT0}, s{sU}, s{sT0}
            s_mul_i32 s{sT0}, s{sT0}, 14336
            s_add_u32 s{sA1}, s{sA0}, s{sT0}
            L_yhint:
            buffer_load_dword v32, v31, {srd(SWS)}, s{sA1} offen sc1
            s_waitcnt vmcnt(0)
            v_cmp_eq_u32 vcc, -1, v32
            s_cbranch_vccz L_ypoll
            """)
            self.spin_guard("L_ypoll")
            a(f"s_sleep {self.YL}\ns_branch L_yhint")
        a("L_ypoll:")
        for i in range(7):
            a(f"""
            s_add_u32 s{sT0}, s{sA0}, {i*8*14336}
            buffer_load_dwordx4 {vr(32+4*i,4)}, v5, {srd(SWS)}, s{sT0} offen sc1
            """)
        a("s_waitcnt vmcnt(0)")
        self.sentinel_any(range(32, 60), 22)
        a("s_cbranch_vccz L_yok")
        self.spin_guard("L_yok")
        a("s_branch L_ypoll\nL_yok:")
        self.stamp("yok")
        for (x, y) in ((32, 36), (40, 44), (48, 52), (32, 40), (48, 56), (32, 48)):
            a(f"v_pk_add_f32 {vr(x,2)}, {vr(x,2)}, {vr(y,2)}\nv_pk_add_f32 {vr(x+2,2)}, {vr(x+2,2)}, {vr(y+2,2)}")
        for k in range(4):
            a(f"v_add_f32_dpp v{36+k}, v{32+k}, v{32+k} row_ror:8 row_mask:0xf bank_mask:0xf bound_ctrl:1")
        a(f"""
        v_permlane16_swap_b32 v36, v37
        v_permlane16_swap_b32 v38, v39
        v_add_f32 v36, v36, v37
        v_add_f32 v38, v38, v39
        v_permlane32_swap_b32 v36, v38
        v_add_f32 v36, v36, v38
        v_cvt_pk_bf16_f32 v36, v36, v36
        v_and_b32 v36, 0xffff0000, v36
        v_mul_f32 v36, v36, v10
        v_cvt_pk_bf16_f32 v36, v36, v36
        v_and_b32 v36, 0xffff0000, v36
        v_add_f32 v36, v36, v9
        v_cvt_pk_bf16_f32 v36, v36, v36
        v_and_b32 v36, 0xffff0000, v36
        v_add_f32 v36, v36, v8
        v_cvt_pk_bf16_f32 v36, v36, v36
        s_mov_b32 exec_lo, 0x00ff00ff
        s_mov_b32 exec_hi, 0x00ff00ff
        buffer_store_short v36, v6, {srd(SOUT)}, 0 offen{self.OUTP}
        s_mov_b64 exec, -1
        """)
        self.stamp("rend")

    def tail(self):
        self.p3()
        self.topk()
        self.ffn()
        self.out_rows()
        self.reducer()

    def redo(self):
        self.topk_slow()
        super().redo()


if __name__ == "__main__":
    g = Full()
    s, n = g.build()
    sys.stdout.write(s)
    print("pads:", n, file=sys.stderr)
```

```python
from gen import *
import gen as base

WS_WFL = 0x6000
WS_CS = 0x8000
WS_WF = 0xD00000
HEADB = 86016
L_WQ = 57344
NPROD = 147


class Rep(Full):
    PB = 6
    PSL = 4
    CPS = 0

    def prologue(self):
        a = self.a
        a(f"""
        s_cmp_ge_u32 s2, 256
        s_cbranch_scc1 L_end
        """)
        self.stamp("entry")
        a(f"""
        s_load_dwordx16 s[64:79], s[0:1], 0
        s_load_dwordx4 s[80:83], s[0:1], 64
        s_load_dwordx2 s[84:85], s[0:1], 80
        v_lshrrev_b32 v1, 6, v0
        v_and_b32 v0, 63, v0
        s_and_b32 s{sXCD}, s2, 7
        s_lshr_b32 s{sI}, s2, 3
        v_readfirstlane_b32 s{sW}, v1
        s_lshr_b32 s{sA4}, s{sXCD}, 1
        s_and_b32 s{sA5}, s{sXCD}, 1
        s_and_b32 s{sC}, s{sI}, 3
        s_lshr_b32 s{sT2}, s{sI}, 2
        s_lshl_b32 s{sB}, s{sA5}, 3
        s_add_u32 s{sB}, s{sB}, s{sT2}
        s_lshl_b32 s{sH}, s{sA4}, 2
        s_add_u32 s{sH}, s{sH}, s{sC}
        s_cmp_eq_u32 s{sW}, 4
        s_cbranch_scc1 L_helper
        v_lshrrev_b32 v22, 3, v0
        v_mul_u32_u24 v22, 896, v22
        v_lshrrev_b32 v23, 4, v0
        v_and_b32 v24, 7, v0
        v_xor_b32 v23, v23, v24
        v_lshl_add_u32 v1, v23, 4, v22
        v_xor_b32 v23, 4, v23
        v_lshl_add_u32 v2, v23, 4, v22
        v_add_u32 v2, {7168-1024}, v2
        v_add_u32 v3, {2*(7168-1024)}, v1
        v_add_u32 v4, {2*(7168-1024)}, v2
        s_lshl_b32 s{sXO}, s{sB}, 2
        s_add_u32 s{sXO}, s{sXO}, s{sW}
        s_mul_i32 s{sXO}, s{sXO}, {32*896}
        s_lshl_b32 s{sA2}, s{sW}, 14
        s_add_u32 s{sA2}, s{sA2}, {L_XR}
        s_mov_b32 s{SX+2}, {2048*896}
        s_mov_b32 s{SX+3}, 0x20000
        """)
        if self.ROT > 1:
            a(f"s_and_b32 s{sKG}, s{sC}, {self.ROT-1}\ns_mul_i32 s{sKG}, s{sKG}, {self.ROTS}")
        else:
            a(f"s_mov_b32 s{sKG}, 0")
        for G in range(1, 7):
            a(f"""
            s_add_u32 s{sKG+G}, s{sKG+G-1}, 1
            s_cmp_eq_u32 s{sKG+G}, 7
            s_cselect_b32 s{sKG+G}, 0, s{sKG+G}
            """)
        a(f"""
        s_waitcnt lgkmcnt(0)
        s_mov_b32 s{SX}, s64
        s_mov_b32 s{SX+1}, s65
        """)
        a("\n".join(self.dma_x(0) + self.dma_x(1)))
        self.common_setup()
        a(f"""
        v_and_b32 v22, 31, v0
        v_lshrrev_b32 v23, 5, v0
        v_lshrrev_b32 v24, 1, v22
        v_and_b32 v24, 7, v24
        v_xor_b32 v24, v24, v23
        v_lshlrev_b32 v21, 7, v22
        v_add_u32 v21, s{sA2}, v21
        v_lshl_add_u32 v6, v24, 4, v21
        v_xor_b32 v7, 32, v6
        v_xor_b32 v8, 64, v6
        v_xor_b32 v9, 96, v6
        v_lshlrev_b32 v10, 4, v0
        v_add_u32 v11, {L_WQ}, v10
        v_min_u32 v22, 27, v22
        s_mul_i32 s{sT0}, s{sH}, 28
        v_add_u32 v22, s{sT0}, v22
        v_lshrrev_b32 v21, 5, v22
        v_mul_u32_u24 v21, 7, v21
        v_lshl_add_u32 v21, v23, 2, v21
        v_and_b32 v22, 31, v22
        v_lshlrev_b32 v22, 2, v22
        v_lshl_add_u32 v12, v21, 7, v22
        """)
        for r in (14, 15, 16, 17, 31):
            a(f"v_mov_b32 v{r}, 0")
        a("\n".join(self.dma_x(2) + self.dma_x(3)))
        for p in range(4):
            a(f"""
            s_add_u32 s{sT0}, s{sW}, {p+1}
            s_and_b32 s{sT0}, s{sT0}, 3
            s_lshl_b32 s{sT0}, s{sT0}, 11
            s_add_u32 s{sT0}, s{sT0}, {L_QX}
            v_lshl_add_u32 v{124+p}, v0, 4, s{sT0}
            """)
        a(f"""
        s_lshl_b32 s{sT0}, s{sH}, 2
        s_add_u32 s{sT0}, s{sT0}, s{sW}
        s_lshl_b32 s{sT0}, s{sT0}, 7
        s_add_u32 s{sKVF}, s{sT0}, {WS_KVF}
        s_lshl_b32 s{sT1}, s{sB}, 2
        s_add_u32 s{sKVO}, s{sT1}, s{sKVF}
        s_lshl_b32 s{sT0}, s{sH}, 6
        s_add_u32 s{sT0}, s{sT0}, s{sW}
        s_mul_i32 s{sT0}, s{sT0}, {KVS}
        s_add_u32 s{sT0}, s{sT0}, {WS_KV}
        """)
        for i in range(16):
            a(f"""
            s_add_u32 s{sT1}, s{sB}, {i}
            s_and_b32 s{sT1}, s{sT1}, 15
            s_mul_i32 s{sT1}, s{sT1}, {4*KVS}
            s_add_u32 s{sKT+i}, s{sT1}, s{sT0}
            """)
        a(f"""
        s_mul_i32 s{sA4}, s{sH}, {HEADB}
        s_add_u32 s{sA4}, s{sA4}, {WS_WF}
        s_lshl_b32 s{sA0}, s{sW}, 10
        s_add_u32 s{sA0}, s{sA0}, {L_WQ}
        s_add_u32 s{sA1}, s{sA0}, s{sA4}
        s_lshl_b32 s{sA5}, s{sW}, 11
        s_add_u32 s{sA4}, s{sA4}, s{sA5}
        """)
        self.stamp("issued")

    def dma_kv(self, G):
        return [f"s_lshl_b32 s{sT0}, s{sKG+G}, 13", f"s_add_u32 m0, s{sA5}, {G*8192}",
                f"s_add_u32 s{sT0}, s{sT0}, s{sA4}",
                f"buffer_load_dwordx4 v10, {srd(SWS)}, s{sT0} offen sc1 lds",
                f"buffer_load_dwordx4 v10, {srd(SWS)}, s{sT0} offen offset:1024 sc1 lds"]

    def dma_q(self, G):
        return [f"s_lshl_b32 s{sT0}, s{sKG+G}, 12", f"s_add_u32 m0, s{sA0}, {G*4096}",
                f"s_add_u32 s{sT0}, s{sT0}, s{sA1}",
                f"buffer_load_dwordx4 v10, {srd(SWS)}, s{sT0} offen sc1 lds"]

    def p1(self):
        a = self.a
        XF, AK, AV, AQ = 128, 32, 48, 64
        XE, WEK, WEV, WEQ = 96, 100, 104, 18
        RS = 108
        KO, VO = 240, 248
        s1, s2 = (14, 15), (16, 17)
        queue = [("x", g) for g in range(4) for _ in range(4)]

        def newer(tag):
            k = max(i for i, t in enumerate(queue) if t == tag)
            return len(queue) - 1 - k

        for G in range(7):
            a(f"s_waitcnt vmcnt({newer(('x', G))})")
            if G == 0:
                self.stamp("x0")
            for q in range(4):
                a(f"ds_read_b128 {vr(XF+4*(4*G+q),4)}, v{6+q} offset:{(G%4)*4096}")
            for q in range(4):
                a(f"s_waitcnt lgkmcnt({0 if G == 0 else 3-q})")
                if q == 3 and G <= 2:
                    a("\n".join(self.dma_x(G + 4)))
                    queue += [("x", G + 4)] * 4
                n = 4 * G + q
                for i in range(4):
                    a(f"v_dot2c_f32_bf16 v{s1[i%2]}, s{sONE}, v{XF+4*n+i}")
                    a(f"v_dot2c_f32_bf16 v{s2[i%2]}, v{XF+4*n+i}, v{XF+4*n+i}")
            if G == 0:
                a(f"""
                s_mul_i32 s{sNON}, s{sNON}, 0x19660d
                s_add_u32 s{sNON}, s{sNON}, 0x3c6ef35f
                v_mov_b32 v30, s{sNON}
                """)
            if G == self.PB:
                a("s_barrier")
        a(f"""
        v_add_f32 v14, v14, v15
        v_add_f32 v16, v16, v17
        v_permlane32_swap_b32 v14, v16
        v_add_f32 v14, v14, v16
        v_mov_b32 v16, v14
        v_permlane32_swap_b32 v14, v16
        """)
        self.ln_scalars(14, 16, 26, 28, 15, 17)
        a(f"""
        v_lshrrev_b32 v15, 16, v26
        v_or_b32 v{XE}, v15, v26
        v_or_b32 v{XE+1}, v15, v26
        v_or_b32 v{XE+2}, v15, v26
        v_or_b32 v{XE+3}, v15, v26
        v_and_b32 v22, 31, v0
        s_lshl_b32 s{sT0}, s{sW}, 7
        s_add_u32 s{sT0}, s{sT0}, {L_RS}
        v_lshl_add_u32 v15, v22, 2, s{sT0}
        v_lshrrev_b32 v25, 5, v0
        v_lshl_add_u32 v25, v25, 4, s{sT0}
        ds_write_b32 v15, v28
        v_lshlrev_b32 v1, 4, v0
        v_lshlrev_b32 v6, 2, v0
        v_add_u32 v6, 4096, v6
        v_cmp_gt_u32 vcc, 28, v22
        v_mov_b32 v14, s{sONE}
        v_mov_b32 v27, 0x3f80
        v_cndmask_b32 v15, 0, -1, vcc
        v_cmp_eq_u32 vcc, 28, v22
        v_and_b32 v2, 15, v0
        v_lshlrev_b32 v2, 2, v2
        v_cndmask_b32 v22, 0, v14, vcc
        s_mov_b32 s{sA2}, 0x00010001
        s_lshl_b32 s{sA2}, s{sA2}, s{sB}
        s_mov_b32 s{sA3}, s{sA2}
        """)
        self.stamp("xdone")
        a("s_barrier")
        self.stamp("wok")
        queue = []
        for G in range(3):
            a("\n".join(self.dma_kv(G)))
            queue += [("kv", G)] * 2
        WBS = ([64, 72, 80, 88], [108, 116, 240, 248])

        def kvreads(G):
            return [f"ds_read_b128 {vr(WBS[G%2][p]+4*t,4)}, v10 offset:{(4*G+p)*2048+t*1024}"
                    for p in range(4) for t in range(2)] if G < 7 else []

        ext = [f"s_mov_b32 s{sT1}, {WS_CS+12544}", f"s_mov_b32 s{sT2}, {WS_CS+2*12544}", f"s_mov_b32 s99, {WS_CS}"]
        for we, so in ((WEK, sT1), (WEV, sT2), (WEQ, 99)):
            ext += [f"buffer_load_dword v{we+k}, v12, {srd(SWS)}, s{so} offen offset:{128*k} sc1" for k in range(4)]
        a(f"s_waitcnt vmcnt({newer(('kv', 0))})\ns_barrier")
        self.stamp("kv0")
        for x in kvreads(0):
            a(x)
        for G in range(7):
            WB = WBS[G % 2]
            early = []
            if G + 3 <= 6:
                early = self.dma_kv(G + 3)
                queue += [("kv", G + 3)] * 2
            qs = {0: [], 1: [], 2: [], 3: [0], 4: [1, 2, 3], 5: [4, 5, 6]}.get(G, [])
            if G == 1:
                early += ext[:11]
                queue += [("e", 0)] * 8
            if G == 2:
                early += ext[11:]
                queue += [("e", 0)] * 4
            for k in qs:
                early += self.dma_q(k)
                queue.append(("q", k))
            per = -(-len(early) // 3)
            gaps = [early[k * per:(k + 1) * per] for k in range(3)] + [[] for _ in range(5)]
            if G < 6:
                gaps[2] += [f"s_waitcnt vmcnt({newer(('kv', G+1))})", "s_barrier"]
                rd = kvreads(G + 1)
                for k in range(4):
                    gaps[3 + k] = rd[2 * k:2 * k + 2]
            else:
                gaps[1] = [f"v_cndmask_b32 v{we+3}, 0, v{we+3}, s[{sLO}:{sLO+1}]" for we in (WEK, WEV, WEQ)]
            for p in range(4):
                m = 4 * G + p
                if p < 2:
                    a(f"s_waitcnt lgkmcnt({0 if p else 6})")
                a(M32(AK, WB[p], XF + 4 * m, AK if m else None))
                for x in gaps[2 * p]:
                    a(x)
                a(M32(AV, XF + 4 * m, WB[p] + 4, AV if m else None))
                for x in gaps[2 * p + 1]:
                    a(x)
        a(M32(AK, WEK, XE, AK))
        for g in range(4):
            a(f"ds_read_b128 {vr(RS+4*g,4)}, v25 offset:{g*32}")
        a(M32(AV, XE, WEV, AV))
        for i in range(8):
            a(f"v_pk_mul_f32 {vr(AK+2*i,2)}, {vr(AK+2*i,2)}, {vr(28,2)} op_sel_hi:[1,0]")
        for i in range(8):
            a(f"v_cvt_pk_bf16_f32 v{KO+i}, v{AK+2*i}, v{AK+2*i+1}")
            if i == 3:
                a(f"buffer_store_dwordx4 {vr(KO,4)}, v1, {srd(SWS)}, s{sKT} offen sc1")
        a(f"""
        v_cndmask_b32 v{KO+6}, v14, v{KO+6}, s[{sLO}:{sLO+1}]
        v_cndmask_b32 v{KO+7}, v27, v{KO+7}, s[{sLO}:{sLO+1}]
        buffer_store_dwordx4 {vr(KO+4,4)}, v1, {srd(SWS)}, s{sKT} offen offset:1024 sc1
        s_waitcnt lgkmcnt(0)
        """)
        for hf in range(2):
            for i in range(4 * hf, 4 * hf + 4):
                a(f"v_pk_mul_f32 {vr(AV+2*i,2)}, {vr(AV+2*i,2)}, {vr(RS+2*i,2)}")
            for i in range(4 * hf, 4 * hf + 4):
                a(f"v_cvt_pk_bf16_f32 v{VO+i}, v{AV+2*i}, v{AV+2*i+1}")
            for i in range(4 * hf, 4 * hf + 4):
                a(f"v_and_or_b32 v{VO+i}, v{VO+i}, v15, v22")
            a(f"buffer_store_dwordx4 {vr(VO+4*hf,4)}, v1, {srd(SWS)}, s{sKT} offen offset:{2048+1024*hf} sc1")
        a("\n".join(self.kv_sum(KO, 7)))
        a(f"buffer_store_dword v7, v6, {srd(SWS)}, s{sKT} offen sc1")
        queue += [("st", 0)] * 5
        self.stamp("kvpub")
        QR = 32
        a(f"s_waitcnt vmcnt({newer(('q', 6))})\ns_barrier")
        lq = LQ(a)

        def qread(n):
            lq.op(f"ds_read_b128 {vr(QR+4*(n%8),4)}, v11 offset:{n*1024}", n)

        for n in range(4):
            qread(n)
        a(f"v_mul_f32 v28, {hex(fbits(LOG2E*28**-0.5))}, v28")
        for n in range(28):
            lq.wait(n)
            a(M32(AQ, QR + 4 * (n % 8), XF + 4 * n, AQ if n else None))
            if n + 4 < 28:
                qread(n + 4)
            if n == self.FLAGAT:
                a(f"""
                s_waitcnt vmcnt(0)
                s_mov_b64 exec, 1
                buffer_store_dword v30, v31, {srd(SWS)}, s{sKVO} offen sc1
                s_mov_b64 exec, -1
                """)
        a(M32(AQ, WEQ, XE, AQ))
        if self.EARLY:
            a("\n".join(self.kv_load(1, k) for k in range(5)))
        QO = 80
        for i in range(8):
            a(f"v_pk_mul_f32 {vr(AQ+2*i,2)}, {vr(AQ+2*i,2)}, {vr(28,2)} op_sel_hi:[1,0]")
        for i in range(8):
            a(f"v_cvt_pk_bf16_f32 v{QO+i}, v{AQ+2*i}, v{AQ+2*i+1}")
        a(f"""
        v_cndmask_b32 v{QO+6}, 0, v{QO+6}, s[{sLO}:{sLO+1}]
        v_cndmask_b32 v{QO+7}, 0, v{QO+7}, s[{sLO}:{sLO+1}]
        """)
        S = 32
        a(M32(S, KO, QO))
        a(M32(S, KO + 4, QO + 4, S))
        a(f"ds_write_b128 v127, {vr(QO,4)}")
        self.rowmax16(S, 22)
        if self.force_fb:
            a("v_add_f32 v22, 0xc3480000, v22")
        self.shift_split(22, 23, 24, 25)
        a(f"""
        v_cndmask_b32 v{QO+6}, v23, v{QO+6}, s[{sLO}:{sLO+1}]
        v_cndmask_b32 v{QO+7}, v24, v{QO+7}, s[{sLO}:{sLO+1}]
        ds_write_b128 v127, {vr(QO+4,4)} offset:1024
        s_waitcnt lgkmcnt(0)
        s_barrier
        """)
        for p in range(4):
            a(f"ds_read_b128 {vr(128+8*p,4)}, v{124+p}")
            a(f"ds_read_b128 {vr(128+8*p+4,4)}, v{124+p} offset:1024")
        self.stamp("qdone")

    def helper_head(self):
        a = self.a
        uU, uL, uG = sKG, sKG + 1, sKG + 2
        a(f"""
        s_lshl_b32 s{uU}, s{sXCD}, 5
        s_add_u32 s{uU}, s{uU}, s{sI}
        s_mul_i32 s{uL}, s{uU}, 9363
        s_lshr_b32 s{uL}, s{uL}, 16
        s_mul_i32 s{sT0}, s{uL}, 7
        s_sub_u32 s{uG}, s{uU}, s{sT0}
        v_lshrrev_b32 v22, 3, v0
        v_mul_u32_u24 v22, 2688, v22
        v_and_b32 v23, 7, v0
        v_lshl_add_u32 v5, v23, 4, v22
        s_mul_i32 s{sA0}, s{uG}, {64*2688}
        s_lshl_b32 s{sT0}, s{uL}, 7
        s_add_u32 s{sA0}, s{sA0}, s{sT0}
        s_mov_b32 s{SWQ+2}, {448*2688}
        s_mov_b32 s{SWQ+3}, 0x20000
        s_waitcnt lgkmcnt(0)
        s_mov_b32 s{SWQ}, s66
        s_mov_b32 s{SWQ+1}, s67
        s_cmp_ge_u32 s{uU}, {NPROD}
        s_cbranch_scc1 L_h_nopiece
        """)
        for q in range(8):
            a(f"""
            s_mov_b32 m0, {q*1024}
            s_add_u32 s{sT0}, s{sA0}, {q*8*2688}
            buffer_load_dwordx4 v5, {srd(SWQ)}, s{sT0} offen lds
            """)
        a("L_h_nopiece:")
        self.common_setup()
        a(f"""
        v_mov_b32 v31, 0
        v_cmp_gt_u32 vcc, 42, v0
        v_cndmask_b32 v20, 0, v0, vcc
        v_mul_u32_u24 v21, 9363, v20
        v_lshrrev_b32 v21, 16, v21
        v_mul_u32_u24 v22, 7, v21
        v_sub_u32 v20, v20, v22
        v_and_b32 v22, 1, v21
        v_lshrrev_b32 v21, 1, v21
        v_mul_u32_u24 v22, 27, v22
        s_mul_i32 s{sT0}, s{sH}, 28
        v_add_u32 v22, s{sT0}, v22
        v_lshrrev_b32 v22, 6, v22
        v_mad_u32_u24 v22, v21, 7, v22
        v_lshlrev_b32 v22, 7, v22
        v_lshl_add_u32 v12, v20, 2, v22
        s_waitcnt lgkmcnt(0)
        s_mul_i32 s{sNON}, s{sNON}, 0x19660d
        s_add_u32 s{sNON}, s{sNON}, 0x3c6ef35f
        v_mov_b32 v30, s{sNON}
        s_cmp_ge_u32 s{uU}, {NPROD}
        s_cbranch_scc1 L_h_norepack
        v_lshrrev_b32 v23, 5, v0
        v_lshrrev_b32 v25, 2, v0
        v_and_b32 v25, 3, v25
        v_lshl_add_u32 v25, v23, 3, v25
        v_lshlrev_b32 v25, 7, v25
        v_lshrrev_b32 v26, 4, v0
        v_and_b32 v26, 1, v26
        v_lshl_add_u32 v25, v26, 5, v25
        v_and_b32 v26, 3, v0
        v_lshl_add_u32 v25, v26, 3, v25
        s_mul_i32 s{sT0}, s{uL}, 9363
        s_lshr_b32 s{sT0}, s{sT0}, 16
        s_mul_i32 s{sT1}, s{sT0}, 7
        s_sub_u32 s{sT1}, s{uL}, s{sT1}
        s_lshl_b32 s{sT1}, s{sT1}, 6
        v_and_b32 v21, 31, v0
        """)
        for hf in range(2):
            a(f"""
            v_add_u32 v22, s{sT1}, v21
            v_add_u32 v22, {32*hf}, v22
            v_mul_u32_u24 v26, 2341, v22
            v_lshrrev_b32 v26, 16, v26
            v_mul_u32_u24 v27, 28, v26
            v_sub_u32 v22, v22, v27
            v_mul_u32_u24 v26, {HEADB}, v26
            v_lshl_add_u32 v26, v22, 4, v26
            v_lshl_add_u32 v{8+hf}, v23, 9, v26
            """)
        a(f"""
        v_lshlrev_b32 v21, 2, v21
        s_cmp_eq_u32 s{sT0}, 0
        s_cselect_b32 s{sA1}, 1, 2
        s_lshl_b32 s{sA1}, s{sA1}, 10
        s_lshl_b32 s{sT2}, s{sT0}, 10
        s_sub_u32 s{sT2}, s{sT2}, 1024
        s_cmp_eq_u32 s{sT0}, 0
        s_cselect_b32 s{sT2}, {L_WQ}, s{sT2}
        s_add_u32 s{sT2}, s{sT2}, {WS_WF}
        s_mul_i32 s{sT0}, s{uG}, s{sA1}
        s_lshl_b32 s{sT0}, s{sT0}, 2
        s_add_u32 s{sA2}, s{sT2}, s{sT0}
        s_mul_i32 s{sT0}, s{uL}, 14
        s_add_u32 s{sT0}, s{sT0}, s{uG}
        s_lshl_b32 s{sT0}, s{sT0}, 7
        s_add_u32 s{sA3}, s{sT0}, {WS_CS}
        s_lshl_b32 s{sT0}, s{uL}, 7
        s_lshl_b32 s{sT1}, s{uG}, 2
        s_add_u32 s{sT0}, s{sT0}, s{sT1}
        s_add_u32 s{sA0}, s{sT0}, {WS_WFL}
        v_mov_b32 v16, 0
        v_mov_b32 v17, 0
        v_mov_b32 v18, 0
        v_mov_b32 v19, 0
        """)
        lq = LQ(a)

        def rd(jj):
            for hf in range(2):
                for sec in range(2):
                    lq.op(f"ds_read_b64_tr_b16 {vr(32+8*jj+4*hf+2*sec,2)}, v25 offset:{jj*2048+hf*64+sec*512}", (jj, hf))

        for jj in range(4):
            a(f"s_waitcnt vmcnt({6-2*jj + 2*max(jj-1, 0)})")
            rd(jj)
            if jj:
                for hf in range(2):
                    lq.wait((jj - 1, hf))
                    a(f"buffer_store_dwordx4 {vr(32+8*(jj-1)+4*hf,4)}, v{8+hf}, {srd(SWS)}, s{sA2} offen sc1")
                a(f"s_add_u32 s{sA2}, s{sA2}, s{sA1}")
        for hf in range(2):
            lq.wait((3, hf))
            a(f"buffer_store_dwordx4 {vr(56+4*hf,4)}, v{8+hf}, {srd(SWS)}, s{sA2} offen sc1")
        for jj in range(4):
            for k in range(4):
                for hf in range(2):
                    a(f"v_dot2c_f32_bf16 v{16+2*hf+k%2}, s{sONE}, v{32+8*jj+4*hf+k}")
        a(f"""
        v_add_f32 v16, v16, v17
        v_add_f32 v18, v18, v19
        v_permlane32_swap_b32 v16, v18
        v_add_f32 v16, v16, v18
        """)
        self.neg_split2(17, 16, 18)
        a(f"""
        v_mul_u32_u24 v23, 896, v23
        v_add_u32 v21, v21, v23
        buffer_store_dword v17, v21, {srd(SWS)}, s{sA3} offen sc1
        s_waitcnt vmcnt(0)
        s_mov_b64 exec, 1
        buffer_store_dword v30, v31, {srd(SWS)}, s{sA0} offen sc1
        s_mov_b64 exec, -1
        L_h_norepack:
        s_mov_b32 s{sA0}, {WS_WFL}
        s_barrier
        L_h_wpoll:
        buffer_load_dword v13, v12, {srd(SWS)}, s{sA0} offen sc1
        s_waitcnt vmcnt(0)
        v_cmp_ne_u32 vcc, s{sNON}, v13
        s_cbranch_vccz L_h_wok
        """)
        self.spin_guard("L_h_wok")
        a(f"""
        s_sleep {self.PSL}
        s_branch L_h_wpoll
        L_h_wok:
        s_barrier
        """)
        return 2


if __name__ == "__main__":
    g = Rep()
    s, n = g.build()
    sys.stdout.write(s)
    print("pads:", n, file=sys.stderr)
```

```python
import sys, os, struct
sys.path.insert(0, os.path.dirname(os.path.abspath(__file__)))
from asmb import Asm

NAME = "sequential_preLN__mha_block__moe_arch_mod__prompt_kernel"

WS_EPOCH = 0
WS_KVF = 0x1000
WS_CLF = 0x3000
WS_XID = 0x3800
WS_KEYS = 0x4000
WS_STATS = 0x20000
WS_KV = 0x100000
KVS = 4352
WS_OF = 0x580000
WS_HN = 0x780000
WS_HH = 0x800000
WS_Y = 0xB00000
WS_TS = 0xC00000
WS_SIZE = 0x1000000

L_W = 0
L_XR = 86016
L_CS = 151552
L_RS = 154624
L_QX = 155648
L_WO = 0
L_CB = 114688
L_ST = 147456
L_TR = 114688
L_SEL = 149504
L_AX = 149760
L_G = 138240
L_WG = 0
L_WU = 28672
L_WD = 57344
LDS_BYTES = 163840

SX, SWQ, SWS, SWO, SOUT, SWG, SWU, SWD, SWR = 8, 12, 16, 20, 24, 28, 32, 36, 40
sW, sH, sB, sT, sC, sNON, sI, sXCD = 44, 45, 46, 47, 48, 49, 50, 51
sKG = 52
sXO = 59
sONE = 60
sT0, sT1, sT2 = 61, 62, 63
sLO = 86
sM = 88
sA0, sA1, sA2, sA3, sA4, sA5 = 90, 91, 92, 93, 94, 95
sKVF, sKVO = 82, 83
sLOC = 56
sSPIN = 96
sPASS = 97
sTH = 98
sKT = 64
SPIN_MAX = 1 << 17

LOG2E = 1.4426950408889634


def fbits(x):
    return struct.unpack("<I", struct.pack("<f", x))[0]


def srd(r):
    return f"s[{r}:{r+3}]"


def vr(a, n):
    return f"v[{a}:{a+n-1}]" if n > 1 else f"v{a}"


def M32(d, a, b, c=None):
    return f"v_mfma_f32_32x32x16_bf16 {vr(d,16)}, {vr(a,4)}, {vr(b,4)}, {vr(c,16) if c is not None else 0}"


def M16(d, a, b, c=None):
    return f"v_mfma_f32_16x16x32_bf16 {vr(d,4)}, {vr(a,4)}, {vr(b,4)}, {vr(c,4) if c is not None else 0}"


def lines(t):
    return [x.strip() for x in t.strip().split("\n") if x.strip()]


class LQ:
    def __init__(self, a):
        self.a, self.q = a, []

    def op(self, text, tag):
        self.a(text)
        self.q.append(tag)

    def wait(self, tag):
        k = max(i for i, t in enumerate(self.q) if t == tag)
        self.a(f"s_waitcnt lgkmcnt({min(len(self.q) - 1 - k, 15)})")


sF, sU = 3, 4
sWOS, sWOM = 5, 6
sROW = 7
OOB = 0x7F000000


class Gen:
    def __init__(self, stop=None, ts=False, rot=True, force_fb=False, **kw):
        self.a = Asm()
        self.stop = stop
        self.ts = ts
        self.rot = rot
        self.force_fb = force_fb
        self.nts = 0
        self.tsn = []
        for k, v in kw.items():
            setattr(self, k, v)

    amp = None
    ampg = 80

    def stamp(self, name=""):
        if self.amp:
            if name == "entry":
                self.a("s_memrealtime s[100:101]")
            elif name == self.amp:
                self.a("s_memrealtime s[84:85]\ns_waitcnt lgkmcnt(0)")
        if not self.ts:
            return
        k = self.nts
        self.nts += 1
        self.tsn.append(name)
        assert k < 32
        self.a(f"""
        s_memrealtime s[100:101]
        s_waitcnt lgkmcnt(0)
        v_writelane_b32 v254, s100, {k}
        s_memtime s[100:101]
        s_waitcnt lgkmcnt(0)
        v_writelane_b32 v254, s100, {32+k}
        """.replace("v254", self.TSV))

    def spin_guard(self, out_label):
        self.a(f"""
        s_add_u32 s{sSPIN}, s{sSPIN}, 1
        s_cmp_gt_u32 s{sSPIN}, {SPIN_MAX}
        s_cbranch_scc1 {out_label}
        """)

    def xhalf_sum(self, x, t):
        self.a(f"""
        v_mov_b32 v{t}, v{x}
        v_permlane32_swap_b32 v{x}, v{t}
        v_add_f32 v{x}, v{x}, v{t}
        """)

    def ln_scalars(self, S1, S2, mb, rs, t0, t1):
        self.a(f"""
        v_mul_f32 v{mb}, {hex(fbits(1/448))}, v{S1}
        v_mul_f32 v{t0}, {hex(fbits(1/448))}, v{S2}
        v_fma_f32 v{t0}, -v{mb}, v{mb}, v{t0}
        v_max_f32 v{t0}, 0, v{t0}
        v_cvt_pk_bf16_f32 v{t1}, v{mb}, v{t0}
        v_lshlrev_b32 v{mb}, 16, v{t1}
        v_and_b32 v{t0}, 0xffff0000, v{t1}
        v_add_f32 v{t0}, {hex(fbits(1e-5))}, v{t0}
        v_cvt_pk_bf16_f32 v{t0}, v{t0}, v{t0}
        v_and_b32 v{t0}, 0xffff0000, v{t0}
        v_sqrt_f32 v{t0}, v{t0}
        v_cvt_pk_bf16_f32 v{t0}, v{t0}, v{t0}
        v_and_b32 v{t0}, 0xffff0000, v{t0}
        v_rcp_f32 v{rs}, v{t0}
        """)

    def neg_split2(self, d, x, t):
        self.a(f"""
        v_cvt_pk_bf16_f32 v{t}, -v{x}, -v{x}
        v_and_b32 v{t}, 0xffff0000, v{t}
        v_sub_f32 v{d}, -v{x}, v{t}
        v_cvt_pk_bf16_f32 v{d}, v{t}, v{d}
        """.replace("v_sub_f32 ", "v_sub_f32_e64 "))

    def common_setup(self, scalar=True, only=None):
        self.a(f"""
        {"s_load_dword s%d, s[84:85], 0" % sNON if scalar else ""}
        s_lshl_b32 s{sT}, s{sA5}, 5
        s_lshl_b32 s{sT0}, s{sA4}, 3
        s_add_u32 s{sT}, s{sT}, s{sT0}
        s_and_b32 s{sT0}, s{sB}, 7
        s_add_u32 s{sT}, s{sT}, s{sT0}
        s_mov_b32 s{sONE}, 0x3f803f80
        s_mov_b32 s{sLO}, -1
        s_mov_b32 s{sLO+1}, 0
        s_mov_b32 s{sSPIN}, 0
        s_mov_b32 s{sPASS}, 0
        """)
        self.roles()
        self.srds(only)

    def prologue(self):
        a = self.a
        a(f"""
        s_cmp_ge_u32 s2, 256
        s_cbranch_scc1 L_end
        """)
        self.stamp("entry")
        a(f"""
        s_load_dwordx16 s[64:79], s[0:1], 0
        s_load_dwordx4 s[80:83], s[0:1], 64
        s_load_dwordx2 s[84:85], s[0:1], 80
        v_lshrrev_b32 v1, 6, v0
        v_and_b32 v0, 63, v0
        s_and_b32 s{sXCD}, s2, 7
        s_lshr_b32 s{sI}, s2, 3
        v_readfirstlane_b32 s{sW}, v1
        s_lshr_b32 s{sA4}, s{sXCD}, 1
        s_and_b32 s{sA5}, s{sXCD}, 1
        s_and_b32 s{sC}, s{sI}, 3
        s_lshr_b32 s{sT2}, s{sI}, 2
        s_lshl_b32 s{sB}, s{sA5}, 3
        s_add_u32 s{sB}, s{sB}, s{sT2}
        s_lshl_b32 s{sH}, s{sA4}, 2
        s_add_u32 s{sH}, s{sH}, s{sC}
        s_cmp_eq_u32 s{sW}, 4
        s_cbranch_scc1 L_helper
        v_lshrrev_b32 v22, 3, v0
        v_mul_u32_u24 v22, 896, v22
        v_lshrrev_b32 v23, 4, v0
        v_and_b32 v24, 7, v0
        v_xor_b32 v23, v23, v24
        v_lshl_add_u32 v1, v23, 4, v22
        v_xor_b32 v23, 4, v23
        v_lshl_add_u32 v2, v23, 4, v22
        v_add_u32 v2, {7168-1024}, v2
        v_add_u32 v3, {2*(7168-1024)}, v1
        v_add_u32 v4, {2*(7168-1024)}, v2
        v_lshrrev_b32 v22, 2, v0
        v_mul_u32_u24 v22, 2688, v22
        v_and_b32 v23, 3, v0
        v_lshlrev_b32 v23, 4, v23
        v_min_u32 v23, 40, v23
        v_add_u32 v5, v23, v22
        s_lshl_b32 s{sXO}, s{sB}, 2
        s_add_u32 s{sXO}, s{sXO}, s{sW}
        s_mul_i32 s{sXO}, s{sXO}, {32*896}
        s_lshl_b32 s{sA2}, s{sW}, 14
        s_add_u32 s{sA2}, s{sA2}, {L_XR}
        s_mul_i32 s{sA1}, s{sW}, {16*2688}
        s_mul_i32 s{sA3}, s{sH}, 56
        s_add_u32 s{sA1}, s{sA1}, s{sA3}
        s_add_u32 s{sA1}, s{sA1}, 896
        s_mul_i32 s{sA3}, s{sW}, 21504
        s_mov_b32 s{SX+2}, {2048*896}
        s_mov_b32 s{SX+3}, 0x20000
        s_mov_b32 s{SWQ+2}, {448*2688}
        s_mov_b32 s{SWQ+3}, 0x20000
        """)
        if self.ROT == 7:
            a(f"""
            s_lshl_b32 s{sKG}, s{sC}, 1
            s_add_u32 s{sKG}, s{sKG}, s{sT2}
            s_cmp_ge_u32 s{sKG}, 7
            s_cselect_b32 s{sT0}, 7, 0
            s_sub_u32 s{sKG}, s{sKG}, s{sT0}
            """)
        elif self.ROT > 1:
            a(f"""
            s_add_u32 s{sKG}, s{sC}, s{sT2}
            s_and_b32 s{sKG}, s{sKG}, {self.ROT-1}
            s_mul_i32 s{sKG}, s{sKG}, {self.ROTS}
            """)
        else:
            a(f"s_mov_b32 s{sKG}, 0")

        def nxt(G):
            a(f"""
            s_add_u32 s{sKG+G}, s{sKG+G-1}, 1
            s_cmp_eq_u32 s{sKG+G}, 7
            s_cselect_b32 s{sKG+G}, 0, s{sKG+G}
            """)
        nxt(1)
        if self.LIN:
            n = self.LIN
            a(f"""
            v_lshlrev_b32 v26, 7, v0
            s_and_b32 s{sT0}, s2, {7 if n == 1 else 3}
            s_lshl_b32 s{sT1}, s{sI}, {3 if n == 1 else 2}
            s_add_u32 s{sT0}, s{sT0}, s{sT1}
            s_mul_i32 s{sT1}, s{sT0}, {4704*n}
            s_mul_i32 s{sT0}, s{sT0}, {7168*n}
            s_and_b32 s99, s{sW}, 1
            s_mul_i32 s99, s99, {7168 if n == 2 else 0}
            s_add_u32 s98, s{sT0}, s99
            s_and_b32 s99, s{sW}, 1
            s_mul_i32 s99, s99, {4704 if n == 2 else 0}
            s_add_u32 s99, s{sT1}, s99
            """)
        a(f"""
        s_waitcnt lgkmcnt(0)
        s_mov_b32 s{SX}, s64
        s_mov_b32 s{SX+1}, s65
        s_mov_b32 s{SWQ}, s66
        s_mov_b32 s{SWQ+1}, s67
        """)
        self.stamp("karg")
        lin = []
        if self.LIN:
            lin = lines(f"""
            s_cmp_ge_u32 s{sW}, 2
            s_cbranch_scc1 L_linw
            s_mov_b32 exec_hi, 0xffffff
            buffer_load_dword v28, v26, {srd(SX)}, s98 offen
            s_branch L_lind
            L_linw:
            s_mov_b32 exec_hi, 0x3f
            buffer_load_dword v28, v26, {srd(SWQ)}, s99 offen
            L_lind:
            s_mov_b32 exec_hi, -1
            """)
        if self.LINP == 0:
            a("\n".join(lin))
        a("\n".join(self.dma_x(0) + self.dma_w(0)))
        if self.LINP == 1:
            a("\n".join(lin))
        for G in range(2, 7):
            nxt(G)
        a(f"s_mov_b32 s{sONE}, 0x3f803f80")
        a(f"""
        v_and_b32 v22, 31, v0
        v_lshrrev_b32 v23, 5, v0
        v_lshrrev_b32 v24, 1, v22
        v_and_b32 v24, 7, v24
        v_xor_b32 v24, v24, v23
        v_lshlrev_b32 v22, 7, v22
        v_add_u32 v22, s{sA2}, v22
        v_lshl_add_u32 v22, v24, 4, v22
        v_lshrrev_b32 v25, 2, v0
        v_and_b32 v25, 3, v25
        v_lshl_add_u32 v25, v23, 3, v25
        v_lshlrev_b32 v25, 6, v25
        v_lshrrev_b32 v26, 4, v0
        v_and_b32 v26, 1, v26
        v_lshl_add_u32 v25, v26, 5, v25
        v_lshrrev_b32 v27, 1, v0
        v_and_b32 v27, v27, v26
        v_and_b32 v26, 3, v0
        v_xor_b32 v26, v26, v27
        v_lshl_add_u32 v25, v26, 3, v25
        """)
        for p in range(4):
            a(f"""
            s_add_u32 s{sT0}, s{sW}, {p}
            s_and_b32 s{sT0}, s{sT0}, 3
            s_lshl_b32 s{sT1}, s{sT0}, 5
            s_mul_i32 s{sT2}, s{sT0}, 21504
            v_xor_b32 v{6+p}, s{sT1}, v22
            v_add_u32 v{10+p}, s{sT2}, v25
            """)
        for r in (14, 15, 16, 17, 18, 19, 31):
            a(f"v_mov_b32 v{r}, 0")
        self.stamp("b1")
        a("\n".join(self.dma_x(1)))
        self.stamp("issued")

    def late_setup(self):
        sub = Gen()
        a = sub.a
        sub.common_setup(scalar=False, only=(SWS, SOUT, SWR))
        for r in (20, 21, 97, 98, 99, 101, 102, 103, 105, 106, 107):
            a(f"v_mov_b32 v{r}, 0")
        a(f"v_lshlrev_b32 v26, 4, v0\nv_add_u32 v26, {L_QX}, v26")
        for p in range(4):
            a(f"""
            s_add_u32 s99, s{sW}, {p+1}
            s_and_b32 s99, s99, 3
            v_lshl_add_u32 v{124+p}, s99, 11, v26
            """)
        a(f"""
        s_lshl_b32 s99, s{sH}, 2
        s_add_u32 s99, s99, s{sW}
        s_lshl_b32 s99, s99, 7
        s_add_u32 s{sKVF}, s99, {WS_KVF}
        s_lshl_b32 s99, s{sB}, 2
        s_add_u32 s{sKVO}, s99, s{sKVF}
        s_lshl_b32 s99, s{sH}, 6
        s_add_u32 s99, s99, s{sW}
        s_mul_i32 s99, s99, {KVS}
        s_add_u32 s99, s99, {WS_KV}
        v_add_u32 v26, s{sB}, v0
        v_and_b32 v26, 15, v26
        v_mul_u32_u24 v26, {4*KVS}, v26
        v_add_u32 v26, s99, v26
        """)
        for i in range(16):
            a(f"v_readlane_b32 s{sKT+i}, v26, {i}")
        a(f"""
        s_lshl_b32 s98, s{sB}, 2
        s_add_u32 s98, s98, s{sW}
        s_lshl_b32 s98, s98, 4
        s_add_u32 s98, s98, s{sH}
        s_lshl_b32 s98, s98, 11
        s_add_u32 s99, s98, {WS_OF}
        """)
        return [x[1].text.replace(f"s{sT0}", "s98").replace(f"s{sT1}", "s99") for x in a.items]

    def roles(self):
        self.a(f"""
        s_lshr_b32 s{sT0}, s{sI}, 2
        s_sub_u32 s{sT0}, s{sI}, s{sT0}
        s_sub_u32 s{sT0}, s{sT0}, 1
        s_mul_i32 s{sT1}, s{sXCD}, 7
        s_add_u32 s{sF}, s{sT0}, s{sT1}
        s_cmp_lt_u32 s{sI}, 10
        s_cselect_b32 s{sF}, s{sF}, -1
        s_cmp_eq_u32 s{sC}, 0
        s_cselect_b32 s{sF}, -1, s{sF}
        s_mul_i32 s{sT1}, s{sXCD}, 14
        s_sub_u32 s{sT0}, s{sI}, 10
        s_add_u32 s{sU}, s{sT0}, s{sT1}
        s_cmp_lt_u32 s{sT0}, 14
        s_cselect_b32 s{sU}, s{sU}, -1
        s_mul_i32 s{sROW}, s{sT}, {32*896}
        s_mul_i32 s{sT0}, s{sC}, 224
        s_add_u32 s{sROW}, s{sROW}, s{sT0}
        """)

    def cand_base(self, d, w):
        w = f"s{w}" if w >= 4 else str(w)
        self.a(f"""
        s_lshl_b32 s{sT0}, s{sT}, 1
        s_and_b32 s{sT1}, {w}, 1
        s_add_u32 s{sT0}, s{sT0}, s{sT1}
        s_mul_i32 s{sT0}, s{sT0}, {4*896}
        s_mul_i32 s{sT1}, s{sC}, 224
        s_add_u32 s{sT0}, s{sT0}, s{sT1}
        s_lshr_b32 s{sT1}, {w}, 1
        s_mul_i32 s{sT1}, s{sT1}, {WS_HH-WS_HN}
        s_add_u32 s{sT0}, s{sT0}, s{sT1}
        s_add_u32 s{d}, s{sT0}, {WS_HN}
        """)

    def srds(self, only=None):
        for r, p, n in ((SWS, 84, WS_SIZE), (SWO, 68, 448 * 896), (SOUT, 80, 2048 * 896), (SWG, 74, 448 * 3584),
                        (SWU, 76, 448 * 3584), (SWD, 78, 1792 * 896), (SWR, 72, 896)):
            if only and r not in only:
                continue
            self.a(f"""
            s_mov_b32 s{r}, s{p}
            s_mov_b32 s{r+1}, s{p+1}
            s_mov_b32 s{r+2}, {n}
            s_mov_b32 s{r+3}, 0x20000
            """)

    def dma_x(self, G):
        if G > 6:
            return []
        return lines(f"""
        s_lshl_b32 s{sT0}, s{sKG+G}, 7
        s_add_u32 m0, s{sA2}, {(G%4)*4096}
        s_add_u32 s{sT0}, s{sT0}, s{sXO}
        buffer_load_dwordx4 v1, {srd(SX)}, s{sT0} offen lds
        buffer_load_dwordx4 v2, {srd(SX)}, s{sT0} offen offset:1024 lds
        buffer_load_dwordx4 v3, {srd(SX)}, s{sT0} offen offset:2048 lds
        buffer_load_dwordx4 v4, {srd(SX)}, s{sT0} offen offset:3072 lds
        """)

    def dma_w(self, G):
        return lines(f"""
        s_mul_i32 s{sKG+G}, s{sKG+G}, {64*2688}
        s_add_u32 m0, s{sA3}, {L_W+G*3072}
        s_add_u32 s{sKG+G}, s{sKG+G}, s{sA1}
        s_sub_u32 s{sT1}, s{sKG+G}, 128
        buffer_load_dwordx4 v5, {srd(SWQ)}, s{sKG+G} offen lds
        buffer_load_dwordx4 v5, {srd(SWQ)}, s{sT1} offen offset:1024 lds
        """)

    def dma_q(self, G):
        return [f"s_add_u32 m0, s{sA3}, {L_W+G*3072+2048}", f"s_sub_u32 s{sT1}, s{sKG+G}, 896",
                f"buffer_load_dwordx4 v5, {srd(SWQ)}, s{sT1} offen lds"]

    LA = 2
    HMAP = sum(h << (4 * k) for k, h in enumerate(range(16)))
    TSV = 'v29'
    ATS = 0
    P1S = 0
    FLAGAT = 24
    ROT = 4
    ROTS = 2
    NT = 0

    def touches(self):
        return []

    def p1(self):
        a = self.a
        XF, AK, AV, AQ, WF = 128, 32, 48, 64, 80
        XE = 96
        RS = 108
        KO, VO = 240, 248
        s1, s2, csK, csV = (14, 15), (16, 17), 18, 19
        WEK, WEV = 100, 104
        queue = [("x", 0)] * 4 + [("w", 0)] * 2 + [("l", 0)] * (1 if self.LIN and self.LINP == 1 else 0) + [("x", 1)] * 4

        def newer(tag):
            k = max(i for i, t in enumerate(queue) if t == tag)
            return len(queue) - 1 - k

        def xstats(G):
            for n in range(4 * G, 4 * G + 4):
                for i in range(4):
                    a(f"v_dot2c_f32_bf16 v{s1[i%2]}, s{sONE}, v{XF+4*n+i}")
                    a(f"v_dot2c_f32_bf16 v{s2[i%2]}, v{XF+4*n+i}, v{XF+4*n+i}")

        WBS = ([80, 88, 240, 248], [64, 72, 108, 116])

        def xreads(G):
            return [f"ds_read_b128 {vr(XF+4*(4*G+q),4)}, v{6+q} offset:{(G%4)*4096}" for q in range(4)] if G < 7 else []

        def wreads(G):
            WB = WBS[G % 2]
            return [f"ds_read_b64_tr_b16 {vr(WB[p]+4*t+2*hlf,2)}, v{10+p} offset:{G*3072+t*1024+hlf*256}"
                    for p in range(4) for t in range(2) for hlf in range(2)]

        def batch(G):
            r = []
            if G <= 6:
                r = self.dma_w(G) + self.dma_x(G + 1)
                queue.extend([("w", G)] * 2 + ([("x", G + 1)] * 4 if G < 6 else []))
            return r

        a(f"s_waitcnt vmcnt({newer(('x', 0))})")
        for x in xreads(0):
            a(x)
        self.stamp("x0")
        for x in batch(1):
            a(x)
        a("s_waitcnt lgkmcnt(0)")
        xstats(0)
        a(f"s_waitcnt vmcnt({newer(('x', 1))})\ns_barrier")
        self.stamp("g0")
        for x in wreads(0)[:4] + xreads(1) + wreads(0)[4:]:
            a(x)
        for x in batch(2):
            a(x)
        a(f"global_load_dword v30, v31, s[84:85] sc1")
        queue.append(("n", 0))
        if self.CPS:
            a(f"""
            s_getpc_b64 s[{sM}:{sM+1}]
            s_lshl_b32 s{sT0}, s{sI}, 2
            s_add_u32 s{sT0}, s{sT0}, s{sW}
            s_lshl_b32 s{sT0}, s{sT0}, 7
            v_mov_b32 v26, s{sT0}
            global_load_dword v27, v26, s[{sM}:{sM+1}]
            """)
            queue.append(("n", 0))
        setup = self.late_setup()
        nset = -(-len(setup) // 4)
        qsched = {4: [0, 1, 2, 3], 5: [4, 5, 6]}
        for G in range(7):
            WB = WBS[G % 2]
            if self.P1S:
                self.stamp(f"G{G}")
            a("s_waitcnt lgkmcnt(12)")
            for i in range(4):
                a(f"v_dot2c_f32_bf16 v{csK}, s{sONE}, v{WB[0]+i}")
                a(f"v_dot2c_f32_bf16 v{csV}, s{sONE}, v{WB[0]+4+i}")
            if G < 6:
                xstats(G + 1)
            else:
                a(f"""
                ds_write_b32 v24, v{csK}
                ds_write_b32 v24, v{csV} offset:1024
                """)
            gaps = [[] for _ in range(8)]
            early = batch(G + 3)
            for k in qsched.get(G, ()):
                early += self.dma_q(k)
                queue.append(("q", k))
            if G == 3:
                early += lines(f"""v_readfirstlane_b32 s{sNON}, v30
                s_mul_i32 s{sNON}, s{sNON}, 0x19660d
                s_add_u32 s{sNON}, s{sNON}, 0x3c6ef35f
                v_mov_b32 v30, s{sNON}""")
            if G == 4:
                early += lines(f"""v_and_b32 v22, 31, v0
                v_lshlrev_b32 v22, 5, v22
                v_add_u32 v23, {L_CS}, v22
                v_lshrrev_b32 v24, 5, v0
                s_lshl_b32 s{sT0}, s{sW}, 3
                v_lshl_add_u32 v24, v24, 2, v23
                v_add_u32 v24, s{sT0}, v24""")
            if G == 5:
                sub = Gen()
                sub.a(f"""
                v_add_f32 v14, v14, v15
                v_add_f32 v16, v16, v17
                v_permlane32_swap_b32 v14, v16
                v_add_f32 v14, v14, v16
                v_mov_b32 v16, v14
                v_permlane32_swap_b32 v14, v16
                """)
                sub.ln_scalars(14, 16, 26, 28, 15, 17)
                sub.a(f"""
                v_lshrrev_b32 v15, 16, v26
                v_or_b32 v15, v15, v26
                v_cndmask_b32 v{XE}, 0, v15, s[{sLO}:{sLO+1}]
                v_and_b32 v15, 31, v0
                s_lshl_b32 s{sT0}, s{sW}, 7
                s_add_u32 s{sT0}, s{sT0}, {L_RS}
                v_lshl_add_u32 v15, v15, 2, s{sT0}
                v_lshrrev_b32 v25, 5, v0
                v_lshl_add_u32 v25, v25, 4, s{sT0}
                ds_write_b32 v15, v28
                """)
                stats = [x[1].text for x in sub.a.items]
                early = early + stats[:8]
                stats = stats[8:]
            if G < 6:
                per = -(-len(early) // 3)
                for k in range(3):
                    gaps[k] = early[k * per:(k + 1) * per]
                w = wreads(G + 1)
                rd = w[:4] + xreads(G + 2) + w[4:]
                gaps[2] += setup[:nset]
                setup = setup[nset:]
                gaps[2] += [f"s_waitcnt vmcnt({newer(('x', G+2) if G < 5 else ('w', 6))})", "s_barrier"]
                per = -(-len(rd) // 5)
                for k in range(5):
                    gaps[3 + k] = rd[per * k:per * k + per]
            else:
                sub = Gen()
                for mat, we in ((0, WEK), (1, WEV)):
                    r = RS + 8 * mat
                    sub.a(f"""
                    v_add_f32 v{r}, v{r}, v{r+1}
                    v_add_f32 v{r+2}, v{r+2}, v{r+3}
                    v_add_f32 v{r+4}, v{r+4}, v{r+5}
                    v_add_f32 v{r+6}, v{r+6}, v{r+7}
                    v_add_f32 v{r}, v{r}, v{r+2}
                    v_add_f32 v{r+4}, v{r+4}, v{r+6}
                    v_add_f32 v{r}, v{r}, v{r+4}
                    """)
                    sub.neg_split2(we, r, 22)
                Bc = [x[1].text for x in sub.a.items]
                gaps[0] = stats[:4] + ["s_waitcnt lgkmcnt(0)", "s_barrier"] + \
                    [f"ds_read_b128 {vr(RS+4*i,4)}, v23 offset:{(i//2)*1024+(i%2)*16}" for i in range(4)]
                A = stats[4:]
                mix = A[:6] + ["s_waitcnt lgkmcnt(0)"]
                A = A[6:]
                while A or Bc:
                    mix += A[:1] + Bc[:2]
                    A, Bc = A[1:], Bc[2:]
                per = -(-len(mix) // 7)
                for k in range(7):
                    gaps[1 + k] = mix[k * per:(k + 1) * per]
            for p in range(4):
                m = 4 * G + p
                if p == 1 and G < 6:
                    a("s_waitcnt lgkmcnt(0)")
                a(M32(AK, WB[p], XF + 4 * m, AK if m else None))
                for x in gaps[2 * p]:
                    a(x)
                a(M32(AV, XF + 4 * m, WB[p] + 4, AV if m else None))
                for x in gaps[2 * p + 1]:
                    a(x)
        a(M32(AK, WEK, XE, AK))
        a("s_waitcnt lgkmcnt(0)")
        for g in range(4):
            a(f"ds_read_b128 {vr(RS+4*g,4)}, v25 offset:{g*32}")
        a(M32(AV, XE, WEV, AV))
        a(f"""
        v_lshlrev_b32 v1, 4, v0
        v_and_b32 v22, 31, v0
        v_cmp_gt_u32 vcc, 28, v22
        v_mov_b32 v14, s{sONE}
        v_mov_b32 v27, 0x3f80
        v_cndmask_b32 v15, 0, -1, vcc
        v_cmp_eq_u32 vcc, 28, v22
        """)
        for i in range(8):
            a(f"v_pk_mul_f32 {vr(AK+2*i,2)}, {vr(AK+2*i,2)}, {vr(28,2)} op_sel_hi:[1,0]")
        a("v_cndmask_b32 v22, 0, v14, vcc")
        for i in range(8):
            a(f"v_cvt_pk_bf16_f32 v{KO+i}, v{AK+2*i}, v{AK+2*i+1}")
            if i == 3:
                a(f"buffer_store_dwordx4 {vr(KO,4)}, v1, {srd(SWS)}, s{sKT} offen sc1")
        a(f"""
        v_cndmask_b32 v{KO+6}, v14, v{KO+6}, s[{sLO}:{sLO+1}]
        v_cndmask_b32 v{KO+7}, v27, v{KO+7}, s[{sLO}:{sLO+1}]
        buffer_store_dwordx4 {vr(KO+4,4)}, v1, {srd(SWS)}, s{sKT} offen offset:1024 sc1
        s_waitcnt lgkmcnt(0)
        """)
        for hf in range(2):
            for i in range(4 * hf, 4 * hf + 4):
                a(f"v_pk_mul_f32 {vr(AV+2*i,2)}, {vr(AV+2*i,2)}, {vr(RS+2*i,2)}")
            for i in range(4 * hf, 4 * hf + 4):
                a(f"v_cvt_pk_bf16_f32 v{VO+i}, v{AV+2*i}, v{AV+2*i+1}")
            for i in range(4 * hf, 4 * hf + 4):
                a(f"v_and_or_b32 v{VO+i}, v{VO+i}, v15, v22")
            a(f"buffer_store_dwordx4 {vr(VO+4*hf,4)}, v1, {srd(SWS)}, s{sKT} offen offset:{2048+1024*hf} sc1")
        a(f"v_lshlrev_b32 v6, 2, v0\nv_add_u32 v6, 4096, v6")
        a("\n".join(self.kv_sum(KO, 7)))
        a(f"buffer_store_dword v7, v6, {srd(SWS)}, s{sKT} offen sc1")
        queue.extend([("st", 0)] * 5)
        self.stamp("kvpub")
        QR = 32
        lq = LQ(a)
        order = list(range(20)) + [24, 20, 21, 22, 23, 25, 26, 27]
        stage_end = {0: 1, 8: 4, 20: 6}

        def qread(n):
            G, p = divmod(order[n], 4)
            if n in stage_end:
                if self.P1S and n:
                    self.stamp(f"q{n}")
                a(f"s_waitcnt vmcnt({newer(('q', stage_end[n]))})\ns_barrier")
            for hlf in range(2):
                lq.op(f"ds_read_b64_tr_b16 {vr(QR+4*(n%8)+2*hlf,2)}, v{10+p} offset:{G*3072+2048+hlf*256}", n)

        PD = 3
        a(f"s_mov_b32 s{sA0}, 0xffff0000")
        for n in range(PD):
            qread(n)
        U = 108
        sub = Gen()
        sub.a(f"""
        v_add_f32 v{RS}, v{RS}, v{RS+1}
        v_add_f32 v{RS+2}, v{RS+2}, v{RS+3}
        v_add_f32 v{RS+4}, v{RS+4}, v{RS+5}
        v_add_f32 v{RS+6}, v{RS+6}, v{RS+7}
        v_add_f32 v{RS}, v{RS}, v{RS+2}
        v_add_f32 v{RS+4}, v{RS+4}, v{RS+6}
        v_add_f32 v{RS}, v{RS}, v{RS+4}
        """)
        sub.neg_split2(WEV, RS, 22)
        fin = [x[1].text for x in sub.a.items]
        for n in range(28):
            lq.wait(n)
            a(M32(AQ, QR + 4 * (n % 8), XF + 4 * order[n], AQ if n else None))
            if n + PD < 28:
                qread(n + PD)
            unp = lambda fr, u, k: f"v_lshlrev_b32 v{u+2*k}, 16, v{fr+k}\nv_and_b32 v{u+2*k+1}, s{sA0}, v{fr+k}"
            add = lambda u, k: f"v_add_f32 v{20+k%2}, v{20+k%2}, v{u+k}"
            if n < 20:
                p = n % 4
                fr = QR + 4 * ((n - p) % 8)
                if p < 2:
                    a(unp(fr, U, 2 * p) + "\n" + unp(fr, U, 2 * p + 1))
                else:
                    for k in range(4 * (p - 2), 4 * (p - 2) + 4):
                        a(add(U, k))
            elif n in (20, 21):
                for k in range(4):
                    a(unp(QR + 4 * (n % 8), U + 8 * (n - 20), k))
            elif n == 22:
                for k in range(16):
                    a(add(U, k))
                a("v_add_f32 v20, v20, v21")
                lq.op("ds_write_b32 v24, v20 offset:2048", "cs")
            elif n == 23:
                a(f"v_mul_f32 v28, {hex(fbits(LOG2E*28**-0.5))}, v28")
                lq.wait("cs")
                a("s_barrier")
                lq.op(f"ds_read_b128 {vr(RS,4)}, v23 offset:2048", "r")
                lq.op(f"ds_read_b128 {vr(RS+4,4)}, v23 offset:2064", "r")
            if n == self.FLAGAT:
                a(f"""
                s_waitcnt vmcnt(0)
                s_mov_b64 exec, 1
                buffer_store_dword v30, v31, {srd(SWS)}, s{sKVO} offen sc1
                s_mov_b64 exec, -1
                """)
            if n == 25:
                lq.wait("r")
                a("\n".join(fin[:6]))
            if n == 26:
                a("\n".join(fin[6:]))
        if self.P1S:
            self.stamp("qmm")
        a(M32(AQ, WEV, XE, AQ))
        if self.EARLY:
            a("\n".join(self.kv_load(1, k) for k in range(5)))
        QO = 80
        for i in range(8):
            a(f"v_pk_mul_f32 {vr(AQ+2*i,2)}, {vr(AQ+2*i,2)}, {vr(28,2)} op_sel_hi:[1,0]")
        for i in range(8):
            a(f"v_cvt_pk_bf16_f32 v{QO+i}, v{AQ+2*i}, v{AQ+2*i+1}")
        a(f"""
        v_cndmask_b32 v{QO+6}, 0, v{QO+6}, s[{sLO}:{sLO+1}]
        v_cndmask_b32 v{QO+7}, 0, v{QO+7}, s[{sLO}:{sLO+1}]
        """)
        S = 32
        a(M32(S, KO, QO))
        a(M32(S, KO + 4, QO + 4, S))
        a(f"ds_write_b128 v127, {vr(QO,4)}")
        a(f"""
        v_and_b32 v2, 15, v0
        v_lshlrev_b32 v2, 2, v2
        s_mov_b32 s{sA2}, 0x00010001
        s_lshl_b32 s{sA2}, s{sA2}, s{sB}
        s_mov_b32 s{sA3}, s{sA2}
        """)
        if self.P1S:
            self.stamp("smm")
        self.rowmax16(S, 22)
        if self.force_fb:
            a("v_add_f32 v22, 0xc3480000, v22")
        self.shift_split(22, 23, 24, 25)
        a(f"""
        v_cndmask_b32 v{QO+6}, v23, v{QO+6}, s[{sLO}:{sLO+1}]
        v_cndmask_b32 v{QO+7}, v24, v{QO+7}, s[{sLO}:{sLO+1}]
        ds_write_b128 v127, {vr(QO+4,4)} offset:1024
        """)
        if self.FLAGAT == 28:
            a(f"""
            s_waitcnt vmcnt({5 if self.EARLY else 0})
            s_mov_b64 exec, 1
            buffer_store_dword v30, v31, {srd(SWS)}, s{sKVO} offen sc1
            s_mov_b64 exec, -1
            """)
        a(f"""
        s_waitcnt lgkmcnt(0)
        s_barrier
        """)
        for p in range(4):
            a(f"ds_read_b128 {vr(128+8*p,4)}, v{124+p}")
            a(f"ds_read_b128 {vr(128+8*p+4,4)}, v{124+p} offset:1024")
        self.stamp("qdone")

    def rowmax16(self, S, d):
        self.a(f"""
        v_max3_f32 v{d}, v{S}, v{S+1}, v{S+2}
        v_max3_f32 v{d+1}, v{S+3}, v{S+4}, v{S+5}
        v_max3_f32 v{d}, v{d}, v{S+6}, v{S+7}
        v_max3_f32 v{d+1}, v{d+1}, v{S+8}, v{S+9}
        v_max3_f32 v{d}, v{d}, v{S+10}, v{S+11}
        v_max3_f32 v{d+1}, v{d+1}, v{S+12}, v{S+13}
        v_max3_f32 v{d}, v{d}, v{S+14}, v{S+15}
        v_max_f32 v{d}, v{d}, v{d+1}
        v_mov_b32 v{d+1}, v{d}
        v_permlane32_swap_b32 v{d}, v{d+1}
        v_max_f32 v{d}, v{d}, v{d+1}
        """)

    def shift_split(self, m, d6, d7, t):
        self.a(f"""
        v_cvt_pk_bf16_f32 v{d6}, -v{m}, -v{m}
        v_and_b32 v{d6}, 0xffff0000, v{d6}
        v_sub_f32_e64 v{d7}, -v{m}, v{d6}
        v_cvt_pk_bf16_f32 v{t}, v{d7}, v{d7}
        v_and_b32 v{t}, 0xffff0000, v{t}
        v_sub_f32 v{d7}, v{d7}, v{t}
        v_cvt_pk_bf16_f32 v{d6}, v{d6}, v{t}
        v_cvt_pk_bf16_f32 v{d7}, v{d7}, 0
        """)

    Q, O, SA, SB, TT, P = 128, 160, 32, 48, 64, 72
    KVB = (240, 224, 80, 96)
    XR2, W2, S4 = 240, 120, 112
    VTG = 116

    def unit(self, i, qt, extra):
        a = self.a
        Q, O, TT, P, B = self.Q, self.O, self.TT, self.P, self.KVB
        n = 4 * i + qt
        buf, bufn, bufp = B[i % 4], B[(i + 1) % 4], B[(i - 1) % 4]
        Sc, Sn = (self.SA, self.SB) if n % 2 == 0 else (self.SB, self.SA)
        kn = buf if qt < 3 else bufn
        qn, qp = (qt + 1) % 4, (qt - 1) % 4
        vp = (buf if qt > 0 else bufp) + 8
        ms = [M32(Sn, kn, Q + 8 * qn), M32(O + 16 * qp, vp + 4, P + 4, O + 16 * qp),
              M32(Sn, kn + 4, Q + 8 * qn + 4, Sn),
              M32(O + 16 * qt, buf + 8, P, None if i == 0 else O + 16 * qt)]
        for g in range(4):
            for x in extra.get(("pre", g), ()):
                a(x)
            if not (n == 0 and g == 1) and not (n == 63 and g in (0, 2)):
                a(ms[g])
            for x in extra.get(g, ()):
                a(x)
            tb, tp, pp = TT + 4 * (g % 2), TT + 4 * ((g + 1) % 2), P + 2 * ((g - 1) % 4)
            a(f"v_exp_f32 v{tb}, v{Sc+4*g}")
            a(f"v_exp_f32 v{tb+1}, v{Sc+4*g+1}")
            if not (n == 0 and g == 0):
                a(f"v_cvt_pk_bf16_f32 v{pp}, v{tp}, v{tp+1}")
                a(f"v_cvt_pk_bf16_f32 v{pp+1}, v{tp+2}, v{tp+3}")
            a(f"v_exp_f32 v{tb+2}, v{Sc+4*g+2}")
            a(f"v_exp_f32 v{tb+3}, v{Sc+4*g+3}")

    def kv_sum(self, buf, d):
        return [f"v_add3_u32 v{d}, v{buf+2*k}, v{buf+2*k+1}, v{d if k else 30}" for k in range(8)]

    def kv_load(self, i, part, buf=None):
        buf = self.KVB[i % 4] if buf is None else buf
        if part == 4:
            return f"buffer_load_dword v{14+i%4}, v6, {srd(SWS)}, s{sKT+i} offen sc1"
        return f"buffer_load_dwordx4 {vr(buf+4*part,4)}, v1, {srd(SWS)}, s{sKT+i} offen offset:{1024*part} sc1"

    NV = 3
    EARLY = 1
    POLLQ = 2

    def attention(self):
        a = self.a
        Q, O, P, TT, B = self.Q, self.O, self.P, self.TT, self.KVB
        NV = self.NV
        queue = []

        def newer(tag):
            k = max(i for i, t in enumerate(queue) if t == tag)
            return len(queue) - 1 - k

        def ld(i, part):
            queue.append((i, part))
            return self.kv_load(i, part)

        def other(text):
            if text.startswith("buffer_"):
                queue.append("o")
            return text

        first = [ld(1, k) for k in range(5)]
        if self.FLAGAT == 28 and self.EARLY:
            queue.append("f")
        if not self.EARLY:
            a("L_att:")
            a("\n".join(first))
        else:
            a("L_att:")
        a("s_waitcnt lgkmcnt(4)")
        a(M32(self.SA, B[0], Q))
        a(M32(self.SA, B[0] + 4, Q + 4, self.SA))
        self.retry = []

        def check(t):
            self.retry.append(t)
            return [f"s_waitcnt vmcnt({newer((t, 4))})", f"L_kvc{t}:"] + self.kv_sum(B[t % 4], 7) + \
                [f"v_cmp_ne_u32 vcc, v7, v{14+t%4}", f"s_cbranch_vccnz L_kvr{t}", f"L_kvd{t}:"]

        late = {}
        self.first_waits = True
        late[(12, 1)] = lines(f"""
        v_and_b32 v22, 31, v0
        v_lshrrev_b32 v23, 5, v0
        v_lshlrev_b32 v23, 3, v23
        v_mul_u32_u24 v22, 896, v22""")
        late[(12, 2)] = lines(f"""
        v_add_u32 v22, v22, v23
        s_mul_i32 s{sT1}, s{sW}, 56
        s_add_u32 s{sT0}, s{sROW}, s{sT1}
        s_mul_i32 s{sT2}, s{sC}, 224
        s_add_u32 s{sT1}, s{sT1}, s{sT2}""")
        xl = [f"buffer_load_dwordx2 {vr(self.XR2+2*g,2)}, v22, {srd(SX)}, s{sT0} offen offset:{16*g}" for g in range(4)]
        wl = [f"buffer_load_dwordx2 {vr(self.W2+2*g,2)}, v23, {srd(SWR)}, s{sT1} offen offset:{16*g}" for g in range(4)]
        late[(13, 0)] = wl[:1]
        late[(13, 1)] = wl[1:2] + xl[:1]
        late[(13, 2)] = wl[2:3] + xl[1:2]
        late[(13, 3)] = wl[3:] + xl[2:3]
        late[(14, 0)] = xl[3:] + lines(f"""
        s_lshl_b32 s{sA4}, s{sW}, 8
        s_add_u32 s{sA4}, s{sA4}, {WS_CLF}
        v_lshlrev_b32 v5, 2, v0""")
        late[(14, 1)] = [f"buffer_load_dword v4, v5, {srd(SWS)}, s{sA4} offen sc1"]
        cb = []
        for p in range(3):
            cb += lines(f"""
            s_add_u32 s{sT0}, s{sW}, {p+1}
            s_and_b32 s{sT0}, s{sT0}, 3
            s_mul_i32 s{sT0}, s{sT0}, 12288
            s_add_u32 s{sT0}, s{sT0}, {L_CB+p*4096}
            v_add_u32 v{10+p}, s{sT0}, v1""")
        cb += lines(f"""
        s_mul_i32 s{sT0}, s{sW}, 12288
        s_add_u32 s{sT0}, s{sT0}, {L_CB}
        v_add_u32 v13, s{sT0}, v1
        v_mov_b32 v8, {hex(fbits(2.0**100))}""")
        late[(14, 2)], late[(14, 3)], late[(15, 0)] = cb[:7], cb[7:13], cb[13:]
        wr = lambda p, k: f"ds_write_b128 v{10+p}, {vr(O+16*p+4*k,4)} offset:{k*1024}"
        for i in range(16):
            for qt in range(4):
                ex = {}
                if i == 0 and qt == 1:
                    ex[("pre", 0)] = ["s_waitcnt lgkmcnt(0)"]
                pre0 = ex.get(("pre", 0), [])
                if qt == 3 and i < 15:
                    pre0 = pre0 + (check(i + 1) if i + 1 <= NV else [f"s_waitcnt vmcnt({newer((i + 1, 3))})"])
                if i == NV - 2 and qt == 0:
                    pre0 = pre0 + lines(f"""
                    s_waitcnt vmcnt({newer("p")})
                    L_kvpoll:
                    v_cmp_ne_u32 vcc, s{sNON}, v3
                    s_andn2_b64 vcc, vcc, s[{sA2}:{sA3}]
                    s_cbranch_vccnz L_kvpr
                    L_kvok:""")
                ex[("pre", 0)] = pre0
                if i == NV - 3 and qt == self.POLLQ:
                    ex[1] = [f"buffer_load_dword v3, v2, {srd(SWS)}, s{sKVF} offen sc1"]
                    queue.append("p")
                if i == 0:
                    t = 2 + qt // 2
                    lds_ = [ld(t, k) for k in ((0, 1) if qt % 2 == 0 else (2, 3, 4))]
                    ex[2], ex[3] = lds_[:-1], lds_[-1:]
                else:
                    ex[0] = [other(x) for x in late.get((i, qt), [])]
                    if i + 3 <= 15:
                        ex[2] = [ld(i + 3, qt)]
                        if qt == 3 and i + 3 <= NV:
                            ex[3] = [ld(i + 3, 4)]
                if i == 15:
                    if qt == 1:
                        ex[3] = [wr(0, 0)]
                    if qt == 2:
                        ex[0], ex[1], ex[2], ex[3] = [wr(0, 1)], [wr(0, 2)], [wr(0, 3)], [wr(1, 0)]
                    if qt == 3:
                        ex[0], ex[1], ex[2], ex[3] = [wr(1, 1)], [wr(1, 2)], [wr(1, 3)], [wr(2, 0)]
                self.unit(i, qt, ex)
                if i == 0 and qt == 3:
                    self.stamp("kvok")
                if i == 0 and qt == 3:
                    a("s_barrier")
                if self.ATS and qt == 3 and i in (0, 1, 2, 4, 6, 8, 10, 12, 14):
                    self.stamp(f"t{i}")
        a(f"""
        v_cvt_pk_bf16_f32 v{P+6}, v{TT+4}, v{TT+5}
        v_cvt_pk_bf16_f32 v{P+7}, v{TT+6}, v{TT+7}
        v_add_f32 v9, v{O+12}, v{O+16+12}
        v_add_f32 v9, v9, v{O+32+12}
        """)
        a(M32(O + 48, B[3] + 12, P + 4, O + 48))
        a(wr(2, 1))
        a(wr(2, 2))
        a(wr(2, 3))
        self.stamp("attn")

    def combine(self):
        a = self.a
        O = self.O
        a(f"""
        L_clpoll:
        s_waitcnt vmcnt(0)
        v_cmp_ne_u32 vcc, s{sNON}, v4
        s_cbranch_vccz L_clok
        """)
        self.spin_guard("L_clok")
        a(f"""
        buffer_load_dword v4, v5, {srd(SWS)}, s{sA4} offen sc1
        s_branch L_clpoll
        L_clok:
        v_add_f32 v9, v9, v{O+48+12}
        v_cmp_nlt_f32 vcc, v9, v8
        s_andn2_b64 vcc, vcc, s[{sLO}:{sLO+1}]
        s_cbranch_vccnz L_bad
        L_badok:
        """)
        a(f"""
        s_waitcnt lgkmcnt(0)
        s_barrier
        """)
        if self.LOC:
            a(f"""
            s_and_b32 s{sT0}, s2, 0xe7
            s_lshl_b32 s{sT0}, s{sT0}, 2
            s_add_u32 s{sT0}, s{sT0}, {WS_XID}
            v_and_b32 v26, 3, v0
            v_lshlrev_b32 v26, 5, v26
            buffer_load_dword v28, v26, {srd(SWS)}, s{sT0} offen sc1
            """)
        order = (3, 0, 1, 2)
        for k in order:
            for p in range(3):
                a(f"ds_read_b128 {vr(O+16*p+4*k,4)}, v13 offset:{p*4096+k*1024}")
        R = O + 48
        for c, k in enumerate(order):
            a(f"s_waitcnt lgkmcnt({9-3*c})")
            for i in range(2):
                r = 4 * k + 2 * i
                a(f"v_pk_add_f32 {vr(R+r,2)}, {vr(R+r,2)}, {vr(O+r,2)}")
                a(f"v_pk_add_f32 {vr(O+16+r,2)}, {vr(O+16+r,2)}, {vr(O+32+r,2)}")
            for i in range(2):
                r = 4 * k + 2 * i
                a(f"v_pk_add_f32 {vr(R+r,2)}, {vr(R+r,2)}, {vr(O+16+r,2)}")
            if c == 0:
                a(f"""
                v_mov_b32 v8, v{R+12}
                v_mov_b32 v9, v{R+12}
                v_readlane_b32 s{sT0}, v{R+13}, 32
                v_permlane32_swap_b32 v8, v9
                s_cmp_eq_u32 s{sT0}, 0
                s_cbranch_scc1 L_noredo
                s_cmp_eq_u32 s{sPASS}, 0
                s_cbranch_scc1 L_redo
                L_noredo:
                v_rcp_f32 v8, v9
                """)
        OP = 32
        for hf in range(2):
            for i in range(4 * hf, 4 * hf + 4):
                a(f"v_pk_mul_f32 {vr(R+2*i,2)}, {vr(R+2*i,2)}, {vr(8,2)} op_sel_hi:[1,0]")
            for i in range(4 * hf, 4 * hf + 4):
                a(f"v_cvt_pk_bf16_f32 v{OP+i}, v{R+2*i}, v{R+2*i+1}")
            if hf:
                a(f"""
                v_cndmask_b32 v{OP+6}, 0, v{OP+6}, s[{sLO}:{sLO+1}]
                v_cndmask_b32 v{OP+7}, 0, v{OP+7}, s[{sLO}:{sLO+1}]
                """)
            a(f"buffer_store_dwordx4 {vr(OP+4*hf,4)}, v1, {srd(SWS)}, s99 offen offset:{1024*hf} sc1")
        a(f"""
        s_or_b32 s{sT0}, s2, s{sW}
        s_cmp_lg_u32 s{sT0}, 0
        s_cbranch_scc1 L_noepoch
        s_mov_b64 exec, 1
        buffer_store_dword v30, v31, {srd(SWS)}, 0 offen sc1
        s_mov_b64 exec, -1
        L_noepoch:
        """)
        self.stamp("opub")

    def helper_head(self):
        a = self.a
        if self.PT:
            a(f"""
            v_and_b32 v22, 31, v0
            v_mul_u32_u24 v22, 896, v22
            v_lshrrev_b32 v23, 5, v0
            v_lshl_add_u32 v2, v23, 7, v22
            s_lshl_b32 s{sA0}, s{sA5}, 5
            s_add_u32 s{sA0}, s{sA0}, s{sI}
            s_mul_i32 s{sA0}, s{sA0}, {32*896}
            v_mul_u32_u24 v22, 10923, v0
            v_lshrrev_b32 v22, 16, v22
            v_mul_u32_u24 v23, 6, v22
            v_sub_u32 v23, v0, v23
            v_min_u32 v22, 9, v22
            v_mul_u32_u24 v22, 2688, v22
            v_lshl_add_u32 v3, v23, 7, v22
            v_cmp_lt_u32 vcc, 2, v23
            v_add_u32 v4, {896-384}, v3
            v_cndmask_b32 v3, v3, v4, vcc
            v_mul_u32_u24 v22, 21846, v0
            v_lshrrev_b32 v22, 16, v22
            v_mul_u32_u24 v23, 3, v22
            v_sub_u32 v23, v0, v23
            v_min_u32 v22, 13, v22
            v_mul_u32_u24 v22, 2688, v22
            v_lshl_add_u32 v4, v23, 7, v22
            s_mul_i32 s{sT0}, s{sA4}, 224
            s_and_b32 s{sT0}, s{sT0}, -128
            s_mul_i32 s{sA1}, s{sI}, {10*2688}
            s_add_u32 s{sA1}, s{sA1}, s{sT0}
            s_add_u32 s{sA1}, s{sA1}, {128*2688+896}
            s_mul_i32 s{sA2}, s{sI}, {14*2688}
            s_add_u32 s{sA2}, s{sA2}, s{sT0}
            s_mov_b32 s{SX+2}, {2048*896}
            s_mov_b32 s{SX+3}, 0x20000
            s_mov_b32 s{SWQ+2}, {448*2688}
            s_mov_b32 s{SWQ+3}, 0x20000
            s_waitcnt lgkmcnt(0)
            s_mov_b32 s{SX}, s64
            s_mov_b32 s{SX+1}, s65
            s_mov_b32 s{SWQ}, s66
            s_mov_b32 s{SWQ+1}, s67
            {f"s_sleep {self.PT-1}" if self.PT > 1 else ""}
            buffer_load_dword v10, v2, {srd(SX)}, s{sA0} offen offset:256
            buffer_load_dword v11, v3, {srd(SWQ)}, s{sA1} offen
            buffer_load_dword v12, v2, {srd(SX)}, s{sA0} offen offset:512
            s_mov_b32 exec_hi, 0
            buffer_load_dword v13, v2, {srd(SX)}, s{sA0} offen offset:768
            s_mov_b32 exec_hi, -1
            buffer_load_dword v14, v4, {srd(SWQ)}, s{sA2} offen
            """)
        a("s_waitcnt lgkmcnt(0)")
        self.common_setup()
        self.a(f"""
        s_waitcnt lgkmcnt(0)
        s_mul_i32 s{sNON}, s{sNON}, 0x19660d
        s_add_u32 s{sNON}, s{sNON}, 0x3c6ef35f
        v_mov_b32 v30, s{sNON}
        """)
        return 0

    def helper(self, nbar):
        a = self.a
        a("L_helper:")
        done = self.helper_head()
        nbar -= done
        if self.CPF:
            a(f"""
            s_getpc_b64 s[52:53]
            L_pc:
            s_sub_u32 s52, s52, L_pc-{NAME}
            s_subb_u32 s53, s53, 0
            s_mul_i32 s{sT0}, s{sI}, {self.CPF*128}
            v_min_u32 v25, {self.CPF-1}, v0
            v_lshl_add_u32 v25, v25, 7, s{sT0}
            v_min_u32 v25, L_last-{NAME}, v25
            """)
        a(f"""
        v_lshlrev_b32 v1, 4, v0
        v_mov_b32 v4, -1
        v_mov_b32 v5, -1
        v_mov_b32 v6, -1
        v_mov_b32 v7, -1
        v_mov_b32 v31, 0
        v_lshrrev_b32 v22, 4, v0
        v_lshrrev_b32 v23, 2, v0
        v_sub_u32 v23, v23, v22
        v_and_b32 v23, 3, v23
        v_mul_u32_u24 v23, 56, v23
        v_mul_u32_u24 v22, 896, v22
        v_add_u32 v22, v22, v23
        v_and_b32 v23, 3, v0
        v_lshlrev_b32 v23, 4, v23
        v_min_u32 v23, 40, v23
        v_add_u32 v2, v22, v23
        v_lshlrev_b32 v3, 7, v0
        """)
        a(f"""
        v_mul_u32_u24 v22, 4682, v0
        v_lshrrev_b32 v22, 16, v22
        v_mul_u32_u24 v27, 14, v22
        v_sub_u32 v23, v0, v27
        v_mul_u32_u24 v27, 896, v22
        v_lshl_add_u32 v8, v23, 4, v27
        v_lshrrev_b32 v22, 2, v0
        v_min_u32 v22, 13, v22
        v_mul_u32_u24 v22, 3584, v22
        v_and_b32 v23, 3, v0
        v_lshl_add_u32 v22, v23, 7, v22
        s_mul_i32 s{sA0}, s{sXCD}, {7*32*896}
        s_mul_i32 s{sT1}, s{sI}, {49*128}
        s_add_u32 s{sA0}, s{sA0}, s{sT1}
        s_mul_i32 s{sA1}, s{sI}, {14*3584}
        s_mul_i32 s{sT1}, s{sXCD}, 448
        s_and_b32 s{sT1}, s{sT1}, -128
        s_add_u32 s{sA1}, s{sA1}, s{sT1}
        s_lshr_b32 s{sA2}, s{sI}, 2
        s_mul_i32 s{sA2}, s{sA2}, {self.WOROT}
        s_lshr_b32 s{sA2}, s{sA2}, 1
        s_mul_i32 s{sA4}, s{sC}, 224
        s_mul_i32 s{sA5}, s{sI}, {self.TSTAG}
        s_lshr_b32 s{sA5}, s{sA5}, 3
        s_add_u32 s{sA5}, s{sA5}, {self.TOFF}
        s_lshl_b32 s{sT0}, s{sB}, 6
        s_add_u32 s{sT0}, s{sT0}, s{sH}
        s_lshl_b32 s{sT0}, s{sT0}, 11
        s_add_u32 s64, s{sT0}, {WS_OF}
        s_add_u32 s65, s64, 32768
        s_add_u32 s66, s65, 32768
        s_add_u32 s67, s66, 32768
        s_lshl_b32 s{sT0}, s{sT}, 2
        s_add_u32 s{sT0}, s{sT0}, s{sC}
        s_lshl_b32 s{sT0}, s{sT0}, 9
        s_add_u32 s72, s{sT0}, {WS_STATS}
        s_lshl_b32 s{sT1}, s{sT}, 7
        s_add_u32 s73, s{sT1}, {WS_KEYS}
        s_cmp_eq_u32 s{sC}, 0
        s_cselect_b32 s73, s73, {OOB}
        s_mul_i32 s{sT0}, s{sF}, 14336
        s_add_u32 s74, s{sT0}, {WS_Y}
        s_add_u32 s75, s74, 4096
        s_add_u32 s76, s75, 4096
        s_add_u32 s77, s76, 4096
        s_lshl_b32 s{sT0}, s2, 2
        s_add_u32 s78, s{sT0}, {WS_CLF}
        """)
        for w in range(4):
            self.cand_base(68 + w, w)
        for nb in range(nbar):
            if self.KVT and nb == self.KVT - 1:
                a(f"""
                s_lshl_b32 s{sT0}, s{sH}, 4
                s_add_u32 s{sT0}, s{sT0}, s{sB}
                s_mul_i32 s{sT0}, s{sT0}, {4*KVS}
                s_add_u32 s{sT0}, s{sT0}, {WS_KV}
                buffer_load_dword v27, v3, {srd(SWS)}, s{sT0} offen sc1
                s_add_u32 s{sT0}, s{sT0}, 8192
                buffer_load_dword v27, v3, {srd(SWS)}, s{sT0} offen sc1
                s_add_u32 s{sT0}, s{sT0}, 8192
                s_mov_b64 exec, 0xff
                buffer_load_dword v27, v3, {srd(SWS)}, s{sT0} offen sc1
                s_mov_b64 exec, -1
                """.replace("buffer_load_dword v27", "buffer_atomic_add v31" if self.KVA else "buffer_load_dword v27"))
            if self.CPF and nb == self.CPB:
                a("global_load_dword v26, v25, s[52:53]")
            a("s_barrier")
        st = lambda v, so, off=0: f"buffer_store_dwordx4 v[4:7], v{v}, {srd(SWS)}, s{so} offen offset:{off} sc1"
        cl = [[st(1, 64 + w, 1024 * k)] for w in range(4) for k in range(2)]
        cl += [["s_mov_b32 exec_hi, 0xffffff", st(8, 68 + w), "s_mov_b32 exec_hi, -1"] for w in range(4)]
        cl += [["s_mov_b32 exec_hi, 0", st(1, 72), "s_mov_b64 exec, 3", st(1, 73), "s_mov_b64 exec, -1"]]
        if self.LOC:
            cl += [[f"s_getreg_b32 s{sT0}, hwreg(HW_REG_XCC_ID)", f"v_mov_b32 v21, s{sT0}", "s_mov_b64 exec, 1",
                    f"buffer_store_dword v21, v31, {srd(SWS)}, s78 offen offset:{WS_XID-WS_CLF} sc1", "s_mov_b64 exec, -1"]]
        ycl = [st(1, 74 + k // 4, 1024 * (k % 4)) for k in range(14)]
        if self.NOCL:
            cl, ycl = [], []
        for n in range(28):
            a(f"""
            s_mul_i32 s{sWOS}, s{sA2}, {16*896}
            s_add_u32 s{sWOS}, s{sWOS}, s{sA4}
            s_lshl_b32 s{sWOM}, s{sA2}, 12
            """)
            for k in range(4):
                a(f"""
                s_add_u32 m0, s{sWOM}, {1024*k}
                s_add_u32 s{sT0}, s{sWOS}, {4*896*k}
                buffer_load_dwordx4 v2, {srd(SWO)}, s{sT0} offen lds
                """)
            if cl:
                a("\n".join(cl.pop(0)))
            if ycl:
                a(f"s_cmp_lt_i32 s{sF}, 0\ns_cbranch_scc1 L_h_y{n}\n{ycl.pop(0)}\nL_h_y{n}:")
            if self.TOUCH:
                a(f"""
                s_cmp_lg_u32 s{sA5}, {n}
                s_cbranch_scc1 L_h_t{n}
                buffer_load_dword v20, v3, {srd(SWD)}, s{sA0} offen
                buffer_load_dword v20, v22, {srd(SWG)}, s{sA1} offen
                buffer_load_dword v20, v22, {srd(SWU)}, s{sA1} offen
                L_h_t{n}:
                """)
            a(f"""
            s_waitcnt vmcnt({self.WOQ})
            s_add_u32 s{sA2}, s{sA2}, 1
            s_cmp_eq_u32 s{sA2}, 28
            s_cselect_b32 s{sA2}, 0, s{sA2}
            """)
            if n == 13 + -(-self.WOQ // 4):
                a(f"""
                s_mov_b64 exec, 1
                buffer_store_dword v30, v31, {srd(SWS)}, s78 offen sc1
                s_mov_b64 exec, -1
                """)
        a(f"""
        s_waitcnt vmcnt(0)
        s_cmp_lt_i32 s{sF}, 0
        s_cbranch_scc1 L_h_end
        v_lshrrev_b32 v22, 2, v0
        v_mul_u32_u24 v22, 3584, v22
        v_and_b32 v23, 3, v0
        v_lshl_add_u32 v22, v23, 4, v22
        v_lshlrev_b32 v23, 12, v23
        v_add_u32 v23, {L_CB+3072+32*16+4}, v23
        s_lshl_b32 s{sA0}, s{sF}, 6
        s_mul_i32 s{sA1}, s{sF}, {32*896}
        """)
        if self.FREG:
            for j in range(28):
                a(f"""
                s_add_u32 s{sT2}, s{sA0}, {j*16*3584}
                buffer_load_dwordx4 {vr(32+8*j,4)}, v22, {srd(SWG)}, s{sT2} offen
                buffer_load_dwordx4 {vr(36+8*j,4)}, v22, {srd(SWU)}, s{sT2} offen
                """)
        a(f"""
        L_h_comb:
        s_barrier
        ds_read_b32 v24, v23
        s_waitcnt lgkmcnt(0)
        v_cmp_ne_u32 vcc, 0, v24
        s_cbranch_vccz L_h_go
        s_cmp_lg_u32 s{sPASS}, 0
        s_cbranch_scc1 L_h_go
        s_mov_b32 s{sPASS}, 1
        s_barrier
        s_barrier
        s_barrier
        s_barrier
        s_branch L_h_comb
        L_h_go:
        s_barrier
        s_barrier
        s_barrier
        """)
        wd = [f"""
            s_mov_b32 m0, {L_WD+r*928}
            s_add_u32 s{sT2}, s{sA1}, {r*896}
            s_mov_b32 exec_hi, 0xffffff
            buffer_load_dwordx4 v1, {srd(SWD)}, s{sT2} offen lds
            s_mov_b32 exec_hi, -1
            """ for r in range(32)]
        if self.FREG:
            a("s_waitcnt vmcnt(0)")
            for j in range(28):
                a(wd.pop(0))
                a(f"ds_write_b128 v1, {vr(32+8*j,4)} offset:{L_WG+j*1024}")
                a(f"ds_write_b128 v1, {vr(36+8*j,4)} offset:{L_WU+j*1024}")
        else:
            for j in range(28):
                a(f"""
                s_mov_b32 m0, {L_WG+j*1024}
                s_add_u32 s{sT2}, s{sA0}, {j*16*3584}
                buffer_load_dwordx4 v22, {srd(SWG)}, s{sT2} offen lds
                s_mov_b32 m0, {L_WU+j*1024}
                buffer_load_dwordx4 v22, {srd(SWU)}, s{sT2} offen lds
                """)
        for x in wd:
            a(x)
        a("s_waitcnt lgkmcnt(0)")
        a("s_waitcnt vmcnt(0)\nL_h_end:\nL_last:\ns_endpgm")

    WOROT = 7
    TSTAG = 7
    TOFF = 0
    FREG = 1
    KVT = 0
    KVA = 0
    LIN = 0
    LINP = 0
    PT = 0
    CPS = 1
    CPF = 11
    CPB = 1
    KVC = -1
    KVCN = 16
    WSB = 0
    NOCL = 0
    NOWO = 0
    TOUCH = 1
    HD1 = 0
    HD2 = 0
    HD3 = 0
    WOQ = 8

    def redo(self):
        a = self.a
        Q, B, S = self.Q, self.KVB, self.SA
        a(f"""
        L_bad:
        v_mov_b32 v8, 1.0
        v_cndmask_b32 v{self.O+48+13}, v8, v{self.O+48+13}, s[{sLO}:{sLO+1}]
        s_mov_b32 exec_lo, 0
        ds_write_b32 v10, v8 offset:3076
        ds_write_b32 v11, v8 offset:3076
        ds_write_b32 v12, v8 offset:3076
        s_mov_b32 exec_lo, -1
        s_branch L_badok
        """)
        for t in self.retry:
            a(f"L_kvr{t}:")
            self.spin_guard(f"L_kvd{t}")
            a("\n".join(self.kv_load(t, k) for k in range(5)))
            a(f"s_waitcnt vmcnt(0)\ns_branch L_kvc{t}")
        a("L_kvpr:")
        self.spin_guard("L_kvok")
        a(f"""
        buffer_load_dword v3, v2, {srd(SWS)}, s{sKVF} offen sc1
        s_waitcnt vmcnt(0)
        s_branch L_kvpoll
        """)
        MX = 8
        a(f"""
        L_redo:
        s_mov_b32 s{sPASS}, 1
        s_waitcnt vmcnt(0) lgkmcnt(0)
        s_barrier
        s_mov_b32 s{sA5}, 16
        s_lshl_b32 s{sT2}, s{sH}, 6
        s_add_u32 s{sT2}, s{sT2}, s{sW}
        s_mul_i32 s{sT2}, s{sT2}, {KVS}
        s_add_u32 s{sT2}, s{sT2}, {WS_KV}
        """)
        for p in range(4):
            a(f"v_mov_b32 v{MX+p}, 0xff800000")
        a(f"""
        L_redo_loop:
        buffer_load_dwordx4 {vr(B[1],4)}, v1, {srd(SWS)}, s{sT2} offen sc1
        buffer_load_dwordx4 {vr(B[1]+4,4)}, v1, {srd(SWS)}, s{sT2} offen offset:1024 sc1
        s_add_u32 s{sT2}, s{sT2}, {4*KVS}
        s_waitcnt vmcnt(0)
        """)
        for p in range(4):
            a(M32(S, B[1], Q + 8 * p))
            a(M32(S, B[1] + 4, Q + 8 * p + 4, S))
            self.rowmax16(S, 22)
            a(f"v_max_f32 v{MX+p}, v{MX+p}, v22")
        a(f"""
        s_sub_u32 s{sA5}, s{sA5}, 1
        s_cmp_lg_u32 s{sA5}, 0
        s_cbranch_scc1 L_redo_loop
        """)
        for p in range(4):
            a(f"""
            s_add_u32 s{sT0}, s{sW}, {p+1}
            s_and_b32 s{sT0}, s{sT0}, 3
            s_lshl_b32 s{sT0}, s{sT0}, 10
            s_add_u32 s{sT0}, s{sT0}, {L_CB}
            v_lshl_add_u32 v{12+p}, v0, 2, s{sT0}
            s_lshl_b32 s{sT1}, s{sW}, 8
            v_add_u32 v16, s{sT1}, v{12+p}
            ds_write_b32 v16, v{MX+p}
            """)
        a("s_waitcnt lgkmcnt(0)\ns_barrier")
        for p in range(4):
            for k in range(4):
                a(f"ds_read_b32 v{16+k}, v{12+p} offset:{k*256}")
            q6, q7 = Q + 8 * p + 6, Q + 8 * p + 7
            a(f"""
            s_waitcnt lgkmcnt(0)
            v_max3_f32 v16, v16, v17, v18
            v_max_f32 v16, v16, v19
            v_lshlrev_b32 v17, 16, v{q6}
            v_and_b32 v18, 0xffff0000, v{q6}
            v_lshlrev_b32 v19, 16, v{q7}
            v_add_f32 v18, v18, v19
            v_add_f32 v17, v17, v18
            v_sub_f32 v22, v16, v17
            """)
            self.shift_split(22, 23, 24, 25)
            a(f"""
            v_cndmask_b32 v{q6}, v23, v{q6}, s[{sLO}:{sLO+1}]
            v_cndmask_b32 v{q7}, v24, v{q7}, s[{sLO}:{sLO+1}]
            """)
        for part in range(4):
            a(self.kv_load(0, part))
        if self.EARLY:
            a("\n".join(self.kv_load(1, k) for k in range(5)))
        a(f"""
        s_waitcnt vmcnt(0)
        s_barrier
        s_branch L_att
        """)

    def finish(self):
        a = self.a
        a("L_fin:")
        if self.amp:
            a(f"""
            s_cmp_lg_u32 s2, {self.ampg}
            s_cbranch_scc1 L_end
            s_cmp_lg_u32 s{sW}, 0
            s_cbranch_scc1 L_end
            s_sub_u32 s84, s84, s100
            s_min_u32 s84, s84, 20000
            s_lshl_b32 s84, s84, 3
            s_memrealtime s[100:101]
            s_waitcnt lgkmcnt(0)
            L_amp:
            s_memrealtime s[82:83]
            s_waitcnt lgkmcnt(0)
            s_sub_u32 s82, s82, s100
            s_cmp_lt_u32 s82, s84
            s_cbranch_scc1 L_amp
            """)
        if self.ts:
            a(f"""
            s_lshl_b32 s{sT0}, s2, 2
            s_add_u32 s{sT0}, s{sT0}, s{sW}
            s_lshl_b32 s{sT0}, s{sT0}, 8
            s_add_u32 s{sT0}, s{sT0}, {WS_TS}
            s_mov_b64 exec, -1
            v_lshlrev_b32 v2, 2, v0
            buffer_store_dword {self.TSV}, v2, {srd(SWS)}, s{sT0} offen
            """)
        a("L_end:\ns_endpgm")

    def tail(self):
        pass

    def build(self):
        self.prologue()
        self.p1()
        nbar = sum(1 for k, x in self.a.items if k == "i" and x.op == "s_barrier")
        self.attention()
        self.combine()
        self.tail()
        self.finish()
        self.redo()
        self.helper(nbar + 1)
        npad = self.a.pad()
        body = self.a.text()
        hdr = open(os.path.join(os.path.dirname(os.path.abspath(__file__)), "header.txt")).read()
        out = hdr + f"""; @launch grid=(256,1,1) block=(320,1,1) lds={LDS_BYTES}
.amdgcn_target "amdgcn-amd-amdhsa--gfx950"
.text
.globl {NAME}
.p2align 8
.type {NAME},@function
{NAME}:
{body}
.section .rodata,"a"
.p2align 6
.amdhsa_kernel {NAME}
  .amdhsa_next_free_vgpr 256
  .amdhsa_next_free_sgpr 102
  .amdhsa_accum_offset 256
  .amdhsa_group_segment_fixed_size 0
  .amdhsa_kernarg_size 88
  .amdhsa_user_sgpr_count 2
  .amdhsa_user_sgpr_kernarg_segment_ptr 1
  .amdhsa_system_sgpr_workgroup_id_x 1
  .amdhsa_float_denorm_mode_32 3
.end_amdhsa_kernel
"""
        return out, npad


class Full(Gen):

    def piece_idx(self, i, tok, ch):
        self.a(f"""
        v_add_u32 v{ch}, {64*i}, v0
        v_mul_u32_u24 v{tok}, 4682, v{ch}
        v_lshrrev_b32 v{tok}, 16, v{tok}
        v_mul_u32_u24 v27, 14, v{tok}
        v_sub_u32 v{ch}, v{ch}, v27
        s_lshl_b32 s{sT0}, s{sW}, 3
        v_add_u32 v{tok}, s{sT0}, v{tok}
        """)

    def sentinel_any(self, regs, t):
        a = self.a
        regs = list(regs)
        a(f"v_max3_u32 v{t}, v{regs[0]}, v{regs[1]}, v{regs[2] if len(regs) > 2 else regs[1]}")
        for k in range(3, len(regs), 2):
            a(f"v_max3_u32 v{t}, v{t}, v{regs[k]}, v{regs[min(k+1, len(regs)-1)]}")
        a(f"v_cmp_eq_u32 vcc, -1, v{t}")

    def unpack(self, d, s):
        self.a(f"v_lshlrev_b32 v{d}, 16, v{s}\nv_and_b32 v{d+1}, 0xffff0000, v{s}")

    def tr_write(self, src, arr):
        a = self.a
        for g in range(3):
            a(f"ds_write_b64 v14, {vr(src+2*g,2)} offset:{arr*7680+16*g}")
        a(f"""
        s_mov_b32 exec_hi, 0
        ds_write_b64 v14, {vr(src+6,2)} offset:{arr*7680+48}
        s_mov_b32 exec_hi, -1
        """)

    def cand_write(self, src, off):
        a = self.a
        a(f"s_mov_b64 exec, s[{sM}:{sM+1}]")
        for g in range(3):
            a(f"ds_write_b64 v13, {vr(src+2*g,2)} offset:{off+16*g}")
        a(f"""
        s_mov_b32 exec_hi, 0
        ds_write_b64 v13, {vr(src+6,2)} offset:{off+48}
        s_mov_b64 exec, -1
        """)

    def p3(self):
        a = self.a
        XR2, W2, S4 = self.XR2, self.W2, self.S4
        XC, ACC, OFR, WR = 64, 48, 128, 80
        a(f"""
        v_lshrrev_b32 v23, 5, v0
        v_lshrrev_b32 v25, 2, v0
        v_and_b32 v25, 3, v25
        v_add_u32 v24, s{sW}, v25
        v_and_b32 v24, 3, v24
        v_lshl_add_u32 v25, v23, 2, v25
        v_lshlrev_b32 v25, 8, v25
        v_lshl_add_u32 v25, v24, 6, v25
        v_lshrrev_b32 v26, 4, v0
        v_and_b32 v26, 1, v26
        v_lshl_add_u32 v25, v26, 5, v25
        v_lshrrev_b32 v27, 1, v0
        v_and_b32 v27, v27, v26
        v_and_b32 v26, 3, v0
        v_xor_b32 v26, v26, v27
        v_lshl_add_u32 v25, v26, 3, v25
        v_lshlrev_b32 v23, 11, v23
        """)
        for qr in range(4):
            a(f"""
            s_add_u32 s{sT0}, s{sW}, {qr}
            s_and_b32 s{sT0}, s{sT0}, 3
            s_lshl_b32 s{sT1}, s{sT0}, 13
            s_add_u32 s{sT1}, s{sT1}, {L_CB}
            s_mul_i32 s{sT0}, s{sT0}, 28672
            v_add_u32 v{2+qr}, s{sT1}, v1
            v_add_u32 v{6+qr}, s{sT0}, v25
            v_sub_u32 v{10+qr}, v{6+qr}, v23
            """)
        for k in range(8):
            self.unpack(XC + 2 * k, XR2 + k)
        a(f"""
        v_cndmask_b32 v{W2+6}, 0, v{W2+6}, s[{sLO}:{sLO+1}]
        v_cndmask_b32 v{W2+7}, 0, v{W2+7}, s[{sLO}:{sLO+1}]
        v_mov_b32 v{S4}, 0
        """)
        for k in range(8):
            a(f"v_dot2c_f32_bf16 v{S4}, s{sONE}, v{W2+k}")
        a(f"""
        s_lshl_b32 s{sA0}, s{sT}, 2
        s_add_u32 s{sA0}, s{sA0}, s{sW}
        s_lshl_b32 s{sA0}, s{sA0}, 13
        s_add_u32 s{sA0}, s{sA0}, {WS_OF}
        s_add_u32 s{sA1}, s{sA0}, 4096
        s_lshl_b32 s{sA2}, s{sW}, 13
        s_add_u32 s{sA2}, s{sA2}, {L_CB}
        s_add_u32 s{sA3}, s{sA2}, 4096
        s_waitcnt vmcnt(0)
        """)
        if self.LOC:
            a(f"""
            s_getreg_b32 s{sT0}, hwreg(HW_REG_XCC_ID)
            v_cmp_ne_u32 s[{sLOC}:{sLOC+1}], s{sT0}, v28
            """)
        a("s_barrier")
        self.stamp("oack")
        a("L_odma:")
        for hf in range(2):
            a(f"s_mov_b32 m0, s{sA2+hf}")
            for k in range(4):
                a(f"buffer_load_dwordx4 v1, {srd(SWS)}, s{sA0+hf} offen offset:{1024*k} sc1 lds")
        lq = LQ(a)

        def oread(n):
            lq.op(f"ds_read_b128 {vr(OFR+4*n,4)}, v{2+n//8} offset:{(n%8)*1024}", ("o", n))

        def wread(n):
            qr, hl, j = n // 8, (n % 8) // 2, n % 2
            lq.op(f"ds_read_b64_tr_b16 {vr(WR+4*(n%4),2)}, v{6+qr} offset:{hl*7168+j*4096}", ("w", n))
            lq.op(f"ds_read_b64_tr_b16 {vr(WR+4*(n%4)+2,2)}, v{(10 if j else 6)+qr} offset:{hl*7168+j*4096+2048}", ("w", n))

        for n in range(3):
            wread(n)
        a("s_waitcnt vmcnt(0)")
        self.stamp("odma")
        for n in range(8):
            oread(n)
        onext = 8
        for n in range(32):
            lq.wait(("o", n) if lq.q.index(("o", n)) > max(i for i, t in enumerate(lq.q) if t == ("w", n)) else ("w", n))
            a(M32(ACC, WR + 4 * (n % 4), OFR + 4 * n, ACC if n else XC))
            if n + 3 < 32:
                wread(n + 3)
            if n < 4:
                if n == 0:
                    lq.wait(("o", 1))
                    a(f"v_max3_u32 v22, v{OFR}, v{OFR+1}, v{OFR+2}")
                    a(f"v_max3_u32 v23, v{OFR+3}, v{OFR+4}, v{OFR+5}")
                    a(f"v_max3_u32 v22, v22, v{OFR+6}, v{OFR+7}")
                else:
                    lq.wait(("o", 2 * n + 1))
                    for k in range(4):
                        r = OFR + 8 * n + 2 * k
                        a(f"v_max3_u32 v{22+k%2}, v{22+k%2}, v{r}, v{r+1}")
            if n == 3:
                a(f"""
                v_max_u32 v22, v22, v23
                v_cmp_eq_u32 vcc, -1, v22
                s_cbranch_vccz L_ook
                """)
                self.spin_guard("L_ook")
                a(f"""
                s_waitcnt lgkmcnt(0)
                s_branch {"L_ohint" if self.OL else "L_odma"}
                L_ook:
                s_barrier
                """)
            if n >= 4:
                for _ in range(2):
                    if onext < 32 and onext <= n + 8:
                        oread(onext)
                        onext += 1
        self.stamp("gemm")
        H2 = 32
        a(f"""
        v_and_b32 v22, 31, v0
        v_lshrrev_b32 v23, 5, v0
        v_lshlrev_b32 v23, 3, v23
        v_lshl_add_u32 v17, v22, 4, v23
        s_lshl_b32 s{sT0}, s{sW}, 9
        s_add_u32 s{sT0}, s{sT0}, {L_ST}
        v_add_u32 v18, s{sT0}, v17
        v_add_u32 v19, {L_ST}, v17
        v_mul_u32_u24 v22, 240, v22
        s_mul_i32 s{sT0}, s{sW}, 56
        s_add_u32 s{sT0}, s{sT0}, {L_TR}
        v_add3_u32 v14, v22, v23, s{sT0}
        v_mov_b32 v40, 0
        v_mov_b32 v41, 0
        v_mov_b32 v42, 0
        """)
        for k in range(8):
            a(f"v_cvt_pk_bf16_f32 v{H2+k}, v{ACC+2*k}, v{ACC+2*k+1}")
        a(f"""
        v_cndmask_b32 v{H2+6}, 0, v{H2+6}, s[{sLO}:{sLO+1}]
        v_cndmask_b32 v{H2+7}, 0, v{H2+7}, s[{sLO}:{sLO+1}]
        """)
        for k in range(8):
            a(f"v_dot2c_f32_bf16 v40, s{sONE}, v{H2+k}")
            a(f"v_dot2c_f32_bf16 v42, v{H2+k}, v{H2+k}")
            a(f"v_dot2c_f32_bf16 v41, v{W2+k}, v{H2+k}")
        a(f"""
        v_permlane32_swap_b32 v40, v42
        v_permlane32_swap_b32 v41, v{S4}
        v_add_f32 v40, v40, v42
        v_add_f32 v41, v41, v{S4}
        ds_write_b64 v18, v[40:41]
        s_lshl_b32 s{sA0}, s{sT}, 11
        s_add_u32 s{sA0}, s{sA0}, {WS_STATS}
        s_lshl_b32 s{sT0}, s{sC}, 9
        s_add_u32 s{sA1}, s{sA0}, s{sT0}
        s_lshl_b32 s{sT0}, s{sW}, 3
        s_lshl_b32 s{sT0}, 0xff, s{sT0}
        s_waitcnt lgkmcnt(0)
        s_barrier
        ds_read_b64 v[40:41], v19
        ds_read_b64 v[42:43], v19 offset:512
        ds_read_b64 v[44:45], v19 offset:1024
        ds_read_b64 v[46:47], v19 offset:1536
        s_waitcnt lgkmcnt(2)
        v_pk_add_f32 v[40:41], v[40:41], v[42:43]
        s_waitcnt lgkmcnt(0)
        v_pk_add_f32 v[44:45], v[44:45], v[46:47]
        v_pk_add_f32 v[40:41], v[40:41], v[44:45]
        v_mov_b32 v42, v40
        v_mov_b32 v43, v41
        v_permlane32_swap_b32 v40, v42
        v_permlane32_swap_b32 v41, v43
        s_mov_b32 exec_lo, s{sT0}
        s_mov_b32 exec_hi, 0
        """)
        if self.LOC:
            a(f"""
            s_cmp_eq_u64 s[{sLOC}:{sLOC+1}], 0
            s_cbranch_scc0 L_stfar
            buffer_store_dwordx4 v[40:43], v17, {srd(SWS)}, s{sA1} offen
            s_branch L_stdone
            L_stfar:
            """)
        a(f"""
        buffer_store_dwordx4 v[40:43], v17, {srd(SWS)}, s{sA1} offen sc1
        L_stdone:
        s_mov_b64 exec, -1
        v_and_b32 v22, 31, v0
        v_lshrrev_b32 v23, 5, v0
        v_lshlrev_b32 v23, 10, v23
        v_lshl_add_u32 v17, v22, 4, v23
        """)
        for i in range(2):
            self.piece_idx(i, 22, 23)
            a(f"""
            v_mov_b32 v{20+i}, v22
            v_mul_u32_u24 v27, 896, v22
            v_lshl_add_u32 v{self.VTG+i}, v23, 4, v27
            v_mul_u32_u24 v22, 240, v22
            v_lshl_add_u32 v22, v23, 4, v22
            v_add_u32 v{15+i}, {L_TR}, v22
            """)
        a(f"""
        v_mul_u32_u24 v22, 4682, v0
        v_lshrrev_b32 v22, 16, v22
        v_mul_u32_u24 v27, 14, v22
        v_sub_u32 v23, v0, v27
        v_mul_u32_u24 v27, 896, v22
        v_lshl_add_u32 v19, v23, 4, v27
        v_mul_u32_u24 v22, 240, v22
        v_lshl_add_u32 v22, v23, 4, v22
        s_mul_i32 s{sT0}, s{sW}, 960
        s_add_u32 s{sT0}, s{sT0}, {L_TR+7680}
        v_add_u32 v18, s{sT0}, v22
        """)
        self.cand_base(sA5, sW)
        HF = 64
        for k in range(8):
            self.unpack(HF + 2 * k, H2 + k)
        a("s_waitcnt vmcnt(0)")
        self.stamp("hack")
        a("L_stpoll:")
        for c in range(2):
            a(f"buffer_load_dwordx4 {vr(40+4*c,4)}, v17, {srd(SWS)}, s{sA0} offen offset:{512*c} sc1")
        a("s_waitcnt vmcnt(0)")
        self.sentinel_any(range(40, 48), 22)
        a("s_cbranch_vccz L_stok")
        self.spin_guard("L_stok")
        a("s_branch L_stpoll\nL_stok:")
        self.stamp("stok")
        a(f"""
        v_pk_add_f32 v[40:41], v[40:41], v[44:45]
        v_pk_add_f32 v[42:43], v[42:43], v[46:47]
        v_permlane32_swap_b32 v40, v42
        v_permlane32_swap_b32 v41, v43
        v_pk_add_f32 v[40:41], v[40:41], v[42:43]
        v_mov_b32 v42, v40
        v_mov_b32 v43, v41
        v_permlane32_swap_b32 v40, v42
        v_permlane32_swap_b32 v41, v43
        """)
        self.ln_scalars(40, 42, 44, 46, 22, 23)
        KEY = 47
        a(f"""
        v_fma_f32 v41, -v44, v43, v41
        v_mul_f32 v41, v41, v46
        v_cvt_pk_bf16_f32 v41, v41, v41
        v_ashrrev_i32 v22, 31, v41
        v_or_b32 v22, 0x80000000, v22
        v_xor_b32 v41, v41, v22
        v_and_b32 v41, 0xffff0000, v41
        v_lshrrev_b32 v41, 1, v41
        v_and_b32 v22, 31, v0
        s_lshl_b32 s{sT0}, s{sT}, 5
        s_sub_u32 s{sT0}, 2047, s{sT0}
        v_sub_u32 v22, s{sT0}, v22
        v_or_b32 v{KEY}, v41, v22
        v_mov_b32 v48, v{KEY}
        v_mov_b32 v49, v{KEY}
        v_permlane16_swap_b32 v48, v49
        v_cndmask_b32 v48, v49, v48, s[{sLO}:{sLO+1}]
        v_sub_u32 v80, v48, v{KEY}
        """)
        for n in range(1, 16):
            a(f"v_sub_u32_dpp v{80+n}, v48, v{KEY} row_ror:{n} row_mask:0xf bank_mask:0xf bound_ctrl:0".replace(" bound_ctrl:0", " bound_ctrl:1"))
        a("v_lshrrev_b32 v48, 31, v80\nv_lshrrev_b32 v49, 31, v81")
        for n in range(2, 16):
            a(f"v_alignbit_b32 v{48+n%2}, v{48+n%2}, v{80+n}, 31")
        a(f"""
        v_bcnt_u32_b32 v48, v48, 0
        v_bcnt_u32_b32 v48, v49, v48
        v_mov_b32 v49, v48
        v_permlane32_swap_b32 v48, v49
        v_add_u32 v48, v48, v49
        v_sub_u32 v48, 31, v48
        v_cmp_gt_u32 s[{sM}:{sM+1}], 8, v48
        v_lshlrev_b32 v49, 2, v48
        s_or_b32 s{sT0}, s{sW}, s{sC}
        s_cmp_lg_u32 s{sT0}, 0
        s_cbranch_scc1 L_norank
        ds_permute_b32 v49, v49, v{KEY}
        s_lshl_b32 s{sT0}, s{sT}, 7
        s_add_u32 s{sT0}, s{sT0}, {WS_KEYS}
        v_lshlrev_b32 v22, 2, v0
        s_mov_b64 exec, 0xff
        s_waitcnt lgkmcnt(0)
        buffer_store_dword v49, v22, {srd(SWS)}, s{sT0} offen sc1
        s_mov_b64 exec, -1
        L_norank:
        v_and_b32 v22, 31, v0
        v_sub_u32 v22, v48, v22
        v_mul_i32_i24 v22, 240, v22
        v_add_u32 v13, v14, v22
        """)
        self.cand_write(H2, 7680 + 1920)
        for k in range(8):
            self.unpack(HF + 2 * k, H2 + k) if False else None
        D, HN2, OUT2 = 80, 48, 56
        for k in range(8):
            a(f"v_pk_add_f32 {vr(D+2*k,2)}, {vr(HF+2*k,2)}, v[44:45] op_sel_hi:[1,0] neg_lo:[0,1] neg_hi:[0,1]")
        for k in range(8):
            a(f"v_cvt_pk_bf16_f32 v{HN2+k}, v{D+2*k}, v{D+2*k+1}")
        for k in range(8):
            self.unpack(D + 2 * k, HN2 + k)
        for k in range(8):
            a(f"v_pk_mul_f32 {vr(D+2*k,2)}, {vr(D+2*k,2)}, v[46:47] op_sel_hi:[1,0]")
        for k in range(8):
            a(f"v_cvt_pk_bf16_f32 v{HN2+k}, v{D+2*k}, v{D+2*k+1}")
        self.cand_write(HN2, 7680)
        a(f"""
        s_waitcnt lgkmcnt(0)
        s_barrier
        ds_read_b128 v[40:43], v18
        """)
        for k in range(8):
            self.unpack(D + 2 * k, HN2 + k)
        a(f"""
        s_mov_b32 exec_hi, 0xffffff
        s_waitcnt lgkmcnt(0)
        buffer_store_dwordx4 v[40:43], v19, {srd(SWS)}, s{sA5} offen sc1
        s_mov_b32 exec_hi, -1
        """)
        for k in range(8):
            a(f"v_pk_add_f32 {vr(D+2*k,2)}, {vr(D+2*k,2)}, {vr(HF+2*k,2)}")
        for k in range(8):
            a(f"v_cvt_pk_bf16_f32 v{OUT2+k}, v{D+2*k}, v{D+2*k+1}")
        self.tr_write(OUT2, 0)
        self.KEY = KEY

    def ffn_weights(self):
        a = self.a
        a(f"""
        s_cmp_lt_i32 s{sF}, 0
        s_cbranch_scc1 L_noffw
        v_lshrrev_b32 v22, 2, v0
        v_mul_u32_u24 v22, 3584, v22
        v_and_b32 v23, 3, v0
        v_lshl_add_u32 v22, v23, 4, v22
        s_mul_i32 s{sT0}, s{sW}, {7*16*3584}
        s_lshl_b32 s{sT1}, s{sF}, 6
        s_add_u32 s{sT0}, s{sT0}, s{sT1}
        s_mul_i32 s{sT1}, s{sW}, 7168
        """)
        for j in range(7):
            a(f"""
            s_add_u32 m0, s{sT1}, {L_WG+j*1024}
            s_add_u32 s{sT2}, s{sT0}, {j*16*3584}
            buffer_load_dwordx4 v22, {srd(SWG)}, s{sT2} offen lds
            s_add_u32 m0, s{sT1}, {L_WU+j*1024}
            buffer_load_dwordx4 v22, {srd(SWU)}, s{sT2} offen lds
            """)
        a(f"""
        s_lshl_b32 s{sT0}, s{sF}, 2
        s_add_u32 s{sT0}, s{sT0}, s{sW}
        s_mul_i32 s{sT0}, s{sT0}, {8*896}
        s_mul_i32 s{sT1}, s{sW}, {8*928}
        s_mov_b32 exec_hi, 0xffffff
        """)
        for r in range(8):
            a(f"""
            s_add_u32 m0, s{sT1}, {L_WD+r*928}
            s_add_u32 s{sT2}, s{sT0}, {r*896}
            buffer_load_dwordx4 v1, {srd(SWD)}, s{sT2} offen lds
            """)
        a("s_mov_b32 exec_hi, -1\nL_noffw:")

    def bisect(self, levels, tag):
        a = self.a
        L = 32
        lo, hi, mid = sA0, sA1, sTH
        a(f"""
        s_mov_b32 s{lo}, 0
        s_mov_b32 s{hi}, 0x80000000
        L_bis{tag}:
        s_add_u32 s{mid}, s{lo}, s{hi}
        s_lshr_b32 s{mid}, s{mid}, 1
        """)
        for j in range(levels):
            a(f"v_cmp_le_u32 s[{64+2*j}:{65+2*j}], s{mid}, v{L+j}")
        a(f"s_bcnt1_i32_b64 s{sA2}, s[64:65]")
        for j in range(1, levels):
            a(f"s_bcnt1_i32_b64 s{sA3}, s[{64+2*j}:{65+2*j}]\ns_add_u32 s{sA2}, s{sA2}, s{sA3}")
        a(f"""
        s_cmp_eq_u32 s{sA2}, 8
        s_cbranch_scc1 L_bisdone{tag}
        s_cmp_eq_u32 s{mid}, s{lo}
        s_cbranch_scc1 L_bisdone{tag}
        s_cmp_gt_u32 s{sA2}, 8
        s_cselect_b32 s{lo}, s{mid}, s{lo}
        s_cselect_b32 s{hi}, s{hi}, s{mid}
        s_branch L_bis{tag}
        L_bisdone{tag}:
        """)

    def extract(self, levels):
        a = self.a
        a(f"s_mov_b32 s{sA2}, 0")
        for j in range(levels):
            m = 64 + 2 * j
            a(f"""
            v_mbcnt_lo_u32_b32 v22, s{m}, 0
            v_mbcnt_hi_u32_b32 v22, s{m+1}, v22
            v_add_u32 v22, s{sA2}, v22
            v_min_u32 v22, 7, v22
            v_lshl_add_u32 v22, v22, 3, s{sA4}
            v_add_u32 v23, {j}, v3
            s_mov_b64 exec, s[{m}:{m+1}]
            ds_write2_b32 v22, v{32+j}, v23 offset1:1
            s_mov_b64 exec, -1
            """)
            if j + 1 < levels:
                a(f"s_bcnt1_i32_b64 s{sA3}, s[{m}:{m+1}]\ns_add_u32 s{sA2}, s{sA2}, s{sA3}")

    AF, BF, WD = 128, 192, 64

    def ffn_pre(self):
        a = self.a
        a(f"""
        v_lshrrev_b32 v8, 4, v0
        v_lshrrev_b32 v9, 2, v0
        v_and_b32 v9, 3, v9
        v_and_b32 v10, 3, v0
        v_lshlrev_b32 v10, 3, v10
        v_lshl_add_u32 v11, v8, 3, v9
        v_lshl_add_u32 v11, v11, 6, v10
        s_lshr_b32 s{sT0}, s{sW}, 1
        s_mul_i32 s{sT0}, s{sT0}, 28672
        s_and_b32 s{sT1}, s{sW}, 1
        s_lshl_b32 s{sT1}, s{sT1}, 5
        s_add_u32 s{sT0}, s{sT0}, s{sT1}
        v_add_u32 v11, s{sT0}, v11
        v_lshl_add_u32 v12, v8, 2, v9
        v_mul_u32_u24 v12, 928, v12
        s_mul_i32 s{sT0}, s{sW}, 224
        s_add_u32 s{sT0}, s{sT0}, {L_WD}
        v_add3_u32 v12, v12, v10, s{sT0}
        """)
        for s_ in range(14):
            a(f"ds_read_b64_tr_b16 {vr(self.AF+4*s_,2)}, v11 offset:{s_*2048}")
            a(f"ds_read_b64_tr_b16 {vr(self.AF+4*s_+2,2)}, v11 offset:{s_*2048+256}")
        a(f"""
        s_lshl_b32 s{sT0}, s{sW}, 4
        s_add_u32 s{sT0}, s{sT0}, s{sA4}
        v_mov_b32 v11, s{sT0}
        v_min_u32 v10, 55, v0
        v_lshlrev_b32 v10, 4, v10
        s_mul_i32 s{sT0}, s{sW}, 2112
        s_add_u32 s{sT0}, s{sT0}, {L_G}
        v_add_u32 v6, s{sT0}, v10
        """)

    def ffn_pre2(self):
        a = self.a
        for i in range(7):
            a(f"ds_read_b64_tr_b16 {vr(self.WD+4*i,2)}, v12 offset:{i*32}")
            a(f"ds_read_b64_tr_b16 {vr(self.WD+4*i+2,2)}, v12 offset:{i*32+16*928}")
        a(f"""
        v_lshrrev_b32 v8, 4, v0
        v_and_b32 v9, 7, v0
        v_mul_u32_u24 v13, 1056, v9
        v_lshl_add_u32 v13, v8, 4, v13
        v_add_u32 v13, {L_G}, v13
        v_lshlrev_b32 v9, 4, v9
        v_lshl_add_u32 v9, v8, 7, v9
        v_and_b32 v8, 8, v0
        v_lshl_add_u32 v9, v8, 6, v9
        v_lshlrev_b32 v8, 4, v0
        v_add_u32 v8, {L_AX}, v8
        s_lshl_b32 s{sT0}, s{sW}, 10
        v_add_u32 v7, s{sT0}, v8
        s_mul_i32 s{sT0}, s{sF}, 14336
        s_mul_i32 s{sT1}, s{sW}, 3584
        s_add_u32 s{sT0}, s{sT0}, s{sT1}
        s_add_u32 s99, s{sT0}, {WS_Y}
        """)

    def topk(self):
        a = self.a
        ld = f"""
        buffer_load_dwordx4 v[32:35], v2, {srd(SWS)}, s{sA1} offen sc1
        buffer_load_dwordx4 v[36:39], v2, {srd(SWS)}, s{sA1} offen offset:16 sc1
        """
        a(f"""
        v_lshlrev_b32 v2, 7, v0
        s_mov_b32 s{sA1}, {WS_KEYS}
        s_lshl_b32 s{sA4}, s{sW}, 6
        s_add_u32 s{sA4}, s{sA4}, {L_SEL}
        v_lshlrev_b32 v3, 3, v0
        s_waitcnt lgkmcnt(0)
        s_barrier
        s_cmp_lt_i32 s{sF}, 0
        s_cbranch_scc1 L_kwait
        """)
        if self.FPRE:
            self.ffn_pre()
            a(ld)
        else:
            a(ld)
            self.ffn_pre()
        a(f"""
        s_branch L_kchk
        L_kwait:
        """)
        if self.EOUT:
            self.out_rows(sM, "e", self.EOUTP)
        a(f"""
        s_waitcnt vmcnt({2 if self.EOUT else 0})
        s_cmp_lt_i32 s{sU}, 0
        s_cbranch_scc1 L_klate
        s_cmp_eq_u32 s{sW}, 0
        s_cbranch_scc0 L_klate
        {f"s_sleep {self.KS1}" if self.KS1 else ""}
        s_branch L_kpoll
        L_klate:
        {f"s_sleep {self.KS2}" if self.KS2 else ""}
        L_kpoll:
        {ld}
        L_kchk:
        s_waitcnt vmcnt(0)
        """)
        self.sentinel_any(range(32, 40), 22)
        a("s_cbranch_vccz L_kok")
        self.spin_guard("L_kok")
        a("s_branch L_kpoll\nL_kok:")
        self.stamp("kok")
        lo, hi, mid = sA0, sA1, sTH
        a(f"""
        v_max_u32_dpp v22, v32, v32 row_ror:1 row_mask:0xf bank_mask:0xf bound_ctrl:1
        v_max_u32_dpp v22, v22, v22 row_ror:2 row_mask:0xf bank_mask:0xf bound_ctrl:1
        v_max_u32_dpp v22, v22, v22 row_ror:4 row_mask:0xf bank_mask:0xf bound_ctrl:1
        v_max_u32_dpp v23, v22, v22 row_ror:8 row_mask:0xf bank_mask:0xf bound_ctrl:1
        v_min_u32_dpp v22, v22, v22 row_ror:8 row_mask:0xf bank_mask:0xf bound_ctrl:1
        v_readlane_b32 s64, v23, 0
        v_readlane_b32 s65, v23, 16
        v_readlane_b32 s66, v23, 32
        v_readlane_b32 s67, v23, 48
        v_readlane_b32 s68, v22, 0
        v_readlane_b32 s69, v22, 16
        v_readlane_b32 s70, v22, 32
        v_readlane_b32 s71, v22, 48
        s_max_u32 s64, s64, s65
        s_max_u32 s66, s66, s67
        s_min_u32 s68, s68, s69
        s_min_u32 s70, s70, s71
        s_max_u32 s{hi}, s64, s66
        s_min_u32 s{lo}, s68, s70
        s_min_u32 s{hi}, s{hi}, 0x7fffffff
        s_min_u32 s{lo}, s{lo}, s{hi}
        s_sub_u32 s{lo}, s{lo}, 1
        s_max_i32 s{lo}, s{lo}, 0
        L_bisa:
        """)
        for k in range(self.BIS):
            a(f"""
            s_add_u32 s{mid}, s{lo}, s{hi}
            s_lshr_b32 s{mid}, s{mid}, 1
            v_cmp_lt_u32 s[64:65], s{mid}, v32
            v_cmp_lt_u32 s[66:67], s{mid}, v33
            s_bcnt1_i32_b64 s{sA2}, s[64:65]
            s_bcnt1_i32_b64 s{sA3}, s[66:67]
            s_add_u32 s{sA2}, s{sA2}, s{sA3}
            s_cmp_eq_u32 s{sA2}, 8
            s_cbranch_scc1 L_bisdonea
            s_cmp_gt_u32 s{sA2}, 8
            s_cselect_b32 s{lo}, s{mid}, s{lo}
            s_cselect_b32 s{hi}, s{hi}, s{mid}
            """)
        a(f"""
        s_sub_u32 s{sA2}, s{hi}, s{lo}
        s_cmp_gt_u32 s{sA2}, 1
        s_cbranch_scc1 L_bisa
        s_branch L_topslow
        L_bisdonea:
        v_cmp_lt_u32 vcc, s{mid}, v34
        s_add_u32 s{mid}, s{mid}, 1
        s_cbranch_vccnz L_topslow
        """)
        self.extract(2)
        a(f"L_topdone:\nv_cmp_le_u32 s[80:81], s{sTH}, v{self.KEY}\ns_waitcnt lgkmcnt(0)")
        self.stamp("topk")

    BIS = 6
    EOUT = 0
    EOUTP = ' sc1'
    LOC = 1
    OUTP = ''
    KS1 = 12
    KS2 = 40
    YL = 1
    YS = 0
    OL = 0
    FPRE = 0

    def topk_slow(self):
        if self.OL:
            self.a(f"""
            L_ohint:
            v_and_b32 v22, 3, v0
            v_lshlrev_b32 v22, 11, v22
            v_add_u32 v22, 2044, v22
            L_ohint2:
            buffer_load_dword v23, v22, {srd(SWS)}, s{sA0} offen sc1
            s_waitcnt vmcnt(0)
            v_cmp_eq_u32 vcc, -1, v23
            s_cbranch_vccz L_odma
            """)
            self.spin_guard("L_odma")
            self.a("s_branch L_ohint2")
        self.a("L_topslow:")
        self.bisect(8, "b")
        self.extract(8)
        self.a("s_branch L_topdone")

    def key_token(self, d, k):
        self.a(f"v_and_b32 v{d}, 0x7ff, v{k}\nv_sub_u32 v{d}, 2047, v{d}")

    def ffn(self):
        a = self.a
        a(f"""
        s_cmp_lt_i32 s{sF}, 0
        s_cbranch_scc1 L_noffn
        ds_read2_b32 v[4:5], v11 offset0:1 offset1:3
        s_mov_b32 s{sA0}, {WS_HN}
        s_movk_i32 s{sA1}, 896
        s_waitcnt lgkmcnt(0)
        v_and_b32 v4, 511, v4
        v_and_b32 v5, 511, v5
        v_mad_u32_u24 v4, v4, s{sA1}, v10
        v_mad_u32_u24 v5, v5, s{sA1}, v10
        L_gpoll:
        buffer_load_dwordx4 v[32:35], v4, {srd(SWS)}, s{sA0} offen sc1
        buffer_load_dwordx4 v[36:39], v5, {srd(SWS)}, s{sA0} offen sc1
        """)
        self.ffn_pre2()
        a(f"""
        s_waitcnt vmcnt(1)
        ds_write_b128 v6, v[32:35]
        v_max3_u32 v22, v32, v33, v34
        s_waitcnt vmcnt(0)
        ds_write_b128 v6, v[36:39] offset:1056
        v_max3_u32 v22, v22, v35, v36
        v_max3_u32 v22, v22, v37, v38
        v_max_u32 v22, v22, v39
        v_cmp_eq_u32 vcc, -1, v22
        s_cbranch_vccz L_gok
        """)
        self.spin_guard("L_gok")
        a(f"""
        s_branch L_gpoll
        L_gok:
        """)
        self.stamp("gath")
        a("s_waitcnt lgkmcnt(0)\ns_barrier")
        lq = LQ(a)
        AF, BF, WD, D = self.AF, self.BF, self.WD, 40
        for s_ in range(14):
            lq.op(f"ds_read_b128 {vr(BF+4*s_,4)}, v13 offset:{s_*64}", s_)
        for s_ in range(14):
            if s_ % 2 == 0:
                lq.wait(s_ + 1)
            a(M16(D + 4 * (s_ % 2), AF + 4 * s_, BF + 4 * s_, D + 4 * (s_ % 2) if s_ > 1 else None))
        for k in range(4):
            a(f"v_add_f32 v{D+k}, v{D+k}, v{D+4+k}")
        a(f"""
        v_cvt_pk_bf16_f32 v44, v{D}, v{D+1}
        v_cvt_pk_bf16_f32 v45, v{D+2}, v{D+3}
        s_cmp_ge_u32 s{sW}, 2
        s_cbranch_scc1 L_nosilu
        """)
        self.unpack(48, 44)
        self.unpack(50, 45)
        for k in range(4):
            a(f"v_mul_f32 v{52+k}, {hex(fbits(-LOG2E))}, v{48+k}")
        for k in range(4):
            a(f"v_exp_f32 v{52+k}, v{52+k}")
        for k in range(4):
            a(f"v_add_f32 v{52+k}, 1.0, v{52+k}")
        for k in range(4):
            a(f"v_rcp_f32 v{52+k}, v{52+k}")
        for k in range(4):
            a(f"v_mul_f32 v{48+k}, v{48+k}, v{52+k}")
        a(f"""
        v_cvt_pk_bf16_f32 v44, v48, v49
        v_cvt_pk_bf16_f32 v45, v50, v51
        L_nosilu:
        v_lshlrev_b32 v40, 16, v44
        v_and_b32 v41, 0xffff0000, v44
        v_lshlrev_b32 v42, 16, v45
        v_and_b32 v43, 0xffff0000, v45
        ds_write_b128 v7, v[40:43]
        s_waitcnt lgkmcnt(0)
        s_barrier
        ds_read_b128 v[48:51], v8
        ds_read_b128 v[56:59], v8 offset:2048
        ds_read_b128 v[52:55], v8 offset:1024
        ds_read_b128 v[60:63], v8 offset:3072
        s_waitcnt lgkmcnt(2)
        v_pk_mul_f32 v[48:49], v[48:49], v[56:57]
        v_pk_mul_f32 v[50:51], v[50:51], v[58:59]
        s_waitcnt lgkmcnt(0)
        v_pk_mul_f32 v[52:53], v[52:53], v[60:61]
        v_pk_mul_f32 v[54:55], v[54:55], v[62:63]
        """)
        for k in range(4):
            a(f"v_cvt_pk_bf16_f32 v{44+k}, v{48+2*k}, v{49+2*k}")
        for i in range(7):
            a(M16(128 + 4 * i, WD + 4 * i, 44))
        a("s_mov_b32 vcc_lo, 0xff00ff00\ns_mov_b32 vcc_hi, 0xff00ff00")
        for i in range(0, 6, 2):
            for k in range(4):
                a(f"v_cndmask_b32 v{128+4*i+k}, v{128+4*i+k}, v{132+4*i+k}, vcc")
            a(f"buffer_store_dwordx4 {vr(128+4*i,4)}, v9, {srd(SWS)}, s99 offen offset:{512*i} sc1")
        a("s_mov_b32 exec_lo, 0x00ff00ff\ns_mov_b32 exec_hi, 0x00ff00ff")
        a(f"buffer_store_dwordx4 v[152:155], v9, {srd(SWS)}, s99 offen offset:3072 sc1")
        a("s_mov_b64 exec, -1")
        self.stamp("ypub")
        a("L_noffn:")

    def out_rows(self, mask=80, tag="", pol=None):
        a = self.a
        pol = self.OUTP if pol is None else pol
        a(f"""
        ds_read_b128 v[48:51], v15
        ds_read_b128 v[52:55], v16
        v_lshrrev_b32_e64 v22, v20, s{mask}
        v_lshrrev_b32_e64 v23, v21, s{mask}
        v_and_b32 v22, 1, v22
        v_and_b32 v23, 1, v23
        v_cmp_eq_u32 s[70:71], 0, v22
        v_cmp_eq_u32 vcc, 0, v23
        s_waitcnt lgkmcnt(0)
        s_mov_b64 exec, s[70:71]
        s_cbranch_execz L_out1{tag}
        buffer_store_dwordx4 v[48:51], v{self.VTG}, {srd(SOUT)}, s{sROW} offen{pol}
        L_out1{tag}:
        s_and_b32 vcc_hi, vcc_hi, 0xffff
        s_mov_b64 exec, vcc
        s_cbranch_execz L_out2{tag}
        buffer_store_dwordx4 v[52:55], v{self.VTG+1}, {srd(SOUT)}, s{sROW} offen{pol}
        L_out2{tag}:
        s_mov_b64 exec, -1
        """)

    def reducer(self):
        a = self.a
        a(f"""
        s_cmp_lt_i32 s{sU}, 0
        s_cbranch_scc1 L_fin
        s_cmp_lg_u32 s{sW}, 0
        s_cbranch_scc1 L_fin
        v_and_b32 v2, 7, v0
        v_lshl_add_u32 v3, v2, 3, s{sA4}
        ds_read_b64 v[12:13], v3
        v_lshrrev_b32 v5, 3, v0
        v_mul_u32_u24 v5, 14336, v5
        v_lshl_add_u32 v5, v2, 4, v5
        v_lshrrev_b32 v6, 4, v0
        s_lshl_b32 s{sT0}, s{sU}, 3
        v_lshl_add_u32 v6, v6, 1, s{sT0}
        s_movk_i32 s{sA1}, 896
        s_mov_b32 s{sA2}, {WS_HH}
        s_mov_b32 s{sA3}, {WS_HN}
        s_lshl_b32 s{sA0}, s{sU}, 7
        s_add_u32 s{sA0}, s{sA0}, {WS_Y}
        s_waitcnt lgkmcnt(0)
        """)
        self.key_token(7, 12)
        a(f"""
        v_and_b32 v13, 511, v13
        v_mad_u32_u24 v13, v13, s{sA1}, v6
        v_mad_u32_u24 v6, v7, s{sA1}, v6
        L_rpoll:
        buffer_load_ushort v8, v13, {srd(SWS)}, s{sA2} offen sc1
        buffer_load_ushort v9, v13, {srd(SWS)}, s{sA3} offen sc1
        v_lshlrev_b32 v10, 1, v12
        v_and_b32 v10, 0xffff0000, v10
        v_ashrrev_i32 v11, 31, v10
        v_not_b32 v11, v11
        v_or_b32 v11, 0x80000000, v11
        v_xor_b32 v10, v10, v11
        v_and_b32 v10, 0xffff0000, v10
        v_mul_f32 v10, {hex(fbits(-LOG2E))}, v10
        v_exp_f32 v10, v10
        v_add_f32 v10, 1.0, v10
        v_rcp_f32 v10, v10
        v_cvt_pk_bf16_f32 v10, v10, v10
        v_and_b32 v10, 0xffff0000, v10
        s_waitcnt vmcnt(0)
        v_max_u32 v11, v8, v9
        v_cmp_eq_u32 vcc, 0xffff, v11
        s_cbranch_vccz L_rok
        """)
        self.spin_guard("L_rok")
        a(f"""
        s_branch L_rpoll
        L_rok:
        v_lshlrev_b32 v8, 16, v8
        v_lshlrev_b32 v9, 16, v9
        """)
        self.stamp("rpre")
        if self.YS:
            a(f"s_sleep {self.YS}")
        if self.YL:
            a(f"""
            s_cmp_ge_u32 s{sU}, 56
            s_cselect_b32 s{sT0}, 56, 0
            s_sub_u32 s{sT0}, s{sU}, s{sT0}
            s_mul_i32 s{sT0}, s{sT0}, 14336
            s_add_u32 s{sA1}, s{sA0}, s{sT0}
            L_yhint:
            buffer_load_dword v32, v31, {srd(SWS)}, s{sA1} offen sc1
            s_waitcnt vmcnt(0)
            v_cmp_eq_u32 vcc, -1, v32
            s_cbranch_vccz L_ypoll
            """)
            self.spin_guard("L_ypoll")
            a(f"s_sleep {self.YL}\ns_branch L_yhint")
        a("L_ypoll:")
        for i in range(7):
            a(f"""
            s_add_u32 s{sT0}, s{sA0}, {i*8*14336}
            buffer_load_dwordx4 {vr(32+4*i,4)}, v5, {srd(SWS)}, s{sT0} offen sc1
            """)
        a("s_waitcnt vmcnt(0)")
        self.sentinel_any(range(32, 60), 22)
        a("s_cbranch_vccz L_yok")
        self.spin_guard("L_yok")
        a("s_branch L_ypoll\nL_yok:")
        self.stamp("yok")
        for (x, y) in ((32, 36), (40, 44), (48, 52), (32, 40), (48, 56), (32, 48)):
            a(f"v_pk_add_f32 {vr(x,2)}, {vr(x,2)}, {vr(y,2)}\nv_pk_add_f32 {vr(x+2,2)}, {vr(x+2,2)}, {vr(y+2,2)}")
        for k in range(4):
            a(f"v_add_f32_dpp v{36+k}, v{32+k}, v{32+k} row_ror:8 row_mask:0xf bank_mask:0xf bound_ctrl:1")
        a(f"""
        v_permlane16_swap_b32 v36, v37
        v_permlane16_swap_b32 v38, v39
        v_add_f32 v36, v36, v37
        v_add_f32 v38, v38, v39
        v_permlane32_swap_b32 v36, v38
        v_add_f32 v36, v36, v38
        v_cvt_pk_bf16_f32 v36, v36, v36
        v_and_b32 v36, 0xffff0000, v36
        v_mul_f32 v36, v36, v10
        v_cvt_pk_bf16_f32 v36, v36, v36
        v_and_b32 v36, 0xffff0000, v36
        v_add_f32 v36, v36, v9
        v_cvt_pk_bf16_f32 v36, v36, v36
        v_and_b32 v36, 0xffff0000, v36
        v_add_f32 v36, v36, v8
        v_cvt_pk_bf16_f32 v36, v36, v36
        s_mov_b32 exec_lo, 0x00ff00ff
        s_mov_b32 exec_hi, 0x00ff00ff
        buffer_store_short v36, v6, {srd(SOUT)}, 0 offen{self.OUTP}
        s_mov_b64 exec, -1
        """)
        self.stamp("rend")

    def tail(self):
        self.p3()
        self.topk()
        self.ffn()
        if self.EOUT:
            self.a(f"""
            s_cmp_lt_i32 s{sF}, 0
            s_cselect_b32 s{sT0}, s{sM}, -1
            s_not_b32 s{sT0}, s{sT0}
            s_or_b32 s80, s80, s{sT0}
            """)
        self.out_rows()
        self.reducer()

    def redo(self):
        self.topk_slow()
        super().redo()


if __name__ == "__main__":
    g = Full()
    s, n = g.build()
    sys.stdout.write(s)
    print("pads:", n, file=sys.stderr)
```

```python
import sys, os, struct
sys.path.insert(0, os.path.dirname(os.path.abspath(__file__)))
from asmb import Asm

NAME = "sequential_preLN__mha_block__moe_arch_mod__prompt_kernel"

WS_EPOCH = 0
WS_KVF = 0x1000
WS_CLF = 0x3000
WS_XID = 0x3800
WS_RES = 0x6000
WS_KEYS = 0x4000
WS_STATS = 0x20000
WS_KV = 0x100000
KVS = 4352
WS_OF = 0x580000
WS_HN = 0x780000
WS_HH = 0x800000
WS_Y = 0xB00000
WS_TS = 0xC00000
WS_SIZE = 0x1000000

L_W = 0
L_XR = 86016
L_CS = 151552
L_RS = 154624
L_QX = 155648
L_WO = 0
L_CB = 114688
L_ST = 147456
L_TR = 114688
L_SEL = 126208
L_AX = 126464
L_G = 138240
L_WG = 0
L_WU = 28672
L_WD = 149504
L_WD2 = 57344
LDS_BYTES = 163840

SX, SWQ, SWS, SWO, SOUT, SWG, SWU, SWD, SWR = 8, 12, 16, 20, 24, 28, 32, 36, 40
sW, sH, sB, sT, sC, sNON, sI, sXCD = 44, 45, 46, 47, 48, 49, 50, 51
sKG = 52
sXO = 59
sONE = 60
sT0, sT1, sT2 = 61, 62, 63
sLO = 86
sM = 88
sA0, sA1, sA2, sA3, sA4, sA5 = 90, 91, 92, 93, 94, 95
sKVF, sKVO = 82, 83
sLOC = 56
sSPIN = 96
sPASS = 97
sTH = 98
sKT = 64
SPIN_MAX = 1 << 17

LOG2E = 1.4426950408889634


def fbits(x):
    return struct.unpack("<I", struct.pack("<f", x))[0]


def srd(r):
    return f"s[{r}:{r+3}]"


def vr(a, n):
    return f"v[{a}:{a+n-1}]" if n > 1 else f"v{a}"


def M32(d, a, b, c=None):
    return f"v_mfma_f32_32x32x16_bf16 {vr(d,16)}, {vr(a,4)}, {vr(b,4)}, {vr(c,16) if c is not None else 0}"


def M16(d, a, b, c=None):
    return f"v_mfma_f32_16x16x32_bf16 {vr(d,4)}, {vr(a,4)}, {vr(b,4)}, {vr(c,4) if c is not None else 0}"


def lines(t):
    return [x.strip() for x in t.strip().split("\n") if x.strip()]


class LQ:
    def __init__(self, a):
        self.a, self.q = a, []

    def op(self, text, tag):
        self.a(text)
        self.q.append(tag)

    def wait(self, tag):
        k = max(i for i, t in enumerate(self.q) if t == tag)
        self.a(f"s_waitcnt lgkmcnt({min(len(self.q) - 1 - k, 15)})")


sF, sU = 3, 4
sWOS, sWOM = 5, 6
sROW = 7
OOB = 0x7F000000


class Gen:
    def __init__(self, stop=None, ts=False, rot=True, force_fb=False, **kw):
        self.a = Asm()
        self.stop = stop
        self.ts = ts
        self.rot = rot
        self.force_fb = force_fb
        self.nts = 0
        self.tsn = []
        for k, v in kw.items():
            setattr(self, k, v)

    amp = None
    ampg = 80

    def stamp(self, name=""):
        if self.amp:
            if name == "entry":
                self.a("s_memrealtime s[100:101]")
            elif name == self.amp:
                self.a("s_memrealtime s[84:85]\ns_waitcnt lgkmcnt(0)")
        if not self.ts:
            return
        k = self.nts
        self.nts += 1
        self.tsn.append(name)
        assert k < 32
        self.a(f"""
        s_memrealtime s[100:101]
        s_waitcnt lgkmcnt(0)
        v_writelane_b32 v254, s100, {k}
        s_memtime s[100:101]
        s_waitcnt lgkmcnt(0)
        v_writelane_b32 v254, s100, {32+k}
        """.replace("v254", self.TSV))

    def spin_guard(self, out_label):
        self.a(f"""
        s_add_u32 s{sSPIN}, s{sSPIN}, 1
        s_cmp_gt_u32 s{sSPIN}, {SPIN_MAX}
        s_cbranch_scc1 {out_label}
        """)

    def xhalf_sum(self, x, t):
        self.a(f"""
        v_mov_b32 v{t}, v{x}
        v_permlane32_swap_b32 v{x}, v{t}
        v_add_f32 v{x}, v{x}, v{t}
        """)

    def ln_scalars(self, S1, S2, mb, rs, t0, t1):
        self.a(f"""
        v_mul_f32 v{mb}, {hex(fbits(1/448))}, v{S1}
        v_mul_f32 v{t0}, {hex(fbits(1/448))}, v{S2}
        v_fma_f32 v{t0}, -v{mb}, v{mb}, v{t0}
        v_max_f32 v{t0}, 0, v{t0}
        v_cvt_pk_bf16_f32 v{t1}, v{mb}, v{t0}
        v_lshlrev_b32 v{mb}, 16, v{t1}
        v_and_b32 v{t0}, 0xffff0000, v{t1}
        v_add_f32 v{t0}, {hex(fbits(1e-5))}, v{t0}
        v_cvt_pk_bf16_f32 v{t0}, v{t0}, v{t0}
        v_and_b32 v{t0}, 0xffff0000, v{t0}
        v_sqrt_f32 v{t0}, v{t0}
        v_cvt_pk_bf16_f32 v{t0}, v{t0}, v{t0}
        v_and_b32 v{t0}, 0xffff0000, v{t0}
        v_rcp_f32 v{rs}, v{t0}
        """)

    def neg_split2(self, d, x, t):
        self.a(f"""
        v_cvt_pk_bf16_f32 v{t}, -v{x}, -v{x}
        v_and_b32 v{t}, 0xffff0000, v{t}
        v_sub_f32 v{d}, -v{x}, v{t}
        v_cvt_pk_bf16_f32 v{d}, v{t}, v{d}
        """.replace("v_sub_f32 ", "v_sub_f32_e64 "))

    def common_setup(self, scalar=True, only=None):
        self.a(f"""
        {"s_load_dword s%d, s[84:85], 0" % sNON if scalar else ""}
        s_lshl_b32 s{sT}, s{sA5}, 5
        s_lshl_b32 s{sT0}, s{sA4}, 3
        s_add_u32 s{sT}, s{sT}, s{sT0}
        s_and_b32 s{sT0}, s{sB}, 7
        s_add_u32 s{sT}, s{sT}, s{sT0}
        s_mov_b32 s{sONE}, 0x3f803f80
        s_mov_b32 s{sLO}, -1
        s_mov_b32 s{sLO+1}, 0
        s_mov_b32 s{sSPIN}, 0
        s_mov_b32 s{sPASS}, 0
        """)
        self.roles()
        self.srds(only)

    def prologue(self):
        a = self.a
        a(f"""
        s_cmp_ge_u32 s2, 256
        s_cbranch_scc1 L_end
        """)
        self.stamp("entry")
        a(f"""
        s_load_dwordx16 s[64:79], s[0:1], 0
        s_load_dwordx4 s[80:83], s[0:1], 64
        s_load_dwordx2 s[84:85], s[0:1], 80
        v_lshrrev_b32 v1, 6, v0
        v_and_b32 v0, 63, v0
        s_and_b32 s{sXCD}, s2, 7
        s_lshr_b32 s{sI}, s2, 3
        v_readfirstlane_b32 s{sW}, v1
        s_lshr_b32 s{sA4}, s{sXCD}, 1
        s_and_b32 s{sA5}, s{sXCD}, 1
        s_and_b32 s{sC}, s{sI}, 3
        s_lshr_b32 s{sT2}, s{sI}, 2
        s_lshl_b32 s{sB}, s{sA5}, 3
        s_add_u32 s{sB}, s{sB}, s{sT2}
        s_lshl_b32 s{sH}, s{sA4}, 2
        s_add_u32 s{sH}, s{sH}, s{sC}
        s_cmp_eq_u32 s{sW}, 4
        s_cbranch_scc1 L_helper
        v_lshrrev_b32 v22, 3, v0
        v_mul_u32_u24 v22, 896, v22
        v_lshrrev_b32 v23, 4, v0
        v_and_b32 v24, 7, v0
        v_xor_b32 v23, v23, v24
        v_lshl_add_u32 v1, v23, 4, v22
        v_xor_b32 v23, 4, v23
        v_lshl_add_u32 v2, v23, 4, v22
        v_add_u32 v2, {7168-1024}, v2
        v_add_u32 v3, {2*(7168-1024)}, v1
        v_add_u32 v4, {2*(7168-1024)}, v2
        v_lshrrev_b32 v22, 2, v0
        v_mul_u32_u24 v22, 2688, v22
        v_and_b32 v23, 3, v0
        v_lshlrev_b32 v23, 4, v23
        v_min_u32 v23, 40, v23
        v_add_u32 v5, v23, v22
        s_lshl_b32 s{sXO}, s{sB}, 2
        s_add_u32 s{sXO}, s{sXO}, s{sW}
        s_mul_i32 s{sXO}, s{sXO}, {32*896}
        s_lshl_b32 s{sA2}, s{sW}, 14
        s_add_u32 s{sA2}, s{sA2}, {L_XR}
        s_mul_i32 s{sA1}, s{sW}, {16*2688}
        s_mul_i32 s{sA3}, s{sH}, 56
        s_add_u32 s{sA1}, s{sA1}, s{sA3}
        s_add_u32 s{sA1}, s{sA1}, 896
        s_mul_i32 s{sA3}, s{sW}, 21504
        s_mov_b32 s{SX+2}, {2048*896}
        s_mov_b32 s{SX+3}, 0x20000
        s_mov_b32 s{SWQ+2}, {448*2688}
        s_mov_b32 s{SWQ+3}, 0x20000
        """)
        if self.ROT == 7:
            a(f"""
            s_lshl_b32 s{sKG}, s{sC}, 1
            s_add_u32 s{sKG}, s{sKG}, s{sT2}
            s_cmp_ge_u32 s{sKG}, 7
            s_cselect_b32 s{sT0}, 7, 0
            s_sub_u32 s{sKG}, s{sKG}, s{sT0}
            """)
        elif self.ROT > 1:
            a(f"""
            s_add_u32 s{sKG}, s{sC}, s{sT2}
            s_and_b32 s{sKG}, s{sKG}, {self.ROT-1}
            s_mul_i32 s{sKG}, s{sKG}, {self.ROTS}
            """)
        else:
            a(f"s_mov_b32 s{sKG}, 0")

        def nxt(G):
            a(f"""
            s_add_u32 s{sKG+G}, s{sKG+G-1}, 1
            s_cmp_eq_u32 s{sKG+G}, 7
            s_cselect_b32 s{sKG+G}, 0, s{sKG+G}
            """)
        nxt(1)
        if self.LIN:
            n = self.LIN
            a(f"""
            v_lshlrev_b32 v26, 7, v0
            s_and_b32 s{sT0}, s2, {7 if n == 1 else 3}
            s_lshl_b32 s{sT1}, s{sI}, {3 if n == 1 else 2}
            s_add_u32 s{sT0}, s{sT0}, s{sT1}
            s_mul_i32 s{sT1}, s{sT0}, {4704*n}
            s_mul_i32 s{sT0}, s{sT0}, {7168*n}
            s_and_b32 s99, s{sW}, 1
            s_mul_i32 s99, s99, {7168 if n == 2 else 0}
            s_add_u32 s98, s{sT0}, s99
            s_and_b32 s99, s{sW}, 1
            s_mul_i32 s99, s99, {4704 if n == 2 else 0}
            s_add_u32 s99, s{sT1}, s99
            """)
        a(f"""
        s_waitcnt lgkmcnt(0)
        s_mov_b32 s{SX}, s64
        s_mov_b32 s{SX+1}, s65
        s_mov_b32 s{SWQ}, s66
        s_mov_b32 s{SWQ+1}, s67
        """)
        self.stamp("karg")
        lin = []
        if self.LIN:
            lin = lines(f"""
            s_cmp_ge_u32 s{sW}, 2
            s_cbranch_scc1 L_linw
            s_mov_b32 exec_hi, 0xffffff
            buffer_load_dword v28, v26, {srd(SX)}, s98 offen
            s_branch L_lind
            L_linw:
            s_mov_b32 exec_hi, 0x3f
            buffer_load_dword v28, v26, {srd(SWQ)}, s99 offen
            L_lind:
            s_mov_b32 exec_hi, -1
            """)
        if self.LINP == 0:
            a("\n".join(lin))
        a("\n".join(self.dma_x(0) + self.dma_w(0)))
        if self.LINP == 1:
            a("\n".join(lin))
        for G in range(2, 7):
            nxt(G)
        if self.PRIO:
            a(f"s_setprio {self.PRIO}")
        a(f"s_mov_b32 s{sONE}, 0x3f803f80")
        a(f"""
        v_and_b32 v22, 31, v0
        v_lshrrev_b32 v23, 5, v0
        v_lshrrev_b32 v24, 1, v22
        v_and_b32 v24, 7, v24
        v_xor_b32 v24, v24, v23
        v_lshlrev_b32 v22, 7, v22
        v_add_u32 v22, s{sA2}, v22
        v_lshl_add_u32 v22, v24, 4, v22
        v_lshrrev_b32 v25, 2, v0
        v_and_b32 v25, 3, v25
        v_lshl_add_u32 v25, v23, 3, v25
        v_lshlrev_b32 v25, 6, v25
        v_lshrrev_b32 v26, 4, v0
        v_and_b32 v26, 1, v26
        v_lshl_add_u32 v25, v26, 5, v25
        v_lshrrev_b32 v27, 1, v0
        v_and_b32 v27, v27, v26
        v_and_b32 v26, 3, v0
        v_xor_b32 v26, v26, v27
        v_lshl_add_u32 v25, v26, 3, v25
        """)
        for p in range(4):
            a(f"""
            s_add_u32 s{sT0}, s{sW}, {p}
            s_and_b32 s{sT0}, s{sT0}, 3
            s_lshl_b32 s{sT1}, s{sT0}, 5
            s_mul_i32 s{sT2}, s{sT0}, 21504
            v_xor_b32 v{6+p}, s{sT1}, v22
            v_add_u32 v{10+p}, s{sT2}, v25
            """)
        for r in (14, 15, 16, 17, 18, 19, 31):
            a(f"v_mov_b32 v{r}, 0")
        self.stamp("b1")
        a("\n".join(self.dma_x(1)))
        self.stamp("issued")

    def late_setup(self):
        sub = Gen()
        a = sub.a
        sub.common_setup(scalar=False, only=(SWS, SOUT, SWR))
        for r in (20, 21, 97, 98, 99, 101, 102, 103, 105, 106, 107):
            a(f"v_mov_b32 v{r}, 0")
        a(f"v_lshlrev_b32 v26, 4, v0\nv_add_u32 v26, {L_QX}, v26")
        for p in range(4):
            a(f"""
            s_add_u32 s99, s{sW}, {p+1}
            s_and_b32 s99, s99, 3
            v_lshl_add_u32 v{124+p}, s99, 11, v26
            """)
        a(f"""
        s_lshl_b32 s99, s{sH}, 2
        s_add_u32 s99, s99, s{sW}
        s_lshl_b32 s99, s99, 7
        s_add_u32 s{sKVF}, s99, {WS_KVF}
        s_lshl_b32 s99, s{sB}, 2
        s_add_u32 s{sKVO}, s99, s{sKVF}
        s_lshl_b32 s99, s{sH}, 6
        s_add_u32 s99, s99, s{sW}
        s_mul_i32 s99, s99, {KVS}
        s_add_u32 s99, s99, {WS_KV}
        v_add_u32 v26, s{sB}, v0
        v_and_b32 v26, 15, v26
        v_mul_u32_u24 v26, {4*KVS}, v26
        v_add_u32 v26, s99, v26
        """)
        for i in range(16):
            a(f"v_readlane_b32 s{sKT+i}, v26, {i}")
        a(f"""
        s_lshl_b32 s98, s{sB}, 2
        s_add_u32 s98, s98, s{sW}
        s_lshl_b32 s98, s98, 4
        s_add_u32 s98, s98, s{sH}
        s_lshl_b32 s98, s98, 11
        s_add_u32 s99, s98, {WS_OF}
        """)
        return [x[1].text.replace(f"s{sT0}", "s98").replace(f"s{sT1}", "s99") for x in a.items]

    def roles(self):
        self.a(f"""
        s_lshr_b32 s{sT0}, s{sI}, 2
        s_sub_u32 s{sT0}, s{sI}, s{sT0}
        s_sub_u32 s{sT0}, s{sT0}, 1
        s_mul_i32 s{sT1}, s{sXCD}, 7
        s_add_u32 s{sF}, s{sT0}, s{sT1}
        s_cmp_lt_u32 s{sI}, 10
        s_cselect_b32 s{sF}, s{sF}, -1
        s_cmp_eq_u32 s{sC}, 0
        s_cselect_b32 s{sF}, -1, s{sF}
        s_mul_i32 s{sT1}, s{sXCD}, 14
        s_sub_u32 s{sT0}, s{sI}, 10
        s_add_u32 s{sU}, s{sT0}, s{sT1}
        s_cmp_lt_u32 s{sT0}, 14
        s_cselect_b32 s{sU}, s{sU}, -1
        s_mul_i32 s{sROW}, s{sT}, {32*896}
        s_mul_i32 s{sT0}, s{sC}, 224
        s_add_u32 s{sROW}, s{sROW}, s{sT0}
        """)

    def cand_base(self, d, w):
        w = f"s{w}" if w >= 4 else str(w)
        self.a(f"""
        s_lshl_b32 s{sT0}, s{sT}, 1
        s_and_b32 s{sT1}, {w}, 1
        s_add_u32 s{sT0}, s{sT0}, s{sT1}
        s_mul_i32 s{sT0}, s{sT0}, {4*896}
        s_mul_i32 s{sT1}, s{sC}, 224
        s_add_u32 s{sT0}, s{sT0}, s{sT1}
        s_lshr_b32 s{sT1}, {w}, 1
        s_mul_i32 s{sT1}, s{sT1}, {WS_HH-WS_HN}
        s_add_u32 s{sT0}, s{sT0}, s{sT1}
        s_add_u32 s{d}, s{sT0}, {WS_HN}
        """)

    def srds(self, only=None):
        for r, p, n in ((SWS, 84, WS_SIZE), (SWO, 68, 448 * 896), (SOUT, 80, 2048 * 896), (SWG, 74, 448 * 3584),
                        (SWU, 76, 448 * 3584), (SWD, 78, 1792 * 896), (SWR, 72, 896)):
            if only and r not in only:
                continue
            self.a(f"""
            s_mov_b32 s{r}, s{p}
            s_mov_b32 s{r+1}, s{p+1}
            s_mov_b32 s{r+2}, {n}
            s_mov_b32 s{r+3}, 0x20000
            """)

    def dma_x(self, G):
        if G > 6:
            return []
        return lines(f"""
        s_lshl_b32 s{sT0}, s{sKG+G}, 7
        s_add_u32 m0, s{sA2}, {(G%4)*4096}
        s_add_u32 s{sT0}, s{sT0}, s{sXO}
        buffer_load_dwordx4 v1, {srd(SX)}, s{sT0} offen lds
        buffer_load_dwordx4 v2, {srd(SX)}, s{sT0} offen offset:1024 lds
        buffer_load_dwordx4 v3, {srd(SX)}, s{sT0} offen offset:2048 lds
        buffer_load_dwordx4 v4, {srd(SX)}, s{sT0} offen offset:3072 lds
        """)

    def dma_w(self, G):
        return lines(f"""
        s_mul_i32 s{sKG+G}, s{sKG+G}, {64*2688}
        s_add_u32 m0, s{sA3}, {L_W+G*3072}
        s_add_u32 s{sKG+G}, s{sKG+G}, s{sA1}
        s_sub_u32 s{sT1}, s{sKG+G}, 128
        buffer_load_dwordx4 v5, {srd(SWQ)}, s{sKG+G} offen lds
        buffer_load_dwordx4 v5, {srd(SWQ)}, s{sT1} offen offset:1024 lds
        """)

    def dma_q(self, G):
        return [f"s_add_u32 m0, s{sA3}, {L_W+G*3072+2048}", f"s_sub_u32 s{sT1}, s{sKG+G}, 896",
                f"buffer_load_dwordx4 v5, {srd(SWQ)}, s{sT1} offen lds"]

    LA = 2
    HMAP = sum(h << (4 * k) for k, h in enumerate(range(16)))
    TSV = 'v29'
    ATS = 0
    P1S = 0
    FLAGAT = 29
    ROT = 4
    ROTS = 2
    NT = 0

    def touches(self):
        return []

    def p1(self):
        a = self.a
        XF, AK, AV, AQ, WF = 128, 32, 48, 64, 80
        XE = 96
        RS = 108
        KO, VO = 240, 248
        s1, s2, csK, csV = (14, 15), (16, 17), 18, 19
        WEK, WEV = 100, 104
        queue = [("x", 0)] * 4 + [("w", 0)] * 2 + [("l", 0)] * (1 if self.LIN and self.LINP == 1 else 0) + [("x", 1)] * 4

        def newer(tag):
            k = max(i for i, t in enumerate(queue) if t == tag)
            return len(queue) - 1 - k

        def xstats(G):
            for n in range(4 * G, 4 * G + 4):
                for i in range(4):
                    a(f"v_dot2c_f32_bf16 v{s1[i%2]}, s{sONE}, v{XF+4*n+i}")
                    a(f"v_dot2c_f32_bf16 v{s2[i%2]}, v{XF+4*n+i}, v{XF+4*n+i}")

        WBS = ([80, 88, 240, 248], [64, 72, 108, 116])

        def xreads(G):
            return [f"ds_read_b128 {vr(XF+4*(4*G+q),4)}, v{6+q} offset:{(G%4)*4096}" for q in range(4)] if G < 7 else []

        def wreads(G):
            WB = WBS[G % 2]
            return [f"ds_read_b64_tr_b16 {vr(WB[p]+4*t+2*hlf,2)}, v{10+p} offset:{G*3072+t*1024+hlf*256}"
                    for p in range(4) for t in range(2) for hlf in range(2)]

        def batch(G):
            r = []
            if G <= 6:
                r = self.dma_w(G) + self.dma_x(G + 1)
                queue.extend([("w", G)] * 2 + ([("x", G + 1)] * 4 if G < 6 else []))
            return r

        a(f"s_waitcnt vmcnt({newer(('x', 0))})")
        for x in xreads(0):
            a(x)
        self.stamp("x0")
        for x in batch(1):
            a(x)
        a("s_waitcnt lgkmcnt(0)")
        xstats(0)
        a(f"s_waitcnt vmcnt({newer(('x', 1))})\ns_barrier")
        self.stamp("g0")
        for x in wreads(0)[:4] + xreads(1) + wreads(0)[4:]:
            a(x)
        for x in batch(2):
            a(x)
        a(f"global_load_dword v30, v31, s[84:85] sc1")
        queue.append(("n", 0))
        if self.CPS:
            a(f"""
            s_getpc_b64 s[{sM}:{sM+1}]
            s_lshl_b32 s{sT0}, s{sI}, 2
            s_add_u32 s{sT0}, s{sT0}, s{sW}
            s_lshl_b32 s{sT0}, s{sT0}, 7
            v_mov_b32 v26, s{sT0}
            global_load_dword v27, v26, s[{sM}:{sM+1}]
            """)
            queue.append(("n", 0))
        setup = self.late_setup()
        nset = -(-len(setup) // 4)
        qsched = {4: [0, 1, 2, 3], 5: [4, 5, 6]}
        for G in range(7):
            WB = WBS[G % 2]
            if self.P1S:
                self.stamp(f"G{G}")
            a("s_waitcnt lgkmcnt(12)")
            for i in range(4):
                a(f"v_dot2c_f32_bf16 v{csK}, s{sONE}, v{WB[0]+i}")
                a(f"v_dot2c_f32_bf16 v{csV}, s{sONE}, v{WB[0]+4+i}")
            if G < 6:
                xstats(G + 1)
            else:
                a(f"""
                ds_write_b32 v24, v{csK}
                ds_write_b32 v24, v{csV} offset:1024
                """)
            gaps = [[] for _ in range(8)]
            early = batch(G + 3)
            for k in qsched.get(G, ()):
                early += self.dma_q(k)
                queue.append(("q", k))
            if G == 3:
                early += lines(f"""v_readfirstlane_b32 s{sNON}, v30
                s_mul_i32 s{sNON}, s{sNON}, 0x19660d
                s_add_u32 s{sNON}, s{sNON}, 0x3c6ef35f
                v_mov_b32 v30, s{sNON}""")
            if G == 4:
                early += lines(f"""v_and_b32 v22, 31, v0
                v_lshlrev_b32 v22, 5, v22
                v_add_u32 v23, {L_CS}, v22
                v_lshrrev_b32 v24, 5, v0
                s_lshl_b32 s{sT0}, s{sW}, 3
                v_lshl_add_u32 v24, v24, 2, v23
                v_add_u32 v24, s{sT0}, v24""")
            if G == 5:
                sub = Gen()
                sub.a(f"""
                v_add_f32 v14, v14, v15
                v_add_f32 v16, v16, v17
                v_permlane32_swap_b32 v14, v16
                v_add_f32 v14, v14, v16
                v_mov_b32 v16, v14
                v_permlane32_swap_b32 v14, v16
                """)
                sub.ln_scalars(14, 16, 26, 28, 15, 17)
                sub.a(f"""
                v_lshrrev_b32 v15, 16, v26
                v_or_b32 v15, v15, v26
                v_cndmask_b32 v{XE}, 0, v15, s[{sLO}:{sLO+1}]
                v_and_b32 v15, 31, v0
                s_lshl_b32 s{sT0}, s{sW}, 7
                s_add_u32 s{sT0}, s{sT0}, {L_RS}
                v_lshl_add_u32 v15, v15, 2, s{sT0}
                v_lshrrev_b32 v25, 5, v0
                v_lshl_add_u32 v25, v25, 4, s{sT0}
                ds_write_b32 v15, v28
                """)
                stats = [x[1].text for x in sub.a.items]
                early = early + stats[:8]
                stats = stats[8:]
            if G < 6:
                per = -(-len(early) // 3)
                for k in range(3):
                    gaps[k] = early[k * per:(k + 1) * per]
                w = wreads(G + 1)
                rd = w[:4] + xreads(G + 2) + w[4:]
                gaps[2] += setup[:nset]
                setup = setup[nset:]
                gaps[2] += [f"s_waitcnt vmcnt({newer(('x', G+2) if G < 5 else ('w', 6))})", "s_barrier"]
                per = -(-len(rd) // 5)
                for k in range(5):
                    gaps[3 + k] = rd[per * k:per * k + per]
            else:
                sub = Gen()
                for mat, we in ((0, WEK), (1, WEV)):
                    r = RS + 8 * mat
                    sub.a(f"""
                    v_add_f32 v{r}, v{r}, v{r+1}
                    v_add_f32 v{r+2}, v{r+2}, v{r+3}
                    v_add_f32 v{r+4}, v{r+4}, v{r+5}
                    v_add_f32 v{r+6}, v{r+6}, v{r+7}
                    v_add_f32 v{r}, v{r}, v{r+2}
                    v_add_f32 v{r+4}, v{r+4}, v{r+6}
                    v_add_f32 v{r}, v{r}, v{r+4}
                    """)
                    sub.neg_split2(we, r, 22)
                Bc = [x[1].text for x in sub.a.items]
                gaps[0] = stats[:4] + ["s_waitcnt lgkmcnt(0)", "s_barrier"] + \
                    [f"ds_read_b128 {vr(RS+4*i,4)}, v23 offset:{(i//2)*1024+(i%2)*16}" for i in range(4)]
                A = stats[4:]
                mix = A[:6] + ["s_waitcnt lgkmcnt(0)"]
                A = A[6:]
                while A or Bc:
                    mix += A[:1] + Bc[:2]
                    A, Bc = A[1:], Bc[2:]
                per = -(-len(mix) // 7)
                for k in range(7):
                    gaps[1 + k] = mix[k * per:(k + 1) * per]
            for p in range(4):
                m = 4 * G + p
                if p == 1 and G < 6:
                    a("s_waitcnt lgkmcnt(0)")
                a(M32(AK, WB[p], XF + 4 * m, AK if m else None))
                for x in gaps[2 * p]:
                    a(x)
                a(M32(AV, XF + 4 * m, WB[p] + 4, AV if m else None))
                for x in gaps[2 * p + 1]:
                    a(x)
        a(M32(AK, WEK, XE, AK))
        a("s_waitcnt lgkmcnt(0)")
        for g in range(4):
            a(f"ds_read_b128 {vr(RS+4*g,4)}, v25 offset:{g*32}")
        a(M32(AV, XE, WEV, AV))
        a(f"""
        v_lshlrev_b32 v1, 4, v0
        v_and_b32 v22, 31, v0
        v_cmp_gt_u32 vcc, 28, v22
        v_mov_b32 v14, s{sONE}
        v_mov_b32 v27, 0x3f80
        v_cndmask_b32 v15, 0, -1, vcc
        v_cmp_eq_u32 vcc, 28, v22
        """)
        for i in range(8):
            a(f"v_pk_mul_f32 {vr(AK+2*i,2)}, {vr(AK+2*i,2)}, {vr(28,2)} op_sel_hi:[1,0]")
        a("v_cndmask_b32 v22, 0, v14, vcc")
        for i in range(8):
            a(f"v_cvt_pk_bf16_f32 v{KO+i}, v{AK+2*i}, v{AK+2*i+1}")
            if i == 3:
                a(f"buffer_store_dwordx4 {vr(KO,4)}, v1, {srd(SWS)}, s{sKT} offen sc1")
        a(f"""
        v_cndmask_b32 v{KO+6}, v14, v{KO+6}, s[{sLO}:{sLO+1}]
        v_cndmask_b32 v{KO+7}, v27, v{KO+7}, s[{sLO}:{sLO+1}]
        buffer_store_dwordx4 {vr(KO+4,4)}, v1, {srd(SWS)}, s{sKT} offen offset:1024 sc1
        s_waitcnt lgkmcnt(0)
        """)
        for hf in range(2):
            for i in range(4 * hf, 4 * hf + 4):
                a(f"v_pk_mul_f32 {vr(AV+2*i,2)}, {vr(AV+2*i,2)}, {vr(RS+2*i,2)}")
            for i in range(4 * hf, 4 * hf + 4):
                a(f"v_cvt_pk_bf16_f32 v{VO+i}, v{AV+2*i}, v{AV+2*i+1}")
            for i in range(4 * hf, 4 * hf + 4):
                a(f"v_and_or_b32 v{VO+i}, v{VO+i}, v15, v22")
            a(f"buffer_store_dwordx4 {vr(VO+4*hf,4)}, v1, {srd(SWS)}, s{sKT} offen offset:{2048+1024*hf} sc1")
        a(f"v_lshlrev_b32 v6, 2, v0\nv_add_u32 v6, 4096, v6")
        a("\n".join(self.kv_sum(KO, 7)))
        a(f"buffer_store_dword v7, v6, {srd(SWS)}, s{sKT} offen sc1")
        queue.extend([("st", 0)] * 5)
        self.stamp("kvpub")
        QR = 32
        lq = LQ(a)
        order = list(range(20)) + [24, 20, 21, 22, 23, 25, 26, 27]
        stage_end = {0: 1, 8: 4, 20: 6}

        def qread(n):
            G, p = divmod(order[n], 4)
            if n in stage_end:
                if self.P1S and n:
                    self.stamp(f"q{n}")
                a(f"s_waitcnt vmcnt({newer(('q', stage_end[n]))})\ns_barrier")
            for hlf in range(2):
                lq.op(f"ds_read_b64_tr_b16 {vr(QR+4*(n%8)+2*hlf,2)}, v{10+p} offset:{G*3072+2048+hlf*256}", n)

        PD = 3
        a(f"s_mov_b32 s{sA0}, 0xffff0000")
        for n in range(PD):
            qread(n)
        U = 108
        sub = Gen()
        sub.a(f"""
        v_add_f32 v{RS}, v{RS}, v{RS+1}
        v_add_f32 v{RS+2}, v{RS+2}, v{RS+3}
        v_add_f32 v{RS+4}, v{RS+4}, v{RS+5}
        v_add_f32 v{RS+6}, v{RS+6}, v{RS+7}
        v_add_f32 v{RS}, v{RS}, v{RS+2}
        v_add_f32 v{RS+4}, v{RS+4}, v{RS+6}
        v_add_f32 v{RS}, v{RS}, v{RS+4}
        """)
        sub.neg_split2(WEV, RS, 22)
        fin = [x[1].text for x in sub.a.items]
        for n in range(28):
            lq.wait(n)
            a(M32(AQ, QR + 4 * (n % 8), XF + 4 * order[n], AQ if n else None))
            if n + PD < 28:
                qread(n + PD)
            unp = lambda fr, u, k: f"v_lshlrev_b32 v{u+2*k}, 16, v{fr+k}\nv_and_b32 v{u+2*k+1}, s{sA0}, v{fr+k}"
            add = lambda u, k: f"v_add_f32 v{20+k%2}, v{20+k%2}, v{u+k}"
            if n < 20:
                p = n % 4
                fr = QR + 4 * ((n - p) % 8)
                if p < 2:
                    a(unp(fr, U, 2 * p) + "\n" + unp(fr, U, 2 * p + 1))
                else:
                    for k in range(4 * (p - 2), 4 * (p - 2) + 4):
                        a(add(U, k))
            elif n in (20, 21):
                for k in range(4):
                    a(unp(QR + 4 * (n % 8), U + 8 * (n - 20), k))
            elif n == 22:
                for k in range(16):
                    a(add(U, k))
                a("v_add_f32 v20, v20, v21")
                lq.op("ds_write_b32 v24, v20 offset:2048", "cs")
            elif n == 23:
                a(f"v_mul_f32 v28, {hex(fbits(LOG2E*28**-0.5))}, v28")
                lq.wait("cs")
                a("s_barrier")
                lq.op(f"ds_read_b128 {vr(RS,4)}, v23 offset:2048", "r")
                lq.op(f"ds_read_b128 {vr(RS+4,4)}, v23 offset:2064", "r")
            if n == self.FLAGAT:
                a(f"""
                s_waitcnt vmcnt(0)
                s_mov_b64 exec, 1
                buffer_store_dword v30, v31, {srd(SWS)}, s{sKVO} offen sc1
                s_mov_b64 exec, -1
                """)
            if n == 25:
                lq.wait("r")
                a("\n".join(fin[:6]))
            if n == 26:
                a("\n".join(fin[6:]))
        if self.P1S:
            self.stamp("qmm")
        a(M32(AQ, WEV, XE, AQ))
        if self.EARLY:
            a("\n".join(self.kv_load(1, k) for k in range(5)))
        QO = 80
        for i in range(8):
            a(f"v_pk_mul_f32 {vr(AQ+2*i,2)}, {vr(AQ+2*i,2)}, {vr(28,2)} op_sel_hi:[1,0]")
        for i in range(8):
            a(f"v_cvt_pk_bf16_f32 v{QO+i}, v{AQ+2*i}, v{AQ+2*i+1}")
        a(f"""
        v_cndmask_b32 v{QO+6}, 0, v{QO+6}, s[{sLO}:{sLO+1}]
        v_cndmask_b32 v{QO+7}, 0, v{QO+7}, s[{sLO}:{sLO+1}]
        """)
        S = 32
        a(M32(S, KO, QO))
        a(M32(S, KO + 4, QO + 4, S))
        a(f"ds_write_b128 v127, {vr(QO,4)}")
        a(f"""
        v_and_b32 v2, 15, v0
        v_lshlrev_b32 v2, 2, v2
        s_mov_b32 s{sA2}, 0x00010001
        s_lshl_b32 s{sA2}, s{sA2}, s{sB}
        s_mov_b32 s{sA3}, s{sA2}
        """)
        if self.P1S:
            self.stamp("smm")
        self.rowmax16(S, 22)
        if self.force_fb:
            a("v_add_f32 v22, 0xc3480000, v22")
        self.shift_split(22, 23, 24, 25)
        a(f"""
        v_cndmask_b32 v{QO+6}, v23, v{QO+6}, s[{sLO}:{sLO+1}]
        v_cndmask_b32 v{QO+7}, v24, v{QO+7}, s[{sLO}:{sLO+1}]
        ds_write_b128 v127, {vr(QO+4,4)} offset:1024
        """)
        if self.FLAGAT == 28:
            a(f"""
            s_waitcnt vmcnt({5 if self.EARLY else 0})
            s_mov_b64 exec, 1
            buffer_store_dword v30, v31, {srd(SWS)}, s{sKVO} offen sc1
            s_mov_b64 exec, -1
            """)
        a(f"""
        s_waitcnt lgkmcnt(0)
        s_barrier
        """)
        for p in range(4):
            a(f"ds_read_b128 {vr(128+8*p,4)}, v{124+p}")
            a(f"ds_read_b128 {vr(128+8*p+4,4)}, v{124+p} offset:1024")
        self.stamp("qdone")

    def rowmax16(self, S, d):
        self.a(f"""
        v_max3_f32 v{d}, v{S}, v{S+1}, v{S+2}
        v_max3_f32 v{d+1}, v{S+3}, v{S+4}, v{S+5}
        v_max3_f32 v{d}, v{d}, v{S+6}, v{S+7}
        v_max3_f32 v{d+1}, v{d+1}, v{S+8}, v{S+9}
        v_max3_f32 v{d}, v{d}, v{S+10}, v{S+11}
        v_max3_f32 v{d+1}, v{d+1}, v{S+12}, v{S+13}
        v_max3_f32 v{d}, v{d}, v{S+14}, v{S+15}
        v_max_f32 v{d}, v{d}, v{d+1}
        v_mov_b32 v{d+1}, v{d}
        v_permlane32_swap_b32 v{d}, v{d+1}
        v_max_f32 v{d}, v{d}, v{d+1}
        """)

    def shift_split(self, m, d6, d7, t):
        self.a(f"""
        v_cvt_pk_bf16_f32 v{d6}, -v{m}, -v{m}
        v_and_b32 v{d6}, 0xffff0000, v{d6}
        v_sub_f32_e64 v{d7}, -v{m}, v{d6}
        v_cvt_pk_bf16_f32 v{t}, v{d7}, v{d7}
        v_and_b32 v{t}, 0xffff0000, v{t}
        v_sub_f32 v{d7}, v{d7}, v{t}
        v_cvt_pk_bf16_f32 v{d6}, v{d6}, v{t}
        v_cvt_pk_bf16_f32 v{d7}, v{d7}, 0
        """)

    Q, O, SA, SB, TT, P = 128, 160, 32, 48, 64, 72
    KVB = (240, 224, 80, 96)
    XR2, W2, S4 = 240, 120, 112
    VTG = 116

    def unit(self, i, qt, extra):
        a = self.a
        Q, O, TT, P, B = self.Q, self.O, self.TT, self.P, self.KVB
        n = 4 * i + qt
        buf, bufn, bufp = B[i % 4], B[(i + 1) % 4], B[(i - 1) % 4]
        Sc, Sn = (self.SA, self.SB) if n % 2 == 0 else (self.SB, self.SA)
        kn = buf if qt < 3 else bufn
        qn, qp = (qt + 1) % 4, (qt - 1) % 4
        vp = (buf if qt > 0 else bufp) + 8
        ms = [M32(Sn, kn, Q + 8 * qn), M32(O + 16 * qp, vp + 4, P + 4, O + 16 * qp),
              M32(Sn, kn + 4, Q + 8 * qn + 4, Sn),
              M32(O + 16 * qt, buf + 8, P, None if i == 0 else O + 16 * qt)]
        for g in range(4):
            for x in extra.get(("pre", g), ()):
                a(x)
            if not (n == 0 and g == 1) and not (n == 63 and g in (0, 2)):
                a(ms[g])
            for x in extra.get(g, ()):
                a(x)
            tb, tp, pp = TT + 4 * (g % 2), TT + 4 * ((g + 1) % 2), P + 2 * ((g - 1) % 4)
            a(f"v_exp_f32 v{tb}, v{Sc+4*g}")
            a(f"v_exp_f32 v{tb+1}, v{Sc+4*g+1}")
            if not (n == 0 and g == 0):
                a(f"v_cvt_pk_bf16_f32 v{pp}, v{tp}, v{tp+1}")
                a(f"v_cvt_pk_bf16_f32 v{pp+1}, v{tp+2}, v{tp+3}")
            a(f"v_exp_f32 v{tb+2}, v{Sc+4*g+2}")
            a(f"v_exp_f32 v{tb+3}, v{Sc+4*g+3}")

    def kv_sum(self, buf, d):
        return [f"v_add3_u32 v{d}, v{buf+2*k}, v{buf+2*k+1}, v{d if k else 30}" for k in range(8)]

    def kv_load(self, i, part, buf=None):
        buf = self.KVB[i % 4] if buf is None else buf
        if part == 4:
            return f"buffer_load_dword v{14+i%4}, v6, {srd(SWS)}, s{sKT+i} offen sc1"
        return f"buffer_load_dwordx4 {vr(buf+4*part,4)}, v1, {srd(SWS)}, s{sKT+i} offen offset:{1024*part} sc1"

    NV = 6
    EARLY = 1
    POLLQ = 0

    def attention(self):
        a = self.a
        Q, O, P, TT, B = self.Q, self.O, self.P, self.TT, self.KVB
        NV = self.NV
        queue = []

        def newer(tag):
            k = max(i for i, t in enumerate(queue) if t == tag)
            return len(queue) - 1 - k

        def ld(i, part):
            queue.append((i, part))
            return self.kv_load(i, part)

        def other(text):
            if text.startswith("buffer_"):
                queue.append("o")
            return text

        first = [ld(1, k) for k in range(5)]
        if self.FLAGAT == 28 and self.EARLY:
            queue.append("f")
        if not self.EARLY:
            a("L_att:")
            a("\n".join(first))
        else:
            a("L_att:")
        a("s_waitcnt lgkmcnt(4)")
        a(M32(self.SA, B[0], Q))
        a(M32(self.SA, B[0] + 4, Q + 4, self.SA))
        self.retry = []

        def check(t):
            self.retry.append(t)
            return [f"s_waitcnt vmcnt({newer((t, 4))})", f"L_kvc{t}:"] + self.kv_sum(B[t % 4], 7) + \
                [f"v_cmp_ne_u32 vcc, v7, v{14+t%4}", f"s_cbranch_vccnz L_kvr{t}", f"L_kvd{t}:"]

        late = {}
        self.first_waits = True
        late[(12, 1)] = lines(f"""
        v_and_b32 v22, 31, v0
        v_lshrrev_b32 v23, 5, v0
        v_lshlrev_b32 v23, 3, v23
        v_mul_u32_u24 v22, 896, v22""")
        late[(12, 2)] = lines(f"""
        v_add_u32 v22, v22, v23
        s_mul_i32 s{sT1}, s{sW}, 56
        s_add_u32 s{sT0}, s{sROW}, s{sT1}
        s_mul_i32 s{sT2}, s{sC}, 224
        s_add_u32 s{sT1}, s{sT1}, s{sT2}""")
        xl = [f"buffer_load_dwordx2 {vr(self.XR2+2*g,2)}, v22, {srd(SX)}, s{sT0} offen offset:{16*g}" for g in range(4)]
        wl = [f"buffer_load_dwordx2 {vr(self.W2+2*g,2)}, v23, {srd(SWR)}, s{sT1} offen offset:{16*g}" for g in range(4)]
        late[(13, 0)] = wl[:1]
        late[(13, 1)] = wl[1:2] + xl[:1]
        late[(13, 2)] = wl[2:3] + xl[1:2]
        late[(13, 3)] = wl[3:] + xl[2:3]
        late[(14, 0)] = xl[3:] + lines(f"""
        s_lshl_b32 s{sA4}, s{sW}, 8
        s_add_u32 s{sA4}, s{sA4}, {WS_CLF}
        v_lshlrev_b32 v5, 2, v0""")
        late[(14, 1)] = [f"buffer_load_dword v4, v5, {srd(SWS)}, s{sA4} offen sc1"]
        cb = []
        for p in range(3):
            cb += lines(f"""
            s_add_u32 s{sT0}, s{sW}, {p+1}
            s_and_b32 s{sT0}, s{sT0}, 3
            s_mul_i32 s{sT0}, s{sT0}, 12288
            s_add_u32 s{sT0}, s{sT0}, {L_CB+p*4096}
            v_add_u32 v{10+p}, s{sT0}, v1""")
        cb += lines(f"""
        s_mul_i32 s{sT0}, s{sW}, 12288
        s_add_u32 s{sT0}, s{sT0}, {L_CB}
        v_add_u32 v13, s{sT0}, v1
        v_mov_b32 v8, {hex(fbits(2.0**100))}""")
        late[(14, 2)], late[(14, 3)], late[(15, 0)] = cb[:7], cb[7:13], cb[13:]
        wr = lambda p, k: f"ds_write_b128 v{10+p}, {vr(O+16*p+4*k,4)} offset:{k*1024}"
        for i in range(16):
            for qt in range(4):
                ex = {}
                if i == 0 and qt == 1:
                    ex[("pre", 0)] = ["s_waitcnt lgkmcnt(0)"]
                pre0 = ex.get(("pre", 0), [])
                if qt == 3 and i < 15:
                    pre0 = pre0 + (check(i + 1) if i + 1 <= NV else [f"s_waitcnt vmcnt({newer((i + 1, 3))})"])
                if i == 0 and qt == 3 and self.FLAGAT == 29:
                    ex[1] = ["s_mov_b64 exec, 1", other(f"buffer_store_dword v30, v31, {srd(SWS)}, s{sKVO} offen sc1"),
                             "s_mov_b64 exec, -1"]
                if i == NV - 2 and qt == 0:
                    pre0 = pre0 + lines(f"""
                    s_waitcnt vmcnt({newer("p")})
                    L_kvpoll:
                    v_cmp_ne_u32 vcc, s{sNON}, v3
                    s_andn2_b64 vcc, vcc, s[{sA2}:{sA3}]
                    s_cbranch_vccnz L_kvpr
                    L_kvok:""")
                ex[("pre", 0)] = pre0
                if i == NV - 3 and qt == self.POLLQ:
                    ex[1] = [f"buffer_load_dword v3, v2, {srd(SWS)}, s{sKVF} offen sc1"]
                    queue.append("p")
                if i == 0:
                    t = 2 + qt // 2
                    lds_ = [ld(t, k) for k in ((0, 1) if qt % 2 == 0 else (2, 3, 4))]
                    ex[2], ex[3] = lds_[:-1], lds_[-1:]
                else:
                    ex[0] = [other(x) for x in late.get((i, qt), [])]
                    if i + 3 <= 15:
                        ex[2] = [ld(i + 3, qt)]
                        if qt == 3 and i + 3 <= NV:
                            ex[3] = [ld(i + 3, 4)]
                if i == 15:
                    if qt == 1:
                        ex[3] = [wr(0, 0)]
                    if qt == 2:
                        ex[0], ex[1], ex[2], ex[3] = [wr(0, 1)], [wr(0, 2)], [wr(0, 3)], [wr(1, 0)]
                    if qt == 3:
                        ex[0], ex[1], ex[2], ex[3] = [wr(1, 1)], [wr(1, 2)], [wr(1, 3)], [wr(2, 0)]
                self.unit(i, qt, ex)
                if i == 0 and qt == 3:
                    self.stamp("kvok")
                if i == 0 and qt == 3:
                    a("s_barrier")
                if self.ATS and qt == 3 and i in (0, 1, 2, 4, 6, 8, 10, 12, 14):
                    self.stamp(f"t{i}")
        a(f"""
        v_cvt_pk_bf16_f32 v{P+6}, v{TT+4}, v{TT+5}
        v_cvt_pk_bf16_f32 v{P+7}, v{TT+6}, v{TT+7}
        v_add_f32 v9, v{O+12}, v{O+16+12}
        v_add_f32 v9, v9, v{O+32+12}
        """)
        a(M32(O + 48, B[3] + 12, P + 4, O + 48))
        a(wr(2, 1))
        a(wr(2, 2))
        a(wr(2, 3))
        self.stamp("attn")

    def combine(self):
        a = self.a
        O = self.O
        a(f"""
        L_clpoll:
        s_waitcnt vmcnt(0)
        v_cmp_ne_u32 vcc, s{sNON}, v4
        s_cbranch_vccz L_clok
        """)
        self.spin_guard("L_clok")
        a(f"""
        buffer_load_dword v4, v5, {srd(SWS)}, s{sA4} offen sc1
        s_branch L_clpoll
        L_clok:
        v_add_f32 v9, v9, v{O+48+12}
        v_cmp_nlt_f32 vcc, v9, v8
        s_andn2_b64 vcc, vcc, s[{sLO}:{sLO+1}]
        s_cbranch_vccnz L_bad
        L_badok:
        """)
        a(f"""
        s_waitcnt lgkmcnt(0)
        s_barrier
        """)
        if self.LOC:
            a(f"""
            s_and_b32 s{sT0}, s2, 0xe7
            s_lshl_b32 s{sT0}, s{sT0}, 2
            s_add_u32 s{sT0}, s{sT0}, {WS_XID}
            v_and_b32 v26, 3, v0
            v_lshlrev_b32 v26, 5, v26
            buffer_load_dword v28, v26, {srd(SWS)}, s{sT0} offen sc1
            """)
        order = (3, 0, 1, 2)
        for k in order:
            for p in range(3):
                a(f"ds_read_b128 {vr(O+16*p+4*k,4)}, v13 offset:{p*4096+k*1024}")
        R = O + 48
        for c, k in enumerate(order):
            a(f"s_waitcnt lgkmcnt({9-3*c})")
            for i in range(2):
                r = 4 * k + 2 * i
                a(f"v_pk_add_f32 {vr(R+r,2)}, {vr(R+r,2)}, {vr(O+r,2)}")
                a(f"v_pk_add_f32 {vr(O+16+r,2)}, {vr(O+16+r,2)}, {vr(O+32+r,2)}")
            for i in range(2):
                r = 4 * k + 2 * i
                a(f"v_pk_add_f32 {vr(R+r,2)}, {vr(R+r,2)}, {vr(O+16+r,2)}")
            if c == 0:
                a(f"""
                v_mov_b32 v8, v{R+12}
                v_mov_b32 v9, v{R+12}
                v_readlane_b32 s{sT0}, v{R+13}, 32
                v_permlane32_swap_b32 v8, v9
                s_cmp_eq_u32 s{sT0}, 0
                s_cbranch_scc1 L_noredo
                s_cmp_eq_u32 s{sPASS}, 0
                s_cbranch_scc1 L_redo
                L_noredo:
                v_rcp_f32 v8, v9
                """)
        OP = 32
        for hf in range(2):
            for i in range(4 * hf, 4 * hf + 4):
                a(f"v_pk_mul_f32 {vr(R+2*i,2)}, {vr(R+2*i,2)}, {vr(8,2)} op_sel_hi:[1,0]")
            for i in range(4 * hf, 4 * hf + 4):
                a(f"v_cvt_pk_bf16_f32 v{OP+i}, v{R+2*i}, v{R+2*i+1}")
            if hf:
                a(f"""
                v_cndmask_b32 v{OP+6}, 0, v{OP+6}, s[{sLO}:{sLO+1}]
                v_cndmask_b32 v{OP+7}, 0, v{OP+7}, s[{sLO}:{sLO+1}]
                """)
            a(f"buffer_store_dwordx4 {vr(OP+4*hf,4)}, v1, {srd(SWS)}, s99 offen offset:{1024*hf} sc1")
        a(f"""
        s_or_b32 s{sT0}, s2, s{sW}
        s_cmp_lg_u32 s{sT0}, 0
        s_cbranch_scc1 L_noepoch
        s_mov_b64 exec, 1
        buffer_store_dword v30, v31, {srd(SWS)}, 0 offen sc1
        s_mov_b64 exec, -1
        L_noepoch:
        """)
        self.stamp("opub")

    def helper_head(self):
        a = self.a
        if self.PT:
            a(f"""
            v_and_b32 v22, 31, v0
            v_mul_u32_u24 v22, 896, v22
            v_lshrrev_b32 v23, 5, v0
            v_lshl_add_u32 v2, v23, 7, v22
            s_lshl_b32 s{sA0}, s{sA5}, 5
            s_add_u32 s{sA0}, s{sA0}, s{sI}
            s_mul_i32 s{sA0}, s{sA0}, {32*896}
            v_mul_u32_u24 v22, 10923, v0
            v_lshrrev_b32 v22, 16, v22
            v_mul_u32_u24 v23, 6, v22
            v_sub_u32 v23, v0, v23
            v_min_u32 v22, 9, v22
            v_mul_u32_u24 v22, 2688, v22
            v_lshl_add_u32 v3, v23, 7, v22
            v_cmp_lt_u32 vcc, 2, v23
            v_add_u32 v4, {896-384}, v3
            v_cndmask_b32 v3, v3, v4, vcc
            v_mul_u32_u24 v22, 21846, v0
            v_lshrrev_b32 v22, 16, v22
            v_mul_u32_u24 v23, 3, v22
            v_sub_u32 v23, v0, v23
            v_min_u32 v22, 13, v22
            v_mul_u32_u24 v22, 2688, v22
            v_lshl_add_u32 v4, v23, 7, v22
            s_mul_i32 s{sT0}, s{sA4}, 224
            s_and_b32 s{sT0}, s{sT0}, -128
            s_mul_i32 s{sA1}, s{sI}, {10*2688}
            s_add_u32 s{sA1}, s{sA1}, s{sT0}
            s_add_u32 s{sA1}, s{sA1}, {128*2688+896}
            s_mul_i32 s{sA2}, s{sI}, {14*2688}
            s_add_u32 s{sA2}, s{sA2}, s{sT0}
            s_mov_b32 s{SX+2}, {2048*896}
            s_mov_b32 s{SX+3}, 0x20000
            s_mov_b32 s{SWQ+2}, {448*2688}
            s_mov_b32 s{SWQ+3}, 0x20000
            s_waitcnt lgkmcnt(0)
            s_mov_b32 s{SX}, s64
            s_mov_b32 s{SX+1}, s65
            s_mov_b32 s{SWQ}, s66
            s_mov_b32 s{SWQ+1}, s67
            {f"s_sleep {self.PT-1}" if self.PT > 1 else ""}
            buffer_load_dword v10, v2, {srd(SX)}, s{sA0} offen offset:256
            buffer_load_dword v11, v3, {srd(SWQ)}, s{sA1} offen
            buffer_load_dword v12, v2, {srd(SX)}, s{sA0} offen offset:512
            s_mov_b32 exec_hi, 0
            buffer_load_dword v13, v2, {srd(SX)}, s{sA0} offen offset:768
            s_mov_b32 exec_hi, -1
            buffer_load_dword v14, v4, {srd(SWQ)}, s{sA2} offen
            """)
        a("s_waitcnt lgkmcnt(0)")
        self.common_setup()
        self.a(f"""
        s_waitcnt lgkmcnt(0)
        s_mul_i32 s{sNON}, s{sNON}, 0x19660d
        s_add_u32 s{sNON}, s{sNON}, 0x3c6ef35f
        v_mov_b32 v30, s{sNON}
        """)
        return 0

    def helper(self, nbar):
        a = self.a
        a("L_helper:")
        done = self.helper_head()
        nbar -= done
        if self.CPF:
            a(f"""
            s_getpc_b64 s[52:53]
            L_pc:
            s_sub_u32 s52, s52, L_pc-{NAME}
            s_subb_u32 s53, s53, 0
            s_mul_i32 s{sT0}, s{sI}, {self.CPF*128}
            v_min_u32 v25, {self.CPF-1}, v0
            v_lshl_add_u32 v25, v25, 7, s{sT0}
            v_min_u32 v25, L_last-{NAME}, v25
            """)
        a(f"""
        v_lshlrev_b32 v1, 4, v0
        v_mov_b32 v4, -1
        v_mov_b32 v5, -1
        v_mov_b32 v6, -1
        v_mov_b32 v7, -1
        v_mov_b32 v31, 0
        v_lshrrev_b32 v22, 4, v0
        v_lshrrev_b32 v23, 2, v0
        v_sub_u32 v23, v23, v22
        v_and_b32 v23, 3, v23
        v_mul_u32_u24 v23, 56, v23
        v_mul_u32_u24 v22, 896, v22
        v_add_u32 v22, v22, v23
        v_and_b32 v23, 3, v0
        v_lshlrev_b32 v23, 4, v23
        v_min_u32 v23, 40, v23
        v_add_u32 v2, v22, v23
        v_lshlrev_b32 v3, 7, v0
        """)
        a(f"""
        v_mul_u32_u24 v22, 4682, v0
        v_lshrrev_b32 v22, 16, v22
        v_mul_u32_u24 v27, 14, v22
        v_sub_u32 v23, v0, v27
        v_mul_u32_u24 v27, 896, v22
        v_lshl_add_u32 v8, v23, 4, v27
        v_lshrrev_b32 v22, 2, v0
        v_min_u32 v22, 13, v22
        v_mul_u32_u24 v22, 3584, v22
        v_and_b32 v23, 3, v0
        v_lshl_add_u32 v22, v23, 7, v22
        s_mul_i32 s{sA0}, s{sXCD}, {7*32*896}
        s_mul_i32 s{sT1}, s{sI}, {49*128}
        s_add_u32 s{sA0}, s{sA0}, s{sT1}
        s_mul_i32 s{sA1}, s{sI}, {14*3584}
        s_mul_i32 s{sT1}, s{sXCD}, 448
        s_and_b32 s{sT1}, s{sT1}, -128
        s_add_u32 s{sA1}, s{sA1}, s{sT1}
        s_lshr_b32 s{sA2}, s{sI}, 2
        s_mul_i32 s{sA2}, s{sA2}, {self.WOROT}
        s_lshr_b32 s{sA2}, s{sA2}, 1
        s_mul_i32 s{sA4}, s{sC}, 224
        s_mul_i32 s{sA5}, s{sI}, {self.TSTAG}
        s_lshr_b32 s{sA5}, s{sA5}, 3
        s_add_u32 s{sA5}, s{sA5}, {self.TOFF}
        s_lshl_b32 s{sT0}, s{sB}, 6
        s_add_u32 s{sT0}, s{sT0}, s{sH}
        s_lshl_b32 s{sT0}, s{sT0}, 11
        s_add_u32 s64, s{sT0}, {WS_OF}
        s_add_u32 s65, s64, 32768
        s_add_u32 s66, s65, 32768
        s_add_u32 s67, s66, 32768
        s_lshl_b32 s{sT0}, s{sT}, 2
        s_add_u32 s{sT0}, s{sT0}, s{sC}
        s_lshl_b32 s{sT0}, s{sT0}, 9
        s_add_u32 s72, s{sT0}, {WS_STATS}
        s_lshl_b32 s{sT1}, s{sT}, 7
        s_add_u32 s73, s{sT1}, {WS_KEYS}
        s_cmp_eq_u32 s{sC}, 0
        s_cselect_b32 s73, s73, {OOB}
        s_mul_i32 s{sT0}, s{sF}, 14336
        s_add_u32 s74, s{sT0}, {WS_Y}
        s_add_u32 s75, s74, 4096
        s_add_u32 s76, s75, 4096
        s_add_u32 s77, s76, 4096
        s_lshl_b32 s{sT0}, s2, 2
        s_add_u32 s78, s{sT0}, {WS_CLF}
        """)
        for w in range(4):
            self.cand_base(68 + w, w)
        for nb in range(nbar):
            if self.KVT and nb == self.KVT - 1:
                a(f"""
                s_lshl_b32 s{sT0}, s{sH}, 4
                s_add_u32 s{sT0}, s{sT0}, s{sB}
                s_mul_i32 s{sT0}, s{sT0}, {4*KVS}
                s_add_u32 s{sT0}, s{sT0}, {WS_KV}
                buffer_load_dword v27, v3, {srd(SWS)}, s{sT0} offen sc1
                s_add_u32 s{sT0}, s{sT0}, 8192
                buffer_load_dword v27, v3, {srd(SWS)}, s{sT0} offen sc1
                s_add_u32 s{sT0}, s{sT0}, 8192
                s_mov_b64 exec, 0xff
                buffer_load_dword v27, v3, {srd(SWS)}, s{sT0} offen sc1
                s_mov_b64 exec, -1
                """.replace("buffer_load_dword v27", "buffer_atomic_add v31" if self.KVA else "buffer_load_dword v27"))
            if self.CPF and nb == self.CPB:
                a("global_load_dword v26, v25, s[52:53]")
            a("s_barrier")
        st = lambda v, so, off=0: f"buffer_store_dwordx4 v[4:7], v{v}, {srd(SWS)}, s{so} offen offset:{off} sc1"
        cl = [[st(1, 64 + w, 1024 * k)] for w in range(4) for k in range(2)]
        cl += [["s_mov_b32 exec_hi, 0xffffff", st(8, 68 + w), "s_mov_b32 exec_hi, -1"] for w in range(4)]
        cl += [["s_mov_b32 exec_hi, 0", st(1, 72), "s_mov_b64 exec, 3", st(1, 73), "s_mov_b64 exec, -1"]]
        if self.LOC:
            cl += [[f"s_getreg_b32 s{sT0}, hwreg(HW_REG_XCC_ID)", f"v_mov_b32 v21, s{sT0}", "s_mov_b64 exec, 1",
                    f"buffer_store_dword v21, v31, {srd(SWS)}, s78 offen offset:{WS_XID-WS_CLF} sc1", "s_mov_b64 exec, -1"]]
        ycl = [st(1, 74 + k // 4, 1024 * (k % 4)) for k in range(14)]
        ycl[13] += f"\ns_lshl_b32 s{sT0}, s{sF}, 7\ns_add_u32 s{sT0}, s{sT0}, {WS_RES}\ns_mov_b64 exec, 0xff\n" + \
            st(1, sT0) + "\ns_mov_b64 exec, -1"
        if self.NOCL:
            cl, ycl = [], []
        for n in range(28):
            a(f"""
            s_mul_i32 s{sWOS}, s{sA2}, {16*896}
            s_add_u32 s{sWOS}, s{sWOS}, s{sA4}
            s_lshl_b32 s{sWOM}, s{sA2}, 12
            """)
            for k in range(4):
                a(f"""
                s_add_u32 m0, s{sWOM}, {1024*k}
                s_add_u32 s{sT0}, s{sWOS}, {4*896*k}
                buffer_load_dwordx4 v2, {srd(SWO)}, s{sT0} offen lds
                """)
            if cl:
                a("\n".join(cl.pop(0)))
            if ycl:
                a(f"s_cmp_lt_i32 s{sF}, 0\ns_cbranch_scc1 L_h_y{n}\n{ycl.pop(0)}\nL_h_y{n}:")
            if self.TOUCH:
                a(f"""
                s_cmp_lg_u32 s{sA5}, {n}
                s_cbranch_scc1 L_h_t{n}
                buffer_load_dword v20, v3, {srd(SWD)}, s{sA0} offen
                buffer_load_dword v20, v22, {srd(SWG)}, s{sA1} offen
                buffer_load_dword v20, v22, {srd(SWU)}, s{sA1} offen
                L_h_t{n}:
                """)
            a(f"""
            s_waitcnt vmcnt({self.WOQ})
            s_add_u32 s{sA2}, s{sA2}, 1
            s_cmp_eq_u32 s{sA2}, 28
            s_cselect_b32 s{sA2}, 0, s{sA2}
            """)
            if n == 13 + -(-self.WOQ // 4):
                a(f"""
                s_mov_b64 exec, 1
                buffer_store_dword v30, v31, {srd(SWS)}, s78 offen sc1
                s_mov_b64 exec, -1
                """)
        a(f"""
        s_waitcnt vmcnt(0)
        s_cmp_lt_i32 s{sF}, 0
        s_cbranch_scc1 L_h_end
        v_lshrrev_b32 v22, 2, v0
        v_mul_u32_u24 v22, 3584, v22
        v_and_b32 v23, 3, v0
        v_lshl_add_u32 v22, v23, 4, v22
        v_lshlrev_b32 v23, 12, v23
        v_add_u32 v23, {L_CB+3072+32*16+4}, v23
        s_lshl_b32 s{sA0}, s{sF}, 6
        s_mul_i32 s{sA1}, s{sF}, {32*896}
        """)
        if True:
            for j in range(28):
                a(f"""
                s_add_u32 s{sT2}, s{sA0}, {j*16*3584}
                buffer_load_dwordx4 {vr(32+8*j,4)}, v22, {srd(SWG)}, s{sT2} offen
                buffer_load_dwordx4 {vr(36+8*j,4)}, v22, {srd(SWU)}, s{sT2} offen
                """)
        a(f"""
        L_h_comb:
        s_barrier
        ds_read_b32 v24, v23
        s_waitcnt lgkmcnt(0)
        v_cmp_ne_u32 vcc, 0, v24
        s_cbranch_vccz L_h_go
        s_cmp_lg_u32 s{sPASS}, 0
        s_cbranch_scc1 L_h_go
        s_mov_b32 s{sPASS}, 1
        s_barrier
        s_barrier
        s_barrier
        s_barrier
        s_branch L_h_comb
        L_h_go:
        s_barrier
        s_barrier
        """)

        def wdma(lds, off):
            for k in range(14):
                if k % 4 == 0:
                    a(f"s_mov_b32 m0, {lds+k*1024}\ns_add_u32 s{sT2}, s{sA1}, {off+k*1024}")
                a(f"buffer_load_dwordx4 v1, {srd(SWD)}, s{sT2} offen offset:{(k%4)*1024} lds")

        wdma(L_WD, 0)
        a("s_waitcnt vmcnt(14)\ns_barrier")
        wdma(L_WD2, 14336)
        for j in range(28):
            a(f"ds_write_b128 v1, {vr(32+8*j,4)} offset:{L_WG+j*1024}")
            a(f"ds_write_b128 v1, {vr(36+8*j,4)} offset:{L_WU+j*1024}")
        a("s_waitcnt lgkmcnt(0)")
        a("s_waitcnt vmcnt(0)\nL_h_end:\nL_last:\ns_endpgm")

    WOROT = 7
    TSTAG = 7
    TOFF = 0
    PRIO = 0
    FREG = 1
    KVT = 0
    KVA = 0
    LIN = 0
    LINP = 0
    PT = 0
    CPS = 1
    CPF = 11
    CPB = 1
    KVC = -1
    KVCN = 16
    WSB = 0
    NOCL = 0
    NOWO = 0
    TOUCH = 1
    HD1 = 0
    HD2 = 0
    HD3 = 0
    WOQ = 8

    def redo(self):
        a = self.a
        Q, B, S = self.Q, self.KVB, self.SA
        a(f"""
        L_bad:
        v_mov_b32 v8, 1.0
        v_cndmask_b32 v{self.O+48+13}, v8, v{self.O+48+13}, s[{sLO}:{sLO+1}]
        s_mov_b32 exec_lo, 0
        ds_write_b32 v10, v8 offset:3076
        ds_write_b32 v11, v8 offset:3076
        ds_write_b32 v12, v8 offset:3076
        s_mov_b32 exec_lo, -1
        s_branch L_badok
        """)
        for t in self.retry:
            a(f"L_kvr{t}:")
            self.spin_guard(f"L_kvd{t}")
            a("\n".join(self.kv_load(t, k) for k in range(5)))
            a(f"s_waitcnt vmcnt(0)\ns_branch L_kvc{t}")
        a("L_kvpr:")
        self.spin_guard("L_kvok")
        a(f"""
        buffer_load_dword v3, v2, {srd(SWS)}, s{sKVF} offen sc1
        s_waitcnt vmcnt(0)
        s_branch L_kvpoll
        """)
        MX = 8
        a(f"""
        L_redo:
        s_mov_b32 s{sPASS}, 1
        s_waitcnt vmcnt(0) lgkmcnt(0)
        s_barrier
        s_mov_b32 s{sA5}, 16
        s_lshl_b32 s{sT2}, s{sH}, 6
        s_add_u32 s{sT2}, s{sT2}, s{sW}
        s_mul_i32 s{sT2}, s{sT2}, {KVS}
        s_add_u32 s{sT2}, s{sT2}, {WS_KV}
        """)
        for p in range(4):
            a(f"v_mov_b32 v{MX+p}, 0xff800000")
        a(f"""
        L_redo_loop:
        buffer_load_dwordx4 {vr(B[1],4)}, v1, {srd(SWS)}, s{sT2} offen sc1
        buffer_load_dwordx4 {vr(B[1]+4,4)}, v1, {srd(SWS)}, s{sT2} offen offset:1024 sc1
        s_add_u32 s{sT2}, s{sT2}, {4*KVS}
        s_waitcnt vmcnt(0)
        """)
        for p in range(4):
            a(M32(S, B[1], Q + 8 * p))
            a(M32(S, B[1] + 4, Q + 8 * p + 4, S))
            self.rowmax16(S, 22)
            a(f"v_max_f32 v{MX+p}, v{MX+p}, v22")
        a(f"""
        s_sub_u32 s{sA5}, s{sA5}, 1
        s_cmp_lg_u32 s{sA5}, 0
        s_cbranch_scc1 L_redo_loop
        """)
        for p in range(4):
            a(f"""
            s_add_u32 s{sT0}, s{sW}, {p+1}
            s_and_b32 s{sT0}, s{sT0}, 3
            s_lshl_b32 s{sT0}, s{sT0}, 10
            s_add_u32 s{sT0}, s{sT0}, {L_CB}
            v_lshl_add_u32 v{12+p}, v0, 2, s{sT0}
            s_lshl_b32 s{sT1}, s{sW}, 8
            v_add_u32 v16, s{sT1}, v{12+p}
            ds_write_b32 v16, v{MX+p}
            """)
        a("s_waitcnt lgkmcnt(0)\ns_barrier")
        for p in range(4):
            for k in range(4):
                a(f"ds_read_b32 v{16+k}, v{12+p} offset:{k*256}")
            q6, q7 = Q + 8 * p + 6, Q + 8 * p + 7
            a(f"""
            s_waitcnt lgkmcnt(0)
            v_max3_f32 v16, v16, v17, v18
            v_max_f32 v16, v16, v19
            v_lshlrev_b32 v17, 16, v{q6}
            v_and_b32 v18, 0xffff0000, v{q6}
            v_lshlrev_b32 v19, 16, v{q7}
            v_add_f32 v18, v18, v19
            v_add_f32 v17, v17, v18
            v_sub_f32 v22, v16, v17
            """)
            self.shift_split(22, 23, 24, 25)
            a(f"""
            v_cndmask_b32 v{q6}, v23, v{q6}, s[{sLO}:{sLO+1}]
            v_cndmask_b32 v{q7}, v24, v{q7}, s[{sLO}:{sLO+1}]
            """)
        for part in range(4):
            a(self.kv_load(0, part))
        if self.EARLY:
            a("\n".join(self.kv_load(1, k) for k in range(5)))
        a(f"""
        s_waitcnt vmcnt(0)
        s_barrier
        s_branch L_att
        """)

    def finish(self):
        a = self.a
        a("L_fin:")
        if self.amp:
            a(f"""
            s_cmp_lg_u32 s2, {self.ampg}
            s_cbranch_scc1 L_end
            s_cmp_lg_u32 s{sW}, 0
            s_cbranch_scc1 L_end
            s_sub_u32 s84, s84, s100
            s_min_u32 s84, s84, 20000
            s_lshl_b32 s84, s84, 3
            s_memrealtime s[100:101]
            s_waitcnt lgkmcnt(0)
            L_amp:
            s_memrealtime s[82:83]
            s_waitcnt lgkmcnt(0)
            s_sub_u32 s82, s82, s100
            s_cmp_lt_u32 s82, s84
            s_cbranch_scc1 L_amp
            """)
        if self.ts:
            a(f"""
            s_lshl_b32 s{sT0}, s2, 2
            s_add_u32 s{sT0}, s{sT0}, s{sW}
            s_lshl_b32 s{sT0}, s{sT0}, 8
            s_add_u32 s{sT0}, s{sT0}, {WS_TS}
            s_mov_b64 exec, -1
            v_lshlrev_b32 v2, 2, v0
            buffer_store_dword {self.TSV}, v2, {srd(SWS)}, s{sT0} offen
            """)
        a("L_end:\ns_endpgm")

    def tail(self):
        pass

    def build(self):
        self.prologue()
        self.p1()
        nbar = sum(1 for k, x in self.a.items if k == "i" and x.op == "s_barrier")
        self.attention()
        self.combine()
        self.tail()
        self.finish()
        self.redo()
        self.helper(nbar + 1)
        npad = self.a.pad()
        body = self.a.text()
        hdr = open(os.path.join(os.path.dirname(os.path.abspath(__file__)), "header.txt")).read()
        out = hdr + f"""; @launch grid=(256,1,1) block=(320,1,1) lds={LDS_BYTES}
.amdgcn_target "amdgcn-amd-amdhsa--gfx950"
.text
.globl {NAME}
.p2align 8
.type {NAME},@function
{NAME}:
{body}
.section .rodata,"a"
.p2align 6
.amdhsa_kernel {NAME}
  .amdhsa_next_free_vgpr 256
  .amdhsa_next_free_sgpr 102
  .amdhsa_accum_offset 256
  .amdhsa_group_segment_fixed_size 0
  .amdhsa_kernarg_size 88
  .amdhsa_user_sgpr_count 2
  .amdhsa_user_sgpr_kernarg_segment_ptr 1
  .amdhsa_system_sgpr_workgroup_id_x 1
  .amdhsa_float_denorm_mode_32 3
.end_amdhsa_kernel
"""
        return out, npad


class Full(Gen):

    def piece_idx(self, i, tok, ch):
        self.a(f"""
        v_add_u32 v{ch}, {64*i}, v0
        v_mul_u32_u24 v{tok}, 4682, v{ch}
        v_lshrrev_b32 v{tok}, 16, v{tok}
        v_mul_u32_u24 v27, 14, v{tok}
        v_sub_u32 v{ch}, v{ch}, v27
        s_lshl_b32 s{sT0}, s{sW}, 3
        v_add_u32 v{tok}, s{sT0}, v{tok}
        """)

    def sentinel_any(self, regs, t):
        a = self.a
        regs = list(regs)
        a(f"v_max3_u32 v{t}, v{regs[0]}, v{regs[1]}, v{regs[2] if len(regs) > 2 else regs[1]}")
        for k in range(3, len(regs), 2):
            a(f"v_max3_u32 v{t}, v{t}, v{regs[k]}, v{regs[min(k+1, len(regs)-1)]}")
        a(f"v_cmp_eq_u32 vcc, -1, v{t}")

    def unpack(self, d, s):
        self.a(f"v_lshlrev_b32 v{d}, 16, v{s}\nv_and_b32 v{d+1}, 0xffff0000, v{s}")

    def tr_write(self, src, arr):
        a = self.a
        for g in range(3):
            a(f"ds_write_b64 v14, {vr(src+2*g,2)} offset:{arr*7680+16*g}")
        a(f"""
        s_mov_b32 exec_hi, 0
        ds_write_b64 v14, {vr(src+6,2)} offset:{arr*7680+48}
        s_mov_b32 exec_hi, -1
        """)

    def cand_write(self, src, off):
        a = self.a
        a(f"s_mov_b64 exec, s[{sM}:{sM+1}]")
        for g in range(3):
            a(f"ds_write_b64 v13, {vr(src+2*g,2)} offset:{off+16*g}")
        a(f"""
        s_mov_b32 exec_hi, 0
        ds_write_b64 v13, {vr(src+6,2)} offset:{off+48}
        s_mov_b64 exec, -1
        """)

    def p3(self):
        a = self.a
        XR2, W2, S4 = self.XR2, self.W2, self.S4
        XC, ACC, OFR, WR = 64, 48, 128, 80
        a(f"""
        v_lshrrev_b32 v23, 5, v0
        v_lshrrev_b32 v25, 2, v0
        v_and_b32 v25, 3, v25
        v_add_u32 v24, s{sW}, v25
        v_and_b32 v24, 3, v24
        v_lshl_add_u32 v25, v23, 2, v25
        v_lshlrev_b32 v25, 8, v25
        v_lshl_add_u32 v25, v24, 6, v25
        v_lshrrev_b32 v26, 4, v0
        v_and_b32 v26, 1, v26
        v_lshl_add_u32 v25, v26, 5, v25
        v_lshrrev_b32 v27, 1, v0
        v_and_b32 v27, v27, v26
        v_and_b32 v26, 3, v0
        v_xor_b32 v26, v26, v27
        v_lshl_add_u32 v25, v26, 3, v25
        v_lshlrev_b32 v23, 11, v23
        """)
        for qr in range(4):
            a(f"""
            s_add_u32 s{sT0}, s{sW}, {qr}
            s_and_b32 s{sT0}, s{sT0}, 3
            s_lshl_b32 s{sT1}, s{sT0}, 13
            s_add_u32 s{sT1}, s{sT1}, {L_CB}
            s_mul_i32 s{sT0}, s{sT0}, 28672
            v_add_u32 v{2+qr}, s{sT1}, v1
            v_add_u32 v{6+qr}, s{sT0}, v25
            v_sub_u32 v{10+qr}, v{6+qr}, v23
            """)
        for k in range(8):
            self.unpack(XC + 2 * k, XR2 + k)
        a(f"""
        v_cndmask_b32 v{W2+6}, 0, v{W2+6}, s[{sLO}:{sLO+1}]
        v_cndmask_b32 v{W2+7}, 0, v{W2+7}, s[{sLO}:{sLO+1}]
        v_mov_b32 v{S4}, 0
        """)
        for k in range(8):
            a(f"v_dot2c_f32_bf16 v{S4}, s{sONE}, v{W2+k}")
        a(f"""
        s_lshl_b32 s{sA0}, s{sT}, 2
        s_add_u32 s{sA0}, s{sA0}, s{sW}
        s_lshl_b32 s{sA0}, s{sA0}, 13
        s_add_u32 s{sA0}, s{sA0}, {WS_OF}
        s_add_u32 s{sA1}, s{sA0}, 4096
        s_lshl_b32 s{sA2}, s{sW}, 13
        s_add_u32 s{sA2}, s{sA2}, {L_CB}
        s_add_u32 s{sA3}, s{sA2}, 4096
        s_waitcnt vmcnt(0)
        """)
        if self.LOC:
            a(f"""
            s_getreg_b32 s{sT0}, hwreg(HW_REG_XCC_ID)
            v_cmp_ne_u32 s[{sLOC}:{sLOC+1}], s{sT0}, v28
            """)
        a("s_barrier")
        self.stamp("oack")
        a("L_odma:")
        for hf in range(2):
            a(f"s_mov_b32 m0, s{sA2+hf}")
            for k in range(4):
                a(f"buffer_load_dwordx4 v1, {srd(SWS)}, s{sA0+hf} offen offset:{1024*k} sc1 lds")
        lq = LQ(a)

        def oread(n):
            lq.op(f"ds_read_b128 {vr(OFR+4*n,4)}, v{2+n//8} offset:{(n%8)*1024}", ("o", n))

        def wread(n):
            qr, hl, j = n // 8, (n % 8) // 2, n % 2
            lq.op(f"ds_read_b64_tr_b16 {vr(WR+4*(n%4),2)}, v{6+qr} offset:{hl*7168+j*4096}", ("w", n))
            lq.op(f"ds_read_b64_tr_b16 {vr(WR+4*(n%4)+2,2)}, v{(10 if j else 6)+qr} offset:{hl*7168+j*4096+2048}", ("w", n))

        for n in range(3):
            wread(n)
        a("s_waitcnt vmcnt(0)")
        self.stamp("odma")
        for n in range(8):
            oread(n)
        onext = 8
        for n in range(32):
            lq.wait(("o", n) if lq.q.index(("o", n)) > max(i for i, t in enumerate(lq.q) if t == ("w", n)) else ("w", n))
            a(M32(ACC, WR + 4 * (n % 4), OFR + 4 * n, ACC if n else XC))
            if n + 3 < 32:
                wread(n + 3)
            if n < 4:
                if n == 0:
                    lq.wait(("o", 1))
                    a(f"v_max3_u32 v22, v{OFR}, v{OFR+1}, v{OFR+2}")
                    a(f"v_max3_u32 v23, v{OFR+3}, v{OFR+4}, v{OFR+5}")
                    a(f"v_max3_u32 v22, v22, v{OFR+6}, v{OFR+7}")
                else:
                    lq.wait(("o", 2 * n + 1))
                    for k in range(4):
                        r = OFR + 8 * n + 2 * k
                        a(f"v_max3_u32 v{22+k%2}, v{22+k%2}, v{r}, v{r+1}")
            if n == 3:
                a(f"""
                v_max_u32 v22, v22, v23
                v_cmp_eq_u32 vcc, -1, v22
                s_cbranch_vccz L_ook
                """)
                self.spin_guard("L_ook")
                a(f"""
                s_waitcnt lgkmcnt(0)
                s_branch {"L_ohint" if self.OL else "L_odma"}
                L_ook:
                s_barrier
                """)
            if n >= 4:
                for _ in range(2):
                    if onext < 32 and onext <= n + 8:
                        oread(onext)
                        onext += 1
        self.stamp("gemm")
        H2 = 32
        a(f"""
        v_and_b32 v22, 31, v0
        v_lshrrev_b32 v23, 5, v0
        v_lshlrev_b32 v23, 3, v23
        v_lshl_add_u32 v17, v22, 4, v23
        s_lshl_b32 s{sT0}, s{sW}, 9
        s_add_u32 s{sT0}, s{sT0}, {L_ST}
        v_add_u32 v18, s{sT0}, v17
        v_add_u32 v19, {L_ST}, v17
        v_mul_u32_u24 v22, 240, v22
        s_mul_i32 s{sT0}, s{sW}, 56
        s_add_u32 s{sT0}, s{sT0}, {L_TR}
        v_add3_u32 v14, v22, v23, s{sT0}
        v_mov_b32 v40, 0
        v_mov_b32 v41, 0
        v_mov_b32 v42, 0
        """)
        for k in range(8):
            a(f"v_cvt_pk_bf16_f32 v{H2+k}, v{ACC+2*k}, v{ACC+2*k+1}")
        a(f"""
        v_cndmask_b32 v{H2+6}, 0, v{H2+6}, s[{sLO}:{sLO+1}]
        v_cndmask_b32 v{H2+7}, 0, v{H2+7}, s[{sLO}:{sLO+1}]
        """)
        for k in range(8):
            a(f"v_dot2c_f32_bf16 v40, s{sONE}, v{H2+k}")
            a(f"v_dot2c_f32_bf16 v42, v{H2+k}, v{H2+k}")
            a(f"v_dot2c_f32_bf16 v41, v{W2+k}, v{H2+k}")
        a(f"""
        v_permlane32_swap_b32 v40, v42
        v_permlane32_swap_b32 v41, v{S4}
        v_add_f32 v40, v40, v42
        v_add_f32 v41, v41, v{S4}
        ds_write_b64 v18, v[40:41]
        s_lshl_b32 s{sA0}, s{sT}, 11
        s_add_u32 s{sA0}, s{sA0}, {WS_STATS}
        s_lshl_b32 s{sT0}, s{sC}, 9
        s_add_u32 s{sA1}, s{sA0}, s{sT0}
        s_lshl_b32 s{sT0}, s{sW}, 3
        s_lshl_b32 s{sT0}, 0xff, s{sT0}
        s_waitcnt lgkmcnt(0)
        s_barrier
        ds_read_b64 v[40:41], v19
        ds_read_b64 v[42:43], v19 offset:512
        ds_read_b64 v[44:45], v19 offset:1024
        ds_read_b64 v[46:47], v19 offset:1536
        s_waitcnt lgkmcnt(2)
        v_pk_add_f32 v[40:41], v[40:41], v[42:43]
        s_waitcnt lgkmcnt(0)
        v_pk_add_f32 v[44:45], v[44:45], v[46:47]
        v_pk_add_f32 v[40:41], v[40:41], v[44:45]
        v_mov_b32 v42, v40
        v_mov_b32 v43, v41
        v_permlane32_swap_b32 v40, v42
        v_permlane32_swap_b32 v41, v43
        s_mov_b32 exec_lo, s{sT0}
        s_mov_b32 exec_hi, 0
        """)
        if self.LOC:
            a(f"""
            s_cmp_eq_u64 s[{sLOC}:{sLOC+1}], 0
            s_cbranch_scc0 L_stfar
            buffer_store_dwordx4 v[40:43], v17, {srd(SWS)}, s{sA1} offen
            s_branch L_stdone
            L_stfar:
            """)
        a(f"""
        buffer_store_dwordx4 v[40:43], v17, {srd(SWS)}, s{sA1} offen sc1
        L_stdone:
        s_mov_b64 exec, -1
        v_and_b32 v22, 31, v0
        v_lshrrev_b32 v23, 5, v0
        v_lshlrev_b32 v23, 10, v23
        v_lshl_add_u32 v17, v22, 4, v23
        """)
        for i in range(2):
            self.piece_idx(i, 22, 23)
            a(f"""
            v_mov_b32 v{20+i}, v22
            v_mul_u32_u24 v27, 896, v22
            v_lshl_add_u32 v{self.VTG+i}, v23, 4, v27
            v_mul_u32_u24 v22, 240, v22
            v_lshl_add_u32 v22, v23, 4, v22
            v_add_u32 v{15+i}, {L_TR}, v22
            """)
        a(f"""
        v_mul_u32_u24 v22, 4682, v0
        v_lshrrev_b32 v22, 16, v22
        v_mul_u32_u24 v27, 14, v22
        v_sub_u32 v23, v0, v27
        v_mul_u32_u24 v27, 896, v22
        v_lshl_add_u32 v19, v23, 4, v27
        v_mul_u32_u24 v22, 240, v22
        v_lshl_add_u32 v22, v23, 4, v22
        s_mul_i32 s{sT0}, s{sW}, 960
        s_add_u32 s{sT0}, s{sT0}, {L_TR+7680}
        v_add_u32 v18, s{sT0}, v22
        """)
        self.cand_base(sA5, sW)
        HF = 64
        for k in range(8):
            self.unpack(HF + 2 * k, H2 + k)
        a("s_waitcnt vmcnt(0)")
        self.stamp("hack")
        a("L_stpoll:")
        for c in range(2):
            a(f"buffer_load_dwordx4 {vr(40+4*c,4)}, v17, {srd(SWS)}, s{sA0} offen offset:{512*c} sc1")
        a("s_waitcnt vmcnt(0)")
        self.sentinel_any(range(40, 48), 22)
        a("s_cbranch_vccz L_stok")
        self.spin_guard("L_stok")
        a("s_branch L_stpoll\nL_stok:")
        self.stamp("stok")
        a(f"""
        v_pk_add_f32 v[40:41], v[40:41], v[44:45]
        v_pk_add_f32 v[42:43], v[42:43], v[46:47]
        v_permlane32_swap_b32 v40, v42
        v_permlane32_swap_b32 v41, v43
        v_pk_add_f32 v[40:41], v[40:41], v[42:43]
        v_mov_b32 v42, v40
        v_mov_b32 v43, v41
        v_permlane32_swap_b32 v40, v42
        v_permlane32_swap_b32 v41, v43
        """)
        self.ln_scalars(40, 42, 44, 46, 22, 23)
        KEY = 47
        a(f"""
        v_fma_f32 v41, -v44, v43, v41
        v_mul_f32 v41, v41, v46
        v_cvt_pk_bf16_f32 v41, v41, v41
        v_ashrrev_i32 v22, 31, v41
        v_or_b32 v22, 0x80000000, v22
        v_xor_b32 v41, v41, v22
        v_and_b32 v41, 0xffff0000, v41
        v_lshrrev_b32 v41, 1, v41
        v_and_b32 v22, 31, v0
        s_lshl_b32 s{sT0}, s{sT}, 5
        s_sub_u32 s{sT0}, 2047, s{sT0}
        v_sub_u32 v22, s{sT0}, v22
        v_or_b32 v{KEY}, v41, v22
        v_mov_b32 v48, v{KEY}
        v_mov_b32 v49, v{KEY}
        v_permlane16_swap_b32 v48, v49
        v_cndmask_b32 v48, v49, v48, s[{sLO}:{sLO+1}]
        v_sub_u32 v80, v48, v{KEY}
        """)
        for n in range(1, 16):
            a(f"v_sub_u32_dpp v{80+n}, v48, v{KEY} row_ror:{n} row_mask:0xf bank_mask:0xf bound_ctrl:0".replace(" bound_ctrl:0", " bound_ctrl:1"))
        a("v_lshrrev_b32 v48, 31, v80\nv_lshrrev_b32 v49, 31, v81")
        for n in range(2, 16):
            a(f"v_alignbit_b32 v{48+n%2}, v{48+n%2}, v{80+n}, 31")
        a(f"""
        v_bcnt_u32_b32 v48, v48, 0
        v_bcnt_u32_b32 v48, v49, v48
        v_mov_b32 v49, v48
        v_permlane32_swap_b32 v48, v49
        v_add_u32 v48, v48, v49
        v_sub_u32 v48, 31, v48
        v_cmp_gt_u32 s[{sM}:{sM+1}], 8, v48
        v_lshlrev_b32 v49, 2, v48
        s_or_b32 s{sT0}, s{sW}, s{sC}
        s_cmp_lg_u32 s{sT0}, 0
        s_cbranch_scc1 L_norank
        ds_permute_b32 v49, v49, v{KEY}
        s_lshl_b32 s{sT0}, s{sT}, 7
        s_add_u32 s{sT0}, s{sT0}, {WS_KEYS}
        v_lshlrev_b32 v22, 2, v0
        s_mov_b64 exec, 0xff
        s_waitcnt lgkmcnt(0)
        buffer_store_dword v49, v22, {srd(SWS)}, s{sT0} offen sc1
        s_mov_b64 exec, -1
        L_norank:
        """)
        self.stamp("kst")
        a(f"""
        v_and_b32 v22, 31, v0
        v_sub_u32 v22, v48, v22
        v_mul_i32_i24 v22, 240, v22
        v_add_u32 v13, v14, v22
        """)
        self.cand_write(H2, 7680 + 1920)
        for k in range(8):
            self.unpack(HF + 2 * k, H2 + k) if False else None
        D, HN2, OUT2 = 80, 48, 56
        for k in range(8):
            a(f"v_pk_add_f32 {vr(D+2*k,2)}, {vr(HF+2*k,2)}, v[44:45] op_sel_hi:[1,0] neg_lo:[0,1] neg_hi:[0,1]")
        for k in range(8):
            a(f"v_cvt_pk_bf16_f32 v{HN2+k}, v{D+2*k}, v{D+2*k+1}")
        for k in range(8):
            self.unpack(D + 2 * k, HN2 + k)
        for k in range(8):
            a(f"v_pk_mul_f32 {vr(D+2*k,2)}, {vr(D+2*k,2)}, v[46:47] op_sel_hi:[1,0]")
        for k in range(8):
            a(f"v_cvt_pk_bf16_f32 v{HN2+k}, v{D+2*k}, v{D+2*k+1}")
        self.cand_write(HN2, 7680)
        a("s_waitcnt lgkmcnt(0)")
        if self.T2:
            self.stamp("cb0")
        a("s_barrier")
        if self.T2:
            self.stamp("cb1")
        a("ds_read_b128 v[40:43], v18")
        for k in range(8):
            self.unpack(D + 2 * k, HN2 + k)
        a(f"""
        s_mov_b32 exec_hi, 0xffffff
        s_waitcnt lgkmcnt(0)
        buffer_store_dwordx4 v[40:43], v19, {srd(SWS)}, s{sA5} offen sc1
        s_mov_b32 exec_hi, -1
        v_lshlrev_b32 v2, 7, v0
        s_mov_b32 s{sA1}, {WS_KEYS}
        """)
        if self.KPOS == 0:
            self.key_first()
        for k in range(8):
            a(f"v_pk_add_f32 {vr(D+2*k,2)}, {vr(D+2*k,2)}, {vr(HF+2*k,2)}")
        for k in range(8):
            a(f"v_cvt_pk_bf16_f32 v{OUT2+k}, v{D+2*k}, v{D+2*k+1}")
        self.tr_write(OUT2, 0)
        self.KEY = KEY

    def ffn_weights(self):
        a = self.a
        a(f"""
        s_cmp_lt_i32 s{sF}, 0
        s_cbranch_scc1 L_noffw
        v_lshrrev_b32 v22, 2, v0
        v_mul_u32_u24 v22, 3584, v22
        v_and_b32 v23, 3, v0
        v_lshl_add_u32 v22, v23, 4, v22
        s_mul_i32 s{sT0}, s{sW}, {7*16*3584}
        s_lshl_b32 s{sT1}, s{sF}, 6
        s_add_u32 s{sT0}, s{sT0}, s{sT1}
        s_mul_i32 s{sT1}, s{sW}, 7168
        """)
        for j in range(7):
            a(f"""
            s_add_u32 m0, s{sT1}, {L_WG+j*1024}
            s_add_u32 s{sT2}, s{sT0}, {j*16*3584}
            buffer_load_dwordx4 v22, {srd(SWG)}, s{sT2} offen lds
            s_add_u32 m0, s{sT1}, {L_WU+j*1024}
            buffer_load_dwordx4 v22, {srd(SWU)}, s{sT2} offen lds
            """)
        a(f"""
        s_lshl_b32 s{sT0}, s{sF}, 2
        s_add_u32 s{sT0}, s{sT0}, s{sW}
        s_mul_i32 s{sT0}, s{sT0}, {8*896}
        s_mul_i32 s{sT1}, s{sW}, {8*928}
        s_mov_b32 exec_hi, 0xffffff
        """)
        for r in range(8):
            a(f"""
            s_add_u32 m0, s{sT1}, {L_WD+r*928}
            s_add_u32 s{sT2}, s{sT0}, {r*896}
            buffer_load_dwordx4 v1, {srd(SWD)}, s{sT2} offen lds
            """)
        a("s_mov_b32 exec_hi, -1\nL_noffw:")

    def bisect(self, levels, tag):
        a = self.a
        L = 32
        lo, hi, mid = sA0, sA1, sTH
        a(f"""
        s_mov_b32 s{lo}, 0
        s_mov_b32 s{hi}, 0x80000000
        L_bis{tag}:
        s_add_u32 s{mid}, s{lo}, s{hi}
        s_lshr_b32 s{mid}, s{mid}, 1
        """)
        for j in range(levels):
            a(f"v_cmp_le_u32 s[{64+2*j}:{65+2*j}], s{mid}, v{L+j}")
        a(f"s_bcnt1_i32_b64 s{sA2}, s[64:65]")
        for j in range(1, levels):
            a(f"s_bcnt1_i32_b64 s{sA3}, s[{64+2*j}:{65+2*j}]\ns_add_u32 s{sA2}, s{sA2}, s{sA3}")
        a(f"""
        s_cmp_eq_u32 s{sA2}, 8
        s_cbranch_scc1 L_bisdone{tag}
        s_cmp_eq_u32 s{mid}, s{lo}
        s_cbranch_scc1 L_bisdone{tag}
        s_cmp_gt_u32 s{sA2}, 8
        s_cselect_b32 s{lo}, s{mid}, s{lo}
        s_cselect_b32 s{hi}, s{hi}, s{mid}
        s_branch L_bis{tag}
        L_bisdone{tag}:
        """)

    def extract(self, levels):
        a = self.a
        a(f"s_mov_b32 s{sA2}, 0")
        for j in range(levels):
            m = 64 + 2 * j
            a(f"""
            v_mbcnt_lo_u32_b32 v22, s{m}, 0
            v_mbcnt_hi_u32_b32 v22, s{m+1}, v22
            v_add_u32 v22, s{sA2}, v22
            v_min_u32 v22, 7, v22
            v_lshl_add_u32 v22, v22, 3, s{sA4}
            v_add_u32 v23, {j}, v3
            s_mov_b64 exec, s[{m}:{m+1}]
            ds_write2_b32 v22, v{32+j}, v23 offset1:1
            s_mov_b64 exec, -1
            """)
            if j + 1 < levels:
                a(f"s_bcnt1_i32_b64 s{sA3}, s[{m}:{m+1}]\ns_add_u32 s{sA2}, s{sA2}, s{sA3}")

    AF, BF, WD = 128, 192, 64

    def ffn_pre(self):
        a = self.a
        a(f"""
        v_lshrrev_b32 v8, 4, v0
        v_lshrrev_b32 v9, 2, v0
        v_and_b32 v9, 3, v9
        v_and_b32 v10, 3, v0
        v_lshlrev_b32 v10, 3, v10
        v_lshl_add_u32 v11, v8, 3, v9
        v_lshl_add_u32 v11, v11, 6, v10
        s_lshr_b32 s{sT0}, s{sW}, 1
        s_mul_i32 s{sT0}, s{sT0}, 28672
        s_and_b32 s{sT1}, s{sW}, 1
        s_lshl_b32 s{sT1}, s{sT1}, 5
        s_add_u32 s{sT0}, s{sT0}, s{sT1}
        v_add_u32 v11, s{sT0}, v11
        v_lshl_add_u32 v12, v8, 2, v9
        v_mul_u32_u24 v12, 896, v12
        s_mul_i32 s{sT0}, s{sW}, 224
        s_add_u32 s{sT0}, s{sT0}, {L_WD}
        v_add3_u32 v12, v12, v10, s{sT0}
        v_subrev_u32 v14, {L_WD-L_WD2}, v12
        """)
        a(f"""
        s_lshl_b32 s{sT0}, s{sW}, 4
        s_add_u32 s{sT0}, s{sT0}, s{sA4}
        v_mov_b32 v26, s{sT0}
        v_lshl_add_u32 v24, v0, 2, s{sA4}
        v_min_u32 v10, 55, v0
        v_lshlrev_b32 v10, 4, v10
        s_mul_i32 s{sT0}, s{sW}, 2112
        s_add_u32 s{sT0}, s{sT0}, {L_G}
        v_add_u32 v6, s{sT0}, v10
        """)

    def ffn_reads(self):
        for s_ in range(14):
            self.a(f"ds_read_b64_tr_b16 {vr(self.AF+4*s_,2)}, v11 offset:{s_*2048}")
            self.a(f"ds_read_b64_tr_b16 {vr(self.AF+4*s_+2,2)}, v11 offset:{s_*2048+256}")
        a = self.a
        for i in range(7):
            a(f"ds_read_b64_tr_b16 {vr(self.WD+4*i,2)}, v12 offset:{i*32}")
            a(f"ds_read_b64_tr_b16 {vr(self.WD+4*i+2,2)}, v14 offset:{i*32}")

    def ffn_pre2(self):
        a = self.a
        a(f"""
        v_lshrrev_b32 v8, 4, v0
        v_and_b32 v9, 7, v0
        v_mul_u32_u24 v13, 1056, v9
        v_lshl_add_u32 v13, v8, 4, v13
        v_add_u32 v13, {L_G}, v13
        v_lshlrev_b32 v9, 4, v9
        v_lshl_add_u32 v9, v8, 7, v9
        v_and_b32 v8, 8, v0
        v_lshl_add_u32 v9, v8, 6, v9
        v_lshlrev_b32 v8, 4, v0
        v_add_u32 v8, {L_AX}, v8
        s_lshl_b32 s{sT0}, s{sW}, 10
        v_add_u32 v7, s{sT0}, v8
        s_mul_i32 s{sT0}, s{sF}, 14336
        s_mul_i32 s{sT1}, s{sW}, 3584
        s_add_u32 s{sT0}, s{sT0}, s{sT1}
        s_add_u32 s99, s{sT0}, {WS_Y}
        """)

    def key_first(self):
        self.a(f"""
        s_cmp_lt_i32 s{sF}, 0
        s_cbranch_scc1 L_nokey1
        s_cmp_lg_u32 s{sW}, 0
        s_cbranch_scc1 L_nokey1
        buffer_load_dwordx4 v[32:35], v2, {srd(SWS)}, s{sA1} offen sc1
        L_nokey1:
        """)

    def topk(self):
        a = self.a
        a(f"""
        s_mov_b32 s{sA4}, {L_SEL}
        v_lshlrev_b32 v3, 3, v0
        s_cmp_lt_i32 s{sF}, 0
        s_cbranch_scc1 L_kwait
        """)
        self.ffn_pre()
        self.ffn_pre2()
        a(f"""
        s_cmp_eq_u32 s{sW}, 0
        s_cbranch_scc1 L_ksel
        """)
        self.ffn_reads()
        a("s_branch L_selwait\nL_ksel:")
        self.stamp("kp0")
        a(f"""
        s_branch L_kchk
        L_kpoll:
        buffer_load_dwordx4 v[32:35], v2, {srd(SWS)}, s{sA1} offen sc1
        L_kchk:
        s_waitcnt vmcnt(0)
        """)
        self.sentinel_any(range(32, 36), 22)
        a("s_cbranch_vccz L_kok")
        self.spin_guard("L_kok")
        a("s_branch L_kpoll\nL_kok:")
        self.stamp("kok")
        lo, hi, mid = sA0, sA1, sTH
        a(f"""
        v_max_u32_dpp v22, v32, v32 row_ror:1 row_mask:0xf bank_mask:0xf bound_ctrl:1
        v_max_u32_dpp v22, v22, v22 row_ror:2 row_mask:0xf bank_mask:0xf bound_ctrl:1
        v_max_u32_dpp v22, v22, v22 row_ror:4 row_mask:0xf bank_mask:0xf bound_ctrl:1
        v_max_u32_dpp v23, v22, v22 row_ror:8 row_mask:0xf bank_mask:0xf bound_ctrl:1
        v_min_u32_dpp v22, v22, v22 row_ror:8 row_mask:0xf bank_mask:0xf bound_ctrl:1
        v_readlane_b32 s64, v23, 0
        v_readlane_b32 s65, v23, 16
        v_readlane_b32 s66, v23, 32
        v_readlane_b32 s67, v23, 48
        v_readlane_b32 s68, v22, 0
        v_readlane_b32 s69, v22, 16
        v_readlane_b32 s70, v22, 32
        v_readlane_b32 s71, v22, 48
        s_max_u32 s64, s64, s65
        s_max_u32 s66, s66, s67
        s_min_u32 s68, s68, s69
        s_min_u32 s70, s70, s71
        s_max_u32 s{hi}, s64, s66
        s_min_u32 s{lo}, s68, s70
        s_min_u32 s{hi}, s{hi}, 0x7fffffff
        s_min_u32 s{lo}, s{lo}, s{hi}
        s_sub_u32 s{lo}, s{lo}, 1
        s_max_i32 s{lo}, s{lo}, 0
        L_bisa:
        """)
        for k in range(self.BIS):
            a(f"""
            s_add_u32 s{mid}, s{lo}, s{hi}
            s_lshr_b32 s{mid}, s{mid}, 1
            v_cmp_lt_u32 s[64:65], s{mid}, v32
            v_cmp_lt_u32 s[66:67], s{mid}, v33
            s_bcnt1_i32_b64 s{sA2}, s[64:65]
            s_bcnt1_i32_b64 s{sA3}, s[66:67]
            s_add_u32 s{sA2}, s{sA2}, s{sA3}
            s_cmp_eq_u32 s{sA2}, 8
            s_cbranch_scc1 L_bisdonea
            s_cmp_gt_u32 s{sA2}, 8
            s_cselect_b32 s{lo}, s{mid}, s{lo}
            s_cselect_b32 s{hi}, s{hi}, s{mid}
            """)
        a(f"""
        s_sub_u32 s{sA2}, s{hi}, s{lo}
        s_cmp_gt_u32 s{sA2}, 1
        s_cbranch_scc1 L_bisa
        s_branch L_topslow
        L_bisdonea:
        v_cmp_lt_u32 vcc, s{mid}, v34
        s_add_u32 s{mid}, s{mid}, 1
        {"s_branch" if self.FSLOW else "s_cbranch_vccnz"} L_topslow
        """)
        self.extract(2)
        a(f"""
        L_topdone:
        v_mov_b32 v22, s{sA4}
        v_mov_b32 v23, s{sTH}
        ds_write_b32 v22, v23 offset:64
        L_selwait:
        s_waitcnt lgkmcnt(0)
        s_barrier
        """)
        self.stamp("topk")

    BIS = 6
    FSLOW = 0
    EPOS = 1
    KPOS = 0
    T2 = 0
    EOUTP = ' sc1'
    LOC = 1
    OUTP = ''
    RSL = 2
    YL = 0
    YS = 0
    OL = 0
    FPRE = 0

    def topk_slow(self):
        if self.OL:
            self.a(f"""
            L_ohint:
            v_and_b32 v22, 3, v0
            v_lshlrev_b32 v22, 11, v22
            v_add_u32 v22, 2044, v22
            L_ohint2:
            buffer_load_dword v23, v22, {srd(SWS)}, s{sA0} offen sc1
            s_waitcnt vmcnt(0)
            v_cmp_eq_u32 vcc, -1, v23
            s_cbranch_vccz L_odma
            """)
            self.spin_guard("L_odma")
            self.a("s_branch L_ohint2")
        self.a(f"""
        L_topslow:
        s_mov_b32 s{sA1}, {WS_KEYS}
        L_kpoll2:
        buffer_load_dwordx4 v[36:39], v2, {srd(SWS)}, s{sA1} offen offset:16 sc1
        s_waitcnt vmcnt(0)
        """)
        self.sentinel_any(range(36, 40), 22)
        self.a("s_cbranch_vccz L_kok2")
        self.spin_guard("L_kok2")
        self.a("s_branch L_kpoll2\nL_kok2:")
        self.bisect(8, "b")
        self.extract(8)
        self.a("s_branch L_topdone")

    def key_token(self, d, k):
        self.a(f"v_and_b32 v{d}, 0x7ff, v{k}\nv_sub_u32 v{d}, 2047, v{d}")

    def ffn(self):
        a = self.a
        a(f"""
        ds_read2_b32 v[4:5], v26 offset0:1 offset1:3
        ds_read_b32 v25, v24
        s_mov_b32 s{sA0}, {WS_HN}
        s_movk_i32 s{sA1}, 896
        s_waitcnt lgkmcnt(1)
        v_and_b32 v4, 511, v4
        v_and_b32 v5, 511, v5
        v_mad_u32_u24 v4, v4, s{sA1}, v10
        v_mad_u32_u24 v5, v5, s{sA1}, v10
        L_gpoll:
        buffer_load_dwordx4 v[32:35], v4, {srd(SWS)}, s{sA0} offen sc1
        buffer_load_dwordx4 v[36:39], v5, {srd(SWS)}, s{sA0} offen sc1
        """)
        a(f"""
        s_waitcnt lgkmcnt(0)
        v_readlane_b32 s{sTH}, v25, 16
        v_lshlrev_b32 v24, 2, v0
        s_lshl_b32 s{sA2}, s{sF}, 7
        s_add_u32 s{sA2}, s{sA2}, {WS_RES}
        v_cmp_le_u32 s[80:81], s{sTH}, v{self.KEY}
        s_cmp_lg_u32 s{sW}, 0
        s_cbranch_scc1 L_haveA
        """)
        self.ffn_reads()
        a("L_haveA:")
        a(f"""
        s_waitcnt vmcnt(1)
        ds_write_b128 v6, v[32:35]
        v_max3_u32 v22, v32, v33, v34
        s_waitcnt vmcnt(0)
        ds_write_b128 v6, v[36:39] offset:1056
        v_max3_u32 v22, v22, v35, v36
        v_max3_u32 v22, v22, v37, v38
        v_max_u32 v22, v22, v39
        v_cmp_eq_u32 vcc, -1, v22
        s_cbranch_vccz L_gok
        """)
        self.spin_guard("L_gok")
        a(f"""
        s_branch L_gpoll
        L_gok:
        """)
        self.stamp("gath")
        a(f"""
        s_waitcnt lgkmcnt(0)
        s_barrier
        s_cmp_lg_u32 s{sW}, 3
        s_cbranch_scc1 L_nores
        s_mov_b64 exec, 0x1ffff
        buffer_store_dword v25, v24, {srd(SWS)}, s{sA2} offen sc1
        s_mov_b64 exec, -1
        L_nores:
        """)
        lq = LQ(a)
        AF, BF, WD, D = self.AF, self.BF, self.WD, 40
        for s_ in range(14):
            lq.op(f"ds_read_b128 {vr(BF+4*s_,4)}, v13 offset:{s_*64}", s_)
        for s_ in range(14):
            if s_ % 2 == 0:
                lq.wait(s_ + 1)
            a(M16(D + 4 * (s_ % 2), AF + 4 * s_, BF + 4 * s_, D + 4 * (s_ % 2) if s_ > 1 else None))
        for k in range(4):
            a(f"v_add_f32 v{D+k}, v{D+k}, v{D+4+k}")
        a(f"""
        v_cvt_pk_bf16_f32 v44, v{D}, v{D+1}
        v_cvt_pk_bf16_f32 v45, v{D+2}, v{D+3}
        s_cmp_ge_u32 s{sW}, 2
        s_cbranch_scc1 L_nosilu
        """)
        self.unpack(48, 44)
        self.unpack(50, 45)
        for k in range(4):
            a(f"v_mul_f32 v{52+k}, {hex(fbits(-LOG2E))}, v{48+k}")
        for k in range(4):
            a(f"v_exp_f32 v{52+k}, v{52+k}")
        for k in range(4):
            a(f"v_add_f32 v{52+k}, 1.0, v{52+k}")
        for k in range(4):
            a(f"v_rcp_f32 v{52+k}, v{52+k}")
        for k in range(4):
            a(f"v_mul_f32 v{48+k}, v{48+k}, v{52+k}")
        a(f"""
        v_cvt_pk_bf16_f32 v44, v48, v49
        v_cvt_pk_bf16_f32 v45, v50, v51
        L_nosilu:
        v_lshlrev_b32 v40, 16, v44
        v_and_b32 v41, 0xffff0000, v44
        v_lshlrev_b32 v42, 16, v45
        v_and_b32 v43, 0xffff0000, v45
        ds_write_b128 v7, v[40:43]
        s_waitcnt lgkmcnt(0)
        s_barrier
        ds_read_b128 v[48:51], v8
        ds_read_b128 v[56:59], v8 offset:2048
        ds_read_b128 v[52:55], v8 offset:1024
        ds_read_b128 v[60:63], v8 offset:3072
        s_waitcnt lgkmcnt(2)
        v_pk_mul_f32 v[48:49], v[48:49], v[56:57]
        v_pk_mul_f32 v[50:51], v[50:51], v[58:59]
        s_waitcnt lgkmcnt(0)
        v_pk_mul_f32 v[52:53], v[52:53], v[60:61]
        v_pk_mul_f32 v[54:55], v[54:55], v[62:63]
        """)
        for k in range(4):
            a(f"v_cvt_pk_bf16_f32 v{44+k}, v{48+2*k}, v{49+2*k}")
        for i in range(7):
            a(M16(128 + 4 * i, WD + 4 * i, 44))
        a("s_mov_b32 vcc_lo, 0xff00ff00\ns_mov_b32 vcc_hi, 0xff00ff00")
        for i in range(0, 6, 2):
            for k in range(4):
                a(f"v_cndmask_b32 v{128+4*i+k}, v{128+4*i+k}, v{132+4*i+k}, vcc")
            a(f"buffer_store_dwordx4 {vr(128+4*i,4)}, v9, {srd(SWS)}, s99 offen offset:{512*i} sc1")
        a("s_mov_b32 exec_lo, 0x00ff00ff\ns_mov_b32 exec_hi, 0x00ff00ff")
        a(f"buffer_store_dwordx4 v[152:155], v9, {srd(SWS)}, s99 offen offset:3072 sc1")
        a("s_mov_b64 exec, -1")
        self.stamp("ypub")
        a("s_branch L_noffn\nL_kwait:\ns_waitcnt lgkmcnt(0)\ns_barrier")
        if self.EPOS == 1:
            self.out_rows(sM, "e", self.EOUTP)
        a(f"""
        s_mul_i32 s{sT0}, s{sI}, 9363
        s_lshr_b32 s{sT0}, s{sT0}, 16
        s_mul_i32 s{sT0}, s{sT0}, 7
        s_sub_u32 s{sT0}, s{sI}, s{sT0}
        s_mul_i32 s{sT1}, s{sXCD}, 7
        s_add_u32 s{sT0}, s{sT0}, s{sT1}
        s_lshl_b32 s{sT0}, s{sT0}, 7
        s_add_u32 s{sA0}, s{sT0}, {WS_RES}
        v_and_b32 v2, 7, v0
        v_lshlrev_b32 v3, 3, v2
        s_waitcnt vmcnt(0)
        L_respoll:
        buffer_load_dwordx2 v[12:13], v3, {srd(SWS)}, s{sA0} offen sc1
        buffer_load_dword v14, v31, {srd(SWS)}, s{sA0} offen offset:64 sc1
        s_waitcnt vmcnt(0)
        v_max3_u32 v22, v12, v13, v14
        v_cmp_eq_u32 vcc, -1, v22
        s_cbranch_vccz L_resok
        """)
        self.spin_guard("L_resok")
        a(f"""
        s_sleep {self.RSL}
        s_branch L_respoll
        L_resok:
        v_cmp_le_u32 s[80:81], v14, v{self.KEY}
        """)
        self.stamp("res")
        a("L_noffn:")

    def out_rows(self, mask=80, tag="", pol=None):
        a = self.a
        pol = self.OUTP if pol is None else pol
        a(f"""
        ds_read_b128 v[48:51], v15
        ds_read_b128 v[52:55], v16
        v_lshrrev_b32_e64 v22, v20, s{mask}
        v_lshrrev_b32_e64 v23, v21, s{mask}
        v_and_b32 v22, 1, v22
        v_and_b32 v23, 1, v23
        v_cmp_eq_u32 s[70:71], 0, v22
        v_cmp_eq_u32 vcc, 0, v23
        s_waitcnt lgkmcnt(0)
        s_mov_b64 exec, s[70:71]
        s_cbranch_execz L_out1{tag}
        buffer_store_dwordx4 v[48:51], v{self.VTG}, {srd(SOUT)}, s{sROW} offen{pol}
        L_out1{tag}:
        s_and_b32 vcc_hi, vcc_hi, 0xffff
        s_mov_b64 exec, vcc
        s_cbranch_execz L_out2{tag}
        buffer_store_dwordx4 v[52:55], v{self.VTG+1}, {srd(SOUT)}, s{sROW} offen{pol}
        L_out2{tag}:
        s_mov_b64 exec, -1
        """)

    def reducer(self):
        a = self.a
        a(f"""
        s_cmp_lt_i32 s{sU}, 0
        s_cbranch_scc1 L_fin
        s_cmp_lg_u32 s{sW}, 0
        s_cbranch_scc1 L_fin
        v_lshrrev_b32 v5, 3, v0
        v_mul_u32_u24 v5, 14336, v5
        v_lshl_add_u32 v5, v2, 4, v5
        v_lshrrev_b32 v6, 4, v0
        s_lshl_b32 s{sT0}, s{sU}, 3
        v_lshl_add_u32 v6, v6, 1, s{sT0}
        s_movk_i32 s{sA1}, 896
        s_mov_b32 s{sA2}, {WS_HH}
        s_mov_b32 s{sA3}, {WS_HN}
        s_lshl_b32 s{sA0}, s{sU}, 7
        s_add_u32 s{sA0}, s{sA0}, {WS_Y}
        s_waitcnt lgkmcnt(0)
        """)
        self.key_token(7, 12)
        a(f"""
        v_and_b32 v13, 511, v13
        v_mad_u32_u24 v13, v13, s{sA1}, v6
        v_mad_u32_u24 v6, v7, s{sA1}, v6
        L_rpoll:
        buffer_load_ushort v8, v13, {srd(SWS)}, s{sA2} offen sc1
        buffer_load_ushort v9, v13, {srd(SWS)}, s{sA3} offen sc1
        v_lshlrev_b32 v10, 1, v12
        v_and_b32 v10, 0xffff0000, v10
        v_ashrrev_i32 v11, 31, v10
        v_not_b32 v11, v11
        v_or_b32 v11, 0x80000000, v11
        v_xor_b32 v10, v10, v11
        v_and_b32 v10, 0xffff0000, v10
        v_mul_f32 v10, {hex(fbits(-LOG2E))}, v10
        v_exp_f32 v10, v10
        v_add_f32 v10, 1.0, v10
        v_rcp_f32 v10, v10
        v_cvt_pk_bf16_f32 v10, v10, v10
        v_and_b32 v10, 0xffff0000, v10
        s_waitcnt vmcnt(0)
        v_max_u32 v11, v8, v9
        v_cmp_eq_u32 vcc, 0xffff, v11
        s_cbranch_vccz L_rok
        """)
        self.spin_guard("L_rok")
        a(f"""
        s_branch L_rpoll
        L_rok:
        v_lshlrev_b32 v8, 16, v8
        v_lshlrev_b32 v9, 16, v9
        """)
        self.stamp("rpre")
        if self.YS:
            a(f"s_sleep {self.YS}")
        if self.YL:
            a(f"""
            s_cmp_ge_u32 s{sU}, 56
            s_cselect_b32 s{sT0}, 56, 0
            s_sub_u32 s{sT0}, s{sU}, s{sT0}
            s_mul_i32 s{sT0}, s{sT0}, 14336
            s_add_u32 s{sA1}, s{sA0}, s{sT0}
            L_yhint:
            buffer_load_dword v32, v31, {srd(SWS)}, s{sA1} offen sc1
            s_waitcnt vmcnt(0)
            v_cmp_eq_u32 vcc, -1, v32
            s_cbranch_vccz L_ypoll
            """)
            self.spin_guard("L_ypoll")
            a(f"s_sleep {self.YL}\ns_branch L_yhint")
        a("L_ypoll:")
        for i in range(7):
            a(f"""
            s_add_u32 s{sT0}, s{sA0}, {i*8*14336}
            buffer_load_dwordx4 {vr(32+4*i,4)}, v5, {srd(SWS)}, s{sT0} offen sc1
            """)
        a("s_waitcnt vmcnt(0)")
        self.sentinel_any(range(32, 60), 22)
        a("s_cbranch_vccz L_yok")
        self.spin_guard("L_yok")
        a("s_branch L_ypoll\nL_yok:")
        self.stamp("yok")
        for (x, y) in ((32, 36), (40, 44), (48, 52), (32, 40), (48, 56), (32, 48)):
            a(f"v_pk_add_f32 {vr(x,2)}, {vr(x,2)}, {vr(y,2)}\nv_pk_add_f32 {vr(x+2,2)}, {vr(x+2,2)}, {vr(y+2,2)}")
        for k in range(4):
            a(f"v_add_f32_dpp v{36+k}, v{32+k}, v{32+k} row_ror:8 row_mask:0xf bank_mask:0xf bound_ctrl:1")
        a(f"""
        v_permlane16_swap_b32 v36, v37
        v_permlane16_swap_b32 v38, v39
        v_add_f32 v36, v36, v37
        v_add_f32 v38, v38, v39
        v_permlane32_swap_b32 v36, v38
        v_add_f32 v36, v36, v38
        v_cvt_pk_bf16_f32 v36, v36, v36
        v_and_b32 v36, 0xffff0000, v36
        v_mul_f32 v36, v36, v10
        v_cvt_pk_bf16_f32 v36, v36, v36
        v_and_b32 v36, 0xffff0000, v36
        v_add_f32 v36, v36, v9
        v_cvt_pk_bf16_f32 v36, v36, v36
        v_and_b32 v36, 0xffff0000, v36
        v_add_f32 v36, v36, v8
        v_cvt_pk_bf16_f32 v36, v36, v36
        s_mov_b32 exec_lo, 0x00ff00ff
        s_mov_b32 exec_hi, 0x00ff00ff
        buffer_store_short v36, v6, {srd(SOUT)}, 0 offen{self.OUTP}
        s_mov_b64 exec, -1
        """)
        self.stamp("rend")

    def tail(self):
        self.p3()
        self.topk()
        self.ffn()
        if self.EPOS == 0:
            self.a(f"s_orn2_b32 s80, s80, s{sM}")
        elif self.EPOS == 1:
            self.a(f"""
            s_cmp_lt_i32 s{sF}, 0
            s_cselect_b32 s{sT0}, s{sM}, -1
            s_orn2_b32 s80, s80, s{sT0}
            """)
        self.out_rows()
        self.reducer()

    def redo(self):
        self.topk_slow()
        super().redo()


if __name__ == "__main__":
    g = Full()
    s, n = g.build()
    sys.stdout.write(s)
    print("pads:", n, file=sys.stderr)
```

```python
import sys, os, struct
sys.path.insert(0, os.path.dirname(os.path.abspath(__file__)))
from asmb import Asm

NAME = "sequential_preLN__mha_block__moe_arch_mod__prompt_kernel"

WS_EPOCH = 0
WS_KVF = 0x1000
WS_CLF = 0x3000
WS_XID = 0x3800
WS_RES = 0x6000
WS_KEYS = 0x4000
WS_STATS = 0x20000
WS_KV = 0x100000
KVS = 4352
WS_OF = 0x580000
WS_HN = 0x780000
WS_HH = 0x800000
WS_Y = 0xB00000
WS_TS = 0xC00000
WS_SIZE = 0x1000000

L_W = 0
L_XR = 86016
L_CS = 151552
L_RS = 154624
L_QX = 155648
L_WO = 0
L_CB = 114688
L_ST = 147456
L_TR = 114688
L_SEL = 126208
L_AX = 126464
L_G = 138240
L_WG = 0
L_WU = 28672
L_WD = 149504
L_WD2 = 57344
LDS_BYTES = 163840

SX, SWQ, SWS, SWO, SOUT, SWG, SWU, SWD, SWR = 8, 12, 16, 20, 24, 28, 32, 36, 40
sW, sH, sB, sT, sC, sNON, sI, sXCD = 44, 45, 46, 47, 48, 49, 50, 51
sKG = 52
sXO = 59
sONE = 60
sT0, sT1, sT2 = 61, 62, 63
sLO = 86
sM = 88
sA0, sA1, sA2, sA3, sA4, sA5 = 90, 91, 92, 93, 94, 95
sKVF, sKVO = 82, 83
sLOC = 56
sSPIN = 96
sPASS = 97
sTH = 98
sKT = 64
SPIN_MAX = 1 << 17

LOG2E = 1.4426950408889634


def fbits(x):
    return struct.unpack("<I", struct.pack("<f", x))[0]


def srd(r):
    return f"s[{r}:{r+3}]"


def vr(a, n):
    return f"v[{a}:{a+n-1}]" if n > 1 else f"v{a}"


def M32(d, a, b, c=None):
    return f"v_mfma_f32_32x32x16_bf16 {vr(d,16)}, {vr(a,4)}, {vr(b,4)}, {vr(c,16) if c is not None else 0}"


def M16(d, a, b, c=None):
    return f"v_mfma_f32_16x16x32_bf16 {vr(d,4)}, {vr(a,4)}, {vr(b,4)}, {vr(c,4) if c is not None else 0}"


def lines(t):
    return [x.strip() for x in t.strip().split("\n") if x.strip()]


class LQ:
    def __init__(self, a):
        self.a, self.q = a, []

    def op(self, text, tag):
        self.a(text)
        self.q.append(tag)

    def wait(self, tag):
        k = max(i for i, t in enumerate(self.q) if t == tag)
        self.a(f"s_waitcnt lgkmcnt({min(len(self.q) - 1 - k, 15)})")


sF, sU = 3, 4
sWOS, sWOM = 5, 6
sROW = 7
OOB = 0x7F000000


class Gen:
    def __init__(self, stop=None, ts=False, rot=True, force_fb=False, **kw):
        self.a = Asm()
        self.stop = stop
        self.ts = ts
        self.rot = rot
        self.force_fb = force_fb
        self.nts = 0
        self.tsn = []
        for k, v in kw.items():
            setattr(self, k, v)

    amp = None
    ampg = 80

    def stamp(self, name=""):
        if self.amp:
            if name == "entry":
                self.a("s_memrealtime s[100:101]")
            elif name == self.amp:
                self.a("s_memrealtime s[84:85]\ns_waitcnt lgkmcnt(0)")
        if not self.ts or (self.P1S and name in ("karg", "b1", "issued", "kst", "kp0", "hack", "oack", "rpre", "res", "odma")):
            return
        k = self.nts
        self.nts += 1
        self.tsn.append(name)
        assert k < 32
        self.a(f"""
        s_memrealtime s[100:101]
        s_waitcnt lgkmcnt(0)
        v_writelane_b32 v254, s100, {k}
        s_memtime s[100:101]
        s_waitcnt lgkmcnt(0)
        v_writelane_b32 v254, s100, {32+k}
        """.replace("v254", self.TSV))

    def spin_guard(self, out_label):
        self.a(f"""
        s_add_u32 s{sSPIN}, s{sSPIN}, 1
        s_cmp_gt_u32 s{sSPIN}, {SPIN_MAX}
        s_cbranch_scc1 {out_label}
        """)

    def xhalf_sum(self, x, t):
        self.a(f"""
        v_mov_b32 v{t}, v{x}
        v_permlane32_swap_b32 v{x}, v{t}
        v_add_f32 v{x}, v{x}, v{t}
        """)

    def ln_scalars(self, S1, S2, mb, rs, t0, t1):
        self.a(f"""
        v_mul_f32 v{mb}, {hex(fbits(1/448))}, v{S1}
        v_mul_f32 v{t0}, {hex(fbits(1/448))}, v{S2}
        v_fma_f32 v{t0}, -v{mb}, v{mb}, v{t0}
        v_max_f32 v{t0}, 0, v{t0}
        v_cvt_pk_bf16_f32 v{t1}, v{mb}, v{t0}
        v_lshlrev_b32 v{mb}, 16, v{t1}
        v_and_b32 v{t0}, 0xffff0000, v{t1}
        v_add_f32 v{t0}, {hex(fbits(1e-5))}, v{t0}
        v_cvt_pk_bf16_f32 v{t0}, v{t0}, v{t0}
        v_and_b32 v{t0}, 0xffff0000, v{t0}
        v_sqrt_f32 v{t0}, v{t0}
        v_cvt_pk_bf16_f32 v{t0}, v{t0}, v{t0}
        v_and_b32 v{t0}, 0xffff0000, v{t0}
        v_rcp_f32 v{rs}, v{t0}
        """)

    def neg_split2(self, d, x, t):
        self.a(f"""
        v_cvt_pk_bf16_f32 v{t}, -v{x}, -v{x}
        v_and_b32 v{t}, 0xffff0000, v{t}
        v_sub_f32 v{d}, -v{x}, v{t}
        v_cvt_pk_bf16_f32 v{d}, v{t}, v{d}
        """.replace("v_sub_f32 ", "v_sub_f32_e64 "))

    def common_setup(self, scalar=True, only=None):
        self.a(f"""
        {"s_load_dword s%d, s[84:85], 0" % sNON if scalar else ""}
        s_lshl_b32 s{sT}, s{sA5}, 5
        s_lshl_b32 s{sT0}, s{sA4}, 3
        s_add_u32 s{sT}, s{sT}, s{sT0}
        s_and_b32 s{sT0}, s{sB}, 7
        s_add_u32 s{sT}, s{sT}, s{sT0}
        s_mov_b32 s{sONE}, 0x3f803f80
        s_mov_b32 s{sLO}, -1
        s_mov_b32 s{sLO+1}, 0
        s_mov_b32 s{sSPIN}, 0
        s_mov_b32 s{sPASS}, 0
        """)
        self.roles()
        self.srds(only)

    def prologue(self):
        a = self.a
        a(f"""
        s_cmp_ge_u32 s2, 256
        s_cbranch_scc1 L_end
        """)
        self.stamp("entry")
        a(f"""
        s_load_dwordx16 s[64:79], s[0:1], 0
        s_load_dwordx4 s[80:83], s[0:1], 64
        s_load_dwordx2 s[84:85], s[0:1], 80
        v_lshrrev_b32 v1, 6, v0
        v_and_b32 v0, 63, v0
        s_and_b32 s{sXCD}, s2, 7
        s_lshr_b32 s{sI}, s2, 3
        v_readfirstlane_b32 s{sW}, v1
        s_lshr_b32 s{sA4}, s{sXCD}, 1
        s_and_b32 s{sA5}, s{sXCD}, 1
        s_and_b32 s{sC}, s{sI}, 3
        s_lshr_b32 s{sT2}, s{sI}, 2
        s_lshl_b32 s{sB}, s{sA5}, 3
        s_add_u32 s{sB}, s{sB}, s{sT2}
        s_lshl_b32 s{sH}, s{sA4}, 2
        s_add_u32 s{sH}, s{sH}, s{sC}
        s_cmp_eq_u32 s{sW}, 4
        s_cbranch_scc1 L_helper
        v_lshrrev_b32 v22, 3, v0
        v_mul_u32_u24 v22, 896, v22
        v_lshrrev_b32 v23, 4, v0
        v_and_b32 v24, 7, v0
        v_xor_b32 v23, v23, v24
        v_lshl_add_u32 v1, v23, 4, v22
        v_xor_b32 v23, 4, v23
        v_lshl_add_u32 v2, v23, 4, v22
        v_add_u32 v2, {7168-1024}, v2
        v_add_u32 v3, {2*(7168-1024)}, v1
        v_add_u32 v4, {2*(7168-1024)}, v2
        v_lshrrev_b32 v22, 2, v0
        v_mul_u32_u24 v22, 2688, v22
        v_and_b32 v23, 3, v0
        v_lshlrev_b32 v23, 4, v23
        v_min_u32 v23, 40, v23
        v_add_u32 v5, v23, v22
        s_lshl_b32 s{sXO}, s{sB}, 2
        s_add_u32 s{sXO}, s{sXO}, s{sW}
        s_mul_i32 s{sXO}, s{sXO}, {32*896}
        s_lshl_b32 s{sA2}, s{sW}, 14
        s_add_u32 s{sA2}, s{sA2}, {L_XR}
        s_mul_i32 s{sA1}, s{sW}, {16*2688}
        s_mul_i32 s{sA3}, s{sH}, 56
        s_add_u32 s{sA1}, s{sA1}, s{sA3}
        s_add_u32 s{sA1}, s{sA1}, 896
        s_mul_i32 s{sA3}, s{sW}, 21504
        s_mov_b32 s{SX+2}, {2048*896}
        s_mov_b32 s{SX+3}, 0x20000
        s_mov_b32 s{SWQ+2}, {448*2688}
        s_mov_b32 s{SWQ+3}, 0x20000
        """)
        if self.ROT == 7:
            a(f"""
            s_lshl_b32 s{sKG}, s{sC}, 1
            s_add_u32 s{sKG}, s{sKG}, s{sT2}
            s_cmp_ge_u32 s{sKG}, 7
            s_cselect_b32 s{sT0}, 7, 0
            s_sub_u32 s{sKG}, s{sKG}, s{sT0}
            """)
        elif self.ROT > 1:
            a(f"""
            s_add_u32 s{sKG}, s{sC}, s{sT2}
            s_and_b32 s{sKG}, s{sKG}, {self.ROT-1}
            s_mul_i32 s{sKG}, s{sKG}, {self.ROTS}
            """)
        else:
            a(f"s_mov_b32 s{sKG}, 0")

        def nxt(G):
            a(f"""
            s_add_u32 s{sKG+G}, s{sKG+G-1}, 1
            s_cmp_eq_u32 s{sKG+G}, 7
            s_cselect_b32 s{sKG+G}, 0, s{sKG+G}
            """)
        nxt(1)
        if self.LIN:
            n = self.LIN
            a(f"""
            v_lshlrev_b32 v26, 7, v0
            s_and_b32 s{sT0}, s2, {7 if n == 1 else 3}
            s_lshl_b32 s{sT1}, s{sI}, {3 if n == 1 else 2}
            s_add_u32 s{sT0}, s{sT0}, s{sT1}
            s_mul_i32 s{sT1}, s{sT0}, {4704*n}
            s_mul_i32 s{sT0}, s{sT0}, {7168*n}
            s_and_b32 s99, s{sW}, 1
            s_mul_i32 s99, s99, {7168 if n == 2 else 0}
            s_add_u32 s98, s{sT0}, s99
            s_and_b32 s99, s{sW}, 1
            s_mul_i32 s99, s99, {4704 if n == 2 else 0}
            s_add_u32 s99, s{sT1}, s99
            """)
        a(f"""
        s_waitcnt lgkmcnt(0)
        s_mov_b32 s{SX}, s64
        s_mov_b32 s{SX+1}, s65
        s_mov_b32 s{SWQ}, s66
        s_mov_b32 s{SWQ+1}, s67
        """)
        self.stamp("karg")
        lin = []
        if self.LIN:
            lin = lines(f"""
            s_cmp_ge_u32 s{sW}, 2
            s_cbranch_scc1 L_linw
            s_mov_b32 exec_hi, 0xffffff
            buffer_load_dword v28, v26, {srd(SX)}, s98 offen
            s_branch L_lind
            L_linw:
            s_mov_b32 exec_hi, 0x3f
            buffer_load_dword v28, v26, {srd(SWQ)}, s99 offen
            L_lind:
            s_mov_b32 exec_hi, -1
            """)
        if self.LINP == 0:
            a("\n".join(lin))
        a("\n".join(self.dma_x(0) + self.dma_w(0)))
        if self.LINP == 1:
            a("\n".join(lin))
        for G in range(2, 7):
            nxt(G)
        if self.PRIO:
            a(f"s_setprio {self.PRIO}")
        a(f"s_mov_b32 s{sONE}, 0x3f803f80")
        a(f"""
        v_and_b32 v22, 31, v0
        v_lshrrev_b32 v23, 5, v0
        v_lshrrev_b32 v24, 1, v22
        v_and_b32 v24, 7, v24
        v_xor_b32 v24, v24, v23
        v_lshlrev_b32 v22, 7, v22
        v_add_u32 v22, s{sA2}, v22
        v_lshl_add_u32 v22, v24, 4, v22
        v_lshrrev_b32 v25, 2, v0
        v_and_b32 v25, 3, v25
        v_lshl_add_u32 v25, v23, 3, v25
        v_lshlrev_b32 v25, 6, v25
        v_lshrrev_b32 v26, 4, v0
        v_and_b32 v26, 1, v26
        v_lshl_add_u32 v25, v26, 5, v25
        v_lshrrev_b32 v27, 1, v0
        v_and_b32 v27, v27, v26
        v_and_b32 v26, 3, v0
        v_xor_b32 v26, v26, v27
        v_lshl_add_u32 v25, v26, 3, v25
        """)
        for p in range(4):
            a(f"""
            s_add_u32 s{sT0}, s{sW}, {p}
            s_and_b32 s{sT0}, s{sT0}, 3
            s_lshl_b32 s{sT1}, s{sT0}, 5
            s_mul_i32 s{sT2}, s{sT0}, 21504
            v_xor_b32 v{6+p}, s{sT1}, v22
            v_add_u32 v{10+p}, s{sT2}, v25
            """)
        for r in (14, 15, 16, 17, 18, 19, 31):
            a(f"v_mov_b32 v{r}, 0")
        self.stamp("b1")
        a("\n".join(self.dma_x(1)))
        self.stamp("issued")

    def late_setup(self):
        sub = Gen()
        a = sub.a
        sub.common_setup(scalar=False, only=(SWS, SOUT, SWR))
        for r in (20, 21, 97, 98, 99, 101, 102, 103, 105, 106, 107):
            a(f"v_mov_b32 v{r}, 0")
        a(f"v_lshlrev_b32 v26, 4, v0\nv_add_u32 v26, {L_QX}, v26")
        for p in range(4):
            a(f"""
            s_add_u32 s99, s{sW}, {p+1}
            s_and_b32 s99, s99, 3
            v_lshl_add_u32 v{124+p}, s99, 11, v26
            """)
        a(f"""
        s_lshl_b32 s99, s{sH}, 2
        s_add_u32 s99, s99, s{sW}
        s_lshl_b32 s99, s99, 7
        s_add_u32 s{sKVF}, s99, {WS_KVF}
        s_lshl_b32 s99, s{sB}, 2
        s_add_u32 s{sKVO}, s99, s{sKVF}
        s_lshl_b32 s99, s{sH}, 6
        s_add_u32 s99, s99, s{sW}
        s_mul_i32 s99, s99, {KVS}
        s_add_u32 s99, s99, {WS_KV}
        v_add_u32 v26, s{sB}, v0
        v_and_b32 v26, 15, v26
        v_mul_u32_u24 v26, {4*KVS}, v26
        v_add_u32 v26, s99, v26
        """)
        for i in range(16):
            a(f"v_readlane_b32 s{sKT+i}, v26, {i}")
        a(f"""
        s_lshl_b32 s98, s{sB}, 2
        s_add_u32 s98, s98, s{sW}
        s_lshl_b32 s98, s98, 4
        s_add_u32 s98, s98, s{sH}
        s_lshl_b32 s98, s98, 11
        s_add_u32 s99, s98, {WS_OF}
        """)
        return [x[1].text.replace(f"s{sT0}", "s98").replace(f"s{sT1}", "s99") for x in a.items]

    def roles(self):
        self.a(f"""
        s_lshr_b32 s{sT0}, s{sI}, 2
        s_sub_u32 s{sT0}, s{sI}, s{sT0}
        s_sub_u32 s{sT0}, s{sT0}, 1
        s_mul_i32 s{sT1}, s{sXCD}, 7
        s_add_u32 s{sF}, s{sT0}, s{sT1}
        s_cmp_lt_u32 s{sI}, 10
        s_cselect_b32 s{sF}, s{sF}, -1
        s_cmp_eq_u32 s{sC}, 0
        s_cselect_b32 s{sF}, -1, s{sF}
        s_mul_i32 s{sT1}, s{sXCD}, 14
        s_sub_u32 s{sT0}, s{sI}, 10
        s_add_u32 s{sU}, s{sT0}, s{sT1}
        s_cmp_lt_u32 s{sT0}, 14
        s_cselect_b32 s{sU}, s{sU}, -1
        s_mul_i32 s{sROW}, s{sT}, {32*896}
        s_mul_i32 s{sT0}, s{sC}, 224
        s_add_u32 s{sROW}, s{sROW}, s{sT0}
        """)

    def cand_base(self, d, w):
        w = f"s{w}" if w >= 4 else str(w)
        self.a(f"""
        s_lshl_b32 s{sT0}, s{sT}, 1
        s_and_b32 s{sT1}, {w}, 1
        s_add_u32 s{sT0}, s{sT0}, s{sT1}
        s_mul_i32 s{sT0}, s{sT0}, {4*896}
        s_mul_i32 s{sT1}, s{sC}, 224
        s_add_u32 s{sT0}, s{sT0}, s{sT1}
        s_lshr_b32 s{sT1}, {w}, 1
        s_mul_i32 s{sT1}, s{sT1}, {WS_HH-WS_HN}
        s_add_u32 s{sT0}, s{sT0}, s{sT1}
        s_add_u32 s{d}, s{sT0}, {WS_HN}
        """)

    def srds(self, only=None):
        for r, p, n in ((SWS, 84, WS_SIZE), (SWO, 68, 448 * 896), (SOUT, 80, 2048 * 896), (SWG, 74, 448 * 3584),
                        (SWU, 76, 448 * 3584), (SWD, 78, 1792 * 896), (SWR, 72, 896)):
            if only and r not in only:
                continue
            self.a(f"""
            s_mov_b32 s{r}, s{p}
            s_mov_b32 s{r+1}, s{p+1}
            s_mov_b32 s{r+2}, {n}
            s_mov_b32 s{r+3}, 0x20000
            """)

    def dma_x(self, G):
        if G > 6:
            return []
        return lines(f"""
        s_lshl_b32 s{sT0}, s{sKG+G}, 7
        s_add_u32 m0, s{sA2}, {(G%4)*4096}
        s_add_u32 s{sT0}, s{sT0}, s{sXO}
        buffer_load_dwordx4 v1, {srd(SX)}, s{sT0} offen lds
        buffer_load_dwordx4 v2, {srd(SX)}, s{sT0} offen offset:1024 lds
        buffer_load_dwordx4 v3, {srd(SX)}, s{sT0} offen offset:2048 lds
        buffer_load_dwordx4 v4, {srd(SX)}, s{sT0} offen offset:3072 lds
        """)

    def dma_w(self, G):
        return lines(f"""
        s_mul_i32 s{sKG+G}, s{sKG+G}, {64*2688}
        s_add_u32 m0, s{sA3}, {L_W+G*3072}
        s_add_u32 s{sKG+G}, s{sKG+G}, s{sA1}
        s_sub_u32 s{sT1}, s{sKG+G}, 128
        buffer_load_dwordx4 v5, {srd(SWQ)}, s{sKG+G} offen lds
        buffer_load_dwordx4 v5, {srd(SWQ)}, s{sT1} offen offset:1024 lds
        """)

    def dma_q(self, G):
        return [f"s_add_u32 m0, s{sA3}, {L_W+G*3072+2048}", f"s_sub_u32 s{sT1}, s{sKG+G}, 896",
                f"buffer_load_dwordx4 v5, {srd(SWQ)}, s{sT1} offen lds"]

    LA = 2
    HMAP = sum(h << (4 * k) for k, h in enumerate(range(16)))
    TSV = 'v29'
    ATS = 0
    P1S = 0
    WL = 3
    QS = 0
    FLAGAT = 24
    ROT = 2
    ROTS = 1
    NT = 0

    def touches(self):
        return []

    def p1(self):
        a = self.a
        XF, AK, AV, AQ, WF = 128, 32, 48, 64, 80
        XE = 96
        RS = 108
        KO, VO = 240, 248
        s1, s2, csK, csV = (14, 15), (16, 17), 18, 19
        WEK, WEV = 100, 104
        queue = [("x", 0)] * 4 + [("w", 0)] * 2 + [("l", 0)] * (1 if self.LIN and self.LINP == 1 else 0) + [("x", 1)] * 4

        def newer(tag):
            k = max(i for i, t in enumerate(queue) if t == tag)
            return len(queue) - 1 - k

        def xstats(G):
            for n in range(4 * G, 4 * G + 4):
                for i in range(4):
                    a(f"v_dot2c_f32_bf16 v{s1[i%2]}, s{sONE}, v{XF+4*n+i}")
                    a(f"v_dot2c_f32_bf16 v{s2[i%2]}, v{XF+4*n+i}, v{XF+4*n+i}")

        WBS = ([80, 88, 240, 248], [64, 72, 108, 116])

        def xreads(G):
            return [f"ds_read_b128 {vr(XF+4*(4*G+q),4)}, v{6+q} offset:{(G%4)*4096}" for q in range(4)] if G < 7 else []

        def wreads(G):
            WB = WBS[G % 2]
            return [f"ds_read_b64_tr_b16 {vr(WB[p]+4*t+2*hlf,2)}, v{10+p} offset:{G*3072+t*1024+hlf*256}"
                    for p in range(4) for t in range(2) for hlf in range(2)]

        issued = {("x", 0), ("w", 0), ("x", 1)}

        def batch(*items):
            r = []
            for kind, g in items:
                if g <= 6 and (kind, g) not in issued:
                    issued.add((kind, g))
                    r += self.dma_w(g) if kind == "w" else self.dma_x(g)
                    queue.extend([(kind, g)] * (2 if kind == "w" else 4))
            return r

        def last_of(*tags):
            return min(newer(t) for t in tags if t in issued)

        WL = self.WL
        a(f"s_waitcnt vmcnt({newer(('x', 0))})")
        for x in xreads(0):
            a(x)
        self.stamp("x0")
        for x in batch(("w", 1), ("x", 2)):
            a(x)
        a("s_waitcnt lgkmcnt(0)")
        xstats(0)
        a(f"s_waitcnt vmcnt({newer(('x', 1))})\ns_barrier")
        self.stamp("g0")
        for x in wreads(0)[:4] + xreads(1) + wreads(0)[4:]:
            a(x)
        for x in batch(("w", 2), ("x", 3), ("w", WL - 1)):
            a(x)
        a(f"global_load_dword v30, v31, s[84:85] sc1")
        queue.append(("n", 0))
        if self.CPS:
            a(f"""
            s_getpc_b64 s[{sM}:{sM+1}]
            s_lshl_b32 s{sT0}, s{sI}, 2
            s_add_u32 s{sT0}, s{sT0}, s{sW}
            s_lshl_b32 s{sT0}, s{sT0}, 7
            v_mov_b32 v26, s{sT0}
            global_load_dword v27, v26, s[{sM}:{sM+1}]
            """)
            queue.append(("n", 0))
        setup = self.late_setup()
        nset = -(-len(setup) // 4)
        qsched = {4: [0, 1, 2, 3], 5: [4, 5, 6]} if self.QS == 0 else {3: [0, 1, 2], 4: [3, 4, 5, 6]}
        for G in range(7):
            WB = WBS[G % 2]
            if self.P1S:
                self.stamp(f"G{G}")
            a("s_waitcnt lgkmcnt(12)")
            for i in range(4):
                a(f"v_dot2c_f32_bf16 v{csK}, s{sONE}, v{WB[0]+i}")
                a(f"v_dot2c_f32_bf16 v{csV}, s{sONE}, v{WB[0]+4+i}")
            if G < 6:
                xstats(G + 1)
            else:
                a(f"""
                ds_write_b32 v24, v{csK}
                ds_write_b32 v24, v{csV} offset:1024
                """)
            gaps = [[] for _ in range(8)]
            early = batch(("w", G + 3), ("x", G + 4), ("w", G + WL))
            for k in qsched.get(G, ()):
                early += self.dma_q(k)
                queue.append(("q", k))
            if G == 3:
                early += lines(f"""v_readfirstlane_b32 s{sNON}, v30
                s_mul_i32 s{sNON}, s{sNON}, 0x19660d
                s_add_u32 s{sNON}, s{sNON}, 0x3c6ef35f
                v_mov_b32 v30, s{sNON}""")
            if G == 4:
                early += lines(f"""v_and_b32 v22, 31, v0
                v_lshlrev_b32 v22, 5, v22
                v_add_u32 v23, {L_CS}, v22
                v_lshrrev_b32 v24, 5, v0
                s_lshl_b32 s{sT0}, s{sW}, 3
                v_lshl_add_u32 v24, v24, 2, v23
                v_add_u32 v24, s{sT0}, v24""")
            if G == 5:
                sub = Gen()
                sub.a(f"""
                v_add_f32 v14, v14, v15
                v_add_f32 v16, v16, v17
                v_permlane32_swap_b32 v14, v16
                v_add_f32 v14, v14, v16
                v_mov_b32 v16, v14
                v_permlane32_swap_b32 v14, v16
                """)
                sub.ln_scalars(14, 16, 26, 28, 15, 17)
                sub.a(f"""
                v_lshrrev_b32 v15, 16, v26
                v_or_b32 v15, v15, v26
                v_cndmask_b32 v{XE}, 0, v15, s[{sLO}:{sLO+1}]
                v_and_b32 v15, 31, v0
                s_lshl_b32 s{sT0}, s{sW}, 7
                s_add_u32 s{sT0}, s{sT0}, {L_RS}
                v_lshl_add_u32 v15, v15, 2, s{sT0}
                v_lshrrev_b32 v25, 5, v0
                v_lshl_add_u32 v25, v25, 4, s{sT0}
                ds_write_b32 v15, v28
                """)
                stats = [x[1].text for x in sub.a.items]
                early = early + stats[:8]
                stats = stats[8:]
            if G < 6:
                per = -(-len(early) // 3)
                for k in range(3):
                    gaps[k] = early[k * per:(k + 1) * per]
                w = wreads(G + 1)
                rd = w[:4] + xreads(G + 2) + w[4:]
                gaps[2] += setup[:nset]
                setup = setup[nset:]
                gaps[2] += [f"s_waitcnt vmcnt({last_of(('x', G+2), ('w', G+1))})", "s_barrier"]
                per = -(-len(rd) // 5)
                for k in range(5):
                    gaps[3 + k] = rd[per * k:per * k + per]
            else:
                sub = Gen()
                for mat, we in ((0, WEK), (1, WEV)):
                    r = RS + 8 * mat
                    sub.a(f"""
                    v_add_f32 v{r}, v{r}, v{r+1}
                    v_add_f32 v{r+2}, v{r+2}, v{r+3}
                    v_add_f32 v{r+4}, v{r+4}, v{r+5}
                    v_add_f32 v{r+6}, v{r+6}, v{r+7}
                    v_add_f32 v{r}, v{r}, v{r+2}
                    v_add_f32 v{r+4}, v{r+4}, v{r+6}
                    v_add_f32 v{r}, v{r}, v{r+4}
                    """)
                    sub.neg_split2(we, r, 22)
                Bc = [x[1].text for x in sub.a.items]
                gaps[0] = stats[:4] + ["s_waitcnt lgkmcnt(0)", "s_barrier"] + \
                    [f"ds_read_b128 {vr(RS+4*i,4)}, v23 offset:{(i//2)*1024+(i%2)*16}" for i in range(4)]
                A = stats[4:]
                mix = A[:6] + ["s_waitcnt lgkmcnt(0)"]
                A = A[6:]
                while A or Bc:
                    mix += A[:1] + Bc[:2]
                    A, Bc = A[1:], Bc[2:]
                per = -(-len(mix) // 7)
                for k in range(7):
                    gaps[1 + k] = mix[k * per:(k + 1) * per]
            for p in range(4):
                m = 4 * G + p
                if p == 1 and G < 6:
                    a("s_waitcnt lgkmcnt(0)")
                a(M32(AK, WB[p], XF + 4 * m, AK if m else None))
                for x in gaps[2 * p]:
                    a(x)
                a(M32(AV, XF + 4 * m, WB[p] + 4, AV if m else None))
                for x in gaps[2 * p + 1]:
                    a(x)
        a(M32(AK, WEK, XE, AK))
        a("s_waitcnt lgkmcnt(0)")
        for g in range(4):
            a(f"ds_read_b128 {vr(RS+4*g,4)}, v25 offset:{g*32}")
        a(M32(AV, XE, WEV, AV))
        a(f"""
        v_lshlrev_b32 v1, 4, v0
        v_and_b32 v22, 31, v0
        v_cmp_gt_u32 vcc, 28, v22
        v_mov_b32 v14, s{sONE}
        v_mov_b32 v27, 0x3f80
        v_cndmask_b32 v15, 0, -1, vcc
        v_cmp_eq_u32 vcc, 28, v22
        """)
        for i in range(8):
            a(f"v_pk_mul_f32 {vr(AK+2*i,2)}, {vr(AK+2*i,2)}, {vr(28,2)} op_sel_hi:[1,0]")
        a("v_cndmask_b32 v22, 0, v14, vcc")
        for i in range(8):
            a(f"v_cvt_pk_bf16_f32 v{KO+i}, v{AK+2*i}, v{AK+2*i+1}")
            if i == 3:
                a(f"buffer_store_dwordx4 {vr(KO,4)}, v1, {srd(SWS)}, s{sKT} offen sc1")
        a(f"""
        v_cndmask_b32 v{KO+6}, v14, v{KO+6}, s[{sLO}:{sLO+1}]
        v_cndmask_b32 v{KO+7}, v27, v{KO+7}, s[{sLO}:{sLO+1}]
        buffer_store_dwordx4 {vr(KO+4,4)}, v1, {srd(SWS)}, s{sKT} offen offset:1024 sc1
        s_waitcnt lgkmcnt(0)
        """)
        for hf in range(2):
            for i in range(4 * hf, 4 * hf + 4):
                a(f"v_pk_mul_f32 {vr(AV+2*i,2)}, {vr(AV+2*i,2)}, {vr(RS+2*i,2)}")
            for i in range(4 * hf, 4 * hf + 4):
                a(f"v_cvt_pk_bf16_f32 v{VO+i}, v{AV+2*i}, v{AV+2*i+1}")
            for i in range(4 * hf, 4 * hf + 4):
                a(f"v_and_or_b32 v{VO+i}, v{VO+i}, v15, v22")
            a(f"buffer_store_dwordx4 {vr(VO+4*hf,4)}, v1, {srd(SWS)}, s{sKT} offen offset:{2048+1024*hf} sc1")
        a(f"v_lshlrev_b32 v6, 2, v0\nv_add_u32 v6, 4096, v6")
        a("\n".join(self.kv_sum(KO, 7)))
        a(f"buffer_store_dword v7, v6, {srd(SWS)}, s{sKT} offen sc1")
        queue.extend([("st", 0)] * 5)
        self.stamp("kvpub")
        QR = 32
        lq = LQ(a)
        order = list(range(20)) + [24, 20, 21, 22, 23, 25, 26, 27]
        stage_end = {0: 1, 8: 4, 20: 6}

        def qread(n):
            G, p = divmod(order[n], 4)
            if n in stage_end:
                if self.P1S and n:
                    self.stamp(f"q{n}")
                a(f"s_waitcnt vmcnt({newer(('q', stage_end[n]))})\ns_barrier")
            for hlf in range(2):
                lq.op(f"ds_read_b64_tr_b16 {vr(QR+4*(n%8)+2*hlf,2)}, v{10+p} offset:{G*3072+2048+hlf*256}", n)

        PD = 3
        a(f"s_mov_b32 s{sA0}, 0xffff0000")
        for n in range(PD):
            qread(n)
        U = 108
        sub = Gen()
        sub.a(f"""
        v_add_f32 v{RS}, v{RS}, v{RS+1}
        v_add_f32 v{RS+2}, v{RS+2}, v{RS+3}
        v_add_f32 v{RS+4}, v{RS+4}, v{RS+5}
        v_add_f32 v{RS+6}, v{RS+6}, v{RS+7}
        v_add_f32 v{RS}, v{RS}, v{RS+2}
        v_add_f32 v{RS+4}, v{RS+4}, v{RS+6}
        v_add_f32 v{RS}, v{RS}, v{RS+4}
        """)
        sub.neg_split2(WEV, RS, 22)
        fin = [x[1].text for x in sub.a.items]
        for n in range(28):
            lq.wait(n)
            a(M32(AQ, QR + 4 * (n % 8), XF + 4 * order[n], AQ if n else None))
            if n + PD < 28:
                qread(n + PD)
            unp = lambda fr, u, k: f"v_lshlrev_b32 v{u+2*k}, 16, v{fr+k}\nv_and_b32 v{u+2*k+1}, s{sA0}, v{fr+k}"
            add = lambda u, k: f"v_add_f32 v{20+k%2}, v{20+k%2}, v{u+k}"
            if n < 20:
                p = n % 4
                fr = QR + 4 * ((n - p) % 8)
                if p < 2:
                    a(unp(fr, U, 2 * p) + "\n" + unp(fr, U, 2 * p + 1))
                else:
                    for k in range(4 * (p - 2), 4 * (p - 2) + 4):
                        a(add(U, k))
            elif n in (20, 21):
                for k in range(4):
                    a(unp(QR + 4 * (n % 8), U + 8 * (n - 20), k))
            elif n == 22:
                for k in range(16):
                    a(add(U, k))
                a("v_add_f32 v20, v20, v21")
                lq.op("ds_write_b32 v24, v20 offset:2048", "cs")
            elif n == 23:
                a(f"v_mul_f32 v28, {hex(fbits(LOG2E*28**-0.5))}, v28")
                lq.wait("cs")
                a("s_barrier")
                lq.op(f"ds_read_b128 {vr(RS,4)}, v23 offset:2048", "r")
                lq.op(f"ds_read_b128 {vr(RS+4,4)}, v23 offset:2064", "r")
            if n == self.FLAGAT:
                a(f"""
                s_waitcnt vmcnt(0)
                s_mov_b64 exec, 1
                buffer_store_dword v30, v31, {srd(SWS)}, s{sKVO} offen sc1
                s_mov_b64 exec, -1
                """)
            if n == 25:
                lq.wait("r")
                a("\n".join(fin[:6]))
            if n == 26:
                a("\n".join(fin[6:]))
        if self.P1S:
            self.stamp("qmm")
        a(M32(AQ, WEV, XE, AQ))
        if self.EARLY:
            a("\n".join(self.kv_load(1, k) for k in range(5)))
        QO = 80
        for i in range(8):
            a(f"v_pk_mul_f32 {vr(AQ+2*i,2)}, {vr(AQ+2*i,2)}, {vr(28,2)} op_sel_hi:[1,0]")
        for i in range(8):
            a(f"v_cvt_pk_bf16_f32 v{QO+i}, v{AQ+2*i}, v{AQ+2*i+1}")
        a(f"""
        v_cndmask_b32 v{QO+6}, 0, v{QO+6}, s[{sLO}:{sLO+1}]
        v_cndmask_b32 v{QO+7}, 0, v{QO+7}, s[{sLO}:{sLO+1}]
        """)
        S = 32
        a(M32(S, KO, QO))
        a(M32(S, KO + 4, QO + 4, S))
        a(f"ds_write_b128 v127, {vr(QO,4)}")
        a(f"""
        v_and_b32 v2, 15, v0
        v_lshlrev_b32 v2, 2, v2
        s_mov_b32 s{sA2}, 0x00010001
        s_lshl_b32 s{sA2}, s{sA2}, s{sB}
        s_mov_b32 s{sA3}, s{sA2}
        """)
        if self.P1S:
            self.stamp("smm")
        self.rowmax16(S, 22)
        if self.force_fb:
            a("v_add_f32 v22, 0xc3480000, v22")
        self.shift_split(22, 23, 24, 25)
        a(f"""
        v_cndmask_b32 v{QO+6}, v23, v{QO+6}, s[{sLO}:{sLO+1}]
        v_cndmask_b32 v{QO+7}, v24, v{QO+7}, s[{sLO}:{sLO+1}]
        ds_write_b128 v127, {vr(QO+4,4)} offset:1024
        """)
        if self.FLAGAT == 28:
            a(f"""
            s_waitcnt vmcnt({5 if self.EARLY else 0})
            s_mov_b64 exec, 1
            buffer_store_dword v30, v31, {srd(SWS)}, s{sKVO} offen sc1
            s_mov_b64 exec, -1
            """)
        a(f"""
        s_waitcnt lgkmcnt(0)
        s_barrier
        """)
        for p in range(4):
            a(f"ds_read_b128 {vr(128+8*p,4)}, v{124+p}")
            a(f"ds_read_b128 {vr(128+8*p+4,4)}, v{124+p} offset:1024")
        self.stamp("qdone")

    def rowmax16(self, S, d):
        self.a(f"""
        v_max3_f32 v{d}, v{S}, v{S+1}, v{S+2}
        v_max3_f32 v{d+1}, v{S+3}, v{S+4}, v{S+5}
        v_max3_f32 v{d}, v{d}, v{S+6}, v{S+7}
        v_max3_f32 v{d+1}, v{d+1}, v{S+8}, v{S+9}
        v_max3_f32 v{d}, v{d}, v{S+10}, v{S+11}
        v_max3_f32 v{d+1}, v{d+1}, v{S+12}, v{S+13}
        v_max3_f32 v{d}, v{d}, v{S+14}, v{S+15}
        v_max_f32 v{d}, v{d}, v{d+1}
        v_mov_b32 v{d+1}, v{d}
        v_permlane32_swap_b32 v{d}, v{d+1}
        v_max_f32 v{d}, v{d}, v{d+1}
        """)

    def shift_split(self, m, d6, d7, t):
        self.a(f"""
        v_cvt_pk_bf16_f32 v{d6}, -v{m}, -v{m}
        v_and_b32 v{d6}, 0xffff0000, v{d6}
        v_sub_f32_e64 v{d7}, -v{m}, v{d6}
        v_cvt_pk_bf16_f32 v{t}, v{d7}, v{d7}
        v_and_b32 v{t}, 0xffff0000, v{t}
        v_sub_f32 v{d7}, v{d7}, v{t}
        v_cvt_pk_bf16_f32 v{d6}, v{d6}, v{t}
        v_cvt_pk_bf16_f32 v{d7}, v{d7}, 0
        """)

    Q, O, SA, SB, TT, P = 128, 160, 32, 48, 64, 72
    KVB = (240, 224, 80, 96)
    XR2, W2, S4 = 240, 120, 112
    VTG = 116

    def unit(self, i, qt, extra):
        a = self.a
        Q, O, TT, P, B = self.Q, self.O, self.TT, self.P, self.KVB
        n = 4 * i + qt
        buf, bufn, bufp = B[i % 4], B[(i + 1) % 4], B[(i - 1) % 4]
        Sc, Sn = (self.SA, self.SB) if n % 2 == 0 else (self.SB, self.SA)
        kn = buf if qt < 3 else bufn
        qn, qp = (qt + 1) % 4, (qt - 1) % 4
        vp = (buf if qt > 0 else bufp) + 8
        ms = [M32(Sn, kn, Q + 8 * qn), M32(O + 16 * qp, vp + 4, P + 4, O + 16 * qp),
              M32(Sn, kn + 4, Q + 8 * qn + 4, Sn),
              M32(O + 16 * qt, buf + 8, P, None if i == 0 else O + 16 * qt)]
        for g in range(4):
            for x in extra.get(("pre", g), ()):
                a(x)
            if not (n == 0 and g == 1) and not (n == 63 and g in (0, 2)):
                a(ms[g])
            for x in extra.get(g, ()):
                a(x)
            tb, tp, pp = TT + 4 * (g % 2), TT + 4 * ((g + 1) % 2), P + 2 * ((g - 1) % 4)
            a(f"v_exp_f32 v{tb}, v{Sc+4*g}")
            a(f"v_exp_f32 v{tb+1}, v{Sc+4*g+1}")
            if not (n == 0 and g == 0):
                a(f"v_cvt_pk_bf16_f32 v{pp}, v{tp}, v{tp+1}")
                a(f"v_cvt_pk_bf16_f32 v{pp+1}, v{tp+2}, v{tp+3}")
            a(f"v_exp_f32 v{tb+2}, v{Sc+4*g+2}")
            a(f"v_exp_f32 v{tb+3}, v{Sc+4*g+3}")

    def kv_sum(self, buf, d):
        return [f"v_add3_u32 v{d}, v{buf+2*k}, v{buf+2*k+1}, v{d if k else 30}" for k in range(8)]

    def kv_load(self, i, part, buf=None):
        buf = self.KVB[i % 4] if buf is None else buf
        if part == 4:
            return f"buffer_load_dword v{14+i%4}, v6, {srd(SWS)}, s{sKT+i} offen sc1"
        return f"buffer_load_dwordx4 {vr(buf+4*part,4)}, v1, {srd(SWS)}, s{sKT+i} offen offset:{1024*part} sc1"

    NV = 3
    EARLY = 1
    POLLQ = 2

    def attention(self):
        a = self.a
        Q, O, P, TT, B = self.Q, self.O, self.P, self.TT, self.KVB
        NV = self.NV
        queue = []

        def newer(tag):
            k = max(i for i, t in enumerate(queue) if t == tag)
            return len(queue) - 1 - k

        def ld(i, part):
            queue.append((i, part))
            return self.kv_load(i, part)

        def other(text):
            if text.startswith("buffer_"):
                queue.append("o")
            return text

        first = [ld(1, k) for k in range(5)]
        if self.FLAGAT == 28 and self.EARLY:
            queue.append("f")
        if not self.EARLY:
            a("L_att:")
            a("\n".join(first))
        else:
            a("L_att:")
        a("s_waitcnt lgkmcnt(4)")
        a(M32(self.SA, B[0], Q))
        a(M32(self.SA, B[0] + 4, Q + 4, self.SA))
        self.retry = []

        def check(t):
            self.retry.append(t)
            return [f"s_waitcnt vmcnt({newer((t, 4))})", f"L_kvc{t}:"] + self.kv_sum(B[t % 4], 7) + \
                [f"v_cmp_ne_u32 vcc, v7, v{14+t%4}", f"s_cbranch_vccnz L_kvr{t}", f"L_kvd{t}:"]

        late = {}
        self.first_waits = True
        late[(12, 1)] = lines(f"""
        v_and_b32 v22, 31, v0
        v_lshrrev_b32 v23, 5, v0
        v_lshlrev_b32 v23, 3, v23
        v_mul_u32_u24 v22, 896, v22""")
        late[(12, 2)] = lines(f"""
        v_add_u32 v22, v22, v23
        s_mul_i32 s{sT1}, s{sW}, 56
        s_add_u32 s{sT0}, s{sROW}, s{sT1}
        s_mul_i32 s{sT2}, s{sC}, 224
        s_add_u32 s{sT1}, s{sT1}, s{sT2}""")
        xl = [f"buffer_load_dwordx2 {vr(self.XR2+2*g,2)}, v22, {srd(SX)}, s{sT0} offen offset:{16*g}" for g in range(4)]
        wl = [f"buffer_load_dwordx2 {vr(self.W2+2*g,2)}, v23, {srd(SWR)}, s{sT1} offen offset:{16*g}" for g in range(4)]
        late[(13, 0)] = wl[:1]
        late[(13, 1)] = wl[1:2] + xl[:1]
        late[(13, 2)] = wl[2:3] + xl[1:2]
        late[(13, 3)] = wl[3:] + xl[2:3]
        late[(14, 0)] = xl[3:] + lines(f"""
        s_lshl_b32 s{sA4}, s{sW}, 8
        s_add_u32 s{sA4}, s{sA4}, {WS_CLF}
        v_lshlrev_b32 v5, 2, v0""")
        late[(14, 1)] = [f"buffer_load_dword v4, v5, {srd(SWS)}, s{sA4} offen sc1"]
        cb = []
        for p in range(3):
            cb += lines(f"""
            s_add_u32 s{sT0}, s{sW}, {p+1}
            s_and_b32 s{sT0}, s{sT0}, 3
            s_mul_i32 s{sT0}, s{sT0}, 12288
            s_add_u32 s{sT0}, s{sT0}, {L_CB+p*4096}
            v_add_u32 v{10+p}, s{sT0}, v1""")
        cb += lines(f"""
        s_mul_i32 s{sT0}, s{sW}, 12288
        s_add_u32 s{sT0}, s{sT0}, {L_CB}
        v_add_u32 v13, s{sT0}, v1
        v_mov_b32 v8, {hex(fbits(2.0**100))}""")
        late[(14, 2)], late[(14, 3)], late[(15, 0)] = cb[:7], cb[7:13], cb[13:]
        wr = lambda p, k: f"ds_write_b128 v{10+p}, {vr(O+16*p+4*k,4)} offset:{k*1024}"
        for i in range(16):
            for qt in range(4):
                ex = {}
                if i == 0 and qt == 1:
                    ex[("pre", 0)] = ["s_waitcnt lgkmcnt(0)"]
                pre0 = ex.get(("pre", 0), [])
                if qt == 3 and i < 15:
                    pre0 = pre0 + (check(i + 1) if i + 1 <= NV else [f"s_waitcnt vmcnt({newer((i + 1, 3))})"])
                if i == 0 and qt == 3 and self.FLAGAT == 29:
                    ex[1] = ["s_mov_b64 exec, 1", other(f"buffer_store_dword v30, v31, {srd(SWS)}, s{sKVO} offen sc1"),
                             "s_mov_b64 exec, -1"]
                if i == NV - 2 and qt == 0:
                    pre0 = pre0 + lines(f"""
                    s_waitcnt vmcnt({newer("p")})
                    L_kvpoll:
                    v_cmp_ne_u32 vcc, s{sNON}, v3
                    s_andn2_b64 vcc, vcc, s[{sA2}:{sA3}]
                    s_cbranch_vccnz L_kvpr
                    L_kvok:""")
                ex[("pre", 0)] = pre0
                if i == NV - 3 and qt == self.POLLQ:
                    ex[1] = [f"buffer_load_dword v3, v2, {srd(SWS)}, s{sKVF} offen sc1"]
                    queue.append("p")
                if i == 0:
                    t = 2 + qt // 2
                    lds_ = [ld(t, k) for k in ((0, 1) if qt % 2 == 0 else (2, 3, 4))]
                    ex[2], ex[3] = lds_[:-1], lds_[-1:]
                else:
                    ex[0] = [other(x) for x in late.get((i, qt), [])]
                    if i + 3 <= 15:
                        ex[2] = [ld(i + 3, qt)]
                        if qt == 3 and i + 3 <= NV:
                            ex[3] = [ld(i + 3, 4)]
                if i == 15:
                    if qt == 1:
                        ex[3] = [wr(0, 0)]
                    if qt == 2:
                        ex[0], ex[1], ex[2], ex[3] = [wr(0, 1)], [wr(0, 2)], [wr(0, 3)], [wr(1, 0)]
                    if qt == 3:
                        ex[0], ex[1], ex[2], ex[3] = [wr(1, 1)], [wr(1, 2)], [wr(1, 3)], [wr(2, 0)]
                self.unit(i, qt, ex)
                if i == 0 and qt == 3:
                    self.stamp("kvok")
                if i == 0 and qt == 3:
                    a("s_barrier")
                if self.ATS and qt == 3 and i in (0, 1, 2, 4, 6, 8, 10, 12, 14):
                    self.stamp(f"t{i}")
        a(f"""
        v_cvt_pk_bf16_f32 v{P+6}, v{TT+4}, v{TT+5}
        v_cvt_pk_bf16_f32 v{P+7}, v{TT+6}, v{TT+7}
        v_add_f32 v9, v{O+12}, v{O+16+12}
        v_add_f32 v9, v9, v{O+32+12}
        """)
        a(M32(O + 48, B[3] + 12, P + 4, O + 48))
        a(wr(2, 1))
        a(wr(2, 2))
        a(wr(2, 3))
        self.stamp("attn")

    def combine(self):
        a = self.a
        O = self.O
        a(f"""
        L_clpoll:
        s_waitcnt vmcnt(0)
        v_cmp_ne_u32 vcc, s{sNON}, v4
        s_cbranch_vccz L_clok
        """)
        self.spin_guard("L_clok")
        a(f"""
        buffer_load_dword v4, v5, {srd(SWS)}, s{sA4} offen sc1
        s_branch L_clpoll
        L_clok:
        v_add_f32 v9, v9, v{O+48+12}
        v_cmp_nlt_f32 vcc, v9, v8
        s_andn2_b64 vcc, vcc, s[{sLO}:{sLO+1}]
        s_cbranch_vccnz L_bad
        L_badok:
        """)
        a(f"""
        s_waitcnt lgkmcnt(0)
        s_barrier
        """)
        if self.LOC:
            a(f"""
            s_and_b32 s{sT0}, s2, 0xe7
            s_lshl_b32 s{sT0}, s{sT0}, 2
            s_add_u32 s{sT0}, s{sT0}, {WS_XID}
            v_and_b32 v26, 3, v0
            v_lshlrev_b32 v26, 5, v26
            buffer_load_dword v28, v26, {srd(SWS)}, s{sT0} offen sc1
            """)
        order = (3, 0, 1, 2)
        for k in order:
            for p in range(3):
                a(f"ds_read_b128 {vr(O+16*p+4*k,4)}, v13 offset:{p*4096+k*1024}")
        R = O + 48
        for c, k in enumerate(order):
            a(f"s_waitcnt lgkmcnt({9-3*c})")
            for i in range(2):
                r = 4 * k + 2 * i
                a(f"v_pk_add_f32 {vr(R+r,2)}, {vr(R+r,2)}, {vr(O+r,2)}")
                a(f"v_pk_add_f32 {vr(O+16+r,2)}, {vr(O+16+r,2)}, {vr(O+32+r,2)}")
            for i in range(2):
                r = 4 * k + 2 * i
                a(f"v_pk_add_f32 {vr(R+r,2)}, {vr(R+r,2)}, {vr(O+16+r,2)}")
            if c == 0:
                a(f"""
                v_mov_b32 v8, v{R+12}
                v_mov_b32 v9, v{R+12}
                v_readlane_b32 s{sT0}, v{R+13}, 32
                v_permlane32_swap_b32 v8, v9
                s_cmp_eq_u32 s{sT0}, 0
                s_cbranch_scc1 L_noredo
                s_cmp_eq_u32 s{sPASS}, 0
                s_cbranch_scc1 L_redo
                L_noredo:
                v_rcp_f32 v8, v9
                """)
        OP = 32
        for hf in range(2):
            for i in range(4 * hf, 4 * hf + 4):
                a(f"v_pk_mul_f32 {vr(R+2*i,2)}, {vr(R+2*i,2)}, {vr(8,2)} op_sel_hi:[1,0]")
            for i in range(4 * hf, 4 * hf + 4):
                a(f"v_cvt_pk_bf16_f32 v{OP+i}, v{R+2*i}, v{R+2*i+1}")
            if hf:
                a(f"""
                v_cndmask_b32 v{OP+6}, 0, v{OP+6}, s[{sLO}:{sLO+1}]
                v_cndmask_b32 v{OP+7}, 0, v{OP+7}, s[{sLO}:{sLO+1}]
                """)
            a(f"buffer_store_dwordx4 {vr(OP+4*hf,4)}, v1, {srd(SWS)}, s99 offen offset:{1024*hf} sc1")
        a(f"""
        s_or_b32 s{sT0}, s2, s{sW}
        s_cmp_lg_u32 s{sT0}, 0
        s_cbranch_scc1 L_noepoch
        s_mov_b64 exec, 1
        buffer_store_dword v30, v31, {srd(SWS)}, 0 offen sc1
        s_mov_b64 exec, -1
        L_noepoch:
        """)
        self.stamp("opub")

    def helper_head(self):
        a = self.a
        if self.PT:
            a(f"""
            v_and_b32 v22, 31, v0
            v_mul_u32_u24 v22, 896, v22
            v_lshrrev_b32 v23, 5, v0
            v_lshl_add_u32 v2, v23, 7, v22
            s_lshl_b32 s{sA0}, s{sA5}, 5
            s_add_u32 s{sA0}, s{sA0}, s{sI}
            s_mul_i32 s{sA0}, s{sA0}, {32*896}
            v_mul_u32_u24 v22, 10923, v0
            v_lshrrev_b32 v22, 16, v22
            v_mul_u32_u24 v23, 6, v22
            v_sub_u32 v23, v0, v23
            v_min_u32 v22, 9, v22
            v_mul_u32_u24 v22, 2688, v22
            v_lshl_add_u32 v3, v23, 7, v22
            v_cmp_lt_u32 vcc, 2, v23
            v_add_u32 v4, {896-384}, v3
            v_cndmask_b32 v3, v3, v4, vcc
            v_mul_u32_u24 v22, 21846, v0
            v_lshrrev_b32 v22, 16, v22
            v_mul_u32_u24 v23, 3, v22
            v_sub_u32 v23, v0, v23
            v_min_u32 v22, 13, v22
            v_mul_u32_u24 v22, 2688, v22
            v_lshl_add_u32 v4, v23, 7, v22
            s_mul_i32 s{sT0}, s{sA4}, 224
            s_and_b32 s{sT0}, s{sT0}, -128
            s_mul_i32 s{sA1}, s{sI}, {10*2688}
            s_add_u32 s{sA1}, s{sA1}, s{sT0}
            s_add_u32 s{sA1}, s{sA1}, {128*2688+896}
            s_mul_i32 s{sA2}, s{sI}, {14*2688}
            s_add_u32 s{sA2}, s{sA2}, s{sT0}
            s_mov_b32 s{SX+2}, {2048*896}
            s_mov_b32 s{SX+3}, 0x20000
            s_mov_b32 s{SWQ+2}, {448*2688}
            s_mov_b32 s{SWQ+3}, 0x20000
            s_waitcnt lgkmcnt(0)
            s_mov_b32 s{SX}, s64
            s_mov_b32 s{SX+1}, s65
            s_mov_b32 s{SWQ}, s66
            s_mov_b32 s{SWQ+1}, s67
            {f"s_sleep {self.PT-1}" if self.PT > 1 else ""}
            buffer_load_dword v10, v2, {srd(SX)}, s{sA0} offen offset:256
            buffer_load_dword v11, v3, {srd(SWQ)}, s{sA1} offen
            buffer_load_dword v12, v2, {srd(SX)}, s{sA0} offen offset:512
            s_mov_b32 exec_hi, 0
            buffer_load_dword v13, v2, {srd(SX)}, s{sA0} offen offset:768
            s_mov_b32 exec_hi, -1
            buffer_load_dword v14, v4, {srd(SWQ)}, s{sA2} offen
            """)
        a("s_waitcnt lgkmcnt(0)")
        self.common_setup()
        self.a(f"""
        s_waitcnt lgkmcnt(0)
        s_mul_i32 s{sNON}, s{sNON}, 0x19660d
        s_add_u32 s{sNON}, s{sNON}, 0x3c6ef35f
        v_mov_b32 v30, s{sNON}
        """)
        return 0

    def helper(self, nbar):
        a = self.a
        a("L_helper:")
        done = self.helper_head()
        nbar -= done
        if self.CPF:
            a(f"""
            s_getpc_b64 s[52:53]
            L_pc:
            s_sub_u32 s52, s52, L_pc-{NAME}
            s_subb_u32 s53, s53, 0
            s_mul_i32 s{sT0}, s{sI}, {self.CPF*128}
            v_min_u32 v25, {self.CPF-1}, v0
            v_lshl_add_u32 v25, v25, 7, s{sT0}
            v_min_u32 v25, L_last-{NAME}, v25
            """)
        a(f"""
        v_lshlrev_b32 v1, 4, v0
        v_mov_b32 v4, -1
        v_mov_b32 v5, -1
        v_mov_b32 v6, -1
        v_mov_b32 v7, -1
        v_mov_b32 v31, 0
        v_lshrrev_b32 v22, 4, v0
        v_lshrrev_b32 v23, 2, v0
        v_sub_u32 v23, v23, v22
        v_and_b32 v23, 3, v23
        v_mul_u32_u24 v23, 56, v23
        v_mul_u32_u24 v22, 896, v22
        v_add_u32 v22, v22, v23
        v_and_b32 v23, 3, v0
        v_lshlrev_b32 v23, 4, v23
        v_min_u32 v23, 40, v23
        v_add_u32 v2, v22, v23
        v_lshlrev_b32 v3, 7, v0
        """)
        a(f"""
        v_mul_u32_u24 v22, 4682, v0
        v_lshrrev_b32 v22, 16, v22
        v_mul_u32_u24 v27, 14, v22
        v_sub_u32 v23, v0, v27
        v_mul_u32_u24 v27, 896, v22
        v_lshl_add_u32 v8, v23, 4, v27
        v_lshrrev_b32 v22, 2, v0
        v_min_u32 v22, 13, v22
        v_mul_u32_u24 v22, 3584, v22
        v_and_b32 v23, 3, v0
        v_lshl_add_u32 v22, v23, 7, v22
        s_mul_i32 s{sA0}, s{sXCD}, {7*32*896}
        s_mul_i32 s{sT1}, s{sI}, {49*128}
        s_add_u32 s{sA0}, s{sA0}, s{sT1}
        s_mul_i32 s{sA1}, s{sI}, {14*3584}
        s_mul_i32 s{sT1}, s{sXCD}, 448
        s_and_b32 s{sT1}, s{sT1}, -128
        s_add_u32 s{sA1}, s{sA1}, s{sT1}
        s_lshr_b32 s{sA2}, s{sI}, 2
        s_mul_i32 s{sA2}, s{sA2}, {self.WOROT}
        s_lshr_b32 s{sA2}, s{sA2}, 1
        s_mul_i32 s{sA4}, s{sC}, 224
        s_mul_i32 s{sA5}, s{sI}, {self.TSTAG}
        s_lshr_b32 s{sA5}, s{sA5}, 3
        s_add_u32 s{sA5}, s{sA5}, {self.TOFF}
        s_lshl_b32 s{sT0}, s{sB}, 6
        s_add_u32 s{sT0}, s{sT0}, s{sH}
        s_lshl_b32 s{sT0}, s{sT0}, 11
        s_add_u32 s64, s{sT0}, {WS_OF}
        s_add_u32 s65, s64, 32768
        s_add_u32 s66, s65, 32768
        s_add_u32 s67, s66, 32768
        s_lshl_b32 s{sT0}, s{sT}, 2
        s_add_u32 s{sT0}, s{sT0}, s{sC}
        s_lshl_b32 s{sT0}, s{sT0}, 9
        s_add_u32 s72, s{sT0}, {WS_STATS}
        s_lshl_b32 s{sT1}, s{sT}, 7
        s_add_u32 s73, s{sT1}, {WS_KEYS}
        s_cmp_eq_u32 s{sC}, 0
        s_cselect_b32 s73, s73, {OOB}
        s_mul_i32 s{sT0}, s{sF}, 14336
        s_add_u32 s74, s{sT0}, {WS_Y}
        s_add_u32 s75, s74, 4096
        s_add_u32 s76, s75, 4096
        s_add_u32 s77, s76, 4096
        s_lshl_b32 s{sT0}, s2, 2
        s_add_u32 s78, s{sT0}, {WS_CLF}
        """)
        for w in range(4):
            self.cand_base(68 + w, w)
        for nb in range(nbar):
            if self.KVT and nb == self.KVT - 1:
                a(f"""
                s_lshl_b32 s{sT0}, s{sH}, 4
                s_add_u32 s{sT0}, s{sT0}, s{sB}
                s_mul_i32 s{sT0}, s{sT0}, {4*KVS}
                s_add_u32 s{sT0}, s{sT0}, {WS_KV}
                buffer_load_dword v27, v3, {srd(SWS)}, s{sT0} offen sc1
                s_add_u32 s{sT0}, s{sT0}, 8192
                buffer_load_dword v27, v3, {srd(SWS)}, s{sT0} offen sc1
                s_add_u32 s{sT0}, s{sT0}, 8192
                s_mov_b64 exec, 0xff
                buffer_load_dword v27, v3, {srd(SWS)}, s{sT0} offen sc1
                s_mov_b64 exec, -1
                """.replace("buffer_load_dword v27", "buffer_atomic_add v31" if self.KVA else "buffer_load_dword v27"))
            if self.CPF and nb == self.CPB:
                a("global_load_dword v26, v25, s[52:53]")
            a("s_barrier")
        st = lambda v, so, off=0: f"buffer_store_dwordx4 v[4:7], v{v}, {srd(SWS)}, s{so} offen offset:{off} sc1"
        cl = [[st(1, 64 + w, 1024 * k)] for w in range(4) for k in range(2)]
        cl += [["s_mov_b32 exec_hi, 0xffffff", st(8, 68 + w), "s_mov_b32 exec_hi, -1"] for w in range(4)]
        cl += [["s_mov_b32 exec_hi, 0", st(1, 72), "s_mov_b64 exec, 3", st(1, 73), "s_mov_b64 exec, -1"]]
        if self.LOC:
            cl += [[f"s_getreg_b32 s{sT0}, hwreg(HW_REG_XCC_ID)", f"v_mov_b32 v21, s{sT0}", "s_mov_b64 exec, 1",
                    f"buffer_store_dword v21, v31, {srd(SWS)}, s78 offen offset:{WS_XID-WS_CLF} sc1", "s_mov_b64 exec, -1"]]
        ycl = [st(1, 74 + k // 4, 1024 * (k % 4)) for k in range(14)]
        ycl[13] += f"\ns_lshl_b32 s{sT0}, s{sF}, 7\ns_add_u32 s{sT0}, s{sT0}, {WS_RES}\ns_mov_b64 exec, 0xff\n" + \
            st(1, sT0) + "\ns_mov_b64 exec, -1"
        if self.NOCL:
            cl, ycl = [], []
        for n in range(28):
            a(f"""
            s_mul_i32 s{sWOS}, s{sA2}, {16*896}
            s_add_u32 s{sWOS}, s{sWOS}, s{sA4}
            s_lshl_b32 s{sWOM}, s{sA2}, 12
            """)
            for k in range(4):
                a(f"""
                s_add_u32 m0, s{sWOM}, {1024*k}
                s_add_u32 s{sT0}, s{sWOS}, {4*896*k}
                buffer_load_dwordx4 v2, {srd(SWO)}, s{sT0} offen lds
                """)
            if cl:
                a("\n".join(cl.pop(0)))
            if ycl:
                a(f"s_cmp_lt_i32 s{sF}, 0\ns_cbranch_scc1 L_h_y{n}\n{ycl.pop(0)}\nL_h_y{n}:")
            if self.TOUCH:
                a(f"""
                s_cmp_lg_u32 s{sA5}, {n}
                s_cbranch_scc1 L_h_t{n}
                buffer_load_dword v20, v3, {srd(SWD)}, s{sA0} offen
                buffer_load_dword v20, v22, {srd(SWG)}, s{sA1} offen
                buffer_load_dword v20, v22, {srd(SWU)}, s{sA1} offen
                L_h_t{n}:
                """)
            a(f"""
            s_waitcnt vmcnt({self.WOQ})
            s_add_u32 s{sA2}, s{sA2}, 1
            s_cmp_eq_u32 s{sA2}, 28
            s_cselect_b32 s{sA2}, 0, s{sA2}
            """)
            if n == 13 + -(-self.WOQ // 4):
                a(f"""
                s_mov_b64 exec, 1
                buffer_store_dword v30, v31, {srd(SWS)}, s78 offen sc1
                s_mov_b64 exec, -1
                """)
        a(f"""
        s_waitcnt vmcnt(0)
        s_cmp_lt_i32 s{sF}, 0
        s_cbranch_scc1 L_h_end
        v_lshrrev_b32 v22, 2, v0
        v_mul_u32_u24 v22, 3584, v22
        v_and_b32 v23, 3, v0
        v_lshl_add_u32 v22, v23, 4, v22
        v_lshlrev_b32 v23, 12, v23
        v_add_u32 v23, {L_CB+3072+32*16+4}, v23
        s_lshl_b32 s{sA0}, s{sF}, 6
        s_mul_i32 s{sA1}, s{sF}, {32*896}
        """)
        if True:
            for j in range(28):
                a(f"""
                s_add_u32 s{sT2}, s{sA0}, {j*16*3584}
                buffer_load_dwordx4 {vr(32+8*j,4)}, v22, {srd(SWG)}, s{sT2} offen
                buffer_load_dwordx4 {vr(36+8*j,4)}, v22, {srd(SWU)}, s{sT2} offen
                """)
        a(f"""
        L_h_comb:
        s_barrier
        ds_read_b32 v24, v23
        s_waitcnt lgkmcnt(0)
        v_cmp_ne_u32 vcc, 0, v24
        s_cbranch_vccz L_h_go
        s_cmp_lg_u32 s{sPASS}, 0
        s_cbranch_scc1 L_h_go
        s_mov_b32 s{sPASS}, 1
        s_barrier
        s_barrier
        s_barrier
        s_barrier
        s_branch L_h_comb
        L_h_go:
        s_barrier
        s_barrier
        """)

        def wdma(lds, off):
            for k in range(14):
                if k % 4 == 0:
                    a(f"s_mov_b32 m0, {lds+k*1024}\ns_add_u32 s{sT2}, s{sA1}, {off+k*1024}")
                a(f"buffer_load_dwordx4 v1, {srd(SWD)}, s{sT2} offen offset:{(k%4)*1024} lds")

        wdma(L_WD, 0)
        a("s_waitcnt vmcnt(14)\ns_barrier")
        wdma(L_WD2, 14336)
        for j in range(28):
            a(f"ds_write_b128 v1, {vr(32+8*j,4)} offset:{L_WG+j*1024}")
            a(f"ds_write_b128 v1, {vr(36+8*j,4)} offset:{L_WU+j*1024}")
        a("s_waitcnt lgkmcnt(0)")
        a("s_waitcnt vmcnt(0)\nL_h_end:\nL_last:\ns_endpgm")

    WOROT = 7
    TSTAG = 7
    TOFF = 0
    PRIO = 0
    FREG = 1
    KVT = 0
    KVA = 0
    LIN = 0
    LINP = 0
    PT = 0
    CPS = 1
    CPF = 11
    CPB = 1
    KVC = -1
    KVCN = 16
    WSB = 0
    NOCL = 0
    NOWO = 0
    TOUCH = 1
    HD1 = 0
    HD2 = 0
    HD3 = 0
    WOQ = 8

    def redo(self):
        a = self.a
        Q, B, S = self.Q, self.KVB, self.SA
        a(f"""
        L_bad:
        v_mov_b32 v8, 1.0
        v_cndmask_b32 v{self.O+48+13}, v8, v{self.O+48+13}, s[{sLO}:{sLO+1}]
        s_mov_b32 exec_lo, 0
        ds_write_b32 v10, v8 offset:3076
        ds_write_b32 v11, v8 offset:3076
        ds_write_b32 v12, v8 offset:3076
        s_mov_b32 exec_lo, -1
        s_branch L_badok
        """)
        for t in self.retry:
            a(f"L_kvr{t}:")
            self.spin_guard(f"L_kvd{t}")
            a("\n".join(self.kv_load(t, k) for k in range(5)))
            a(f"s_waitcnt vmcnt(0)\ns_branch L_kvc{t}")
        a("L_kvpr:")
        self.spin_guard("L_kvok")
        a(f"""
        buffer_load_dword v3, v2, {srd(SWS)}, s{sKVF} offen sc1
        s_waitcnt vmcnt(0)
        s_branch L_kvpoll
        """)
        MX = 8
        a(f"""
        L_redo:
        s_mov_b32 s{sPASS}, 1
        s_waitcnt vmcnt(0) lgkmcnt(0)
        s_barrier
        s_mov_b32 s{sA5}, 16
        s_lshl_b32 s{sT2}, s{sH}, 6
        s_add_u32 s{sT2}, s{sT2}, s{sW}
        s_mul_i32 s{sT2}, s{sT2}, {KVS}
        s_add_u32 s{sT2}, s{sT2}, {WS_KV}
        """)
        for p in range(4):
            a(f"v_mov_b32 v{MX+p}, 0xff800000")
        a(f"""
        L_redo_loop:
        buffer_load_dwordx4 {vr(B[1],4)}, v1, {srd(SWS)}, s{sT2} offen sc1
        buffer_load_dwordx4 {vr(B[1]+4,4)}, v1, {srd(SWS)}, s{sT2} offen offset:1024 sc1
        s_add_u32 s{sT2}, s{sT2}, {4*KVS}
        s_waitcnt vmcnt(0)
        """)
        for p in range(4):
            a(M32(S, B[1], Q + 8 * p))
            a(M32(S, B[1] + 4, Q + 8 * p + 4, S))
            self.rowmax16(S, 22)
            a(f"v_max_f32 v{MX+p}, v{MX+p}, v22")
        a(f"""
        s_sub_u32 s{sA5}, s{sA5}, 1
        s_cmp_lg_u32 s{sA5}, 0
        s_cbranch_scc1 L_redo_loop
        """)
        for p in range(4):
            a(f"""
            s_add_u32 s{sT0}, s{sW}, {p+1}
            s_and_b32 s{sT0}, s{sT0}, 3
            s_lshl_b32 s{sT0}, s{sT0}, 10
            s_add_u32 s{sT0}, s{sT0}, {L_CB}
            v_lshl_add_u32 v{12+p}, v0, 2, s{sT0}
            s_lshl_b32 s{sT1}, s{sW}, 8
            v_add_u32 v16, s{sT1}, v{12+p}
            ds_write_b32 v16, v{MX+p}
            """)
        a("s_waitcnt lgkmcnt(0)\ns_barrier")
        for p in range(4):
            for k in range(4):
                a(f"ds_read_b32 v{16+k}, v{12+p} offset:{k*256}")
            q6, q7 = Q + 8 * p + 6, Q + 8 * p + 7
            a(f"""
            s_waitcnt lgkmcnt(0)
            v_max3_f32 v16, v16, v17, v18
            v_max_f32 v16, v16, v19
            v_lshlrev_b32 v17, 16, v{q6}
            v_and_b32 v18, 0xffff0000, v{q6}
            v_lshlrev_b32 v19, 16, v{q7}
            v_add_f32 v18, v18, v19
            v_add_f32 v17, v17, v18
            v_sub_f32 v22, v16, v17
            """)
            self.shift_split(22, 23, 24, 25)
            a(f"""
            v_cndmask_b32 v{q6}, v23, v{q6}, s[{sLO}:{sLO+1}]
            v_cndmask_b32 v{q7}, v24, v{q7}, s[{sLO}:{sLO+1}]
            """)
        for part in range(4):
            a(self.kv_load(0, part))
        if self.EARLY:
            a("\n".join(self.kv_load(1, k) for k in range(5)))
        a(f"""
        s_waitcnt vmcnt(0)
        s_barrier
        s_branch L_att
        """)

    def finish(self):
        a = self.a
        a("L_fin:")
        if self.amp:
            a(f"""
            s_cmp_lg_u32 s2, {self.ampg}
            s_cbranch_scc1 L_end
            s_cmp_lg_u32 s{sW}, 0
            s_cbranch_scc1 L_end
            s_sub_u32 s84, s84, s100
            s_min_u32 s84, s84, 20000
            s_lshl_b32 s84, s84, 3
            s_memrealtime s[100:101]
            s_waitcnt lgkmcnt(0)
            L_amp:
            s_memrealtime s[82:83]
            s_waitcnt lgkmcnt(0)
            s_sub_u32 s82, s82, s100
            s_cmp_lt_u32 s82, s84
            s_cbranch_scc1 L_amp
            """)
        if self.ts:
            a(f"""
            s_lshl_b32 s{sT0}, s2, 2
            s_add_u32 s{sT0}, s{sT0}, s{sW}
            s_lshl_b32 s{sT0}, s{sT0}, 8
            s_add_u32 s{sT0}, s{sT0}, {WS_TS}
            s_mov_b64 exec, -1
            v_lshlrev_b32 v2, 2, v0
            buffer_store_dword {self.TSV}, v2, {srd(SWS)}, s{sT0} offen
            """)
        a("L_end:\ns_endpgm")

    def tail(self):
        pass

    def build(self):
        self.prologue()
        self.p1()
        nbar = sum(1 for k, x in self.a.items if k == "i" and x.op == "s_barrier")
        self.attention()
        self.combine()
        self.tail()
        self.finish()
        self.redo()
        self.helper(nbar + 1)
        npad = self.a.pad()
        body = self.a.text()
        hdr = open(os.path.join(os.path.dirname(os.path.abspath(__file__)), "header.txt")).read()
        out = hdr + f"""; @launch grid=(256,1,1) block=(320,1,1) lds={LDS_BYTES}
.amdgcn_target "amdgcn-amd-amdhsa--gfx950"
.text
.globl {NAME}
.p2align 8
.type {NAME},@function
{NAME}:
{body}
.section .rodata,"a"
.p2align 6
.amdhsa_kernel {NAME}
  .amdhsa_next_free_vgpr 256
  .amdhsa_next_free_sgpr 102
  .amdhsa_accum_offset 256
  .amdhsa_group_segment_fixed_size 0
  .amdhsa_kernarg_size 88
  .amdhsa_user_sgpr_count 2
  .amdhsa_user_sgpr_kernarg_segment_ptr 1
  .amdhsa_system_sgpr_workgroup_id_x 1
  .amdhsa_float_denorm_mode_32 3
.end_amdhsa_kernel
"""
        return out, npad


class Full(Gen):

    def piece_idx(self, i, tok, ch):
        self.a(f"""
        v_add_u32 v{ch}, {64*i}, v0
        v_mul_u32_u24 v{tok}, 4682, v{ch}
        v_lshrrev_b32 v{tok}, 16, v{tok}
        v_mul_u32_u24 v27, 14, v{tok}
        v_sub_u32 v{ch}, v{ch}, v27
        s_lshl_b32 s{sT0}, s{sW}, 3
        v_add_u32 v{tok}, s{sT0}, v{tok}
        """)

    def sentinel_any(self, regs, t):
        a = self.a
        regs = list(regs)
        a(f"v_max3_u32 v{t}, v{regs[0]}, v{regs[1]}, v{regs[2] if len(regs) > 2 else regs[1]}")
        for k in range(3, len(regs), 2):
            a(f"v_max3_u32 v{t}, v{t}, v{regs[k]}, v{regs[min(k+1, len(regs)-1)]}")
        a(f"v_cmp_eq_u32 vcc, -1, v{t}")

    def unpack(self, d, s):
        self.a(f"v_lshlrev_b32 v{d}, 16, v{s}\nv_and_b32 v{d+1}, 0xffff0000, v{s}")

    def tr_write(self, src, arr):
        a = self.a
        for g in range(3):
            a(f"ds_write_b64 v14, {vr(src+2*g,2)} offset:{arr*7680+16*g}")
        a(f"""
        s_mov_b32 exec_hi, 0
        ds_write_b64 v14, {vr(src+6,2)} offset:{arr*7680+48}
        s_mov_b32 exec_hi, -1
        """)

    def cand_write(self, src, off):
        a = self.a
        a(f"s_mov_b64 exec, s[{sM}:{sM+1}]")
        for g in range(3):
            a(f"ds_write_b64 v13, {vr(src+2*g,2)} offset:{off+16*g}")
        a(f"""
        s_mov_b32 exec_hi, 0
        ds_write_b64 v13, {vr(src+6,2)} offset:{off+48}
        s_mov_b64 exec, -1
        """)

    def p3(self):
        a = self.a
        XR2, W2, S4 = self.XR2, self.W2, self.S4
        XC, ACC, OFR, WR = 64, 48, 128, 80
        a(f"""
        v_lshrrev_b32 v23, 5, v0
        v_lshrrev_b32 v25, 2, v0
        v_and_b32 v25, 3, v25
        v_add_u32 v24, s{sW}, v25
        v_and_b32 v24, 3, v24
        v_lshl_add_u32 v25, v23, 2, v25
        v_lshlrev_b32 v25, 8, v25
        v_lshl_add_u32 v25, v24, 6, v25
        v_lshrrev_b32 v26, 4, v0
        v_and_b32 v26, 1, v26
        v_lshl_add_u32 v25, v26, 5, v25
        v_lshrrev_b32 v27, 1, v0
        v_and_b32 v27, v27, v26
        v_and_b32 v26, 3, v0
        v_xor_b32 v26, v26, v27
        v_lshl_add_u32 v25, v26, 3, v25
        v_lshlrev_b32 v23, 11, v23
        """)
        for qr in range(4):
            a(f"""
            s_add_u32 s{sT0}, s{sW}, {qr}
            s_and_b32 s{sT0}, s{sT0}, 3
            s_lshl_b32 s{sT1}, s{sT0}, 13
            s_add_u32 s{sT1}, s{sT1}, {L_CB}
            s_mul_i32 s{sT0}, s{sT0}, 28672
            v_add_u32 v{2+qr}, s{sT1}, v1
            v_add_u32 v{6+qr}, s{sT0}, v25
            v_sub_u32 v{10+qr}, v{6+qr}, v23
            """)
        for k in range(8):
            self.unpack(XC + 2 * k, XR2 + k)
        a(f"""
        v_cndmask_b32 v{W2+6}, 0, v{W2+6}, s[{sLO}:{sLO+1}]
        v_cndmask_b32 v{W2+7}, 0, v{W2+7}, s[{sLO}:{sLO+1}]
        v_mov_b32 v{S4}, 0
        """)
        for k in range(8):
            a(f"v_dot2c_f32_bf16 v{S4}, s{sONE}, v{W2+k}")
        a(f"""
        s_lshl_b32 s{sA0}, s{sT}, 2
        s_add_u32 s{sA0}, s{sA0}, s{sW}
        s_lshl_b32 s{sA0}, s{sA0}, 13
        s_add_u32 s{sA0}, s{sA0}, {WS_OF}
        s_add_u32 s{sA1}, s{sA0}, 4096
        s_lshl_b32 s{sA2}, s{sW}, 13
        s_add_u32 s{sA2}, s{sA2}, {L_CB}
        s_add_u32 s{sA3}, s{sA2}, 4096
        s_waitcnt vmcnt(0)
        """)
        if self.LOC:
            a(f"""
            s_getreg_b32 s{sT0}, hwreg(HW_REG_XCC_ID)
            v_cmp_ne_u32 s[{sLOC}:{sLOC+1}], s{sT0}, v28
            """)
        a("s_barrier")
        self.stamp("oack")
        a("L_odma:")
        for hf in range(2):
            a(f"s_mov_b32 m0, s{sA2+hf}")
            for k in range(4):
                a(f"buffer_load_dwordx4 v1, {srd(SWS)}, s{sA0+hf} offen offset:{1024*k} sc1 lds")
        lq = LQ(a)

        def oread(n):
            lq.op(f"ds_read_b128 {vr(OFR+4*n,4)}, v{2+n//8} offset:{(n%8)*1024}", ("o", n))

        def wread(n):
            qr, hl, j = n // 8, (n % 8) // 2, n % 2
            lq.op(f"ds_read_b64_tr_b16 {vr(WR+4*(n%4),2)}, v{6+qr} offset:{hl*7168+j*4096}", ("w", n))
            lq.op(f"ds_read_b64_tr_b16 {vr(WR+4*(n%4)+2,2)}, v{(10 if j else 6)+qr} offset:{hl*7168+j*4096+2048}", ("w", n))

        for n in range(3):
            wread(n)
        a("s_waitcnt vmcnt(0)")
        self.stamp("odma")
        for n in range(8):
            oread(n)
        onext = 8
        for n in range(32):
            lq.wait(("o", n) if lq.q.index(("o", n)) > max(i for i, t in enumerate(lq.q) if t == ("w", n)) else ("w", n))
            a(M32(ACC, WR + 4 * (n % 4), OFR + 4 * n, ACC if n else XC))
            if n + 3 < 32:
                wread(n + 3)
            if n < 4:
                if n == 0:
                    lq.wait(("o", 1))
                    a(f"v_max3_u32 v22, v{OFR}, v{OFR+1}, v{OFR+2}")
                    a(f"v_max3_u32 v23, v{OFR+3}, v{OFR+4}, v{OFR+5}")
                    a(f"v_max3_u32 v22, v22, v{OFR+6}, v{OFR+7}")
                else:
                    lq.wait(("o", 2 * n + 1))
                    for k in range(4):
                        r = OFR + 8 * n + 2 * k
                        a(f"v_max3_u32 v{22+k%2}, v{22+k%2}, v{r}, v{r+1}")
            if n == 3:
                a(f"""
                v_max_u32 v22, v22, v23
                v_cmp_eq_u32 vcc, -1, v22
                s_cbranch_vccz L_ook
                """)
                self.spin_guard("L_ook")
                a(f"""
                s_waitcnt lgkmcnt(0)
                s_branch {"L_ohint" if self.OL else "L_odma"}
                L_ook:
                s_barrier
                """)
            if n >= 4:
                for _ in range(2):
                    if onext < 32 and onext <= n + 8:
                        oread(onext)
                        onext += 1
        self.stamp("gemm")
        H2 = 32
        a(f"""
        v_and_b32 v22, 31, v0
        v_lshrrev_b32 v23, 5, v0
        v_lshlrev_b32 v23, 3, v23
        v_lshl_add_u32 v17, v22, 4, v23
        s_lshl_b32 s{sT0}, s{sW}, 9
        s_add_u32 s{sT0}, s{sT0}, {L_ST}
        v_add_u32 v18, s{sT0}, v17
        v_add_u32 v19, {L_ST}, v17
        v_mul_u32_u24 v22, 240, v22
        s_mul_i32 s{sT0}, s{sW}, 56
        s_add_u32 s{sT0}, s{sT0}, {L_TR}
        v_add3_u32 v14, v22, v23, s{sT0}
        v_mov_b32 v40, 0
        v_mov_b32 v41, 0
        v_mov_b32 v42, 0
        """)
        for k in range(8):
            a(f"v_cvt_pk_bf16_f32 v{H2+k}, v{ACC+2*k}, v{ACC+2*k+1}")
        a(f"""
        v_cndmask_b32 v{H2+6}, 0, v{H2+6}, s[{sLO}:{sLO+1}]
        v_cndmask_b32 v{H2+7}, 0, v{H2+7}, s[{sLO}:{sLO+1}]
        """)
        for k in range(8):
            a(f"v_dot2c_f32_bf16 v40, s{sONE}, v{H2+k}")
            a(f"v_dot2c_f32_bf16 v42, v{H2+k}, v{H2+k}")
            a(f"v_dot2c_f32_bf16 v41, v{W2+k}, v{H2+k}")
        a(f"""
        v_permlane32_swap_b32 v40, v42
        v_permlane32_swap_b32 v41, v{S4}
        v_add_f32 v40, v40, v42
        v_add_f32 v41, v41, v{S4}
        ds_write_b64 v18, v[40:41]
        s_lshl_b32 s{sA0}, s{sT}, 11
        s_add_u32 s{sA0}, s{sA0}, {WS_STATS}
        s_lshl_b32 s{sT0}, s{sC}, 9
        s_add_u32 s{sA1}, s{sA0}, s{sT0}
        s_lshl_b32 s{sT0}, s{sW}, 3
        s_lshl_b32 s{sT0}, 0xff, s{sT0}
        s_waitcnt lgkmcnt(0)
        s_barrier
        ds_read_b64 v[40:41], v19
        ds_read_b64 v[42:43], v19 offset:512
        ds_read_b64 v[44:45], v19 offset:1024
        ds_read_b64 v[46:47], v19 offset:1536
        s_waitcnt lgkmcnt(2)
        v_pk_add_f32 v[40:41], v[40:41], v[42:43]
        s_waitcnt lgkmcnt(0)
        v_pk_add_f32 v[44:45], v[44:45], v[46:47]
        v_pk_add_f32 v[40:41], v[40:41], v[44:45]
        v_mov_b32 v42, v40
        v_mov_b32 v43, v41
        v_permlane32_swap_b32 v40, v42
        v_permlane32_swap_b32 v41, v43
        s_mov_b32 exec_lo, s{sT0}
        s_mov_b32 exec_hi, 0
        """)
        if self.LOC:
            a(f"""
            s_cmp_eq_u64 s[{sLOC}:{sLOC+1}], 0
            s_cbranch_scc0 L_stfar
            buffer_store_dwordx4 v[40:43], v17, {srd(SWS)}, s{sA1} offen
            s_branch L_stdone
            L_stfar:
            """)
        a(f"""
        buffer_store_dwordx4 v[40:43], v17, {srd(SWS)}, s{sA1} offen sc1
        L_stdone:
        s_mov_b64 exec, -1
        v_and_b32 v22, 31, v0
        v_lshrrev_b32 v23, 5, v0
        v_lshlrev_b32 v23, 10, v23
        v_lshl_add_u32 v17, v22, 4, v23
        """)
        for i in range(2):
            self.piece_idx(i, 22, 23)
            a(f"""
            v_mov_b32 v{20+i}, v22
            v_mul_u32_u24 v27, 896, v22
            v_lshl_add_u32 v{self.VTG+i}, v23, 4, v27
            v_mul_u32_u24 v22, 240, v22
            v_lshl_add_u32 v22, v23, 4, v22
            v_add_u32 v{15+i}, {L_TR}, v22
            """)
        a(f"""
        v_mul_u32_u24 v22, 4682, v0
        v_lshrrev_b32 v22, 16, v22
        v_mul_u32_u24 v27, 14, v22
        v_sub_u32 v23, v0, v27
        v_mul_u32_u24 v27, 896, v22
        v_lshl_add_u32 v19, v23, 4, v27
        v_mul_u32_u24 v22, 240, v22
        v_lshl_add_u32 v22, v23, 4, v22
        s_mul_i32 s{sT0}, s{sW}, 960
        s_add_u32 s{sT0}, s{sT0}, {L_TR+7680}
        v_add_u32 v18, s{sT0}, v22
        """)
        self.cand_base(sA5, sW)
        HF = 64
        for k in range(8):
            self.unpack(HF + 2 * k, H2 + k)
        a("s_waitcnt vmcnt(0)")
        self.stamp("hack")
        a("L_stpoll:")
        for c in range(2):
            a(f"buffer_load_dwordx4 {vr(40+4*c,4)}, v17, {srd(SWS)}, s{sA0} offen offset:{512*c} sc1")
        a("s_waitcnt vmcnt(0)")
        self.sentinel_any(range(40, 48), 22)
        a("s_cbranch_vccz L_stok")
        self.spin_guard("L_stok")
        a("s_branch L_stpoll\nL_stok:")
        self.stamp("stok")
        a(f"""
        v_pk_add_f32 v[40:41], v[40:41], v[44:45]
        v_pk_add_f32 v[42:43], v[42:43], v[46:47]
        v_permlane32_swap_b32 v40, v42
        v_permlane32_swap_b32 v41, v43
        v_pk_add_f32 v[40:41], v[40:41], v[42:43]
        v_mov_b32 v42, v40
        v_mov_b32 v43, v41
        v_permlane32_swap_b32 v40, v42
        v_permlane32_swap_b32 v41, v43
        """)
        self.ln_scalars(40, 42, 44, 46, 22, 23)
        KEY = 47
        a(f"""
        v_fma_f32 v41, -v44, v43, v41
        v_mul_f32 v41, v41, v46
        v_cvt_pk_bf16_f32 v41, v41, v41
        v_ashrrev_i32 v22, 31, v41
        v_or_b32 v22, 0x80000000, v22
        v_xor_b32 v41, v41, v22
        v_and_b32 v41, 0xffff0000, v41
        v_lshrrev_b32 v41, 1, v41
        v_and_b32 v22, 31, v0
        s_lshl_b32 s{sT0}, s{sT}, 5
        s_sub_u32 s{sT0}, 2047, s{sT0}
        v_sub_u32 v22, s{sT0}, v22
        v_or_b32 v{KEY}, v41, v22
        v_mov_b32 v48, v{KEY}
        v_mov_b32 v49, v{KEY}
        v_permlane16_swap_b32 v48, v49
        v_cndmask_b32 v48, v49, v48, s[{sLO}:{sLO+1}]
        v_sub_u32 v80, v48, v{KEY}
        """)
        for n in range(1, 16):
            a(f"v_sub_u32_dpp v{80+n}, v48, v{KEY} row_ror:{n} row_mask:0xf bank_mask:0xf bound_ctrl:0".replace(" bound_ctrl:0", " bound_ctrl:1"))
        a("v_lshrrev_b32 v48, 31, v80\nv_lshrrev_b32 v49, 31, v81")
        for n in range(2, 16):
            a(f"v_alignbit_b32 v{48+n%2}, v{48+n%2}, v{80+n}, 31")
        a(f"""
        v_bcnt_u32_b32 v48, v48, 0
        v_bcnt_u32_b32 v48, v49, v48
        v_mov_b32 v49, v48
        v_permlane32_swap_b32 v48, v49
        v_add_u32 v48, v48, v49
        v_sub_u32 v48, 31, v48
        v_cmp_gt_u32 s[{sM}:{sM+1}], 8, v48
        v_lshlrev_b32 v49, 2, v48
        s_or_b32 s{sT0}, s{sW}, s{sC}
        s_cmp_lg_u32 s{sT0}, 0
        s_cbranch_scc1 L_norank
        ds_permute_b32 v49, v49, v{KEY}
        s_lshl_b32 s{sT0}, s{sT}, 7
        s_add_u32 s{sT0}, s{sT0}, {WS_KEYS}
        v_lshlrev_b32 v22, 2, v0
        s_mov_b64 exec, 0xff
        s_waitcnt lgkmcnt(0)
        buffer_store_dword v49, v22, {srd(SWS)}, s{sT0} offen sc1
        s_mov_b64 exec, -1
        L_norank:
        """)
        self.stamp("kst")
        a(f"""
        v_and_b32 v22, 31, v0
        v_sub_u32 v22, v48, v22
        v_mul_i32_i24 v22, 240, v22
        v_add_u32 v13, v14, v22
        """)
        self.cand_write(H2, 7680 + 1920)
        for k in range(8):
            self.unpack(HF + 2 * k, H2 + k) if False else None
        D, HN2, OUT2 = 80, 48, 56
        for k in range(8):
            a(f"v_pk_add_f32 {vr(D+2*k,2)}, {vr(HF+2*k,2)}, v[44:45] op_sel_hi:[1,0] neg_lo:[0,1] neg_hi:[0,1]")
        for k in range(8):
            a(f"v_cvt_pk_bf16_f32 v{HN2+k}, v{D+2*k}, v{D+2*k+1}")
        for k in range(8):
            self.unpack(D + 2 * k, HN2 + k)
        for k in range(8):
            a(f"v_pk_mul_f32 {vr(D+2*k,2)}, {vr(D+2*k,2)}, v[46:47] op_sel_hi:[1,0]")
        for k in range(8):
            a(f"v_cvt_pk_bf16_f32 v{HN2+k}, v{D+2*k}, v{D+2*k+1}")
        self.cand_write(HN2, 7680)
        a("s_waitcnt lgkmcnt(0)")
        if self.T2:
            self.stamp("cb0")
        a("s_barrier")
        if self.T2:
            self.stamp("cb1")
        a("ds_read_b128 v[40:43], v18")
        for k in range(8):
            self.unpack(D + 2 * k, HN2 + k)
        a(f"""
        s_mov_b32 exec_hi, 0xffffff
        s_waitcnt lgkmcnt(0)
        buffer_store_dwordx4 v[40:43], v19, {srd(SWS)}, s{sA5} offen sc1
        s_mov_b32 exec_hi, -1
        v_lshlrev_b32 v2, 7, v0
        s_mov_b32 s{sA1}, {WS_KEYS}
        """)
        if self.KPOS == 0:
            self.key_first()
        for k in range(8):
            a(f"v_pk_add_f32 {vr(D+2*k,2)}, {vr(D+2*k,2)}, {vr(HF+2*k,2)}")
        for k in range(8):
            a(f"v_cvt_pk_bf16_f32 v{OUT2+k}, v{D+2*k}, v{D+2*k+1}")
        self.tr_write(OUT2, 0)
        self.KEY = KEY

    def ffn_weights(self):
        a = self.a
        a(f"""
        s_cmp_lt_i32 s{sF}, 0
        s_cbranch_scc1 L_noffw
        v_lshrrev_b32 v22, 2, v0
        v_mul_u32_u24 v22, 3584, v22
        v_and_b32 v23, 3, v0
        v_lshl_add_u32 v22, v23, 4, v22
        s_mul_i32 s{sT0}, s{sW}, {7*16*3584}
        s_lshl_b32 s{sT1}, s{sF}, 6
        s_add_u32 s{sT0}, s{sT0}, s{sT1}
        s_mul_i32 s{sT1}, s{sW}, 7168
        """)
        for j in range(7):
            a(f"""
            s_add_u32 m0, s{sT1}, {L_WG+j*1024}
            s_add_u32 s{sT2}, s{sT0}, {j*16*3584}
            buffer_load_dwordx4 v22, {srd(SWG)}, s{sT2} offen lds
            s_add_u32 m0, s{sT1}, {L_WU+j*1024}
            buffer_load_dwordx4 v22, {srd(SWU)}, s{sT2} offen lds
            """)
        a(f"""
        s_lshl_b32 s{sT0}, s{sF}, 2
        s_add_u32 s{sT0}, s{sT0}, s{sW}
        s_mul_i32 s{sT0}, s{sT0}, {8*896}
        s_mul_i32 s{sT1}, s{sW}, {8*928}
        s_mov_b32 exec_hi, 0xffffff
        """)
        for r in range(8):
            a(f"""
            s_add_u32 m0, s{sT1}, {L_WD+r*928}
            s_add_u32 s{sT2}, s{sT0}, {r*896}
            buffer_load_dwordx4 v1, {srd(SWD)}, s{sT2} offen lds
            """)
        a("s_mov_b32 exec_hi, -1\nL_noffw:")

    def bisect(self, levels, tag):
        a = self.a
        L = 32
        lo, hi, mid = sA0, sA1, sTH
        a(f"""
        s_mov_b32 s{lo}, 0
        s_mov_b32 s{hi}, 0x80000000
        L_bis{tag}:
        s_add_u32 s{mid}, s{lo}, s{hi}
        s_lshr_b32 s{mid}, s{mid}, 1
        """)
        for j in range(levels):
            a(f"v_cmp_le_u32 s[{64+2*j}:{65+2*j}], s{mid}, v{L+j}")
        a(f"s_bcnt1_i32_b64 s{sA2}, s[64:65]")
        for j in range(1, levels):
            a(f"s_bcnt1_i32_b64 s{sA3}, s[{64+2*j}:{65+2*j}]\ns_add_u32 s{sA2}, s{sA2}, s{sA3}")
        a(f"""
        s_cmp_eq_u32 s{sA2}, 8
        s_cbranch_scc1 L_bisdone{tag}
        s_cmp_eq_u32 s{mid}, s{lo}
        s_cbranch_scc1 L_bisdone{tag}
        s_cmp_gt_u32 s{sA2}, 8
        s_cselect_b32 s{lo}, s{mid}, s{lo}
        s_cselect_b32 s{hi}, s{hi}, s{mid}
        s_branch L_bis{tag}
        L_bisdone{tag}:
        """)

    def extract(self, levels):
        a = self.a
        a(f"s_mov_b32 s{sA2}, 0")
        for j in range(levels):
            m = 64 + 2 * j
            a(f"""
            v_mbcnt_lo_u32_b32 v22, s{m}, 0
            v_mbcnt_hi_u32_b32 v22, s{m+1}, v22
            v_add_u32 v22, s{sA2}, v22
            v_min_u32 v22, 7, v22
            v_lshl_add_u32 v22, v22, 3, s{sA4}
            v_add_u32 v23, {j}, v3
            s_mov_b64 exec, s[{m}:{m+1}]
            ds_write2_b32 v22, v{32+j}, v23 offset1:1
            s_mov_b64 exec, -1
            """)
            if j + 1 < levels:
                a(f"s_bcnt1_i32_b64 s{sA3}, s[{m}:{m+1}]\ns_add_u32 s{sA2}, s{sA2}, s{sA3}")

    AF, BF, WD = 128, 192, 64

    def ffn_pre(self):
        a = self.a
        a(f"""
        v_lshrrev_b32 v8, 4, v0
        v_lshrrev_b32 v9, 2, v0
        v_and_b32 v9, 3, v9
        v_and_b32 v10, 3, v0
        v_lshlrev_b32 v10, 3, v10
        v_lshl_add_u32 v11, v8, 3, v9
        v_lshl_add_u32 v11, v11, 6, v10
        s_lshr_b32 s{sT0}, s{sW}, 1
        s_mul_i32 s{sT0}, s{sT0}, 28672
        s_and_b32 s{sT1}, s{sW}, 1
        s_lshl_b32 s{sT1}, s{sT1}, 5
        s_add_u32 s{sT0}, s{sT0}, s{sT1}
        v_add_u32 v11, s{sT0}, v11
        v_lshl_add_u32 v12, v8, 2, v9
        v_mul_u32_u24 v12, 896, v12
        s_mul_i32 s{sT0}, s{sW}, 224
        s_add_u32 s{sT0}, s{sT0}, {L_WD}
        v_add3_u32 v12, v12, v10, s{sT0}
        v_subrev_u32 v14, {L_WD-L_WD2}, v12
        """)
        a(f"""
        s_lshl_b32 s{sT0}, s{sW}, 4
        s_add_u32 s{sT0}, s{sT0}, s{sA4}
        v_mov_b32 v26, s{sT0}
        v_lshl_add_u32 v24, v0, 2, s{sA4}
        v_min_u32 v10, 55, v0
        v_lshlrev_b32 v10, 4, v10
        s_mul_i32 s{sT0}, s{sW}, 2112
        s_add_u32 s{sT0}, s{sT0}, {L_G}
        v_add_u32 v6, s{sT0}, v10
        """)

    def ffn_reads(self):
        for s_ in range(14):
            self.a(f"ds_read_b64_tr_b16 {vr(self.AF+4*s_,2)}, v11 offset:{s_*2048}")
            self.a(f"ds_read_b64_tr_b16 {vr(self.AF+4*s_+2,2)}, v11 offset:{s_*2048+256}")
        a = self.a
        for i in range(7):
            a(f"ds_read_b64_tr_b16 {vr(self.WD+4*i,2)}, v12 offset:{i*32}")
            a(f"ds_read_b64_tr_b16 {vr(self.WD+4*i+2,2)}, v14 offset:{i*32}")

    def ffn_pre2(self):
        a = self.a
        a(f"""
        v_lshrrev_b32 v8, 4, v0
        v_and_b32 v9, 7, v0
        v_mul_u32_u24 v13, 1056, v9
        v_lshl_add_u32 v13, v8, 4, v13
        v_add_u32 v13, {L_G}, v13
        v_lshlrev_b32 v9, 4, v9
        v_lshl_add_u32 v9, v8, 7, v9
        v_and_b32 v8, 8, v0
        v_lshl_add_u32 v9, v8, 6, v9
        v_lshlrev_b32 v8, 4, v0
        v_add_u32 v8, {L_AX}, v8
        s_lshl_b32 s{sT0}, s{sW}, 10
        v_add_u32 v7, s{sT0}, v8
        s_mul_i32 s{sT0}, s{sF}, 14336
        s_mul_i32 s{sT1}, s{sW}, 3584
        s_add_u32 s{sT0}, s{sT0}, s{sT1}
        s_add_u32 s99, s{sT0}, {WS_Y}
        """)

    def key_first(self):
        self.a(f"""
        s_cmp_lt_i32 s{sF}, 0
        s_cbranch_scc1 L_nokey1
        s_cmp_lg_u32 s{sW}, 0
        s_cbranch_scc1 L_nokey1
        buffer_load_dwordx4 v[32:35], v2, {srd(SWS)}, s{sA1} offen sc1
        L_nokey1:
        """)

    def topk(self):
        a = self.a
        a(f"""
        s_mov_b32 s{sA4}, {L_SEL}
        v_lshlrev_b32 v3, 3, v0
        s_cmp_lt_i32 s{sF}, 0
        s_cbranch_scc1 L_kwait
        """)
        self.ffn_pre()
        self.ffn_pre2()
        a(f"""
        s_cmp_eq_u32 s{sW}, 0
        s_cbranch_scc1 L_ksel
        """)
        self.ffn_reads()
        a("s_branch L_selwait\nL_ksel:")
        self.stamp("kp0")
        a(f"""
        s_branch L_kchk
        L_kpoll:
        buffer_load_dwordx4 v[32:35], v2, {srd(SWS)}, s{sA1} offen sc1
        L_kchk:
        s_waitcnt vmcnt(0)
        """)
        self.sentinel_any(range(32, 36), 22)
        a("s_cbranch_vccz L_kok")
        self.spin_guard("L_kok")
        a("s_branch L_kpoll\nL_kok:")
        self.stamp("kok")
        lo, hi, mid = sA0, sA1, sTH
        a(f"""
        v_max_u32_dpp v22, v32, v32 row_ror:1 row_mask:0xf bank_mask:0xf bound_ctrl:1
        v_max_u32_dpp v22, v22, v22 row_ror:2 row_mask:0xf bank_mask:0xf bound_ctrl:1
        v_max_u32_dpp v22, v22, v22 row_ror:4 row_mask:0xf bank_mask:0xf bound_ctrl:1
        v_max_u32_dpp v23, v22, v22 row_ror:8 row_mask:0xf bank_mask:0xf bound_ctrl:1
        v_min_u32_dpp v22, v22, v22 row_ror:8 row_mask:0xf bank_mask:0xf bound_ctrl:1
        v_readlane_b32 s64, v23, 0
        v_readlane_b32 s65, v23, 16
        v_readlane_b32 s66, v23, 32
        v_readlane_b32 s67, v23, 48
        v_readlane_b32 s68, v22, 0
        v_readlane_b32 s69, v22, 16
        v_readlane_b32 s70, v22, 32
        v_readlane_b32 s71, v22, 48
        s_max_u32 s64, s64, s65
        s_max_u32 s66, s66, s67
        s_min_u32 s68, s68, s69
        s_min_u32 s70, s70, s71
        s_max_u32 s{hi}, s64, s66
        s_min_u32 s{lo}, s68, s70
        s_min_u32 s{hi}, s{hi}, 0x7fffffff
        s_min_u32 s{lo}, s{lo}, s{hi}
        s_sub_u32 s{lo}, s{lo}, 1
        s_max_i32 s{lo}, s{lo}, 0
        L_bisa:
        """)
        for k in range(self.BIS):
            a(f"""
            s_add_u32 s{mid}, s{lo}, s{hi}
            s_lshr_b32 s{mid}, s{mid}, 1
            v_cmp_lt_u32 s[64:65], s{mid}, v32
            v_cmp_lt_u32 s[66:67], s{mid}, v33
            s_bcnt1_i32_b64 s{sA2}, s[64:65]
            s_bcnt1_i32_b64 s{sA3}, s[66:67]
            s_add_u32 s{sA2}, s{sA2}, s{sA3}
            s_cmp_eq_u32 s{sA2}, 8
            s_cbranch_scc1 L_bisdonea
            s_cmp_gt_u32 s{sA2}, 8
            s_cselect_b32 s{lo}, s{mid}, s{lo}
            s_cselect_b32 s{hi}, s{hi}, s{mid}
            """)
        a(f"""
        s_sub_u32 s{sA2}, s{hi}, s{lo}
        s_cmp_gt_u32 s{sA2}, 1
        s_cbranch_scc1 L_bisa
        s_branch L_topslow
        L_bisdonea:
        v_cmp_lt_u32 vcc, s{mid}, v34
        s_add_u32 s{mid}, s{mid}, 1
        {"s_branch" if self.FSLOW else "s_cbranch_vccnz"} L_topslow
        """)
        self.extract(2)
        a(f"""
        L_topdone:
        v_mov_b32 v22, s{sA4}
        v_mov_b32 v23, s{sTH}
        ds_write_b32 v22, v23 offset:64
        L_selwait:
        s_waitcnt lgkmcnt(0)
        s_barrier
        """)
        self.stamp("topk")

    BIS = 6
    FSLOW = 0
    EPOS = 1
    KPOS = 0
    T2 = 0
    EOUTP = ' sc1'
    LOC = 1
    OUTP = ''
    RSL = 2
    YL = 0
    YS = 0
    OL = 0
    FPRE = 0

    def topk_slow(self):
        if self.OL:
            self.a(f"""
            L_ohint:
            v_and_b32 v22, 3, v0
            v_lshlrev_b32 v22, 11, v22
            v_add_u32 v22, 2044, v22
            L_ohint2:
            buffer_load_dword v23, v22, {srd(SWS)}, s{sA0} offen sc1
            s_waitcnt vmcnt(0)
            v_cmp_eq_u32 vcc, -1, v23
            s_cbranch_vccz L_odma
            """)
            self.spin_guard("L_odma")
            self.a("s_branch L_ohint2")
        self.a(f"""
        L_topslow:
        s_mov_b32 s{sA1}, {WS_KEYS}
        L_kpoll2:
        buffer_load_dwordx4 v[36:39], v2, {srd(SWS)}, s{sA1} offen offset:16 sc1
        s_waitcnt vmcnt(0)
        """)
        self.sentinel_any(range(36, 40), 22)
        self.a("s_cbranch_vccz L_kok2")
        self.spin_guard("L_kok2")
        self.a("s_branch L_kpoll2\nL_kok2:")
        self.bisect(8, "b")
        self.extract(8)
        self.a("s_branch L_topdone")

    def key_token(self, d, k):
        self.a(f"v_and_b32 v{d}, 0x7ff, v{k}\nv_sub_u32 v{d}, 2047, v{d}")

    def ffn(self):
        a = self.a
        a(f"""
        ds_read2_b32 v[4:5], v26 offset0:1 offset1:3
        ds_read_b32 v25, v24
        s_mov_b32 s{sA0}, {WS_HN}
        s_movk_i32 s{sA1}, 896
        s_waitcnt lgkmcnt(1)
        v_and_b32 v4, 511, v4
        v_and_b32 v5, 511, v5
        v_mad_u32_u24 v4, v4, s{sA1}, v10
        v_mad_u32_u24 v5, v5, s{sA1}, v10
        L_gpoll:
        buffer_load_dwordx4 v[32:35], v4, {srd(SWS)}, s{sA0} offen sc1
        buffer_load_dwordx4 v[36:39], v5, {srd(SWS)}, s{sA0} offen sc1
        """)
        a(f"""
        s_waitcnt lgkmcnt(0)
        v_readlane_b32 s{sTH}, v25, 16
        v_lshlrev_b32 v24, 2, v0
        s_lshl_b32 s{sA2}, s{sF}, 7
        s_add_u32 s{sA2}, s{sA2}, {WS_RES}
        v_cmp_le_u32 s[80:81], s{sTH}, v{self.KEY}
        s_cmp_lg_u32 s{sW}, 0
        s_cbranch_scc1 L_haveA
        """)
        self.ffn_reads()
        a("L_haveA:")
        a(f"""
        s_waitcnt vmcnt(1)
        ds_write_b128 v6, v[32:35]
        v_max3_u32 v22, v32, v33, v34
        s_waitcnt vmcnt(0)
        ds_write_b128 v6, v[36:39] offset:1056
        v_max3_u32 v22, v22, v35, v36
        v_max3_u32 v22, v22, v37, v38
        v_max_u32 v22, v22, v39
        v_cmp_eq_u32 vcc, -1, v22
        s_cbranch_vccz L_gok
        """)
        self.spin_guard("L_gok")
        a(f"""
        s_branch L_gpoll
        L_gok:
        """)
        self.stamp("gath")
        a(f"""
        s_waitcnt lgkmcnt(0)
        s_barrier
        s_cmp_lg_u32 s{sW}, 3
        s_cbranch_scc1 L_nores
        s_mov_b64 exec, 0x1ffff
        buffer_store_dword v25, v24, {srd(SWS)}, s{sA2} offen sc1
        s_mov_b64 exec, -1
        L_nores:
        """)
        lq = LQ(a)
        AF, BF, WD, D = self.AF, self.BF, self.WD, 40
        for s_ in range(14):
            lq.op(f"ds_read_b128 {vr(BF+4*s_,4)}, v13 offset:{s_*64}", s_)
        for s_ in range(14):
            if s_ % 2 == 0:
                lq.wait(s_ + 1)
            a(M16(D + 4 * (s_ % 2), AF + 4 * s_, BF + 4 * s_, D + 4 * (s_ % 2) if s_ > 1 else None))
        for k in range(4):
            a(f"v_add_f32 v{D+k}, v{D+k}, v{D+4+k}")
        a(f"""
        v_cvt_pk_bf16_f32 v44, v{D}, v{D+1}
        v_cvt_pk_bf16_f32 v45, v{D+2}, v{D+3}
        s_cmp_ge_u32 s{sW}, 2
        s_cbranch_scc1 L_nosilu
        """)
        self.unpack(48, 44)
        self.unpack(50, 45)
        for k in range(4):
            a(f"v_mul_f32 v{52+k}, {hex(fbits(-LOG2E))}, v{48+k}")
        for k in range(4):
            a(f"v_exp_f32 v{52+k}, v{52+k}")
        for k in range(4):
            a(f"v_add_f32 v{52+k}, 1.0, v{52+k}")
        for k in range(4):
            a(f"v_rcp_f32 v{52+k}, v{52+k}")
        for k in range(4):
            a(f"v_mul_f32 v{48+k}, v{48+k}, v{52+k}")
        a(f"""
        v_cvt_pk_bf16_f32 v44, v48, v49
        v_cvt_pk_bf16_f32 v45, v50, v51
        L_nosilu:
        v_lshlrev_b32 v40, 16, v44
        v_and_b32 v41, 0xffff0000, v44
        v_lshlrev_b32 v42, 16, v45
        v_and_b32 v43, 0xffff0000, v45
        ds_write_b128 v7, v[40:43]
        s_waitcnt lgkmcnt(0)
        s_barrier
        ds_read_b128 v[48:51], v8
        ds_read_b128 v[56:59], v8 offset:2048
        ds_read_b128 v[52:55], v8 offset:1024
        ds_read_b128 v[60:63], v8 offset:3072
        s_waitcnt lgkmcnt(2)
        v_pk_mul_f32 v[48:49], v[48:49], v[56:57]
        v_pk_mul_f32 v[50:51], v[50:51], v[58:59]
        s_waitcnt lgkmcnt(0)
        v_pk_mul_f32 v[52:53], v[52:53], v[60:61]
        v_pk_mul_f32 v[54:55], v[54:55], v[62:63]
        """)
        for k in range(4):
            a(f"v_cvt_pk_bf16_f32 v{44+k}, v{48+2*k}, v{49+2*k}")
        for i in range(7):
            a(M16(128 + 4 * i, WD + 4 * i, 44))
        a("s_mov_b32 vcc_lo, 0xff00ff00\ns_mov_b32 vcc_hi, 0xff00ff00")
        for i in range(0, 6, 2):
            for k in range(4):
                a(f"v_cndmask_b32 v{128+4*i+k}, v{128+4*i+k}, v{132+4*i+k}, vcc")
            a(f"buffer_store_dwordx4 {vr(128+4*i,4)}, v9, {srd(SWS)}, s99 offen offset:{512*i} sc1")
        a("s_mov_b32 exec_lo, 0x00ff00ff\ns_mov_b32 exec_hi, 0x00ff00ff")
        a(f"buffer_store_dwordx4 v[152:155], v9, {srd(SWS)}, s99 offen offset:3072 sc1")
        a("s_mov_b64 exec, -1")
        self.stamp("ypub")
        a("s_branch L_noffn\nL_kwait:\ns_waitcnt lgkmcnt(0)\ns_barrier")
        if self.EPOS == 1:
            self.out_rows(sM, "e", self.EOUTP)
        a(f"""
        s_mul_i32 s{sT0}, s{sI}, 9363
        s_lshr_b32 s{sT0}, s{sT0}, 16
        s_mul_i32 s{sT0}, s{sT0}, 7
        s_sub_u32 s{sT0}, s{sI}, s{sT0}
        s_mul_i32 s{sT1}, s{sXCD}, 7
        s_add_u32 s{sT0}, s{sT0}, s{sT1}
        s_lshl_b32 s{sT0}, s{sT0}, 7
        s_add_u32 s{sA0}, s{sT0}, {WS_RES}
        v_and_b32 v2, 7, v0
        v_lshlrev_b32 v3, 3, v2
        s_waitcnt vmcnt(0)
        L_respoll:
        buffer_load_dwordx2 v[12:13], v3, {srd(SWS)}, s{sA0} offen sc1
        buffer_load_dword v14, v31, {srd(SWS)}, s{sA0} offen offset:64 sc1
        s_waitcnt vmcnt(0)
        v_max3_u32 v22, v12, v13, v14
        v_cmp_eq_u32 vcc, -1, v22
        s_cbranch_vccz L_resok
        """)
        self.spin_guard("L_resok")
        a(f"""
        s_sleep {self.RSL}
        s_branch L_respoll
        L_resok:
        v_cmp_le_u32 s[80:81], v14, v{self.KEY}
        """)
        self.stamp("res")
        a("L_noffn:")

    def out_rows(self, mask=80, tag="", pol=None):
        a = self.a
        pol = self.OUTP if pol is None else pol
        a(f"""
        ds_read_b128 v[48:51], v15
        ds_read_b128 v[52:55], v16
        v_lshrrev_b32_e64 v22, v20, s{mask}
        v_lshrrev_b32_e64 v23, v21, s{mask}
        v_and_b32 v22, 1, v22
        v_and_b32 v23, 1, v23
        v_cmp_eq_u32 s[70:71], 0, v22
        v_cmp_eq_u32 vcc, 0, v23
        s_waitcnt lgkmcnt(0)
        s_mov_b64 exec, s[70:71]
        s_cbranch_execz L_out1{tag}
        buffer_store_dwordx4 v[48:51], v{self.VTG}, {srd(SOUT)}, s{sROW} offen{pol}
        L_out1{tag}:
        s_and_b32 vcc_hi, vcc_hi, 0xffff
        s_mov_b64 exec, vcc
        s_cbranch_execz L_out2{tag}
        buffer_store_dwordx4 v[52:55], v{self.VTG+1}, {srd(SOUT)}, s{sROW} offen{pol}
        L_out2{tag}:
        s_mov_b64 exec, -1
        """)

    def reducer(self):
        a = self.a
        a(f"""
        s_cmp_lt_i32 s{sU}, 0
        s_cbranch_scc1 L_fin
        s_cmp_lg_u32 s{sW}, 0
        s_cbranch_scc1 L_fin
        v_lshrrev_b32 v5, 3, v0
        v_mul_u32_u24 v5, 14336, v5
        v_lshl_add_u32 v5, v2, 4, v5
        v_lshrrev_b32 v6, 4, v0
        s_lshl_b32 s{sT0}, s{sU}, 3
        v_lshl_add_u32 v6, v6, 1, s{sT0}
        s_movk_i32 s{sA1}, 896
        s_mov_b32 s{sA2}, {WS_HH}
        s_mov_b32 s{sA3}, {WS_HN}
        s_lshl_b32 s{sA0}, s{sU}, 7
        s_add_u32 s{sA0}, s{sA0}, {WS_Y}
        s_waitcnt lgkmcnt(0)
        """)
        self.key_token(7, 12)
        a(f"""
        v_and_b32 v13, 511, v13
        v_mad_u32_u24 v13, v13, s{sA1}, v6
        v_mad_u32_u24 v6, v7, s{sA1}, v6
        L_rpoll:
        buffer_load_ushort v8, v13, {srd(SWS)}, s{sA2} offen sc1
        buffer_load_ushort v9, v13, {srd(SWS)}, s{sA3} offen sc1
        v_lshlrev_b32 v10, 1, v12
        v_and_b32 v10, 0xffff0000, v10
        v_ashrrev_i32 v11, 31, v10
        v_not_b32 v11, v11
        v_or_b32 v11, 0x80000000, v11
        v_xor_b32 v10, v10, v11
        v_and_b32 v10, 0xffff0000, v10
        v_mul_f32 v10, {hex(fbits(-LOG2E))}, v10
        v_exp_f32 v10, v10
        v_add_f32 v10, 1.0, v10
        v_rcp_f32 v10, v10
        v_cvt_pk_bf16_f32 v10, v10, v10
        v_and_b32 v10, 0xffff0000, v10
        s_waitcnt vmcnt(0)
        v_max_u32 v11, v8, v9
        v_cmp_eq_u32 vcc, 0xffff, v11
        s_cbranch_vccz L_rok
        """)
        self.spin_guard("L_rok")
        a(f"""
        s_branch L_rpoll
        L_rok:
        v_lshlrev_b32 v8, 16, v8
        v_lshlrev_b32 v9, 16, v9
        """)
        self.stamp("rpre")
        if self.YS:
            a(f"s_sleep {self.YS}")
        if self.YL:
            a(f"""
            s_cmp_ge_u32 s{sU}, 56
            s_cselect_b32 s{sT0}, 56, 0
            s_sub_u32 s{sT0}, s{sU}, s{sT0}
            s_mul_i32 s{sT0}, s{sT0}, 14336
            s_add_u32 s{sA1}, s{sA0}, s{sT0}
            L_yhint:
            buffer_load_dword v32, v31, {srd(SWS)}, s{sA1} offen sc1
            s_waitcnt vmcnt(0)
            v_cmp_eq_u32 vcc, -1, v32
            s_cbranch_vccz L_ypoll
            """)
            self.spin_guard("L_ypoll")
            a(f"s_sleep {self.YL}\ns_branch L_yhint")
        a("L_ypoll:")
        for i in range(7):
            a(f"""
            s_add_u32 s{sT0}, s{sA0}, {i*8*14336}
            buffer_load_dwordx4 {vr(32+4*i,4)}, v5, {srd(SWS)}, s{sT0} offen sc1
            """)
        a("s_waitcnt vmcnt(0)")
        self.sentinel_any(range(32, 60), 22)
        a("s_cbranch_vccz L_yok")
        self.spin_guard("L_yok")
        a("s_branch L_ypoll\nL_yok:")
        self.stamp("yok")
        for (x, y) in ((32, 36), (40, 44), (48, 52), (32, 40), (48, 56), (32, 48)):
            a(f"v_pk_add_f32 {vr(x,2)}, {vr(x,2)}, {vr(y,2)}\nv_pk_add_f32 {vr(x+2,2)}, {vr(x+2,2)}, {vr(y+2,2)}")
        for k in range(4):
            a(f"v_add_f32_dpp v{36+k}, v{32+k}, v{32+k} row_ror:8 row_mask:0xf bank_mask:0xf bound_ctrl:1")
        a(f"""
        v_permlane16_swap_b32 v36, v37
        v_permlane16_swap_b32 v38, v39
        v_add_f32 v36, v36, v37
        v_add_f32 v38, v38, v39
        v_permlane32_swap_b32 v36, v38
        v_add_f32 v36, v36, v38
        v_cvt_pk_bf16_f32 v36, v36, v36
        v_and_b32 v36, 0xffff0000, v36
        v_mul_f32 v36, v36, v10
        v_cvt_pk_bf16_f32 v36, v36, v36
        v_and_b32 v36, 0xffff0000, v36
        v_add_f32 v36, v36, v9
        v_cvt_pk_bf16_f32 v36, v36, v36
        v_and_b32 v36, 0xffff0000, v36
        v_add_f32 v36, v36, v8
        v_cvt_pk_bf16_f32 v36, v36, v36
        s_mov_b32 exec_lo, 0x00ff00ff
        s_mov_b32 exec_hi, 0x00ff00ff
        buffer_store_short v36, v6, {srd(SOUT)}, 0 offen{self.OUTP}
        s_mov_b64 exec, -1
        """)
        self.stamp("rend")

    def tail(self):
        self.p3()
        self.topk()
        self.ffn()
        if self.EPOS == 0:
            self.a(f"s_orn2_b32 s80, s80, s{sM}")
        elif self.EPOS == 1:
            self.a(f"""
            s_cmp_lt_i32 s{sF}, 0
            s_cselect_b32 s{sT0}, s{sM}, -1
            s_orn2_b32 s80, s80, s{sT0}
            """)
        self.out_rows()
        self.reducer()

    def redo(self):
        self.topk_slow()
        super().redo()


if __name__ == "__main__":
    g = Full()
    s, n = g.build()
    sys.stdout.write(s)
    print("pads:", n, file=sys.stderr)
```

```python
import sys, os, struct
sys.path.insert(0, os.path.dirname(os.path.abspath(__file__)))
from asmb import Asm

NAME = "sequential_preLN__mha_block__moe_arch_mod__prompt_kernel"

WS_EPOCH = 0
WS_KVF = 0x1000
WS_CLF = 0x3000
WS_XID = 0x3800
WS_RES = 0x6000
WS_KEYS = 0x4000
WS_STATS = 0x20000
WS_KV = 0x100000
KVS = 4352
WS_OF = 0x580000
WS_HN = 0x780000
WS_HH = 0x800000
WS_Y = 0xB00000
WS_TS = 0xC00000
WS_SIZE = 0x1000000

L_W = 0
L_XR = 86016
L_CS = 151552
L_RS = 154624
L_QX = 155648
L_WO = 0
L_CB = 114688
L_ST = 147456
L_TR = 114688
L_SEL = 126208
L_AX = 126464
L_G = 138240
L_WG = 0
L_WU = 28672
L_WD = 149504
L_WD2 = 57344
LDS_BYTES = 163840

SX, SWQ, SWS, SWO, SOUT, SWG, SWU, SWD, SWR = 8, 12, 16, 20, 24, 28, 32, 36, 40
sW, sH, sB, sT, sC, sNON, sI, sXCD = 44, 45, 46, 47, 48, 49, 50, 51
sKG = 52
sXO = 59
sONE = 60
sT0, sT1, sT2 = 61, 62, 63
sLO = 86
sM = 88
sA0, sA1, sA2, sA3, sA4, sA5 = 90, 91, 92, 93, 94, 95
sKVF, sKVO = 82, 83
sLOC = 56
sSPIN = 96
sPASS = 97
sTH = 98
sKT = 64
SPIN_MAX = 1 << 17

LOG2E = 1.4426950408889634


def fbits(x):
    return struct.unpack("<I", struct.pack("<f", x))[0]


def srd(r):
    return f"s[{r}:{r+3}]"


def vr(a, n):
    return f"v[{a}:{a+n-1}]" if n > 1 else f"v{a}"


def M32(d, a, b, c=None):
    return f"v_mfma_f32_32x32x16_bf16 {vr(d,16)}, {vr(a,4)}, {vr(b,4)}, {vr(c,16) if c is not None else 0}"


def M16(d, a, b, c=None):
    return f"v_mfma_f32_16x16x32_bf16 {vr(d,4)}, {vr(a,4)}, {vr(b,4)}, {vr(c,4) if c is not None else 0}"


def lines(t):
    return [x.strip() for x in t.strip().split("\n") if x.strip()]


class LQ:
    def __init__(self, a):
        self.a, self.q = a, []

    def op(self, text, tag):
        self.a(text)
        self.q.append(tag)

    def wait(self, tag):
        k = max(i for i, t in enumerate(self.q) if t == tag)
        self.a(f"s_waitcnt lgkmcnt({min(len(self.q) - 1 - k, 15)})")


sF, sU = 3, 4
sWOS, sWOM = 5, 6
sROW = 7
OOB = 0x7F000000


class Gen:
    def __init__(self, stop=None, ts=False, rot=True, force_fb=False, **kw):
        self.a = Asm()
        self.stop = stop
        self.ts = ts
        self.rot = rot
        self.force_fb = force_fb
        self.nts = 0
        self.tsn = []
        for k, v in kw.items():
            setattr(self, k, v)

    amp = None
    ampg = 80

    def stamp(self, name=""):
        if self.amp:
            if name == "entry":
                self.a("s_memrealtime s[100:101]")
            elif name == self.amp:
                self.a("s_memrealtime s[84:85]\ns_waitcnt lgkmcnt(0)")
        if not self.ts or (self.P1S and name in ("karg", "b1", "issued", "kst", "kp0", "hack", "oack", "rpre", "res", "odma")):
            return
        k = self.nts
        self.nts += 1
        self.tsn.append(name)
        assert k < 32
        self.a(f"""
        s_memrealtime s[100:101]
        s_waitcnt lgkmcnt(0)
        v_writelane_b32 v254, s100, {k}
        s_memtime s[100:101]
        s_waitcnt lgkmcnt(0)
        v_writelane_b32 v254, s100, {32+k}
        """.replace("v254", self.TSV))

    def spin_guard(self, out_label):
        self.a(f"""
        s_add_u32 s{sSPIN}, s{sSPIN}, 1
        s_cmp_gt_u32 s{sSPIN}, {SPIN_MAX}
        s_cbranch_scc1 {out_label}
        """)

    def xhalf_sum(self, x, t):
        self.a(f"""
        v_mov_b32 v{t}, v{x}
        v_permlane32_swap_b32 v{x}, v{t}
        v_add_f32 v{x}, v{x}, v{t}
        """)

    def ln_scalars(self, S1, S2, mb, rs, t0, t1):
        self.a(f"""
        v_mul_f32 v{mb}, {hex(fbits(1/448))}, v{S1}
        v_mul_f32 v{t0}, {hex(fbits(1/448))}, v{S2}
        v_fma_f32 v{t0}, -v{mb}, v{mb}, v{t0}
        v_max_f32 v{t0}, 0, v{t0}
        v_cvt_pk_bf16_f32 v{t1}, v{mb}, v{t0}
        v_lshlrev_b32 v{mb}, 16, v{t1}
        v_and_b32 v{t0}, 0xffff0000, v{t1}
        v_add_f32 v{t0}, {hex(fbits(1e-5))}, v{t0}
        v_cvt_pk_bf16_f32 v{t0}, v{t0}, v{t0}
        v_and_b32 v{t0}, 0xffff0000, v{t0}
        v_sqrt_f32 v{t0}, v{t0}
        v_cvt_pk_bf16_f32 v{t0}, v{t0}, v{t0}
        v_and_b32 v{t0}, 0xffff0000, v{t0}
        v_rcp_f32 v{rs}, v{t0}
        """)

    def neg_split2(self, d, x, t):
        self.a(f"""
        v_cvt_pk_bf16_f32 v{t}, -v{x}, -v{x}
        v_and_b32 v{t}, 0xffff0000, v{t}
        v_sub_f32 v{d}, -v{x}, v{t}
        v_cvt_pk_bf16_f32 v{d}, v{t}, v{d}
        """.replace("v_sub_f32 ", "v_sub_f32_e64 "))

    def common_setup(self, scalar=True, only=None):
        self.a(f"""
        {"s_load_dword s%d, s[84:85], 0" % sNON if scalar else ""}
        s_lshl_b32 s{sT}, s{sA5}, 5
        s_lshl_b32 s{sT0}, s{sA4}, 3
        s_add_u32 s{sT}, s{sT}, s{sT0}
        s_and_b32 s{sT0}, s{sB}, 7
        s_add_u32 s{sT}, s{sT}, s{sT0}
        s_mov_b32 s{sONE}, 0x3f803f80
        s_mov_b32 s{sLO}, -1
        s_mov_b32 s{sLO+1}, 0
        s_mov_b32 s{sSPIN}, 0
        s_mov_b32 s{sPASS}, 0
        """)
        self.roles()
        self.srds(only)

    def prologue(self):
        a = self.a
        a(f"""
        s_cmp_ge_u32 s2, 256
        s_cbranch_scc1 L_end
        """)
        self.stamp("entry")
        a(f"""
        s_load_dwordx16 s[64:79], s[0:1], 0
        s_load_dwordx4 s[80:83], s[0:1], 64
        s_load_dwordx2 s[84:85], s[0:1], 80
        v_lshrrev_b32 v1, 6, v0
        v_and_b32 v0, 63, v0
        s_and_b32 s{sXCD}, s2, 7
        s_lshr_b32 s{sI}, s2, 3
        v_readfirstlane_b32 s{sW}, v1
        s_lshr_b32 s{sA4}, s{sXCD}, 1
        s_and_b32 s{sA5}, s{sXCD}, 1
        s_and_b32 s{sC}, s{sI}, 3
        s_lshr_b32 s{sT2}, s{sI}, 2
        s_lshl_b32 s{sB}, s{sA5}, 3
        s_add_u32 s{sB}, s{sB}, s{sT2}
        s_lshl_b32 s{sH}, s{sA4}, 2
        s_add_u32 s{sH}, s{sH}, s{sC}
        """)
        if self.HMAP != 0xfedcba9876543210:
            a(f"""
            s_lshl_b32 s{sH}, s{sH}, 2
            s_mov_b32 s{sA0}, {self.HMAP & 0xffffffff}
            s_mov_b32 s{sA1}, {self.HMAP >> 32}
            s_lshr_b64 s[{sA0}:{sA1}], s[{sA0}:{sA1}], s{sH}
            s_and_b32 s{sH}, s{sA0}, 15
            """)
        a(f"""
        s_cmp_eq_u32 s{sW}, 4
        s_cbranch_scc1 L_helper
        v_lshrrev_b32 v22, 3, v0
        v_mul_u32_u24 v22, 896, v22
        v_lshrrev_b32 v23, 4, v0
        v_and_b32 v24, 7, v0
        v_xor_b32 v23, v23, v24
        v_lshl_add_u32 v1, v23, 4, v22
        v_xor_b32 v23, 4, v23
        v_lshl_add_u32 v2, v23, 4, v22
        v_add_u32 v2, {7168-1024}, v2
        v_add_u32 v3, {2*(7168-1024)}, v1
        v_add_u32 v4, {2*(7168-1024)}, v2
        v_lshrrev_b32 v22, 2, v0
        v_mul_u32_u24 v22, 2688, v22
        v_and_b32 v23, 3, v0
        v_lshlrev_b32 v23, 4, v23
        v_min_u32 v23, 40, v23
        v_add_u32 v5, v23, v22
        s_lshl_b32 s{sXO}, s{sB}, 2
        s_add_u32 s{sXO}, s{sXO}, s{sW}
        s_mul_i32 s{sXO}, s{sXO}, {32*896}
        s_lshl_b32 s{sA2}, s{sW}, 14
        s_add_u32 s{sA2}, s{sA2}, {L_XR}
        s_mul_i32 s{sA1}, s{sW}, {16*2688}
        s_mul_i32 s{sA3}, s{sH}, 56
        s_add_u32 s{sA1}, s{sA1}, s{sA3}
        s_add_u32 s{sA1}, s{sA1}, 896
        s_mul_i32 s{sA3}, s{sW}, 21504
        s_mov_b32 s{SX+2}, {2048*896}
        s_mov_b32 s{SX+3}, 0x20000
        s_mov_b32 s{SWQ+2}, {448*2688}
        s_mov_b32 s{SWQ+3}, 0x20000
        """)
        if self.ROT == 7:
            a(f"""
            s_lshl_b32 s{sKG}, s{sC}, 1
            s_add_u32 s{sKG}, s{sKG}, s{sT2}
            s_cmp_ge_u32 s{sKG}, 7
            s_cselect_b32 s{sT0}, 7, 0
            s_sub_u32 s{sKG}, s{sKG}, s{sT0}
            """)
        elif self.ROT > 1:
            a(f"""
            s_add_u32 s{sKG}, s{sC}, s{sT2}
            s_and_b32 s{sKG}, s{sKG}, {self.ROT-1}
            s_mul_i32 s{sKG}, s{sKG}, {self.ROTS}
            """)
        else:
            a(f"s_mov_b32 s{sKG}, 0")

        def nxt(G):
            a(f"""
            s_add_u32 s{sKG+G}, s{sKG+G-1}, 1
            s_cmp_eq_u32 s{sKG+G}, 7
            s_cselect_b32 s{sKG+G}, 0, s{sKG+G}
            """)
        nxt(1)
        if self.LIN:
            n = self.LIN
            a(f"""
            v_lshlrev_b32 v26, 7, v0
            s_and_b32 s{sT0}, s2, {7 if n == 1 else 3}
            s_lshl_b32 s{sT1}, s{sI}, {3 if n == 1 else 2}
            s_add_u32 s{sT0}, s{sT0}, s{sT1}
            s_mul_i32 s{sT1}, s{sT0}, {4704*n}
            s_mul_i32 s{sT0}, s{sT0}, {7168*n}
            s_and_b32 s99, s{sW}, 1
            s_mul_i32 s99, s99, {7168 if n == 2 else 0}
            s_add_u32 s98, s{sT0}, s99
            s_and_b32 s99, s{sW}, 1
            s_mul_i32 s99, s99, {4704 if n == 2 else 0}
            s_add_u32 s99, s{sT1}, s99
            """)
        a(f"""
        s_waitcnt lgkmcnt(0)
        s_mov_b32 s{SX}, s64
        s_mov_b32 s{SX+1}, s65
        s_mov_b32 s{SWQ}, s66
        s_mov_b32 s{SWQ+1}, s67
        """)
        self.stamp("karg")
        lin = []
        if self.LIN:
            lin = lines(f"""
            s_cmp_ge_u32 s{sW}, 2
            s_cbranch_scc1 L_linw
            s_mov_b32 exec_hi, 0xffffff
            buffer_load_dword v28, v26, {srd(SX)}, s98 offen
            s_branch L_lind
            L_linw:
            s_mov_b32 exec_hi, 0x3f
            buffer_load_dword v28, v26, {srd(SWQ)}, s99 offen
            L_lind:
            s_mov_b32 exec_hi, -1
            """)
        if self.LINP == 0:
            a("\n".join(lin))
        a("\n".join(self.dma_x(0) + self.dma_w(0)))
        if self.LINP == 1:
            a("\n".join(lin))
        for G in range(2, 7):
            nxt(G)
        if self.PRIO:
            a(f"s_setprio {self.PRIO}")
        a(f"s_mov_b32 s{sONE}, 0x3f803f80")
        a(f"""
        v_and_b32 v22, 31, v0
        v_lshrrev_b32 v23, 5, v0
        v_lshrrev_b32 v24, 1, v22
        v_and_b32 v24, 7, v24
        v_xor_b32 v24, v24, v23
        v_lshlrev_b32 v22, 7, v22
        v_add_u32 v22, s{sA2}, v22
        v_lshl_add_u32 v22, v24, 4, v22
        v_lshrrev_b32 v25, 2, v0
        v_and_b32 v25, 3, v25
        v_lshl_add_u32 v25, v23, 3, v25
        v_lshlrev_b32 v25, 6, v25
        v_lshrrev_b32 v26, 4, v0
        v_and_b32 v26, 1, v26
        v_lshl_add_u32 v25, v26, 5, v25
        v_lshrrev_b32 v27, 1, v0
        v_and_b32 v27, v27, v26
        v_and_b32 v26, 3, v0
        v_xor_b32 v26, v26, v27
        v_lshl_add_u32 v25, v26, 3, v25
        """)
        for p in range(4):
            a(f"""
            s_add_u32 s{sT0}, s{sW}, {p}
            s_and_b32 s{sT0}, s{sT0}, 3
            s_lshl_b32 s{sT1}, s{sT0}, 5
            s_mul_i32 s{sT2}, s{sT0}, 21504
            v_xor_b32 v{6+p}, s{sT1}, v22
            v_add_u32 v{10+p}, s{sT2}, v25
            """)
        for r in (14, 15, 16, 17, 18, 19, 31):
            a(f"v_mov_b32 v{r}, 0")
        self.stamp("b1")
        a("\n".join(self.dma_x(1)))
        self.stamp("issued")

    def late_setup(self):
        sub = Gen()
        a = sub.a
        sub.common_setup(scalar=False, only=(SWS, SOUT, SWR))
        for r in (20, 21, 97, 98, 99, 101, 102, 103, 105, 106, 107):
            a(f"v_mov_b32 v{r}, 0")
        a(f"v_lshlrev_b32 v26, 4, v0\nv_add_u32 v26, {L_QX}, v26")
        for p in range(4):
            a(f"""
            s_add_u32 s99, s{sW}, {p+1}
            s_and_b32 s99, s99, 3
            v_lshl_add_u32 v{124+p}, s99, 11, v26
            """)
        a(f"""
        s_lshl_b32 s99, s{sH}, 2
        s_add_u32 s99, s99, s{sW}
        s_lshl_b32 s99, s99, 7
        s_add_u32 s{sKVF}, s99, {WS_KVF}
        s_lshl_b32 s99, s{sB}, 2
        s_add_u32 s{sKVO}, s99, s{sKVF}
        s_lshl_b32 s99, s{sH}, 6
        s_add_u32 s99, s99, s{sW}
        s_mul_i32 s99, s99, {KVS}
        s_add_u32 s99, s99, {WS_KV}
        v_add_u32 v26, s{sB}, v0
        v_and_b32 v26, 15, v26
        v_mul_u32_u24 v26, {4*KVS}, v26
        v_add_u32 v26, s99, v26
        """)
        for i in range(16):
            a(f"v_readlane_b32 s{sKT+i}, v26, {i}")
        a(f"""
        s_lshl_b32 s98, s{sB}, 2
        s_add_u32 s98, s98, s{sW}
        s_lshl_b32 s98, s98, 4
        s_add_u32 s98, s98, s{sH}
        s_lshl_b32 s98, s98, 11
        s_add_u32 s99, s98, {WS_OF}
        """)
        return [x[1].text.replace(f"s{sT0}", "s98").replace(f"s{sT1}", "s99") for x in a.items]

    def roles(self):
        self.a(f"""
        s_lshr_b32 s{sT0}, s{sI}, 2
        s_sub_u32 s{sT0}, s{sI}, s{sT0}
        s_sub_u32 s{sT0}, s{sT0}, 1
        s_mul_i32 s{sT1}, s{sXCD}, 7
        s_add_u32 s{sF}, s{sT0}, s{sT1}
        s_cmp_lt_u32 s{sI}, 10
        s_cselect_b32 s{sF}, s{sF}, -1
        s_cmp_eq_u32 s{sC}, 0
        s_cselect_b32 s{sF}, -1, s{sF}
        s_mul_i32 s{sT1}, s{sXCD}, 14
        s_sub_u32 s{sT0}, s{sI}, 10
        s_add_u32 s{sU}, s{sT0}, s{sT1}
        s_cmp_lt_u32 s{sT0}, 14
        s_cselect_b32 s{sU}, s{sU}, -1
        s_mul_i32 s{sROW}, s{sT}, {32*896}
        s_mul_i32 s{sT0}, s{sC}, 224
        s_add_u32 s{sROW}, s{sROW}, s{sT0}
        """)

    def cand_base(self, d, w):
        w = f"s{w}" if w >= 4 else str(w)
        self.a(f"""
        s_lshl_b32 s{sT0}, s{sT}, 1
        s_and_b32 s{sT1}, {w}, 1
        s_add_u32 s{sT0}, s{sT0}, s{sT1}
        s_mul_i32 s{sT0}, s{sT0}, {4*896}
        s_mul_i32 s{sT1}, s{sC}, 224
        s_add_u32 s{sT0}, s{sT0}, s{sT1}
        s_lshr_b32 s{sT1}, {w}, 1
        s_mul_i32 s{sT1}, s{sT1}, {WS_HH-WS_HN}
        s_add_u32 s{sT0}, s{sT0}, s{sT1}
        s_add_u32 s{d}, s{sT0}, {WS_HN}
        """)

    def srds(self, only=None):
        for r, p, n in ((SWS, 84, WS_SIZE), (SWO, 68, 448 * 896), (SOUT, 80, 2048 * 896), (SWG, 74, 448 * 3584),
                        (SWU, 76, 448 * 3584), (SWD, 78, 1792 * 896), (SWR, 72, 896)):
            if only and r not in only:
                continue
            self.a(f"""
            s_mov_b32 s{r}, s{p}
            s_mov_b32 s{r+1}, s{p+1}
            s_mov_b32 s{r+2}, {n}
            s_mov_b32 s{r+3}, 0x20000
            """)

    def dma_x(self, G):
        if G > 6:
            return []
        return lines(f"""
        s_lshl_b32 s{sT0}, s{sKG+G}, 7
        s_add_u32 m0, s{sA2}, {(G%4)*4096}
        s_add_u32 s{sT0}, s{sT0}, s{sXO}
        buffer_load_dwordx4 v1, {srd(SX)}, s{sT0} offen lds
        buffer_load_dwordx4 v2, {srd(SX)}, s{sT0} offen offset:1024 lds
        buffer_load_dwordx4 v3, {srd(SX)}, s{sT0} offen offset:2048 lds
        buffer_load_dwordx4 v4, {srd(SX)}, s{sT0} offen offset:3072 lds
        """)

    def dma_w(self, G):
        return lines(f"""
        s_mul_i32 s{sKG+G}, s{sKG+G}, {64*2688}
        s_add_u32 m0, s{sA3}, {L_W+G*3072}
        s_add_u32 s{sKG+G}, s{sKG+G}, s{sA1}
        s_sub_u32 s{sT1}, s{sKG+G}, 128
        buffer_load_dwordx4 v5, {srd(SWQ)}, s{sKG+G} offen lds
        buffer_load_dwordx4 v5, {srd(SWQ)}, s{sT1} offen offset:1024 lds
        """)

    def dma_q(self, G):
        return [f"s_add_u32 m0, s{sA3}, {L_W+G*3072+2048}", f"s_sub_u32 s{sT1}, s{sKG+G}, 896",
                f"buffer_load_dwordx4 v5, {srd(SWQ)}, s{sT1} offen lds"]

    LA = 2
    HMAP = sum(h << (4 * k) for k, h in enumerate(range(16)))
    TSV = 'v29'
    ATS = 0
    P1S = 0
    WL = 3
    QS = 0
    FLAGAT = 24
    ROT = 2
    ROTS = 1
    NT = 0

    def touches(self):
        return []

    def p1(self):
        a = self.a
        XF, AK, AV, AQ, WF = 128, 32, 48, 64, 80
        XE = 96
        RS = 108
        KO, VO = 240, 248
        s1, s2, csK, csV = (14, 15), (16, 17), 18, 19
        WEK, WEV = 100, 104
        queue = [("x", 0)] * 4 + [("w", 0)] * 2 + [("l", 0)] * (1 if self.LIN and self.LINP == 1 else 0) + [("x", 1)] * 4

        def newer(tag):
            k = max(i for i, t in enumerate(queue) if t == tag)
            return len(queue) - 1 - k

        def xstats(G):
            for n in range(4 * G, 4 * G + 4):
                for i in range(4):
                    a(f"v_dot2c_f32_bf16 v{s1[i%2]}, s{sONE}, v{XF+4*n+i}")
                    a(f"v_dot2c_f32_bf16 v{s2[i%2]}, v{XF+4*n+i}, v{XF+4*n+i}")

        WBS = ([80, 88, 240, 248], [64, 72, 108, 116])

        def xreads(G):
            return [f"ds_read_b128 {vr(XF+4*(4*G+q),4)}, v{6+q} offset:{(G%4)*4096}" for q in range(4)] if G < 7 else []

        def wreads(G):
            WB = WBS[G % 2]
            return [f"ds_read_b64_tr_b16 {vr(WB[p]+4*t+2*hlf,2)}, v{10+p} offset:{G*3072+t*1024+hlf*256}"
                    for p in range(4) for t in range(2) for hlf in range(2)]

        issued = {("x", 0), ("w", 0), ("x", 1)}

        def batch(*items):
            r = []
            for kind, g in items:
                if g <= 6 and (kind, g) not in issued:
                    issued.add((kind, g))
                    r += self.dma_w(g) if kind == "w" else self.dma_x(g)
                    queue.extend([(kind, g)] * (2 if kind == "w" else 4))
            return r

        def last_of(*tags):
            return min(newer(t) for t in tags if t in issued)

        WL = self.WL
        a(f"s_waitcnt vmcnt({newer(('x', 0))})")
        for x in xreads(0):
            a(x)
        self.stamp("x0")
        for x in batch(("w", 1), ("x", 2)):
            a(x)
        a("s_waitcnt lgkmcnt(0)")
        xstats(0)
        a(f"s_waitcnt vmcnt({newer(('x', 1))})\ns_barrier")
        self.stamp("g0")
        for x in wreads(0)[:4] + xreads(1) + wreads(0)[4:]:
            a(x)
        for x in batch(("w", 2), ("x", 3), ("w", WL - 1)):
            a(x)
        a(f"global_load_dword v30, v31, s[84:85] sc1")
        queue.append(("n", 0))
        if self.CPS:
            a(f"""
            s_getpc_b64 s[{sM}:{sM+1}]
            s_lshl_b32 s{sT0}, s{sI}, 2
            s_add_u32 s{sT0}, s{sT0}, s{sW}
            s_lshl_b32 s{sT0}, s{sT0}, 7
            v_mov_b32 v26, s{sT0}
            global_load_dword v27, v26, s[{sM}:{sM+1}]
            """)
            queue.append(("n", 0))
        setup = self.late_setup()
        nset = -(-len(setup) // 4)
        qsched = {4: [0, 1, 2, 3], 5: [4, 5, 6]} if self.QS == 0 else {3: [0, 1, 2], 4: [3, 4, 5, 6]}
        for G in range(7):
            WB = WBS[G % 2]
            if self.P1S:
                self.stamp(f"G{G}")
            a("s_waitcnt lgkmcnt(12)")
            for i in range(4):
                a(f"v_dot2c_f32_bf16 v{csK}, s{sONE}, v{WB[0]+i}")
                a(f"v_dot2c_f32_bf16 v{csV}, s{sONE}, v{WB[0]+4+i}")
            if G < 6:
                xstats(G + 1)
            else:
                a(f"""
                ds_write_b32 v24, v{csK}
                ds_write_b32 v24, v{csV} offset:1024
                """)
            gaps = [[] for _ in range(8)]
            early = batch(("w", G + 3), ("x", G + 4), ("w", G + WL))
            for k in qsched.get(G, ()):
                early += self.dma_q(k)
                queue.append(("q", k))
            if G == 3:
                early += lines(f"""v_readfirstlane_b32 s{sNON}, v30
                s_mul_i32 s{sNON}, s{sNON}, 0x19660d
                s_add_u32 s{sNON}, s{sNON}, 0x3c6ef35f
                v_mov_b32 v30, s{sNON}""")
            if G == 4:
                early += lines(f"""v_and_b32 v22, 31, v0
                v_lshlrev_b32 v22, 5, v22
                v_add_u32 v23, {L_CS}, v22
                v_lshrrev_b32 v24, 5, v0
                s_lshl_b32 s{sT0}, s{sW}, 3
                v_lshl_add_u32 v24, v24, 2, v23
                v_add_u32 v24, s{sT0}, v24""")
            if G == 5:
                sub = Gen()
                sub.a(f"""
                v_add_f32 v14, v14, v15
                v_add_f32 v16, v16, v17
                v_permlane32_swap_b32 v14, v16
                v_add_f32 v14, v14, v16
                v_mov_b32 v16, v14
                v_permlane32_swap_b32 v14, v16
                """)
                sub.ln_scalars(14, 16, 26, 28, 15, 17)
                sub.a(f"""
                v_lshrrev_b32 v15, 16, v26
                v_or_b32 v15, v15, v26
                v_cndmask_b32 v{XE}, 0, v15, s[{sLO}:{sLO+1}]
                v_and_b32 v15, 31, v0
                s_lshl_b32 s{sT0}, s{sW}, 7
                s_add_u32 s{sT0}, s{sT0}, {L_RS}
                v_lshl_add_u32 v15, v15, 2, s{sT0}
                v_lshrrev_b32 v25, 5, v0
                v_lshl_add_u32 v25, v25, 4, s{sT0}
                ds_write_b32 v15, v28
                """)
                stats = [x[1].text for x in sub.a.items]
                early = early + stats[:8]
                stats = stats[8:]
            if G < 6:
                per = -(-len(early) // 3)
                for k in range(3):
                    gaps[k] = early[k * per:(k + 1) * per]
                w = wreads(G + 1)
                rd = w[:4] + xreads(G + 2) + w[4:]
                gaps[2] += setup[:nset]
                setup = setup[nset:]
                gaps[2] += [f"s_waitcnt vmcnt({last_of(('x', G+2), ('w', G+1))})", "s_barrier"]
                per = -(-len(rd) // 5)
                for k in range(5):
                    gaps[3 + k] = rd[per * k:per * k + per]
            else:
                sub = Gen()
                for mat, we in ((0, WEK), (1, WEV)):
                    r = RS + 8 * mat
                    sub.a(f"""
                    v_add_f32 v{r}, v{r}, v{r+1}
                    v_add_f32 v{r+2}, v{r+2}, v{r+3}
                    v_add_f32 v{r+4}, v{r+4}, v{r+5}
                    v_add_f32 v{r+6}, v{r+6}, v{r+7}
                    v_add_f32 v{r}, v{r}, v{r+2}
                    v_add_f32 v{r+4}, v{r+4}, v{r+6}
                    v_add_f32 v{r}, v{r}, v{r+4}
                    """)
                    sub.neg_split2(we, r, 22)
                Bc = [x[1].text for x in sub.a.items]
                gaps[0] = stats[:4] + ["s_waitcnt lgkmcnt(0)", "s_barrier"] + \
                    [f"ds_read_b128 {vr(RS+4*i,4)}, v23 offset:{(i//2)*1024+(i%2)*16}" for i in range(4)]
                A = stats[4:]
                mix = A[:6] + ["s_waitcnt lgkmcnt(0)"]
                A = A[6:]
                while A or Bc:
                    mix += A[:1] + Bc[:2]
                    A, Bc = A[1:], Bc[2:]
                per = -(-len(mix) // 7)
                for k in range(7):
                    gaps[1 + k] = mix[k * per:(k + 1) * per]
            for p in range(4):
                m = 4 * G + p
                if p == 1 and G < 6:
                    a("s_waitcnt lgkmcnt(0)")
                a(M32(AK, WB[p], XF + 4 * m, AK if m else None))
                for x in gaps[2 * p]:
                    a(x)
                a(M32(AV, XF + 4 * m, WB[p] + 4, AV if m else None))
                for x in gaps[2 * p + 1]:
                    a(x)
        a(M32(AK, WEK, XE, AK))
        a("s_waitcnt lgkmcnt(0)")
        for g in range(4):
            a(f"ds_read_b128 {vr(RS+4*g,4)}, v25 offset:{g*32}")
        a(M32(AV, XE, WEV, AV))
        a(f"""
        v_lshlrev_b32 v1, 4, v0
        v_and_b32 v22, 31, v0
        v_cmp_gt_u32 vcc, 28, v22
        v_mov_b32 v14, s{sONE}
        v_mov_b32 v27, 0x3f80
        v_cndmask_b32 v15, 0, -1, vcc
        v_cmp_eq_u32 vcc, 28, v22
        """)
        for i in range(8):
            a(f"v_pk_mul_f32 {vr(AK+2*i,2)}, {vr(AK+2*i,2)}, {vr(28,2)} op_sel_hi:[1,0]")
        a("v_cndmask_b32 v22, 0, v14, vcc")
        for i in range(8):
            a(f"v_cvt_pk_bf16_f32 v{KO+i}, v{AK+2*i}, v{AK+2*i+1}")
            if i == 3:
                a(f"buffer_store_dwordx4 {vr(KO,4)}, v1, {srd(SWS)}, s{sKT} offen sc1")
        a(f"""
        v_cndmask_b32 v{KO+6}, v14, v{KO+6}, s[{sLO}:{sLO+1}]
        v_cndmask_b32 v{KO+7}, v27, v{KO+7}, s[{sLO}:{sLO+1}]
        buffer_store_dwordx4 {vr(KO+4,4)}, v1, {srd(SWS)}, s{sKT} offen offset:1024 sc1
        s_waitcnt lgkmcnt(0)
        """)
        for hf in range(2):
            for i in range(4 * hf, 4 * hf + 4):
                a(f"v_pk_mul_f32 {vr(AV+2*i,2)}, {vr(AV+2*i,2)}, {vr(RS+2*i,2)}")
            for i in range(4 * hf, 4 * hf + 4):
                a(f"v_cvt_pk_bf16_f32 v{VO+i}, v{AV+2*i}, v{AV+2*i+1}")
            for i in range(4 * hf, 4 * hf + 4):
                a(f"v_and_or_b32 v{VO+i}, v{VO+i}, v15, v22")
            a(f"buffer_store_dwordx4 {vr(VO+4*hf,4)}, v1, {srd(SWS)}, s{sKT} offen offset:{2048+1024*hf} sc1")
        a(f"v_lshlrev_b32 v6, 2, v0\nv_add_u32 v6, 4096, v6")
        a("\n".join(self.kv_sum(KO, 7)))
        a(f"buffer_store_dword v7, v6, {srd(SWS)}, s{sKT} offen sc1")
        queue.extend([("st", 0)] * 5)
        self.stamp("kvpub")
        QR = 32
        lq = LQ(a)
        order = list(range(20)) + [24, 20, 21, 22, 23, 25, 26, 27]
        stage_end = {0: 1, 8: 4, 20: 6}

        def qread(n):
            G, p = divmod(order[n], 4)
            if n in stage_end:
                if self.P1S and n:
                    self.stamp(f"q{n}")
                a(f"s_waitcnt vmcnt({newer(('q', stage_end[n]))})\ns_barrier")
            for hlf in range(2):
                lq.op(f"ds_read_b64_tr_b16 {vr(QR+4*(n%8)+2*hlf,2)}, v{10+p} offset:{G*3072+2048+hlf*256}", n)

        PD = 3
        a(f"s_mov_b32 s{sA0}, 0xffff0000")
        for n in range(PD):
            qread(n)
        U = 108
        sub = Gen()
        sub.a(f"""
        v_add_f32 v{RS}, v{RS}, v{RS+1}
        v_add_f32 v{RS+2}, v{RS+2}, v{RS+3}
        v_add_f32 v{RS+4}, v{RS+4}, v{RS+5}
        v_add_f32 v{RS+6}, v{RS+6}, v{RS+7}
        v_add_f32 v{RS}, v{RS}, v{RS+2}
        v_add_f32 v{RS+4}, v{RS+4}, v{RS+6}
        v_add_f32 v{RS}, v{RS}, v{RS+4}
        """)
        sub.neg_split2(WEV, RS, 22)
        fin = [x[1].text for x in sub.a.items]
        for n in range(28):
            lq.wait(n)
            a(M32(AQ, QR + 4 * (n % 8), XF + 4 * order[n], AQ if n else None))
            if n + PD < 28:
                qread(n + PD)
            unp = lambda fr, u, k: f"v_lshlrev_b32 v{u+2*k}, 16, v{fr+k}\nv_and_b32 v{u+2*k+1}, s{sA0}, v{fr+k}"
            add = lambda u, k: f"v_add_f32 v{20+k%2}, v{20+k%2}, v{u+k}"
            if n < 20:
                p = n % 4
                fr = QR + 4 * ((n - p) % 8)
                if p < 2:
                    a(unp(fr, U, 2 * p) + "\n" + unp(fr, U, 2 * p + 1))
                else:
                    for k in range(4 * (p - 2), 4 * (p - 2) + 4):
                        a(add(U, k))
            elif n in (20, 21):
                for k in range(4):
                    a(unp(QR + 4 * (n % 8), U + 8 * (n - 20), k))
            elif n == 22:
                for k in range(16):
                    a(add(U, k))
                a("v_add_f32 v20, v20, v21")
                lq.op("ds_write_b32 v24, v20 offset:2048", "cs")
            elif n == 23:
                a(f"v_mul_f32 v28, {hex(fbits(LOG2E*28**-0.5))}, v28")
                lq.wait("cs")
                a("s_barrier")
                lq.op(f"ds_read_b128 {vr(RS,4)}, v23 offset:2048", "r")
                lq.op(f"ds_read_b128 {vr(RS+4,4)}, v23 offset:2064", "r")
            if n == self.FLAGAT:
                a(f"""
                s_waitcnt vmcnt(0)
                s_mov_b64 exec, 1
                buffer_store_dword v30, v31, {srd(SWS)}, s{sKVO} offen sc1
                s_mov_b64 exec, -1
                """)
            if n == 25:
                lq.wait("r")
                a("\n".join(fin[:6]))
            if n == 26:
                a("\n".join(fin[6:]))
        if self.P1S:
            self.stamp("qmm")
        a(M32(AQ, WEV, XE, AQ))
        if self.EARLY:
            a("\n".join(self.kv_load(1, k) for k in range(5)))
        QO = 80
        for i in range(8):
            a(f"v_pk_mul_f32 {vr(AQ+2*i,2)}, {vr(AQ+2*i,2)}, {vr(28,2)} op_sel_hi:[1,0]")
        for i in range(8):
            a(f"v_cvt_pk_bf16_f32 v{QO+i}, v{AQ+2*i}, v{AQ+2*i+1}")
        a(f"""
        v_cndmask_b32 v{QO+6}, 0, v{QO+6}, s[{sLO}:{sLO+1}]
        v_cndmask_b32 v{QO+7}, 0, v{QO+7}, s[{sLO}:{sLO+1}]
        """)
        S = 32
        a(M32(S, KO, QO))
        a(M32(S, KO + 4, QO + 4, S))
        a(f"ds_write_b128 v127, {vr(QO,4)}")
        a(f"""
        v_and_b32 v2, 15, v0
        v_lshlrev_b32 v2, 2, v2
        s_mov_b32 s{sA2}, 0x00010001
        s_lshl_b32 s{sA2}, s{sA2}, s{sB}
        s_mov_b32 s{sA3}, s{sA2}
        """)
        if self.P1S:
            self.stamp("smm")
        self.rowmax16(S, 22)
        if self.force_fb:
            a("v_add_f32 v22, 0xc3480000, v22")
        self.shift_split(22, 23, 24, 25)
        a(f"""
        v_cndmask_b32 v{QO+6}, v23, v{QO+6}, s[{sLO}:{sLO+1}]
        v_cndmask_b32 v{QO+7}, v24, v{QO+7}, s[{sLO}:{sLO+1}]
        ds_write_b128 v127, {vr(QO+4,4)} offset:1024
        """)
        if self.FLAGAT == 28:
            a(f"""
            s_waitcnt vmcnt({5 if self.EARLY else 0})
            s_mov_b64 exec, 1
            buffer_store_dword v30, v31, {srd(SWS)}, s{sKVO} offen sc1
            s_mov_b64 exec, -1
            """)
        a(f"""
        s_waitcnt lgkmcnt(0)
        s_barrier
        """)
        for p in range(4):
            a(f"ds_read_b128 {vr(128+8*p,4)}, v{124+p}")
            a(f"ds_read_b128 {vr(128+8*p+4,4)}, v{124+p} offset:1024")
        self.stamp("qdone")

    def rowmax16(self, S, d):
        self.a(f"""
        v_max3_f32 v{d}, v{S}, v{S+1}, v{S+2}
        v_max3_f32 v{d+1}, v{S+3}, v{S+4}, v{S+5}
        v_max3_f32 v{d}, v{d}, v{S+6}, v{S+7}
        v_max3_f32 v{d+1}, v{d+1}, v{S+8}, v{S+9}
        v_max3_f32 v{d}, v{d}, v{S+10}, v{S+11}
        v_max3_f32 v{d+1}, v{d+1}, v{S+12}, v{S+13}
        v_max3_f32 v{d}, v{d}, v{S+14}, v{S+15}
        v_max_f32 v{d}, v{d}, v{d+1}
        v_mov_b32 v{d+1}, v{d}
        v_permlane32_swap_b32 v{d}, v{d+1}
        v_max_f32 v{d}, v{d}, v{d+1}
        """)

    def shift_split(self, m, d6, d7, t):
        self.a(f"""
        v_cvt_pk_bf16_f32 v{d6}, -v{m}, -v{m}
        v_and_b32 v{d6}, 0xffff0000, v{d6}
        v_sub_f32_e64 v{d7}, -v{m}, v{d6}
        v_cvt_pk_bf16_f32 v{t}, v{d7}, v{d7}
        v_and_b32 v{t}, 0xffff0000, v{t}
        v_sub_f32 v{d7}, v{d7}, v{t}
        v_cvt_pk_bf16_f32 v{d6}, v{d6}, v{t}
        v_cvt_pk_bf16_f32 v{d7}, v{d7}, 0
        """)

    Q, O, SA, SB, TT, P = 128, 160, 32, 48, 64, 72
    KVB = (240, 224, 80, 96)
    XR2, W2, S4 = 240, 120, 112
    VTG = 116

    def unit(self, i, qt, extra):
        a = self.a
        Q, O, TT, P, B = self.Q, self.O, self.TT, self.P, self.KVB
        n = 4 * i + qt
        buf, bufn, bufp = B[i % 4], B[(i + 1) % 4], B[(i - 1) % 4]
        Sc, Sn = (self.SA, self.SB) if n % 2 == 0 else (self.SB, self.SA)
        kn = buf if qt < 3 else bufn
        qn, qp = (qt + 1) % 4, (qt - 1) % 4
        vp = (buf if qt > 0 else bufp) + 8
        ms = [M32(Sn, kn, Q + 8 * qn), M32(O + 16 * qp, vp + 4, P + 4, O + 16 * qp),
              M32(Sn, kn + 4, Q + 8 * qn + 4, Sn),
              M32(O + 16 * qt, buf + 8, P, None if i == 0 else O + 16 * qt)]
        for g in range(4):
            for x in extra.get(("pre", g), ()):
                a(x)
            if not (n == 0 and g == 1) and not (n == 63 and g in (0, 2)):
                a(ms[g])
            for x in extra.get(g, ()):
                a(x)
            tb, tp, pp = TT + 4 * (g % 2), TT + 4 * ((g + 1) % 2), P + 2 * ((g - 1) % 4)
            a(f"v_exp_f32 v{tb}, v{Sc+4*g}")
            a(f"v_exp_f32 v{tb+1}, v{Sc+4*g+1}")
            if not (n == 0 and g == 0):
                a(f"v_cvt_pk_bf16_f32 v{pp}, v{tp}, v{tp+1}")
                a(f"v_cvt_pk_bf16_f32 v{pp+1}, v{tp+2}, v{tp+3}")
            a(f"v_exp_f32 v{tb+2}, v{Sc+4*g+2}")
            a(f"v_exp_f32 v{tb+3}, v{Sc+4*g+3}")

    def kv_sum(self, buf, d):
        return [f"v_add3_u32 v{d}, v{buf+2*k}, v{buf+2*k+1}, v{d if k else 30}" for k in range(8)]

    def kv_load(self, i, part, buf=None):
        buf = self.KVB[i % 4] if buf is None else buf
        if part == 4:
            return f"buffer_load_dword v{14+i%4}, v6, {srd(SWS)}, s{sKT+i} offen sc1"
        return f"buffer_load_dwordx4 {vr(buf+4*part,4)}, v1, {srd(SWS)}, s{sKT+i} offen offset:{1024*part} sc1"

    NV = 3
    EARLY = 1
    POLLQ = 2

    def attention(self):
        a = self.a
        Q, O, P, TT, B = self.Q, self.O, self.P, self.TT, self.KVB
        NV = self.NV
        queue = []

        def newer(tag):
            k = max(i for i, t in enumerate(queue) if t == tag)
            return len(queue) - 1 - k

        def ld(i, part):
            queue.append((i, part))
            return self.kv_load(i, part)

        def other(text):
            if text.startswith("buffer_"):
                queue.append("o")
            return text

        first = [ld(1, k) for k in range(5)]
        if self.FLAGAT == 28 and self.EARLY:
            queue.append("f")
        if not self.EARLY:
            a("L_att:")
            a("\n".join(first))
        else:
            a("L_att:")
        a("s_waitcnt lgkmcnt(4)")
        a(M32(self.SA, B[0], Q))
        a(M32(self.SA, B[0] + 4, Q + 4, self.SA))
        self.retry = []

        def check(t):
            self.retry.append(t)
            return [f"s_waitcnt vmcnt({newer((t, 4))})", f"L_kvc{t}:"] + self.kv_sum(B[t % 4], 7) + \
                [f"v_cmp_ne_u32 vcc, v7, v{14+t%4}", f"s_cbranch_vccnz L_kvr{t}", f"L_kvd{t}:"]

        late = {}
        self.first_waits = True
        late[(12, 1)] = lines(f"""
        v_and_b32 v22, 31, v0
        v_lshrrev_b32 v23, 5, v0
        v_lshlrev_b32 v23, 3, v23
        v_mul_u32_u24 v22, 896, v22""")
        late[(12, 2)] = lines(f"""
        v_add_u32 v22, v22, v23
        s_mul_i32 s{sT1}, s{sW}, 56
        s_add_u32 s{sT0}, s{sROW}, s{sT1}
        s_mul_i32 s{sT2}, s{sC}, 224
        s_add_u32 s{sT1}, s{sT1}, s{sT2}""")
        xl = [f"buffer_load_dwordx2 {vr(self.XR2+2*g,2)}, v22, {srd(SX)}, s{sT0} offen offset:{16*g}" for g in range(4)]
        wl = [f"buffer_load_dwordx2 {vr(self.W2+2*g,2)}, v23, {srd(SWR)}, s{sT1} offen offset:{16*g}" for g in range(4)]
        late[(13, 0)] = wl[:1]
        late[(13, 1)] = wl[1:2] + xl[:1]
        late[(13, 2)] = wl[2:3] + xl[1:2]
        late[(13, 3)] = wl[3:] + xl[2:3]
        late[(14, 0)] = xl[3:] + lines(f"""
        s_lshl_b32 s{sA4}, s{sW}, 8
        s_add_u32 s{sA4}, s{sA4}, {WS_CLF}
        v_lshlrev_b32 v5, 2, v0""")
        late[(14, 1)] = [f"buffer_load_dword v4, v5, {srd(SWS)}, s{sA4} offen sc1"]
        cb = []
        for p in range(3):
            cb += lines(f"""
            s_add_u32 s{sT0}, s{sW}, {p+1}
            s_and_b32 s{sT0}, s{sT0}, 3
            s_mul_i32 s{sT0}, s{sT0}, 12288
            s_add_u32 s{sT0}, s{sT0}, {L_CB+p*4096}
            v_add_u32 v{10+p}, s{sT0}, v1""")
        cb += lines(f"""
        s_mul_i32 s{sT0}, s{sW}, 12288
        s_add_u32 s{sT0}, s{sT0}, {L_CB}
        v_add_u32 v13, s{sT0}, v1
        v_mov_b32 v8, {hex(fbits(2.0**100))}""")
        late[(14, 2)], late[(14, 3)], late[(15, 0)] = cb[:7], cb[7:13], cb[13:]
        wr = lambda p, k: f"ds_write_b128 v{10+p}, {vr(O+16*p+4*k,4)} offset:{k*1024}"
        for i in range(16):
            for qt in range(4):
                ex = {}
                if i == 0 and qt == 1:
                    ex[("pre", 0)] = ["s_waitcnt lgkmcnt(0)"]
                pre0 = ex.get(("pre", 0), [])
                if qt == 3 and i < 15:
                    pre0 = pre0 + (check(i + 1) if i + 1 <= NV else [f"s_waitcnt vmcnt({newer((i + 1, 3))})"])
                if i == 0 and qt == 3 and self.FLAGAT == 29:
                    ex[1] = ["s_mov_b64 exec, 1", other(f"buffer_store_dword v30, v31, {srd(SWS)}, s{sKVO} offen sc1"),
                             "s_mov_b64 exec, -1"]
                if i == NV - 2 and qt == 0:
                    pre0 = pre0 + lines(f"""
                    s_waitcnt vmcnt({newer("p")})
                    L_kvpoll:
                    v_cmp_ne_u32 vcc, s{sNON}, v3
                    s_andn2_b64 vcc, vcc, s[{sA2}:{sA3}]
                    s_cbranch_vccnz L_kvpr
                    L_kvok:""")
                ex[("pre", 0)] = pre0
                if i == NV - 3 and qt == self.POLLQ:
                    ex[1] = [f"buffer_load_dword v3, v2, {srd(SWS)}, s{sKVF} offen sc1"]
                    queue.append("p")
                if i == 0:
                    t = 2 + qt // 2
                    lds_ = [ld(t, k) for k in ((0, 1) if qt % 2 == 0 else (2, 3, 4))]
                    ex[2], ex[3] = lds_[:-1], lds_[-1:]
                else:
                    ex[0] = [other(x) for x in late.get((i, qt), [])]
                    if i + 3 <= 15:
                        ex[2] = [ld(i + 3, qt)]
                        if qt == 3 and i + 3 <= NV:
                            ex[3] = [ld(i + 3, 4)]
                if i == 15:
                    if qt == 1:
                        ex[3] = [wr(0, 0)]
                    if qt == 2:
                        ex[0], ex[1], ex[2], ex[3] = [wr(0, 1)], [wr(0, 2)], [wr(0, 3)], [wr(1, 0)]
                    if qt == 3:
                        ex[0], ex[1], ex[2], ex[3] = [wr(1, 1)], [wr(1, 2)], [wr(1, 3)], [wr(2, 0)]
                self.unit(i, qt, ex)
                if i == 0 and qt == 3:
                    self.stamp("kvok")
                if i == 0 and qt == 3:
                    a("s_barrier")
                if self.ATS and qt == 3 and i in (0, 1, 2, 4, 6, 8, 10, 12, 14):
                    self.stamp(f"t{i}")
        a(f"""
        v_cvt_pk_bf16_f32 v{P+6}, v{TT+4}, v{TT+5}
        v_cvt_pk_bf16_f32 v{P+7}, v{TT+6}, v{TT+7}
        v_add_f32 v9, v{O+12}, v{O+16+12}
        v_add_f32 v9, v9, v{O+32+12}
        """)
        a(M32(O + 48, B[3] + 12, P + 4, O + 48))
        a(wr(2, 1))
        a(wr(2, 2))
        a(wr(2, 3))
        self.stamp("attn")

    def combine(self):
        a = self.a
        O = self.O
        a(f"""
        L_clpoll:
        s_waitcnt vmcnt(0)
        v_cmp_ne_u32 vcc, s{sNON}, v4
        s_cbranch_vccz L_clok
        """)
        self.spin_guard("L_clok")
        a(f"""
        buffer_load_dword v4, v5, {srd(SWS)}, s{sA4} offen sc1
        s_branch L_clpoll
        L_clok:
        v_add_f32 v9, v9, v{O+48+12}
        v_cmp_nlt_f32 vcc, v9, v8
        s_andn2_b64 vcc, vcc, s[{sLO}:{sLO+1}]
        s_cbranch_vccnz L_bad
        L_badok:
        """)
        a(f"""
        s_waitcnt lgkmcnt(0)
        s_barrier
        """)
        if self.LOC:
            a(f"""
            s_and_b32 s{sT0}, s2, 0xe7
            s_lshl_b32 s{sT0}, s{sT0}, 2
            s_add_u32 s{sT0}, s{sT0}, {WS_XID}
            v_and_b32 v26, 3, v0
            v_lshlrev_b32 v26, 5, v26
            buffer_load_dword v28, v26, {srd(SWS)}, s{sT0} offen sc1
            """)
        order = (3, 0, 1, 2)
        for k in order:
            for p in range(3):
                a(f"ds_read_b128 {vr(O+16*p+4*k,4)}, v13 offset:{p*4096+k*1024}")
        R = O + 48
        for c, k in enumerate(order):
            a(f"s_waitcnt lgkmcnt({9-3*c})")
            for i in range(2):
                r = 4 * k + 2 * i
                a(f"v_pk_add_f32 {vr(R+r,2)}, {vr(R+r,2)}, {vr(O+r,2)}")
                a(f"v_pk_add_f32 {vr(O+16+r,2)}, {vr(O+16+r,2)}, {vr(O+32+r,2)}")
            for i in range(2):
                r = 4 * k + 2 * i
                a(f"v_pk_add_f32 {vr(R+r,2)}, {vr(R+r,2)}, {vr(O+16+r,2)}")
            if c == 0:
                a(f"""
                v_mov_b32 v8, v{R+12}
                v_mov_b32 v9, v{R+12}
                v_readlane_b32 s{sT0}, v{R+13}, 32
                v_permlane32_swap_b32 v8, v9
                s_cmp_eq_u32 s{sT0}, 0
                s_cbranch_scc1 L_noredo
                s_cmp_eq_u32 s{sPASS}, 0
                s_cbranch_scc1 L_redo
                L_noredo:
                v_rcp_f32 v8, v9
                """)
        OP = 32
        for hf in range(2):
            for i in range(4 * hf, 4 * hf + 4):
                a(f"v_pk_mul_f32 {vr(R+2*i,2)}, {vr(R+2*i,2)}, {vr(8,2)} op_sel_hi:[1,0]")
            for i in range(4 * hf, 4 * hf + 4):
                a(f"v_cvt_pk_bf16_f32 v{OP+i}, v{R+2*i}, v{R+2*i+1}")
            if hf:
                a(f"""
                v_cndmask_b32 v{OP+6}, 0, v{OP+6}, s[{sLO}:{sLO+1}]
                v_cndmask_b32 v{OP+7}, 0, v{OP+7}, s[{sLO}:{sLO+1}]
                """)
            a(f"buffer_store_dwordx4 {vr(OP+4*hf,4)}, v1, {srd(SWS)}, s99 offen offset:{1024*hf} sc1")
        a(f"""
        s_or_b32 s{sT0}, s2, s{sW}
        s_cmp_lg_u32 s{sT0}, 0
        s_cbranch_scc1 L_noepoch
        s_mov_b64 exec, 1
        buffer_store_dword v30, v31, {srd(SWS)}, 0 offen sc1
        s_mov_b64 exec, -1
        L_noepoch:
        """)
        self.stamp("opub")

    def helper_head(self):
        a = self.a
        if self.PT:
            a(f"""
            v_and_b32 v22, 31, v0
            v_mul_u32_u24 v22, 896, v22
            v_lshrrev_b32 v23, 5, v0
            v_lshl_add_u32 v2, v23, 7, v22
            s_lshl_b32 s{sA0}, s{sA5}, 5
            s_add_u32 s{sA0}, s{sA0}, s{sI}
            s_mul_i32 s{sA0}, s{sA0}, {32*896}
            v_mul_u32_u24 v22, 10923, v0
            v_lshrrev_b32 v22, 16, v22
            v_mul_u32_u24 v23, 6, v22
            v_sub_u32 v23, v0, v23
            v_min_u32 v22, 9, v22
            v_mul_u32_u24 v22, 2688, v22
            v_lshl_add_u32 v3, v23, 7, v22
            v_cmp_lt_u32 vcc, 2, v23
            v_add_u32 v4, {896-384}, v3
            v_cndmask_b32 v3, v3, v4, vcc
            v_mul_u32_u24 v22, 21846, v0
            v_lshrrev_b32 v22, 16, v22
            v_mul_u32_u24 v23, 3, v22
            v_sub_u32 v23, v0, v23
            v_min_u32 v22, 13, v22
            v_mul_u32_u24 v22, 2688, v22
            v_lshl_add_u32 v4, v23, 7, v22
            s_mul_i32 s{sT0}, s{sA4}, 224
            s_and_b32 s{sT0}, s{sT0}, -128
            s_mul_i32 s{sA1}, s{sI}, {10*2688}
            s_add_u32 s{sA1}, s{sA1}, s{sT0}
            s_add_u32 s{sA1}, s{sA1}, {128*2688+896}
            s_mul_i32 s{sA2}, s{sI}, {14*2688}
            s_add_u32 s{sA2}, s{sA2}, s{sT0}
            s_mov_b32 s{SX+2}, {2048*896}
            s_mov_b32 s{SX+3}, 0x20000
            s_mov_b32 s{SWQ+2}, {448*2688}
            s_mov_b32 s{SWQ+3}, 0x20000
            s_waitcnt lgkmcnt(0)
            s_mov_b32 s{SX}, s64
            s_mov_b32 s{SX+1}, s65
            s_mov_b32 s{SWQ}, s66
            s_mov_b32 s{SWQ+1}, s67
            {f"s_sleep {self.PT-1}" if self.PT > 1 else ""}
            buffer_load_dword v10, v2, {srd(SX)}, s{sA0} offen offset:256
            buffer_load_dword v11, v3, {srd(SWQ)}, s{sA1} offen
            buffer_load_dword v12, v2, {srd(SX)}, s{sA0} offen offset:512
            s_mov_b32 exec_hi, 0
            buffer_load_dword v13, v2, {srd(SX)}, s{sA0} offen offset:768
            s_mov_b32 exec_hi, -1
            buffer_load_dword v14, v4, {srd(SWQ)}, s{sA2} offen
            """)
        a("s_waitcnt lgkmcnt(0)")
        self.common_setup()
        self.a(f"""
        s_waitcnt lgkmcnt(0)
        s_mul_i32 s{sNON}, s{sNON}, 0x19660d
        s_add_u32 s{sNON}, s{sNON}, 0x3c6ef35f
        v_mov_b32 v30, s{sNON}
        """)
        return 0

    def helper(self, nbar):
        a = self.a
        a("L_helper:")
        done = self.helper_head()
        nbar -= done
        if self.CPF:
            a(f"""
            s_getpc_b64 s[52:53]
            L_pc:
            s_sub_u32 s52, s52, L_pc-{NAME}
            s_subb_u32 s53, s53, 0
            s_mul_i32 s{sT0}, s{sI}, {self.CPF*128}
            v_min_u32 v25, {self.CPF-1}, v0
            v_lshl_add_u32 v25, v25, 7, s{sT0}
            v_min_u32 v25, L_last-{NAME}, v25
            """)
        a(f"""
        v_lshlrev_b32 v1, 4, v0
        v_mov_b32 v4, -1
        v_mov_b32 v5, -1
        v_mov_b32 v6, -1
        v_mov_b32 v7, -1
        v_mov_b32 v31, 0
        v_lshrrev_b32 v22, 4, v0
        v_lshrrev_b32 v23, 2, v0
        v_sub_u32 v23, v23, v22
        v_and_b32 v23, 3, v23
        v_mul_u32_u24 v23, 56, v23
        v_mul_u32_u24 v22, 896, v22
        v_add_u32 v22, v22, v23
        v_and_b32 v23, 3, v0
        v_lshlrev_b32 v23, 4, v23
        v_min_u32 v23, 40, v23
        v_add_u32 v2, v22, v23
        v_lshlrev_b32 v3, 7, v0
        """)
        a(f"""
        v_mul_u32_u24 v22, 4682, v0
        v_lshrrev_b32 v22, 16, v22
        v_mul_u32_u24 v27, 14, v22
        v_sub_u32 v23, v0, v27
        v_mul_u32_u24 v27, 896, v22
        v_lshl_add_u32 v8, v23, 4, v27
        v_lshrrev_b32 v22, 2, v0
        v_min_u32 v22, 13, v22
        v_mul_u32_u24 v22, 3584, v22
        v_and_b32 v23, 3, v0
        v_lshl_add_u32 v22, v23, 7, v22
        s_mul_i32 s{sA0}, s{sXCD}, {7*32*896}
        s_mul_i32 s{sT1}, s{sI}, {49*128}
        s_add_u32 s{sA0}, s{sA0}, s{sT1}
        s_mul_i32 s{sA1}, s{sI}, {14*3584}
        s_mul_i32 s{sT1}, s{sXCD}, 448
        s_and_b32 s{sT1}, s{sT1}, -128
        s_add_u32 s{sA1}, s{sA1}, s{sT1}
        s_lshr_b32 s{sA2}, s{sI}, 2
        s_mul_i32 s{sA2}, s{sA2}, {self.WOROT}
        s_lshr_b32 s{sA2}, s{sA2}, 1
        s_mul_i32 s{sA4}, s{sC}, 224
        s_mul_i32 s{sA5}, s{sI}, {self.TSTAG}
        s_lshr_b32 s{sA5}, s{sA5}, 3
        s_add_u32 s{sA5}, s{sA5}, {self.TOFF}
        s_lshl_b32 s{sT0}, s{sB}, 6
        s_add_u32 s{sT0}, s{sT0}, s{sH}
        s_lshl_b32 s{sT0}, s{sT0}, 11
        s_add_u32 s64, s{sT0}, {WS_OF}
        s_add_u32 s65, s64, 32768
        s_add_u32 s66, s65, 32768
        s_add_u32 s67, s66, 32768
        s_lshl_b32 s{sT0}, s{sT}, 2
        s_add_u32 s{sT0}, s{sT0}, s{sC}
        s_lshl_b32 s{sT0}, s{sT0}, 9
        s_add_u32 s72, s{sT0}, {WS_STATS}
        s_lshl_b32 s{sT1}, s{sT}, 7
        s_add_u32 s73, s{sT1}, {WS_KEYS}
        s_cmp_eq_u32 s{sC}, 0
        s_cselect_b32 s73, s73, {OOB}
        s_mul_i32 s{sT0}, s{sF}, 14336
        s_add_u32 s74, s{sT0}, {WS_Y}
        s_add_u32 s75, s74, 4096
        s_add_u32 s76, s75, 4096
        s_add_u32 s77, s76, 4096
        s_lshl_b32 s{sT0}, s2, 2
        s_add_u32 s78, s{sT0}, {WS_CLF}
        """)
        for w in range(4):
            self.cand_base(68 + w, w)
        for nb in range(nbar):
            if self.KVT and nb == self.KVT - 1:
                a(f"""
                s_lshl_b32 s{sT0}, s{sH}, 4
                s_add_u32 s{sT0}, s{sT0}, s{sB}
                s_mul_i32 s{sT0}, s{sT0}, {4*KVS}
                s_add_u32 s{sT0}, s{sT0}, {WS_KV}
                buffer_load_dword v27, v3, {srd(SWS)}, s{sT0} offen sc1
                s_add_u32 s{sT0}, s{sT0}, 8192
                buffer_load_dword v27, v3, {srd(SWS)}, s{sT0} offen sc1
                s_add_u32 s{sT0}, s{sT0}, 8192
                s_mov_b64 exec, 0xff
                buffer_load_dword v27, v3, {srd(SWS)}, s{sT0} offen sc1
                s_mov_b64 exec, -1
                """.replace("buffer_load_dword v27", "buffer_atomic_add v31" if self.KVA else "buffer_load_dword v27"))
            if self.CPF and nb == self.CPB:
                a("global_load_dword v26, v25, s[52:53]")
            a("s_barrier")
        st = lambda v, so, off=0: f"buffer_store_dwordx4 v[4:7], v{v}, {srd(SWS)}, s{so} offen offset:{off} sc1"
        cl = [[st(1, 64 + w, 1024 * k)] for w in range(4) for k in range(2)]
        cl += [["s_mov_b32 exec_hi, 0xffffff", st(8, 68 + w), "s_mov_b32 exec_hi, -1"] for w in range(4)]
        cl += [["s_mov_b32 exec_hi, 0", st(1, 72), "s_mov_b64 exec, 3", st(1, 73), "s_mov_b64 exec, -1"]]
        if self.LOC:
            cl += [[f"s_getreg_b32 s{sT0}, hwreg(HW_REG_XCC_ID)", f"v_mov_b32 v21, s{sT0}", "s_mov_b64 exec, 1",
                    f"buffer_store_dword v21, v31, {srd(SWS)}, s78 offen offset:{WS_XID-WS_CLF} sc1", "s_mov_b64 exec, -1"]]
        ycl = [st(1, 74 + k // 4, 1024 * (k % 4)) for k in range(14)]
        ycl[13] += f"\ns_lshl_b32 s{sT0}, s{sF}, 7\ns_add_u32 s{sT0}, s{sT0}, {WS_RES}\ns_mov_b64 exec, 0xff\n" + \
            st(1, sT0) + "\ns_mov_b64 exec, -1"
        if self.NOCL:
            cl, ycl = [], []
        for n in range(28):
            a(f"""
            s_mul_i32 s{sWOS}, s{sA2}, {16*896}
            s_add_u32 s{sWOS}, s{sWOS}, s{sA4}
            s_lshl_b32 s{sWOM}, s{sA2}, 12
            """)
            for k in range(4):
                a(f"""
                s_add_u32 m0, s{sWOM}, {1024*k}
                s_add_u32 s{sT0}, s{sWOS}, {4*896*k}
                buffer_load_dwordx4 v2, {srd(SWO)}, s{sT0} offen lds
                """)
            if cl:
                a("\n".join(cl.pop(0)))
            if ycl:
                a(f"s_cmp_lt_i32 s{sF}, 0\ns_cbranch_scc1 L_h_y{n}\n{ycl.pop(0)}\nL_h_y{n}:")
            if self.TOUCH:
                a(f"""
                s_cmp_lg_u32 s{sA5}, {n}
                s_cbranch_scc1 L_h_t{n}
                buffer_load_dword v20, v3, {srd(SWD)}, s{sA0} offen
                buffer_load_dword v20, v22, {srd(SWG)}, s{sA1} offen
                buffer_load_dword v20, v22, {srd(SWU)}, s{sA1} offen
                L_h_t{n}:
                """)
            a(f"""
            s_waitcnt vmcnt({self.WOQ})
            s_add_u32 s{sA2}, s{sA2}, 1
            s_cmp_eq_u32 s{sA2}, 28
            s_cselect_b32 s{sA2}, 0, s{sA2}
            """)
            if n == 13 + -(-self.WOQ // 4):
                a(f"""
                s_mov_b64 exec, 1
                buffer_store_dword v30, v31, {srd(SWS)}, s78 offen sc1
                s_mov_b64 exec, -1
                """)
        a(f"""
        s_waitcnt vmcnt(0)
        s_cmp_lt_i32 s{sF}, 0
        s_cbranch_scc1 L_h_end
        v_lshrrev_b32 v22, 2, v0
        v_mul_u32_u24 v22, 3584, v22
        v_and_b32 v23, 3, v0
        v_lshl_add_u32 v22, v23, 4, v22
        v_lshlrev_b32 v23, 12, v23
        v_add_u32 v23, {L_CB+3072+32*16+4}, v23
        s_lshl_b32 s{sA0}, s{sF}, 6
        s_mul_i32 s{sA1}, s{sF}, {32*896}
        """)
        if True:
            for j in range(28):
                a(f"""
                s_add_u32 s{sT2}, s{sA0}, {j*16*3584}
                buffer_load_dwordx4 {vr(32+8*j,4)}, v22, {srd(SWG)}, s{sT2} offen
                buffer_load_dwordx4 {vr(36+8*j,4)}, v22, {srd(SWU)}, s{sT2} offen
                """)
        a(f"""
        L_h_comb:
        s_barrier
        ds_read_b32 v24, v23
        s_waitcnt lgkmcnt(0)
        v_cmp_ne_u32 vcc, 0, v24
        s_cbranch_vccz L_h_go
        s_cmp_lg_u32 s{sPASS}, 0
        s_cbranch_scc1 L_h_go
        s_mov_b32 s{sPASS}, 1
        s_barrier
        s_barrier
        s_barrier
        s_barrier
        s_branch L_h_comb
        L_h_go:
        s_barrier
        s_barrier
        """)

        def wdma(lds, off):
            for k in range(14):
                if k % 4 == 0:
                    a(f"s_mov_b32 m0, {lds+k*1024}\ns_add_u32 s{sT2}, s{sA1}, {off+k*1024}")
                a(f"buffer_load_dwordx4 v1, {srd(SWD)}, s{sT2} offen offset:{(k%4)*1024} lds")

        wdma(L_WD, 0)
        a("s_waitcnt vmcnt(14)\ns_barrier")
        wdma(L_WD2, 14336)
        for j in range(28):
            a(f"ds_write_b128 v1, {vr(32+8*j,4)} offset:{L_WG+j*1024}")
            a(f"ds_write_b128 v1, {vr(36+8*j,4)} offset:{L_WU+j*1024}")
        a("s_waitcnt lgkmcnt(0)")
        a("s_waitcnt vmcnt(0)\nL_h_end:\nL_last:\ns_endpgm")

    WOROT = 7
    TSTAG = 7
    TOFF = 0
    PRIO = 0
    FREG = 1
    KVT = 0
    KVA = 0
    LIN = 0
    LINP = 0
    PT = 0
    CPS = 1
    CPF = 11
    CPB = 1
    KVC = -1
    KVCN = 16
    WSB = 0
    NOCL = 0
    NOWO = 0
    TOUCH = 1
    HD1 = 0
    HD2 = 0
    HD3 = 0
    WOQ = 8

    def redo(self):
        a = self.a
        Q, B, S = self.Q, self.KVB, self.SA
        a(f"""
        L_bad:
        v_mov_b32 v8, 1.0
        v_cndmask_b32 v{self.O+48+13}, v8, v{self.O+48+13}, s[{sLO}:{sLO+1}]
        s_mov_b32 exec_lo, 0
        ds_write_b32 v10, v8 offset:3076
        ds_write_b32 v11, v8 offset:3076
        ds_write_b32 v12, v8 offset:3076
        s_mov_b32 exec_lo, -1
        s_branch L_badok
        """)
        for t in self.retry:
            a(f"L_kvr{t}:")
            self.spin_guard(f"L_kvd{t}")
            a("\n".join(self.kv_load(t, k) for k in range(5)))
            a(f"s_waitcnt vmcnt(0)\ns_branch L_kvc{t}")
        a("L_kvpr:")
        self.spin_guard("L_kvok")
        a(f"""
        buffer_load_dword v3, v2, {srd(SWS)}, s{sKVF} offen sc1
        s_waitcnt vmcnt(0)
        s_branch L_kvpoll
        """)
        MX = 8
        a(f"""
        L_redo:
        s_mov_b32 s{sPASS}, 1
        s_waitcnt vmcnt(0) lgkmcnt(0)
        s_barrier
        s_mov_b32 s{sA5}, 16
        s_lshl_b32 s{sT2}, s{sH}, 6
        s_add_u32 s{sT2}, s{sT2}, s{sW}
        s_mul_i32 s{sT2}, s{sT2}, {KVS}
        s_add_u32 s{sT2}, s{sT2}, {WS_KV}
        """)
        for p in range(4):
            a(f"v_mov_b32 v{MX+p}, 0xff800000")
        a(f"""
        L_redo_loop:
        buffer_load_dwordx4 {vr(B[1],4)}, v1, {srd(SWS)}, s{sT2} offen sc1
        buffer_load_dwordx4 {vr(B[1]+4,4)}, v1, {srd(SWS)}, s{sT2} offen offset:1024 sc1
        s_add_u32 s{sT2}, s{sT2}, {4*KVS}
        s_waitcnt vmcnt(0)
        """)
        for p in range(4):
            a(M32(S, B[1], Q + 8 * p))
            a(M32(S, B[1] + 4, Q + 8 * p + 4, S))
            self.rowmax16(S, 22)
            a(f"v_max_f32 v{MX+p}, v{MX+p}, v22")
        a(f"""
        s_sub_u32 s{sA5}, s{sA5}, 1
        s_cmp_lg_u32 s{sA5}, 0
        s_cbranch_scc1 L_redo_loop
        """)
        for p in range(4):
            a(f"""
            s_add_u32 s{sT0}, s{sW}, {p+1}
            s_and_b32 s{sT0}, s{sT0}, 3
            s_lshl_b32 s{sT0}, s{sT0}, 10
            s_add_u32 s{sT0}, s{sT0}, {L_CB}
            v_lshl_add_u32 v{12+p}, v0, 2, s{sT0}
            s_lshl_b32 s{sT1}, s{sW}, 8
            v_add_u32 v16, s{sT1}, v{12+p}
            ds_write_b32 v16, v{MX+p}
            """)
        a("s_waitcnt lgkmcnt(0)\ns_barrier")
        for p in range(4):
            for k in range(4):
                a(f"ds_read_b32 v{16+k}, v{12+p} offset:{k*256}")
            q6, q7 = Q + 8 * p + 6, Q + 8 * p + 7
            a(f"""
            s_waitcnt lgkmcnt(0)
            v_max3_f32 v16, v16, v17, v18
            v_max_f32 v16, v16, v19
            v_lshlrev_b32 v17, 16, v{q6}
            v_and_b32 v18, 0xffff0000, v{q6}
            v_lshlrev_b32 v19, 16, v{q7}
            v_add_f32 v18, v18, v19
            v_add_f32 v17, v17, v18
            v_sub_f32 v22, v16, v17
            """)
            self.shift_split(22, 23, 24, 25)
            a(f"""
            v_cndmask_b32 v{q6}, v23, v{q6}, s[{sLO}:{sLO+1}]
            v_cndmask_b32 v{q7}, v24, v{q7}, s[{sLO}:{sLO+1}]
            """)
        for part in range(4):
            a(self.kv_load(0, part))
        if self.EARLY:
            a("\n".join(self.kv_load(1, k) for k in range(5)))
        a(f"""
        s_waitcnt vmcnt(0)
        s_barrier
        s_branch L_att
        """)

    def finish(self):
        a = self.a
        a("L_fin:")
        if self.amp:
            a(f"""
            s_cmp_lg_u32 s2, {self.ampg}
            s_cbranch_scc1 L_end
            s_cmp_lg_u32 s{sW}, 0
            s_cbranch_scc1 L_end
            s_sub_u32 s84, s84, s100
            s_min_u32 s84, s84, 20000
            s_lshl_b32 s84, s84, 3
            s_memrealtime s[100:101]
            s_waitcnt lgkmcnt(0)
            L_amp:
            s_memrealtime s[82:83]
            s_waitcnt lgkmcnt(0)
            s_sub_u32 s82, s82, s100
            s_cmp_lt_u32 s82, s84
            s_cbranch_scc1 L_amp
            """)
        if self.ts:
            a(f"""
            s_lshl_b32 s{sT0}, s2, 2
            s_add_u32 s{sT0}, s{sT0}, s{sW}
            s_lshl_b32 s{sT0}, s{sT0}, 8
            s_add_u32 s{sT0}, s{sT0}, {WS_TS}
            s_mov_b64 exec, -1
            v_lshlrev_b32 v2, 2, v0
            buffer_store_dword {self.TSV}, v2, {srd(SWS)}, s{sT0} offen
            """)
        a("L_end:\ns_endpgm")

    def tail(self):
        pass

    def build(self):
        self.prologue()
        self.p1()
        nbar = sum(1 for k, x in self.a.items if k == "i" and x.op == "s_barrier")
        self.attention()
        self.combine()
        self.tail()
        self.finish()
        self.redo()
        self.helper(nbar + 1)
        npad = self.a.pad()
        body = self.a.text()
        hdr = open(os.path.join(os.path.dirname(os.path.abspath(__file__)), "header.txt")).read()
        out = hdr + f"""; @launch grid=(256,1,1) block=(320,1,1) lds={LDS_BYTES}
.amdgcn_target "amdgcn-amd-amdhsa--gfx950"
.text
.globl {NAME}
.p2align 8
.type {NAME},@function
{NAME}:
{body}
.section .rodata,"a"
.p2align 6
.amdhsa_kernel {NAME}
  .amdhsa_next_free_vgpr 256
  .amdhsa_next_free_sgpr 102
  .amdhsa_accum_offset 256
  .amdhsa_group_segment_fixed_size 0
  .amdhsa_kernarg_size 88
  .amdhsa_user_sgpr_count 2
  .amdhsa_user_sgpr_kernarg_segment_ptr 1
  .amdhsa_system_sgpr_workgroup_id_x 1
  .amdhsa_float_denorm_mode_32 3
.end_amdhsa_kernel
"""
        return out, npad


class Full(Gen):

    def piece_idx(self, i, tok, ch):
        self.a(f"""
        v_add_u32 v{ch}, {64*i}, v0
        v_mul_u32_u24 v{tok}, 4682, v{ch}
        v_lshrrev_b32 v{tok}, 16, v{tok}
        v_mul_u32_u24 v27, 14, v{tok}
        v_sub_u32 v{ch}, v{ch}, v27
        s_lshl_b32 s{sT0}, s{sW}, 3
        v_add_u32 v{tok}, s{sT0}, v{tok}
        """)

    def sentinel_any(self, regs, t):
        a = self.a
        regs = list(regs)
        a(f"v_max3_u32 v{t}, v{regs[0]}, v{regs[1]}, v{regs[2] if len(regs) > 2 else regs[1]}")
        for k in range(3, len(regs), 2):
            a(f"v_max3_u32 v{t}, v{t}, v{regs[k]}, v{regs[min(k+1, len(regs)-1)]}")
        a(f"v_cmp_eq_u32 vcc, -1, v{t}")

    def unpack(self, d, s):
        self.a(f"v_lshlrev_b32 v{d}, 16, v{s}\nv_and_b32 v{d+1}, 0xffff0000, v{s}")

    def tr_write(self, src, arr):
        a = self.a
        for g in range(3):
            a(f"ds_write_b64 v14, {vr(src+2*g,2)} offset:{arr*7680+16*g}")
        a(f"""
        s_mov_b32 exec_hi, 0
        ds_write_b64 v14, {vr(src+6,2)} offset:{arr*7680+48}
        s_mov_b32 exec_hi, -1
        """)

    def cand_write(self, src, off):
        a = self.a
        a(f"s_mov_b64 exec, s[{sM}:{sM+1}]")
        for g in range(3):
            a(f"ds_write_b64 v13, {vr(src+2*g,2)} offset:{off+16*g}")
        a(f"""
        s_mov_b32 exec_hi, 0
        ds_write_b64 v13, {vr(src+6,2)} offset:{off+48}
        s_mov_b64 exec, -1
        """)

    def p3(self):
        a = self.a
        XR2, W2, S4 = self.XR2, self.W2, self.S4
        XC, ACC, OFR, WR = 64, 48, 128, 80
        a(f"""
        v_lshrrev_b32 v23, 5, v0
        v_lshrrev_b32 v25, 2, v0
        v_and_b32 v25, 3, v25
        v_add_u32 v24, s{sW}, v25
        v_and_b32 v24, 3, v24
        v_lshl_add_u32 v25, v23, 2, v25
        v_lshlrev_b32 v25, 8, v25
        v_lshl_add_u32 v25, v24, 6, v25
        v_lshrrev_b32 v26, 4, v0
        v_and_b32 v26, 1, v26
        v_lshl_add_u32 v25, v26, 5, v25
        v_lshrrev_b32 v27, 1, v0
        v_and_b32 v27, v27, v26
        v_and_b32 v26, 3, v0
        v_xor_b32 v26, v26, v27
        v_lshl_add_u32 v25, v26, 3, v25
        v_lshlrev_b32 v23, 11, v23
        """)
        for qr in range(4):
            a(f"""
            s_add_u32 s{sT0}, s{sW}, {qr}
            s_and_b32 s{sT0}, s{sT0}, 3
            s_lshl_b32 s{sT1}, s{sT0}, 13
            s_add_u32 s{sT1}, s{sT1}, {L_CB}
            s_mul_i32 s{sT0}, s{sT0}, 28672
            v_add_u32 v{2+qr}, s{sT1}, v1
            v_add_u32 v{6+qr}, s{sT0}, v25
            v_sub_u32 v{10+qr}, v{6+qr}, v23
            """)
        for k in range(8):
            self.unpack(XC + 2 * k, XR2 + k)
        a(f"""
        v_cndmask_b32 v{W2+6}, 0, v{W2+6}, s[{sLO}:{sLO+1}]
        v_cndmask_b32 v{W2+7}, 0, v{W2+7}, s[{sLO}:{sLO+1}]
        v_mov_b32 v{S4}, 0
        """)
        for k in range(8):
            a(f"v_dot2c_f32_bf16 v{S4}, s{sONE}, v{W2+k}")
        a(f"""
        s_lshl_b32 s{sA0}, s{sT}, 2
        s_add_u32 s{sA0}, s{sA0}, s{sW}
        s_lshl_b32 s{sA0}, s{sA0}, 13
        s_add_u32 s{sA0}, s{sA0}, {WS_OF}
        s_add_u32 s{sA1}, s{sA0}, 4096
        s_lshl_b32 s{sA2}, s{sW}, 13
        s_add_u32 s{sA2}, s{sA2}, {L_CB}
        s_add_u32 s{sA3}, s{sA2}, 4096
        s_waitcnt vmcnt(0)
        """)
        if self.LOC:
            a(f"""
            s_getreg_b32 s{sT0}, hwreg(HW_REG_XCC_ID)
            v_cmp_ne_u32 s[{sLOC}:{sLOC+1}], s{sT0}, v28
            """)
        a("s_barrier")
        self.stamp("oack")
        a("L_odma:")
        for hf in range(2):
            a(f"s_mov_b32 m0, s{sA2+hf}")
            for k in range(4):
                a(f"buffer_load_dwordx4 v1, {srd(SWS)}, s{sA0+hf} offen offset:{1024*k} sc1 lds")
        lq = LQ(a)

        def oread(n):
            lq.op(f"ds_read_b128 {vr(OFR+4*n,4)}, v{2+n//8} offset:{(n%8)*1024}", ("o", n))

        def wread(n):
            qr, hl, j = n // 8, (n % 8) // 2, n % 2
            lq.op(f"ds_read_b64_tr_b16 {vr(WR+4*(n%4),2)}, v{6+qr} offset:{hl*7168+j*4096}", ("w", n))
            lq.op(f"ds_read_b64_tr_b16 {vr(WR+4*(n%4)+2,2)}, v{(10 if j else 6)+qr} offset:{hl*7168+j*4096+2048}", ("w", n))

        for n in range(3):
            wread(n)
        a("s_waitcnt vmcnt(0)")
        self.stamp("odma")
        for n in range(8):
            oread(n)
        onext = 8
        for n in range(32):
            lq.wait(("o", n) if lq.q.index(("o", n)) > max(i for i, t in enumerate(lq.q) if t == ("w", n)) else ("w", n))
            a(M32(ACC, WR + 4 * (n % 4), OFR + 4 * n, ACC if n else XC))
            if n + 3 < 32:
                wread(n + 3)
            if n < 4:
                if n == 0:
                    lq.wait(("o", 1))
                    a(f"v_max3_u32 v22, v{OFR}, v{OFR+1}, v{OFR+2}")
                    a(f"v_max3_u32 v23, v{OFR+3}, v{OFR+4}, v{OFR+5}")
                    a(f"v_max3_u32 v22, v22, v{OFR+6}, v{OFR+7}")
                else:
                    lq.wait(("o", 2 * n + 1))
                    for k in range(4):
                        r = OFR + 8 * n + 2 * k
                        a(f"v_max3_u32 v{22+k%2}, v{22+k%2}, v{r}, v{r+1}")
            if n == 3:
                a(f"""
                v_max_u32 v22, v22, v23
                v_cmp_eq_u32 vcc, -1, v22
                s_cbranch_vccz L_ook
                """)
                self.spin_guard("L_ook")
                a(f"""
                s_waitcnt lgkmcnt(0)
                s_branch {"L_ohint" if self.OL else "L_odma"}
                L_ook:
                s_barrier
                """)
            if n >= 4:
                for _ in range(2):
                    if onext < 32 and onext <= n + 8:
                        oread(onext)
                        onext += 1
        self.stamp("gemm")
        H2 = 32
        a(f"""
        v_and_b32 v22, 31, v0
        v_lshrrev_b32 v23, 5, v0
        v_lshlrev_b32 v23, 3, v23
        v_lshl_add_u32 v17, v22, 4, v23
        s_lshl_b32 s{sT0}, s{sW}, 9
        s_add_u32 s{sT0}, s{sT0}, {L_ST}
        v_add_u32 v18, s{sT0}, v17
        v_add_u32 v19, {L_ST}, v17
        v_mul_u32_u24 v22, 240, v22
        s_mul_i32 s{sT0}, s{sW}, 56
        s_add_u32 s{sT0}, s{sT0}, {L_TR}
        v_add3_u32 v14, v22, v23, s{sT0}
        v_mov_b32 v40, 0
        v_mov_b32 v41, 0
        v_mov_b32 v42, 0
        """)
        for k in range(8):
            a(f"v_cvt_pk_bf16_f32 v{H2+k}, v{ACC+2*k}, v{ACC+2*k+1}")
        a(f"""
        v_cndmask_b32 v{H2+6}, 0, v{H2+6}, s[{sLO}:{sLO+1}]
        v_cndmask_b32 v{H2+7}, 0, v{H2+7}, s[{sLO}:{sLO+1}]
        """)
        for k in range(8):
            a(f"v_dot2c_f32_bf16 v40, s{sONE}, v{H2+k}")
            a(f"v_dot2c_f32_bf16 v42, v{H2+k}, v{H2+k}")
            a(f"v_dot2c_f32_bf16 v41, v{W2+k}, v{H2+k}")
        a(f"""
        v_permlane32_swap_b32 v40, v42
        v_permlane32_swap_b32 v41, v{S4}
        v_add_f32 v40, v40, v42
        v_add_f32 v41, v41, v{S4}
        ds_write_b64 v18, v[40:41]
        s_lshl_b32 s{sA0}, s{sT}, 11
        s_add_u32 s{sA0}, s{sA0}, {WS_STATS}
        s_lshl_b32 s{sT0}, s{sC}, 9
        s_add_u32 s{sA1}, s{sA0}, s{sT0}
        s_lshl_b32 s{sT0}, s{sW}, 3
        s_lshl_b32 s{sT0}, 0xff, s{sT0}
        s_waitcnt lgkmcnt(0)
        s_barrier
        ds_read_b64 v[40:41], v19
        ds_read_b64 v[42:43], v19 offset:512
        ds_read_b64 v[44:45], v19 offset:1024
        ds_read_b64 v[46:47], v19 offset:1536
        s_waitcnt lgkmcnt(2)
        v_pk_add_f32 v[40:41], v[40:41], v[42:43]
        s_waitcnt lgkmcnt(0)
        v_pk_add_f32 v[44:45], v[44:45], v[46:47]
        v_pk_add_f32 v[40:41], v[40:41], v[44:45]
        v_mov_b32 v42, v40
        v_mov_b32 v43, v41
        v_permlane32_swap_b32 v40, v42
        v_permlane32_swap_b32 v41, v43
        s_mov_b32 exec_lo, s{sT0}
        s_mov_b32 exec_hi, 0
        """)
        if self.LOC:
            a(f"""
            s_cmp_eq_u64 s[{sLOC}:{sLOC+1}], 0
            s_cbranch_scc0 L_stfar
            buffer_store_dwordx4 v[40:43], v17, {srd(SWS)}, s{sA1} offen
            s_branch L_stdone
            L_stfar:
            """)
        a(f"""
        buffer_store_dwordx4 v[40:43], v17, {srd(SWS)}, s{sA1} offen sc1
        L_stdone:
        s_mov_b64 exec, -1
        v_and_b32 v22, 31, v0
        v_lshrrev_b32 v23, 5, v0
        v_lshlrev_b32 v23, 10, v23
        v_lshl_add_u32 v17, v22, 4, v23
        """)
        for i in range(2):
            self.piece_idx(i, 22, 23)
            a(f"""
            v_mov_b32 v{20+i}, v22
            v_mul_u32_u24 v27, 896, v22
            v_lshl_add_u32 v{self.VTG+i}, v23, 4, v27
            v_mul_u32_u24 v22, 240, v22
            v_lshl_add_u32 v22, v23, 4, v22
            v_add_u32 v{15+i}, {L_TR}, v22
            """)
        a(f"""
        v_mul_u32_u24 v22, 4682, v0
        v_lshrrev_b32 v22, 16, v22
        v_mul_u32_u24 v27, 14, v22
        v_sub_u32 v23, v0, v27
        v_mul_u32_u24 v27, 896, v22
        v_lshl_add_u32 v19, v23, 4, v27
        v_mul_u32_u24 v22, 240, v22
        v_lshl_add_u32 v22, v23, 4, v22
        s_mul_i32 s{sT0}, s{sW}, 960
        s_add_u32 s{sT0}, s{sT0}, {L_TR+7680}
        v_add_u32 v18, s{sT0}, v22
        """)
        self.cand_base(sA5, sW)
        HF = 64
        for k in range(8):
            self.unpack(HF + 2 * k, H2 + k)
        a("s_waitcnt vmcnt(0)")
        self.stamp("hack")
        a("L_stpoll:")
        for c in range(2):
            a(f"buffer_load_dwordx4 {vr(40+4*c,4)}, v17, {srd(SWS)}, s{sA0} offen offset:{512*c} sc1")
        a("s_waitcnt vmcnt(0)")
        self.sentinel_any(range(40, 48), 22)
        a("s_cbranch_vccz L_stok")
        self.spin_guard("L_stok")
        a("s_branch L_stpoll\nL_stok:")
        self.stamp("stok")
        a(f"""
        v_pk_add_f32 v[40:41], v[40:41], v[44:45]
        v_pk_add_f32 v[42:43], v[42:43], v[46:47]
        v_permlane32_swap_b32 v40, v42
        v_permlane32_swap_b32 v41, v43
        v_pk_add_f32 v[40:41], v[40:41], v[42:43]
        v_mov_b32 v42, v40
        v_mov_b32 v43, v41
        v_permlane32_swap_b32 v40, v42
        v_permlane32_swap_b32 v41, v43
        """)
        self.ln_scalars(40, 42, 44, 46, 22, 23)
        KEY = 47
        a(f"""
        v_fma_f32 v41, -v44, v43, v41
        v_mul_f32 v41, v41, v46
        v_cvt_pk_bf16_f32 v41, v41, v41
        v_ashrrev_i32 v22, 31, v41
        v_or_b32 v22, 0x80000000, v22
        v_xor_b32 v41, v41, v22
        v_and_b32 v41, 0xffff0000, v41
        v_lshrrev_b32 v41, 1, v41
        v_and_b32 v22, 31, v0
        s_lshl_b32 s{sT0}, s{sT}, 5
        s_sub_u32 s{sT0}, 2047, s{sT0}
        v_sub_u32 v22, s{sT0}, v22
        v_or_b32 v{KEY}, v41, v22
        v_mov_b32 v48, v{KEY}
        v_mov_b32 v49, v{KEY}
        v_permlane16_swap_b32 v48, v49
        v_cndmask_b32 v48, v49, v48, s[{sLO}:{sLO+1}]
        v_sub_u32 v80, v48, v{KEY}
        """)
        for n in range(1, 16):
            a(f"v_sub_u32_dpp v{80+n}, v48, v{KEY} row_ror:{n} row_mask:0xf bank_mask:0xf bound_ctrl:0".replace(" bound_ctrl:0", " bound_ctrl:1"))
        a("v_lshrrev_b32 v48, 31, v80\nv_lshrrev_b32 v49, 31, v81")
        for n in range(2, 16):
            a(f"v_alignbit_b32 v{48+n%2}, v{48+n%2}, v{80+n}, 31")
        a(f"""
        v_bcnt_u32_b32 v48, v48, 0
        v_bcnt_u32_b32 v48, v49, v48
        v_mov_b32 v49, v48
        v_permlane32_swap_b32 v48, v49
        v_add_u32 v48, v48, v49
        v_sub_u32 v48, 31, v48
        v_cmp_gt_u32 s[{sM}:{sM+1}], 8, v48
        v_lshlrev_b32 v49, 2, v48
        s_or_b32 s{sT0}, s{sW}, s{sC}
        s_cmp_lg_u32 s{sT0}, 0
        s_cbranch_scc1 L_norank
        ds_permute_b32 v49, v49, v{KEY}
        s_lshl_b32 s{sT0}, s{sT}, 7
        s_add_u32 s{sT0}, s{sT0}, {WS_KEYS}
        v_lshlrev_b32 v22, 2, v0
        s_mov_b64 exec, 0xff
        s_waitcnt lgkmcnt(0)
        buffer_store_dword v49, v22, {srd(SWS)}, s{sT0} offen sc1
        s_mov_b64 exec, -1
        L_norank:
        """)
        self.stamp("kst")
        a(f"""
        v_and_b32 v22, 31, v0
        v_sub_u32 v22, v48, v22
        v_mul_i32_i24 v22, 240, v22
        v_add_u32 v13, v14, v22
        """)
        self.cand_write(H2, 7680 + 1920)
        for k in range(8):
            self.unpack(HF + 2 * k, H2 + k) if False else None
        D, HN2, OUT2 = 80, 48, 56
        for k in range(8):
            a(f"v_pk_add_f32 {vr(D+2*k,2)}, {vr(HF+2*k,2)}, v[44:45] op_sel_hi:[1,0] neg_lo:[0,1] neg_hi:[0,1]")
        for k in range(8):
            a(f"v_cvt_pk_bf16_f32 v{HN2+k}, v{D+2*k}, v{D+2*k+1}")
        for k in range(8):
            self.unpack(D + 2 * k, HN2 + k)
        for k in range(8):
            a(f"v_pk_mul_f32 {vr(D+2*k,2)}, {vr(D+2*k,2)}, v[46:47] op_sel_hi:[1,0]")
        for k in range(8):
            a(f"v_cvt_pk_bf16_f32 v{HN2+k}, v{D+2*k}, v{D+2*k+1}")
        self.cand_write(HN2, 7680)
        a("s_waitcnt lgkmcnt(0)")
        if self.T2:
            self.stamp("cb0")
        a("s_barrier")
        if self.T2:
            self.stamp("cb1")
        a("ds_read_b128 v[40:43], v18")
        for k in range(8):
            self.unpack(D + 2 * k, HN2 + k)
        a(f"""
        s_mov_b32 exec_hi, 0xffffff
        s_waitcnt lgkmcnt(0)
        buffer_store_dwordx4 v[40:43], v19, {srd(SWS)}, s{sA5} offen sc1
        s_mov_b32 exec_hi, -1
        v_lshlrev_b32 v2, 7, v0
        s_mov_b32 s{sA1}, {WS_KEYS}
        """)
        if self.KPOS == 0:
            self.key_first()
        for k in range(8):
            a(f"v_pk_add_f32 {vr(D+2*k,2)}, {vr(D+2*k,2)}, {vr(HF+2*k,2)}")
        for k in range(8):
            a(f"v_cvt_pk_bf16_f32 v{OUT2+k}, v{D+2*k}, v{D+2*k+1}")
        self.tr_write(OUT2, 0)
        self.KEY = KEY

    def ffn_weights(self):
        a = self.a
        a(f"""
        s_cmp_lt_i32 s{sF}, 0
        s_cbranch_scc1 L_noffw
        v_lshrrev_b32 v22, 2, v0
        v_mul_u32_u24 v22, 3584, v22
        v_and_b32 v23, 3, v0
        v_lshl_add_u32 v22, v23, 4, v22
        s_mul_i32 s{sT0}, s{sW}, {7*16*3584}
        s_lshl_b32 s{sT1}, s{sF}, 6
        s_add_u32 s{sT0}, s{sT0}, s{sT1}
        s_mul_i32 s{sT1}, s{sW}, 7168
        """)
        for j in range(7):
            a(f"""
            s_add_u32 m0, s{sT1}, {L_WG+j*1024}
            s_add_u32 s{sT2}, s{sT0}, {j*16*3584}
            buffer_load_dwordx4 v22, {srd(SWG)}, s{sT2} offen lds
            s_add_u32 m0, s{sT1}, {L_WU+j*1024}
            buffer_load_dwordx4 v22, {srd(SWU)}, s{sT2} offen lds
            """)
        a(f"""
        s_lshl_b32 s{sT0}, s{sF}, 2
        s_add_u32 s{sT0}, s{sT0}, s{sW}
        s_mul_i32 s{sT0}, s{sT0}, {8*896}
        s_mul_i32 s{sT1}, s{sW}, {8*928}
        s_mov_b32 exec_hi, 0xffffff
        """)
        for r in range(8):
            a(f"""
            s_add_u32 m0, s{sT1}, {L_WD+r*928}
            s_add_u32 s{sT2}, s{sT0}, {r*896}
            buffer_load_dwordx4 v1, {srd(SWD)}, s{sT2} offen lds
            """)
        a("s_mov_b32 exec_hi, -1\nL_noffw:")

    def bisect(self, levels, tag):
        a = self.a
        L = 32
        lo, hi, mid = sA0, sA1, sTH
        a(f"""
        s_mov_b32 s{lo}, 0
        s_mov_b32 s{hi}, 0x80000000
        L_bis{tag}:
        s_add_u32 s{mid}, s{lo}, s{hi}
        s_lshr_b32 s{mid}, s{mid}, 1
        """)
        for j in range(levels):
            a(f"v_cmp_le_u32 s[{64+2*j}:{65+2*j}], s{mid}, v{L+j}")
        a(f"s_bcnt1_i32_b64 s{sA2}, s[64:65]")
        for j in range(1, levels):
            a(f"s_bcnt1_i32_b64 s{sA3}, s[{64+2*j}:{65+2*j}]\ns_add_u32 s{sA2}, s{sA2}, s{sA3}")
        a(f"""
        s_cmp_eq_u32 s{sA2}, 8
        s_cbranch_scc1 L_bisdone{tag}
        s_cmp_eq_u32 s{mid}, s{lo}
        s_cbranch_scc1 L_bisdone{tag}
        s_cmp_gt_u32 s{sA2}, 8
        s_cselect_b32 s{lo}, s{mid}, s{lo}
        s_cselect_b32 s{hi}, s{hi}, s{mid}
        s_branch L_bis{tag}
        L_bisdone{tag}:
        """)

    def extract(self, levels):
        a = self.a
        a(f"s_mov_b32 s{sA2}, 0")
        for j in range(levels):
            m = 64 + 2 * j
            a(f"""
            v_mbcnt_lo_u32_b32 v22, s{m}, 0
            v_mbcnt_hi_u32_b32 v22, s{m+1}, v22
            v_add_u32 v22, s{sA2}, v22
            v_min_u32 v22, 7, v22
            v_lshl_add_u32 v22, v22, 3, s{sA4}
            v_add_u32 v23, {j}, v3
            s_mov_b64 exec, s[{m}:{m+1}]
            ds_write2_b32 v22, v{32+j}, v23 offset1:1
            s_mov_b64 exec, -1
            """)
            if j + 1 < levels:
                a(f"s_bcnt1_i32_b64 s{sA3}, s[{m}:{m+1}]\ns_add_u32 s{sA2}, s{sA2}, s{sA3}")

    AF, BF, WD = 128, 192, 64

    def ffn_pre(self):
        a = self.a
        a(f"""
        v_lshrrev_b32 v8, 4, v0
        v_lshrrev_b32 v9, 2, v0
        v_and_b32 v9, 3, v9
        v_and_b32 v10, 3, v0
        v_lshlrev_b32 v10, 3, v10
        v_lshl_add_u32 v11, v8, 3, v9
        v_lshl_add_u32 v11, v11, 6, v10
        s_lshr_b32 s{sT0}, s{sW}, 1
        s_mul_i32 s{sT0}, s{sT0}, 28672
        s_and_b32 s{sT1}, s{sW}, 1
        s_lshl_b32 s{sT1}, s{sT1}, 5
        s_add_u32 s{sT0}, s{sT0}, s{sT1}
        v_add_u32 v11, s{sT0}, v11
        v_lshl_add_u32 v12, v8, 2, v9
        v_mul_u32_u24 v12, 896, v12
        s_mul_i32 s{sT0}, s{sW}, 224
        s_add_u32 s{sT0}, s{sT0}, {L_WD}
        v_add3_u32 v12, v12, v10, s{sT0}
        v_subrev_u32 v14, {L_WD-L_WD2}, v12
        """)
        a(f"""
        s_lshl_b32 s{sT0}, s{sW}, 4
        s_add_u32 s{sT0}, s{sT0}, s{sA4}
        v_mov_b32 v26, s{sT0}
        v_lshl_add_u32 v24, v0, 2, s{sA4}
        v_min_u32 v10, 55, v0
        v_lshlrev_b32 v10, 4, v10
        s_mul_i32 s{sT0}, s{sW}, 2112
        s_add_u32 s{sT0}, s{sT0}, {L_G}
        v_add_u32 v6, s{sT0}, v10
        """)

    def ffn_reads(self):
        for s_ in range(14):
            self.a(f"ds_read_b64_tr_b16 {vr(self.AF+4*s_,2)}, v11 offset:{s_*2048}")
            self.a(f"ds_read_b64_tr_b16 {vr(self.AF+4*s_+2,2)}, v11 offset:{s_*2048+256}")
        a = self.a
        for i in range(7):
            a(f"ds_read_b64_tr_b16 {vr(self.WD+4*i,2)}, v12 offset:{i*32}")
            a(f"ds_read_b64_tr_b16 {vr(self.WD+4*i+2,2)}, v14 offset:{i*32}")

    def ffn_pre2(self):
        a = self.a
        a(f"""
        v_lshrrev_b32 v8, 4, v0
        v_and_b32 v9, 7, v0
        v_mul_u32_u24 v13, 1056, v9
        v_lshl_add_u32 v13, v8, 4, v13
        v_add_u32 v13, {L_G}, v13
        v_lshlrev_b32 v9, 4, v9
        v_lshl_add_u32 v9, v8, 7, v9
        v_and_b32 v8, 8, v0
        v_lshl_add_u32 v9, v8, 6, v9
        v_lshlrev_b32 v8, 4, v0
        v_add_u32 v8, {L_AX}, v8
        s_lshl_b32 s{sT0}, s{sW}, 10
        v_add_u32 v7, s{sT0}, v8
        s_mul_i32 s{sT0}, s{sF}, 14336
        s_mul_i32 s{sT1}, s{sW}, 3584
        s_add_u32 s{sT0}, s{sT0}, s{sT1}
        s_add_u32 s99, s{sT0}, {WS_Y}
        """)

    def key_first(self):
        self.a(f"""
        s_cmp_lt_i32 s{sF}, 0
        s_cbranch_scc1 L_nokey1
        s_cmp_lg_u32 s{sW}, 0
        s_cbranch_scc1 L_nokey1
        buffer_load_dwordx4 v[32:35], v2, {srd(SWS)}, s{sA1} offen sc1
        L_nokey1:
        """)

    def topk(self):
        a = self.a
        a(f"""
        s_mov_b32 s{sA4}, {L_SEL}
        v_lshlrev_b32 v3, 3, v0
        s_cmp_lt_i32 s{sF}, 0
        s_cbranch_scc1 L_kwait
        """)
        self.ffn_pre()
        self.ffn_pre2()
        a(f"""
        s_cmp_eq_u32 s{sW}, 0
        s_cbranch_scc1 L_ksel
        """)
        self.ffn_reads()
        a("s_branch L_selwait\nL_ksel:")
        self.stamp("kp0")
        a(f"""
        s_branch L_kchk
        L_kpoll:
        buffer_load_dwordx4 v[32:35], v2, {srd(SWS)}, s{sA1} offen sc1
        L_kchk:
        s_waitcnt vmcnt(0)
        """)
        self.sentinel_any(range(32, 36), 22)
        a("s_cbranch_vccz L_kok")
        self.spin_guard("L_kok")
        a("s_branch L_kpoll\nL_kok:")
        self.stamp("kok")
        lo, hi, mid = sA0, sA1, sTH
        a(f"""
        v_max_u32_dpp v22, v32, v32 row_ror:1 row_mask:0xf bank_mask:0xf bound_ctrl:1
        v_max_u32_dpp v22, v22, v22 row_ror:2 row_mask:0xf bank_mask:0xf bound_ctrl:1
        v_max_u32_dpp v22, v22, v22 row_ror:4 row_mask:0xf bank_mask:0xf bound_ctrl:1
        v_max_u32_dpp v23, v22, v22 row_ror:8 row_mask:0xf bank_mask:0xf bound_ctrl:1
        v_min_u32_dpp v22, v22, v22 row_ror:8 row_mask:0xf bank_mask:0xf bound_ctrl:1
        v_readlane_b32 s64, v23, 0
        v_readlane_b32 s65, v23, 16
        v_readlane_b32 s66, v23, 32
        v_readlane_b32 s67, v23, 48
        v_readlane_b32 s68, v22, 0
        v_readlane_b32 s69, v22, 16
        v_readlane_b32 s70, v22, 32
        v_readlane_b32 s71, v22, 48
        s_max_u32 s64, s64, s65
        s_max_u32 s66, s66, s67
        s_min_u32 s68, s68, s69
        s_min_u32 s70, s70, s71
        s_max_u32 s{hi}, s64, s66
        s_min_u32 s{lo}, s68, s70
        s_min_u32 s{hi}, s{hi}, 0x7fffffff
        s_min_u32 s{lo}, s{lo}, s{hi}
        s_sub_u32 s{lo}, s{lo}, 1
        s_max_i32 s{lo}, s{lo}, 0
        L_bisa:
        """)
        for k in range(self.BIS):
            a(f"""
            s_add_u32 s{mid}, s{lo}, s{hi}
            s_lshr_b32 s{mid}, s{mid}, 1
            v_cmp_lt_u32 s[64:65], s{mid}, v32
            v_cmp_lt_u32 s[66:67], s{mid}, v33
            s_bcnt1_i32_b64 s{sA2}, s[64:65]
            s_bcnt1_i32_b64 s{sA3}, s[66:67]
            s_add_u32 s{sA2}, s{sA2}, s{sA3}
            s_cmp_eq_u32 s{sA2}, 8
            s_cbranch_scc1 L_bisdonea
            s_cmp_gt_u32 s{sA2}, 8
            s_cselect_b32 s{lo}, s{mid}, s{lo}
            s_cselect_b32 s{hi}, s{hi}, s{mid}
            """)
        a(f"""
        s_sub_u32 s{sA2}, s{hi}, s{lo}
        s_cmp_gt_u32 s{sA2}, 1
        s_cbranch_scc1 L_bisa
        s_branch L_topslow
        L_bisdonea:
        v_cmp_lt_u32 vcc, s{mid}, v34
        s_add_u32 s{mid}, s{mid}, 1
        {"s_branch" if self.FSLOW else "s_cbranch_vccnz"} L_topslow
        """)
        self.extract(2)
        a(f"""
        L_topdone:
        v_mov_b32 v22, s{sA4}
        v_mov_b32 v23, s{sTH}
        ds_write_b32 v22, v23 offset:64
        L_selwait:
        s_waitcnt lgkmcnt(0)
        s_barrier
        """)
        self.stamp("topk")

    BIS = 6
    FSLOW = 0
    EPOS = 1
    KPOS = 0
    T2 = 0
    EOUTP = ' sc1'
    LOC = 1
    OUTP = ''
    RSL = 2
    YL = 0
    YS = 0
    OL = 0
    FPRE = 0

    def topk_slow(self):
        if self.OL:
            self.a(f"""
            L_ohint:
            v_and_b32 v22, 3, v0
            v_lshlrev_b32 v22, 11, v22
            v_add_u32 v22, 2044, v22
            L_ohint2:
            buffer_load_dword v23, v22, {srd(SWS)}, s{sA0} offen sc1
            s_waitcnt vmcnt(0)
            v_cmp_eq_u32 vcc, -1, v23
            s_cbranch_vccz L_odma
            """)
            self.spin_guard("L_odma")
            self.a("s_branch L_ohint2")
        self.a(f"""
        L_topslow:
        s_mov_b32 s{sA1}, {WS_KEYS}
        L_kpoll2:
        buffer_load_dwordx4 v[36:39], v2, {srd(SWS)}, s{sA1} offen offset:16 sc1
        s_waitcnt vmcnt(0)
        """)
        self.sentinel_any(range(36, 40), 22)
        self.a("s_cbranch_vccz L_kok2")
        self.spin_guard("L_kok2")
        self.a("s_branch L_kpoll2\nL_kok2:")
        self.bisect(8, "b")
        self.extract(8)
        self.a("s_branch L_topdone")

    def key_token(self, d, k):
        self.a(f"v_and_b32 v{d}, 0x7ff, v{k}\nv_sub_u32 v{d}, 2047, v{d}")

    def ffn(self):
        a = self.a
        a(f"""
        ds_read2_b32 v[4:5], v26 offset0:1 offset1:3
        ds_read_b32 v25, v24
        s_mov_b32 s{sA0}, {WS_HN}
        s_movk_i32 s{sA1}, 896
        s_waitcnt lgkmcnt(1)
        v_and_b32 v4, 511, v4
        v_and_b32 v5, 511, v5
        v_mad_u32_u24 v4, v4, s{sA1}, v10
        v_mad_u32_u24 v5, v5, s{sA1}, v10
        L_gpoll:
        buffer_load_dwordx4 v[32:35], v4, {srd(SWS)}, s{sA0} offen sc1
        buffer_load_dwordx4 v[36:39], v5, {srd(SWS)}, s{sA0} offen sc1
        """)
        a(f"""
        s_waitcnt lgkmcnt(0)
        v_readlane_b32 s{sTH}, v25, 16
        v_lshlrev_b32 v24, 2, v0
        s_lshl_b32 s{sA2}, s{sF}, 7
        s_add_u32 s{sA2}, s{sA2}, {WS_RES}
        v_cmp_le_u32 s[80:81], s{sTH}, v{self.KEY}
        s_cmp_lg_u32 s{sW}, 0
        s_cbranch_scc1 L_haveA
        """)
        self.ffn_reads()
        a("L_haveA:")
        a(f"""
        s_waitcnt vmcnt(1)
        ds_write_b128 v6, v[32:35]
        v_max3_u32 v22, v32, v33, v34
        s_waitcnt vmcnt(0)
        ds_write_b128 v6, v[36:39] offset:1056
        v_max3_u32 v22, v22, v35, v36
        v_max3_u32 v22, v22, v37, v38
        v_max_u32 v22, v22, v39
        v_cmp_eq_u32 vcc, -1, v22
        s_cbranch_vccz L_gok
        """)
        self.spin_guard("L_gok")
        a(f"""
        s_branch L_gpoll
        L_gok:
        """)
        self.stamp("gath")
        a(f"""
        s_waitcnt lgkmcnt(0)
        s_barrier
        s_cmp_lg_u32 s{sW}, 3
        s_cbranch_scc1 L_nores
        s_mov_b64 exec, 0x1ffff
        buffer_store_dword v25, v24, {srd(SWS)}, s{sA2} offen sc1
        s_mov_b64 exec, -1
        L_nores:
        """)
        lq = LQ(a)
        AF, BF, WD, D = self.AF, self.BF, self.WD, 40
        for s_ in range(14):
            lq.op(f"ds_read_b128 {vr(BF+4*s_,4)}, v13 offset:{s_*64}", s_)
        for s_ in range(14):
            if s_ % 2 == 0:
                lq.wait(s_ + 1)
            a(M16(D + 4 * (s_ % 2), AF + 4 * s_, BF + 4 * s_, D + 4 * (s_ % 2) if s_ > 1 else None))
        for k in range(4):
            a(f"v_add_f32 v{D+k}, v{D+k}, v{D+4+k}")
        a(f"""
        v_cvt_pk_bf16_f32 v44, v{D}, v{D+1}
        v_cvt_pk_bf16_f32 v45, v{D+2}, v{D+3}
        s_cmp_ge_u32 s{sW}, 2
        s_cbranch_scc1 L_nosilu
        """)
        self.unpack(48, 44)
        self.unpack(50, 45)
        for k in range(4):
            a(f"v_mul_f32 v{52+k}, {hex(fbits(-LOG2E))}, v{48+k}")
        for k in range(4):
            a(f"v_exp_f32 v{52+k}, v{52+k}")
        for k in range(4):
            a(f"v_add_f32 v{52+k}, 1.0, v{52+k}")
        for k in range(4):
            a(f"v_rcp_f32 v{52+k}, v{52+k}")
        for k in range(4):
            a(f"v_mul_f32 v{48+k}, v{48+k}, v{52+k}")
        a(f"""
        v_cvt_pk_bf16_f32 v44, v48, v49
        v_cvt_pk_bf16_f32 v45, v50, v51
        L_nosilu:
        v_lshlrev_b32 v40, 16, v44
        v_and_b32 v41, 0xffff0000, v44
        v_lshlrev_b32 v42, 16, v45
        v_and_b32 v43, 0xffff0000, v45
        ds_write_b128 v7, v[40:43]
        s_waitcnt lgkmcnt(0)
        s_barrier
        ds_read_b128 v[48:51], v8
        ds_read_b128 v[56:59], v8 offset:2048
        ds_read_b128 v[52:55], v8 offset:1024
        ds_read_b128 v[60:63], v8 offset:3072
        s_waitcnt lgkmcnt(2)
        v_pk_mul_f32 v[48:49], v[48:49], v[56:57]
        v_pk_mul_f32 v[50:51], v[50:51], v[58:59]
        s_waitcnt lgkmcnt(0)
        v_pk_mul_f32 v[52:53], v[52:53], v[60:61]
        v_pk_mul_f32 v[54:55], v[54:55], v[62:63]
        """)
        for k in range(4):
            a(f"v_cvt_pk_bf16_f32 v{44+k}, v{48+2*k}, v{49+2*k}")
        for i in range(7):
            a(M16(128 + 4 * i, WD + 4 * i, 44))
        a("s_mov_b32 vcc_lo, 0xff00ff00\ns_mov_b32 vcc_hi, 0xff00ff00")
        for i in range(0, 6, 2):
            for k in range(4):
                a(f"v_cndmask_b32 v{128+4*i+k}, v{128+4*i+k}, v{132+4*i+k}, vcc")
            a(f"buffer_store_dwordx4 {vr(128+4*i,4)}, v9, {srd(SWS)}, s99 offen offset:{512*i} sc1")
        a("s_mov_b32 exec_lo, 0x00ff00ff\ns_mov_b32 exec_hi, 0x00ff00ff")
        a(f"buffer_store_dwordx4 v[152:155], v9, {srd(SWS)}, s99 offen offset:3072 sc1")
        a("s_mov_b64 exec, -1")
        self.stamp("ypub")
        a("s_branch L_noffn\nL_kwait:\ns_waitcnt lgkmcnt(0)\ns_barrier")
        if self.EPOS == 1:
            self.out_rows(sM, "e", self.EOUTP)
        a(f"""
        s_mul_i32 s{sT0}, s{sI}, 9363
        s_lshr_b32 s{sT0}, s{sT0}, 16
        s_mul_i32 s{sT0}, s{sT0}, 7
        s_sub_u32 s{sT0}, s{sI}, s{sT0}
        s_mul_i32 s{sT1}, s{sXCD}, 7
        s_add_u32 s{sT0}, s{sT0}, s{sT1}
        s_lshl_b32 s{sT0}, s{sT0}, 7
        s_add_u32 s{sA0}, s{sT0}, {WS_RES}
        v_and_b32 v2, 7, v0
        v_lshlrev_b32 v3, 3, v2
        s_waitcnt vmcnt(0)
        L_respoll:
        buffer_load_dwordx2 v[12:13], v3, {srd(SWS)}, s{sA0} offen sc1
        buffer_load_dword v14, v31, {srd(SWS)}, s{sA0} offen offset:64 sc1
        s_waitcnt vmcnt(0)
        v_max3_u32 v22, v12, v13, v14
        v_cmp_eq_u32 vcc, -1, v22
        s_cbranch_vccz L_resok
        """)
        self.spin_guard("L_resok")
        a(f"""
        s_sleep {self.RSL}
        s_branch L_respoll
        L_resok:
        v_cmp_le_u32 s[80:81], v14, v{self.KEY}
        """)
        self.stamp("res")
        a("L_noffn:")

    def out_rows(self, mask=80, tag="", pol=None):
        a = self.a
        pol = self.OUTP if pol is None else pol
        a(f"""
        ds_read_b128 v[48:51], v15
        ds_read_b128 v[52:55], v16
        v_lshrrev_b32_e64 v22, v20, s{mask}
        v_lshrrev_b32_e64 v23, v21, s{mask}
        v_and_b32 v22, 1, v22
        v_and_b32 v23, 1, v23
        v_cmp_eq_u32 s[70:71], 0, v22
        v_cmp_eq_u32 vcc, 0, v23
        s_waitcnt lgkmcnt(0)
        s_mov_b64 exec, s[70:71]
        s_cbranch_execz L_out1{tag}
        buffer_store_dwordx4 v[48:51], v{self.VTG}, {srd(SOUT)}, s{sROW} offen{pol}
        L_out1{tag}:
        s_and_b32 vcc_hi, vcc_hi, 0xffff
        s_mov_b64 exec, vcc
        s_cbranch_execz L_out2{tag}
        buffer_store_dwordx4 v[52:55], v{self.VTG+1}, {srd(SOUT)}, s{sROW} offen{pol}
        L_out2{tag}:
        s_mov_b64 exec, -1
        """)

    def reducer(self):
        a = self.a
        a(f"""
        s_cmp_lt_i32 s{sU}, 0
        s_cbranch_scc1 L_fin
        s_cmp_lg_u32 s{sW}, 0
        s_cbranch_scc1 L_fin
        v_lshrrev_b32 v5, 3, v0
        v_mul_u32_u24 v5, 14336, v5
        v_lshl_add_u32 v5, v2, 4, v5
        v_lshrrev_b32 v6, 4, v0
        s_lshl_b32 s{sT0}, s{sU}, 3
        v_lshl_add_u32 v6, v6, 1, s{sT0}
        s_movk_i32 s{sA1}, 896
        s_mov_b32 s{sA2}, {WS_HH}
        s_mov_b32 s{sA3}, {WS_HN}
        s_lshl_b32 s{sA0}, s{sU}, 7
        s_add_u32 s{sA0}, s{sA0}, {WS_Y}
        s_waitcnt lgkmcnt(0)
        """)
        self.key_token(7, 12)
        a(f"""
        v_and_b32 v13, 511, v13
        v_mad_u32_u24 v13, v13, s{sA1}, v6
        v_mad_u32_u24 v6, v7, s{sA1}, v6
        L_rpoll:
        buffer_load_ushort v8, v13, {srd(SWS)}, s{sA2} offen sc1
        buffer_load_ushort v9, v13, {srd(SWS)}, s{sA3} offen sc1
        v_lshlrev_b32 v10, 1, v12
        v_and_b32 v10, 0xffff0000, v10
        v_ashrrev_i32 v11, 31, v10
        v_not_b32 v11, v11
        v_or_b32 v11, 0x80000000, v11
        v_xor_b32 v10, v10, v11
        v_and_b32 v10, 0xffff0000, v10
        v_mul_f32 v10, {hex(fbits(-LOG2E))}, v10
        v_exp_f32 v10, v10
        v_add_f32 v10, 1.0, v10
        v_rcp_f32 v10, v10
        v_cvt_pk_bf16_f32 v10, v10, v10
        v_and_b32 v10, 0xffff0000, v10
        s_waitcnt vmcnt(0)
        v_max_u32 v11, v8, v9
        v_cmp_eq_u32 vcc, 0xffff, v11
        s_cbranch_vccz L_rok
        """)
        self.spin_guard("L_rok")
        a(f"""
        s_branch L_rpoll
        L_rok:
        v_lshlrev_b32 v8, 16, v8
        v_lshlrev_b32 v9, 16, v9
        """)
        self.stamp("rpre")
        if self.YS:
            a(f"s_sleep {self.YS}")
        if self.YL:
            a(f"""
            s_cmp_ge_u32 s{sU}, 56
            s_cselect_b32 s{sT0}, 56, 0
            s_sub_u32 s{sT0}, s{sU}, s{sT0}
            s_mul_i32 s{sT0}, s{sT0}, 14336
            s_add_u32 s{sA1}, s{sA0}, s{sT0}
            L_yhint:
            buffer_load_dword v32, v31, {srd(SWS)}, s{sA1} offen sc1
            s_waitcnt vmcnt(0)
            v_cmp_eq_u32 vcc, -1, v32
            s_cbranch_vccz L_ypoll
            """)
            self.spin_guard("L_ypoll")
            a(f"s_sleep {self.YL}\ns_branch L_yhint")
        a("L_ypoll:")
        for i in range(7):
            a(f"""
            s_add_u32 s{sT0}, s{sA0}, {i*8*14336}
            buffer_load_dwordx4 {vr(32+4*i,4)}, v5, {srd(SWS)}, s{sT0} offen sc1
            """)
        a("s_waitcnt vmcnt(0)")
        self.sentinel_any(range(32, 60), 22)
        a("s_cbranch_vccz L_yok")
        self.spin_guard("L_yok")
        a("s_branch L_ypoll\nL_yok:")
        self.stamp("yok")
        for (x, y) in ((32, 36), (40, 44), (48, 52), (32, 40), (48, 56), (32, 48)):
            a(f"v_pk_add_f32 {vr(x,2)}, {vr(x,2)}, {vr(y,2)}\nv_pk_add_f32 {vr(x+2,2)}, {vr(x+2,2)}, {vr(y+2,2)}")
        for k in range(4):
            a(f"v_add_f32_dpp v{36+k}, v{32+k}, v{32+k} row_ror:8 row_mask:0xf bank_mask:0xf bound_ctrl:1")
        a(f"""
        v_permlane16_swap_b32 v36, v37
        v_permlane16_swap_b32 v38, v39
        v_add_f32 v36, v36, v37
        v_add_f32 v38, v38, v39
        v_permlane32_swap_b32 v36, v38
        v_add_f32 v36, v36, v38
        v_cvt_pk_bf16_f32 v36, v36, v36
        v_and_b32 v36, 0xffff0000, v36
        v_mul_f32 v36, v36, v10
        v_cvt_pk_bf16_f32 v36, v36, v36
        v_and_b32 v36, 0xffff0000, v36
        v_add_f32 v36, v36, v9
        v_cvt_pk_bf16_f32 v36, v36, v36
        v_and_b32 v36, 0xffff0000, v36
        v_add_f32 v36, v36, v8
        v_cvt_pk_bf16_f32 v36, v36, v36
        s_mov_b32 exec_lo, 0x00ff00ff
        s_mov_b32 exec_hi, 0x00ff00ff
        buffer_store_short v36, v6, {srd(SOUT)}, 0 offen{self.OUTP}
        s_mov_b64 exec, -1
        """)
        self.stamp("rend")

    def tail(self):
        self.p3()
        self.topk()
        self.ffn()
        if self.EPOS == 0:
            self.a(f"s_orn2_b32 s80, s80, s{sM}")
        elif self.EPOS == 1:
            self.a(f"""
            s_cmp_lt_i32 s{sF}, 0
            s_cselect_b32 s{sT0}, s{sM}, -1
            s_orn2_b32 s80, s80, s{sT0}
            """)
        self.out_rows()
        self.reducer()

    def redo(self):
        self.topk_slow()
        super().redo()


if __name__ == "__main__":
    g = Full()
    s, n = g.build()
    sys.stdout.write(s)
    print("pads:", n, file=sys.stderr)
```

```python
import sys, os, struct
sys.path.insert(0, os.path.dirname(os.path.abspath(__file__)))
from asmb import Asm

NAME = "sequential_preLN__mha_block__moe_arch_mod__prompt_kernel"

WS_EPOCH = 0
WS_KVF = 0x1000
WS_CLF = 0x3000
WS_XID = 0x3800
WS_RES = 0x6000
WS_KEYS = 0x4000
WS_STATS = 0x20000
WS_KV = 0x100000
KVS = 4352
WS_OF = 0x580000
WS_HN = 0x780000
WS_HH = 0x800000
WS_Y = 0xB00000
WS_TS = 0xC00000
WS_SIZE = 0x1000000

L_W = 0
L_XR = 86016
L_CS = 151552
L_RS = 154624
L_QX = 155648
L_WO = 0
L_CB = 114688
L_ST = 147456
L_TR = 114688
L_SEL = 126208
L_AX = 126464
L_G = 138240
L_WG = 0
L_WU = 28672
L_WD = 149504
L_WD2 = 57344
LDS_BYTES = 163840

SX, SWQ, SWS, SWO, SOUT, SWG, SWU, SWD, SWR = 8, 12, 16, 20, 24, 28, 32, 36, 40
sW, sH, sB, sT, sC, sNON, sI, sXCD = 44, 45, 46, 47, 48, 49, 50, 51
sKG = 52
sXO = 59
sONE = 60
sT0, sT1, sT2 = 61, 62, 63
sLO = 86
sM = 88
sA0, sA1, sA2, sA3, sA4, sA5 = 90, 91, 92, 93, 94, 95
sKVF, sKVO = 82, 83
sLOC = 56
sSPIN = 96
sPASS = 97
sTH = 98
sKT = 64
SPIN_MAX = 1 << 17

LOG2E = 1.4426950408889634


def fbits(x):
    return struct.unpack("<I", struct.pack("<f", x))[0]


def srd(r):
    return f"s[{r}:{r+3}]"


def vr(a, n):
    return f"v[{a}:{a+n-1}]" if n > 1 else f"v{a}"


def M32(d, a, b, c=None):
    return f"v_mfma_f32_32x32x16_bf16 {vr(d,16)}, {vr(a,4)}, {vr(b,4)}, {vr(c,16) if c is not None else 0}"


def M16(d, a, b, c=None):
    return f"v_mfma_f32_16x16x32_bf16 {vr(d,4)}, {vr(a,4)}, {vr(b,4)}, {vr(c,4) if c is not None else 0}"


def lines(t):
    return [x.strip() for x in t.strip().split("\n") if x.strip()]


class LQ:
    def __init__(self, a):
        self.a, self.q = a, []

    def op(self, text, tag):
        self.a(text)
        self.q.append(tag)

    def wait(self, tag):
        k = max(i for i, t in enumerate(self.q) if t == tag)
        self.a(f"s_waitcnt lgkmcnt({min(len(self.q) - 1 - k, 15)})")


sF, sU = 3, 4
sWOS, sWOM = 5, 6
sROW = 7
OOB = 0x7F000000


class Gen:
    def __init__(self, stop=None, ts=False, rot=True, force_fb=False, **kw):
        self.a = Asm()
        self.stop = stop
        self.ts = ts
        self.rot = rot
        self.force_fb = force_fb
        self.nts = 0
        self.tsn = []
        for k, v in kw.items():
            setattr(self, k, v)

    amp = None
    ampg = 80

    def stamp(self, name=""):
        if self.amp:
            if name == "entry":
                self.a("s_memrealtime s[100:101]")
            elif name == self.amp:
                self.a("s_memrealtime s[28:29]\ns_waitcnt lgkmcnt(0)")
        if not self.ts or (self.P1S and name in ("karg", "b1", "issued", "kst", "kp0", "hack", "oack", "rpre", "res", "odma")):
            return
        k = self.nts
        self.nts += 1
        self.tsn.append(name)
        assert k < 32
        self.a(f"""
        s_memrealtime s[100:101]
        s_waitcnt lgkmcnt(0)
        v_writelane_b32 v254, s100, {k}
        s_memtime s[100:101]
        s_waitcnt lgkmcnt(0)
        v_writelane_b32 v254, s100, {32+k}
        """.replace("v254", self.TSV))

    def spin_guard(self, out_label):
        self.a(f"""
        s_add_u32 s{sSPIN}, s{sSPIN}, 1
        s_cmp_gt_u32 s{sSPIN}, {SPIN_MAX}
        s_cbranch_scc1 {out_label}
        """)

    def xhalf_sum(self, x, t):
        self.a(f"""
        v_mov_b32 v{t}, v{x}
        v_permlane32_swap_b32 v{x}, v{t}
        v_add_f32 v{x}, v{x}, v{t}
        """)

    def ln_scalars(self, S1, S2, mb, rs, t0, t1):
        self.a(f"""
        v_mul_f32 v{mb}, {hex(fbits(1/448))}, v{S1}
        v_mul_f32 v{t0}, {hex(fbits(1/448))}, v{S2}
        v_fma_f32 v{t0}, -v{mb}, v{mb}, v{t0}
        v_max_f32 v{t0}, 0, v{t0}
        v_cvt_pk_bf16_f32 v{t1}, v{mb}, v{t0}
        v_lshlrev_b32 v{mb}, 16, v{t1}
        v_and_b32 v{t0}, 0xffff0000, v{t1}
        v_add_f32 v{t0}, {hex(fbits(1e-5))}, v{t0}
        v_cvt_pk_bf16_f32 v{t0}, v{t0}, v{t0}
        v_and_b32 v{t0}, 0xffff0000, v{t0}
        v_sqrt_f32 v{t0}, v{t0}
        v_cvt_pk_bf16_f32 v{t0}, v{t0}, v{t0}
        v_and_b32 v{t0}, 0xffff0000, v{t0}
        v_rcp_f32 v{rs}, v{t0}
        """)

    def neg_split2(self, d, x, t):
        self.a(f"""
        v_cvt_pk_bf16_f32 v{t}, -v{x}, -v{x}
        v_and_b32 v{t}, 0xffff0000, v{t}
        v_sub_f32 v{d}, -v{x}, v{t}
        v_cvt_pk_bf16_f32 v{d}, v{t}, v{d}
        """.replace("v_sub_f32 ", "v_sub_f32_e64 "))

    def common_setup(self, scalar=True, only=None):
        self.a(f"""
        {"s_load_dword s%d, s[84:85], 0" % sNON if scalar else ""}
        s_lshl_b32 s{sT}, s{sA5}, 5
        s_lshl_b32 s{sT0}, s{sA4}, 3
        s_add_u32 s{sT}, s{sT}, s{sT0}
        s_and_b32 s{sT0}, s{sB}, 7
        s_add_u32 s{sT}, s{sT}, s{sT0}
        s_mov_b32 s{sONE}, 0x3f803f80
        s_mov_b32 s{sLO}, -1
        s_mov_b32 s{sLO+1}, 0
        s_mov_b32 s{sSPIN}, 0
        s_mov_b32 s{sPASS}, 0
        """)
        self.roles()
        self.srds(only)

    def prologue(self):
        a = self.a
        a(f"""
        s_cmp_ge_u32 s2, 256
        s_cbranch_scc1 L_end
        """)
        self.stamp("entry")
        a(f"""
        s_load_dwordx16 s[64:79], s[0:1], 0
        s_load_dwordx4 s[80:83], s[0:1], 64
        s_load_dwordx2 s[84:85], s[0:1], 80
        v_lshrrev_b32 v1, 6, v0
        v_and_b32 v0, 63, v0
        s_and_b32 s{sXCD}, s2, 7
        s_lshr_b32 s{sI}, s2, 3
        v_readfirstlane_b32 s{sW}, v1
        s_lshr_b32 s{sA4}, s{sXCD}, 1
        s_and_b32 s{sA5}, s{sXCD}, 1
        s_and_b32 s{sC}, s{sI}, 3
        s_lshr_b32 s{sT2}, s{sI}, 2
        s_lshl_b32 s{sB}, s{sA5}, 3
        s_add_u32 s{sB}, s{sB}, s{sT2}
        s_lshl_b32 s{sH}, s{sA4}, 2
        s_add_u32 s{sH}, s{sH}, s{sC}
        """)
        if self.HMAP != 0xfedcba9876543210:
            a(f"""
            s_lshl_b32 s{sH}, s{sH}, 2
            s_mov_b32 s{sA0}, {self.HMAP & 0xffffffff}
            s_mov_b32 s{sA1}, {self.HMAP >> 32}
            s_lshr_b64 s[{sA0}:{sA1}], s[{sA0}:{sA1}], s{sH}
            s_and_b32 s{sH}, s{sA0}, 15
            """)
        a(f"""
        s_cmp_eq_u32 s{sW}, 4
        s_cbranch_scc1 L_helper
        v_lshrrev_b32 v22, 3, v0
        v_mul_u32_u24 v22, 896, v22
        v_lshrrev_b32 v23, 4, v0
        v_and_b32 v24, 7, v0
        v_xor_b32 v23, v23, v24
        v_lshl_add_u32 v1, v23, 4, v22
        v_xor_b32 v23, 4, v23
        v_lshl_add_u32 v2, v23, 4, v22
        v_add_u32 v2, {7168-1024}, v2
        v_add_u32 v3, {2*(7168-1024)}, v1
        v_add_u32 v4, {2*(7168-1024)}, v2
        v_lshrrev_b32 v22, 2, v0
        v_mul_u32_u24 v22, 2688, v22
        v_and_b32 v23, 3, v0
        v_lshlrev_b32 v23, 4, v23
        v_min_u32 v23, 40, v23
        v_add_u32 v5, v23, v22
        s_lshl_b32 s{sXO}, s{sB}, 2
        s_add_u32 s{sXO}, s{sXO}, s{sW}
        s_mul_i32 s{sXO}, s{sXO}, {32*896}
        s_lshl_b32 s{sA2}, s{sW}, 14
        s_add_u32 s{sA2}, s{sA2}, {L_XR}
        s_mul_i32 s{sA1}, s{sW}, {16*2688}
        s_mul_i32 s{sA3}, s{sH}, 56
        s_add_u32 s{sA1}, s{sA1}, s{sA3}
        s_add_u32 s{sA1}, s{sA1}, 896
        s_mul_i32 s{sA3}, s{sW}, 21504
        s_mov_b32 s{SX+2}, {2048*896}
        s_mov_b32 s{SX+3}, 0x20000
        s_mov_b32 s{SWQ+2}, {448*2688}
        s_mov_b32 s{SWQ+3}, 0x20000
        """)
        if self.ROT == 7:
            a(f"""
            s_lshl_b32 s{sKG}, s{sC}, 1
            s_add_u32 s{sKG}, s{sKG}, s{sT2}
            s_cmp_ge_u32 s{sKG}, 7
            s_cselect_b32 s{sT0}, 7, 0
            s_sub_u32 s{sKG}, s{sKG}, s{sT0}
            """)
        elif self.ROT > 1:
            a(f"""
            s_add_u32 s{sKG}, s{sC}, s{sT2}
            s_and_b32 s{sKG}, s{sKG}, {self.ROT-1}
            s_mul_i32 s{sKG}, s{sKG}, {self.ROTS}
            """)
        else:
            a(f"s_mov_b32 s{sKG}, 0")

        def nxt(G):
            a(f"""
            s_add_u32 s{sKG+G}, s{sKG+G-1}, 1
            s_cmp_eq_u32 s{sKG+G}, 7
            s_cselect_b32 s{sKG+G}, 0, s{sKG+G}
            """)
        nxt(1)
        if self.LIN:
            n = self.LIN
            a(f"""
            v_lshlrev_b32 v26, 7, v0
            s_and_b32 s{sT0}, s2, {7 if n == 1 else 3}
            s_lshl_b32 s{sT1}, s{sI}, {3 if n == 1 else 2}
            s_add_u32 s{sT0}, s{sT0}, s{sT1}
            s_mul_i32 s{sT1}, s{sT0}, {4704*n}
            s_mul_i32 s{sT0}, s{sT0}, {7168*n}
            s_and_b32 s99, s{sW}, 1
            s_mul_i32 s99, s99, {7168 if n == 2 else 0}
            s_add_u32 s98, s{sT0}, s99
            s_and_b32 s99, s{sW}, 1
            s_mul_i32 s99, s99, {4704 if n == 2 else 0}
            s_add_u32 s99, s{sT1}, s99
            """)
        a(f"""
        s_waitcnt lgkmcnt(0)
        s_mov_b32 s{SX}, s64
        s_mov_b32 s{SX+1}, s65
        s_mov_b32 s{SWQ}, s66
        s_mov_b32 s{SWQ+1}, s67
        """)
        self.stamp("karg")
        lin = []
        if self.LIN:
            lin = lines(f"""
            s_cmp_ge_u32 s{sW}, 2
            s_cbranch_scc1 L_linw
            s_mov_b32 exec_hi, 0xffffff
            buffer_load_dword v28, v26, {srd(SX)}, s98 offen
            s_branch L_lind
            L_linw:
            s_mov_b32 exec_hi, 0x3f
            buffer_load_dword v28, v26, {srd(SWQ)}, s99 offen
            L_lind:
            s_mov_b32 exec_hi, -1
            """)
        if self.LINP == 0:
            a("\n".join(lin))
        a("\n".join(self.dma_x(0) + self.dma_w(0)))
        if self.LINP == 1:
            a("\n".join(lin))
        for G in range(2, 7):
            nxt(G)
        if self.PRIO:
            a(f"s_setprio {self.PRIO}")
        a(f"s_mov_b32 s{sONE}, 0x3f803f80")
        a(f"""
        v_and_b32 v22, 31, v0
        v_lshrrev_b32 v23, 5, v0
        v_lshrrev_b32 v24, 1, v22
        v_and_b32 v24, 7, v24
        v_xor_b32 v24, v24, v23
        v_lshlrev_b32 v22, 7, v22
        v_add_u32 v22, s{sA2}, v22
        v_lshl_add_u32 v22, v24, 4, v22
        v_lshrrev_b32 v25, 2, v0
        v_and_b32 v25, 3, v25
        v_lshl_add_u32 v25, v23, 3, v25
        v_lshlrev_b32 v25, 6, v25
        v_lshrrev_b32 v26, 4, v0
        v_and_b32 v26, 1, v26
        v_lshl_add_u32 v25, v26, 5, v25
        v_lshrrev_b32 v27, 1, v0
        v_and_b32 v27, v27, v26
        v_and_b32 v26, 3, v0
        v_xor_b32 v26, v26, v27
        v_lshl_add_u32 v25, v26, 3, v25
        """)
        for p in range(4):
            a(f"""
            s_add_u32 s{sT0}, s{sW}, {p}
            s_and_b32 s{sT0}, s{sT0}, 3
            s_lshl_b32 s{sT1}, s{sT0}, 5
            s_mul_i32 s{sT2}, s{sT0}, 21504
            v_xor_b32 v{6+p}, s{sT1}, v22
            v_add_u32 v{10+p}, s{sT2}, v25
            """)
        for r in (14, 15, 16, 17, 18, 19, 31):
            a(f"v_mov_b32 v{r}, 0")
        self.stamp("b1")
        a("\n".join(self.dma_x(1)))
        self.stamp("issued")

    def late_setup(self):
        sub = Gen()
        a = sub.a
        sub.common_setup(scalar=False, only=(SWS, SOUT, SWR))
        for r in (20, 21, 97, 98, 99, 101, 102, 103, 105, 106, 107):
            a(f"v_mov_b32 v{r}, 0")
        a(f"v_lshlrev_b32 v26, 4, v0\nv_add_u32 v26, {L_QX}, v26")
        for p in range(4):
            a(f"""
            s_add_u32 s99, s{sW}, {p+1}
            s_and_b32 s99, s99, 3
            v_lshl_add_u32 v{124+p}, s99, 11, v26
            """)
        a(f"""
        s_lshl_b32 s99, s{sH}, 2
        s_add_u32 s99, s99, s{sW}
        s_lshl_b32 s99, s99, 7
        s_add_u32 s{sKVF}, s99, {WS_KVF}
        s_lshl_b32 s99, s{sB}, 2
        s_add_u32 s{sKVO}, s99, s{sKVF}
        s_lshl_b32 s99, s{sH}, 6
        s_add_u32 s99, s99, s{sW}
        s_mul_i32 s99, s99, {KVS}
        s_add_u32 s99, s99, {WS_KV}
        v_add_u32 v26, s{sB}, v0
        v_and_b32 v26, 15, v26
        v_mul_u32_u24 v26, {4*KVS}, v26
        v_add_u32 v26, s99, v26
        """)
        for i in range(16):
            a(f"v_readlane_b32 s{sKT+i}, v26, {i}")
        a(f"""
        s_lshl_b32 s98, s{sB}, 2
        s_add_u32 s98, s98, s{sW}
        s_lshl_b32 s98, s98, 4
        s_add_u32 s98, s98, s{sH}
        s_lshl_b32 s98, s98, 11
        s_add_u32 s99, s98, {WS_OF}
        """)
        return [x[1].text.replace(f"s{sT0}", "s98").replace(f"s{sT1}", "s99") for x in a.items]

    def roles(self):
        self.a(f"""
        s_lshr_b32 s{sT0}, s{sI}, 2
        s_sub_u32 s{sT0}, s{sI}, s{sT0}
        s_sub_u32 s{sT0}, s{sT0}, 1
        s_mul_i32 s{sT1}, s{sXCD}, 7
        s_add_u32 s{sF}, s{sT0}, s{sT1}
        s_cmp_lt_u32 s{sI}, 10
        s_cselect_b32 s{sF}, s{sF}, -1
        s_cmp_eq_u32 s{sC}, 0
        s_cselect_b32 s{sF}, -1, s{sF}
        s_mul_i32 s{sT1}, s{sXCD}, 14
        s_sub_u32 s{sT0}, s{sI}, 10
        s_add_u32 s{sU}, s{sT0}, s{sT1}
        s_cmp_lt_u32 s{sT0}, 14
        s_cselect_b32 s{sU}, s{sU}, -1
        s_mul_i32 s{sROW}, s{sT}, {32*896}
        s_mul_i32 s{sT0}, s{sC}, 224
        s_add_u32 s{sROW}, s{sROW}, s{sT0}
        """)

    def cand_base(self, d, w):
        w = f"s{w}" if w >= 4 else str(w)
        self.a(f"""
        s_lshl_b32 s{sT0}, s{sT}, 1
        s_and_b32 s{sT1}, {w}, 1
        s_add_u32 s{sT0}, s{sT0}, s{sT1}
        s_mul_i32 s{sT0}, s{sT0}, {4*896}
        s_mul_i32 s{sT1}, s{sC}, 224
        s_add_u32 s{sT0}, s{sT0}, s{sT1}
        s_lshr_b32 s{sT1}, {w}, 1
        s_mul_i32 s{sT1}, s{sT1}, {WS_HH-WS_HN}
        s_add_u32 s{sT0}, s{sT0}, s{sT1}
        s_add_u32 s{d}, s{sT0}, {WS_HN}
        """)

    def srds(self, only=None):
        for r, p, n in ((SWS, 84, WS_SIZE), (SWO, 68, 448 * 896), (SOUT, 80, 2048 * 896), (SWG, 74, 448 * 3584),
                        (SWU, 76, 448 * 3584), (SWD, 78, 1792 * 896), (SWR, 72, 896)):
            if only and r not in only:
                continue
            self.a(f"""
            s_mov_b32 s{r}, s{p}
            s_mov_b32 s{r+1}, s{p+1}
            s_mov_b32 s{r+2}, {n}
            s_mov_b32 s{r+3}, 0x20000
            """)

    def dma_x(self, G):
        if G > 6:
            return []
        return lines(f"""
        s_lshl_b32 s{sT0}, s{sKG+G}, 7
        s_add_u32 m0, s{sA2}, {(G%4)*4096}
        s_add_u32 s{sT0}, s{sT0}, s{sXO}
        buffer_load_dwordx4 v1, {srd(SX)}, s{sT0} offen lds
        buffer_load_dwordx4 v2, {srd(SX)}, s{sT0} offen offset:1024 lds
        buffer_load_dwordx4 v3, {srd(SX)}, s{sT0} offen offset:2048 lds
        buffer_load_dwordx4 v4, {srd(SX)}, s{sT0} offen offset:3072 lds
        """)

    def dma_w(self, G):
        return lines(f"""
        s_mul_i32 s{sKG+G}, s{sKG+G}, {64*2688}
        s_add_u32 m0, s{sA3}, {L_W+G*3072}
        s_add_u32 s{sKG+G}, s{sKG+G}, s{sA1}
        s_sub_u32 s{sT1}, s{sKG+G}, 128
        buffer_load_dwordx4 v5, {srd(SWQ)}, s{sKG+G} offen lds
        buffer_load_dwordx4 v5, {srd(SWQ)}, s{sT1} offen offset:1024 lds
        """)

    def dma_q(self, G):
        return [f"s_add_u32 m0, s{sA3}, {L_W+G*3072+2048}", f"s_sub_u32 s{sT1}, s{sKG+G}, 896",
                f"buffer_load_dwordx4 v5, {srd(SWQ)}, s{sT1} offen lds"]

    LA = 2
    HMAP = sum(h << (4 * k) for k, h in enumerate(range(16)))
    TSV = 'v29'
    ATS = 0
    P1S = 0
    NODOT = 0
    WL = 3
    QS = 0
    FLAGAT = 24
    ROT = 2
    ROTS = 1
    NT = 0

    def touches(self):
        return []

    def p1(self):
        a = self.a
        XF, AK, AV, AQ, WF = 128, 32, 48, 64, 80
        XE = 96
        RS = 108
        KO, VO = 240, 248
        s1, s2, csK, csV = (14, 15), (16, 17), 18, 19
        WEK, WEV = 100, 104
        queue = [("x", 0)] * 4 + [("w", 0)] * 2 + [("l", 0)] * (1 if self.LIN and self.LINP == 1 else 0) + [("x", 1)] * 4

        def newer(tag):
            k = max(i for i, t in enumerate(queue) if t == tag)
            return len(queue) - 1 - k

        def xstats(G):
            for n in range(4 * G, 4 * G + 4):
                for i in range(4):
                    a(f"v_dot2c_f32_bf16 v{s1[i%2]}, s{sONE}, v{XF+4*n+i}")
                    a(f"v_dot2c_f32_bf16 v{s2[i%2]}, v{XF+4*n+i}, v{XF+4*n+i}")

        WBS = ([80, 88, 240, 248], [64, 72, 108, 116])

        def xreads(G):
            return [f"ds_read_b128 {vr(XF+4*(4*G+q),4)}, v{6+q} offset:{(G%4)*4096}" for q in range(4)] if G < 7 else []

        def wreads(G):
            WB = WBS[G % 2]
            return [f"ds_read_b64_tr_b16 {vr(WB[p]+4*t+2*hlf,2)}, v{10+p} offset:{G*3072+t*1024+hlf*256}"
                    for p in range(4) for t in range(2) for hlf in range(2)]

        issued = {("x", 0), ("w", 0), ("x", 1)}

        def batch(*items):
            r = []
            for kind, g in items:
                if g <= 6 and (kind, g) not in issued:
                    issued.add((kind, g))
                    r += self.dma_w(g) if kind == "w" else self.dma_x(g)
                    queue.extend([(kind, g)] * (2 if kind == "w" else 4))
            return r

        def last_of(*tags):
            return min(newer(t) for t in tags if t in issued)

        WL = self.WL
        a(f"s_waitcnt vmcnt({newer(('x', 0))})")
        for x in xreads(0):
            a(x)
        self.stamp("x0")
        for x in batch(("w", 1), ("x", 2)):
            a(x)
        a("s_waitcnt lgkmcnt(0)")
        xstats(0)
        a(f"s_waitcnt vmcnt({newer(('x', 1))})\ns_barrier")
        self.stamp("g0")
        for x in wreads(0)[:4] + xreads(1) + wreads(0)[4:]:
            a(x)
        for x in batch(("w", 2), ("x", 3), ("w", WL - 1)):
            a(x)
        a(f"global_load_dword v30, v31, s[84:85] sc1")
        queue.append(("n", 0))
        if self.CPS:
            a(f"""
            s_getpc_b64 s[{sM}:{sM+1}]
            s_lshl_b32 s{sT0}, s{sI}, 2
            s_add_u32 s{sT0}, s{sT0}, s{sW}
            s_lshl_b32 s{sT0}, s{sT0}, 7
            v_mov_b32 v26, s{sT0}
            global_load_dword v27, v26, s[{sM}:{sM+1}]
            """)
            queue.append(("n", 0))
        setup = self.late_setup()
        nset = -(-len(setup) // 4)
        qsched = {4: [0, 1, 2, 3], 5: [4, 5, 6]} if self.QS == 0 else {3: [0, 1, 2], 4: [3, 4, 5, 6]}
        for G in range(7):
            WB = WBS[G % 2]
            if self.P1S:
                self.stamp(f"G{G}")
            a("s_waitcnt lgkmcnt(12)")
            for i in range(4):
                a(f"v_dot2c_f32_bf16 v{csK}, s{sONE}, v{WB[0]+i}")
                a(f"v_dot2c_f32_bf16 v{csV}, s{sONE}, v{WB[0]+4+i}")
            if G < 6:
                if not self.NODOT:
                    xstats(G + 1)
            else:
                a(f"""
                ds_write_b32 v24, v{csK}
                ds_write_b32 v24, v{csV} offset:1024
                """)
            gaps = [[] for _ in range(8)]
            early = batch(("w", G + 3), ("x", G + 4), ("w", G + WL))
            for k in qsched.get(G, ()):
                early += self.dma_q(k)
                queue.append(("q", k))
            if G == 3:
                early += lines(f"""v_readfirstlane_b32 s{sNON}, v30
                s_mul_i32 s{sNON}, s{sNON}, 0x19660d
                s_add_u32 s{sNON}, s{sNON}, 0x3c6ef35f
                v_mov_b32 v30, s{sNON}""")
            if G == 4:
                early += lines(f"""v_and_b32 v22, 31, v0
                v_lshlrev_b32 v22, 5, v22
                v_add_u32 v23, {L_CS}, v22
                v_lshrrev_b32 v24, 5, v0
                s_lshl_b32 s{sT0}, s{sW}, 3
                v_lshl_add_u32 v24, v24, 2, v23
                v_add_u32 v24, s{sT0}, v24""")
            if G == 5:
                sub = Gen()
                sub.a(f"""
                v_add_f32 v14, v14, v15
                v_add_f32 v16, v16, v17
                v_permlane32_swap_b32 v14, v16
                v_add_f32 v14, v14, v16
                v_mov_b32 v16, v14
                v_permlane32_swap_b32 v14, v16
                """)
                sub.ln_scalars(14, 16, 26, 28, 15, 17)
                sub.a(f"""
                v_lshrrev_b32 v15, 16, v26
                v_or_b32 v15, v15, v26
                v_cndmask_b32 v{XE}, 0, v15, s[{sLO}:{sLO+1}]
                v_and_b32 v15, 31, v0
                s_lshl_b32 s{sT0}, s{sW}, 7
                s_add_u32 s{sT0}, s{sT0}, {L_RS}
                v_lshl_add_u32 v15, v15, 2, s{sT0}
                v_lshrrev_b32 v25, 5, v0
                v_lshl_add_u32 v25, v25, 4, s{sT0}
                ds_write_b32 v15, v28
                """)
                stats = [x[1].text for x in sub.a.items]
                early = early + stats[:8]
                stats = stats[8:]
            if G < 6:
                per = -(-len(early) // 3)
                for k in range(3):
                    gaps[k] = early[k * per:(k + 1) * per]
                w = wreads(G + 1)
                rd = w[:4] + xreads(G + 2) + w[4:]
                gaps[2] += setup[:nset]
                setup = setup[nset:]
                gaps[2] += [f"s_waitcnt vmcnt({last_of(('x', G+2), ('w', G+1))})", "s_barrier"]
                per = -(-len(rd) // 5)
                for k in range(5):
                    gaps[3 + k] = rd[per * k:per * k + per]
            else:
                sub = Gen()
                for mat, we in ((0, WEK), (1, WEV)):
                    r = RS + 8 * mat
                    sub.a(f"""
                    v_add_f32 v{r}, v{r}, v{r+1}
                    v_add_f32 v{r+2}, v{r+2}, v{r+3}
                    v_add_f32 v{r+4}, v{r+4}, v{r+5}
                    v_add_f32 v{r+6}, v{r+6}, v{r+7}
                    v_add_f32 v{r}, v{r}, v{r+2}
                    v_add_f32 v{r+4}, v{r+4}, v{r+6}
                    v_add_f32 v{r}, v{r}, v{r+4}
                    """)
                    sub.neg_split2(we, r, 22)
                Bc = [x[1].text for x in sub.a.items]
                gaps[0] = stats[:4] + ["s_waitcnt lgkmcnt(0)", "s_barrier"] + \
                    [f"ds_read_b128 {vr(RS+4*i,4)}, v23 offset:{(i//2)*1024+(i%2)*16}" for i in range(4)]
                A = stats[4:]
                mix = A[:6] + ["s_waitcnt lgkmcnt(0)"]
                A = A[6:]
                while A or Bc:
                    mix += A[:1] + Bc[:2]
                    A, Bc = A[1:], Bc[2:]
                per = -(-len(mix) // 7)
                for k in range(7):
                    gaps[1 + k] = mix[k * per:(k + 1) * per]
            for p in range(4):
                m = 4 * G + p
                if p == 1 and G < 6:
                    a("s_waitcnt lgkmcnt(0)")
                a(M32(AK, WB[p], XF + 4 * m, AK if m else None))
                for x in gaps[2 * p]:
                    a(x)
                a(M32(AV, XF + 4 * m, WB[p] + 4, AV if m else None))
                for x in gaps[2 * p + 1]:
                    a(x)
        a(M32(AK, WEK, XE, AK))
        a("s_waitcnt lgkmcnt(0)")
        for g in range(4):
            a(f"ds_read_b128 {vr(RS+4*g,4)}, v25 offset:{g*32}")
        a(M32(AV, XE, WEV, AV))
        a(f"""
        v_lshlrev_b32 v1, 4, v0
        v_and_b32 v22, 31, v0
        v_cmp_gt_u32 vcc, 28, v22
        v_mov_b32 v14, s{sONE}
        v_mov_b32 v27, 0x3f80
        v_cndmask_b32 v15, 0, -1, vcc
        v_cmp_eq_u32 vcc, 28, v22
        """)
        for i in range(8):
            a(f"v_pk_mul_f32 {vr(AK+2*i,2)}, {vr(AK+2*i,2)}, {vr(28,2)} op_sel_hi:[1,0]")
        a("v_cndmask_b32 v22, 0, v14, vcc")
        for i in range(8):
            a(f"v_cvt_pk_bf16_f32 v{KO+i}, v{AK+2*i}, v{AK+2*i+1}")
            if i == 3:
                a(f"buffer_store_dwordx4 {vr(KO,4)}, v1, {srd(SWS)}, s{sKT} offen sc1")
        a(f"""
        v_cndmask_b32 v{KO+6}, v14, v{KO+6}, s[{sLO}:{sLO+1}]
        v_cndmask_b32 v{KO+7}, v27, v{KO+7}, s[{sLO}:{sLO+1}]
        buffer_store_dwordx4 {vr(KO+4,4)}, v1, {srd(SWS)}, s{sKT} offen offset:1024 sc1
        s_waitcnt lgkmcnt(0)
        """)
        for hf in range(2):
            for i in range(4 * hf, 4 * hf + 4):
                a(f"v_pk_mul_f32 {vr(AV+2*i,2)}, {vr(AV+2*i,2)}, {vr(RS+2*i,2)}")
            for i in range(4 * hf, 4 * hf + 4):
                a(f"v_cvt_pk_bf16_f32 v{VO+i}, v{AV+2*i}, v{AV+2*i+1}")
            for i in range(4 * hf, 4 * hf + 4):
                a(f"v_and_or_b32 v{VO+i}, v{VO+i}, v15, v22")
            a(f"buffer_store_dwordx4 {vr(VO+4*hf,4)}, v1, {srd(SWS)}, s{sKT} offen offset:{2048+1024*hf} sc1")
        a(f"v_lshlrev_b32 v6, 2, v0\nv_add_u32 v6, 4096, v6")
        a("\n".join(self.kv_sum(KO, 7)))
        a(f"buffer_store_dword v7, v6, {srd(SWS)}, s{sKT} offen sc1")
        queue.extend([("st", 0)] * 5)
        self.stamp("kvpub")
        QR = 32
        lq = LQ(a)
        order = list(range(20)) + [24, 20, 21, 22, 23, 25, 26, 27]
        stage_end = {0: 1, 8: 4, 20: 6}

        def qread(n):
            G, p = divmod(order[n], 4)
            if n in stage_end:
                if self.P1S and n:
                    self.stamp(f"q{n}")
                a(f"s_waitcnt vmcnt({newer(('q', stage_end[n]))})\ns_barrier")
            for hlf in range(2):
                lq.op(f"ds_read_b64_tr_b16 {vr(QR+4*(n%8)+2*hlf,2)}, v{10+p} offset:{G*3072+2048+hlf*256}", n)

        PD = 3
        a(f"s_mov_b32 s{sA0}, 0xffff0000")
        for n in range(PD):
            qread(n)
        U = 108
        sub = Gen()
        sub.a(f"""
        v_add_f32 v{RS}, v{RS}, v{RS+1}
        v_add_f32 v{RS+2}, v{RS+2}, v{RS+3}
        v_add_f32 v{RS+4}, v{RS+4}, v{RS+5}
        v_add_f32 v{RS+6}, v{RS+6}, v{RS+7}
        v_add_f32 v{RS}, v{RS}, v{RS+2}
        v_add_f32 v{RS+4}, v{RS+4}, v{RS+6}
        v_add_f32 v{RS}, v{RS}, v{RS+4}
        """)
        sub.neg_split2(WEV, RS, 22)
        fin = [x[1].text for x in sub.a.items]
        for n in range(28):
            lq.wait(n)
            a(M32(AQ, QR + 4 * (n % 8), XF + 4 * order[n], AQ if n else None))
            if n + PD < 28:
                qread(n + PD)
            unp = lambda fr, u, k: f"v_lshlrev_b32 v{u+2*k}, 16, v{fr+k}\nv_and_b32 v{u+2*k+1}, s{sA0}, v{fr+k}"
            add = lambda u, k: f"v_add_f32 v{20+k%2}, v{20+k%2}, v{u+k}"
            if n < 20:
                p = n % 4
                fr = QR + 4 * ((n - p) % 8)
                if p < 2:
                    a(unp(fr, U, 2 * p) + "\n" + unp(fr, U, 2 * p + 1))
                else:
                    for k in range(4 * (p - 2), 4 * (p - 2) + 4):
                        a(add(U, k))
            elif n in (20, 21):
                for k in range(4):
                    a(unp(QR + 4 * (n % 8), U + 8 * (n - 20), k))
            elif n == 22:
                for k in range(16):
                    a(add(U, k))
                a("v_add_f32 v20, v20, v21")
                lq.op("ds_write_b32 v24, v20 offset:2048", "cs")
            elif n == 23:
                a(f"v_mul_f32 v28, {hex(fbits(LOG2E*28**-0.5))}, v28")
                lq.wait("cs")
                a("s_barrier")
                lq.op(f"ds_read_b128 {vr(RS,4)}, v23 offset:2048", "r")
                lq.op(f"ds_read_b128 {vr(RS+4,4)}, v23 offset:2064", "r")
            if n == self.FLAGAT:
                a(f"""
                s_waitcnt vmcnt(0)
                s_mov_b64 exec, 1
                buffer_store_dword v30, v31, {srd(SWS)}, s{sKVO} offen sc1
                s_mov_b64 exec, -1
                """)
            if n == 25:
                lq.wait("r")
                a("\n".join(fin[:6]))
            if n == 26:
                a("\n".join(fin[6:]))
        if self.P1S:
            self.stamp("qmm")
        a(M32(AQ, WEV, XE, AQ))
        if self.EARLY:
            a("\n".join(self.kv_load(1, k) for k in range(5)))
        QO = 152 if self.OWN1 else 80
        for i in range(8):
            a(f"v_pk_mul_f32 {vr(AQ+2*i,2)}, {vr(AQ+2*i,2)}, {vr(28,2)} op_sel_hi:[1,0]")
        for i in range(8):
            a(f"v_cvt_pk_bf16_f32 v{QO+i}, v{AQ+2*i}, v{AQ+2*i+1}")
        a(f"""
        v_cndmask_b32 v{QO+6}, 0, v{QO+6}, s[{sLO}:{sLO+1}]
        v_cndmask_b32 v{QO+7}, 0, v{QO+7}, s[{sLO}:{sLO+1}]
        """)
        S = 32
        a(M32(S, KO, QO))
        S0 = S
        if self.OWN1:
            S = 48
        a(M32(S, KO + 4, QO + 4, S0))
        a(f"ds_write_b128 v127, {vr(QO,4)}")
        a(f"""
        v_and_b32 v2, 15, v0
        v_lshlrev_b32 v2, 2, v2
        s_mov_b32 s{sA2}, 0x00010001
        s_lshl_b32 s{sA2}, s{sA2}, s{sB}
        s_mov_b32 s{sA3}, s{sA2}
        """)
        if self.P1S:
            self.stamp("smm")
        self.rowmax16(S, 22)
        if self.force_fb:
            a("v_add_f32 v22, 0xc3480000, v22")
        self.shift_split(22, 23, 24, 25)
        a(f"""
        v_cndmask_b32 v{QO+6}, v23, v{QO+6}, s[{sLO}:{sLO+1}]
        v_cndmask_b32 v{QO+7}, v24, v{QO+7}, s[{sLO}:{sLO+1}]
        ds_write_b128 v127, {vr(QO+4,4)} offset:1024
        """)
        if self.OWN1:
            a(M32(S0, KO + 4, QO + 4, S0))
        if self.FLAGAT == 28:
            a(f"""
            s_waitcnt vmcnt({5 if self.EARLY else 0})
            s_mov_b64 exec, 1
            buffer_store_dword v30, v31, {srd(SWS)}, s{sKVO} offen sc1
            s_mov_b64 exec, -1
            """)
        a(f"""
        s_waitcnt lgkmcnt(0)
        s_barrier
        """)
        for p in range(3 if self.OWN1 else 4):
            a(f"ds_read_b128 {vr(128+8*p,4)}, v{124+p}")
            a(f"ds_read_b128 {vr(128+8*p+4,4)}, v{124+p} offset:1024")
        self.stamp("qdone")

    def rowmax16(self, S, d):
        self.a(f"""
        v_max3_f32 v{d}, v{S}, v{S+1}, v{S+2}
        v_max3_f32 v{d+1}, v{S+3}, v{S+4}, v{S+5}
        v_max3_f32 v{d}, v{d}, v{S+6}, v{S+7}
        v_max3_f32 v{d+1}, v{d+1}, v{S+8}, v{S+9}
        v_max3_f32 v{d}, v{d}, v{S+10}, v{S+11}
        v_max3_f32 v{d+1}, v{d+1}, v{S+12}, v{S+13}
        v_max3_f32 v{d}, v{d}, v{S+14}, v{S+15}
        v_max_f32 v{d}, v{d}, v{d+1}
        v_mov_b32 v{d+1}, v{d}
        v_permlane32_swap_b32 v{d}, v{d+1}
        v_max_f32 v{d}, v{d}, v{d+1}
        """)

    def shift_split(self, m, d6, d7, t):
        self.a(f"""
        v_cvt_pk_bf16_f32 v{d6}, -v{m}, -v{m}
        v_and_b32 v{d6}, 0xffff0000, v{d6}
        v_sub_f32_e64 v{d7}, -v{m}, v{d6}
        v_cvt_pk_bf16_f32 v{t}, v{d7}, v{d7}
        v_and_b32 v{t}, 0xffff0000, v{t}
        v_sub_f32 v{d7}, v{d7}, v{t}
        v_cvt_pk_bf16_f32 v{d6}, v{d6}, v{t}
        v_cvt_pk_bf16_f32 v{d7}, v{d7}, 0
        """)

    Q, O, SA, SB, TT, P = 128, 160, 32, 48, 64, 72
    KVB = (240, 224, 80, 96)
    XR2, W2, S4 = 240, 120, 21
    W2P = 40
    VTG = 116

    def seq(self, n):
        i, k = divmod(n, 4)
        return (i, (3, 0, 1, 2)[k] if i == 0 and self.OWN1 else k)

    def unit(self, i, k, extra):
        a = self.a
        Q, O, TT, P, B = self.Q, self.O, self.TT, self.P, self.KVB
        n = 4 * i + k
        qt = self.seq(n)[1]
        ni, qn = self.seq(n + 1)
        pi, qp = self.seq(max(n - 1, 0))
        buf, kn, vp = B[i % 4], B[ni % 4], B[pi % 4] + 8
        Sc, Sn = (self.SA, self.SB) if n % 2 == 0 else (self.SB, self.SA)
        ms = [M32(Sn, kn, Q + 8 * qn), M32(O + 16 * qp, vp + 4, P + 4, O + 16 * qp),
              M32(Sn, kn + 4, Q + 8 * qn + 4, Sn),
              M32(O + 16 * qt, buf + 8, P, None if i == 0 else O + 16 * qt)]
        for g in range(4):
            for x in extra.get(("pre", g), ()):
                a(x)
            if n == 0 and self.OWN1 and g < 2:
                if g == 1:
                    a("s_waitcnt lgkmcnt(4)")
                    a(ms[0])
            elif not (n == 0 and g == 1) and not (n == 63 and g in (0, 2)):
                a(ms[g])
            for x in extra.get(g, ()):
                a(x)
            tb, tp, pp = TT + 4 * (g % 2), TT + 4 * ((g + 1) % 2), P + 2 * ((g - 1) % 4)
            a(f"v_exp_f32 v{tb}, v{Sc+4*g}")
            a(f"v_exp_f32 v{tb+1}, v{Sc+4*g+1}")
            if not (n == 0 and g == 0):
                a(f"v_cvt_pk_bf16_f32 v{pp}, v{tp}, v{tp+1}")
                a(f"v_cvt_pk_bf16_f32 v{pp+1}, v{tp+2}, v{tp+3}")
            a(f"v_exp_f32 v{tb+2}, v{Sc+4*g+2}")
            a(f"v_exp_f32 v{tb+3}, v{Sc+4*g+3}")

    def kv_sum(self, buf, d):
        return [f"v_add3_u32 v{d}, v{buf+2*k}, v{buf+2*k+1}, v{d if k else 30}" for k in range(8)]

    def kv_load(self, i, part, buf=None):
        buf = self.KVB[i % 4] if buf is None else buf
        if part == 4:
            return f"buffer_load_dword v{14+i%4}, v6, {srd(SWS)}, s{sKT+i} offen sc1"
        return f"buffer_load_dwordx4 {vr(buf+4*part,4)}, v1, {srd(SWS)}, s{sKT+i} offen offset:{1024*part} sc1"

    NV = 3
    EARLY = 1
    OWN1 = 1
    POLLQ = 2

    def attention(self):
        a = self.a
        Q, O, P, TT, B = self.Q, self.O, self.P, self.TT, self.KVB
        NV = self.NV
        queue = []

        def newer(tag):
            k = max(i for i, t in enumerate(queue) if t == tag)
            return len(queue) - 1 - k

        def ld(i, part):
            queue.append((i, part))
            return self.kv_load(i, part)

        def other(text):
            if text.startswith("buffer_"):
                queue.append("o")
            return text

        first = [ld(1, k) for k in range(5)]
        if self.FLAGAT == 28 and self.EARLY:
            queue.append("f")
        if not self.EARLY:
            a("L_att:")
            a("\n".join(first))
        else:
            a("L_att:")
        if not self.OWN1:
            a("s_waitcnt lgkmcnt(4)")
            a(M32(self.SA, B[0], Q))
            a(M32(self.SA, B[0] + 4, Q + 4, self.SA))
        self.retry = []

        def check(t):
            self.retry.append(t)
            return [f"s_waitcnt vmcnt({newer((t, 4))})", f"L_kvc{t}:"] + self.kv_sum(B[t % 4], 7) + \
                [f"v_cmp_ne_u32 vcc, v7, v{14+t%4}", f"s_cbranch_vccnz L_kvr{t}", f"L_kvd{t}:"]

        late = {}
        self.first_waits = True
        late[(12, 1)] = lines(f"""
        v_and_b32 v22, 31, v0
        v_lshrrev_b32 v23, 5, v0
        v_lshlrev_b32 v23, 3, v23
        v_mul_u32_u24 v22, 896, v22""")
        late[(12, 2)] = lines(f"""
        v_add_u32 v22, v22, v23
        s_mul_i32 s{sT1}, s{sW}, 56
        s_add_u32 s{sT0}, s{sROW}, s{sT1}
        s_mul_i32 s{sT2}, s{sC}, 224
        s_add_u32 s{sT1}, s{sT1}, s{sT2}""")
        xl = [f"buffer_load_dwordx2 {vr(self.XR2+2*g,2)}, v22, {srd(SX)}, s{sT0} offen offset:{16*g}" for g in range(4)]
        wl = [f"buffer_load_dwordx2 {vr(self.W2+2*g,2)}, v23, {srd(SWR)}, s{sT1} offen offset:{16*g}" for g in range(4)]
        late[(13, 0)] = wl[:1]
        late[(13, 1)] = wl[1:2] + xl[:1]
        late[(13, 2)] = wl[2:3] + xl[1:2]
        late[(13, 3)] = wl[3:] + xl[2:3]
        late[(14, 0)] = xl[3:] + lines(f"""
        s_lshl_b32 s{sA4}, s{sW}, 8
        s_add_u32 s{sA4}, s{sA4}, {WS_CLF}
        v_lshlrev_b32 v5, 2, v0""")
        late[(14, 1)] = [f"buffer_load_dword v4, v5, {srd(SWS)}, s{sA4} offen sc1"]
        cb = []
        for p in range(3):
            cb += lines(f"""
            s_add_u32 s{sT0}, s{sW}, {p+1}
            s_and_b32 s{sT0}, s{sT0}, 3
            s_mul_i32 s{sT0}, s{sT0}, 12288
            s_add_u32 s{sT0}, s{sT0}, {L_CB+p*4096}
            v_add_u32 v{10+p}, s{sT0}, v1""")
        cb += lines(f"""
        s_mul_i32 s{sT0}, s{sW}, 12288
        s_add_u32 s{sT0}, s{sT0}, {L_CB}
        v_add_u32 v13, s{sT0}, v1
        v_mov_b32 v8, {hex(fbits(2.0**100))}""")
        late[(14, 2)], late[(14, 3)], late[(15, 0)] = cb[:7], cb[7:13], cb[13:]
        wr = lambda p, k: f"ds_write_b128 v{10+p}, {vr(O+16*p+4*k,4)} offset:{k*1024}"
        for i in range(16):
            for qt in range(4):
                ex = {}
                if i == 0 and qt == 1:
                    ex[("pre", 0)] = ["s_waitcnt lgkmcnt(0)"]
                if i == 0 and qt == 0 and self.OWN1:
                    self.late_qk = True
                pre0 = ex.get(("pre", 0), [])
                if qt == 3 and i < 15:
                    pre0 = pre0 + (check(i + 1) if i + 1 <= NV else [f"s_waitcnt vmcnt({newer((i + 1, 3))})"])
                if i == 0 and qt == 3 and self.FLAGAT == 29:
                    ex[1] = ["s_mov_b64 exec, 1", other(f"buffer_store_dword v30, v31, {srd(SWS)}, s{sKVO} offen sc1"),
                             "s_mov_b64 exec, -1"]
                if i == NV - 2 and qt == 0:
                    pre0 = pre0 + lines(f"""
                    s_waitcnt vmcnt({newer("p")})
                    L_kvpoll:
                    v_cmp_ne_u32 vcc, s{sNON}, v3
                    s_andn2_b64 vcc, vcc, s[{sA2}:{sA3}]
                    s_cbranch_vccnz L_kvpr
                    L_kvok:""")
                ex[("pre", 0)] = pre0
                if i == NV - 3 and qt == self.POLLQ:
                    ex[1] = [f"buffer_load_dword v3, v2, {srd(SWS)}, s{sKVF} offen sc1"]
                    queue.append("p")
                if i == 0:
                    t = 2 + qt // 2
                    lds_ = [ld(t, k) for k in ((0, 1) if qt % 2 == 0 else (2, 3, 4))]
                    ex[2], ex[3] = lds_[:-1], lds_[-1:]
                else:
                    ex[0] = [other(x) for x in late.get((i, qt), [])]
                    if i + 3 <= 15:
                        ex[2] = [ld(i + 3, qt)]
                        if qt == 3 and i + 3 <= NV:
                            ex[3] = [ld(i + 3, 4)]
                if i == 15:
                    if qt == 1:
                        ex[3] = [wr(0, 0)]
                    if qt == 2:
                        ex[0], ex[1], ex[2], ex[3] = [wr(0, 1)], [wr(0, 2)], [wr(0, 3)], [wr(1, 0)]
                    if qt == 3:
                        ex[0], ex[1], ex[2], ex[3] = [wr(1, 1)], [wr(1, 2)], [wr(1, 3)], [wr(2, 0)]
                self.unit(i, qt, ex)
                if i == 0 and qt == 3:
                    self.stamp("kvok")
                if i == 0 and qt == 3:
                    a("s_barrier")
                if self.ATS and qt == 3 and i in (0, 1, 2, 4, 6, 8, 10, 12, 14):
                    self.stamp(f"t{i}")
        a(f"""
        v_cvt_pk_bf16_f32 v{P+6}, v{TT+4}, v{TT+5}
        v_cvt_pk_bf16_f32 v{P+7}, v{TT+6}, v{TT+7}
        v_add_f32 v9, v{O+12}, v{O+16+12}
        v_add_f32 v9, v9, v{O+32+12}
        """)
        a(M32(O + 48, B[3] + 12, P + 4, O + 48))
        a(wr(2, 1))
        a(wr(2, 2))
        a(wr(2, 3))
        self.stamp("attn")

    def combine(self):
        a = self.a
        O = self.O
        a(f"""
        L_clpoll:
        s_waitcnt vmcnt(0)
        v_cmp_ne_u32 vcc, s{sNON}, v4
        s_cbranch_vccz L_clok
        """)
        self.spin_guard("L_clok")
        a(f"""
        buffer_load_dword v4, v5, {srd(SWS)}, s{sA4} offen sc1
        s_branch L_clpoll
        L_clok:
        v_add_f32 v9, v9, v{O+48+12}
        v_cmp_nlt_f32 vcc, v9, v8
        s_andn2_b64 vcc, vcc, s[{sLO}:{sLO+1}]
        s_cbranch_vccnz L_bad
        L_badok:
        """)
        a(f"""
        s_waitcnt lgkmcnt(0)
        s_barrier
        """)
        if self.LOC:
            a(f"""
            s_and_b32 s{sT0}, s2, 0xe7
            s_lshl_b32 s{sT0}, s{sT0}, 2
            s_add_u32 s{sT0}, s{sT0}, {WS_XID}
            v_and_b32 v26, 3, v0
            v_lshlrev_b32 v26, 5, v26
            buffer_load_dword v28, v26, {srd(SWS)}, s{sT0} offen sc1
            """)
        order = (3, 0, 1, 2)
        for k in order:
            for p in range(3):
                a(f"ds_read_b128 {vr(O+16*p+4*k,4)}, v13 offset:{p*4096+k*1024}")
        R = O + 48
        for c, k in enumerate(order):
            a(f"s_waitcnt lgkmcnt({9-3*c})")
            for i in range(2):
                r = 4 * k + 2 * i
                a(f"v_pk_add_f32 {vr(R+r,2)}, {vr(R+r,2)}, {vr(O+r,2)}")
                a(f"v_pk_add_f32 {vr(O+16+r,2)}, {vr(O+16+r,2)}, {vr(O+32+r,2)}")
            for i in range(2):
                r = 4 * k + 2 * i
                a(f"v_pk_add_f32 {vr(R+r,2)}, {vr(R+r,2)}, {vr(O+16+r,2)}")
            if c == 0:
                a(f"""
                v_mov_b32 v8, v{R+12}
                v_mov_b32 v9, v{R+12}
                v_readlane_b32 s{sT0}, v{R+13}, 32
                v_permlane32_swap_b32 v8, v9
                s_cmp_eq_u32 s{sT0}, 0
                s_cbranch_scc1 L_noredo
                s_cmp_eq_u32 s{sPASS}, 0
                s_cbranch_scc1 L_redo
                L_noredo:
                v_rcp_f32 v8, v9
                """)
        OP = 32
        for hf in range(2):
            for i in range(4 * hf, 4 * hf + 4):
                a(f"v_pk_mul_f32 {vr(R+2*i,2)}, {vr(R+2*i,2)}, {vr(8,2)} op_sel_hi:[1,0]")
            for i in range(4 * hf, 4 * hf + 4):
                a(f"v_cvt_pk_bf16_f32 v{OP+i}, v{R+2*i}, v{R+2*i+1}")
            if hf:
                a(f"""
                v_cndmask_b32 v{OP+6}, 0, v{OP+6}, s[{sLO}:{sLO+1}]
                v_cndmask_b32 v{OP+7}, 0, v{OP+7}, s[{sLO}:{sLO+1}]
                """)
            a(f"buffer_store_dwordx4 {vr(OP+4*hf,4)}, v1, {srd(SWS)}, s99 offen offset:{1024*hf} sc1")
        a(f"""
        s_or_b32 s{sT0}, s2, s{sW}
        s_cmp_lg_u32 s{sT0}, 0
        s_cbranch_scc1 L_noepoch
        s_mov_b64 exec, 1
        buffer_store_dword v30, v31, {srd(SWS)}, 0 offen sc1
        s_mov_b64 exec, -1
        L_noepoch:
        """)
        self.stamp("opub")

    def helper_head(self):
        a = self.a
        if self.PT:
            a(f"""
            v_and_b32 v22, 31, v0
            v_mul_u32_u24 v22, 896, v22
            v_lshrrev_b32 v23, 5, v0
            v_lshl_add_u32 v2, v23, 7, v22
            s_lshl_b32 s{sA0}, s{sA5}, 5
            s_add_u32 s{sA0}, s{sA0}, s{sI}
            s_mul_i32 s{sA0}, s{sA0}, {32*896}
            v_mul_u32_u24 v22, 10923, v0
            v_lshrrev_b32 v22, 16, v22
            v_mul_u32_u24 v23, 6, v22
            v_sub_u32 v23, v0, v23
            v_min_u32 v22, 9, v22
            v_mul_u32_u24 v22, 2688, v22
            v_lshl_add_u32 v3, v23, 7, v22
            v_cmp_lt_u32 vcc, 2, v23
            v_add_u32 v4, {896-384}, v3
            v_cndmask_b32 v3, v3, v4, vcc
            v_mul_u32_u24 v22, 21846, v0
            v_lshrrev_b32 v22, 16, v22
            v_mul_u32_u24 v23, 3, v22
            v_sub_u32 v23, v0, v23
            v_min_u32 v22, 13, v22
            v_mul_u32_u24 v22, 2688, v22
            v_lshl_add_u32 v4, v23, 7, v22
            s_mul_i32 s{sT0}, s{sA4}, 224
            s_and_b32 s{sT0}, s{sT0}, -128
            s_mul_i32 s{sA1}, s{sI}, {10*2688}
            s_add_u32 s{sA1}, s{sA1}, s{sT0}
            s_add_u32 s{sA1}, s{sA1}, {128*2688+896}
            s_mul_i32 s{sA2}, s{sI}, {14*2688}
            s_add_u32 s{sA2}, s{sA2}, s{sT0}
            s_mov_b32 s{SX+2}, {2048*896}
            s_mov_b32 s{SX+3}, 0x20000
            s_mov_b32 s{SWQ+2}, {448*2688}
            s_mov_b32 s{SWQ+3}, 0x20000
            s_waitcnt lgkmcnt(0)
            s_mov_b32 s{SX}, s64
            s_mov_b32 s{SX+1}, s65
            s_mov_b32 s{SWQ}, s66
            s_mov_b32 s{SWQ+1}, s67
            {f"s_sleep {self.PT-1}" if self.PT > 1 else ""}
            buffer_load_dword v10, v2, {srd(SX)}, s{sA0} offen offset:256
            buffer_load_dword v11, v3, {srd(SWQ)}, s{sA1} offen
            buffer_load_dword v12, v2, {srd(SX)}, s{sA0} offen offset:512
            s_mov_b32 exec_hi, 0
            buffer_load_dword v13, v2, {srd(SX)}, s{sA0} offen offset:768
            s_mov_b32 exec_hi, -1
            buffer_load_dword v14, v4, {srd(SWQ)}, s{sA2} offen
            """)
        a("s_waitcnt lgkmcnt(0)")
        self.common_setup()
        self.a(f"""
        s_waitcnt lgkmcnt(0)
        s_mul_i32 s{sNON}, s{sNON}, 0x19660d
        s_add_u32 s{sNON}, s{sNON}, 0x3c6ef35f
        v_mov_b32 v30, s{sNON}
        """)
        return 0

    def helper(self, nbar):
        a = self.a
        a("L_helper:")
        done = self.helper_head()
        nbar -= done
        if self.CPF:
            a(f"""
            s_getpc_b64 s[52:53]
            L_pc:
            s_sub_u32 s52, s52, L_pc-{NAME}
            s_subb_u32 s53, s53, 0
            s_mul_i32 s{sT0}, s{sI}, {self.CPF*128}
            v_min_u32 v25, {self.CPF-1}, v0
            v_lshl_add_u32 v25, v25, 7, s{sT0}
            v_min_u32 v25, L_last-{NAME}, v25
            """)
        a(f"""
        v_lshlrev_b32 v1, 4, v0
        v_mov_b32 v4, -1
        v_mov_b32 v5, -1
        v_mov_b32 v6, -1
        v_mov_b32 v7, -1
        v_mov_b32 v31, 0
        v_lshrrev_b32 v22, 4, v0
        v_lshrrev_b32 v23, 2, v0
        v_sub_u32 v23, v23, v22
        v_and_b32 v23, 3, v23
        v_mul_u32_u24 v23, 56, v23
        v_mul_u32_u24 v22, 896, v22
        v_add_u32 v22, v22, v23
        v_and_b32 v23, 3, v0
        v_lshlrev_b32 v23, 4, v23
        v_min_u32 v23, 40, v23
        v_add_u32 v2, v22, v23
        v_lshlrev_b32 v3, 7, v0
        """)
        a(f"""
        v_mul_u32_u24 v22, 4682, v0
        v_lshrrev_b32 v22, 16, v22
        v_mul_u32_u24 v27, 14, v22
        v_sub_u32 v23, v0, v27
        v_mul_u32_u24 v27, 896, v22
        v_lshl_add_u32 v8, v23, 4, v27
        v_lshrrev_b32 v22, 2, v0
        v_min_u32 v22, 13, v22
        v_mul_u32_u24 v22, 3584, v22
        v_and_b32 v23, 3, v0
        v_lshl_add_u32 v22, v23, 7, v22
        s_mul_i32 s{sA0}, s{sXCD}, {7*32*896}
        s_mul_i32 s{sT1}, s{sI}, {49*128}
        s_add_u32 s{sA0}, s{sA0}, s{sT1}
        s_mul_i32 s{sA1}, s{sI}, {14*3584}
        s_mul_i32 s{sT1}, s{sXCD}, 448
        s_and_b32 s{sT1}, s{sT1}, -128
        s_add_u32 s{sA1}, s{sA1}, s{sT1}
        s_lshr_b32 s{sA2}, s{sI}, 2
        s_mul_i32 s{sA2}, s{sA2}, {self.WOROT}
        s_lshr_b32 s{sA2}, s{sA2}, 1
        s_mul_i32 s{sA4}, s{sC}, 224
        s_mul_i32 s{sA5}, s{sI}, {self.TSTAG}
        s_lshr_b32 s{sA5}, s{sA5}, 3
        s_add_u32 s{sA5}, s{sA5}, {self.TOFF}
        s_lshl_b32 s{sT0}, s{sB}, 6
        s_add_u32 s{sT0}, s{sT0}, s{sH}
        s_lshl_b32 s{sT0}, s{sT0}, 11
        s_add_u32 s64, s{sT0}, {WS_OF}
        s_add_u32 s65, s64, 32768
        s_add_u32 s66, s65, 32768
        s_add_u32 s67, s66, 32768
        s_lshl_b32 s{sT0}, s{sT}, 2
        s_add_u32 s{sT0}, s{sT0}, s{sC}
        s_lshl_b32 s{sT0}, s{sT0}, 9
        s_add_u32 s72, s{sT0}, {WS_STATS}
        s_lshl_b32 s{sT1}, s{sT}, 7
        s_add_u32 s73, s{sT1}, {WS_KEYS}
        s_cmp_eq_u32 s{sC}, 0
        s_cselect_b32 s73, s73, {OOB}
        s_mul_i32 s{sT0}, s{sF}, 14336
        s_add_u32 s74, s{sT0}, {WS_Y}
        s_add_u32 s75, s74, 4096
        s_add_u32 s76, s75, 4096
        s_add_u32 s77, s76, 4096
        s_lshl_b32 s{sT0}, s2, 2
        s_add_u32 s78, s{sT0}, {WS_CLF}
        """)
        for w in range(4):
            self.cand_base(68 + w, w)
        for nb in range(nbar):
            if self.KVT and nb == self.KVT - 1:
                a(f"""
                s_lshl_b32 s{sT0}, s{sH}, 4
                s_add_u32 s{sT0}, s{sT0}, s{sB}
                s_mul_i32 s{sT0}, s{sT0}, {4*KVS}
                s_add_u32 s{sT0}, s{sT0}, {WS_KV}
                buffer_load_dword v27, v3, {srd(SWS)}, s{sT0} offen sc1
                s_add_u32 s{sT0}, s{sT0}, 8192
                buffer_load_dword v27, v3, {srd(SWS)}, s{sT0} offen sc1
                s_add_u32 s{sT0}, s{sT0}, 8192
                s_mov_b64 exec, 0xff
                buffer_load_dword v27, v3, {srd(SWS)}, s{sT0} offen sc1
                s_mov_b64 exec, -1
                """.replace("buffer_load_dword v27", "buffer_atomic_add v31" if self.KVA else "buffer_load_dword v27"))
            if self.CPF and nb == self.CPB:
                a("global_load_dword v26, v25, s[52:53]")
            a("s_barrier")
        st = lambda v, so, off=0: f"buffer_store_dwordx4 v[4:7], v{v}, {srd(SWS)}, s{so} offen offset:{off} sc1"
        cl = [[st(1, 64 + w, 1024 * k)] for w in range(4) for k in range(2)]
        cl += [["s_mov_b32 exec_hi, 0xffffff", st(8, 68 + w), "s_mov_b32 exec_hi, -1"] for w in range(4)]
        cl += [["s_mov_b32 exec_hi, 0", st(1, 72), "s_mov_b64 exec, 3", st(1, 73), "s_mov_b64 exec, -1"]]
        if self.LOC:
            cl += [[f"s_getreg_b32 s{sT0}, hwreg(HW_REG_XCC_ID)", f"v_mov_b32 v21, s{sT0}", "s_mov_b64 exec, 1",
                    f"buffer_store_dword v21, v31, {srd(SWS)}, s78 offen offset:{WS_XID-WS_CLF} sc1", "s_mov_b64 exec, -1"]]
        ycl = [st(1, 74 + k // 4, 1024 * (k % 4)) for k in range(14)]
        ycl[13] += f"\ns_lshl_b32 s{sT0}, s{sF}, 7\ns_add_u32 s{sT0}, s{sT0}, {WS_RES}\ns_mov_b64 exec, 0xff\n" + \
            st(1, sT0) + "\ns_mov_b64 exec, -1"
        if self.NOCL:
            cl, ycl = [], []
        for n in range(28):
            a(f"""
            s_mul_i32 s{sWOS}, s{sA2}, {16*896}
            s_add_u32 s{sWOS}, s{sWOS}, s{sA4}
            s_lshl_b32 s{sWOM}, s{sA2}, 12
            """)
            for k in range(4):
                a(f"""
                s_add_u32 m0, s{sWOM}, {1024*k}
                s_add_u32 s{sT0}, s{sWOS}, {4*896*k}
                buffer_load_dwordx4 v2, {srd(SWO)}, s{sT0} offen lds
                """)
            if cl:
                a("\n".join(cl.pop(0)))
            if ycl:
                a(f"s_cmp_lt_i32 s{sF}, 0\ns_cbranch_scc1 L_h_y{n}\n{ycl.pop(0)}\nL_h_y{n}:")
            if self.TOUCH:
                a(f"""
                s_cmp_lg_u32 s{sA5}, {n}
                s_cbranch_scc1 L_h_t{n}
                buffer_load_dword v20, v3, {srd(SWD)}, s{sA0} offen
                buffer_load_dword v20, v22, {srd(SWG)}, s{sA1} offen
                buffer_load_dword v20, v22, {srd(SWU)}, s{sA1} offen
                L_h_t{n}:
                """)
            a(f"""
            s_waitcnt vmcnt({self.WOQ})
            s_add_u32 s{sA2}, s{sA2}, 1
            s_cmp_eq_u32 s{sA2}, 28
            s_cselect_b32 s{sA2}, 0, s{sA2}
            """)
            if n == 13 + -(-self.WOQ // 4):
                a(f"""
                s_mov_b64 exec, 1
                buffer_store_dword v30, v31, {srd(SWS)}, s78 offen sc1
                s_mov_b64 exec, -1
                """)
        a(f"""
        s_waitcnt vmcnt(0)
        s_cmp_lt_i32 s{sF}, 0
        s_cbranch_scc1 L_h_end
        v_lshrrev_b32 v22, 2, v0
        v_mul_u32_u24 v22, 3584, v22
        v_and_b32 v23, 3, v0
        v_lshl_add_u32 v22, v23, 4, v22
        v_lshlrev_b32 v23, 12, v23
        v_add_u32 v23, {L_CB+3072+32*16+4}, v23
        s_lshl_b32 s{sA0}, s{sF}, 6
        s_mul_i32 s{sA1}, s{sF}, {32*896}
        """)
        if True:
            for j in range(28):
                a(f"""
                s_add_u32 s{sT2}, s{sA0}, {j*16*3584}
                buffer_load_dwordx4 {vr(32+8*j,4)}, v22, {srd(SWG)}, s{sT2} offen
                buffer_load_dwordx4 {vr(36+8*j,4)}, v22, {srd(SWU)}, s{sT2} offen
                """)
        a(f"""
        L_h_comb:
        s_barrier
        ds_read_b32 v24, v23
        s_waitcnt lgkmcnt(0)
        v_cmp_ne_u32 vcc, 0, v24
        s_cbranch_vccz L_h_go
        s_cmp_lg_u32 s{sPASS}, 0
        s_cbranch_scc1 L_h_go
        s_mov_b32 s{sPASS}, 1
        s_barrier
        s_barrier
        s_barrier
        s_barrier
        s_branch L_h_comb
        L_h_go:
        s_barrier
        s_barrier
        """)

        def wdma(lds, off):
            for k in range(14):
                if k % 4 == 0:
                    a(f"s_mov_b32 m0, {lds+k*1024}\ns_add_u32 s{sT2}, s{sA1}, {off+k*1024}")
                a(f"buffer_load_dwordx4 v1, {srd(SWD)}, s{sT2} offen offset:{(k%4)*1024} lds")

        wdma(L_WD, 0)
        a("s_waitcnt vmcnt(14)\ns_barrier")
        wdma(L_WD2, 14336)
        for j in range(28):
            a(f"ds_write_b128 v1, {vr(32+8*j,4)} offset:{L_WG+j*1024}")
            a(f"ds_write_b128 v1, {vr(36+8*j,4)} offset:{L_WU+j*1024}")
        a("s_waitcnt lgkmcnt(0)")
        a("s_waitcnt vmcnt(0)\nL_h_end:\nL_last:\ns_endpgm")

    WOROT = 7
    TSTAG = 7
    TOFF = 0
    PRIO = 0
    FREG = 1
    KVT = 0
    KVA = 0
    LIN = 0
    LINP = 0
    PT = 0
    CPS = 1
    CPF = 11
    CPB = 1
    KVC = -1
    KVCN = 16
    WSB = 0
    NOCL = 0
    NOWO = 0
    TOUCH = 1
    HD1 = 0
    HD2 = 0
    HD3 = 0
    WOQ = 8

    def redo(self):
        a = self.a
        Q, B, S = self.Q, self.KVB, self.SA
        a(f"""
        L_bad:
        v_mov_b32 v8, 1.0
        v_cndmask_b32 v{self.O+48+13}, v8, v{self.O+48+13}, s[{sLO}:{sLO+1}]
        s_mov_b32 exec_lo, 0
        ds_write_b32 v10, v8 offset:3076
        ds_write_b32 v11, v8 offset:3076
        ds_write_b32 v12, v8 offset:3076
        s_mov_b32 exec_lo, -1
        s_branch L_badok
        """)
        for t in self.retry:
            a(f"L_kvr{t}:")
            self.spin_guard(f"L_kvd{t}")
            a("\n".join(self.kv_load(t, k) for k in range(5)))
            a(f"s_waitcnt vmcnt(0)\ns_branch L_kvc{t}")
        a("L_kvpr:")
        self.spin_guard("L_kvok")
        a(f"""
        buffer_load_dword v3, v2, {srd(SWS)}, s{sKVF} offen sc1
        s_waitcnt vmcnt(0)
        s_branch L_kvpoll
        """)
        MX = 8
        a(f"""
        L_redo:
        s_mov_b32 s{sPASS}, 1
        s_waitcnt vmcnt(0) lgkmcnt(0)
        s_barrier
        s_mov_b32 s{sA5}, 16
        s_lshl_b32 s{sT2}, s{sH}, 6
        s_add_u32 s{sT2}, s{sT2}, s{sW}
        s_mul_i32 s{sT2}, s{sT2}, {KVS}
        s_add_u32 s{sT2}, s{sT2}, {WS_KV}
        """)
        for p in range(4):
            a(f"v_mov_b32 v{MX+p}, 0xff800000")
        a(f"""
        L_redo_loop:
        buffer_load_dwordx4 {vr(B[1],4)}, v1, {srd(SWS)}, s{sT2} offen sc1
        buffer_load_dwordx4 {vr(B[1]+4,4)}, v1, {srd(SWS)}, s{sT2} offen offset:1024 sc1
        s_add_u32 s{sT2}, s{sT2}, {4*KVS}
        s_waitcnt vmcnt(0)
        """)
        for p in range(4):
            a(M32(S, B[1], Q + 8 * p))
            a(M32(S, B[1] + 4, Q + 8 * p + 4, S))
            self.rowmax16(S, 22)
            a(f"v_max_f32 v{MX+p}, v{MX+p}, v22")
        a(f"""
        s_sub_u32 s{sA5}, s{sA5}, 1
        s_cmp_lg_u32 s{sA5}, 0
        s_cbranch_scc1 L_redo_loop
        """)
        for p in range(4):
            a(f"""
            s_add_u32 s{sT0}, s{sW}, {p+1}
            s_and_b32 s{sT0}, s{sT0}, 3
            s_lshl_b32 s{sT0}, s{sT0}, 10
            s_add_u32 s{sT0}, s{sT0}, {L_CB}
            v_lshl_add_u32 v{12+p}, v0, 2, s{sT0}
            s_lshl_b32 s{sT1}, s{sW}, 8
            v_add_u32 v16, s{sT1}, v{12+p}
            ds_write_b32 v16, v{MX+p}
            """)
        a("s_waitcnt lgkmcnt(0)\ns_barrier")
        for p in range(4):
            for k in range(4):
                a(f"ds_read_b32 v{16+k}, v{12+p} offset:{k*256}")
            q6, q7 = Q + 8 * p + 6, Q + 8 * p + 7
            a(f"""
            s_waitcnt lgkmcnt(0)
            v_max3_f32 v16, v16, v17, v18
            v_max_f32 v16, v16, v19
            v_lshlrev_b32 v17, 16, v{q6}
            v_and_b32 v18, 0xffff0000, v{q6}
            v_lshlrev_b32 v19, 16, v{q7}
            v_add_f32 v18, v18, v19
            v_add_f32 v17, v17, v18
            v_sub_f32 v22, v16, v17
            """)
            self.shift_split(22, 23, 24, 25)
            a(f"""
            v_cndmask_b32 v{q6}, v23, v{q6}, s[{sLO}:{sLO+1}]
            v_cndmask_b32 v{q7}, v24, v{q7}, s[{sLO}:{sLO+1}]
            """)
        for part in range(4):
            a(self.kv_load(0, part))
        if self.EARLY:
            a("\n".join(self.kv_load(1, k) for k in range(5)))
        a(f"""
        s_waitcnt vmcnt(0)
        s_barrier
        """)
        if self.OWN1:
            a(M32(S, B[0], Q + 24))
            a(M32(S, B[0] + 4, Q + 28, S))
            a("s_nop 11")
        a(f"""
        s_branch L_att
        """)

    def finish(self):
        a = self.a
        a("L_fin:")
        if self.amp:
            a(f"""
            s_cmp_lg_u32 s2, {self.ampg}
            s_cbranch_scc1 L_end
            s_cmp_lg_u32 s{sW}, 0
            s_cbranch_scc1 L_end
            s_sub_u32 s84, s28, s100
            s_min_u32 s84, s84, 20000
            s_lshl_b32 s84, s84, 3
            s_memrealtime s[100:101]
            s_waitcnt lgkmcnt(0)
            L_amp:
            s_memrealtime s[82:83]
            s_waitcnt lgkmcnt(0)
            s_sub_u32 s82, s82, s100
            s_cmp_lt_u32 s82, s84
            s_cbranch_scc1 L_amp
            """)
        if self.ts:
            a(f"""
            s_lshl_b32 s{sT0}, s2, 2
            s_add_u32 s{sT0}, s{sT0}, s{sW}
            s_lshl_b32 s{sT0}, s{sT0}, 8
            s_add_u32 s{sT0}, s{sT0}, {WS_TS}
            s_mov_b64 exec, -1
            v_lshlrev_b32 v2, 2, v0
            buffer_store_dword {self.TSV}, v2, {srd(SWS)}, s{sT0} offen
            """)
        a("L_end:\ns_endpgm")

    def tail(self):
        pass

    def build(self):
        self.prologue()
        self.p1()
        nbar = sum(1 for k, x in self.a.items if k == "i" and x.op == "s_barrier")
        self.attention()
        self.combine()
        self.tail()
        self.finish()
        self.redo()
        self.helper(nbar + 1)
        npad = self.a.pad()
        body = self.a.text()
        hdr = open(os.path.join(os.path.dirname(os.path.abspath(__file__)), "header.txt")).read()
        out = hdr + f"""; @launch grid=(256,1,1) block=(320,1,1) lds={LDS_BYTES}
.amdgcn_target "amdgcn-amd-amdhsa--gfx950"
.text
.globl {NAME}
.p2align 8
.type {NAME},@function
{NAME}:
{body}
.section .rodata,"a"
.p2align 6
.amdhsa_kernel {NAME}
  .amdhsa_next_free_vgpr 256
  .amdhsa_next_free_sgpr 102
  .amdhsa_accum_offset 256
  .amdhsa_group_segment_fixed_size 0
  .amdhsa_kernarg_size 88
  .amdhsa_user_sgpr_count 2
  .amdhsa_user_sgpr_kernarg_segment_ptr 1
  .amdhsa_system_sgpr_workgroup_id_x 1
  .amdhsa_float_denorm_mode_32 3
.end_amdhsa_kernel
"""
        return out, npad


class Full(Gen):

    def piece_idx(self, i, tok, ch):
        self.a(f"""
        v_add_u32 v{ch}, {64*i}, v0
        v_mul_u32_u24 v{tok}, 4682, v{ch}
        v_lshrrev_b32 v{tok}, 16, v{tok}
        v_mul_u32_u24 v27, 14, v{tok}
        v_sub_u32 v{ch}, v{ch}, v27
        s_lshl_b32 s{sT0}, s{sW}, 3
        v_add_u32 v{tok}, s{sT0}, v{tok}
        """)

    def sentinel_any(self, regs, t):
        a = self.a
        regs = list(regs)
        a(f"v_max3_u32 v{t}, v{regs[0]}, v{regs[1]}, v{regs[2] if len(regs) > 2 else regs[1]}")
        for k in range(3, len(regs), 2):
            a(f"v_max3_u32 v{t}, v{t}, v{regs[k]}, v{regs[min(k+1, len(regs)-1)]}")
        a(f"v_cmp_eq_u32 vcc, -1, v{t}")

    def unpack(self, d, s):
        self.a(f"v_lshlrev_b32 v{d}, 16, v{s}\nv_and_b32 v{d+1}, 0xffff0000, v{s}")

    def tr_write(self, src, arr):
        a = self.a
        for g in range(3):
            a(f"ds_write_b64 v14, {vr(src+2*g,2)} offset:{arr*7680+16*g}")
        a(f"""
        s_mov_b32 exec_hi, 0
        ds_write_b64 v14, {vr(src+6,2)} offset:{arr*7680+48}
        s_mov_b32 exec_hi, -1
        """)

    def cand_write(self, src, off):
        a = self.a
        a(f"s_mov_b64 exec, s[{sM}:{sM+1}]")
        for g in range(3):
            a(f"ds_write_b64 v13, {vr(src+2*g,2)} offset:{off+16*g}")
        a(f"""
        s_mov_b32 exec_hi, 0
        ds_write_b64 v13, {vr(src+6,2)} offset:{off+48}
        s_mov_b64 exec, -1
        """)

    def p3(self):
        a = self.a
        XR2, W2, S4 = self.XR2, self.W2, self.S4
        XC, ACC, OFR, WR = 64, 48, 128, 80
        a(f"""
        v_lshrrev_b32 v23, 5, v0
        v_lshrrev_b32 v25, 2, v0
        v_and_b32 v25, 3, v25
        v_add_u32 v24, s{sW}, v25
        v_and_b32 v24, 3, v24
        v_lshl_add_u32 v25, v23, 2, v25
        v_lshlrev_b32 v25, 8, v25
        v_lshl_add_u32 v25, v24, 6, v25
        v_lshrrev_b32 v26, 4, v0
        v_and_b32 v26, 1, v26
        v_lshl_add_u32 v25, v26, 5, v25
        v_lshrrev_b32 v27, 1, v0
        v_and_b32 v27, v27, v26
        v_and_b32 v26, 3, v0
        v_xor_b32 v26, v26, v27
        v_lshl_add_u32 v25, v26, 3, v25
        v_lshlrev_b32 v23, 11, v23
        """)
        for qr in range(4):
            a(f"""
            s_add_u32 s{sT0}, s{sW}, {qr}
            s_and_b32 s{sT0}, s{sT0}, 3
            s_lshl_b32 s{sT1}, s{sT0}, 13
            s_add_u32 s{sT1}, s{sT1}, {L_CB}
            s_mul_i32 s{sT0}, s{sT0}, 28672
            v_add_u32 v{2+qr}, s{sT1}, v1
            v_add_u32 v{6+qr}, s{sT0}, v25
            v_sub_u32 v{10+qr}, v{6+qr}, v23
            """)
        for k in range(8):
            self.unpack(XC + 2 * k, XR2 + k)
        a(f"""
        v_cndmask_b32 v{self.W2P+6}, 0, v{W2+6}, s[{sLO}:{sLO+1}]
        v_cndmask_b32 v{self.W2P+7}, 0, v{W2+7}, s[{sLO}:{sLO+1}]
        v_mov_b32 v{S4}, 0
        """)
        for k in range(6):
            a(f"v_mov_b32 v{self.W2P+k}, v{W2+k}")
        W2 = self.W2P
        for k in range(8):
            a(f"v_dot2c_f32_bf16 v{S4}, s{sONE}, v{W2+k}")
        a(f"""
        s_lshl_b32 s{sA0}, s{sT}, 2
        s_add_u32 s{sA0}, s{sA0}, s{sW}
        s_lshl_b32 s{sA0}, s{sA0}, 13
        s_add_u32 s{sA0}, s{sA0}, {WS_OF}
        s_add_u32 s{sA1}, s{sA0}, 4096
        s_lshl_b32 s{sA2}, s{sW}, 13
        s_add_u32 s{sA2}, s{sA2}, {L_CB}
        s_add_u32 s{sA3}, s{sA2}, 4096
        s_waitcnt vmcnt(0)
        """)
        if self.LOC:
            a(f"""
            s_getreg_b32 s{sT0}, hwreg(HW_REG_XCC_ID)
            v_cmp_ne_u32 s[{sLOC}:{sLOC+1}], s{sT0}, v28
            """)
        a("s_barrier")
        self.stamp("oack")
        WR, OFR, ORN = 128, 80, 12

        def odma():
            for hf in range(2):
                a(f"s_mov_b32 m0, s{sA2+hf}")
                for k in range(4):
                    a(f"buffer_load_dwordx4 v1, {srd(SWS)}, s{sA0+hf} offen offset:{1024*k} sc1 lds")

        odma()
        for n in range(32):
            qr, hl, j = n // 8, (n % 8) // 2, n % 2
            a(f"ds_read_b64_tr_b16 {vr(WR+4*n,2)}, v{6+qr} offset:{hl*7168+j*4096}")
            a(f"ds_read_b64_tr_b16 {vr(WR+4*n+2,2)}, v{(10 if j else 6)+qr} offset:{hl*7168+j*4096+2048}")
        a("s_branch L_owait\nL_odma:")
        odma()
        a("L_owait:\ns_waitcnt vmcnt(0)")
        lq = LQ(a)

        def oread(n):
            lq.op(f"ds_read_b128 {vr(OFR+4*(n%ORN),4)}, v{2+n//8} offset:{(n%8)*1024}", ("o", n))

        self.stamp("odma")
        for n in range(8):
            oread(n)
        onext = 8
        for n in range(32):
            lq.wait(("o", n))
            a(M32(ACC, WR + 4 * n, OFR + 4 * (n % ORN), ACC if n else XC))
            if n < 2:
                lq.wait(("o", 4 * n + 3))
                for k in range(8):
                    r = OFR + 16 * n + 2 * k
                    t = 22 + k % 2
                    a(f"v_max3_u32 v{t}, v{r}, v{r+1}, v{t if n or k > 1 else r}")
            if n == 1:
                a(f"""
                v_max_u32 v22, v22, v23
                v_cmp_eq_u32 vcc, -1, v22
                s_cbranch_vccz L_ook
                """)
                self.spin_guard("L_ook")
                a(f"""
                s_branch {"L_ohint" if self.OL else "L_odma"}
                L_ook:
                s_barrier
                """)
            if n >= 2:
                for _ in range(2):
                    if onext < 32 and onext - ORN < n - 0 and onext <= n + 8:
                        oread(onext)
                        onext += 1
        self.stamp("gemm")
        H2 = 32
        a(f"""
        v_and_b32 v22, 31, v0
        v_lshrrev_b32 v23, 5, v0
        v_lshlrev_b32 v23, 3, v23
        v_lshl_add_u32 v17, v22, 4, v23
        s_lshl_b32 s{sT0}, s{sW}, 9
        s_add_u32 s{sT0}, s{sT0}, {L_ST}
        v_add_u32 v18, s{sT0}, v17
        v_add_u32 v19, {L_ST}, v17
        v_mul_u32_u24 v22, 240, v22
        s_mul_i32 s{sT0}, s{sW}, 56
        s_add_u32 s{sT0}, s{sT0}, {L_TR}
        v_add3_u32 v14, v22, v23, s{sT0}
        v_mov_b32 v24, 0
        v_mov_b32 v25, 0
        v_mov_b32 v26, 0
        """)
        for k in range(8):
            a(f"v_cvt_pk_bf16_f32 v{H2+k}, v{ACC+2*k}, v{ACC+2*k+1}")
        a(f"""
        v_cndmask_b32 v{H2+6}, 0, v{H2+6}, s[{sLO}:{sLO+1}]
        v_cndmask_b32 v{H2+7}, 0, v{H2+7}, s[{sLO}:{sLO+1}]
        """)
        for k in range(8):
            a(f"v_dot2c_f32_bf16 v24, s{sONE}, v{H2+k}")
            a(f"v_dot2c_f32_bf16 v26, v{H2+k}, v{H2+k}")
            a(f"v_dot2c_f32_bf16 v25, v{W2+k}, v{H2+k}")
        a(f"""
        v_permlane32_swap_b32 v24, v26
        v_permlane32_swap_b32 v25, v{S4}
        v_add_f32 v40, v24, v26
        v_add_f32 v41, v25, v{S4}
        ds_write_b64 v18, v[40:41]
        s_lshl_b32 s{sA0}, s{sT}, 11
        s_add_u32 s{sA0}, s{sA0}, {WS_STATS}
        s_lshl_b32 s{sT0}, s{sC}, 9
        s_add_u32 s{sA1}, s{sA0}, s{sT0}
        s_lshl_b32 s{sT0}, s{sW}, 3
        s_lshl_b32 s{sT0}, 0xff, s{sT0}
        s_waitcnt lgkmcnt(0)
        s_barrier
        ds_read_b64 v[40:41], v19
        ds_read_b64 v[42:43], v19 offset:512
        ds_read_b64 v[44:45], v19 offset:1024
        ds_read_b64 v[46:47], v19 offset:1536
        s_waitcnt lgkmcnt(2)
        v_pk_add_f32 v[40:41], v[40:41], v[42:43]
        s_waitcnt lgkmcnt(0)
        v_pk_add_f32 v[44:45], v[44:45], v[46:47]
        v_pk_add_f32 v[40:41], v[40:41], v[44:45]
        v_mov_b32 v42, v40
        v_mov_b32 v43, v41
        v_permlane32_swap_b32 v40, v42
        v_permlane32_swap_b32 v41, v43
        s_mov_b32 exec_lo, s{sT0}
        s_mov_b32 exec_hi, 0
        """)
        if self.LOC:
            a(f"""
            s_cmp_eq_u64 s[{sLOC}:{sLOC+1}], 0
            s_cbranch_scc0 L_stfar
            buffer_store_dwordx4 v[40:43], v17, {srd(SWS)}, s{sA1} offen
            s_branch L_stdone
            L_stfar:
            """)
        a(f"""
        buffer_store_dwordx4 v[40:43], v17, {srd(SWS)}, s{sA1} offen sc1
        L_stdone:
        s_mov_b64 exec, -1
        v_and_b32 v22, 31, v0
        v_lshrrev_b32 v23, 5, v0
        v_lshlrev_b32 v23, 10, v23
        v_lshl_add_u32 v17, v22, 4, v23
        """)
        for i in range(2):
            self.piece_idx(i, 22, 23)
            a(f"""
            v_mov_b32 v{20+i}, v22
            v_mul_u32_u24 v27, 896, v22
            v_lshl_add_u32 v{self.VTG+i}, v23, 4, v27
            v_mul_u32_u24 v22, 240, v22
            v_lshl_add_u32 v22, v23, 4, v22
            v_add_u32 v{15+i}, {L_TR}, v22
            """)
        a(f"""
        v_mul_u32_u24 v22, 4682, v0
        v_lshrrev_b32 v22, 16, v22
        v_mul_u32_u24 v27, 14, v22
        v_sub_u32 v23, v0, v27
        v_mul_u32_u24 v27, 896, v22
        v_lshl_add_u32 v19, v23, 4, v27
        v_mul_u32_u24 v22, 240, v22
        v_lshl_add_u32 v22, v23, 4, v22
        s_mul_i32 s{sT0}, s{sW}, 960
        s_add_u32 s{sT0}, s{sT0}, {L_TR+7680}
        v_add_u32 v18, s{sT0}, v22
        """)
        self.cand_base(sA5, sW)
        HF = 64
        for k in range(8):
            self.unpack(HF + 2 * k, H2 + k)
        a("s_waitcnt vmcnt(0)")
        self.stamp("hack")
        a("L_stpoll:")
        for c in range(2):
            a(f"buffer_load_dwordx4 {vr(40+4*c,4)}, v17, {srd(SWS)}, s{sA0} offen offset:{512*c} sc1")
        a("s_waitcnt vmcnt(0)")
        self.sentinel_any(range(40, 48), 22)
        a("s_cbranch_vccz L_stok")
        self.spin_guard("L_stok")
        a("s_branch L_stpoll\nL_stok:")
        self.stamp("stok")
        a(f"""
        v_pk_add_f32 v[40:41], v[40:41], v[44:45]
        v_pk_add_f32 v[42:43], v[42:43], v[46:47]
        v_permlane32_swap_b32 v40, v42
        v_permlane32_swap_b32 v41, v43
        v_pk_add_f32 v[40:41], v[40:41], v[42:43]
        v_mov_b32 v42, v40
        v_mov_b32 v43, v41
        v_permlane32_swap_b32 v40, v42
        v_permlane32_swap_b32 v41, v43
        """)
        self.ln_scalars(40, 42, 44, 46, 22, 23)
        KEY = 47
        a(f"""
        v_fma_f32 v41, -v44, v43, v41
        v_mul_f32 v41, v41, v46
        v_cvt_pk_bf16_f32 v41, v41, v41
        v_ashrrev_i32 v22, 31, v41
        v_or_b32 v22, 0x80000000, v22
        v_xor_b32 v41, v41, v22
        v_and_b32 v41, 0xffff0000, v41
        v_lshrrev_b32 v41, 1, v41
        v_and_b32 v22, 31, v0
        s_lshl_b32 s{sT0}, s{sT}, 5
        s_sub_u32 s{sT0}, 2047, s{sT0}
        v_sub_u32 v22, s{sT0}, v22
        v_or_b32 v{KEY}, v41, v22
        v_mov_b32 v48, v{KEY}
        v_mov_b32 v49, v{KEY}
        v_permlane16_swap_b32 v48, v49
        v_cndmask_b32 v48, v49, v48, s[{sLO}:{sLO+1}]
        v_sub_u32 v80, v48, v{KEY}
        """)
        for n in range(1, 16):
            a(f"v_sub_u32_dpp v{80+n}, v48, v{KEY} row_ror:{n} row_mask:0xf bank_mask:0xf bound_ctrl:0".replace(" bound_ctrl:0", " bound_ctrl:1"))
        a("v_lshrrev_b32 v48, 31, v80\nv_lshrrev_b32 v49, 31, v81")
        for n in range(2, 16):
            a(f"v_alignbit_b32 v{48+n%2}, v{48+n%2}, v{80+n}, 31")
        a(f"""
        v_bcnt_u32_b32 v48, v48, 0
        v_bcnt_u32_b32 v48, v49, v48
        v_mov_b32 v49, v48
        v_permlane32_swap_b32 v48, v49
        v_add_u32 v48, v48, v49
        v_sub_u32 v48, 31, v48
        v_cmp_gt_u32 s[{sM}:{sM+1}], 8, v48
        v_lshlrev_b32 v49, 2, v48
        s_or_b32 s{sT0}, s{sW}, s{sC}
        s_cmp_lg_u32 s{sT0}, 0
        s_cbranch_scc1 L_norank
        ds_permute_b32 v49, v49, v{KEY}
        s_lshl_b32 s{sT0}, s{sT}, 7
        s_add_u32 s{sT0}, s{sT0}, {WS_KEYS}
        v_lshlrev_b32 v22, 2, v0
        s_mov_b64 exec, 0xff
        s_waitcnt lgkmcnt(0)
        buffer_store_dword v49, v22, {srd(SWS)}, s{sT0} offen sc1
        s_mov_b64 exec, -1
        L_norank:
        """)
        self.stamp("kst")
        a(f"""
        v_and_b32 v22, 31, v0
        v_sub_u32 v22, v48, v22
        v_mul_i32_i24 v22, 240, v22
        v_add_u32 v13, v14, v22
        """)
        self.cand_write(H2, 7680 + 1920)
        for k in range(8):
            self.unpack(HF + 2 * k, H2 + k) if False else None
        D, HN2, OUT2 = 80, 48, 56
        for k in range(8):
            a(f"v_pk_add_f32 {vr(D+2*k,2)}, {vr(HF+2*k,2)}, v[44:45] op_sel_hi:[1,0] neg_lo:[0,1] neg_hi:[0,1]")
        for k in range(8):
            a(f"v_cvt_pk_bf16_f32 v{HN2+k}, v{D+2*k}, v{D+2*k+1}")
        for k in range(8):
            self.unpack(D + 2 * k, HN2 + k)
        for k in range(8):
            a(f"v_pk_mul_f32 {vr(D+2*k,2)}, {vr(D+2*k,2)}, v[46:47] op_sel_hi:[1,0]")
        for k in range(8):
            a(f"v_cvt_pk_bf16_f32 v{HN2+k}, v{D+2*k}, v{D+2*k+1}")
        self.cand_write(HN2, 7680)
        a("s_waitcnt lgkmcnt(0)")
        if self.T2:
            self.stamp("cb0")
        a("s_barrier")
        if self.T2:
            self.stamp("cb1")
        a("ds_read_b128 v[40:43], v18")
        for k in range(8):
            self.unpack(D + 2 * k, HN2 + k)
        a(f"""
        s_mov_b32 exec_hi, 0xffffff
        s_waitcnt lgkmcnt(0)
        buffer_store_dwordx4 v[40:43], v19, {srd(SWS)}, s{sA5} offen sc1
        s_mov_b32 exec_hi, -1
        v_lshlrev_b32 v2, 7, v0
        s_mov_b32 s{sA1}, {WS_KEYS}
        """)
        if self.KPOS == 0:
            self.key_first()
        for k in range(8):
            a(f"v_pk_add_f32 {vr(D+2*k,2)}, {vr(D+2*k,2)}, {vr(HF+2*k,2)}")
        for k in range(8):
            a(f"v_cvt_pk_bf16_f32 v{OUT2+k}, v{D+2*k}, v{D+2*k+1}")
        self.tr_write(OUT2, 0)
        self.KEY = KEY

    def ffn_weights(self):
        a = self.a
        a(f"""
        s_cmp_lt_i32 s{sF}, 0
        s_cbranch_scc1 L_noffw
        v_lshrrev_b32 v22, 2, v0
        v_mul_u32_u24 v22, 3584, v22
        v_and_b32 v23, 3, v0
        v_lshl_add_u32 v22, v23, 4, v22
        s_mul_i32 s{sT0}, s{sW}, {7*16*3584}
        s_lshl_b32 s{sT1}, s{sF}, 6
        s_add_u32 s{sT0}, s{sT0}, s{sT1}
        s_mul_i32 s{sT1}, s{sW}, 7168
        """)
        for j in range(7):
            a(f"""
            s_add_u32 m0, s{sT1}, {L_WG+j*1024}
            s_add_u32 s{sT2}, s{sT0}, {j*16*3584}
            buffer_load_dwordx4 v22, {srd(SWG)}, s{sT2} offen lds
            s_add_u32 m0, s{sT1}, {L_WU+j*1024}
            buffer_load_dwordx4 v22, {srd(SWU)}, s{sT2} offen lds
            """)
        a(f"""
        s_lshl_b32 s{sT0}, s{sF}, 2
        s_add_u32 s{sT0}, s{sT0}, s{sW}
        s_mul_i32 s{sT0}, s{sT0}, {8*896}
        s_mul_i32 s{sT1}, s{sW}, {8*928}
        s_mov_b32 exec_hi, 0xffffff
        """)
        for r in range(8):
            a(f"""
            s_add_u32 m0, s{sT1}, {L_WD+r*928}
            s_add_u32 s{sT2}, s{sT0}, {r*896}
            buffer_load_dwordx4 v1, {srd(SWD)}, s{sT2} offen lds
            """)
        a("s_mov_b32 exec_hi, -1\nL_noffw:")

    def bisect(self, levels, tag):
        a = self.a
        L = 32
        lo, hi, mid = sA0, sA1, sTH
        a(f"""
        s_mov_b32 s{lo}, 0
        s_mov_b32 s{hi}, 0x80000000
        L_bis{tag}:
        s_add_u32 s{mid}, s{lo}, s{hi}
        s_lshr_b32 s{mid}, s{mid}, 1
        """)
        for j in range(levels):
            a(f"v_cmp_le_u32 s[{64+2*j}:{65+2*j}], s{mid}, v{L+j}")
        a(f"s_bcnt1_i32_b64 s{sA2}, s[64:65]")
        for j in range(1, levels):
            a(f"s_bcnt1_i32_b64 s{sA3}, s[{64+2*j}:{65+2*j}]\ns_add_u32 s{sA2}, s{sA2}, s{sA3}")
        a(f"""
        s_cmp_eq_u32 s{sA2}, 8
        s_cbranch_scc1 L_bisdone{tag}
        s_cmp_eq_u32 s{mid}, s{lo}
        s_cbranch_scc1 L_bisdone{tag}
        s_cmp_gt_u32 s{sA2}, 8
        s_cselect_b32 s{lo}, s{mid}, s{lo}
        s_cselect_b32 s{hi}, s{hi}, s{mid}
        s_branch L_bis{tag}
        L_bisdone{tag}:
        """)

    def extract(self, levels):
        a = self.a
        a(f"s_mov_b32 s{sA2}, 0")
        for j in range(levels):
            m = 64 + 2 * j
            a(f"""
            v_mbcnt_lo_u32_b32 v22, s{m}, 0
            v_mbcnt_hi_u32_b32 v22, s{m+1}, v22
            v_add_u32 v22, s{sA2}, v22
            v_min_u32 v22, 7, v22
            v_lshl_add_u32 v22, v22, 3, s{sA4}
            v_add_u32 v23, {j}, v3
            s_mov_b64 exec, s[{m}:{m+1}]
            ds_write2_b32 v22, v{32+j}, v23 offset1:1
            s_mov_b64 exec, -1
            """)
            if j + 1 < levels:
                a(f"s_bcnt1_i32_b64 s{sA3}, s[{m}:{m+1}]\ns_add_u32 s{sA2}, s{sA2}, s{sA3}")

    AF, BF, WD = 128, 192, 64

    def ffn_pre(self):
        a = self.a
        a(f"""
        v_lshrrev_b32 v8, 4, v0
        v_lshrrev_b32 v9, 2, v0
        v_and_b32 v9, 3, v9
        v_and_b32 v10, 3, v0
        v_lshlrev_b32 v10, 3, v10
        v_lshl_add_u32 v11, v8, 3, v9
        v_lshl_add_u32 v11, v11, 6, v10
        s_lshr_b32 s{sT0}, s{sW}, 1
        s_mul_i32 s{sT0}, s{sT0}, 28672
        s_and_b32 s{sT1}, s{sW}, 1
        s_lshl_b32 s{sT1}, s{sT1}, 5
        s_add_u32 s{sT0}, s{sT0}, s{sT1}
        v_add_u32 v11, s{sT0}, v11
        v_lshl_add_u32 v12, v8, 2, v9
        v_mul_u32_u24 v12, 896, v12
        s_mul_i32 s{sT0}, s{sW}, 224
        s_add_u32 s{sT0}, s{sT0}, {L_WD}
        v_add3_u32 v12, v12, v10, s{sT0}
        v_subrev_u32 v14, {L_WD-L_WD2}, v12
        """)
        a(f"""
        s_lshl_b32 s{sT0}, s{sW}, 4
        s_add_u32 s{sT0}, s{sT0}, s{sA4}
        v_mov_b32 v26, s{sT0}
        v_lshl_add_u32 v24, v0, 2, s{sA4}
        v_min_u32 v10, 55, v0
        v_lshlrev_b32 v10, 4, v10
        s_mul_i32 s{sT0}, s{sW}, 2112
        s_add_u32 s{sT0}, s{sT0}, {L_G}
        v_add_u32 v6, s{sT0}, v10
        """)

    def ffn_reads(self):
        for s_ in range(14):
            self.a(f"ds_read_b64_tr_b16 {vr(self.AF+4*s_,2)}, v11 offset:{s_*2048}")
            self.a(f"ds_read_b64_tr_b16 {vr(self.AF+4*s_+2,2)}, v11 offset:{s_*2048+256}")
        a = self.a
        for i in range(7):
            a(f"ds_read_b64_tr_b16 {vr(self.WD+4*i,2)}, v12 offset:{i*32}")
            a(f"ds_read_b64_tr_b16 {vr(self.WD+4*i+2,2)}, v14 offset:{i*32}")

    def ffn_pre2(self):
        a = self.a
        a(f"""
        v_lshrrev_b32 v8, 4, v0
        v_and_b32 v9, 7, v0
        v_mul_u32_u24 v13, 1056, v9
        v_lshl_add_u32 v13, v8, 4, v13
        v_add_u32 v13, {L_G}, v13
        v_lshlrev_b32 v9, 4, v9
        v_lshl_add_u32 v9, v8, 7, v9
        v_and_b32 v8, 8, v0
        v_lshl_add_u32 v9, v8, 6, v9
        v_lshlrev_b32 v8, 4, v0
        v_add_u32 v8, {L_AX}, v8
        s_lshl_b32 s{sT0}, s{sW}, 10
        v_add_u32 v7, s{sT0}, v8
        s_mul_i32 s{sT0}, s{sF}, 14336
        s_mul_i32 s{sT1}, s{sW}, 3584
        s_add_u32 s{sT0}, s{sT0}, s{sT1}
        s_add_u32 s99, s{sT0}, {WS_Y}
        """)

    def key_first(self):
        self.a(f"""
        s_cmp_lt_i32 s{sF}, 0
        s_cbranch_scc1 L_nokey1
        s_cmp_lg_u32 s{sW}, 0
        s_cbranch_scc1 L_nokey1
        buffer_load_dwordx4 v[32:35], v2, {srd(SWS)}, s{sA1} offen sc1
        L_nokey1:
        """)

    def topk(self):
        a = self.a
        a(f"""
        s_mov_b32 s{sA4}, {L_SEL}
        v_lshlrev_b32 v3, 3, v0
        s_cmp_lt_i32 s{sF}, 0
        s_cbranch_scc1 L_kwait
        """)
        self.ffn_pre()
        self.ffn_pre2()
        a(f"""
        s_cmp_eq_u32 s{sW}, 0
        s_cbranch_scc1 L_ksel
        """)
        self.ffn_reads()
        a("s_branch L_selwait\nL_ksel:")
        self.stamp("kp0")
        a(f"""
        s_branch L_kchk
        L_kpoll:
        buffer_load_dwordx4 v[32:35], v2, {srd(SWS)}, s{sA1} offen sc1
        L_kchk:
        s_waitcnt vmcnt(0)
        """)
        self.sentinel_any(range(32, 36), 22)
        a("s_cbranch_vccz L_kok")
        self.spin_guard("L_kok")
        a("s_branch L_kpoll\nL_kok:")
        self.stamp("kok")
        lo, hi, mid = sA0, sA1, sTH
        a(f"""
        v_max_u32_dpp v22, v32, v32 row_ror:1 row_mask:0xf bank_mask:0xf bound_ctrl:1
        v_max_u32_dpp v22, v22, v22 row_ror:2 row_mask:0xf bank_mask:0xf bound_ctrl:1
        v_max_u32_dpp v22, v22, v22 row_ror:4 row_mask:0xf bank_mask:0xf bound_ctrl:1
        v_max_u32_dpp v23, v22, v22 row_ror:8 row_mask:0xf bank_mask:0xf bound_ctrl:1
        v_min_u32_dpp v22, v22, v22 row_ror:8 row_mask:0xf bank_mask:0xf bound_ctrl:1
        v_readlane_b32 s64, v23, 0
        v_readlane_b32 s65, v23, 16
        v_readlane_b32 s66, v23, 32
        v_readlane_b32 s67, v23, 48
        v_readlane_b32 s68, v22, 0
        v_readlane_b32 s69, v22, 16
        v_readlane_b32 s70, v22, 32
        v_readlane_b32 s71, v22, 48
        s_max_u32 s64, s64, s65
        s_max_u32 s66, s66, s67
        s_min_u32 s68, s68, s69
        s_min_u32 s70, s70, s71
        s_max_u32 s{hi}, s64, s66
        s_min_u32 s{lo}, s68, s70
        s_min_u32 s{hi}, s{hi}, 0x7fffffff
        s_min_u32 s{lo}, s{lo}, s{hi}
        s_sub_u32 s{lo}, s{lo}, 1
        s_max_i32 s{lo}, s{lo}, 0
        L_bisa:
        """)
        for k in range(self.BIS):
            a(f"""
            s_add_u32 s{mid}, s{lo}, s{hi}
            s_lshr_b32 s{mid}, s{mid}, 1
            v_cmp_lt_u32 s[64:65], s{mid}, v32
            v_cmp_lt_u32 s[66:67], s{mid}, v33
            s_bcnt1_i32_b64 s{sA2}, s[64:65]
            s_bcnt1_i32_b64 s{sA3}, s[66:67]
            s_add_u32 s{sA2}, s{sA2}, s{sA3}
            s_cmp_eq_u32 s{sA2}, 8
            s_cbranch_scc1 L_bisdonea
            s_cmp_gt_u32 s{sA2}, 8
            s_cselect_b32 s{lo}, s{mid}, s{lo}
            s_cselect_b32 s{hi}, s{hi}, s{mid}
            """)
        a(f"""
        s_sub_u32 s{sA2}, s{hi}, s{lo}
        s_cmp_gt_u32 s{sA2}, 1
        s_cbranch_scc1 L_bisa
        s_branch L_topslow
        L_bisdonea:
        v_cmp_lt_u32 vcc, s{mid}, v34
        s_add_u32 s{mid}, s{mid}, 1
        {"s_branch" if self.FSLOW else "s_cbranch_vccnz"} L_topslow
        """)
        self.extract(2)
        a(f"""
        L_topdone:
        v_mov_b32 v22, s{sA4}
        v_mov_b32 v23, s{sTH}
        ds_write_b32 v22, v23 offset:64
        L_selwait:
        s_waitcnt lgkmcnt(0)
        s_barrier
        """)
        self.stamp("topk")

    BIS = 6
    FSLOW = 0
    EPOS = 1
    KPOS = 0
    T2 = 0
    EOUTP = ' sc1'
    LOC = 1
    OUTP = ''
    RSL = 2
    YL = 0
    YS = 0
    OL = 0
    FPRE = 0

    def topk_slow(self):
        if self.OL:
            self.a(f"""
            L_ohint:
            v_and_b32 v22, 3, v0
            v_lshlrev_b32 v22, 11, v22
            v_add_u32 v22, 2044, v22
            L_ohint2:
            buffer_load_dword v23, v22, {srd(SWS)}, s{sA0} offen sc1
            s_waitcnt vmcnt(0)
            v_cmp_eq_u32 vcc, -1, v23
            s_cbranch_vccz L_odma
            """)
            self.spin_guard("L_odma")
            self.a("s_branch L_ohint2")
        self.a(f"""
        L_topslow:
        s_mov_b32 s{sA1}, {WS_KEYS}
        L_kpoll2:
        buffer_load_dwordx4 v[36:39], v2, {srd(SWS)}, s{sA1} offen offset:16 sc1
        s_waitcnt vmcnt(0)
        """)
        self.sentinel_any(range(36, 40), 22)
        self.a("s_cbranch_vccz L_kok2")
        self.spin_guard("L_kok2")
        self.a("s_branch L_kpoll2\nL_kok2:")
        self.bisect(8, "b")
        self.extract(8)
        self.a("s_branch L_topdone")

    def key_token(self, d, k):
        self.a(f"v_and_b32 v{d}, 0x7ff, v{k}\nv_sub_u32 v{d}, 2047, v{d}")

    def ffn(self):
        a = self.a
        a(f"""
        ds_read2_b32 v[4:5], v26 offset0:1 offset1:3
        ds_read_b32 v25, v24
        s_mov_b32 s{sA0}, {WS_HN}
        s_movk_i32 s{sA1}, 896
        s_waitcnt lgkmcnt(1)
        v_and_b32 v4, 511, v4
        v_and_b32 v5, 511, v5
        v_mad_u32_u24 v4, v4, s{sA1}, v10
        v_mad_u32_u24 v5, v5, s{sA1}, v10
        L_gpoll:
        buffer_load_dwordx4 v[32:35], v4, {srd(SWS)}, s{sA0} offen sc1
        buffer_load_dwordx4 v[36:39], v5, {srd(SWS)}, s{sA0} offen sc1
        """)
        a(f"""
        s_waitcnt lgkmcnt(0)
        v_readlane_b32 s{sTH}, v25, 16
        v_lshlrev_b32 v24, 2, v0
        s_lshl_b32 s{sA2}, s{sF}, 7
        s_add_u32 s{sA2}, s{sA2}, {WS_RES}
        v_cmp_le_u32 s[80:81], s{sTH}, v{self.KEY}
        s_cmp_lg_u32 s{sW}, 0
        s_cbranch_scc1 L_haveA
        """)
        self.ffn_reads()
        a("L_haveA:")
        a(f"""
        s_waitcnt vmcnt(1)
        ds_write_b128 v6, v[32:35]
        v_max3_u32 v22, v32, v33, v34
        s_waitcnt vmcnt(0)
        ds_write_b128 v6, v[36:39] offset:1056
        v_max3_u32 v22, v22, v35, v36
        v_max3_u32 v22, v22, v37, v38
        v_max_u32 v22, v22, v39
        v_cmp_eq_u32 vcc, -1, v22
        s_cbranch_vccz L_gok
        """)
        self.spin_guard("L_gok")
        a(f"""
        s_branch L_gpoll
        L_gok:
        """)
        self.stamp("gath")
        a(f"""
        s_waitcnt lgkmcnt(0)
        s_barrier
        s_cmp_lg_u32 s{sW}, 3
        s_cbranch_scc1 L_nores
        s_mov_b64 exec, 0x1ffff
        buffer_store_dword v25, v24, {srd(SWS)}, s{sA2} offen sc1
        s_mov_b64 exec, -1
        L_nores:
        """)
        lq = LQ(a)
        AF, BF, WD, D = self.AF, self.BF, self.WD, 40
        for s_ in range(14):
            lq.op(f"ds_read_b128 {vr(BF+4*s_,4)}, v13 offset:{s_*64}", s_)
        for s_ in range(14):
            if s_ % 2 == 0:
                lq.wait(s_ + 1)
            a(M16(D + 4 * (s_ % 2), AF + 4 * s_, BF + 4 * s_, D + 4 * (s_ % 2) if s_ > 1 else None))
        for k in range(4):
            a(f"v_add_f32 v{D+k}, v{D+k}, v{D+4+k}")
        a(f"""
        v_cvt_pk_bf16_f32 v44, v{D}, v{D+1}
        v_cvt_pk_bf16_f32 v45, v{D+2}, v{D+3}
        s_cmp_ge_u32 s{sW}, 2
        s_cbranch_scc1 L_nosilu
        """)
        self.unpack(48, 44)
        self.unpack(50, 45)
        for k in range(4):
            a(f"v_mul_f32 v{52+k}, {hex(fbits(-LOG2E))}, v{48+k}")
        for k in range(4):
            a(f"v_exp_f32 v{52+k}, v{52+k}")
        for k in range(4):
            a(f"v_add_f32 v{52+k}, 1.0, v{52+k}")
        for k in range(4):
            a(f"v_rcp_f32 v{52+k}, v{52+k}")
        for k in range(4):
            a(f"v_mul_f32 v{48+k}, v{48+k}, v{52+k}")
        a(f"""
        v_cvt_pk_bf16_f32 v44, v48, v49
        v_cvt_pk_bf16_f32 v45, v50, v51
        L_nosilu:
        v_lshlrev_b32 v40, 16, v44
        v_and_b32 v41, 0xffff0000, v44
        v_lshlrev_b32 v42, 16, v45
        v_and_b32 v43, 0xffff0000, v45
        ds_write_b128 v7, v[40:43]
        s_waitcnt lgkmcnt(0)
        s_barrier
        ds_read_b128 v[48:51], v8
        ds_read_b128 v[56:59], v8 offset:2048
        ds_read_b128 v[52:55], v8 offset:1024
        ds_read_b128 v[60:63], v8 offset:3072
        s_waitcnt lgkmcnt(2)
        v_pk_mul_f32 v[48:49], v[48:49], v[56:57]
        v_pk_mul_f32 v[50:51], v[50:51], v[58:59]
        s_waitcnt lgkmcnt(0)
        v_pk_mul_f32 v[52:53], v[52:53], v[60:61]
        v_pk_mul_f32 v[54:55], v[54:55], v[62:63]
        """)
        for k in range(4):
            a(f"v_cvt_pk_bf16_f32 v{44+k}, v{48+2*k}, v{49+2*k}")
        for i in range(7):
            a(M16(128 + 4 * i, WD + 4 * i, 44))
        a("s_mov_b32 vcc_lo, 0xff00ff00\ns_mov_b32 vcc_hi, 0xff00ff00")
        for i in range(0, 6, 2):
            for k in range(4):
                a(f"v_cndmask_b32 v{128+4*i+k}, v{128+4*i+k}, v{132+4*i+k}, vcc")
            a(f"buffer_store_dwordx4 {vr(128+4*i,4)}, v9, {srd(SWS)}, s99 offen offset:{512*i} sc1")
        a("s_mov_b32 exec_lo, 0x00ff00ff\ns_mov_b32 exec_hi, 0x00ff00ff")
        a(f"buffer_store_dwordx4 v[152:155], v9, {srd(SWS)}, s99 offen offset:3072 sc1")
        a("s_mov_b64 exec, -1")
        self.stamp("ypub")
        a("s_branch L_noffn\nL_kwait:\ns_waitcnt lgkmcnt(0)\ns_barrier")
        if self.EPOS == 1:
            self.out_rows(sM, "e", self.EOUTP)
        a(f"""
        s_mul_i32 s{sT0}, s{sI}, 9363
        s_lshr_b32 s{sT0}, s{sT0}, 16
        s_mul_i32 s{sT0}, s{sT0}, 7
        s_sub_u32 s{sT0}, s{sI}, s{sT0}
        s_mul_i32 s{sT1}, s{sXCD}, 7
        s_add_u32 s{sT0}, s{sT0}, s{sT1}
        s_lshl_b32 s{sT0}, s{sT0}, 7
        s_add_u32 s{sA0}, s{sT0}, {WS_RES}
        v_and_b32 v2, 7, v0
        v_lshlrev_b32 v3, 3, v2
        s_waitcnt vmcnt(0)
        L_respoll:
        buffer_load_dwordx2 v[12:13], v3, {srd(SWS)}, s{sA0} offen sc1
        buffer_load_dword v14, v31, {srd(SWS)}, s{sA0} offen offset:64 sc1
        s_waitcnt vmcnt(0)
        v_max3_u32 v22, v12, v13, v14
        v_cmp_eq_u32 vcc, -1, v22
        s_cbranch_vccz L_resok
        """)
        self.spin_guard("L_resok")
        a(f"""
        s_sleep {self.RSL}
        s_branch L_respoll
        L_resok:
        v_cmp_le_u32 s[80:81], v14, v{self.KEY}
        """)
        self.stamp("res")
        a("L_noffn:")

    def out_rows(self, mask=80, tag="", pol=None):
        a = self.a
        pol = self.OUTP if pol is None else pol
        a(f"""
        ds_read_b128 v[48:51], v15
        ds_read_b128 v[52:55], v16
        v_lshrrev_b32_e64 v22, v20, s{mask}
        v_lshrrev_b32_e64 v23, v21, s{mask}
        v_and_b32 v22, 1, v22
        v_and_b32 v23, 1, v23
        v_cmp_eq_u32 s[70:71], 0, v22
        v_cmp_eq_u32 vcc, 0, v23
        s_waitcnt lgkmcnt(0)
        s_mov_b64 exec, s[70:71]
        s_cbranch_execz L_out1{tag}
        buffer_store_dwordx4 v[48:51], v{self.VTG}, {srd(SOUT)}, s{sROW} offen{pol}
        L_out1{tag}:
        s_and_b32 vcc_hi, vcc_hi, 0xffff
        s_mov_b64 exec, vcc
        s_cbranch_execz L_out2{tag}
        buffer_store_dwordx4 v[52:55], v{self.VTG+1}, {srd(SOUT)}, s{sROW} offen{pol}
        L_out2{tag}:
        s_mov_b64 exec, -1
        """)

    def reducer(self):
        a = self.a
        a(f"""
        s_cmp_lt_i32 s{sU}, 0
        s_cbranch_scc1 L_fin
        s_cmp_lg_u32 s{sW}, 0
        s_cbranch_scc1 L_fin
        v_lshrrev_b32 v5, 3, v0
        v_mul_u32_u24 v5, 14336, v5
        v_lshl_add_u32 v5, v2, 4, v5
        v_lshrrev_b32 v6, 4, v0
        s_lshl_b32 s{sT0}, s{sU}, 3
        v_lshl_add_u32 v6, v6, 1, s{sT0}
        s_movk_i32 s{sA1}, 896
        s_mov_b32 s{sA2}, {WS_HH}
        s_mov_b32 s{sA3}, {WS_HN}
        s_lshl_b32 s{sA0}, s{sU}, 7
        s_add_u32 s{sA0}, s{sA0}, {WS_Y}
        s_waitcnt lgkmcnt(0)
        """)
        self.key_token(7, 12)
        a(f"""
        v_and_b32 v13, 511, v13
        v_mad_u32_u24 v13, v13, s{sA1}, v6
        v_mad_u32_u24 v6, v7, s{sA1}, v6
        L_rpoll:
        buffer_load_ushort v8, v13, {srd(SWS)}, s{sA2} offen sc1
        buffer_load_ushort v9, v13, {srd(SWS)}, s{sA3} offen sc1
        v_lshlrev_b32 v10, 1, v12
        v_and_b32 v10, 0xffff0000, v10
        v_ashrrev_i32 v11, 31, v10
        v_not_b32 v11, v11
        v_or_b32 v11, 0x80000000, v11
        v_xor_b32 v10, v10, v11
        v_and_b32 v10, 0xffff0000, v10
        v_mul_f32 v10, {hex(fbits(-LOG2E))}, v10
        v_exp_f32 v10, v10
        v_add_f32 v10, 1.0, v10
        v_rcp_f32 v10, v10
        v_cvt_pk_bf16_f32 v10, v10, v10
        v_and_b32 v10, 0xffff0000, v10
        s_waitcnt vmcnt(0)
        v_max_u32 v11, v8, v9
        v_cmp_eq_u32 vcc, 0xffff, v11
        s_cbranch_vccz L_rok
        """)
        self.spin_guard("L_rok")
        a(f"""
        s_branch L_rpoll
        L_rok:
        v_lshlrev_b32 v8, 16, v8
        v_lshlrev_b32 v9, 16, v9
        """)
        self.stamp("rpre")
        if self.YS:
            a(f"s_sleep {self.YS}")
        if self.YL:
            a(f"""
            s_cmp_ge_u32 s{sU}, 56
            s_cselect_b32 s{sT0}, 56, 0
            s_sub_u32 s{sT0}, s{sU}, s{sT0}
            s_mul_i32 s{sT0}, s{sT0}, 14336
            s_add_u32 s{sA1}, s{sA0}, s{sT0}
            L_yhint:
            buffer_load_dword v32, v31, {srd(SWS)}, s{sA1} offen sc1
            s_waitcnt vmcnt(0)
            v_cmp_eq_u32 vcc, -1, v32
            s_cbranch_vccz L_ypoll
            """)
            self.spin_guard("L_ypoll")
            a(f"s_sleep {self.YL}\ns_branch L_yhint")
        a("L_ypoll:")
        for i in range(7):
            a(f"""
            s_add_u32 s{sT0}, s{sA0}, {i*8*14336}
            buffer_load_dwordx4 {vr(32+4*i,4)}, v5, {srd(SWS)}, s{sT0} offen sc1
            """)
        a("s_waitcnt vmcnt(0)")
        self.sentinel_any(range(32, 60), 22)
        a("s_cbranch_vccz L_yok")
        self.spin_guard("L_yok")
        a("s_branch L_ypoll\nL_yok:")
        self.stamp("yok")
        for (x, y) in ((32, 36), (40, 44), (48, 52), (32, 40), (48, 56), (32, 48)):
            a(f"v_pk_add_f32 {vr(x,2)}, {vr(x,2)}, {vr(y,2)}\nv_pk_add_f32 {vr(x+2,2)}, {vr(x+2,2)}, {vr(y+2,2)}")
        for k in range(4):
            a(f"v_add_f32_dpp v{36+k}, v{32+k}, v{32+k} row_ror:8 row_mask:0xf bank_mask:0xf bound_ctrl:1")
        a(f"""
        v_permlane16_swap_b32 v36, v37
        v_permlane16_swap_b32 v38, v39
        v_add_f32 v36, v36, v37
        v_add_f32 v38, v38, v39
        v_permlane32_swap_b32 v36, v38
        v_add_f32 v36, v36, v38
        v_cvt_pk_bf16_f32 v36, v36, v36
        v_and_b32 v36, 0xffff0000, v36
        v_mul_f32 v36, v36, v10
        v_cvt_pk_bf16_f32 v36, v36, v36
        v_and_b32 v36, 0xffff0000, v36
        v_add_f32 v36, v36, v9
        v_cvt_pk_bf16_f32 v36, v36, v36
        v_and_b32 v36, 0xffff0000, v36
        v_add_f32 v36, v36, v8
        v_cvt_pk_bf16_f32 v36, v36, v36
        s_mov_b32 exec_lo, 0x00ff00ff
        s_mov_b32 exec_hi, 0x00ff00ff
        buffer_store_short v36, v6, {srd(SOUT)}, 0 offen{self.OUTP}
        s_mov_b64 exec, -1
        """)
        self.stamp("rend")

    def tail(self):
        self.p3()
        self.topk()
        self.ffn()
        if self.EPOS == 0:
            self.a(f"s_orn2_b32 s80, s80, s{sM}")
        elif self.EPOS == 1:
            self.a(f"""
            s_cmp_lt_i32 s{sF}, 0
            s_cselect_b32 s{sT0}, s{sM}, -1
            s_orn2_b32 s80, s80, s{sT0}
            """)
        self.out_rows()
        self.reducer()

    def redo(self):
        self.topk_slow()
        super().redo()


if __name__ == "__main__":
    g = Full()
    s, n = g.build()
    sys.stdout.write(s)
    print("pads:", n, file=sys.stderr)
```
